```python
import torch

def _softmax(x, axis=-1):
    return torch.softmax(x, dim=axis)
def _gelu(x):
    return torch.nn.functional.gelu(x, approximate="tanh")
def _silu(x):
    return torch.nn.functional.silu(x)
def _sigmoid(x):
    return torch.sigmoid(x)
def _layernorm(x, axis=-1, eps=1e-5):
    m = x.mean(dim=axis, keepdim=True)
    v = x.var(dim=axis, keepdim=True, unbiased=False)
    return (x - m) / torch.sqrt(v + eps)
def _scatter_add(tgt, idx, src, axis=0):
    return tgt.clone().index_add_(axis, idx, src)
def _segment_sum(src, seg, n):
    out = torch.zeros((n,) + src.shape[1:], dtype=src.dtype)
    return out.index_add_(0, seg, src)
def _pad(x, pw):
    flat = tuple(v for pair in reversed(pw) for v in pair)
    return torch.nn.functional.pad(x, flat)

kernel_name = 'sequential_preLN__softmax_full_mha__glu_gated_bilinear__prompt'

def setup_inputs():

    _w = (lambda a: (lambda t: t.to(torch.bfloat16) if t.is_floating_point() else t)(torch.as_tensor(a)))
    def _A_setup():
        B, S, D = 1, 2048, 640
        return {
            "x": _w((lambda *s: torch.randn(*s, dtype=torch.bfloat16) * 0.05)(B, S, D)),
            "wqkv": _w((lambda *s: torch.randn(*s, dtype=torch.bfloat16) * 0.05)(D, 3 * D)),
            "wo": _w((lambda *s: torch.randn(*s, dtype=torch.bfloat16) * 0.05)(D, D)),
        }
    _A_in = _A_setup()

    def _B_setup():
        B, S, D, F = 1, 2048, 640, 1728
        return {
            "x": _w((lambda *s: torch.randn(*s, dtype=torch.bfloat16) * 0.05)(B, S, D)),
            "w_gate": _w((lambda *s: torch.randn(*s, dtype=torch.bfloat16) * 0.8)(D, F) * (D ** -0.5)),
            "w_up": _w((lambda *s: torch.randn(*s, dtype=torch.bfloat16) * 0.8)(D, F) * (D ** -0.5)),
            "w_down": _w((lambda *s: torch.randn(*s, dtype=torch.bfloat16) * 0.8)(F, D) * (F ** -0.5)),
        }
    _B_in = _B_setup()

    return {
        "A_x": _A_in["x"],
        "A_wqkv": _A_in["wqkv"],
        "A_wo": _A_in["wo"],
        "B_x": _B_in["x"],
        "B_w_gate": _B_in["w_gate"],
        "B_w_up": _B_in["w_up"],
        "B_w_down": _B_in["w_down"],
    }

def reference(A_x, A_wqkv, A_wo, B_x, B_w_gate, B_w_up, B_w_down):
    def _A_ref(x, wqkv, wo):
        B, S, D = x.shape
        H = 32; Dh = D // H
        qkv = (lambda x, *d: x.permute(*d))((x @ wqkv).reshape(B, S, 3, H, Dh), 2, 0, 3, 1, 4)
        q, k, v = qkv[0], qkv[1], qkv[2]
        scale = Dh ** -0.5
        scores = torch.einsum("bhqd,bhkd->bhqk", q, k) * scale
        p = _softmax(scores, axis=-1)
        o = torch.einsum("bhqk,bhkd->bhqd", p, v)
        return (lambda x, *d: x.permute(*d))(o, 0, 2, 1, 3).reshape(B, S, D) @ wo

    def _B_ref(x, w_gate, w_up, w_down):
        g = torch.einsum("bsd,df->bsf", x, w_gate)
        u = torch.einsum("bsd,df->bsf", x, w_up)
        h = g * u
        return torch.einsum("bsf,fd->bsd", h, w_down)

    x = A_x
    h = x + _A_ref(_layernorm(x, axis=-1), A_wqkv, A_wo)
    h2 = h + _B_ref(_layernorm(h, axis=-1), B_w_gate, B_w_up, B_w_down)
    return h2
```

```python
class Asm:
    def __init__(self):
        self.L = []
        self.uid = 0
    def __call__(self, s):
        for line in s.split("\n"):
            line = line.strip()
            if not line: continue
            if line.endswith(":") or line.startswith("."): self.L.append(line)
            else: self.L.append("    " + line)
    def ext(self, lst):
        for s in lst: self(s)
    def label(self, base):
        self.uid += 1
        return f"L_{base}_{self.uid}"
    def text(self):
        return "\n".join(self.L) + "\n"

def v(i, n=1): return f"v{i}" if n == 1 else f"v[{i}:{i+n-1}]"
def a(i, n=1): return f"a{i}" if n == 1 else f"a[{i}:{i+n-1}]"
def s(i, n=1): return f"s{i}" if n == 1 else f"s[{i}:{i+n-1}]"
def r(i, n=1):
    return v(i, n) if i < 256 else a(i - 256, n)

def kstart(A, name):
    A(".text"); A(f".globl {name}"); A(".p2align 8"); A(f".type {name},@function"); A(f"{name}:")
def kdesc(A, name, nv, ns=102, acc=None):
    acc = acc or min((nv + 3)//4*4, 256)
    A('.section .rodata,"a"'); A(".p2align 6"); A(f".amdhsa_kernel {name}")
    for l in (f".amdhsa_next_free_vgpr {nv}", f".amdhsa_next_free_sgpr {ns}", f".amdhsa_accum_offset {acc}",
              ".amdhsa_group_segment_fixed_size 0", ".amdhsa_kernarg_size 80", ".amdhsa_user_sgpr_count 2",
              ".amdhsa_user_sgpr_kernarg_segment_ptr 1", ".amdhsa_system_sgpr_workgroup_id_x 1",
              ".amdhsa_float_denorm_mode_32 3"):
        A.L.append("  " + l)
    A(".end_amdhsa_kernel")
def srd(A, d, base, size):
    A(f"s_mov_b32 s{d}, s{base}"); A(f"s_mov_b32 s{d+1}, s{base+1}")
    A(f"s_mov_b32 s{d+2}, {size}"); A(f"s_mov_b32 s{d+3}, 0x20000")

def mf32(d, x, y, c=None, mod=""):
    c = r(d, 16) if c is None else (c if isinstance(c, str) else r(c, 16))
    return f"v_mfma_f32_32x32x16_bf16 {r(d,16)}, {r(x,4)}, {r(y,4)}, {c} {mod}".strip()
def mf16(d, x, y, c=None):
    c = r(d, 4) if c is None else (c if isinstance(c, str) else r(c, 4))
    return f"v_mfma_f32_16x16x32_bf16 {r(d,4)}, {r(x,4)}, {r(y,4)}, {c}"
def mf2b(d, x, y, c, abid):
    c = c if isinstance(c, str) else r(c, 32)
    return f"v_mfma_f32_32x32x4_2b_bf16 {r(d,32)}, {r(x,2)}, {r(y,2)}, {c} cbsz:1 abid:{abid}"

def interleave(A, mfmas, salu, mem, valu, cap):
    salu, mem, valu = list(salu), list(mem), list(valu)
    n = len(mfmas)
    for i, m in enumerate(mfmas):
        A(m)
        left = n - i
        if salu: A(salu.pop(0))
        c = cap[i]
        nm = min(len(mem), -(-len(mem)//left), c) if i < n-1 else len(mem)
        for _ in range(nm): A(mem.pop(0))
        c -= nm
        nvv = min(len(valu), max(c, 0)) if i < n-1 else len(valu)
        for _ in range(nvv): A(valu.pop(0))
    for x in salu: A(x)
```

```python
import sys, math, struct
from dsl import *

NAME = "sequential_preLN__softmax_full_mha__glu_gated_bilinear__prompt"
QK_OFF = 0
V_OFF = 32*163840
O_OFF = 8388608
H_OFF = O_OFF + 2621440
HH_OFF = H_OFF + 2621440
WGU_OFF = 20971520
WD_OFF = WGU_OFF + 4423680
WO_OFF = WD_OFF + 2211840
CS_OFF = WO_OFF + 819200
STAMP_OFF = 29360128
WS_SIZE = 33554432
OOB = 0x40000000
def f2u(x): return struct.unpack("<I", struct.pack("<f", x))[0]
QSCALE = f2u(20**-0.5 * math.log2(math.e))
assert all((u*205) >> 10 == u//5 for u in range(160))
assert all((f*3277) >> 16 == f//20 for f in range(640))
assert all((e*6554) >> 16 == e//10 for e in range(320))

CFG = dict(stamps=False, st="", )

class Stamps:
    def __init__(self, A, kid): self.A, self.kid, self.n = A, kid, 0
    def mark(self):
        if not CFG["stamps"]: return
        self.A(f"s_memrealtime s[{80+2*self.n}:{81+2*self.n}]"); self.n += 1
    def flush(self, srd_ws, wave_sreg):
        if not CFG["stamps"]: return
        A = self.A
        A("s_waitcnt vmcnt(0)"); self.mark()
        A("s_waitcnt lgkmcnt(0)")
        A(f"s_lshl_b32 s79, s2, 2"); A(f"s_add_u32 s79, s79, s{wave_sreg}"); A("s_lshl_b32 s79, s79, 6")
        A(f"s_add_u32 s79, s79, {STAMP_OFF + self.kid*65536*2}")
        A("s_mov_b64 exec, 1")
        for i in range(self.n):
            A(f"v_mov_b32 v0, s{80+2*i}"); A(f"buffer_store_dword v0, off, s[{srd_ws}:{srd_ws+3}], s79 offset:{4*i}"); A("s_nop 1")

def swap01(A, dst, src, t):
    A(f"v_and_b32 {v(t)}, 1, {v(src)}"); A(f"v_lshlrev_b32 {v(t)}, 1, {v(t)}")
    A(f"v_bfe_u32 {v(dst)}, {v(src)}, 1, 1"); A(f"v_or_b32 {v(t)}, {v(t)}, {v(dst)}")
    A(f"v_and_b32 {v(dst)}, 4, {v(src)}"); A(f"v_or_b32 {v(dst)}, {v(dst)}, {v(t)}")

def make_sel(A, sel, lane, t):
    A(f"v_lshrrev_b32 {v(t)}, 2, {v(lane)}"); A(f"v_lshrrev_b32 {v(sel)}, 4, {v(lane)}")
    A(f"v_xor_b32 {v(t)}, {v(t)}, {v(sel)}"); A(f"v_and_b32 {v(t)}, 1, {v(t)}")
    A(f"v_add_u32 {v(t)}, -1, {v(t)}")
    A(f"v_and_b32 {v(sel)}, 0x3f803f80, {v(t)}")
    for i in range(1, 4): A(f"v_mov_b32 {v(sel+i)}, {v(sel)}")

def gen_p1(A):
    K = "p1_kernel"
    kstart(A, K); ST = Stamps(A, 0); ST.mark()
    SX, SW, SWS = 12, 16, 20
    w, rt, ct, wm, wn = 24, 25, 26, 27, 28
    sox, sow, m0b = 30, 31, 32
    A("s_cmp_ge_u32 s2, 256"); A(f"s_cbranch_scc1 {K}_end")
    A("s_load_dwordx4 s[4:7], s[0:1], 0"); A("s_load_dwordx2 s[8:9], s[0:1], 72")
    lane, t0, t1, t2, t3 = 1, 2, 3, 4, 5
    dmx, dmw, xa, wa = 8, 12, 16, 24
    sel, rs, cs, sq, tmp = 28, 32, 36, 40, 44
    ACC, XF, WF = 128, 192, 200
    A(f"v_lshrrev_b32 {v(t0)}, 6, v0"); A(f"v_and_b32 {v(lane)}, 63, v0")
    A(f"v_readfirstlane_b32 s{w}, {v(t0)}")
    A("s_and_b32 s33, s2, 7"); A("s_lshr_b32 s34, s2, 3")
    A("s_and_b32 s35, s33, 3"); A("s_lshl_b32 s35, s35, 2"); A("s_and_b32 s36, s34, 3"); A(f"s_add_u32 s{rt}, s35, s36")
    A("s_lshr_b32 s35, s33, 2"); A("s_lshl_b32 s35, s35, 3"); A("s_lshr_b32 s36, s34, 2"); A(f"s_add_u32 s{ct}, s35, s36")
    A(f"s_and_b32 s{wm}, s{w}, 1"); A(f"s_lshr_b32 s{wn}, s{w}, 1")
    A(f"v_lshrrev_b32 {v(t0)}, 4, {v(lane)}")
    A(f"v_and_b32 {v(t1)}, 7, {v(lane)}"); A(f"v_xor_b32 {v(t1)}, {v(t1)}, {v(t0)}"); A(f"v_lshlrev_b32 {v(t1)}, 4, {v(t1)}")
    A(f"v_lshrrev_b32 {v(t2)}, 3, {v(lane)}"); A(f"v_mul_u32_u24 {v(t2)}, 1280, {v(t2)}")
    A(f"v_add_u32 {v(dmx)}, {v(t1)}, {v(t2)}")
    A(f"v_xor_b32 {v(t1)}, 64, {v(t1)}"); A(f"v_add_u32 {v(t1)}, {v(t1)}, {v(t2)}"); A(f"v_add_u32 {v(dmx+1)}, 9216, {v(t1)}")
    A(f"v_add_u32 {v(dmx+2)}, {2*9216}, {v(dmx)}"); A(f"v_add_u32 {v(dmx+3)}, {2*9216}, {v(dmx+1)}")
    A(f"v_lshlrev_b32 {v(t1)}, 2, {v(t0)}"); A(f"v_and_b32 {v(t2)}, 15, {v(lane)}"); A(f"v_xor_b32 {v(t1)}, {v(t1)}, {v(t2)}")
    A(f"v_lshlrev_b32 {v(t1)}, 4, {v(t1)}"); A(f"v_mul_u32_u24 {v(t2)}, 3840, {v(t0)}"); A(f"v_add_u32 {v(dmw)}, {v(t1)}, {v(t2)}")
    for b in range(1, 4): A(f"v_add_u32 {v(dmw+b)}, {b*14336}, {v(dmw)}")
    A(f"s_lshl_b32 s33, s{rt}, 2"); A(f"s_add_u32 s33, s33, s{w}"); A(f"s_mul_i32 s{sox}, s33, {32*1280}")
    A(f"s_mul_i32 s{sow}, s{w}, {16*3840}"); A(f"s_lshl_b32 s33, s{ct}, 8"); A(f"s_add_u32 s{sow}, s{sow}, s33")
    A(f"s_lshl_b32 s{m0b}, s{w}, 12")
    A("s_waitcnt lgkmcnt(0)")
    srd(A, SX, 4, 2621440); srd(A, SW, 6, 2457600); srd(A, SWS, 8, WS_SIZE)
    A(f"s_cmp_ge_u32 s{ct}, 15"); A(f"s_cbranch_scc1 {K}_idle")
    def dma_ops(stage):
        slot = stage % 5
        dx = lambda b: f"buffer_load_dwordx4 {v(dmx+b)}, s[{SX}:{SX+3}], s{sox} offen offset:{b*1024} lds"
        dw = lambda b: f"buffer_load_dwordx4 {v(dmw+b)}, s[{SW}:{SW+3}], s{sow} offen offset:{b*1024} lds"
        return [([f"s_add_u32 m0, s{m0b}, {slot*32768}"], [dx(0), dx(1)]),
                ([], [dx(2), dx(3)]),
                ([f"s_add_u32 m0, s{m0b}, {slot*32768+16384}", f"s_add_u32 s{sox}, s{sox}, 128"], [dw(0), dw(1)]),
                ([], [dw(2), dw(3), f"s_add_u32 s{sow}, s{sow}, {64*3840}"])]
    for stg in range(5):
        for sa, me in dma_ops(stg):
            A.ext(sa)
            if sa: A("s_nop 0")
            A.ext(me)
    ST.mark()
    A(f"v_and_b32 {v(t0)}, 31, {v(lane)}"); A(f"v_lshrrev_b32 {v(t1)}, 5, {v(lane)}")
    A(f"v_bfe_u32 {v(t2)}, {v(lane)}, 1, 3"); A(f"v_xor_b32 {v(t2)}, {v(t2)}, {v(t1)}")
    A(f"s_lshl_b32 s33, s{wm}, 1"); A(f"s_add_u32 s33, s33, s{wn}"); A("s_lshl_b32 s33, s33, 12")
    A(f"v_lshlrev_b32 {v(t0)}, 7, {v(t0)}"); A(f"v_add_u32 {v(t0)}, s33, {v(t0)}")
    for ks in range(4):
        A(f"v_xor_b32 {v(t3)}, {2*ks}, {v(t2)}"); A(f"v_lshl_add_u32 {v(xa+ks)}, {v(t3)}, 4, {v(t0)}")
        A(f"v_xor_b32 {v(xa+4+ks)}, 4096, {v(xa+ks)}")
    A(f"v_bfe_u32 {v(t0)}, {v(lane)}, 2, 2")
    A(f"v_lshl_add_u32 {v(t1)}, {v(t1)}, 3, {v(t0)}"); A(f"v_lshlrev_b32 {v(t1)}, 8, {v(t1)}")
    A(f"s_lshl_b32 s33, s{wn}, 1"); A(f"s_add_u32 s33, s33, s{wm}")
    A(f"v_xor_b32 {v(t0)}, s33, {v(t0)}"); A(f"v_lshl_add_u32 {v(t1)}, {v(t0)}, 6, {v(t1)}")
    A(f"v_bfe_u32 {v(t0)}, {v(lane)}, 4, 1"); A(f"v_and_b32 {v(t2)}, 3, {v(lane)}"); A(f"v_lshl_add_u32 {v(t0)}, {v(t0)}, 2, {v(t2)}")
    swap01(A, t2, t0, t3)
    A(f"v_lshl_add_u32 {v(t1)}, {v(t2)}, 3, {v(t1)}"); A(f"v_add_u32 {v(wa)}, 16384, {v(t1)}"); A(f"v_xor_b32 {v(wa+1)}, 64, {v(wa)}")
    make_sel(A, sel, lane, t0)
    for i in range(4): A(f"v_mov_b32 {v(sq+i)}, 0")
    A(f"s_cmp_ge_u32 s{ct}, 10"); A(f"s_cbranch_scc1 {K}_v")

    def base_of(stage): return {0: 0, 1: 0, 2: 65536, 3: 65536, 4: 131072}[stage % 5]
    def reads(g):
        stage, ks = divmod(g, 4); buf = g & 1
        so = (stage % 5)*32768 - base_of(stage)
        L = [f"ds_read_b128 {v(XF+16*buf,4)}, {v(xa+ks)} offset:{so}"]
        L += [f"ds_read_b64_tr_b16 {v(WF+16*buf+2*q,2)}, {v(wa)} offset:{so+(16*ks+4*q)*256}" for q in range(2)]
        L += [f"ds_read_b128 {v(XF+16*buf+4,4)}, {v(xa+4+ks)} offset:{so}"]
        L += [f"ds_read_b64_tr_b16 {v(WF+16*buf+4+2*q,2)}, {v(wa+1)} offset:{so+(16*ks+4*q)*256}" for q in range(2)]
        return L
    def mainloop(isv):
        A("s_waitcnt vmcnt(32)"); A("s_barrier"); ST.mark() if not isv else (A(f"s_memrealtime s[{80+2*(ST.n-2)}:{81+2*(ST.n-2)}]") if CFG["stamps"] else None)
        A.ext(reads(0))
        for g in range(40):
            stage, ks = divmod(g, 4); buf = g & 1
            X = lambda j: XF+16*buf+4*j
            W = lambda j: WF+16*buf+4*j
            A("s_waitcnt lgkmcnt(0)")
            if ks == 3 and stage < 9:
                A(f"s_waitcnt vmcnt({8*(min(stage+4, 9)-(stage+1))})"); A("s_barrier")
            c0 = "0" if g == 0 else None
            mm = lambda jw, jx: mf32(ACC+32*jw+16*jx, X(jx), W(jw), c0) if isv else mf32(ACC+32*jw+16*jx, W(jw), X(jx), c0)
            mf = [mm(0,0), mm(0,1), mf16(rs, sel, X(0), c0), mm(1,0), mm(1,1), mf16(cs, sel, W(0), c0)]
            mem = reads(g+1) if g < 39 else []
            salu = []
            ds_, dk = divmod(g+1, 4)
            dstage = ds_ + 4
            if 5 <= dstage <= 9:
                sa, me = dma_ops(dstage)[dk]; salu += sa; mem = mem + me
            valu = []
            for i in range(4):
                valu += [f"v_and_b32 {v(tmp)}, 0xffff0000, {v(X(0)+i)}", f"v_lshlrev_b32 {v(tmp+1)}, 16, {v(X(0)+i)}",
                         f"v_fmac_f32 {v(sq)}, {v(tmp)}, {v(tmp)}", f"v_fmac_f32 {v(sq+1)}, {v(tmp+1)}, {v(tmp+1)}"]
            if ks == 2 and stage < 9 and base_of(stage+1) != base_of(stage):
                d = (base_of(stage+1) - base_of(stage)) & 0xffffffff
                adj = [f"v_add_u32 {v(x)}, {d}, {v(x)}" for x in list(range(xa, xa+8)) + [wa, wa+1]]
            else: adj = []
            interleave(A, mf, salu, mem, valu, [6, 6, 2, 6, 6, 2])
            A.ext(adj)
        ST.mark() if not isv else (A(f"s_memrealtime s[{80+2*(ST.n-1)}:{81+2*(ST.n-1)}]") if CFG["stamps"] else None)
        A(f"v_add_f32 {v(sq)}, {v(sq)}, {v(sq+1)}"); A("s_nop 0"); A(f"v_mov_b32 {v(sq+1)}, {v(sq)}"); A("s_nop 1")
        A(f"v_permlane32_swap_b32 {v(sq)}, {v(sq+1)}"); A("s_nop 1")
        A(f"v_add_f32 {v(sq)}, {v(sq)}, {v(sq+1)}")
        A(f"v_mul_f32 {v(t0)}, {hex(f2u(-1/640))}, {v(rs)}")
        A(f"v_mul_f32 {v(sq)}, {hex(f2u(1/640))}, {v(sq)}")
        A(f"v_fma_f32 {v(sq)}, -{v(t0)}, {v(t0)}, {v(sq)}"); A(f"v_max_f32 {v(sq)}, 0, {v(sq)}")
        A(f"v_add_f32 {v(sq)}, {hex(f2u(1e-5))}, {v(sq)}"); A(f"v_rsq_f32 {v(t1)}, {v(sq)}")
        A(f"s_cmp_lt_u32 s{ct}, 5"); A(f"s_cselect_b32 s33, {hex(QSCALE)}, 1.0")
        A(f"v_and_b32 {v(t2)}, 31, {v(lane)}"); A(f"v_mul_f32 {v(t1)}, s33, {v(t1)}")
        A(f"s_lshl_b32 s34, s{wm}, 1"); A(f"s_add_u32 s34, s34, s{wn}"); A("s_lshl_b32 s34, s34, 7")
        A(f"s_lshl_b32 s35, s{wn}, 1"); A(f"s_add_u32 s35, s35, s{wm}"); A("s_lshl_b32 s35, s35, 7")
        xs, ws_ = 6, 7
        A(f"v_lshl_add_u32 {v(xs)}, {v(t2)}, 2, s34"); A(f"v_lshl_add_u32 {v(ws_)}, {v(t2)}, 2, s35")
        A(f"ds_write_b32 {v(xs)}, {v(t1)}"); A(f"ds_write_b32 {v(xs)}, {v(t0)} offset:512"); A(f"ds_write_b32 {v(ws_)}, {v(cs)} offset:1024")
        hh = t3; A(f"v_lshrrev_b32 {v(hh)}, 5, {v(lane)}")
        sa = 48
        A(f"s_lshl_b32 s36, s{rt}, 2"); A("s_lshr_b32 s37, s34, 7"); A("s_add_u32 s36, s36, s37"); A("s_xor_b32 s37, s36, 1")
        if not isv:
            A("s_mul_i32 s36, s36, 2560"); A("s_mul_i32 s37, s37, 2560")
            A(f"s_lshl_b32 s38, s{ct}, 4"); A("s_lshr_b32 s39, s35, 5"); A("s_add_u32 s38, s38, s39")
            A("s_mov_b32 s39, 163840")
            for jw in range(2):
                for aa in range(2):
                    d = sa + 2*jw + aa
                    A(f"s_xor_b32 s40, s38, {4*jw}"); A(f"s_add_u32 s40, s40, {2*aa}")
                    A(f"v_add_u32 {v(tmp)}, s40, {v(hh)}"); A(f"v_mul_u32_u24 {v(tmp+1)}, 205, {v(tmp)}"); A(f"v_lshrrev_b32 {v(tmp+1)}, 10, {v(tmp+1)}")
                    A(f"v_mul_u32_u24 {v(tmp+2)}, 5, {v(tmp+1)}"); A(f"v_sub_u32 {v(tmp)}, {v(tmp)}, {v(tmp+2)}")
                    A(f"v_mul_u32_u24 {v(tmp+1)}, s39, {v(tmp+1)}"); A(f"v_lshl_add_u32 {v(tmp)}, {v(tmp)}, 9, {v(tmp+1)}")
                    A(f"v_lshl_add_u32 {v(d)}, {v(t2)}, 4, {v(tmp)}")
        else:
            A("s_mul_i32 s36, s36, 1280"); A("s_mul_i32 s37, s37, 1280"); A(f"s_add_u32 s36, s36, {V_OFF}"); A(f"s_add_u32 s37, s37, {V_OFF}")
            A(f"s_sub_u32 s38, s{ct}, 10"); A("s_lshl_b32 s38, s38, 7"); A("s_lshr_b32 s39, s35, 2"); A("s_add_u32 s38, s38, s39")
            A(f"v_lshrrev_b32 {v(tmp)}, 2, {v(t2)}"); swap01(A, tmp+1, tmp, tmp+2)
            A(f"v_and_b32 {v(tmp)}, 3, {v(t2)}"); A(f"v_lshl_add_u32 {v(tmp+3)}, {v(tmp+1)}, 2, {v(tmp)}")
            A("s_mov_b32 s39, 81920")
            for jw in range(2):
                A(f"s_xor_b32 s40, s38, {32*jw}")
                A(f"v_add_u32 {v(tmp)}, s40, {v(tmp+3)}"); A(f"v_mul_u32_u24 {v(tmp+1)}, 3277, {v(tmp)}"); A(f"v_lshrrev_b32 {v(tmp+1)}, 16, {v(tmp+1)}")
                A(f"v_mul_u32_u24 {v(tmp+2)}, 20, {v(tmp+1)}"); A(f"v_sub_u32 {v(tmp)}, {v(tmp)}, {v(tmp+2)}")
                A(f"v_mul_u32_u24 {v(tmp+1)}, s39, {v(tmp+1)}"); A(f"v_lshl_add_u32 {v(tmp)}, {v(tmp)}, 4, {v(tmp+1)}")
                A(f"v_mul_u32_u24 {v(tmp+1)}, 320, {v(hh)}"); A(f"v_add_u32 {v(sa+jw)}, {v(tmp)}, {v(tmp+1)}")
        va = 52; PR, SC = 56, 120
        A(f"v_lshlrev_b32 {v(va)}, 4, {v(hh)}"); A(f"v_add_u32 {v(va)}, s{34 if isv else 35}, {v(va)}"); A(f"v_xor_b32 {v(va+1)}, 128, {v(va)}")
        A(f"v_xor_b32 {v(va+2)}, 128, {v(ws_ if isv else xs)}")
        A("s_waitcnt lgkmcnt(0)"); A("s_barrier")
        if not isv:
            A(f"ds_read_b32 {v(SC+2)}, {v(va+2)}"); A(f"ds_read_b32 {v(SC+6)}, {v(va+2)} offset:512")
            for j in range(2):
                for rg in range(4): A(f"ds_read_b128 {v(PR+16*j+4*rg,4)}, {v(va+j)} offset:{1024+32*rg}")
            A(f"v_mov_b32 {v(SC)}, {v(t1)}"); A(f"v_mov_b32 {v(SC+4)}, {v(t0)}")
        else:
            A(f"ds_read_b32 {v(SC+2)}, {v(va+2)} offset:1024")
            for j in range(2):
                for rg in range(4): A(f"ds_read_b128 {v(PR+32*j+16+4*rg,4)}, {v(va+j)} offset:{512+32*rg}")
                for rg in range(4): A(f"ds_read_b128 {v(PR+32*j+4*rg,4)}, {v(va+j)} offset:{32*rg}")
                if j == 0: A("s_waitcnt lgkmcnt(6)")
            A(f"v_mov_b32 {v(SC)}, {v(cs)}")
        A("s_waitcnt lgkmcnt(0)")
        for jw in range(2):
            for jx in range(2):
                ac = ACC+32*jw+16*jx
                for i in range(0, 16, 2):
                    if not isv:
                        A(f"v_pk_fma_f32 {v(ac+i,2)}, {v(PR+16*jw+i,2)}, {v(SC+4+2*jx,2)}, {v(ac+i,2)} op_sel_hi:[1,0,1]")
                    else:
                        A(f"v_pk_fma_f32 {v(ac+i,2)}, {v(PR+32*jx+16+i,2)}, {v(SC+2*jw,2)}, {v(ac+i,2)} op_sel_hi:[1,0,1]")
                for i in range(0, 16, 2):
                    if not isv: A(f"v_pk_mul_f32 {v(ac+i,2)}, {v(ac+i,2)}, {v(SC+2*jx,2)} op_sel_hi:[1,0]")
                    else: A(f"v_pk_mul_f32 {v(ac+i,2)}, {v(ac+i,2)}, {v(PR+32*jx+i,2)}")
                o = XF + 8*(2*jw+jx)
                for i in range(8): A(f"v_cvt_pk_bf16_f32 {v(o+i)}, {v(ac+2*i)}, {v(ac+2*i+1)}")
                for aa in range(2):
                    if not isv: A(f"buffer_store_dwordx4 {v(o+4*aa,4)}, {v(sa+2*jw+aa)}, s[{SWS}:{SWS+3}], s{36+jx} offen {CFG['st']}")
                    else: A(f"buffer_store_dwordx4 {v(o+4*aa,4)}, {v(sa+jw)}, s[{SWS}:{SWS+3}], s{36+jx} offen offset:{640*aa} {CFG['st']}")
    mainloop(False)
    A(f"s_branch {K}_fin")
    A(f"{K}_v:")
    mainloop(True)
    A(f"{K}_fin:")
    ST.flush(SWS, w)
    A("s_endpgm")
    A(f"{K}_idle:")
    A("v_mul_u32_u24 v2, 640, v0"); A(f"v_mov_b32 v3, {OOB}"); A("v_cmp_gt_u32 vcc, 128, v0"); A("s_nop 1"); A("v_cndmask_b32 v2, v3, v2, vcc")
    for i in range(4): A(f"v_mov_b32 {v(4+i)}, 0x3f803f80")
    A(f"s_mov_b32 s33, {V_OFF + 32*81920}")
    A(f"buffer_store_dwordx4 v[4:7], v2, s[{SWS}:{SWS+3}], s33 offen")
    A(f"{K}_end:")
    A("s_endpgm")
    kdesc(A, K, 256)
    return (K, 256, 256, 163840)

def relayout(A, K, w, SWS, lane):
    t0, t1, t2, t3 = 2, 3, 4, 5
    S1, S2 = 40, 44
    FR = 32
    A(f"s_mul_i32 s36, s{w}, 10240")
    A(f"v_lshlrev_b32 v6, 4, {v(lane)}")
    A("s_cmp_ge_u32 s2, 108"); A(f"s_cbranch_scc1 {K}_rl2")
    srd(A, S1, 8, 2211840); srd(A, S2, 10, 2211840)
    A(f"s_mul_i32 s37, s2, {(65536+26)//27}"); A("s_lshr_b32 s37, s37, 16")
    A("s_mul_i32 s38, s37, 27"); A("s_sub_u32 s38, s2, s38"); A("s_lshl_b32 s38, s38, 2"); A(f"s_add_u32 s38, s38, s{w}")
    A(f"s_mul_i32 s39, s37, {160*3456}"); A("s_lshl_b32 s48, s38, 5"); A("s_add_u32 s39, s39, s48")
    A(f"v_lshrrev_b32 {v(t0)}, 1, {v(lane)}"); A(f"v_mul_u32_u24 {v(t0)}, 3456, {v(t0)}"); A(f"v_and_b32 {v(t1)}, 1, {v(lane)}")
    A(f"v_lshl_add_u32 {v(t0)}, {v(t1)}, 4, {v(t0)}")
    for i in range(5):
        for mat, S in ((0, S1), (1, S2)):
            A(f"s_add_u32 m0, s36, {mat*5120+i*1024}"); A("s_nop 0")
            A(f"buffer_load_dwordx4 {v(t0)}, s[{S}:{S+3}], s39 offen lds")
        A(f"s_add_u32 s39, s39, {32*3456}")
    A(f"v_lshrrev_b32 {v(t0)}, 5, {v(lane)}"); A(f"v_bfe_u32 {v(t1)}, {v(lane)}, 2, 2"); A(f"v_lshl_add_u32 {v(t0)}, {v(t0)}, 3, {v(t1)}")
    A(f"v_lshlrev_b32 {v(t0)}, 5, {v(t0)}"); A(f"v_bfe_u32 {v(t1)}, {v(lane)}, 4, 1"); A(f"v_mul_u32_u24 {v(t1)}, 5120, {v(t1)}")
    A(f"v_add3_u32 {v(t0)}, {v(t0)}, {v(t1)}, s36"); A(f"v_and_b32 {v(t1)}, 3, {v(lane)}"); swap01(A, t2, t1, t3)
    A(f"v_lshl_add_u32 {v(t0)}, {v(t2)}, 3, {v(t0)}")
    make_sel(A, 8, lane, t1)
    A("s_mul_i32 s39, s37, 1080"); A("s_add_u32 s39, s39, s38"); A("s_lshl_b32 s39, s39, 10"); A(f"s_add_u32 s39, s39, {WGU_OFF}")
    A("s_waitcnt vmcnt(0)")
    for half in range(2):
        for ks in range(5*half, 5*half+5):
            for q in range(2): A(f"ds_read_b64_tr_b16 {v(FR+4*ks+2*q,2)}, {v(t0)} offset:{(16*ks+4*q)*32}")
        A("s_waitcnt lgkmcnt(0)")
    for ks in range(10):
        A(mf16(12, 8, FR+4*ks, "0" if ks == 0 else None))
        A(f"buffer_store_dwordx4 {v(FR+4*ks,4)}, v6, s[{SWS}:{SWS+3}], s39 offen {CFG['st']}")
        A(f"s_add_u32 s39, s39, {108*1024}")
    A("s_mul_i32 s39, s37, 108"); A("s_add_u32 s39, s39, s38"); A("s_lshl_b32 s39, s39, 7"); A(f"s_add_u32 s39, s39, {CS_OFF}")
    A(f"v_and_b32 {v(t0)}, 31, {v(lane)}"); A(f"v_lshlrev_b32 {v(t0)}, 2, {v(t0)}"); A("s_nop 3")
    A(f"buffer_store_dword v12, {v(t0)}, s[{SWS}:{SWS+3}], s39 offen {CFG['st']}")
    A(f"s_branch {K}_rl_done")
    A(f"{K}_rl2:")
    A("s_sub_u32 s37, s2, 108"); A("s_and_b32 s38, s37, 1"); A("s_lshl_b32 s38, s38, 2"); A(f"s_add_u32 s38, s38, s{w}")
    A("s_lshr_b32 s37, s37, 1")
    A("s_cmp_lt_u32 s37, 54")
    A(f"s_cselect_b32 s{S1}, s12, s4"); A(f"s_cselect_b32 s{S1+1}, s13, s5"); A(f"s_cselect_b32 s{S1+2}, 2211840, s50"); A(f"s_mov_b32 s{S1+3}, 0x20000")
    A("s_cselect_b32 s48, 0, 54"); A("s_cselect_b32 s49, 54, 20"); A(f"s_cselect_b32 s51, {WD_OFF}, s51")
    A("s_sub_u32 s37, s37, s48")
    A("s_mul_i32 s39, s37, 40960"); A("s_mul_i32 s48, s38, 160"); A("s_add_u32 s39, s39, s48")
    for i in range(5):
        A(f"v_add_u32 {v(t0)}, {64*i}, {v(lane)}"); A(f"v_mul_u32_u24 {v(t1)}, 6554, {v(t0)}"); A(f"v_lshrrev_b32 {v(t1)}, 16, {v(t1)}")
        A(f"v_mul_u32_u24 {v(t1)}, {1280-160}, {v(t1)}"); A(f"v_lshl_add_u32 {v(8+i)}, {v(t0)}, 4, {v(t1)}")
        A(f"s_add_u32 m0, s36, {i*1024}"); A("s_nop 0")
        A(f"buffer_load_dwordx4 {v(8+i)}, s[{S1}:{S1+3}], s39 offen lds")
    A(f"v_lshrrev_b32 {v(t0)}, 4, {v(lane)}"); A(f"v_bfe_u32 {v(t1)}, {v(lane)}, 2, 2"); A(f"v_lshl_add_u32 {v(t0)}, {v(t0)}, 3, {v(t1)}")
    A(f"v_mul_u32_u24 {v(t0)}, 160, {v(t0)}"); A(f"v_add_u32 {v(t0)}, s36, {v(t0)}"); A(f"v_and_b32 {v(t1)}, 3, {v(lane)}")
    A(f"v_lshl_add_u32 {v(t2)}, {v(t1)}, 4, {v(t0)}"); A(f"v_lshl_add_u32 {v(t3)}, {v(t1)}, 3, {v(t0)}")
    A("s_mul_i32 s39, s38, s49"); A("s_add_u32 s39, s39, s37"); A("s_mul_i32 s39, s39, 5120"); A("s_add_u32 s39, s39, s51")
    A("s_waitcnt vmcnt(0)")
    for u in range(5):
        for q in range(2):
            if u < 4: A(f"ds_read_b64_tr_b16 {v(FR+4*u+2*q,2)}, {v(t2)} offset:{64*(u>>1)+8*(u&1)+640*q}")
            else: A(f"ds_read_b64_tr_b16 {v(FR+4*u+2*q,2)}, {v(t3)} offset:{128+640*q}")
    A("s_waitcnt lgkmcnt(0)")
    for u in range(5):
        if u == 4: A("s_add_u32 s39, s39, 4096")
        A(f"buffer_store_dwordx4 {v(FR+4*u,4)}, v6, s[{SWS}:{SWS+3}], s39 offen offset:{(u&3)*1024} {CFG['st']}")
    A(f"{K}_rl_done:")
    A("s_nop 1")

def gen_p2(A):
    K = "p2_kernel"
    kstart(A, K); ST = Stamps(A, 1); ST.mark()
    SWS, SK = 20, 16
    w, head, qb, odd = 24, 25, 26, 27
    sok, sov, cnt, redo, sob = 28, 29, 30, 31, 32
    lane = 1
    A("s_cmp_ge_u32 s2, 256"); A(f"s_cbranch_scc1 {K}_end")
    A("s_load_dwordx2 s[4:5], s[0:1], 16"); A("s_load_dwordx4 s[8:11], s[0:1], 32"); A("s_load_dwordx2 s[12:13], s[0:1], 48")
    A("s_load_dwordx2 s[6:7], s[0:1], 72")
    A("v_lshrrev_b32 v2, 6, v0"); A(f"v_and_b32 {v(lane)}, 63, v0"); A(f"v_readfirstlane_b32 s{w}, v2")
    if CFG.get("att_rowlocal"):
        A(f"s_lshr_b32 s{head}, s2, 3"); A(f"s_and_b32 s{qb}, s2, 7")
    else:
        A("s_and_b32 s33, s2, 7"); A("s_lshl_b32 s33, s33, 2"); A("s_bfe_u32 s34, s2, 0x20003"); A(f"s_add_u32 s{head}, s33, s34")
        A(f"s_lshr_b32 s{qb}, s2, 5")
    A(f"s_and_b32 s{odd}, s{head}, 1")
    A("s_mov_b32 s50, 819200"); A(f"s_mov_b32 s51, {WO_OFF}")
    A("s_waitcnt lgkmcnt(0)")
    srd(A, SWS, 6, WS_SIZE)
    relayout(A, K, w, SWS, lane)
    ST.mark()
    S0, S1, NM, O, P, E, QM, QX = 16, 48, 80, 112, 144, 160, 168, 176
    kv, kxv, vv = 180, 184, 188
    KR, VR, XR = 256, 256+32, 256+96
    t0, t1, t2, t3, t4 = 2, 3, 4, 5, 6
    A(f"s_lshr_b32 s33, s{head}, 1"); A("s_mul_i32 s34, s33, 163840")
    A(f"s_add_u32 s35, s34, {16*163840}"); A(f"s_add_u32 s{SK}, s6, s35"); A(f"s_addc_u32 s{SK+1}, s7, 0")
    A(f"s_mov_b32 s{SK+2}, 163840"); A(f"s_mov_b32 s{SK+3}, 0x20000")
    A(f"s_lshl_b32 s35, s{qb}, 2"); A(f"s_add_u32 s35, s35, s{w}"); A("s_lshl_b32 s35, s35, 1")
    A(f"s_mul_i32 s{sob}, s35, 40960"); A("s_mul_i32 s33, s33, 2560"); A(f"s_add_u32 s{sob}, s{sob}, s33"); A(f"s_add_u32 s{sob}, s{sob}, {O_OFF}")
    A("s_mul_i32 s35, s35, 2560"); A("s_add_u32 s34, s34, s35")
    A(f"s_mul_i32 s33, s{odd}, 1536"); A(f"v_lshl_add_u32 {v(kv)}, {v(lane)}, 4, s33")
    A(f"v_and_b32 {v(t0)}, 31, {v(lane)}"); A(f"v_lshrrev_b32 {v(t1)}, 5, {v(lane)}")
    A(f"s_lshl_b32 s33, s{odd}, 3"); A("s_add_u32 s33, s33, 1024")
    A(f"v_lshl_add_u32 {v(t4)}, {v(t0)}, 4, s33")
    A(f"v_mul_u32_u24 {v(t2)}, 2560, {v(t1)}"); A(f"v_add_u32 {v(kxv)}, {v(t4)}, {v(t2)}")
    for j in range(2): A(f"buffer_load_dwordx4 {v(QM+4*j,4)}, {v(kv)}, s[{SWS}:{SWS+3}], s34 offen offset:{2560*j}")
    A(f"buffer_load_dwordx2 {v(QX,2)}, {v(kxv)}, s[{SWS}:{SWS+3}], s34 offen")
    for j in range(1, 4):
        A(f"v_add_u32 {v(kv+j)}, {5120*j}, {v(kv)}"); A(f"v_add_u32 {v(kxv+j)}, {5120*j}, {v(kxv)}")
    A(f"v_lshrrev_b32 {v(t2)}, 2, {v(t0)}"); swap01(A, t3, t2, 7)
    A(f"v_and_b32 {v(t2)}, 3, {v(t0)}"); A(f"v_lshl_add_u32 {v(t2)}, {v(t3)}, 2, {v(t2)}")
    A(f"s_lshl_b32 s33, s{odd}, 2"); A(f"v_add_u32 {v(t2)}, s33, {v(t2)}")
    A(f"v_add_u32 {v(t3)}, -20, {v(t2)}"); A(f"v_min_u32 {v(t2)}, {v(t2)}, {v(t3)}")
    A(f"v_mul_u32_u24 {v(t3)}, 320, {v(t1)}"); A(f"v_lshl_add_u32 {v(t2)}, {v(t2)}, 4, {v(t3)}")
    A(f"v_mov_b32 {v(t3)}, {OOB}"); A(f"v_cmp_gt_u32 vcc, 20, {v(t0)}"); A("s_nop 1"); A(f"v_cndmask_b32 {v(t2)}, {v(t3)}, {v(t2)}, vcc")
    A(f"s_sub_u32 s33, 32, s{head}"); A("s_mul_i32 s33, s33, 81920"); A(f"v_mov_b32 {v(t3)}, s33")
    A(f"v_and_b32 v7, 27, {v(t0)}"); A("v_cmp_eq_u32 vcc, 24, v7"); A("s_nop 1"); A(f"v_cndmask_b32 {v(vv)}, {v(t2)}, {v(t3)}, vcc")
    for j in range(1, 4): A(f"v_add_u32 {v(vv+j)}, {2560*j}, {v(vv)}")
    A(f"s_mov_b32 s{redo}, 0")
    ldk = lambda e: f"buffer_load_dwordx4 {r(KR+4*e,4)}, {v(kv+(e>>1))}, s[{SK}:{SK+3}], s{sok} offen offset:{2560*(e&1)}"
    ldx = lambda e: f"buffer_load_dwordx2 {r(XR+2*e,2)}, {v(kxv+e)}, s[{SK}:{SK+3}], s{sok} offen"
    ldv = lambda e, sx: f"buffer_load_dwordx4 {r(VR+8*e+4*sx,4)}, {v(vv+(e>>1))}, s[{SWS}:{SWS+3}], s{sov} offen offset:{1280*(e&1)+640*sx}"
    A(f"{K}_start:")
    A(f"s_mov_b32 s{sok}, 0"); A(f"s_mul_i32 s{sov}, s{head}, 81920"); A(f"s_add_u32 s{sov}, s{sov}, {V_OFF}")
    for e in range(8):
        if e: A(ldv(e-1, 1))
        if e % 2 == 0: A(ldx(e//2))
        A(ldk(e)); A(ldv(e, 0))
    A(f"s_add_u32 s{sok}, s{sok}, {8*2560}")
    for i in range(32): A(f"v_mov_b32 {v(O+i)}, 0")
    for i in range(4): A(f"v_mov_b32 {v(E+4+i)}, 0"); A(f"v_accvgpr_write_b32 {r(VR+8*7+4+i)}, 0")
    for i in range(2): A(f"v_mov_b32 {v(P+12+i)}, 0")
    A(f"s_mov_b32 s{cnt}, 7"); A("s_mov_b32 s34, 10240")
    A("s_waitcnt vmcnt(25)")
    A(mf2b(S0, XR, QX, "0", 0)); A("s_nop 15"); A("s_nop 1")
    A(mf32(S0, KR, QM)); A(mf32(S0+16, KR, QM+4))
    A(f"s_cmp_lg_u32 s{redo}, 0"); A("s_nop 10"); A(f"s_cbranch_scc1 {K}_havemax")
    def rowmax(S, first):
        for j in range(2):
            b = S + 16*j; m = 8 + j
            if first: A(f"v_max_f32 {v(m)}, {v(b)}, {v(b+1)}")
            else: A(f"v_max3_f32 {v(m)}, {v(m)}, {v(b)}, {v(b+1)}")
            for i in range(2, 16, 2): A(f"v_max3_f32 {v(m)}, {v(m)}, {v(b+i)}, {v(b+i+1)}")
    def fillnm():
        A("v_mov_b32 v10, v8"); A("v_mov_b32 v11, v9"); A("s_nop 1")
        A("v_permlane32_swap_b32 v8, v10"); A("v_permlane32_swap_b32 v9, v11"); A("s_nop 1")
        A("v_max_f32 v8, v8, v10"); A("v_max_f32 v9, v9, v11")
        for i in range(32): A(f"v_sub_f32 {v(NM+i)}, 0, {v(8+i//16)}")
    rowmax(S0, True); fillnm()
    A(f"{K}_havemax:")
    for i in range(0, 32, 2): A(f"v_pk_add_f32 {v(S0+i,2)}, {v(S0+i,2)}, {v(NM+i,2)}")
    A("s_waitcnt vmcnt(22)")
    ST.mark()
    A(".p2align 6")
    A(f"{K}_loop:")
    for e in range(8):
        cur, nxt = (S0, S1) if e % 2 == 0 else (S1, S0)
        e1, em = (e+1) % 8, (e-1) % 8
        mf = {0: mf2b(nxt, XR+2*(e1//2), QX, NM, e1 & 1),
              2: mf32(O+16, VR+8*em+4, P+12), 3: mf32(O, VR+8*e, P),
              4: mf32(nxt, KR+4*e1, QM), 5: mf32(nxt+16, KR+4*e1, QM+4),
              6: mf32(O, VR+8*e+4, P+4), 7: mf32(O+16, VR+8*e, P+8)}
        post = {k: [] for k in range(8)}
        post[2].append(ldv(em, 1))
        if e == 0:
            post[3].append(f"s_cmp_eq_u32 s{cnt}, 0"); post[4].append(f"s_cselect_b32 s33, {OOB}, s34")
            post[5].append(f"s_add_u32 s{sov}, s{sov}, s33")
        if e % 2 == 0: post[3].append(ldx(e//2))
        post[4].append(ldk(e))
        if e == 7:
            post[5].append(f"s_add_u32 s{sok}, s{sok}, {8*2560}"); post[6].append(f"s_sub_u32 s{cnt}, s{cnt}, 1")
        post[7] += ["s_waitcnt vmcnt(21)", ldv(e, 0)]
        for k in range(8):
            if k in mf: A(mf[k])
            A.ext(post[k])
            pk = (k-1) % 8; eb = E + 4*(pk & 1)
            for j in range(2): A(f"v_cvt_pk_bf16_f32 {v(P+2*pk+j)}, {v(eb+2*j)}, {v(eb+2*j+1)}")
            for j in range(4): A(f"v_exp_f32 {v(E+4*(k&1)+j)}, {v(cur+4*k+j)}")
    A(f"s_cbranch_scc0 {K}_loop")
    for j in range(2): A(f"v_cvt_pk_bf16_f32 {v(P+14+j)}, {v(E+4+2*j)}, {v(E+5+2*j)}")
    A("s_nop 1")
    A(mf32(O+16, VR+8*7+4, P+12))
    ST.mark()
    A("s_nop 15")
    A(f"s_mov_b32 s33, {hex(f2u(2.0**30))}")
    A(f"v_cmp_nlt_f32_e64 vcc, {v(O+12)}, s33")
    A(f"v_cmp_nlt_f32_e64 s[36:37], {v(O+28)}, s33"); A("s_nop 1")
    A("s_or_b64 vcc, vcc, s[36:37]"); A(f"s_cbranch_scc1 {K}_slow")
    A(f"{K}_fin:")
    for j in range(2): A(f"v_rcp_f32 {v(8+2*j)}, {v(O+16*j+12)}")
    A("s_nop 0")
    for j in range(2):
        for i in range(0, 12, 2): A(f"v_pk_mul_f32 {v(O+16*j+i,2)}, {v(O+16*j+i,2)}, {v(8+2*j,2)} op_sel_hi:[1,0]")
        for i in range(6): A(f"v_cvt_pk_bf16_f32 {v(S0+8*j+i)}, {v(O+16*j+2*i)}, {v(O+16*j+2*i+1)}")
    A(f"s_add_u32 s33, s{sob}, 40960")
    for j in range(2): A(f"buffer_store_dwordx4 {v(S0+8*j,4)}, {v(kv)}, s[{SWS}:{SWS+3}], s{sob if j == 0 else 33} offen {CFG['st']}")
    A("s_mov_b32 exec_hi, 0")
    for j in range(2): A(f"buffer_store_dwordx2 {v(S0+8*j+4,2)}, {v(kxv)}, s[{SWS}:{SWS+3}], s{sob if j == 0 else 33} offen {CFG['st']}")
    ST.flush(SWS, w)
    A(f"{K}_end:")
    A("s_endpgm")
    A(f"{K}_slow:")
    A(f"s_cmp_lg_u32 s{redo}, 0"); A(f"s_cbranch_scc1 {K}_fin")
    A(f"s_mov_b32 s{redo}, 1"); A(f"s_mov_b32 s{sok}, 0"); A("s_waitcnt vmcnt(0)")
    A("v_mov_b32 v8, 0xff800000"); A("v_mov_b32 v9, 0xff800000")
    A(f"{K}_mloop:")
    A(ldx(0)); A(ldk(0)); A(ldk(1)); A("s_waitcnt vmcnt(0)")
    for e in range(2):
        A(mf2b(S0, XR, QX, "0", e)); A("s_nop 15"); A("s_nop 1")
        A(mf32(S0, KR+4*e, QM)); A(mf32(S0+16, KR+4*e, QM+4)); A("s_nop 11")
        rowmax(S0, False)
    A(f"s_add_u32 s{sok}, s{sok}, 5120"); A(f"s_cmp_lt_u32 s{sok}, 163840"); A(f"s_cbranch_scc1 {K}_mloop")
    fillnm()
    A(f"s_branch {K}_start")
    kdesc(A, K, 256+104, acc=256)
    return (K, 256, 256, 40960)

def gen_skinny(A, K, kid, nks, act_off, act_stride, w_off, is_out):
    kstart(A, K); ST = Stamps(A, kid); ST.mark()
    SWS, SIO = 20, 16
    w, rb, ct = 24, 25, 26
    soa, sow = 28, 29
    per = -(-nks//4)
    lane, t0, t1, t2 = 1, 2, 3, 4
    wv, av = 8, 10
    ra, oa = 12, 14
    RES, ACC, RING = 16, 32, 256
    A("s_cmp_ge_u32 s2, 256"); A(f"s_cbranch_scc1 {K}_end")
    A(f"s_load_dwordx2 s[4:5], s[0:1], {56 if is_out else 0}"); A("s_load_dwordx2 s[6:7], s[0:1], 72")
    A("v_lshrrev_b32 v2, 6, v0"); A(f"v_and_b32 {v(lane)}, 63, v0"); A(f"v_readfirstlane_b32 s{w}, v2")
    A("s_and_b32 s33, s2, 7"); A("s_lshl_b32 s33, s33, 2"); A("s_bfe_u32 s34, s2, 0x20003"); A(f"s_add_u32 s{rb}, s33, s34")
    A(f"s_lshr_b32 s{ct}, s2, 5")
    A(f"v_lshlrev_b32 {v(wv)}, 4, {v(lane)}"); A(f"v_add_u32 {v(wv+1)}, 4096, {v(wv)}")
    A(f"v_and_b32 {v(t0)}, 15, {v(lane)}"); A(f"v_lshrrev_b32 {v(t1)}, 4, {v(lane)}")
    A(f"v_lshlrev_b32 {v(t2)}, 4, {v(t0)}"); A(f"v_lshl_add_u32 {v(av)}, {v(t1)}, 9, {v(t2)}"); A(f"v_add_u32 {v(av+1)}, {act_stride}, {v(av)}")
    extra = 4*per - nks
    A(f"s_mul_i32 s33, s{w}, {per}")
    if extra:
        A(f"s_sub_i32 s34, s{w}, {4-extra}"); A("s_max_i32 s34, s34, 0"); A("s_sub_u32 s33, s33, s34")
    A(f"s_mul_i32 s{soa}, s{rb}, {2*act_stride}"); A("s_lshl_b32 s34, s33, 11"); A(f"s_add_u32 s{soa}, s{soa}, s34"); A(f"s_add_u32 s{soa}, s{soa}, {act_off}")
    A(f"s_mul_i32 s34, s{ct}, {nks}"); A("s_add_u32 s34, s34, s33"); A(f"s_mul_i32 s{sow}, s34, 5120"); A(f"s_add_u32 s{sow}, s{sow}, {w_off}")
    if extra: A(f"s_cmp_ge_u32 s{w}, {4-extra}"); A(f"s_cselect_b32 s35, {OOB}, 0")
    A("s_waitcnt lgkmcnt(0)")
    srd(A, SWS, 6, WS_SIZE); srd(A, SIO, 4, 2621440)
    depth = min(per, 6)
    def loads(st):
        b = RING + 36*(st % 7)
        L = []
        if extra and st == per-1: L += [f"s_add_u32 s{soa}, s{soa}, s35", f"s_add_u32 s{sow}, s{sow}, s35"]
        for i in range(4): L.append(f"buffer_load_dwordx4 {r(b+20+4*i,4)}, {v(av+(i>>1))}, s[{SWS}:{SWS+3}], s{soa} offen offset:{256*(i&1)}")
        for u in range(5): L.append(f"buffer_load_dwordx4 {r(b+4*u,4)}, {v(wv+(u>>2))}, s[{SWS}:{SWS+3}], s{sow} offen offset:{1024*(u&3)}")
        L += [f"s_add_u32 s{soa}, s{soa}, 2048", f"s_add_u32 s{sow}, s{sow}, 5120"]
        return L
    for st in range(depth): A.ext(loads(st))
    ST.mark()
    fr, rm = (ra, oa) if is_out else (oa, ra)
    A(f"s_lshl_b32 s36, s{rb}, 1"); A(f"s_lshr_b32 s37, s{w}, 1"); A("s_add_u32 s36, s36, s37"); A("s_mul_i32 s36, s36, 40960")
    A(f"s_mul_i32 s37, s{ct}, 5120"); A("s_add_u32 s36, s36, s37"); A(f"s_and_b32 s37, s{w}, 1"); A("s_lshl_b32 s37, s37, 8"); A("s_add_u32 s36, s36, s37")
    A(f"s_add_u32 s36, s36, {H_OFF}")
    A(f"s_lshl_b32 s37, s{rb}, 2"); A(f"s_add_u32 s37, s37, s{w}"); A(f"s_mul_i32 s37, s37, {16*1280}"); A(f"s_mul_i32 s38, s{ct}, 160"); A("s_add_u32 s37, s37, s38")
    A(f"v_mov_b32 {v(fr)}, {v(av)}")
    A(f"v_lshrrev_b32 {v(5)}, 1, {v(t1)}"); A(f"v_lshl_add_u32 {v(5)}, {v(5)}, 9, {v(t2)}"); A(f"v_and_b32 {v(6)}, 1, {v(t1)}")
    A(f"v_lshl_add_u32 {v(5)}, {v(6)}, 3, {v(5)}"); A(f"v_add_u32 {v(fr+1)}, 4096, {v(5)}")
    A(f"v_mul_u32_u24 {v(5)}, 1280, {v(t0)}"); A(f"v_lshl_add_u32 {v(rm)}, {v(t1)}, 4, {v(5)}"); A(f"v_lshl_add_u32 {v(rm+1)}, {v(t1)}, 3, {v(5)}")
    def io(store, frag, regs):
        S, so = (SWS, 36) if frag else (SIO, 37); va = fr if frag else rm
        op = "store" if store else "load"; fl = CFG['st'] if (store and frag) else ""
        return [f"buffer_{op}_dwordx4 {v(regs,4)}, {v(va)}, s[{S}:{S+3}], s{so} offen {fl}",
                f"buffer_{op}_dwordx4 {v(regs+4,4)}, {v(va)}, s[{S}:{S+3}], s{so} offen offset:{2048 if frag else 64} {fl}",
                f"buffer_{op}_dwordx2 {v(regs+8,2)}, {v(va+1)}, s[{S}:{S+3}], s{so} offen offset:{0 if frag else 128} {fl}"]
    res_at = per - depth if per > depth else 0
    issued = depth; res_done = False
    for st in range(per):
        b = RING + 36*(st % 7)
        A(f"s_waitcnt vmcnt({9*(issued-st-1) + (3 if res_done else 0)})")
        if st == 0: ST.mark()
        mf = [mf16(ACC+20*i+4*u, b+4*u, b+20+4*i, "0" if st == 0 else None) for i in range(4) for u in range(5)]
        mem = []
        if issued < per: mem = loads(issued); issued += 1
        elif not res_done: mem = io(False, is_out, RES); res_done = True
        interleave(A, mf, [], mem, [], [1]*20)
    ST.mark()
    A("s_nop 7")
    wr, rd = 5, 6
    A(f"s_mul_i32 s38, s{w}, 15360"); A(f"v_add_u32 {v(rd)}, s38, {v(wv)}")
    for d in range(4):
        lab = A.label("skip")
        A(f"s_cmp_eq_u32 s{w}, {d}"); A(f"s_cbranch_scc1 {lab}")
        A(f"s_sub_u32 s38, s{w}, {d+1}"); A("s_and_b32 s38, s38, 3"); A("s_mul_i32 s38, s38, 5120"); A(f"v_add_u32 {v(wr)}, s38, {v(wv)}")
        for u in range(5): A(f"ds_write_b128 {v(wr)}, {v(ACC+20*d+4*u,4)} offset:{15360*d+1024*u}")
        A(f"{lab}:")
    OWN = 112
    for d in range(4):
        lab = A.label("own")
        A(f"s_cmp_lg_u32 s{w}, {d}"); A(f"s_cbranch_scc1 {lab}")
        for i in range(20): A(f"v_mov_b32 {v(OWN+i)}, {v(ACC+20*d+i)}")
        A(f"{lab}:")
    A("s_waitcnt lgkmcnt(0)"); A("s_barrier")
    for sl in range(3):
        for u in range(5): A(f"ds_read_b128 {v(ACC+20*sl+4*u,4)}, {v(rd)} offset:{5120*sl+1024*u}")
    A("s_waitcnt vmcnt(0)")
    RF = 136
    for i in range(10):
        A(f"v_lshlrev_b32 {v(RF+2*i)}, 16, {v(RES+i)}"); A(f"v_and_b32 {v(RF+2*i+1)}, 0xffff0000, {v(RES+i)}")
    for i in range(0, 20, 2): A(f"v_pk_add_f32 {v(OWN+i,2)}, {v(OWN+i,2)}, {v(RF+i,2)}")
    for sl in range(3):
        A(f"s_waitcnt lgkmcnt({10-5*sl})")
        for i in range(0, 20, 2): A(f"v_pk_add_f32 {v(OWN+i,2)}, {v(OWN+i,2)}, {v(ACC+20*sl+i,2)}")
    for i in range(10): A(f"v_cvt_pk_bf16_f32 {v(RES+i)}, {v(OWN+2*i)}, {v(OWN+2*i+1)}")
    A.ext(io(True, not is_out, RES))
    ST.flush(SWS, w)
    A(f"{K}_end:")
    A("s_endpgm")
    kdesc(A, K, 512, acc=256)
    return (K, 256, 256, 61440)

def gen_p4(A):
    K = "p4_kernel"
    kstart(A, K); ST = Stamps(A, 3); ST.mark()
    SWS = 20
    w, rb, st0 = 24, 25, 26
    soh, sow, sow2, m0b = 28, 29, 30, 31
    lane, t0, t1 = 1, 2, 3
    lv, la = 4, 5
    sm, sq, tmp = 8, 10, 12
    CSP = 14
    HR, ACC, WB = 32, 112, 256
    A("s_cmp_ge_u32 s2, 256"); A(f"s_cbranch_scc1 {K}_end")
    A("s_load_dwordx2 s[6:7], s[0:1], 72")
    A("v_lshrrev_b32 v2, 6, v0"); A(f"v_and_b32 {v(lane)}, 63, v0"); A(f"v_readfirstlane_b32 s{w}, v2")
    A("s_and_b32 s33, s2, 7"); A("s_lshr_b32 s34, s2, 3")
    if CFG.get("p4_rowlocal"):
        A("s_lshl_b32 s33, s33, 1"); A("s_and_b32 s35, s34, 1"); A(f"s_add_u32 s{rb}, s33, s35"); A("s_lshr_b32 s35, s34, 1")
    else:
        A("s_and_b32 s35, s33, 3"); A("s_lshl_b32 s35, s35, 2"); A("s_and_b32 s36, s34, 3"); A(f"s_add_u32 s{rb}, s35, s36")
        A("s_lshr_b32 s35, s33, 2"); A("s_lshl_b32 s35, s35, 3"); A("s_lshr_b32 s36, s34, 2"); A("s_add_u32 s35, s35, s36")
    A("s_mul_i32 s35, s35, 7"); A(f"s_min_u32 s{st0}, s35, 101")
    A(f"v_lshlrev_b32 {v(lv)}, 4, {v(lane)}")
    A(f"s_lshl_b32 s33, s{rb}, 2"); A(f"s_add_u32 s33, s33, s{w}"); A(f"s_mul_i32 s{soh}, s33, 40960"); A(f"s_add_u32 s{soh}, s{soh}, {H_OFF}")
    A("s_mul_i32 s37, s33, 110592"); A(f"s_lshl_b32 s34, s{st0}, 10"); A("s_add_u32 s37, s37, s34"); A(f"s_add_u32 s37, s37, {HH_OFF}")
    A(f"s_mul_i32 s33, s{w}, {108*1024}"); A(f"s_add_u32 s{sow}, s33, s34"); A(f"s_add_u32 s{sow}, s{sow}, {WGU_OFF}"); A(f"s_add_u32 s{sow2}, s{sow}, 4096")
    A(f"s_mul_i32 s{m0b}, s{w}, 7168")
    A(f"s_lshl_b32 s38, s{st0}, 7"); A(f"s_add_u32 s38, s38, {CS_OFF}"); A(f"v_lshlrev_b32 {v(t1)}, 2, v0")
    A("s_waitcnt lgkmcnt(0)")
    srd(A, SWS, 6, WS_SIZE)
    def vm_ops(stage):
        slot = stage % 5
        dw = lambda j: f"buffer_load_dwordx4 {v(lv)}, s[{SWS}:{SWS+3}], s{sow if j < 4 else sow2} offen offset:{(j&3)*1024} lds"
        hl = lambda k: f"buffer_load_dwordx4 {v(HR+16*slot+4*k,4)}, {v(lv)}, s[{SWS}:{SWS+3}], s{soh} offen offset:{k*1024}"
        return [([f"s_add_u32 m0, s{m0b}, {slot*28672}"], [hl(0), dw(0), dw(1)]),
                ([], [hl(1), dw(2), dw(3)]),
                ([f"s_add_u32 m0, s{m0b}, {slot*28672+4096}", f"s_add_u32 s{sow}, s{sow}, {4*108*1024}"], [hl(2), dw(4), dw(5)]),
                ([], [hl(3), dw(6), f"s_add_u32 s{sow2}, s{sow2}, {4*108*1024}", f"s_add_u32 s{soh}, s{soh}, 4096"])]
    for kq in range(4):
        A(f"buffer_load_dword {v(CSP+kq)}, {v(t1)}, s[{SWS}:{SWS+3}], s38 offen"); A(f"s_add_u32 s38, s38, {108*128}")
    for stg in range(5):
        for sa, me in vm_ops(stg): A.ext(sa); A.ext(me)
    ST.mark()
    for i in range(3): A(f"v_add_u32 {v(la+i)}, {57344*i}, {v(lv)}")
    for i in range(4): A(f"v_mov_b32 {v(sm+i)}, 0")
    A("s_waitcnt vmcnt(55)")
    A(f"v_add_f32 {v(CSP)}, {v(CSP)}, {v(CSP+1)}"); A(f"v_add_f32 {v(CSP+2)}, {v(CSP+2)}, {v(CSP+3)}"); A(f"v_add_f32 {v(CSP)}, {v(CSP)}, {v(CSP+2)}")
    A(f"v_add_u32 {v(t1)}, 143360, {v(t1)}"); A(f"ds_write_b32 {v(t1)}, {v(CSP)}")
    def reads(g):
        stage, ks = divmod(g, 4); slot = stage % 5
        return [f"ds_read_b128 {r(WB+28*(g&1)+4*j,4)}, {v(la+slot//2)} offset:{(slot%2)*28672+ks*7168+j*1024}" for j in range(7)]
    A("s_waitcnt vmcnt(44) lgkmcnt(0)"); A("s_barrier"); ST.mark()
    A.ext(reads(0))
    for g in range(40):
        stage, ks = divmod(g, 4); slot = stage % 5
        A("s_waitcnt lgkmcnt(0)")
        if ks == 3 and stage < 9:
            A(f"s_waitcnt vmcnt({11*(min(stage+4, 9)-(stage+1))})"); A("s_barrier")
        hf = HR+16*slot+4*ks
        mf = [mf32(ACC+16*j, WB+28*(g&1)+4*j, hf, "0" if g == 0 else None) for j in range(7)]
        mem = reads(g+1) if g < 39 else []
        salu = []
        ds_, dk = divmod(g+1, 4); dstage = ds_ + 4
        if 5 <= dstage <= 9:
            sa, me = vm_ops(dstage)[dk]; salu += sa; mem = mem + me
        valu = []
        for i in range(4):
            valu += [f"v_and_b32 {v(tmp)}, 0xffff0000, {v(hf+i)}", f"v_lshlrev_b32 {v(tmp+1)}, 16, {v(hf+i)}",
                     f"v_fmac_f32 {v(sq)}, {v(tmp)}, {v(tmp)}", f"v_fmac_f32 {v(sq+1)}, {v(tmp+1)}, {v(tmp+1)}",
                     f"v_add_f32 {v(sm)}, {v(sm)}, {v(tmp)}", f"v_add_f32 {v(sm+1)}, {v(sm+1)}, {v(tmp+1)}"]
        interleave(A, mf, salu, mem, valu, [6]*7)
    ST.mark()
    A(f"v_lshrrev_b32 {v(t0)}, 5, {v(lane)}"); A(f"v_lshlrev_b32 {v(t0)}, 4, {v(t0)}"); A(f"v_add_u32 {v(t0)}, 143360, {v(t0)}")
    csr = lambda j: [f"ds_read_b128 {v(HR+16*(j%4)+4*rg,4)}, {v(t0)} offset:{128*j+32*rg}" for rg in range(4)]
    for j in range(3): A.ext(csr(j))
    A(f"v_add_f32 {v(sm)}, {v(sm)}, {v(sm+1)}"); A(f"v_add_f32 {v(sq)}, {v(sq)}, {v(sq+1)}")
    A(f"v_mov_b32 {v(sm+1)}, {v(sm)}"); A(f"v_mov_b32 {v(sq+1)}, {v(sq)}"); A("s_nop 1")
    A(f"v_permlane32_swap_b32 {v(sm)}, {v(sm+1)}"); A(f"v_permlane32_swap_b32 {v(sq)}, {v(sq+1)}"); A("s_nop 1")
    A(f"v_add_f32 {v(sm)}, {v(sm)}, {v(sm+1)}"); A(f"v_add_f32 {v(sq)}, {v(sq)}, {v(sq+1)}")
    A(f"v_mul_f32 {v(sm)}, {hex(f2u(-1/640))}, {v(sm)}"); A(f"v_mul_f32 {v(sq)}, {hex(f2u(1/640))}, {v(sq)}")
    A(f"v_fma_f32 {v(sq)}, -{v(sm)}, {v(sm)}, {v(sq)}"); A(f"v_max_f32 {v(sq)}, 0, {v(sq)}")
    A(f"v_add_f32 {v(sq)}, {hex(f2u(1e-5))}, {v(sq)}"); A(f"v_rcp_f32 {v(sq)}, {v(sq)}")
    A("s_add_u32 s38, s37, 4096")
    OB = 96
    for j in range(7):
        ac = ACC+16*j; c = HR+16*(j % 4)
        A(f"s_waitcnt lgkmcnt({4*min(2, 6-j)})")
        for i in range(0, 16, 2): A(f"v_pk_fma_f32 {v(ac+i,2)}, {v(c+i,2)}, {v(sm,2)}, {v(ac+i,2)} op_sel_hi:[1,0,1]")
        if j+3 < 7: A.ext(csr(j+3))
        for i in range(0, 8, 2): A(f"v_pk_mul_f32 {v(ac+i,2)}, {v(ac+i,2)}, {v(sq,2)} op_sel_hi:[1,0]")
        for i in range(0, 8, 2): A(f"v_pk_mul_f32 {v(ac+i,2)}, {v(ac+i,2)}, {v(ac+8+i,2)}")
        o = OB + 4*(j % 4)
        for i in range(4): A(f"v_cvt_pk_bf16_f32 {v(o+i)}, {v(ac+2*i)}, {v(ac+2*i+1)}")
        A(f"buffer_store_dwordx4 {v(o,4)}, {v(lv)}, s[{SWS}:{SWS+3}], s{37 if j < 4 else 38} offen offset:{(j&3)*1024} {CFG['st']}")
    ST.flush(SWS, w)
    A(f"{K}_end:")
    A("s_endpgm")
    kdesc(A, K, 256+56, acc=256)
    return (K, 256, 256, 144384)

def build(**cfg):
    CFG.update(cfg)
    A = Asm()
    L = [gen_p1(A), gen_p2(A), gen_skinny(A, "p3_kernel", 2, 20, O_OFF, 40960, WO_OFF, False), gen_p4(A),
         gen_skinny(A, "p5_kernel", 4, 54, HH_OFF, 110592, WD_OFF, True)]
    for i in range(CFG.get("nops", 0)):
        if i == 0:
            kstart(A, "nop_kernel"); A("s_endpgm"); kdesc(A, "nop_kernel", 8)
        L.append(("nop_kernel", 256, 256, 0))
    head = open(f"cdna_kernels/{NAME}.s.ref").read().split("; Override launch")[0]
    for k, g, b, lds in L: head += f"; @launch kernel={k} grid=({g},1,1) block=({b},1,1) lds={lds}\n"
    return head + '.amdgcn_target "amdgcn-amd-amdhsa--gfx950"\n' + A.text()

if __name__ == "__main__":
    out = sys.argv[1] if len(sys.argv) > 1 else f"cdna_kernels/{NAME}.s"
    cfg = {}
    for x in sys.argv[2:]:
        k, val = x.split("=")
        cfg[k] = int(val) if val.lstrip("-").isdigit() else val
    open(out, "w").write(build(**cfg))
```

```python
class Asm:
    def __init__(self):
        self.L = []
        self.uid = 0
    def __call__(self, s):
        for line in s.split("\n"):
            line = line.strip()
            if not line: continue
            if line.endswith(":") or line.startswith("."): self.L.append(line)
            else: self.L.append("    " + line)
    def ext(self, lst):
        for s in lst: self(s)
    def label(self, base):
        self.uid += 1
        return f"L_{base}_{self.uid}"
    def text(self):
        return "\n".join(self.L) + "\n"

def v(i, n=1): return f"v{i}" if n == 1 else f"v[{i}:{i+n-1}]"
def a(i, n=1): return f"a{i}" if n == 1 else f"a[{i}:{i+n-1}]"
def s(i, n=1): return f"s{i}" if n == 1 else f"s[{i}:{i+n-1}]"
def r(i, n=1):
    return v(i, n) if i < 256 else a(i - 256, n)

def kstart(A, name):
    A(".text"); A(f".globl {name}"); A(".p2align 8"); A(f".type {name},@function"); A(f"{name}:")
def kdesc(A, name, nv, ns=102, acc=None):
    acc = acc or min((nv + 3)//4*4, 256)
    A('.section .rodata,"a"'); A(".p2align 6"); A(f".amdhsa_kernel {name}")
    for l in (f".amdhsa_next_free_vgpr {nv}", f".amdhsa_next_free_sgpr {ns}", f".amdhsa_accum_offset {acc}",
              ".amdhsa_group_segment_fixed_size 0", ".amdhsa_kernarg_size 80", ".amdhsa_user_sgpr_count 2",
              ".amdhsa_user_sgpr_kernarg_segment_ptr 1", ".amdhsa_system_sgpr_workgroup_id_x 1",
              ".amdhsa_float_denorm_mode_32 3"):
        A.L.append("  " + l)
    A(".end_amdhsa_kernel")
def srd(A, d, base, size):
    A(f"s_mov_b32 s{d}, s{base}"); A(f"s_mov_b32 s{d+1}, s{base+1}")
    A(f"s_mov_b32 s{d+2}, {size}"); A(f"s_mov_b32 s{d+3}, 0x20000")

def mf32(d, x, y, c=None, mod=""):
    c = r(d, 16) if c is None else (c if isinstance(c, str) else r(c, 16))
    return f"v_mfma_f32_32x32x16_bf16 {r(d,16)}, {r(x,4)}, {r(y,4)}, {c} {mod}".strip()
def mf16(d, x, y, c=None):
    c = r(d, 4) if c is None else (c if isinstance(c, str) else r(c, 4))
    return f"v_mfma_f32_16x16x32_bf16 {r(d,4)}, {r(x,4)}, {r(y,4)}, {c}"
def mf2b(d, x, y, c, abid):
    c = c if isinstance(c, str) else r(c, 32)
    return f"v_mfma_f32_32x32x4_2b_bf16 {r(d,32)}, {r(x,2)}, {r(y,2)}, {c} cbsz:1 abid:{abid}"

def interleave(A, mfmas, salu, mem, valu, cap):
    salu, mem, valu = list(salu), list(mem), list(valu)
    n = len(mfmas)
    for i, m in enumerate(mfmas):
        A(m)
        left = n - i
        if salu: A(salu.pop(0))
        c = cap[i]
        nm = min(len(mem), -(-len(mem)//left), c) if i < n-1 else len(mem)
        for _ in range(nm): A(mem.pop(0))
        c -= nm
        nvv = min(len(valu), max(c, 0)) if i < n-1 else len(valu)
        for _ in range(nvv): A(valu.pop(0))
    for x in salu: A(x)

def is_salu(x): return x.startswith("s_")
def weave(A, mfmas, ops, valu, cap):
    ops, valu = list(ops), list(valu)
    n = len(mfmas)
    for i, m in enumerate(mfmas):
        A(m)
        last = i == n-1
        c = cap[i]
        if ops and is_salu(ops[0]): A(ops.pop(0))
        nreal = sum(0 if is_salu(x) else 1 for x in ops)
        want = nreal if last else min(-(-nreal//(n-i)), c)
        done = 0
        while ops and (last or done < want):
            x = ops.pop(0); A(x); c -= 1
            if not is_salu(x): done += 1
        k = len(valu) if last else min(len(valu), max(c, 0), -(-len(valu)//(n-i)) + 1)
        for _ in range(k): A(valu.pop(0))

import re as _re
def isize(line):
    x = line.strip()
    if x.endswith(":") or x.startswith("."): return 0
    op = x.split()[0]
    if op.startswith(("buffer_", "ds_", "global_", "v_mfma", "v_min3", "v_max3", "v_cvt_pk", "v_pk_", "v_fma_", "v_accvgpr")) or op.endswith("_e64"): return 8
    if op in ("s_waitcnt", "s_nop", "s_barrier", "s_sleep") or op.startswith(("s_cbranch", "s_branch")): return 4
    for tok in _re.split(r"[ ,]+", x)[1:]:
        if _re.fullmatch(r"-?(0x[0-9a-fA-F]+|\d+)", tok):
            val = int(tok, 0)
            if not -16 <= val <= 64: return 8
    return 4
```

```python
import sys, math, struct
from dsl import *

NAME = "sequential_preLN__softmax_full_mha__glu_gated_bilinear__prompt"
K = NAME + "_kernel"
QK_OFF = 0
V_OFF = 32*163840
O_OFF = 8388608
H_OFF = O_OFF + 2621440
HH_OFF = H_OFF + 2621440
WGU_OFF = 20971520
WD_OFF = WGU_OFF + 4423680
WO_OFF = WD_OFF + 2211840
CS_OFF = WO_OFF + 819200
STAT_OFF = CS_OFF + 65536
F1_OFF = STAT_OFF + 131072
FR_OFF = F1_OFF + 32768
F2_OFF = FR_OFF + 32768
F3_OFF = F2_OFF + 32*128
F4_OFF = F3_OFF + 64*128
STAMP_OFF = 29360128
WS_SIZE = 33554432
OOB = 0x40000000
SPIN = 200000
assert F4_OFF + 96*128 + 8192 < STAMP_OFF and STAT_OFF % 128 == 0
def f2u(x): return struct.unpack("<I", struct.pack("<f", x))[0]
QSCALE = f2u(20**-0.5 * math.log2(math.e))
assert all((u*205) >> 10 == u//5 for u in range(160))
assert all((f*3277) >> 16 == f//20 for f in range(640))
assert all((e*6554) >> 16 == e//10 for e in range(320))
CFG = dict(stamps=False)
STAMP_NAMES = ["start", "p1 first dma issued", "p1 stage0 landed", "p1 loop end", "p1 stores issued", "p1 flag set", "F1 seen", "att loop start", "att loop end",
               "O published", "F2 seen", "p3 first act", "p3 mfma end", "H published", "F3 seen", "p4 first h", "p4 loop end", "HH published", "F4 seen", "p5 first act", "p5 mfma end", "end"]

W, SWS, SX, SA, SR = 3, 4, 8, 12, 16
GX, GI, MODE, MYF = 24, 25, 26, 27
LANE, LV = 1, 253
PCV = 247
CODE_TOUCH = f"global_load_dword v248, v{PCV}, s[20:21] sc1"
def S4(b): return f"s[{b}:{b+3}]"

def ASTAMPS(): return [int(x) for x in str(CFG.get("astamp", "")).split(",") if x]
class Stamps:
    def __init__(self, A): self.A, self.n = A, 0
    def mark(self, at=None):
        if not CFG["stamps"]: return
        A = self.A; i = self.n if at is None else at
        if i:
            A("s_waitcnt lgkmcnt(0)"); A(f"v_writelane_b32 v254, s96, {i-1}"); A(f"v_writelane_b32 v255, s98, {i-1}")
        A("s_memrealtime s[96:97]"); A("s_memtime s[98:99]")
        if at is None: self.n += 1
    def flush(self):
        if not CFG["stamps"]: return
        A = self.A
        A("s_waitcnt vmcnt(0)"); self.mark(); self.mark(); n = self.n - 1
        A(f"v_writelane_b32 v254, s{MODE}, 30"); A(f"v_writelane_b32 v254, s{MYF}, 31")
        A(f"s_lshl_b32 s95, s2, 2"); A(f"s_add_u32 s95, s95, s{W}"); A("s_lshl_b32 s95, s95, 8"); A(f"s_add_u32 s95, s95, {STAMP_OFF}")
        A("s_mov_b64 exec, -1"); A(f"v_lshlrev_b32 v0, 2, {v(LANE)}"); A(f"s_mov_b32 exec_lo, {(1 << n) - 1 + (3 << 30)}"); A("s_mov_b32 exec_hi, 0")
        A(f"buffer_store_dword v254, v0, {S4(SWS)}, s95 offen"); A(f"buffer_store_dword v255, v0, {S4(SWS)}, s95 offen offset:128")

def swap01(A, dst, src, t):
    A(f"v_and_b32 {v(t)}, 1, {v(src)}"); A(f"v_lshlrev_b32 {v(t)}, 1, {v(t)}")
    A(f"v_bfe_u32 {v(dst)}, {v(src)}, 1, 1"); A(f"v_or_b32 {v(t)}, {v(t)}, {v(dst)}")
    A(f"v_and_b32 {v(dst)}, 4, {v(src)}"); A(f"v_or_b32 {v(dst)}, {v(dst)}, {v(t)}")

def make_sel(A, sel, t):
    A(f"v_lshrrev_b32 {v(t)}, 2, {v(LANE)}"); A(f"v_lshrrev_b32 {v(sel)}, 4, {v(LANE)}")
    A(f"v_xor_b32 {v(t)}, {v(t)}, {v(sel)}"); A(f"v_and_b32 {v(t)}, 1, {v(t)}")
    A(f"v_add_u32 {v(t)}, -1, {v(t)}")
    A(f"v_and_b32 {v(sel)}, 0x3f803f80, {v(t)}")
    for i in range(1, 4): A(f"v_mov_b32 {v(sel+i)}, {v(sel)}")

def poll(A, loads, regs, sleep=0, cnt=58):
    top, out = A.label("poll"), A.label("pollout")
    A(f"s_mov_b32 s{cnt}, {SPIN}")
    A(f"{top}:")
    A.ext(loads); A("s_waitcnt vmcnt(0)")
    for x in regs[1:]: A(f"v_min_u32 {v(regs[0])}, {v(regs[0])}, {v(x)}")
    A(f"v_cmp_eq_u32 vcc, 0, {v(regs[0])}")
    A(f"s_sub_u32 s{cnt}, s{cnt}, 1"); A(f"s_cbranch_scc1 {out}")
    if sleep:
        A(f"s_cbranch_vccz {out}"); A(f"s_sleep {sleep}"); A(f"s_branch {top}")
    else: A(f"s_cbranch_vccnz {top}")
    A(f"{out}:")

def publish(A, stores, mid, flag):
    slow, done = A.label("st_slow"), A.label("st_done")
    A(f"s_cmp_eq_u32 s{MODE}, 0"); A(f"s_cbranch_scc1 {slow}")
    A.ext(stores("")); A.ext(mid); A.ext(flag("")); A(f"s_branch {done}")
    A(f"{slow}:")
    A.ext(stores("sc1")); A.ext(mid); A.ext(flag("sc1"))
    A(f"{done}:")

RSO, RA, RBA, RDS, RDH, RDAH, RCS, RLDS = 64, 65, 66, 67, 68, 69, 70, 71
RLV, RLT, RLC, RLO, RLF = 201, 202, 204, 212, 216
STG = 86016
def relayout_setup(A):
    t0, t1 = 2, 3
    two, none, done = A.label("rl2"), A.label("rl0"), A.label("rl_set")
    A("s_load_dwordx2 s[40:41], s[0:1], 16"); A("s_load_dwordx4 s[44:47], s[0:1], 32"); A("s_load_dwordx2 s[48:49], s[0:1], 48")
    A(f"s_mul_i32 s{RLDS}, s{W}, 10240"); A(f"s_add_u32 s{RLDS}, s{RLDS}, {STG}")
    A(f"v_lshrrev_b32 {v(t0)}, 4, {v(LANE)}"); A(f"v_bfe_u32 {v(t1)}, {v(LANE)}, 2, 2"); A(f"v_lshl_add_u32 {v(t0)}, {v(t0)}, 3, {v(t1)}")
    A(f"v_and_b32 {v(t1)}, 3, {v(LANE)}"); A(f"v_lshlrev_b32 {v(t1)}, 4, {v(t1)}")
    A(f"v_lshl_add_u32 {v(t0)}, {v(t0)}, 6, {v(t1)}"); A(f"v_add_u32 {v(RLT)}, s{RLDS}, {v(t0)}")
    A(f"v_and_b32 {v(RLT+1)}, 15, {v(LANE)}"); A(f"v_lshlrev_b32 {v(RLT+1)}, 2, {v(RLT+1)}")
    for i in range(4): A(f"v_mov_b32 {v(RLO+i)}, 0x3f803f80")
    A(f"v_lshrrev_b32 {v(t0)}, 2, {v(LANE)}")
    A(f"s_mov_b32 s{SR+3}, 0x20000"); A(f"s_mov_b32 s{RCS}, {OOB}")
    A("s_waitcnt lgkmcnt(0)")
    A("s_cmp_ge_u32 s2, 108"); A(f"s_cbranch_scc1 {two}")
    A(f"s_bitcmp1_b32 s{W}, 0"); A(f"s_cselect_b32 s{SR}, s46, s44"); A(f"s_cselect_b32 s{SR+1}, s47, s45"); A(f"s_mov_b32 s{SR+2}, 2211840")
    A(f"s_mul_i32 s37, s2, {(65536+26)//27}"); A("s_lshr_b32 s37, s37, 16")
    A("s_mul_i32 s38, s37, 27"); A("s_sub_u32 s38, s2, s38"); A("s_lshl_b32 s38, s38, 1"); A(f"s_lshr_b32 s39, s{W}, 1"); A("s_add_u32 s38, s38, s39")
    A(f"s_mul_i32 s{RSO}, s37, {160*3456}"); A("s_lshl_b32 s39, s38, 6"); A(f"s_add_u32 s{RSO}, s{RSO}, s39")
    A(f"s_mov_b32 s{RA}, {16*3456}"); A(f"s_mov_b32 s{RBA}, {16*3456}"); A(f"s_mov_b32 s{RDH}, 2048"); A(f"s_mov_b32 s{RDAH}, {221184-2048}")
    A(f"s_and_b32 s39, s{W}, 1"); A("s_lshl_b32 s38, s38, 2"); A("s_add_u32 s38, s38, s39")
    A(f"s_mul_i32 s{RDS}, s37, {5*221184}"); A("s_lshl_b32 s39, s38, 10"); A(f"s_add_u32 s{RDS}, s{RDS}, s39"); A(f"s_add_u32 s{RDS}, s{RDS}, {WGU_OFF}")
    A(f"s_mul_i32 s{RCS}, s37, {108*128}"); A("s_lshl_b32 s39, s38, 6"); A(f"s_add_u32 s{RCS}, s{RCS}, s39"); A(f"s_add_u32 s{RCS}, s{RCS}, {CS_OFF}")
    A(f"v_mul_u32_u24 {v(t0)}, 3456, {v(t0)}")
    A(f"s_branch {done}")
    A(f"{two}:")
    A("s_sub_u32 s37, s2, 108"); A("s_mov_b32 s38, 819200"); A("s_cmp_lt_u32 s37, 54")
    A(f"s_cselect_b32 s{SR}, s48, s40"); A(f"s_cselect_b32 s{SR+1}, s49, s41"); A(f"s_cselect_b32 s{SR+2}, 2211840, s38"); A("s_cselect_b32 s38, 0, 54")
    A("s_sub_u32 s38, s37, s38"); A(f"s_mul_i32 s{RSO}, s38, 40960"); A(f"s_mul_i32 s39, s{W}, 320"); A(f"s_add_u32 s{RSO}, s{RSO}, s39")
    A(f"s_mov_b32 s{RA}, {16*1280}"); A(f"s_mov_b32 s{RBA}, {(64-16*1280) & 0xffffffff}"); A(f"s_mov_b32 s{RDH}, 1024"); A(f"s_mov_b32 s{RDAH}, 1024")
    A(f"s_mul_i32 s{RDS}, s37, 40960"); A(f"s_mul_i32 s39, s{W}, 10240"); A(f"s_add_u32 s{RDS}, s{RDS}, s39"); A(f"s_add_u32 s{RDS}, s{RDS}, {WD_OFF}")
    A("s_cmp_lt_u32 s37, 74"); A(f"s_cselect_b32 s{RDS}, s{RDS}, {OOB}"); A(f"s_cselect_b32 s{SR+2}, s{SR+2}, 0")
    A(f"v_mul_u32_u24 {v(t0)}, 1280, {v(t0)}")
    A(f"{done}:")
    A(f"v_add_u32 {v(RLV)}, {v(t0)}, {v(t1)}")
def rl_dma(i):
    return [f"s_add_u32 m0, s{RLDS}, {i*1024}", f"s_add_u32 s{RSO}, s{RSO}, {'0' if i == 0 else 's%d' % (RA if i & 1 else RBA)}",
            f"buffer_load_dwordx4 {v(RLV)}, {S4(SR)}, s{RSO} offen lds"]
def rl_read(a_, hf): return [f"ds_read_b64_tr_b16 {v(RLF+8*(a_&1)+4*hf+2*q,2)}, {v(RLT)} offset:{2048*a_+256*q+8*hf}" for q in range(2)]
def rl_sum(a_, hf): return mf16(RLC+4*hf, RLO, RLF+8*(a_&1)+4*hf, "0" if a_ == 0 else None)
def rl_store(a_, hf): return [f"buffer_store_dwordx4 {v(RLF+8*(a_&1)+4*hf,4)}, {v(LV)}, {S4(SWS)}, s{RDS} offen sc1", f"s_add_u32 s{RDS}, s{RDS}, s{RDAH if hf else RDH}"]
def rl_cs(hf): return [f"buffer_store_dword {v(RLC+4*hf)}, {v(RLT+1)}, {S4(SWS)}, s{RCS} offen offset:{128*hf} sc1"]

def phase1(A, ST):
    rt, ct, wm, wn = 28, 29, 30, 31
    sox, sow, m0b, kst, sox1, sow1 = 32, 33, 34, 35, 58, 59
    SD = 52
    t0, t1, t2, t3 = 2, 3, 4, 5
    dmx, dmw, xa, wa = 8, 12, 16, 24
    sel, rs, cs, sq, tmp = 28, 32, 36, 40, 44
    ZR, ONE = 120, 124
    ACC, XF, WF = 128, 192, 200
    A("s_cmp_ge_u32 s2, 256"); A(f"s_cbranch_scc1 {K}_end")
    A("s_load_dwordx4 s[36:39], s[0:1], 0"); A("s_load_dwordx4 s[52:55], s[0:1], 64"); A("s_load_dwordx2 s[62:63], s[0:1], 56")
    A(f"v_lshrrev_b32 {v(t0)}, 6, v0"); A(f"v_and_b32 {v(LANE)}, 63, v0")
    A(f"v_readfirstlane_b32 s{W}, {v(t0)}")
    A(f"s_and_b32 s{GX}, s2, 7"); A(f"s_lshr_b32 s{GI}, s2, 3")
    A("s_getpc_b64 s[20:21]"); A(f"{K}_pc:")
    A(f"s_lshl_b32 s58, s{GI}, 2"); A(f"s_add_u32 s58, s58, s{W}"); A("s_lshl_b32 s58, s58, 7")
    A(f"v_and_b32 {v(PCV)}, 7, {v(LANE)}"); A(f"v_lshlrev_b32 {v(PCV)}, 14, {v(PCV)}"); A(f"v_add_u32 {v(PCV)}, s58, {v(PCV)}")
    A(f"v_min_u32 {v(PCV)}, {K}_end-{K}_pc, {v(PCV)}")
    A(CODE_TOUCH)
    A(f"s_and_b32 s56, s{GX}, 3"); A("s_lshl_b32 s56, s56, 2"); A(f"s_and_b32 s57, s{GI}, 3"); A(f"s_add_u32 s{rt}, s56, s57")
    A(f"s_lshr_b32 s56, s{GX}, 2"); A("s_lshl_b32 s56, s56, 3"); A(f"s_lshr_b32 s57, s{GI}, 2"); A(f"s_add_u32 s{ct}, s56, s57")
    A(f"s_and_b32 s{wm}, s{W}, 1"); A(f"s_lshr_b32 s{wn}, s{W}, 1")
    A(f"v_lshlrev_b32 {v(LV)}, 4, {v(LANE)}")
    A(f"v_lshrrev_b32 {v(t0)}, 4, {v(LANE)}")
    A(f"v_and_b32 {v(t1)}, 7, {v(LANE)}"); A(f"v_xor_b32 {v(t1)}, {v(t1)}, {v(t0)}"); A(f"v_lshlrev_b32 {v(t1)}, 4, {v(t1)}")
    A(f"v_lshrrev_b32 {v(t2)}, 3, {v(LANE)}"); A(f"v_mul_u32_u24 {v(t2)}, 1280, {v(t2)}")
    A(f"v_add_u32 {v(dmx)}, {v(t1)}, {v(t2)}")
    A(f"v_xor_b32 {v(t1)}, 64, {v(t1)}"); A(f"v_add_u32 {v(t1)}, {v(t1)}, {v(t2)}"); A(f"v_add_u32 {v(dmx+1)}, 9216, {v(t1)}")
    A(f"v_add_u32 {v(dmx+2)}, {2*9216}, {v(dmx)}"); A(f"v_add_u32 {v(dmx+3)}, {2*9216}, {v(dmx+1)}")
    A(f"v_lshlrev_b32 {v(t1)}, 2, {v(t0)}"); A(f"v_and_b32 {v(t2)}, 15, {v(LANE)}"); A(f"v_xor_b32 {v(t1)}, {v(t1)}, {v(t2)}")
    A(f"v_lshlrev_b32 {v(t1)}, 4, {v(t1)}"); A(f"v_mul_u32_u24 {v(t2)}, 3840, {v(t0)}"); A(f"v_add_u32 {v(dmw)}, {v(t1)}, {v(t2)}")
    for b in range(1, 4): A(f"v_add_u32 {v(dmw+b)}, {b*14336}, {v(dmw)}")
    A(f"s_lshl_b32 s56, s{rt}, 2"); A(f"s_add_u32 s56, s56, s{W}"); A(f"s_mul_i32 s{sox}, s56, {32*1280}")
    A(f"s_mul_i32 s{sow}, s{W}, {16*3840}"); A(f"s_lshl_b32 s56, s{ct}, 8"); A(f"s_add_u32 s{sow}, s{sow}, s56")
    A(f"s_lshl_b32 s{m0b}, s{W}, 12")
    A(f"s_and_b32 s56, s{rt}, 3"); A("s_mul_i32 s56, s56, 5"); A("s_add_u32 s56, s56, 1"); A("s_lshr_b32 s56, s56, 1"); A(f"s_and_b32 s57, s{ct}, 7"); A("s_add_u32 s56, s56, s57")
    if CFG.get("norot"): A("s_mov_b32 s56, 0")
    A("s_cmp_ge_u32 s56, 10"); A("s_cselect_b32 s57, 10, 0"); A(f"s_sub_u32 s{kst}, s56, s57")
    A(f"s_sub_u32 s{kst}, s{kst}, 1")
    A("s_waitcnt lgkmcnt(0)")
    srd(A, SX, 36, 2621440); srd(A, SA, 38, 2457600); srd(A, SWS, 54, WS_SIZE)
    def dma_groups(stage):
        slot = stage % 5
        dx = lambda b: f"buffer_load_dwordx4 {v(dmx+b)}, {S4(SX)}, s{sox1} offen offset:{b*1024} lds"
        dw = lambda b: f"buffer_load_dwordx4 {v(dmw+b)}, {S4(SA)}, s{sow1} offen offset:{b*1024} lds"
        return [[f"s_add_u32 s{kst}, s{kst}, 1", f"s_cmp_eq_u32 s{kst}, 10", f"s_cselect_b32 s{kst}, 0, s{kst}", f"s_lshl_b32 s{sox1}, s{kst}, 7",
                 f"s_add_u32 m0, s{m0b}, {slot*32768}", f"s_add_u32 s{sox1}, s{sox1}, s{sox}", dx(0), dx(1)],
                [dx(2), dx(3)],
                [f"s_mul_i32 s{sow1}, s{kst}, {64*3840}", f"s_add_u32 m0, s{m0b}, {slot*32768+16384}", f"s_add_u32 s{sow1}, s{sow1}, s{sow}", dw(0), dw(1)],
                [dw(2), dw(3)]]
    PRE = CFG.get("p1pre", 2)
    lab = A.label("nodma")
    A(f"s_cmp_ge_u32 s{ct}, 15"); A(f"s_cbranch_scc1 {lab}")
    for stg in range(PRE):
        for g in dma_groups(stg): A.ext(g)
    A(f"{lab}:")
    A(f"s_mov_b32 s{SD+2}, 256"); A(f"s_mov_b32 s{SD+3}, 0x20000")
    A(f"s_getreg_b32 s{MYF}, hwreg(HW_REG_XCC_ID, 0, 4)"); A(f"s_add_u32 s{MYF}, s{MYF}, 1")
    ST.mark()
    A(f"s_cmp_ge_u32 s{ct}, 15"); A(f"s_cbranch_scc1 {K}_idle")
    A(f"v_and_b32 {v(t0)}, 31, {v(LANE)}"); A(f"v_lshrrev_b32 {v(t1)}, 5, {v(LANE)}")
    A(f"v_bfe_u32 {v(t2)}, {v(LANE)}, 1, 3"); A(f"v_xor_b32 {v(t2)}, {v(t2)}, {v(t1)}")
    A(f"s_lshl_b32 s56, s{wm}, 1"); A(f"s_add_u32 s56, s56, s{wn}"); A("s_lshl_b32 s56, s56, 12")
    A(f"v_lshlrev_b32 {v(t0)}, 7, {v(t0)}"); A(f"v_add_u32 {v(t0)}, s56, {v(t0)}")
    for ks in range(4):
        A(f"v_xor_b32 {v(t3)}, {2*ks}, {v(t2)}"); A(f"v_lshl_add_u32 {v(xa+ks)}, {v(t3)}, 4, {v(t0)}")
        A(f"v_xor_b32 {v(xa+4+ks)}, 4096, {v(xa+ks)}")
    A(f"v_bfe_u32 {v(t0)}, {v(LANE)}, 2, 2")
    A(f"v_lshl_add_u32 {v(t1)}, {v(t1)}, 3, {v(t0)}"); A(f"v_lshlrev_b32 {v(t1)}, 8, {v(t1)}")
    A(f"s_lshl_b32 s56, s{wn}, 1"); A(f"s_add_u32 s56, s56, s{wm}")
    A(f"v_xor_b32 {v(t0)}, s56, {v(t0)}"); A(f"v_lshl_add_u32 {v(t1)}, {v(t0)}, 6, {v(t1)}")
    A(f"v_bfe_u32 {v(t0)}, {v(LANE)}, 4, 1"); A(f"v_and_b32 {v(t2)}, 3, {v(LANE)}"); A(f"v_lshl_add_u32 {v(t0)}, {v(t0)}, 2, {v(t2)}")
    swap01(A, t2, t0, t3)
    A(f"v_lshl_add_u32 {v(t1)}, {v(t2)}, 3, {v(t1)}"); A(f"v_add_u32 {v(wa)}, 16384, {v(t1)}"); A(f"v_xor_b32 {v(wa+1)}, 64, {v(wa)}")
    make_sel(A, sel, t0)
    for i in range(4): A(f"v_mov_b32 {v(sq+i)}, 0")
    A(f"v_and_b32 {v(t2)}, 31, {v(LANE)}")
    A(f"s_lshl_b32 s40, s{wm}, 1"); A(f"s_add_u32 s40, s40, s{wn}"); A("s_lshl_b32 s40, s40, 7")
    A(f"s_lshl_b32 s41, s{wn}, 1"); A(f"s_add_u32 s41, s41, s{wm}"); A("s_lshl_b32 s41, s41, 7")
    xs, ws_, hh, sa, va = 6, 7, t3, 48, 52
    A(f"v_lshl_add_u32 {v(xs)}, {v(t2)}, 2, s40"); A(f"v_lshl_add_u32 {v(ws_)}, {v(t2)}, 2, s41")
    A(f"v_lshrrev_b32 {v(hh)}, 5, {v(LANE)}")
    A(f"s_lshl_b32 s36, s{rt}, 2"); A("s_lshr_b32 s37, s40, 7"); A("s_add_u32 s36, s36, s37"); A("s_xor_b32 s37, s36, 1")
    A(f"s_cmp_lt_u32 s{ct}, 5"); A(f"s_cselect_b32 s42, {hex(QSCALE)}, 1.0")
    A(f"s_cmp_ge_u32 s{ct}, 10"); A(f"s_cbranch_scc1 {K}_v")

    def base_of(stage): return {0: 0, 1: 0, 2: 65536, 3: 65536, 4: 131072}[stage % 5]
    def reads(g):
        stage, ks = divmod(g, 4); buf = g & 1
        so = (stage % 5)*32768 - base_of(stage)
        L = [f"ds_read_b128 {v(XF+16*buf,4)}, {v(xa+ks)} offset:{so}"]
        L += [f"ds_read_b64_tr_b16 {v(WF+16*buf+2*q,2)}, {v(wa)} offset:{so+(16*ks+4*q)*256}" for q in range(2)]
        L += [f"ds_read_b128 {v(XF+16*buf+4,4)}, {v(xa+4+ks)} offset:{so}"]
        L += [f"ds_read_b64_tr_b16 {v(WF+16*buf+4+2*q,2)}, {v(wa+1)} offset:{so+(16*ks+4*q)*256}" for q in range(2)]
        return L
    def mainloop(isv):
        if not isv:
            A("s_mul_i32 s36, s36, 2560"); A("s_mul_i32 s37, s37, 2560")
            A(f"s_lshl_b32 s38, s{ct}, 4"); A("s_lshr_b32 s39, s41, 5"); A("s_add_u32 s38, s38, s39")
            A("s_mov_b32 s39, 163840")
            for jw in range(2):
                for aa in range(2):
                    d = sa + 2*jw + aa
                    A(f"s_xor_b32 s43, s38, {4*jw}"); A(f"s_add_u32 s43, s43, {2*aa}")
                    A(f"v_add_u32 {v(tmp)}, s43, {v(hh)}"); A(f"v_mul_u32_u24 {v(tmp+1)}, 205, {v(tmp)}"); A(f"v_lshrrev_b32 {v(tmp+1)}, 10, {v(tmp+1)}")
                    A(f"v_mul_u32_u24 {v(tmp+2)}, 5, {v(tmp+1)}"); A(f"v_sub_u32 {v(tmp)}, {v(tmp)}, {v(tmp+2)}")
                    A(f"v_mul_u32_u24 {v(tmp+1)}, s39, {v(tmp+1)}"); A(f"v_lshl_add_u32 {v(tmp)}, {v(tmp)}, 9, {v(tmp+1)}")
                    A(f"v_lshl_add_u32 {v(d)}, {v(t2)}, 4, {v(tmp)}")
        else:
            A("s_mul_i32 s36, s36, 1280"); A("s_mul_i32 s37, s37, 1280"); A(f"s_add_u32 s36, s36, {V_OFF}"); A(f"s_add_u32 s37, s37, {V_OFF}")
            A(f"s_sub_u32 s38, s{ct}, 10"); A("s_lshl_b32 s38, s38, 7"); A("s_lshr_b32 s39, s41, 2"); A("s_add_u32 s38, s38, s39")
            A(f"v_lshrrev_b32 {v(tmp)}, 2, {v(t2)}"); swap01(A, tmp+1, tmp, tmp+2)
            A(f"v_and_b32 {v(tmp)}, 3, {v(t2)}"); A(f"v_lshl_add_u32 {v(tmp+3)}, {v(tmp+1)}, 2, {v(tmp)}")
            A("s_mov_b32 s39, 81920")
            for jw in range(2):
                A(f"s_xor_b32 s43, s38, {32*jw}")
                A(f"v_add_u32 {v(tmp)}, s43, {v(tmp+3)}"); A(f"v_mul_u32_u24 {v(tmp+1)}, 3277, {v(tmp)}"); A(f"v_lshrrev_b32 {v(tmp+1)}, 16, {v(tmp+1)}")
                A(f"v_mul_u32_u24 {v(tmp+2)}, 20, {v(tmp+1)}"); A(f"v_sub_u32 {v(tmp)}, {v(tmp)}, {v(tmp+2)}")
                A(f"v_mul_u32_u24 {v(tmp+1)}, s39, {v(tmp+1)}"); A(f"v_lshl_add_u32 {v(tmp)}, {v(tmp)}, 4, {v(tmp+1)}")
                A(f"v_mul_u32_u24 {v(tmp+1)}, 320, {v(hh)}"); A(f"v_add_u32 {v(sa+jw)}, {v(tmp)}, {v(tmp+1)}")
        A(f"v_lshlrev_b32 {v(va)}, 4, {v(hh)}"); A(f"v_add_u32 {v(va)}, s{40 if isv else 41}, {v(va)}"); A(f"v_xor_b32 {v(va+1)}, 128, {v(va)}")
        A(f"v_xor_b32 {v(va+2)}, 128, {v(ws_ if isv else xs)}")
        vq = [s_ for s_ in range(PRE) for _ in range(8)]
        def after(tag): return len(vq) - 1 - max(i for i, x in enumerate(vq) if x == tag)
        pend = [(s_, g) for s_ in range(PRE, 10) for g in dma_groups(s_)]
        A(f"s_waitcnt vmcnt({after(0)})"); A("s_barrier"); ST.mark(2)
        A.ext(reads(0))
        for g in range(40):
            stage, ks = divmod(g, 4); buf = g & 1
            X = lambda j: XF+16*buf+4*j
            Wf = lambda j: WF+16*buf+4*j
            A("s_waitcnt lgkmcnt(0)")
            if ks == 3 and stage < 9:
                assert vq.count(stage+1) == 8
                n = after(stage+1); A(f"s_waitcnt vmcnt({n})"); A("s_barrier")
            c0 = "0" if g == 0 else None
            mm = lambda jw, jx: mf32(ACC+32*jw+16*jx, X(jx), Wf(jw), c0) if isv else mf32(ACC+32*jw+16*jx, Wf(jw), X(jx), c0)
            mf = [mm(0,0), mm(0,1), mf16(rs, sel, X(0), c0), mm(1,0), mm(1,1), mf16(cs, sel, Wf(0), c0)]
            ops = reads(g+1) if g < 39 else []
            for _ in range(2):
                if pend and g >= 4*(pend[0][0]-5)+3 and (_ == 0 or pend[0][0] < 5 or g > 4*(pend[0][0]-5)+6):
                    s_, grp = pend.pop(0); ops = ops + grp; vq += [s_, s_]
            valu = []
            for i in range(4):
                valu += [f"v_and_b32 {v(tmp)}, 0xffff0000, {v(X(0)+i)}", f"v_lshlrev_b32 {v(tmp+1)}, 16, {v(X(0)+i)}",
                         f"v_fmac_f32 {v(sq)}, {v(tmp)}, {v(tmp)}", f"v_fmac_f32 {v(sq+1)}, {v(tmp+1)}, {v(tmp+1)}"]
            weave(A, mf, ops, valu, [6, 6, 2, 6, 6, 2])
            if ks == 2 and stage < 9 and base_of(stage+1) != base_of(stage):
                d = (base_of(stage+1) - base_of(stage)) & 0xffffffff
                A.ext([f"v_add_u32 {v(x)}, {d}, {v(x)}" for x in list(range(xa, xa+8)) + [wa, wa+1]])
        assert not pend
        ST.mark(3)
        A(f"v_add_f32 {v(sq)}, {v(sq)}, {v(sq+1)}"); A(f"v_mul_f32 {v(t0)}, {hex(f2u(-1/640))}, {v(rs)}"); A(f"v_mov_b32 {v(sq+1)}, {v(sq)}"); A("s_nop 1")
        A(f"v_permlane32_swap_b32 {v(sq)}, {v(sq+1)}"); A("s_nop 1")
        A(f"v_add_f32 {v(sq)}, {v(sq)}, {v(sq+1)}")
        A(f"v_mul_f32 {v(sq)}, {hex(f2u(1/640))}, {v(sq)}")
        A(f"v_fma_f32 {v(sq)}, -{v(t0)}, {v(t0)}, {v(sq)}"); A(f"v_max_f32 {v(sq)}, 0, {v(sq)}")
        A(f"v_add_f32 {v(sq)}, {hex(f2u(1e-5))}, {v(sq)}"); A(f"v_rsq_f32 {v(t1)}, {v(sq)}")
        A(f"ds_write_b32 {v(xs)}, {v(t0)} offset:512"); A(f"ds_write_b32 {v(ws_)}, {v(cs)} offset:1024")
        A(f"v_mul_f32 {v(t1)}, s42, {v(t1)}")
        A(f"ds_write_b32 {v(xs)}, {v(t1)}")
        PR, SC = 56, 120
        A("s_waitcnt lgkmcnt(0)"); A("s_barrier")
        if not isv:
            A(f"ds_read_b32 {v(SC+2)}, {v(va+2)}"); A(f"ds_read_b32 {v(SC+6)}, {v(va+2)} offset:512")
            for j in range(2):
                for rg in range(4): A(f"ds_read_b128 {v(PR+16*j+4*rg,4)}, {v(va+j)} offset:{1024+32*rg}")
            A(f"v_mov_b32 {v(SC)}, {v(t1)}"); A(f"v_mov_b32 {v(SC+4)}, {v(t0)}")
        else:
            A(f"ds_read_b32 {v(SC+2)}, {v(va+2)} offset:1024")
            for j in range(2):
                for rg in range(4): A(f"ds_read_b128 {v(PR+32*j+16+4*rg,4)}, {v(va+j)} offset:{512+32*rg}")
                for rg in range(4): A(f"ds_read_b128 {v(PR+32*j+4*rg,4)}, {v(va+j)} offset:{32*rg}")
                if j == 0: A("s_waitcnt lgkmcnt(6)")
            A(f"v_mov_b32 {v(SC)}, {v(cs)}")
        A("s_waitcnt lgkmcnt(0)")
        for jw in range(2):
            for jx in range(2):
                ac = ACC+32*jw+16*jx
                for i in range(0, 16, 2):
                    if not isv: A(f"v_pk_fma_f32 {v(ac+i,2)}, {v(PR+16*jw+i,2)}, {v(SC+4+2*jx,2)}, {v(ac+i,2)} op_sel_hi:[1,0,1]")
                    else: A(f"v_pk_fma_f32 {v(ac+i,2)}, {v(PR+32*jx+16+i,2)}, {v(SC+2*jw,2)}, {v(ac+i,2)} op_sel_hi:[1,0,1]")
                for i in range(0, 16, 2):
                    if not isv: A(f"v_pk_mul_f32 {v(ac+i,2)}, {v(ac+i,2)}, {v(SC+2*jx,2)} op_sel_hi:[1,0]")
                    else: A(f"v_pk_mul_f32 {v(ac+i,2)}, {v(ac+i,2)}, {v(PR+32*jx+i,2)}")
                o = XF + 8*(2*jw+jx)
                for i in range(8): A(f"v_cvt_pk_bf16_f32 {v(o+i)}, {v(ac+2*i)}, {v(ac+2*i+1)}")
                for aa in range(2):
                    if not isv: A(f"buffer_store_dwordx4 {v(o+4*aa,4)}, {v(sa+2*jw+aa)}, {S4(SWS)}, s{36+jx} offen sc1")
                    else: A(f"buffer_store_dwordx4 {v(o+4*aa,4)}, {v(sa+jw)}, {S4(SWS)}, s{36+jx} offen offset:{640*aa} sc1")
    mainloop(False)
    A(f"s_branch {K}_p1done")
    A(f"{K}_idle:")
    ST.mark(2); ST.mark(3)
    for i in range(4): A(f"v_mov_b32 {v(8+i)}, 0"); A(f"v_mov_b32 {v(4+i)}, 0x3f803f80")
    A(f"s_mul_i32 s56, s{rt}, 6144"); A(f"s_add_u32 s56, s56, {F1_OFF}"); A("v_lshlrev_b32 v2, 4, v0"); A("v_lshlrev_b32 v3, 3, v0"); A("v_add_u32 v3, 4096, v3")
    A(f"buffer_store_dwordx4 v[8:11], v2, {S4(SWS)}, s56 offen sc1"); A(f"buffer_store_dwordx2 v[8:9], v3, {S4(SWS)}, s56 offen sc1")
    A(f"s_lshl_b32 s57, s{rt}, 3"); A("v_add_u32 v2, s57, v0")
    A("v_mul_u32_u24 v2, 640, v2"); A(f"v_mov_b32 v3, {OOB}"); A("v_cmp_gt_u32 vcc, 8, v0"); A("s_nop 1"); A("v_cndmask_b32 v2, v3, v2, vcc")
    A(f"s_mov_b32 s56, {V_OFF + 32*81920}")
    A(f"buffer_store_dwordx4 v[4:7], v2, {S4(SWS)}, s56 offen sc1")
    A(f"s_lshl_b32 s57, s{rt}, 2"); A(f"s_cmp_eq_u32 s{W}, 0"); A(f"s_cselect_b32 s57, s57, {OOB}"); A("v_mov_b32 v2, 1")
    A("s_waitcnt vmcnt(0)"); A("s_barrier")
    A("s_mov_b64 exec, 1"); A(f"buffer_store_dword v2, off, {S4(SD)}, s57 sc1"); A("s_mov_b64 exec, -1")
    A(f"s_branch {K}_p1done")
    A(f"{K}_v:")
    mainloop(True)
    A(f"{K}_p1done:")
    if CFG["stamps"]: ST.n = 4
    ST.mark()
    A(f"v_lshlrev_b32 v2, 2, {v(LANE)}"); A(f"v_mov_b32 v3, s{MYF}")
    A(f"s_lshl_b32 s56, s2, 7"); A(f"s_add_u32 s56, s56, {F1_OFF}"); A(f"s_cmp_eq_u32 s{W}, 0"); A(f"s_cselect_b32 s56, s56, {OOB}")
    A("s_mov_b64 exec, 0xffff")
    poll(A, [f"buffer_load_dword v4, v2, {S4(SD)}, 0 offen sc1"], [4], sleep=8)
    A("s_barrier")
    A("s_mov_b64 exec, 1"); A(f"buffer_store_dword v3, off, {S4(SWS)}, s56 sc1"); A("s_mov_b64 exec, -1")
    ST.mark()
    relayout_setup(A)

def w3reg(f): return 256 + 192 + 4*f if f < 16 else 148 + 4*(f-16)
WV = 250
P3RES, P3CS = 184, 194
SK_WR, SK_RD, SK_RM = 242, 245, 246
def p3_wload(f):
    ks, u = divmod(f, 5)
    L = [f"buffer_load_dwordx4 {r(w3reg(f),4)}, {v(WV if u < 4 else WV+1)}, {S4(SWS)}, s44 offen offset:{1024*(u&3)} sc1"]
    if u == 4: L.append("s_add_u32 s44, s44, 40960")
    return L
CMB = 86016

def phase2(A, ST):
    odd, sok, sov, sox, redo, sob, sfr, stch = 28, 72, 73, 74, 32, 33, 34, 35
    S0, S1, P, E, O0 = 16, 48, 80, 96, 104
    kv, kxv, vv, ov, oxv, cw, cr, tv = 136, 137, 138, 139, 140, 141, 144, 145
    OA, QM, QX, KR, VR, XR = 256, 256+96, 256+128, 256+136, 256+152, 256+184
    Oreg = lambda lp: O0 if lp == 0 else OA + 32*(lp-1)
    t0, t1, t2, t3, t4 = 2, 3, 4, 5, 6
    LD = CFG.get("ld", "sc1")
    head, qb = GI, GX
    A(f"s_and_b32 s{odd}, s{head}, 1")
    A(f"s_lshr_b32 s36, s{head}, 1"); A("s_mul_i32 s37, s36, 163840")
    A(f"s_add_u32 s38, s37, {16*163840}"); A(f"s_add_u32 s{SA}, s{SWS}, s38"); A(f"s_addc_u32 s{SA+1}, s{SWS+1}, 0"); A(f"s_mov_b32 s{SA+2}, 163840")
    A(f"s_lshl_b32 s38, s{qb}, 2"); A(f"s_add_u32 s39, s38, s{W}")
    A(f"s_mul_i32 s{sob}, s39, 81920"); A("s_mul_i32 s36, s36, 1280"); A(f"s_add_u32 s{sob}, s{sob}, s36"); A(f"s_add_u32 s{sob}, s{sob}, {O_OFF}")
    for i in range(4):
        A(f"s_add_u32 s36, s{W}, {i}"); A("s_and_b32 s36, s36, 3")
        if i: A("s_mul_i32 s39, s36, 18432"); A(f"s_add_u32 s39, s39, {CMB+(i-1)*6144}"); A(f"v_add_u32 {v(cw+i-1)}, s39, {v(LV)}")
        else: A("s_mul_i32 s39, s36, 18432"); A(f"s_add_u32 s39, s39, {CMB}"); A(f"v_add_u32 {v(cr)}, s39, {v(LV)}")
        A("s_add_u32 s36, s36, s38"); A("s_mul_i32 s36, s36, 5120"); A(f"s_add_u32 s{40+i}, s36, s37")
    A(f"s_mul_i32 s36, s{odd}, 1536"); A(f"v_add_u32 {v(kv)}, s36, {v(LV)}")
    A(f"v_and_b32 {v(t0)}, 31, {v(LANE)}"); A(f"v_lshrrev_b32 {v(t1)}, 5, {v(LANE)}")
    A(f"s_lshl_b32 s36, s{odd}, 3"); A("s_add_u32 s37, s36, 1024")
    A(f"v_lshl_add_u32 {v(t4)}, {v(t0)}, 4, s37")
    A(f"v_mul_u32_u24 {v(t2)}, 2560, {v(t1)}"); A(f"v_add_u32 {v(kxv)}, {v(t4)}, {v(t2)}")
    A(f"v_bfe_u32 {v(t2)}, {v(LANE)}, 4, 1"); A(f"v_mul_u32_u24 {v(t2)}, 20480, {v(t2)}"); A(f"v_and_b32 {v(t3)}, 15, {v(LANE)}"); A(f"v_lshl_add_u32 {v(t2)}, {v(t3)}, 4, {v(t2)}")
    A("s_add_u32 s37, s36, 512"); A(f"v_add_u32 {v(oxv)}, s37, {v(t2)}")
    A(f"s_mul_i32 s37, s{odd}, 768"); A(f"v_lshl_add_u32 {v(t2)}, {v(t1)}, 8, {v(t2)}"); A(f"v_add_u32 {v(ov)}, s37, {v(t2)}")
    A(f"v_lshrrev_b32 {v(t2)}, 2, {v(t0)}"); swap01(A, t3, t2, 7)
    A(f"v_and_b32 {v(t2)}, 3, {v(t0)}"); A(f"v_lshl_add_u32 {v(t2)}, {v(t3)}, 2, {v(t2)}")
    A(f"s_lshl_b32 s36, s{odd}, 2"); A(f"v_add_u32 {v(t2)}, s36, {v(t2)}")
    A(f"v_add_u32 {v(t3)}, -20, {v(t2)}"); A(f"v_min_u32 {v(t2)}, {v(t2)}, {v(t3)}")
    A(f"v_mul_u32_u24 {v(t3)}, 320, {v(t1)}"); A(f"v_lshl_add_u32 {v(t2)}, {v(t2)}, 4, {v(t3)}")
    A(f"v_mov_b32 {v(t3)}, {OOB}"); A(f"v_cmp_gt_u32 vcc, 20, {v(t0)}"); A("s_nop 1"); A(f"v_cndmask_b32 {v(t2)}, {v(t3)}, {v(t2)}, vcc")
    A(f"s_sub_u32 s36, 32, s{head}"); A("s_mul_i32 s36, s36, 81920"); A(f"v_mov_b32 {v(t3)}, s36")
    A(f"v_cmp_eq_u32 vcc, 20, {v(t0)}"); A("s_nop 1"); A(f"v_cndmask_b32 {v(vv)}, {v(t2)}, {v(t3)}, vcc")
    A(f"s_mul_i32 s{sok}, s{W}, {16*2560}"); A(f"s_mov_b32 s{sox}, s{sok}")
    A(f"s_mul_i32 s{sov}, s{head}, 81920"); A(f"s_mul_i32 s36, s{W}, {16*1280}"); A(f"s_add_u32 s{sov}, s{sov}, s36"); A(f"s_add_u32 s{sov}, s{sov}, {V_OFF}")
    A(f"s_mov_b32 s{redo}, 0")
    A(f"v_add_u32 v252, 4096, {v(LV)}")
    A(f"s_bfe_u32 s36, s{GI}, 0x10002"); A("s_lshl_b32 s37, s36, 10"); A(f"v_add_u32 {v(WV)}, s37, {v(LV)}")
    A("s_xor_b32 s36, s36, 1"); A("s_lshl_b32 s37, s36, 12"); A(f"v_add_u32 {v(WV+1)}, s37, {v(LV)}")
    A(f"s_lshr_b32 s36, s{GI}, 2"); A("s_mul_i32 s36, s36, 5120"); A(f"s_mul_i32 s44, s{W}, {5*40960}"); A("s_add_u32 s44, s44, s36"); A(f"s_add_u32 s44, s44, {WO_OFF}")
    skinny_addr(A); p4_setup(A)
    A(f"s_lshl_b32 s75, s{P4_ST}, 7"); A(f"s_add_u32 s75, s75, {CS_OFF}"); A("v_lshlrev_b32 v146, 2, v0")
    A(f"s_lshl_b32 s{sfr}, s2, 2"); A(f"s_add_u32 s{sfr}, s{sfr}, s{W}"); A(f"s_lshl_b32 s{sfr}, s{sfr}, 2"); A(f"s_add_u32 s{sfr}, s{sfr}, {FR_OFF}")
    A(f"s_lshl_b32 s36, s{GX}, 5"); A(f"s_add_u32 s36, s36, s{GI}"); A("s_lshl_b32 s36, s36, 2"); A(f"s_add_u32 s36, s36, s{W}")
    A("s_mul_i32 s37, s36, 2560"); A(f"s_add_u32 s37, s37, {O_OFF}"); A(f"v_lshl_add_u32 {v(tv)}, {v(LANE)}, 7, s37")
    A(f"v_add_u32 {v(t2)}, {H_OFF-O_OFF-2560}, {v(tv)}"); A(f"v_cmp_lt_u32 vcc, 19, {v(LANE)}"); A("s_lshl_b32 s37, s36, 7"); A(f"s_add_u32 s37, s37, {STAT_OFF}")
    A(f"v_cndmask_b32 {v(tv)}, {v(tv)}, {v(t2)}, vcc"); A(f"v_mov_b32 {v(t2)}, s37"); A(f"v_cmp_lt_u32 vcc, 39, {v(LANE)}"); A("s_nop 1")
    A(f"v_cndmask_b32 {v(tv)}, {v(tv)}, {v(t2)}, vcc")
    A(f"s_mul_i32 s76, s36, 6912"); A(f"s_add_u32 s76, s76, {HH_OFF}")
    A(f"v_and_b32 v8, 31, {v(LANE)}"); A("v_lshlrev_b32 v8, 10, v8"); A(f"s_lshl_b32 s77, s{GX}, 7"); A(f"s_add_u32 s77, s77, {F1_OFF}"); A("v_mov_b32 v10, 1")
    A(f"s_mov_b32 s78, {FR_OFF}")
    A("s_and_b32 s36, s2, 0x7f"); A("s_lshl_b32 s36, s36, 7"); A(f"s_add_u32 s36, s36, {F1_OFF}")
    lab = A.label("busy"); A("s_cmp_lt_u32 s29, 15"); A(f"s_cbranch_scc1 {lab}")
    poll(A, [f"buffer_load_dword v4, off, {S4(SWS)}, s36 sc1"], [4], sleep=6)
    A(f"{lab}:")
    A("v_lshlrev_b32 v2, 7, v0"); A(f"s_mov_b32 s36, {F1_OFF}")
    poll(A, [f"buffer_load_dword v4, v2, {S4(SWS)}, s36 offen sc1"], [4])
    A("s_barrier")
    ST.mark()
    Kr = lambda t: KR + 4*(t % 4)
    Vr = lambda t, sx: VR + 8*(t % 4) + 4*sx
    Xr = lambda j: XR + 2*(j % 2)
    def ldk(t): return [f"buffer_load_dwordx4 {r(Kr(t),4)}, {v(kv)}, {S4(SA)}, s{sok} offen offset:{2560*(t&1)} {LD}"] + ([f"s_add_u32 s{sok}, s{sok}, 5120"] if t & 1 else [])
    def ldx(j): return [f"buffer_load_dwordx2 {r(Xr(j),2)}, {v(kxv)}, {S4(SA)}, s{sox} offen sc1", f"s_add_u32 s{sox}, s{sox}, 5120"]
    def ldv(t, sx): return [f"buffer_load_dwordx4 {r(Vr(t,sx),4)}, {v(vv)}, {S4(SWS)}, s{sov} offen offset:{1280*(t&1)+640*sx} {LD}"] + ([f"s_add_u32 s{sov}, s{sov}, 2560"] if (t & 1 and sx) else [])
    def ldq(lp): return ([f"buffer_load_dwordx2 {r(QX+2*lp,2)}, {v(kxv)}, {S4(SWS)}, s{40+lp} offen sc1"] +
                         [f"buffer_load_dwordx4 {r(QM+8*lp+4*j,4)}, {v(kv)}, {S4(SWS)}, s{40+lp} offen offset:{2560*j} sc1" for j in range(2)])
    Q = VQ()
    order = (1, 2, 3, 0)
    for tag, ops in ((("x", 0), ldx(0)), (("k", 0), ldk(0)), (("q", 1), ldq(1)), (("q", 2), ldq(2)), (("v", 0, 0), ldv(0, 0)), (("v", 0, 1), ldv(0, 1)),
                     (("q", 3), ldq(3)), (("q", 0), ldq(0))):
        A.ext(Q.add(tag, ops))
    side = {b: [] for b in range(64)}
    mid = {b: [] for b in range(64)}
    def put(b, tag, ops): side[b] += [(tag, x) for x in ops]
    put(0, ("k", 1), ldk(1)); put(0, ("v", 1, 0), ldv(1, 0)); put(1, ("v", 1, 1), ldv(1, 1)); put(1, ("x", 1), ldx(1)); put(1, ("k", 2), ldk(2))
    put(2, ("v", 2, 0), ldv(2, 0)); put(2, ("v", 2, 1), ldv(2, 1)); put(2, ("k", 3), ldk(3)); put(3, ("v", 3, 0), ldv(3, 0)); put(3, ("v", 3, 1), ldv(3, 1))
    for t in range(12):
        put(4*t+3 + (t == 0), ("k", t+4), ldk(t+4)); put(4*t+4, ("v", t+4, 0), ldv(t+4, 0)); put(4*t+5, ("v", t+4, 1), ldv(t+4, 1))
    for j in range(6): put(8*j+6, ("x", j+2), ldx(j+2))
    for b in (7, 23, 39, 55): put(b, "pc", [CODE_TOUCH])
    B0 = CFG.get("b0", 4); B1 = B0 + CFG.get("b1", 8)
    if not CFG.get("noside"):
        put(5, "grp", [f"buffer_load_dword v9, v8, {S4(SWS)}, s77 offen sc1"])
        for i in range(10): put(B0+i, ("rd", i), rl_dma(i))
        for a_ in range(5):
            put(B1+2*a_, None, [("wait", ("rd", 2*a_+1))] + rl_read(a_, 0) + rl_read(a_, 1))
            put(B1+2*a_+1, "rs", ["s_waitcnt lgkmcnt(0)"] + rl_store(a_, 0) + rl_store(a_, 1)); mid[B1+2*a_+1] += [rl_sum(a_, 0), rl_sum(a_, 1)]
        put(B1+10, "rs", rl_cs(0) + rl_cs(1))
        B2 = B1 + 10 + CFG.get("b2", 5)
        put(B2, "fr", [("wait", "rs"), f"buffer_store_dword v10, off, {S4(SWS)}, s{sfr} sc1", f"v_cmp_ne_u32 vcc, s{MYF}, v9", "s_nop 0", "s_cmp_eq_u64 vcc, 0",
                       f"s_cselect_b32 s{MODE}, {0 if CFG.get('safe') else 1}, 0"])
        put(B2+1, None, [f"s_cmp_eq_u32 s{MODE}, 0", f"s_cselect_b32 s{stch}, {OOB}, 0", f"s_add_u32 s76, s76, s{stch}"])
        B3 = B2 + CFG.get("b3", 5)
        frl = [f"buffer_load_dwordx4 {v(RLF+4*j,4)}, {v(LV)}, {S4(SWS)}, s78 offen offset:{1024*j} sc1" for j in range(3)]
        put(B3, "frl", frl)
        chk = [f"v_min3_u32 {v(RLF)}, {v(RLF)}, {v(RLF+i)}, {v(RLF+i+1)}" for i in range(1, 11, 2)] + [f"v_min_u32 {v(RLF)}, {v(RLF)}, {v(RLF+11)}", f"v_cmp_eq_u32 vcc, 0, {v(RLF)}"]
        put(B3+3, None, [("wait", "frl")] + chk + ["s_nop 0", f"s_cbranch_vccnz {K}_frspin", f"{K}_frok:"])
        pf = [x for st_ in range(3) for x in p4_dma(st_)]
        pf += [x for kq in range(4) for x in (f"buffer_load_dword {v(P3CS+kq)}, v146, {S4(SWS)}, s75 offen sc1", f"s_add_u32 s75, s75, {108*128}")]
        pf += io_rm("load", P3RES, SX) + [f"buffer_load_dword v11, {v(tv)}, {S4(SWS)}, s{stch} offen sc1"]
        pf += [x for f in range(25) for x in p3_wload(f)]
        nb = 61 - (B3+4); nreal = sum(not is_salu(x) for x in pf)
        for b in range(B3+4, 61):
            take = -(-nreal//(61-b))
            while pf and (take > 0 or is_salu(pf[0])):
                x = pf.pop(0); put(b, "pf", [x])
                if not is_salu(x): take -= 1; nreal -= 1
    else: A(f"s_mov_b32 s{MODE}, 1")
    for n in range(3):
        lp = order[n]
        put(61+n, None, [f"ds_write_b128 {v(cw+lp-1)}, {r(Oreg(lp)+16*j+4*g,4)} offset:{3072*j+1024*g}" for j in range(2) for g in range(3)])
    A.ext(Q.wait(("q", 1)))
    A(mf2b(S0, Xr(0), QX+2, "0", 0)); A("s_nop 15"); A("s_nop 1")
    A(mf32(S0, Kr(0), QM+8)); A(mf32(S0+16, Kr(0), QM+12))
    A.ext(Q.wait(("q", 2)))
    ST.mark()
    A("s_nop 10"); A(".p2align 3")
    def needs(b, k):
        if b > 63: return []
        t, t1_, lp1 = b >> 2, (b+1) >> 2, order[(b+1) & 3]
        if k == 0: return [("x", t1_ >> 1), ("q", lp1)] if b < 63 else []
        if k == 4: return [("k", t1_)] if b < 63 else []
        if k == 3: return [("v", t, 0)]
        if k == 6: return [("v", t, 1)]
        return []
    for b in range(64):
        t, lp = b >> 2, order[b & 3]
        t1_, lp1 = (b+1) >> 2, order[(b+1) & 3]
        cur, nxt = (S0, S1) if b % 2 == 0 else (S1, S0)
        c0 = "0" if t == 0 else None
        mf = {3: mf32(Oreg(lp), Vr(t, 0), P, c0), 6: mf32(Oreg(lp), Vr(t, 1), P+4), 7: mf32(Oreg(lp)+16, Vr(t, 0), P+8, c0)}
        if b: mf[2] = mf32(Oreg(order[(b-1) & 3])+16, Vr((b-1) >> 2, 1), P+12)
        if b < 63:
            mf[0] = mf2b(nxt, Xr(t1_ >> 1), QX+2*lp1, "0", t1_ & 1); mf[4] = mf32(nxt, Kr(t1_), QM+8*lp1); mf[5] = mf32(nxt+16, Kr(t1_), QM+8*lp1+4)
        q = side[b]; mq = list(mid[b])
        if b in ASTAMPS(): ST.mark()
        for k in range(8):
            if k in mf: A(mf[k])
            n0 = len(A.L)
            if k >= 2:
                tags = needs(b, k+1) if k < 7 else needs(b+1, 0)
                w_ = Q.wait(*tags) if tags else []
                A.ext(w_)
                free = not w_; nmem = 0
                left = sum(1 for tg, x in q if not (isinstance(x, tuple) or is_salu(x) or x.startswith("v_") or x.endswith(":")))
                want = -(-left//(8-k))
                while q:
                    tg, x = q[0]
                    if isinstance(x, tuple):
                        if not free and k < 7 and CFG.get("strict", 1): break
                        q.pop(0); w_ = Q.wait(x[1]); A.ext(w_); free = free and not w_
                    elif x.endswith(":") or x.startswith("v_"): q.pop(0); A(x); free = False; nmem = 99 if k < 7 else nmem
                    elif is_salu(x):
                        if not free and k < 7 and len(q) <= 2*(7-k): break
                        q.pop(0); A(x); free = False
                    else:
                        if nmem >= max(want, 1) and k < 7: break
                        q.pop(0); A.ext(Q.add(tg, [x])); nmem += 1; free = False
            four = sum(1 for x in A.L[n0:] if isize(x) == 4)
            pk = (k-1) % 8; eb = E + 4*(pk & 1)
            if b or k:
                for j in range(2): A(f"v_cvt_pk_bf16_f32 {v(P+2*pk+j)}, {v(eb+2*j)}, {v(eb+2*j+1)}")
            for j in range(4):
                wide = j == 0 and four % 2 == 1 and CFG.get("align", 1)
                A(f"v_exp_f32{'_e64' if wide else ''} {v(E+4*(k&1)+j)}, {v(cur+4*k+j)}")
                if j == 1 and k >= 3 and mq and not any(x == "s_waitcnt lgkmcnt(0)" for _, x in q): A(mq.pop(0))
        assert not q and not mq, (b, q)
    for j in range(2): A(f"v_cvt_pk_bf16_f32 {v(P+14+j)}, {v(E+4+2*j)}, {v(E+5+2*j)}")
    A("s_waitcnt lgkmcnt(0)"); A("s_barrier")
    A(mf32(O0+16, Vr(15, 1), P+12))
    ST.mark()
    for sl in range(3):
        for j in range(2):
            for g in range(3): A(f"ds_read_b128 {v(S0+24*sl+12*j+4*g,4)}, {v(cr)} offset:{6144*sl+3072*j+1024*g}")
        if sl == 1: A("s_waitcnt lgkmcnt(6)")
    A(f"s_lshl_b32 s38, s{GX}, 2"); A(f"s_add_u32 s38, s38, s{W}"); A("s_lshl_b32 s38, s38, 5"); A(f"s_add_u32 s38, s38, s{GI}"); A("s_lshl_b32 s38, s38, 2"); A(f"s_add_u32 s38, s38, {F2_OFF}")
    A(f"s_add_u32 s39, s{sob}, 40960")
    for sl in range(3):
        if sl: A(f"s_waitcnt lgkmcnt({12-6*sl})")
        for j in range(2):
            for i in range(0, 12, 2): A(f"v_pk_add_f32 {v(O0+16*j+i,2)}, {v(O0+16*j+i,2)}, {v(S0+24*sl+12*j+i,2)}")
    A(f"{K}_anorm:")
    A(f"v_mov_b32 v12, {v(O0+8)}"); A(f"v_mov_b32 v13, {v(O0+8)}"); A(f"v_mov_b32 v14, {v(O0+24)}"); A(f"v_mov_b32 v15, {v(O0+24)}")
    A(f"s_mov_b32 s36, {hex(f2u(2.0**60))}"); A(f"s_mov_b32 s37, {hex(f2u(2.0**-60))}")
    A("v_permlane32_swap_b32 v12, v13"); A("v_permlane32_swap_b32 v14, v15"); A("s_nop 1")
    A("v_rcp_f32 v12, v13"); A("v_rcp_f32 v14, v15")
    A("v_cmp_nlt_f32_e64 vcc, v13, s36"); A("v_cmp_nlt_f32_e64 s[40:41], v15, s36"); A("v_cmp_ngt_f32_e64 s[42:43], v13, s37"); A("v_cmp_ngt_f32_e64 s[56:57], v15, s37")
    A("s_or_b64 vcc, vcc, s[40:41]"); A("s_or_b64 vcc, vcc, s[42:43]"); A("s_or_b64 vcc, vcc, s[56:57]"); A(f"s_cbranch_scc1 {K}_aslow")
    A(f"{K}_afin:")
    for j in range(2):
        for i in range(0, 12, 2): A(f"v_pk_mul_f32 {v(O0+16*j+i,2)}, {v(O0+16*j+i,2)}, {v(12+2*j,2)} op_sel_hi:[1,0]")
        for i in range(6): A(f"v_cvt_pk_bf16_f32 {v(S0+8*j+i)}, {v(O0+16*j+2*i)}, {v(O0+16*j+2*i+1)}")
    def stores(fl):
        L = [f"buffer_store_dwordx4 {v(S0+8*j,4)}, {v(ov)}, {S4(SWS)}, s{sob if j == 0 else 39} offen {fl}" for j in range(2)]
        L.append("s_mov_b32 exec_hi, 0")
        L += [f"buffer_store_dwordx2 {v(S0+8*j+4,2)}, {v(oxv)}, {S4(SWS)}, s{sob if j == 0 else 39} offen {fl}" for j in range(2)]
        return L
    publish(A, stores, ["s_mov_b64 exec, 1", "s_waitcnt vmcnt(0)"], lambda fl: [f"buffer_store_dword v10, off, {S4(SWS)}, s38 {fl}", "s_mov_b64 exec, -1"])
    ST.mark()
    def cold():
        if not CFG.get("noside"):
            A(f"{K}_frspin:")
            poll(A, frl, list(range(RLF, RLF+12)), sleep=2)
            A(f"s_branch {K}_frok")
        NM = S1
        A(f"{K}_aslow:")
        A(f"s_cmp_lg_u32 s{redo}, 0"); A(f"s_cbranch_scc1 {K}_afin")
        A(f"s_mov_b32 s{redo}, 1"); A(f"s_mov_b32 s{sok}, 0"); A(f"s_mov_b32 s{sox}, 0")
        A("v_mov_b32 v12, 0xff800000"); A("v_mov_b32 v13, 0xff800000")
        def scores(e, c):
            A(mf2b(S0, Xr(0), QX, c, e)); A("s_nop 15"); A("s_nop 1")
            A(mf32(S0, Kr(e), QM)); A(mf32(S0+16, Kr(e), QM+4)); A("s_nop 11")
        A(f"{K}_mloop:")
        A.ext(ldx(0) + ldk(0) + ldk(1)); A("s_waitcnt vmcnt(0)")
        for e in range(2):
            scores(e, "0")
            for j in range(2):
                for i in range(0, 16, 2): A(f"v_max3_f32 {v(12+j)}, {v(12+j)}, {v(S0+16*j+i)}, {v(S0+16*j+i+1)}")
        A(f"s_cmp_lt_u32 s{sok}, 163840"); A(f"s_cbranch_scc1 {K}_mloop")
        A("v_mov_b32 v14, v12"); A("v_mov_b32 v15, v13"); A("s_nop 1")
        A("v_permlane32_swap_b32 v12, v14"); A("v_permlane32_swap_b32 v13, v15"); A("s_nop 1")
        A("v_max_f32 v12, v12, v14"); A("v_max_f32 v13, v13, v15")
        for i in range(32): A(f"v_sub_f32 {v(NM+i)}, 0, {v(12+i//16)}"); A(f"v_mov_b32 {v(O0+i)}, 0")
        A(f"s_mov_b32 s{sok}, 0"); A(f"s_mov_b32 s{sox}, 0"); A(f"s_mul_i32 s{sov}, s{head}, 81920"); A(f"s_add_u32 s{sov}, s{sov}, {V_OFF}")
        A(f"{K}_sloop:")
        A.ext(ldx(0) + ldk(0) + ldk(1) + ldv(0, 0) + ldv(0, 1) + ldv(1, 0) + ldv(1, 1)); A("s_waitcnt vmcnt(0)")
        for e in range(2):
            scores(e, NM)
            for i in range(32): A(f"v_exp_f32 {v(S0+i)}, {v(S0+i)}")
            A("s_nop 0")
            for i in range(16): A(f"v_cvt_pk_bf16_f32 {v(P+i)}, {v(S0+2*i)}, {v(S0+2*i+1)}")
            A("s_nop 1")
            for j in range(2):
                for sx in range(2): A(mf32(O0+16*j, Vr(e, sx), P+8*j+4*sx))
        A(f"s_cmp_lt_u32 s{sok}, 163840"); A(f"s_cbranch_scc1 {K}_sloop")
        A("s_nop 15")
        A(f"s_branch {K}_anorm")
    return cold

RED = 86016
CSL = 147456
P4_SOW, P4_SOW2, P4_M0, P4_ST = 45, 46, 47, 48
class VQ:
    def __init__(self): self.q = []; self.done = 0
    def add(self, tag, ops):
        self.q += [tag for x in ops if x.startswith(("buffer", "global"))]
        assert len(self.q) - self.done <= 63, "too many outstanding"
        return ops
    def wait(self, *tags):
        idx = [i for i, x in enumerate(self.q) if x in tags]
        last = max(idx) + 1
        if last <= self.done: return []
        self.done = last
        return [f"s_waitcnt vmcnt({len(self.q) - last})"]

def p4_setup(A):
    A(f"s_lshr_b32 s36, s{GI}, 1"); A("s_mul_i32 s36, s36, 7"); A(f"s_min_u32 s{P4_ST}, s36, 101")
    A(f"s_mul_i32 s{P4_M0}, s{W}, 7168"); A(f"s_lshl_b32 s36, s{P4_ST}, 11"); A(f"s_add_u32 s36, s36, s{P4_M0}")
    A(f"s_lshr_b32 s37, s{W}, 1"); A(f"s_mul_i32 s37, s37, {221184-14336}"); A("s_add_u32 s36, s36, s37")
    A(f"s_add_u32 s{P4_SOW}, s36, {WGU_OFF}")
def p4_dma(stage):
    slot = stage % 5
    dw = lambda j: f"buffer_load_dwordx4 {v(LV)}, {S4(SWS)}, s{P4_SOW if j < 4 else P4_SOW2} offen offset:{(j&3)*1024} sc1 lds"
    return ([f"s_add_u32 m0, s{P4_M0}, {slot*28672}", f"s_add_u32 s{P4_SOW2}, s{P4_SOW}, 4096"] + [dw(j) for j in range(4)] +
            [f"s_add_u32 m0, s{P4_M0}, {slot*28672+4096}", f"s_add_u32 s{P4_SOW}, s{P4_SOW}, {2*221184}"] + [dw(j) for j in range(4, 7)])

def skinny_addr(A):
    for i in range(1, 4):
        A(f"s_add_u32 s36, s{W}, {i}"); A("s_and_b32 s36, s36, 3"); A("s_mul_i32 s36, s36, 15360"); A(f"s_add_u32 s36, s36, {RED+(i-1)*5120}"); A(f"v_add_u32 {v(SK_WR+i-1)}, s36, {v(LV)}")
    A(f"s_mul_i32 s36, s{W}, 15360"); A(f"s_add_u32 s36, s36, {RED}"); A(f"v_add_u32 {v(SK_RD)}, s36, {v(LV)}")
    A(f"v_and_b32 v2, 15, {v(LANE)}"); A(f"v_lshrrev_b32 v3, 4, {v(LANE)}")
    A("v_mul_u32_u24 v2, 1280, v2"); A(f"v_lshl_add_u32 {v(SK_RM)}, v3, 4, v2")
    A(f"s_lshl_b32 s49, s{GX}, 2"); A(f"s_and_b32 s36, s{GI}, 3"); A("s_add_u32 s49, s49, s36"); A("s_lshl_b32 s49, s49, 2"); A(f"s_add_u32 s49, s49, s{W}")
    A("s_mul_i32 s50, s49, 20480"); A(f"s_lshr_b32 s36, s{GI}, 3"); A("s_mul_i32 s37, s36, 320"); A("s_add_u32 s51, s50, s37")
    A("s_mul_i32 s37, s36, 5120"); A("s_add_u32 s50, s50, s37"); A(f"s_add_u32 s50, s50, {H_OFF}")
    A(f"s_bfe_u32 s36, s{GI}, 0x10002"); A("s_lshl_b32 s37, s36, 3")
    A("s_add_u32 s60, s50, s37"); A("s_add_u32 s60, s60, 2048"); A("s_add_u32 s61, s51, s37"); A("s_add_u32 s61, s61, 128")
    A("s_mul_i32 s37, s36, 3072"); A("s_add_u32 s50, s50, s37"); A("s_mul_i32 s37, s36, 192"); A("s_add_u32 s51, s51, s37")
def io_frag(op, regs, fl):
    return [f"buffer_{op}_dwordx4 {v(regs,4)}, {v(LV)}, {S4(SWS)}, s50 offen {fl}", f"buffer_{op}_dwordx4 {v(regs+4,4)}, {v(LV)}, {S4(SWS)}, s50 offen offset:1024 {fl}",
            f"buffer_{op}_dwordx2 {v(regs+8,2)}, {v(LV)}, {S4(SWS)}, s60 offen {fl}"]
def io_rm(op, regs, S):
    return [f"buffer_{op}_dwordx4 {v(regs,4)}, {v(SK_RM)}, {S4(S)}, s51 offen", f"buffer_{op}_dwordx4 {v(regs+4,4)}, {v(SK_RM)}, {S4(S)}, s51 offen offset:64",
            f"buffer_{op}_dwordx2 {v(regs+8,2)}, {v(SK_RM)}, {S4(S)}, s61 offen"]
def unpack(A, dst, src, n):
    for i in range(n): A(f"v_lshlrev_b32 {v(dst+2*i)}, 16, {v(src+i)}"); A(f"v_and_b32 {v(dst+2*i+1)}, 0xffff0000, {v(src+i)}")
def reduce_tail(A, ACC, rd):
    A("s_waitcnt lgkmcnt(0)"); A("s_barrier")
    for sl in range(3):
        for u in range(5): A(f"ds_read_b128 {v(ACC+20+20*sl+4*u,4)}, {v(rd)} offset:{5120*sl+1024*u}")
    for sl in range(3):
        A(f"s_waitcnt lgkmcnt({10-5*sl})")
        for i in range(0, 20, 2): A(f"v_pk_add_f32 {v(ACC+i,2)}, {v(ACC+i,2)}, {v(ACC+20+20*sl+i,2)}")
def quad_sum(A, regs, tmps):
    for swap in ("v_permlane32_swap_b32", "v_permlane16_swap_b32"):
        for x, t in zip(regs, tmps): A(f"v_mov_b32 {v(t)}, {v(x)}")
        A("s_nop 1")
        for x, t in zip(regs, tmps): A(f"{swap} {v(x)}, {v(t)}")
        A("s_nop 1")
        for x, t in zip(regs, tmps): A(f"v_add_f32 {v(x)}, {v(x)}, {v(t)}")

def phase3(A, ST):
    wr, rd = SK_WR, SK_RD
    ACC, RES, CSP, AF = 16, P3RES, P3CS, 256
    A("s_barrier")
    unpack(A, ACC, RES, 10)
    A(f"v_add_f32 {v(CSP)}, {v(CSP)}, {v(CSP+1)}"); A(f"v_add_f32 {v(CSP+2)}, {v(CSP+2)}, {v(CSP+3)}"); A(f"v_add_f32 {v(CSP)}, {v(CSP)}, {v(CSP+2)}")
    A(f"v_add_u32 v12, {CSL}, v146"); A(f"ds_write_b32 v12, {v(CSP)}")
    for i in range(4):
        A(f"s_add_u32 s36, s{W}, {i}"); A("s_and_b32 s36, s36, 3"); A("s_andn2_b32 s37, s49, 3"); A("s_add_u32 s36, s36, s37"); A("s_mul_i32 s36, s36, 20480")
        A(f"s_mul_i32 s37, s{W}, 5120"); A("s_add_u32 s36, s36, s37"); A(f"s_add_u32 s{40+i}, s36, {O_OFF}")
    A("s_lshr_b32 s36, s49, 2"); A("s_lshl_b32 s36, s36, 2"); A(f"s_add_u32 s36, s36, s{W}"); A("s_lshl_b32 s36, s36, 5"); A(f"s_add_u32 s36, s36, {F2_OFF}")
    A(f"v_lshlrev_b32 v13, 2, {v(LANE)}"); A("s_mov_b64 exec, 0xff")
    poll(A, [f"buffer_load_dword v14, v13, {S4(SWS)}, s36 offen sc1"], [14])
    A("s_mov_b64 exec, -1")
    ST.mark()
    Q = VQ()
    order = (1, 2, 3, 0)
    for i in order:
        A.ext(Q.add(("a", i), [f"buffer_load_dwordx4 {r(AF+20*i+4*ks,4)}, {v(LV if ks < 4 else 252)}, {S4(SWS)}, s{40+i} offen offset:{1024*(ks&3)} {CFG.get('al','sc1')}" for ks in range(5)]))
    prev = None
    for n, i in enumerate(order):
        A.ext(Q.wait(("a", i)))
        if n == 0: ST.mark()
        mf = [mf16(ACC+20*i+4*u, w3reg(5*ks+u), AF+20*i+4*ks, "0" if (ks == 0 and i) else None) for u in range(5) for ks in range(5)]
        ops = []
        if prev is not None: ops += [f"ds_write_b128 {v(wr+prev-1)}, {v(ACC+20*prev+4*u,4)} offset:{1024*u}" for u in range(5)]
        A.ext(mf[:4]); weave(A, mf[4:14], ops, [], [2]*25); A.ext(mf[14:])
        prev = i
    ST.mark()
    reduce_tail(A, ACC, rd)
    for i in range(10): A(f"v_cvt_pk_bf16_f32 {v(RES+i)}, {v(ACC+2*i)}, {v(ACC+2*i+1)}")
    stat = Asm(); sm, sq = 112, 114
    stat(f"v_pk_mul_f32 {v(sq,2)}, {v(ACC,2)}, {v(ACC,2)}"); stat(f"v_pk_add_f32 {v(sm,2)}, {v(ACC,2)}, {v(ACC+2,2)}")
    for i in range(2, 20, 2):
        stat(f"v_pk_fma_f32 {v(sq,2)}, {v(ACC+i,2)}, {v(ACC+i,2)}, {v(sq,2)}")
        if i > 2: stat(f"v_pk_add_f32 {v(sm,2)}, {v(sm,2)}, {v(ACC+i,2)}")
    stat(f"v_add_f32 {v(sm)}, {v(sm)}, {v(sm+1)}"); stat(f"v_add_f32 {v(sm+1)}, {v(sq)}, {v(sq+1)}")
    quad_sum(stat, [sm, sm+1], [sq, sq+1])
    A(f"s_lshr_b32 s37, s{GI}, 2"); A("s_lshl_b32 s36, s49, 3"); A("s_add_u32 s36, s36, s37"); A("s_lshl_b32 s36, s36, 7"); A(f"s_add_u32 s36, s36, {STAT_OFF}")
    A("s_lshr_b32 s38, s49, 1"); A("s_lshl_b32 s38, s38, 5"); A("s_lshl_b32 s37, s37, 1"); A("s_add_u32 s38, s38, s37"); A("s_and_b32 s37, s49, 1"); A("s_add_u32 s38, s38, s37")
    A("s_lshl_b32 s38, s38, 2"); A(f"s_add_u32 s38, s38, {F3_OFF}")
    A(f"v_lshlrev_b32 v13, 3, {v(LANE)}"); A("v_mov_b32 v12, 1")
    publish(A, lambda fl: io_frag("store", RES, fl) + [x.strip() for x in stat.L] + ["s_mov_b64 exec, 0xffff", f"buffer_store_dwordx2 {v(sm,2)}, v13, {S4(SWS)}, s36 offen {fl}"],
            ["s_mov_b64 exec, 1", "s_waitcnt vmcnt(0)"], lambda fl: [f"buffer_store_dword v12, off, {S4(SWS)}, s38 {fl}", "s_mov_b64 exec, -1"])
    ST.mark()

W5X = 208
def w5reg(f): return 256 + 4*f if f < 64 else W5X + 4*(f-64)
def w5load(f):
    ks, u = divmod(f, 5)
    L = [f"buffer_load_dwordx4 {r(w5reg(f),4)}, {v(WV if u < 4 else WV+1)}, {S4(SWS)}, s44 offen offset:{1024*(u&3)} sc1"]
    if u == 4: L.append("s_add_u32 s44, s44, 40960" if ks != 12 else "s_add_u32 s44, s44, s43")
    return L

def phase4(A, ST):
    soh, sohh, soh1 = 28, 29, 30
    la, lb, hv, sv, ca, cb = 4, 7, 10, 11, 12, 13
    STT, HR, ACC, WB = 232, 16, 96, 208
    WB = 208; NW = 3
    HD = 4
    WR = lambda n: (80 + 8*(n % 4)) if n % 4 < 2 else (WB + 8*(n % 4 - 2))
    A("s_barrier")
    Q = VQ()
    A(f"s_and_b32 s36, s{GI}, 1"); A(f"s_lshl_b32 s37, s{GX}, 1"); A("s_add_u32 s36, s36, s37"); A("s_lshl_b32 s36, s36, 2"); A(f"s_add_u32 s36, s36, s{W}")
    A(f"s_mul_i32 s{soh}, s36, 40960"); A(f"s_add_u32 s{soh}, s{soh}, {H_OFF}")
    A(f"s_lshl_b32 s38, s36, 7"); A(f"s_add_u32 s38, s38, {F3_OFF}")
    A("s_lshl_b32 s39, s36, 11"); A(f"s_add_u32 s39, s39, {STAT_OFF}")
    A(f"s_lshl_b32 s31, s36, 5"); A(f"s_lshr_b32 s37, s{GI}, 1"); A("s_add_u32 s31, s31, s37"); A("s_lshl_b32 s31, s31, 2"); A(f"s_add_u32 s31, s31, {F4_OFF}")
    A(f"s_and_b32 s40, s{P4_ST}, 1")
    A(f"s_mul_i32 s{sohh}, s36, 110592"); A(f"s_add_u32 s{sohh}, s{sohh}, {HH_OFF}")
    A(f"s_lshr_b32 s37, s{P4_ST}, 1"); A("s_lshl_b32 s37, s37, 10"); A(f"s_add_u32 s{sohh}, s{sohh}, s37")
    A("s_cmp_eq_u32 s40, 0"); A("s_cselect_b32 s37, 3072, 8"); A(f"s_add_u32 s{soh1}, s{sohh}, s37")
    A("s_lshl_b32 s37, s40, 10"); A(f"s_add_u32 s{sohh}, s{sohh}, s37")
    A("s_lshl_b32 s41, s40, 11"); A("s_cmp_eq_u32 s40, 0"); A(f"s_cselect_b32 s42, {6*2048}, 0")
    for i in range(3):
        A(f"v_add_u32 {v(la+i)}, s41, {v(LV)}"); A(f"v_add_u32 {v(lb+i)}, s42, {v(LV)}"); A("s_add_u32 s41, s41, 57344"); A("s_add_u32 s42, s42, 57344")
    A(f"v_add_u32 {v(hv)}, 20480, {v(LV)}")
    A(f"v_lshrrev_b32 v2, 4, {v(LANE)}"); A(f"v_and_b32 v3, 15, {v(LANE)}"); A(f"v_lshlrev_b32 {v(sv)}, 8, v2"); A(f"v_lshl_add_u32 {v(sv)}, v3, 3, {v(sv)}")
    A("s_lshl_b32 s41, s40, 7"); A(f"s_add_u32 s41, s41, {CSL}"); A(f"v_lshl_add_u32 {v(ca)}, v2, 4, s41")
    A("s_cmp_eq_u32 s40, 0"); A(f"s_cselect_b32 s41, {6*128}, 0"); A(f"s_add_u32 s41, s41, {CSL}"); A(f"v_lshl_add_u32 {v(cb)}, v2, 4, s41")
    A(f"s_mul_i32 s36, s{W}, 14"); A(f"s_sub_i32 s37, s{W}, 2"); A("s_max_i32 s37, s37, 0"); A("s_sub_u32 s32, s36, s37")
    A(f"s_lshr_b32 s36, s{GI}, 2"); A("s_mul_i32 s36, s36, 5120"); A("s_mul_i32 s44, s32, 40960"); A("s_add_u32 s44, s44, s36"); A(f"s_add_u32 s44, s44, {WD_OFF}")
    A(f"s_cmp_ge_u32 s{W}, 2"); A(f"s_cselect_b32 s43, {OOB}, 0"); A("s_add_u32 s43, s43, 40960")
    A(f"v_min_u32 v3, 53, {v(LANE)}"); A("v_lshlrev_b32 v3, 7, v3")
    A(f"v_lshlrev_b32 v14, 2, {v(LANE)}"); A("s_mov_b64 exec, 0xffff")
    poll(A, [f"buffer_load_dword v15, v14, {S4(SWS)}, s38 offen sc1"], [15])
    A("s_mov_b64 exec, -1")
    ST.mark()
    def hl(s_): return [f"buffer_load_dwordx4 {v(HR+16*(s_%HD)+8*n+4*ks,4)}, {v(hv if n else LV)}, {S4(SWS)}, s{soh} offen offset:{1024*ks} {CFG.get('al','sc1')}" for n in range(2) for ks in range(2)] + [f"s_add_u32 s{soh}, s{soh}, 2048"]
    for s_ in range(HD): A.ext(Q.add(("h", s_), hl(s_)))
    A.ext(Q.add("st", [f"buffer_load_dwordx2 {v(STT+4*n+2*c,2)}, {v(sv)}, {S4(SWS)}, s39 offen offset:{1024*n+128*c} sc1" for n in range(2) for c in range(2)]))
    def reads(n):
        s_, m = divmod(n, 14); slot = s_ % 5; j, mat = divmod(m, 2)
        base, off = (la, j*2048) if j < 6 else (lb, 0)
        return [f"ds_read_b128 {v(WR(n)+4*ks,4)}, {v(base+slot//2)} offset:{(slot%2)*28672+off+mat*1024+ks*14336}" for ks in range(2)]
    for n in range(NW): A.ext(reads(n))
    w5 = list(range(64)); wq = list(range(3, 10))
    pend = []
    for s_ in range(10):
        if s_ >= 1 and s_+HD-1 < 10: pend.append((("h", s_+HD-1), hl(s_+HD-1)))
        while wq and wq[0] <= s_+4: pend.append((("w", wq[0]), p4_dma(wq.pop(0))))
        if s_ == CFG.get("hht", 1): pend.append(("t", [f"buffer_load_dword v15, v3, {S4(SWS)}, s76 offen sc1"]))
        nw5 = {0: 0, 1: 4, 2: 5, 3: 5, 4: 5, 5: 5, 6: 9, 7: 11, 8: 10, 9: 10}[s_]
        for _ in range(nw5): pend.append(("w5", w5load(w5.pop(0))))
        flat = [(t, x) for t, ops in pend for x in ops]; pend = []
        nreal = sum(1 for t, x in flat if not is_salu(x))
        for m in range(14):
            n = 14*s_ + m
            pre = []
            if m == 0: pre += Q.wait(("h", s_))
            if m == 11 and s_ < 9:
                pre += ["s_waitcnt lgkmcnt(0)"] + (Q.wait(("w", s_+1)) if s_+1 >= 3 else []) + ["s_barrier"]
            else: pre.append(f"s_waitcnt lgkmcnt({2*min(NW-1, 139-n)})")
            A.ext(pre)
            if n == 0: ST.mark()
            take = -(-nreal//(14-m)); ops = []
            while flat and (take > 0 or is_salu(flat[0][1])):
                t, x = flat.pop(0); ops += Q.add(t, [x])
                if not is_salu(x): take -= 1; nreal -= 1
            mf = [mf16(ACC+8*m+4*nn, WR(n)+4*ks, HR+16*(s_ % HD)+8*nn+4*ks, "0" if (s_ == 0 and ks == 0) else None) for nn in range(2) for ks in range(2)]
            weave(A, mf, (reads(n+NW) if n+NW < 140 else []) + ops, [], [2]*4)
        assert not flat
    assert not w5 and not wq
    ST.mark()
    CSR = 16
    for j in range(7):
        for mat in range(2): A(f"ds_read_b128 {v(CSR+8*j+4*mat,4)}, {v(ca if j < 6 else cb)} offset:{(128*j if j < 6 else 0)+64*mat}")
    for f in range(64, 70): A.ext(Q.add("w5", w5load(f)))
    for n in range(2): A(f"v_pk_add_f32 {v(STT+4*n,2)}, {v(STT+4*n,2)}, {v(STT+4*n+2,2)}")
    quad_sum(A, [STT, STT+1, STT+4, STT+5], [STT+2, STT+3, STT+6, STT+7])
    for n in range(2):
        nm, r2 = STT+4*n, STT+4*n+2
        A(f"v_mul_f32 {v(nm)}, {hex(f2u(-1/640))}, {v(nm)}"); A(f"v_mul_f32 {v(r2)}, {hex(f2u(1/640))}, {v(nm+1)}")
        A(f"v_fma_f32 {v(r2)}, -{v(nm)}, {v(nm)}, {v(r2)}"); A(f"v_max_f32 {v(r2)}, 0, {v(r2)}"); A(f"v_add_f32 {v(r2)}, {hex(f2u(1e-5))}, {v(r2)}"); A(f"v_rcp_f32 {v(r2)}, {v(r2)}")
    A(f"v_add_u32 {v(hv)}, 55296, {v(LV)}"); A("v_mov_b32 v14, 1")
    A("s_waitcnt lgkmcnt(0)")
    OB = 72
    def epi(fl):
        L = []
        for a_ in range(4):
            for n in range(2):
                nm, r2 = STT+4*n, STT+4*n+2; o = OB + 4*((2*a_+n) % 4)
                for j in ([2*a_, 2*a_+1] if a_ < 3 else [6]):
                    g, u = ACC+16*j+4*n, ACC+16*j+8+4*n
                    for i in (0, 2):
                        L.append(f"v_pk_fma_f32 {v(g+i,2)}, {v(CSR+8*j+i,2)}, {v(nm,2)}, {v(g+i,2)} op_sel_hi:[1,0,1]")
                        L.append(f"v_pk_fma_f32 {v(u+i,2)}, {v(CSR+8*j+4+i,2)}, {v(nm,2)}, {v(u+i,2)} op_sel_hi:[1,0,1]")
                    for i in (0, 2): L.append(f"v_pk_mul_f32 {v(g+i,2)}, {v(g+i,2)}, {v(r2,2)} op_sel_hi:[1,0]")
                    for i in (0, 2): L.append(f"v_pk_mul_f32 {v(g+i,2)}, {v(g+i,2)}, {v(u+i,2)}")
                    for i in (0, 1): L.append(f"v_cvt_pk_bf16_f32 {v(o+2*(j&1)+i)}, {v(g+2*i)}, {v(g+2*i+1)}")
                if a_ < 3: L.append(f"buffer_store_dwordx4 {v(o,4)}, {v(hv if n else LV)}, {S4(SWS)}, s{sohh} offen offset:{1024*a_} {fl}")
                else: L.append(f"buffer_store_dwordx2 {v(o,2)}, {v(hv if n else LV)}, {S4(SWS)}, s{soh1} offen {fl}")
        return L
    publish(A, epi, ["s_mov_b64 exec, 1", "s_waitcnt vmcnt(0)"], lambda fl: [f"buffer_store_dword v14, off, {S4(SWS)}, s31 {fl}", "s_mov_b64 exec, -1"])
    ST.mark()

def phase5(A, ST):
    wr, rd = SK_WR, SK_RD
    ACC, AF, RES = 16, 96, 232
    srd(A, SA, 62, 2621440)
    for i in range(4):
        A(f"s_add_u32 s36, s{W}, {i}"); A("s_and_b32 s36, s36, 3"); A("s_andn2_b32 s37, s49, 3"); A("s_add_u32 s36, s36, s37"); A("s_mul_i32 s36, s36, 55296")
        A("s_lshl_b32 s37, s32, 10"); A("s_add_u32 s36, s36, s37"); A(f"s_add_u32 s{52+i}, s36, {HH_OFF}")
    A(f"s_cmp_ge_u32 s{W}, 2"); A(f"s_cselect_b32 s43, {OOB}, 0"); A(f"v_add_u32 v12, s43, {v(LV)}")
    A("s_lshr_b32 s36, s49, 2"); A("s_lshl_b32 s36, s36, 8"); A(f"s_add_u32 s36, s36, {F4_OFF}")
    A(f"v_lshrrev_b32 v13, 4, {v(LANE)}"); A(f"v_and_b32 v14, 15, {v(LANE)}"); A("v_lshlrev_b32 v13, 7, v13"); A("v_lshl_add_u32 v13, v14, 2, v13")
    A.ext(io_frag("load", RES, "sc1"))
    A("s_barrier")
    A("s_mov_b32 exec_hi, 0")
    poll(A, [f"buffer_load_dword v14, v13, {S4(SWS)}, s36 offen sc1"], [14])
    A("s_mov_b64 exec, -1")
    ST.mark()
    Q = VQ()
    order = (1, 2, 3, 0)
    def al(n, ks):
        i = order[n]
        L = [f"buffer_load_dwordx4 {v(AF+56*(n&1)+4*ks,4)}, {v(12 if ks == 13 else LV)}, {S4(SWS)}, s{52+i} offen offset:{1024*(ks&3)} {CFG.get('al','sc1')}"]
        if ks & 3 == 3: L.append(f"s_add_u32 s{52+i}, s{52+i}, 4096")
        return L
    for n in range(2):
        for ks in range(14): A.ext(Q.add((n, ks), al(n, ks)))
    unpack(A, ACC, RES, 10)
    for n, i in enumerate(order):
        for kp in range(7):
            A.ext(Q.wait((n, 2*kp+1)))
            if n == 0 and kp == 0: ST.mark()
            mf = [mf16(ACC+20*i+4*u, w5reg(5*ks+u), AF+56*(n&1)+4*ks, "0" if (ks == 0 and i) else None) for u in range(5) for ks in (2*kp, 2*kp+1)]
            ops = []
            pn, pk = (n, kp-1) if kp else (n-1, 6)
            if pn >= 0 and pn+2 < 4:
                for ks in (2*pk, 2*pk+1): ops += Q.add((pn+2, ks), al(pn+2, ks))
            if n and 1 <= kp <= 5: ops.append(f"ds_write_b128 {v(wr+order[n-1]-1)}, {v(ACC+20*order[n-1]+4*(kp-1),4)} offset:{1024*(kp-1)}")
            weave(A, mf, ops, [], [2]*10)
    ST.mark()
    reduce_tail(A, ACC, rd)
    for i in range(10): A(f"v_cvt_pk_bf16_f32 {v(RES+i)}, {v(ACC+2*i)}, {v(ACC+2*i+1)}")
    A.ext(io_rm("store", RES, SA))

def build(**cfg):
    CFG.update(cfg)
    A = Asm(); ST = Stamps(A)
    kstart(A, K); ST.mark()
    if CFG.get("probe"):
        off, base = {"bx": (24, 0), "ws": (72, 40 << 20), "out": (56, 0), "wd": (48, 0)}[CFG["probe"]]
        A(f"s_load_dwordx2 s[4:5], s[0:1], {off}"); A("s_waitcnt lgkmcnt(0)"); A(f"s_mov_b32 s6, {base + (2<<20)}"); A("s_mov_b32 s7, 0x20000")
        A("s_and_b32 s8, s2, 255"); A("s_lshl_b32 s8, s8, 9"); A(f"s_add_u32 s8, s8, {base}"); A("v_lshrrev_b32 v2, 6, v0"); A("v_lshlrev_b32 v2, 7, v2")
        for i in range(16):
            A("buffer_load_dword v3, v2, s[4:7], s8 offen"); A("s_waitcnt vmcnt(0)"); A("s_add_u32 s8, s8, 131072")
    phase1(A, ST)
    cold = phase2(A, ST)
    phase3(A, ST); phase4(A, ST); phase5(A, ST)
    ST.flush()
    A("s_endpgm")
    cold()
    A(f"{K}_end:")
    A("s_endpgm")
    kdesc(A, K, 512, acc=256)
    head = open(f"cdna_kernels/{NAME}.s.ref").read().split("; Override launch")[0]
    head += "; @launch grid=(256,1,1) block=(256,1,1) lds=163840\n"
    return head + '.amdgcn_target "amdgcn-amd-amdhsa--gfx950"\n' + A.text()

if __name__ == "__main__":
    out = sys.argv[1] if len(sys.argv) > 1 else f"cdna_kernels/{NAME}.s"
    cfg = {}
    for x in sys.argv[2:]:
        k, val = x.split("=")
        cfg[k] = int(val) if val.lstrip("-").isdigit() else val
    txt = build(**cfg)
    names = STAMP_NAMES[:8] + [f"att body {b}" for b in ASTAMPS()] + STAMP_NAMES[8:]
    if CFG["stamps"]: txt = txt.replace(".amdgcn_target", "; STAMPS " + "|".join(names) + "\n.amdgcn_target", 1)
    open(out, "w").write(txt)
```

```python
import sys, math, struct
from dsl import *

NAME = "sequential_preLN__softmax_full_mha__glu_gated_bilinear__prompt"
K = NAME + "_kernel"
QK_OFF = 0
V_OFF = 32*163840
O_OFF = 8388608
H_OFF = O_OFF + 2621440
HH_OFF = H_OFF + 2621440
WGU_OFF = 20971520
WD_OFF = WGU_OFF + 4423680
WO_OFF = WD_OFF + 2211840
CS_OFF = WO_OFF + 819200
STAT_OFF = CS_OFF + 65536
F2_OFF = STAT_OFF + 131072
F3_OFF = F2_OFF + 128*128
F4_OFF = F3_OFF + 64*128
FR_OFF = F4_OFF + 64*128
F1_OFF = FR_OFF + 192*128
STAMP_OFF = 29360128
WS_SIZE = 33554432
OOB = 0x40000000
SPIN = 200000
assert F1_OFF + 256*128 < STAMP_OFF and STAT_OFF % 128 == 0
def f2u(x): return struct.unpack("<I", struct.pack("<f", x))[0]
QSCALE = f2u(20**-0.5 * math.log2(math.e))
assert all((u*205) >> 10 == u//5 for u in range(160))
assert all((f*3277) >> 16 == f//20 for f in range(640))
assert all((e*6554) >> 16 == e//10 for e in range(320))
CFG = dict(stamps=False, w5p3=28, b3=8, touch="24:n0,28:n1,42:n2,46:n3,50:n4,54:n5,52:h0,56:h1,58:s")
STAMP_NAMES = ["start", "p1 first dma issued", "p1 stage0 landed", "p1 loop end", "p1 stores issued", "p1 flag set", "F1 seen", "att loop start", "att loop end",
               "O published", "F2 seen", "p3 first act", "p3 mfma end", "H published", "F3 seen", "p4 first h", "p4 loop end", "HH published", "F4 seen", "p5 first act", "p5 mfma end", "end"]

W, SWS, SX, SA, SR = 3, 4, 8, 12, 16
GX, GI, MODE, MYF = 24, 25, 26, 27
LANE, LV = 1, 253
PCV = 247
CODE_TOUCH = f"global_load_dword v248, v{PCV}, s[20:21] sc1"
def S4(b): return f"s[{b}:{b+3}]"

def ASTAMPS(): return [int(x) for x in str(CFG.get("astamp", "")).split(",") if x]
class Stamps:
    def __init__(self, A): self.A, self.n = A, 0
    def mark(self, at=None):
        if not CFG["stamps"]: return
        A = self.A; i = self.n if at is None else at
        if i:
            A("s_waitcnt lgkmcnt(0)"); A(f"v_writelane_b32 v254, s96, {i-1}"); A(f"v_writelane_b32 v255, s98, {i-1}")
        A("s_memrealtime s[96:97]"); A("s_memtime s[98:99]")
        if at is None: self.n += 1
    def flush(self):
        if not CFG["stamps"]: return
        A = self.A
        A("s_waitcnt vmcnt(0)"); self.mark(); self.mark(); n = self.n - 1
        A(f"v_writelane_b32 v254, s{MODE}, 30"); A(f"v_writelane_b32 v254, s{MYF}, 31")
        A(f"s_lshl_b32 s95, s2, 2"); A(f"s_add_u32 s95, s95, s{W}"); A("s_lshl_b32 s95, s95, 8"); A(f"s_add_u32 s95, s95, {STAMP_OFF}")
        A("s_mov_b64 exec, -1"); A(f"v_lshlrev_b32 v0, 2, {v(LANE)}"); A(f"s_mov_b32 exec_lo, {(1 << n) - 1 + (3 << 30)}"); A("s_mov_b32 exec_hi, 0")
        A(f"buffer_store_dword v254, v0, {S4(SWS)}, s95 offen"); A(f"buffer_store_dword v255, v0, {S4(SWS)}, s95 offen offset:128")

def swap01(A, dst, src, t):
    A(f"v_and_b32 {v(t)}, 1, {v(src)}"); A(f"v_lshlrev_b32 {v(t)}, 1, {v(t)}")
    A(f"v_bfe_u32 {v(dst)}, {v(src)}, 1, 1"); A(f"v_or_b32 {v(t)}, {v(t)}, {v(dst)}")
    A(f"v_and_b32 {v(dst)}, 4, {v(src)}"); A(f"v_or_b32 {v(dst)}, {v(dst)}, {v(t)}")

def make_sel(A, sel, t):
    A(f"v_lshrrev_b32 {v(t)}, 2, {v(LANE)}"); A(f"v_lshrrev_b32 {v(sel)}, 4, {v(LANE)}")
    A(f"v_xor_b32 {v(t)}, {v(t)}, {v(sel)}"); A(f"v_and_b32 {v(t)}, 1, {v(t)}")
    A(f"v_add_u32 {v(t)}, -1, {v(t)}")
    A(f"v_and_b32 {v(sel)}, 0x3f803f80, {v(t)}")
    for i in range(1, 4): A(f"v_mov_b32 {v(sel+i)}, {v(sel)}")

def poll(A, loads, regs, sleep=0, cnt=58):
    top, out = A.label("poll"), A.label("pollout")
    A(f"s_mov_b32 s{cnt}, {SPIN}")
    A(f"{top}:")
    A.ext(loads); A("s_waitcnt vmcnt(0)")
    for x in regs[1:]: A(f"v_min_u32 {v(regs[0])}, {v(regs[0])}, {v(x)}")
    A(f"v_cmp_eq_u32 vcc, 0, {v(regs[0])}")
    A(f"s_sub_u32 s{cnt}, s{cnt}, 1"); A(f"s_cbranch_scc1 {out}")
    if sleep:
        A(f"s_cbranch_vccz {out}"); A(f"s_sleep {sleep}"); A(f"s_branch {top}")
    else: A(f"s_cbranch_vccnz {top}")
    A(f"{out}:")

def publish(A, stores, mid, flag, local=True):
    if not local:
        A.ext(stores("sc1")); A.ext(mid); A.ext(flag("sc1")); return
    slow, done = A.label("st_slow"), A.label("st_done")
    A(f"s_cmp_eq_u32 s{MODE}, 0"); A(f"s_cbranch_scc1 {slow}")
    A.ext(stores("")); A.ext(mid); A.ext(flag("")); A(f"s_branch {done}")
    A(f"{slow}:")
    A.ext(stores("sc1")); A.ext(mid); A.ext(flag("sc1"))
    A(f"{done}:")

RSO, RA, RBA, RDS, RDH, RDAH, RCS, RLDS = 64, 65, 66, 67, 68, 69, 70, 71
RLV, RLT, RLC, RLO, RLF = 201, 202, 204, 212, 216
STG = 86016
def relayout_setup(A):
    t0, t1 = 2, 3
    two, none, done = A.label("rl2"), A.label("rl0"), A.label("rl_set")
    A(f"s_mul_i32 s{RLDS}, s{W}, 10240"); A(f"s_add_u32 s{RLDS}, s{RLDS}, {STG}")
    A(f"v_lshrrev_b32 {v(t0)}, 4, {v(LANE)}"); A(f"v_bfe_u32 {v(t1)}, {v(LANE)}, 2, 2"); A(f"v_lshl_add_u32 {v(t0)}, {v(t0)}, 3, {v(t1)}")
    A(f"v_and_b32 {v(t1)}, 3, {v(LANE)}"); A(f"v_lshlrev_b32 {v(t1)}, 4, {v(t1)}")
    A(f"v_lshl_add_u32 {v(t0)}, {v(t0)}, 6, {v(t1)}"); A(f"v_add_u32 {v(RLT)}, s{RLDS}, {v(t0)}")
    A(f"v_and_b32 {v(RLT+1)}, 15, {v(LANE)}"); A(f"v_lshlrev_b32 {v(RLT+1)}, 2, {v(RLT+1)}")
    for i in range(4): A(f"v_mov_b32 {v(RLO+i)}, 0x3f803f80")
    A(f"v_lshrrev_b32 {v(t0)}, 2, {v(LANE)}")
    A(f"s_mov_b32 s{RCS}, {OOB}")
    A("s_cmp_ge_u32 s2, 108"); A(f"s_cbranch_scc1 {two}")
    A(f"s_bitcmp1_b32 s{W}, 0"); A(f"s_cselect_b64 s[{SR}:{SR+1}], s[82:83], s[80:81]"); A(f"s_mov_b32 s{SR+2}, 2211840")
    A(f"s_mul_i32 s37, s2, {(65536+26)//27}"); A("s_lshr_b32 s37, s37, 16")
    A("s_mul_i32 s38, s37, 27"); A("s_sub_u32 s38, s2, s38"); A("s_lshl_b32 s38, s38, 1"); A(f"s_lshr_b32 s39, s{W}, 1"); A("s_add_u32 s38, s38, s39")
    A(f"s_mul_i32 s{RSO}, s37, {160*3456}"); A("s_lshl_b32 s39, s38, 6"); A(f"s_add_u32 s{RSO}, s{RSO}, s39")
    A(f"s_mov_b32 s{RA}, {16*3456}"); A(f"s_mov_b32 s{RBA}, {16*3456}"); A(f"s_mov_b32 s{RDH}, 2048"); A(f"s_mov_b32 s{RDAH}, {221184-2048}")
    A(f"s_and_b32 s39, s{W}, 1"); A("s_lshl_b32 s38, s38, 2"); A("s_add_u32 s38, s38, s39")
    A(f"s_mul_i32 s{RDS}, s37, {5*221184}"); A("s_lshl_b32 s39, s38, 10"); A(f"s_add_u32 s{RDS}, s{RDS}, s39"); A(f"s_add_u32 s{RDS}, s{RDS}, {WGU_OFF}")
    A(f"s_mul_i32 s{RCS}, s37, {108*128}"); A("s_lshl_b32 s39, s38, 6"); A(f"s_add_u32 s{RCS}, s{RCS}, s39"); A(f"s_add_u32 s{RCS}, s{RCS}, {CS_OFF}")
    A(f"v_mul_u32_u24 {v(t0)}, 3456, {v(t0)}")
    A(f"s_branch {done}")
    A(f"{two}:")
    A("s_sub_u32 s37, s2, 108"); A("s_mov_b32 s38, 819200"); A("s_cmp_lt_u32 s37, 54")
    A(f"s_cselect_b64 s[{SR}:{SR+1}], s[84:85], s[88:89]"); A(f"s_cselect_b32 s{SR+2}, 2211840, s38"); A("s_cselect_b32 s38, 0, 54")
    A("s_sub_u32 s38, s37, s38"); A(f"s_mul_i32 s{RSO}, s38, 40960"); A(f"s_mul_i32 s39, s{W}, 320"); A(f"s_add_u32 s{RSO}, s{RSO}, s39")
    A(f"s_mov_b32 s{RA}, {16*1280}"); A(f"s_mov_b32 s{RBA}, {(64-16*1280) & 0xffffffff}"); A(f"s_mov_b32 s{RDH}, 1024"); A(f"s_mov_b32 s{RDAH}, 1024")
    A(f"s_mul_i32 s{RDS}, s37, 40960"); A(f"s_mul_i32 s39, s{W}, 10240"); A(f"s_add_u32 s{RDS}, s{RDS}, s39"); A(f"s_add_u32 s{RDS}, s{RDS}, {WD_OFF}")
    A("s_cmp_lt_u32 s37, 74"); A(f"s_cselect_b32 s{RDS}, s{RDS}, {OOB}"); A(f"s_cselect_b32 s{SR+2}, s{SR+2}, 0")
    A(f"v_mul_u32_u24 {v(t0)}, 1280, {v(t0)}")
    A(f"{done}:")
    A(f"v_add_u32 {v(RLV)}, {v(t0)}, {v(t1)}")
def rl_dma(i):
    return [f"s_add_u32 m0, s{RLDS}, {i*1024}", f"s_add_u32 s{RSO}, s{RSO}, {'0' if i == 0 else 's%d' % (RA if i & 1 else RBA)}",
            f"buffer_load_dwordx4 {v(RLV)}, {S4(SR)}, s{RSO} offen lds"]
def rl_read(a_, hf): return [f"ds_read_b64_tr_b16 {v(RLF+8*(a_&1)+4*hf+2*q,2)}, {v(RLT)} offset:{2048*a_+256*q+8*hf}" for q in range(2)]
def rl_sum(a_, hf): return mf16(RLC+4*hf, RLO, RLF+8*(a_&1)+4*hf, "0" if a_ == 0 else None)
def rl_store(a_, hf): return [f"buffer_store_dwordx4 {v(RLF+8*(a_&1)+4*hf,4)}, {v(LV)}, {S4(SWS)}, s{RDS} offen sc1", f"s_add_u32 s{RDS}, s{RDS}, s{RDAH if hf else RDH}"]
def rl_cs(hf): return [f"buffer_store_dword {v(RLC+4*hf)}, {v(RLT+1)}, {S4(SWS)}, s{RCS} offen offset:{128*hf} sc1"]

WT = [(80, 2211840), (82, 2211840), (84, 2211840), (88, 819200)]
TV = 249
def wtouch(m_, so):
    p_, n_ = WT[m_]
    return [f"s_mov_b64 s[{SR}:{SR+1}], s[{p_}:{p_+1}]", f"s_mov_b32 s{SR+2}, {n_}", f"buffer_load_dword v248, {v(TV)}, {S4(SR)}, s{so} offen"]
def phase1(A, ST):
    rt, ct, wm, wn = 28, 29, 30, 31
    sox, sow, m0b, kst, sox1, sow1 = 32, 33, 34, 35, 58, 59
    SD = 52
    t0, t1, t2, t3 = 2, 3, 4, 5
    dmx, dmw, xa, wa = 8, 12, 16, 24
    sel, rs, cs, sq, tmp = 28, 32, 36, 40, 44
    ZR, ONE = 120, 124
    ACC, XF, WF = 128, 192, 200
    A("s_cmp_ge_u32 s2, 256"); A(f"s_cbranch_scc1 {K}_end")
    A("s_load_dwordx4 s[36:39], s[0:1], 0"); A("s_load_dwordx4 s[52:55], s[0:1], 64"); A("s_load_dwordx8 s[80:87], s[0:1], 32"); A("s_load_dwordx2 s[88:89], s[0:1], 16")
    A(f"v_lshrrev_b32 {v(t0)}, 6, v0"); A(f"v_and_b32 {v(LANE)}, 63, v0")
    A(f"v_readfirstlane_b32 s{W}, {v(t0)}")
    A(f"s_and_b32 s{GX}, s2, 7"); A(f"s_lshr_b32 s{GI}, s2, 3")
    A("s_getpc_b64 s[20:21]"); A(f"{K}_pc:")
    A(f"s_lshl_b32 s58, s{GI}, 2"); A(f"s_add_u32 s58, s58, s{W}"); A("s_lshl_b32 s58, s58, 7")
    A(f"v_and_b32 {v(PCV)}, 7, {v(LANE)}"); A(f"v_lshlrev_b32 {v(PCV)}, 14, {v(PCV)}"); A(f"v_add_u32 {v(PCV)}, s58, {v(PCV)}")
    A(f"v_min_u32 {v(PCV)}, {K}_end-{K}_pc, {v(PCV)}")
    A(CODE_TOUCH)
    A(f"s_lshr_b32 s56, s{GX}, 2"); A(f"s_lshl_b32 s{ct}, s56, 3"); A(f"s_lshr_b32 s57, s{GI}, 2"); A(f"s_add_u32 s{ct}, s{ct}, s57")
    A("s_lshl_b32 s56, s56, 1"); A(f"s_cmp_ge_u32 s{GI}, 28"); A("s_cselect_b32 s56, s56, 0"); A(f"s_cselect_b32 s{ct}, 7, s{ct}")
    A(f"s_and_b32 s57, s{GI}, 3"); A("s_add_u32 s57, s57, s56"); A(f"s_and_b32 s56, s{GX}, 3"); A("s_lshl_b32 s56, s56, 2"); A(f"s_add_u32 s{rt}, s56, s57")
    A(f"s_and_b32 s{wm}, s{W}, 1"); A(f"s_lshr_b32 s{wn}, s{W}, 1")
    A(f"v_lshlrev_b32 {v(LV)}, 4, {v(LANE)}")
    A(f"v_lshrrev_b32 {v(t0)}, 4, {v(LANE)}")
    A(f"v_and_b32 {v(t1)}, 7, {v(LANE)}"); A(f"v_xor_b32 {v(t1)}, {v(t1)}, {v(t0)}"); A(f"v_lshlrev_b32 {v(t1)}, 4, {v(t1)}")
    A(f"v_lshrrev_b32 {v(t2)}, 3, {v(LANE)}"); A(f"v_mul_u32_u24 {v(t2)}, 1280, {v(t2)}")
    A(f"v_add_u32 {v(dmx)}, {v(t1)}, {v(t2)}")
    A(f"v_xor_b32 {v(t1)}, 64, {v(t1)}"); A(f"v_add_u32 {v(t1)}, {v(t1)}, {v(t2)}"); A(f"v_add_u32 {v(dmx+1)}, 9216, {v(t1)}")
    A(f"v_add_u32 {v(dmx+2)}, {2*9216}, {v(dmx)}"); A(f"v_add_u32 {v(dmx+3)}, {2*9216}, {v(dmx+1)}")
    A(f"v_lshlrev_b32 {v(t1)}, 2, {v(t0)}"); A(f"v_and_b32 {v(t2)}, 15, {v(LANE)}"); A(f"v_xor_b32 {v(t1)}, {v(t1)}, {v(t2)}")
    A(f"v_lshlrev_b32 {v(t1)}, 4, {v(t1)}"); A(f"v_mul_u32_u24 {v(t2)}, 3840, {v(t0)}"); A(f"v_add_u32 {v(dmw)}, {v(t1)}, {v(t2)}")
    for b in range(1, 4): A(f"v_add_u32 {v(dmw+b)}, {b*14336}, {v(dmw)}")
    A(f"s_lshl_b32 s56, s{rt}, 2"); A(f"s_add_u32 s56, s56, s{W}"); A(f"s_mul_i32 s{sox}, s56, {32*1280}")
    A(f"s_mul_i32 s{sow}, s{W}, {16*3840}"); A(f"s_lshl_b32 s56, s{ct}, 8"); A(f"s_add_u32 s{sow}, s{sow}, s56")
    A(f"s_lshl_b32 s{m0b}, s{W}, 12")
    A(f"s_and_b32 s56, s{rt}, 3"); A("s_mul_i32 s56, s56, 5"); A("s_add_u32 s56, s56, 1"); A("s_lshr_b32 s56, s56, 1"); A(f"s_and_b32 s57, s{ct}, 7"); A("s_add_u32 s56, s56, s57")
    if CFG.get("norot"): A("s_mov_b32 s56, 0")
    A("s_cmp_ge_u32 s56, 10"); A("s_cselect_b32 s57, 10, 0"); A(f"s_sub_u32 s{kst}, s56, s57")
    A(f"s_sub_u32 s{kst}, s{kst}, 1")
    A("s_waitcnt lgkmcnt(0)")
    srd(A, SX, 36, 2621440); srd(A, SA, 38, 2457600); srd(A, SWS, 54, WS_SIZE)
    def dma_groups(stage):
        slot = stage % 5
        dx = lambda b: f"buffer_load_dwordx4 {v(dmx+b)}, {S4(SX)}, s{sox1} offen offset:{b*1024} lds"
        dw = lambda b: f"buffer_load_dwordx4 {v(dmw+b)}, {S4(SA)}, s{sow1} offen offset:{b*1024} lds"
        return [[f"s_add_u32 s{kst}, s{kst}, 1", f"s_cmp_eq_u32 s{kst}, 10", f"s_cselect_b32 s{kst}, 0, s{kst}", f"s_lshl_b32 s{sox1}, s{kst}, 7",
                 f"s_add_u32 m0, s{m0b}, {slot*32768}", f"s_add_u32 s{sox1}, s{sox1}, s{sox}", dx(0), dx(1)],
                [dx(2), dx(3)],
                [f"s_mul_i32 s{sow1}, s{kst}, {64*3840}", f"s_add_u32 m0, s{m0b}, {slot*32768+16384}", f"s_add_u32 s{sow1}, s{sow1}, s{sow}", dw(0), dw(1)],
                [dw(2), dw(3)]]
    PRE = CFG.get("p1pre", 2)
    lab = A.label("nodma")
    A("s_cmp_ge_u32 s2, 240"); A(f"s_cbranch_scc1 {lab}")
    for stg in range(PRE):
        for g in dma_groups(stg): A.ext(g)
    A(f"{lab}:")
    A(f"s_mov_b32 s{SD+2}, 256"); A(f"s_mov_b32 s{SD+3}, 0x20000")
    A(f"s_mov_b32 s{SR+3}, 0x20000"); A(f"v_lshlrev_b32 {v(TV)}, 7, {v(LANE)}")
    A(f"s_getreg_b32 s{MYF}, hwreg(HW_REG_XCC_ID, 0, 4)"); A(f"s_add_u32 s{MYF}, s{MYF}, 1")
    ST.mark()
    A("s_cmp_ge_u32 s2, 240"); A(f"s_cbranch_scc1 {K}_idle")
    A(f"v_and_b32 {v(t0)}, 31, {v(LANE)}"); A(f"v_lshrrev_b32 {v(t1)}, 5, {v(LANE)}")
    A(f"v_bfe_u32 {v(t2)}, {v(LANE)}, 1, 3"); A(f"v_xor_b32 {v(t2)}, {v(t2)}, {v(t1)}")
    A(f"s_lshl_b32 s56, s{wm}, 1"); A(f"s_add_u32 s56, s56, s{wn}"); A("s_lshl_b32 s56, s56, 12")
    A(f"v_lshlrev_b32 {v(t0)}, 7, {v(t0)}"); A(f"v_add_u32 {v(t0)}, s56, {v(t0)}")
    for ks in range(4):
        A(f"v_xor_b32 {v(t3)}, {2*ks}, {v(t2)}"); A(f"v_lshl_add_u32 {v(xa+ks)}, {v(t3)}, 4, {v(t0)}")
        A(f"v_xor_b32 {v(xa+4+ks)}, 4096, {v(xa+ks)}")
    A(f"v_bfe_u32 {v(t0)}, {v(LANE)}, 2, 2")
    A(f"v_lshl_add_u32 {v(t1)}, {v(t1)}, 3, {v(t0)}"); A(f"v_lshlrev_b32 {v(t1)}, 8, {v(t1)}")
    A(f"s_lshl_b32 s56, s{wn}, 1"); A(f"s_add_u32 s56, s56, s{wm}")
    A(f"v_xor_b32 {v(t0)}, s56, {v(t0)}"); A(f"v_lshl_add_u32 {v(t1)}, {v(t0)}, 6, {v(t1)}")
    A(f"v_bfe_u32 {v(t0)}, {v(LANE)}, 4, 1"); A(f"v_and_b32 {v(t2)}, 3, {v(LANE)}"); A(f"v_lshl_add_u32 {v(t0)}, {v(t0)}, 2, {v(t2)}")
    swap01(A, t2, t0, t3)
    A(f"v_lshl_add_u32 {v(t1)}, {v(t2)}, 3, {v(t1)}"); A(f"v_add_u32 {v(wa)}, 16384, {v(t1)}"); A(f"v_xor_b32 {v(wa+1)}, 64, {v(wa)}")
    make_sel(A, sel, t0)
    for i in range(4): A(f"v_mov_b32 {v(sq+i)}, 0")
    A(f"v_and_b32 {v(t2)}, 31, {v(LANE)}")
    A(f"s_lshl_b32 s40, s{wm}, 1"); A(f"s_add_u32 s40, s40, s{wn}"); A("s_lshl_b32 s40, s40, 7")
    A(f"s_lshl_b32 s41, s{wn}, 1"); A(f"s_add_u32 s41, s41, s{wm}"); A("s_lshl_b32 s41, s41, 7")
    xs, ws_, hh, sa, va = 6, 7, t3, 48, 52
    A(f"v_lshl_add_u32 {v(xs)}, {v(t2)}, 2, s40"); A(f"v_lshl_add_u32 {v(ws_)}, {v(t2)}, 2, s41")
    A(f"v_lshrrev_b32 {v(hh)}, 5, {v(LANE)}")
    A(f"s_lshl_b32 s36, s{rt}, 2"); A("s_lshr_b32 s37, s40, 7"); A("s_add_u32 s36, s36, s37"); A("s_xor_b32 s37, s36, 1")
    A(f"s_cmp_lt_u32 s{ct}, 5"); A(f"s_cselect_b32 s42, {hex(QSCALE)}, 1.0")
    done_ = CFG.get("idle_t", 2)*524288; per = -(-(2211840-done_)//(320*128))*128
    assert per <= 8192 and done_ >= 819200
    A(f"s_lshl_b32 s56, s2, 2"); A(f"s_add_u32 s56, s56, s{W}"); A(f"s_mul_i32 s57, s56, {(1 << 24)//320+1}"); A("s_lshr_b32 s57, s57, 24")
    A("s_mul_i32 s44, s57, 320"); A("s_sub_u32 s44, s56, s44"); A(f"s_mul_i32 s44, s44, {per}"); A(f"s_add_u32 s44, s44, {done_}")
    A("s_cmp_eq_u32 s57, 0"); A(f"s_cselect_b64 s[{SR}:{SR+1}], s[80:81], s[82:83]"); A("s_cmp_eq_u32 s57, 2"); A(f"s_cselect_b64 s[{SR}:{SR+1}], s[84:85], s[{SR}:{SR+1}]")
    A(f"s_mov_b32 s{SR+2}, 2211840"); A(f"v_min_u32 v55, {per-128}, {v(TV)}")
    A(f"s_cmp_ge_u32 s{ct}, 10"); A(f"s_cbranch_scc1 {K}_v")

    def base_of(stage): return {0: 0, 1: 0, 2: 65536, 3: 65536, 4: 131072}[stage % 5]
    def reads(g):
        stage, ks = divmod(g, 4); buf = g & 1
        so = (stage % 5)*32768 - base_of(stage)
        L = [f"ds_read_b128 {v(XF+16*buf,4)}, {v(xa+ks)} offset:{so}"]
        L += [f"ds_read_b64_tr_b16 {v(WF+16*buf+2*q,2)}, {v(wa)} offset:{so+(16*ks+4*q)*256}" for q in range(2)]
        L += [f"ds_read_b128 {v(XF+16*buf+4,4)}, {v(xa+4+ks)} offset:{so}"]
        L += [f"ds_read_b64_tr_b16 {v(WF+16*buf+4+2*q,2)}, {v(wa+1)} offset:{so+(16*ks+4*q)*256}" for q in range(2)]
        return L
    def mainloop(isv):
        if not isv:
            A("s_mul_i32 s36, s36, 2560"); A("s_mul_i32 s37, s37, 2560")
            A(f"s_lshl_b32 s38, s{ct}, 4"); A("s_lshr_b32 s39, s41, 5"); A("s_add_u32 s38, s38, s39")
            A("s_mov_b32 s39, 163840")
            for jw in range(2):
                for aa in range(2):
                    d = sa + 2*jw + aa
                    A(f"s_xor_b32 s43, s38, {4*jw}"); A(f"s_add_u32 s43, s43, {2*aa}")
                    A(f"v_add_u32 {v(tmp)}, s43, {v(hh)}"); A(f"v_mul_u32_u24 {v(tmp+1)}, 205, {v(tmp)}"); A(f"v_lshrrev_b32 {v(tmp+1)}, 10, {v(tmp+1)}")
                    A(f"v_mul_u32_u24 {v(tmp+2)}, 5, {v(tmp+1)}"); A(f"v_sub_u32 {v(tmp)}, {v(tmp)}, {v(tmp+2)}")
                    A(f"v_mul_u32_u24 {v(tmp+1)}, s39, {v(tmp+1)}"); A(f"v_lshl_add_u32 {v(tmp)}, {v(tmp)}, 9, {v(tmp+1)}")
                    A(f"v_lshl_add_u32 {v(d)}, {v(t2)}, 4, {v(tmp)}")
        else:
            A("s_mul_i32 s36, s36, 1280"); A("s_mul_i32 s37, s37, 1280"); A(f"s_add_u32 s36, s36, {V_OFF}"); A(f"s_add_u32 s37, s37, {V_OFF}")
            A(f"s_sub_u32 s38, s{ct}, 10"); A("s_lshl_b32 s38, s38, 7"); A("s_lshr_b32 s39, s41, 2"); A("s_add_u32 s38, s38, s39")
            A(f"v_lshrrev_b32 {v(tmp)}, 2, {v(t2)}"); swap01(A, tmp+1, tmp, tmp+2)
            A(f"v_and_b32 {v(tmp)}, 3, {v(t2)}"); A(f"v_lshl_add_u32 {v(tmp+3)}, {v(tmp+1)}, 2, {v(tmp)}")
            A("s_mov_b32 s39, 81920")
            for jw in range(2):
                A(f"s_xor_b32 s43, s38, {32*jw}")
                A(f"v_add_u32 {v(tmp)}, s43, {v(tmp+3)}"); A(f"v_mul_u32_u24 {v(tmp+1)}, 3277, {v(tmp)}"); A(f"v_lshrrev_b32 {v(tmp+1)}, 16, {v(tmp+1)}")
                A(f"v_mul_u32_u24 {v(tmp+2)}, 20, {v(tmp+1)}"); A(f"v_sub_u32 {v(tmp)}, {v(tmp)}, {v(tmp+2)}")
                A(f"v_mul_u32_u24 {v(tmp+1)}, s39, {v(tmp+1)}"); A(f"v_lshl_add_u32 {v(tmp)}, {v(tmp)}, 4, {v(tmp+1)}")
                A(f"v_mul_u32_u24 {v(tmp+1)}, 320, {v(hh)}"); A(f"v_add_u32 {v(sa+jw)}, {v(tmp)}, {v(tmp+1)}")
        A(f"v_lshlrev_b32 {v(va)}, 4, {v(hh)}"); A(f"v_add_u32 {v(va)}, s{40 if isv else 41}, {v(va)}"); A(f"v_xor_b32 {v(va+1)}, 128, {v(va)}")
        A(f"v_xor_b32 {v(va+2)}, 128, {v(ws_ if isv else xs)}")
        vq = [s_ for s_ in range(PRE) for _ in range(8)]
        def after(tag): return len(vq) - 1 - max(i for i, x in enumerate(vq) if x == tag)
        pend = [(s_, g) for s_ in range(PRE, 10) for g in dma_groups(s_)]
        A(f"s_waitcnt vmcnt({after(0)})"); A("s_barrier"); ST.mark(2)
        A.ext(reads(0))
        for g in range(40):
            stage, ks = divmod(g, 4); buf = g & 1
            X = lambda j: XF+16*buf+4*j
            Wf = lambda j: WF+16*buf+4*j
            A("s_waitcnt lgkmcnt(0)")
            if ks == 3 and stage < 9:
                assert vq.count(stage+1) == 8
                n = after(stage+1); A(f"s_waitcnt vmcnt({n})"); A("s_barrier")
            c0 = "0" if g == 0 else None
            mm = lambda jw, jx: mf32(ACC+32*jw+16*jx, X(jx), Wf(jw), c0) if isv else mf32(ACC+32*jw+16*jx, Wf(jw), X(jx), c0)
            mf = [mm(0,0), mm(0,1), mf16(rs, sel, X(0), c0), mm(1,0), mm(1,1), mf16(cs, sel, Wf(0), c0)]
            ops = reads(g+1) if g < 39 else []
            for _ in range(2):
                if pend and g >= 4*(pend[0][0]-5)+3 and (_ == 0 or pend[0][0] < 5 or g > 4*(pend[0][0]-5)+6):
                    s_, grp = pend.pop(0); ops = ops + grp; vq += [s_, s_]
            if not pend and "t" not in vq and CFG.get("busy_t", 1):
                ops = ops + [f"buffer_load_dword v248, v55, {S4(SR)}, s44 offen"]; vq.append("t")
            valu = []
            for i in range(4):
                valu += [f"v_and_b32 {v(tmp)}, 0xffff0000, {v(X(0)+i)}", f"v_lshlrev_b32 {v(tmp+1)}, 16, {v(X(0)+i)}",
                         f"v_fmac_f32 {v(sq)}, {v(tmp)}, {v(tmp)}", f"v_fmac_f32 {v(sq+1)}, {v(tmp+1)}, {v(tmp+1)}"]
            weave(A, mf, ops, valu, [6, 6, 2, 6, 6, 2])
            if ks == 2 and stage < 9 and base_of(stage+1) != base_of(stage):
                d = (base_of(stage+1) - base_of(stage)) & 0xffffffff
                A.ext([f"v_add_u32 {v(x)}, {d}, {v(x)}" for x in list(range(xa, xa+8)) + [wa, wa+1]])
        assert not pend
        ST.mark(3)
        A(f"v_add_f32 {v(sq)}, {v(sq)}, {v(sq+1)}"); A(f"v_mul_f32 {v(t0)}, {hex(f2u(-1/640))}, {v(rs)}"); A(f"v_mov_b32 {v(sq+1)}, {v(sq)}"); A("s_nop 1")
        A(f"v_permlane32_swap_b32 {v(sq)}, {v(sq+1)}"); A("s_nop 1")
        A(f"v_add_f32 {v(sq)}, {v(sq)}, {v(sq+1)}")
        A(f"v_mul_f32 {v(sq)}, {hex(f2u(1/640))}, {v(sq)}")
        A(f"v_fma_f32 {v(sq)}, -{v(t0)}, {v(t0)}, {v(sq)}"); A(f"v_max_f32 {v(sq)}, 0, {v(sq)}")
        A(f"v_add_f32 {v(sq)}, {hex(f2u(1e-5))}, {v(sq)}"); A(f"v_rsq_f32 {v(t1)}, {v(sq)}")
        A(f"ds_write_b32 {v(xs)}, {v(t0)} offset:512"); A(f"ds_write_b32 {v(ws_)}, {v(cs)} offset:1024")
        A(f"v_mul_f32 {v(t1)}, s42, {v(t1)}")
        A(f"ds_write_b32 {v(xs)}, {v(t1)}")
        PR, SC = 56, 120
        A("s_waitcnt lgkmcnt(0)"); A("s_barrier")
        if not isv:
            A(f"ds_read_b32 {v(SC+2)}, {v(va+2)}"); A(f"ds_read_b32 {v(SC+6)}, {v(va+2)} offset:512")
            for j in range(2):
                for rg in range(4): A(f"ds_read_b128 {v(PR+16*j+4*rg,4)}, {v(va+j)} offset:{1024+32*rg}")
            A(f"v_mov_b32 {v(SC)}, {v(t1)}"); A(f"v_mov_b32 {v(SC+4)}, {v(t0)}")
        else:
            A(f"ds_read_b32 {v(SC+2)}, {v(va+2)} offset:1024")
            for j in range(2):
                for rg in range(4): A(f"ds_read_b128 {v(PR+32*j+16+4*rg,4)}, {v(va+j)} offset:{512+32*rg}")
                for rg in range(4): A(f"ds_read_b128 {v(PR+32*j+4*rg,4)}, {v(va+j)} offset:{32*rg}")
                if j == 0: A("s_waitcnt lgkmcnt(6)")
            A(f"v_mov_b32 {v(SC)}, {v(cs)}")
        A("s_waitcnt lgkmcnt(0)")
        for jw in range(2):
            for jx in range(2):
                ac = ACC+32*jw+16*jx
                for i in range(0, 16, 2):
                    if not isv: A(f"v_pk_fma_f32 {v(ac+i,2)}, {v(PR+16*jw+i,2)}, {v(SC+4+2*jx,2)}, {v(ac+i,2)} op_sel_hi:[1,0,1]")
                    else: A(f"v_pk_fma_f32 {v(ac+i,2)}, {v(PR+32*jx+16+i,2)}, {v(SC+2*jw,2)}, {v(ac+i,2)} op_sel_hi:[1,0,1]")
                for i in range(0, 16, 2):
                    if not isv: A(f"v_pk_mul_f32 {v(ac+i,2)}, {v(ac+i,2)}, {v(SC+2*jx,2)} op_sel_hi:[1,0]")
                    else: A(f"v_pk_mul_f32 {v(ac+i,2)}, {v(ac+i,2)}, {v(PR+32*jx+i,2)}")
                o = XF + 8*(2*jw+jx)
                for i in range(8): A(f"v_cvt_pk_bf16_f32 {v(o+i)}, {v(ac+2*i)}, {v(ac+2*i+1)}")
                for aa in range(2):
                    if not isv: A(f"buffer_store_dwordx4 {v(o+4*aa,4)}, {v(sa+2*jw+aa)}, {S4(SWS)}, s{36+jx} offen sc1")
                    else: A(f"buffer_store_dwordx4 {v(o+4*aa,4)}, {v(sa+jw)}, {S4(SWS)}, s{36+jx} offen offset:{640*aa} sc1")
    mainloop(False)
    A(f"s_branch {K}_p1done")
    A(f"{K}_idle:")
    ST.mark(2); ST.mark(3)
    for i in range(4): A(f"v_mov_b32 {v(8+i)}, 0"); A(f"v_mov_b32 {v(4+i)}, 0x3f803f80")
    A(f"s_sub_u32 s{rt}, s2, 240"); A(f"v_mov_b32 v3, {OOB}")
    A(f"s_mul_i32 s56, s{rt}, 5504"); A(f"s_add_u32 s56, s56, {F2_OFF}"); A("v_lshlrev_b32 v2, 4, v0")
    A(f"buffer_store_dwordx4 v[8:11], v2, {S4(SWS)}, s56 offen sc1"); A(f"buffer_store_dwordx4 v[8:11], v2, {S4(SWS)}, s56 offen offset:1408 sc1")
    A(f"s_lshl_b32 s57, s{rt}, 3"); A("v_add_u32 v2, s57, v0")
    A("v_mul_u32_u24 v2, 640, v2"); A("v_cmp_gt_u32 vcc, 8, v0"); A("s_nop 1"); A("v_cndmask_b32 v2, v3, v2, vcc")
    A(f"s_mov_b32 s56, {V_OFF + 32*81920}")
    A(f"buffer_store_dwordx4 v[4:7], v2, {S4(SWS)}, s56 offen sc1")
    A(f"s_lshl_b32 s56, s2, 7"); A(f"s_add_u32 s56, s56, {F1_OFF}"); A(f"v_mov_b32 v12, s{MYF}"); A(f"buffer_store_dword v12, off, {S4(SWS)}, s56 sc1")
    A(f"s_lshl_b32 s57, s{rt}, 2"); A(f"s_cmp_eq_u32 s{W}, 0"); A(f"s_cselect_b32 s57, s57, {OOB}"); A("v_mov_b32 v2, 1")
    A("s_waitcnt vmcnt(0)"); A("s_barrier")
    A("s_mov_b64 exec, 1"); A(f"buffer_store_dword v2, off, {S4(SD)}, s57 sc1"); A("s_mov_b64 exec, -1")
    A(f"s_lshl_b32 s56, s{rt}, 2"); A(f"s_add_u32 s56, s56, s{W}"); A("s_lshl_b32 s56, s56, 13")
    for it in range(CFG.get("idle_t", 2)):
        for m_ in range(4):
            if it*524288 < WT[m_][1]: A.ext(wtouch(m_, 56))
        A("s_add_u32 s56, s56, 524288")
    A(f"s_branch {K}_p1done")
    A(f"{K}_v:")
    mainloop(True)
    A(f"{K}_p1done:")
    if CFG["stamps"]: ST.n = 4
    ST.mark()
    A(f"v_lshlrev_b32 v2, 2, {v(LANE)}"); A(f"v_mov_b32 v3, s{MYF}")
    A(f"s_lshl_b32 s56, s2, 7"); A(f"s_add_u32 s56, s56, {F1_OFF}"); A(f"s_cmp_eq_u32 s{W}, 0"); A(f"s_cselect_b32 s56, s56, {OOB}")
    A("s_mov_b64 exec, 0xffff")
    poll(A, [f"buffer_load_dword v4, v2, {S4(SD)}, 0 offen sc1"], [4], sleep=8)
    A("s_barrier")
    A("s_mov_b64 exec, 1"); A(f"buffer_store_dword v3, off, {S4(SWS)}, s56 sc1"); A("s_mov_b64 exec, -1")
    ST.mark()
    relayout_setup(A)

def w3reg(f): return 256 + 192 + 4*f if f < 16 else 148 + 4*(f-16)
WV = 250
P3RES, P3CS = 184, 194
SK_WR, SK_RD, SK_RM = 242, 245, 246
def p3_wload(f):
    ks, u = divmod(f, 5)
    L = [f"buffer_load_dwordx4 {r(w3reg(f),4)}, {v(WV if u < 4 else WV+1)}, {S4(SWS)}, s44 offen offset:{1024*(u&3)} sc1"]
    if u == 4: L.append("s_add_u32 s44, s44, 40960")
    return L
CMB = 86016

def TOUCHES(key="touch", dflt=""): return [(int(x.split(":")[0]), x.split(":")[1]) for x in str(CFG.get(key, dflt)).split(",") if x]
def gtouch(what):
    c, k_ = what[0], int(what[1:] or 0)
    reg, vr, base = {"n": (76, 145, HH_OFF + 1152*k_), "N": (76, TV, HH_OFF + 3456*k_), "h": (90, 147, H_OFF + 1280*k_), "o": (90, 147, O_OFF + 1280*k_),
                     "s": (93, None, STAT_OFF), "g": (79, TV, WGU_OFF + 442368*k_), "d": (79, TV, WD_OFF + 442368*k_)}[c]
    return [f"s_add_u32 s91, s{reg}, {base}", f"buffer_load_dword v248, {v(vr) if vr else 'off'}, {S4(SWS)}, s91 {'offen' if vr else ''} sc1"]
def phase2(A, ST):
    odd, sok, sov, sox, redo, sob, sfr, stch = 28, 72, 73, 74, 32, 33, 34, 35
    S0, S1, P, E, O0 = 16, 48, 80, 96, 104
    kv, kxv, vv, ov, oxv, cw, cr, tv = 136, 137, 138, 139, 140, 141, 144, 145
    OA, QM, QX, KR, VR, XR = 256, 256+96, 256+128, 256+136, 256+152, 256+184
    Oreg = lambda lp: O0 if lp == 0 else OA + 32*(lp-1)
    t0, t1, t2, t3, t4 = 2, 3, 4, 5, 6
    LD = CFG.get("ld", "sc1")
    head, qb = 30, 31
    if CFG.get("hl", 1):
        A(f"s_lshl_b32 s{head}, s{GX}, 2"); A(f"s_and_b32 s36, s{GI}, 3"); A(f"s_add_u32 s{head}, s{head}, s36"); A(f"s_lshr_b32 s{qb}, s{GI}, 2")
    else:
        A(f"s_mov_b32 s{head}, s{GI}"); A(f"s_mov_b32 s{qb}, s{GX}")
    A(f"s_and_b32 s{odd}, s{head}, 1")
    A(f"s_lshr_b32 s36, s{head}, 1"); A("s_mul_i32 s37, s36, 163840")
    A(f"s_add_u32 s38, s37, {16*163840}"); A(f"s_add_u32 s{SA}, s{SWS}, s38"); A(f"s_addc_u32 s{SA+1}, s{SWS+1}, 0"); A(f"s_mov_b32 s{SA+2}, 163840")
    A(f"s_lshl_b32 s38, s{qb}, 2"); A(f"s_add_u32 s39, s38, s{W}")
    A(f"s_mul_i32 s{sob}, s39, 81920"); A("s_mul_i32 s36, s36, 1280"); A(f"s_add_u32 s{sob}, s{sob}, s36"); A(f"s_add_u32 s{sob}, s{sob}, {O_OFF}")
    for i in range(4):
        A(f"s_add_u32 s36, s{W}, {i}"); A("s_and_b32 s36, s36, 3")
        if i: A("s_mul_i32 s39, s36, 18432"); A(f"s_add_u32 s39, s39, {CMB+(i-1)*6144}"); A(f"v_add_u32 {v(cw+i-1)}, s39, {v(LV)}")
        else: A("s_mul_i32 s39, s36, 18432"); A(f"s_add_u32 s39, s39, {CMB}"); A(f"v_add_u32 {v(cr)}, s39, {v(LV)}")
        A("s_add_u32 s36, s36, s38"); A("s_mul_i32 s36, s36, 5120"); A(f"s_add_u32 s{40+i}, s36, s37")
    A(f"s_mul_i32 s36, s{odd}, 1536"); A(f"v_add_u32 {v(kv)}, s36, {v(LV)}")
    A(f"v_and_b32 {v(t0)}, 31, {v(LANE)}"); A(f"v_lshrrev_b32 {v(t1)}, 5, {v(LANE)}")
    A(f"s_lshl_b32 s36, s{odd}, 3"); A("s_add_u32 s37, s36, 1024")
    A(f"v_lshl_add_u32 {v(t4)}, {v(t0)}, 4, s37")
    A(f"v_mul_u32_u24 {v(t2)}, 2560, {v(t1)}"); A(f"v_add_u32 {v(kxv)}, {v(t4)}, {v(t2)}")
    A(f"v_bfe_u32 {v(t2)}, {v(LANE)}, 4, 1"); A(f"v_mul_u32_u24 {v(t2)}, 20480, {v(t2)}"); A(f"v_and_b32 {v(t3)}, 15, {v(LANE)}"); A(f"v_lshl_add_u32 {v(t2)}, {v(t3)}, 4, {v(t2)}")
    A("s_add_u32 s37, s36, 512"); A(f"v_add_u32 {v(oxv)}, s37, {v(t2)}")
    A(f"s_mul_i32 s37, s{odd}, 768"); A(f"v_lshl_add_u32 {v(t2)}, {v(t1)}, 8, {v(t2)}"); A(f"v_add_u32 {v(ov)}, s37, {v(t2)}")
    A(f"v_lshrrev_b32 {v(t2)}, 2, {v(t0)}"); swap01(A, t3, t2, 7)
    A(f"v_and_b32 {v(t2)}, 3, {v(t0)}"); A(f"v_lshl_add_u32 {v(t2)}, {v(t3)}, 2, {v(t2)}")
    A(f"s_lshl_b32 s36, s{odd}, 2"); A(f"v_add_u32 {v(t2)}, s36, {v(t2)}")
    A(f"v_add_u32 {v(t3)}, -20, {v(t2)}"); A(f"v_min_u32 {v(t2)}, {v(t2)}, {v(t3)}")
    A(f"v_mul_u32_u24 {v(t3)}, 320, {v(t1)}"); A(f"v_lshl_add_u32 {v(t2)}, {v(t2)}, 4, {v(t3)}")
    A(f"v_mov_b32 {v(t3)}, {OOB}"); A(f"v_cmp_gt_u32 vcc, 20, {v(t0)}"); A("s_nop 1"); A(f"v_cndmask_b32 {v(t2)}, {v(t3)}, {v(t2)}, vcc")
    A(f"s_sub_u32 s36, 32, s{head}"); A("s_mul_i32 s36, s36, 81920"); A(f"v_mov_b32 {v(t3)}, s36")
    A(f"v_cmp_eq_u32 vcc, 20, {v(t0)}"); A("s_nop 1"); A(f"v_cndmask_b32 {v(vv)}, {v(t2)}, {v(t3)}, vcc")
    A(f"s_mul_i32 s{sok}, s{W}, {16*2560}"); A(f"s_mov_b32 s{sox}, s{sok}")
    A(f"s_mul_i32 s{sov}, s{head}, 81920"); A(f"s_mul_i32 s36, s{W}, {16*1280}"); A(f"s_add_u32 s{sov}, s{sov}, s36"); A(f"s_add_u32 s{sov}, s{sov}, {V_OFF}")
    A(f"s_mov_b32 s{redo}, 0")
    A(f"v_add_u32 v252, 4096, {v(LV)}")
    A(f"s_bfe_u32 s36, s{GI}, 0x10002"); A("s_lshl_b32 s37, s36, 10"); A(f"v_add_u32 {v(WV)}, s37, {v(LV)}")
    A("s_xor_b32 s36, s36, 1"); A("s_lshl_b32 s37, s36, 12"); A(f"v_add_u32 {v(WV+1)}, s37, {v(LV)}")
    A(f"s_lshr_b32 s36, s{GI}, 2"); A("s_mul_i32 s36, s36, 5120"); A(f"s_mul_i32 s44, s{W}, {5*40960}"); A("s_add_u32 s44, s44, s36"); A(f"s_add_u32 s44, s44, {WO_OFF}")
    skinny_addr(A); p4_setup(A)
    A(f"s_lshl_b32 s75, s{P4_ST}, 7"); A(f"s_add_u32 s75, s75, {CS_OFF}"); A("v_lshlrev_b32 v146, 2, v0")
    A(f"s_lshl_b32 s{sfr}, s2, 5"); A(f"s_add_u32 s{sfr}, s{sfr}, s{W}"); A(f"s_lshl_b32 s{sfr}, s{sfr}, 2"); A(f"s_add_u32 s{sfr}, s{sfr}, {FR_OFF}")
    A("s_cmp_lt_u32 s2, 192"); A(f"s_cselect_b32 s{sfr}, s{sfr}, {OOB}"); A(f"v_min_u32 v11, {47*128}, {v(TV)}")
    A(f"s_lshl_b32 s36, s{GX}, 5"); A(f"s_add_u32 s36, s36, s{GI}"); A("s_lshl_b32 s36, s36, 2"); A(f"s_add_u32 s36, s36, s{W}")
    A("s_mul_i32 s76, s36, 6912"); A("s_mul_i32 s90, s36, 2560"); A("s_lshl_b32 s93, s36, 7")
    A("s_and_b32 s79, s36, 127"); A("s_mul_i32 s79, s79, 3456")
    A(f"v_min_u32 {v(tv)}, {8*128}, {v(TV)}"); A(f"v_min_u32 v147, {9*128}, {v(TV)}"); A(f"v_min_u32 {v(TV)}, {26*128}, {v(TV)}")
    A(f"v_and_b32 v8, 31, {v(LANE)}"); A("v_lshlrev_b32 v8, 10, v8"); A(f"s_lshl_b32 s77, s{GX}, 7"); A(f"s_add_u32 s77, s77, {F1_OFF}"); A("v_mov_b32 v10, 1")
    A(f"s_mul_i32 s78, s{W}, {48*128}"); A(f"s_add_u32 s78, s78, {FR_OFF}")
    A("s_and_b32 s36, s2, 0x7f"); A("s_lshl_b32 s36, s36, 7"); A(f"s_add_u32 s36, s36, {F1_OFF}")
    lab = A.label("busy"); A("s_cmp_lt_u32 s2, 240"); A(f"s_cbranch_scc1 {lab}")
    poll(A, [f"buffer_load_dword v4, off, {S4(SWS)}, s36 sc1"], [4], sleep=6)
    A(f"{lab}:")
    A("v_lshlrev_b32 v2, 7, v0"); A(f"s_mov_b32 s36, {F1_OFF}")
    poll(A, [f"buffer_load_dword v4, v2, {S4(SWS)}, s36 offen sc1"], [4])
    A("s_barrier")
    ST.mark()
    Kr = lambda t: KR + 4*(t % 4)
    Vr = lambda t, sx: VR + 8*(t % 4) + 4*sx
    Xr = lambda j: XR + 2*(j % 2)
    def ldk(t): return [f"buffer_load_dwordx4 {r(Kr(t),4)}, {v(kv)}, {S4(SA)}, s{sok} offen offset:{2560*(t&1)} {LD}"] + ([f"s_add_u32 s{sok}, s{sok}, 5120"] if t & 1 else [])
    def ldx(j): return [f"buffer_load_dwordx2 {r(Xr(j),2)}, {v(kxv)}, {S4(SA)}, s{sox} offen sc1", f"s_add_u32 s{sox}, s{sox}, 5120"]
    def ldv(t, sx): return [f"buffer_load_dwordx4 {r(Vr(t,sx),4)}, {v(vv)}, {S4(SWS)}, s{sov} offen offset:{1280*(t&1)+640*sx} {LD}"] + ([f"s_add_u32 s{sov}, s{sov}, 2560"] if (t & 1 and sx) else [])
    def ldq(lp): return ([f"buffer_load_dwordx2 {r(QX+2*lp,2)}, {v(kxv)}, {S4(SWS)}, s{40+lp} offen sc1"] +
                         [f"buffer_load_dwordx4 {r(QM+8*lp+4*j,4)}, {v(kv)}, {S4(SWS)}, s{40+lp} offen offset:{2560*j} sc1" for j in range(2)])
    Q = VQ()
    order = (1, 2, 3, 0)
    for tag, ops in ((("x", 0), ldx(0)), (("k", 0), ldk(0)), (("q", 1), ldq(1)), (("q", 2), ldq(2)), (("v", 0, 0), ldv(0, 0)), (("v", 0, 1), ldv(0, 1)),
                     (("q", 3), ldq(3)), (("q", 0), ldq(0))):
        A.ext(Q.add(tag, ops))
    side = {b: [] for b in range(64)}
    mid = {b: [] for b in range(64)}
    def put(b, tag, ops): side[b] += [(tag, x) for x in ops]
    put(0, ("k", 1), ldk(1)); put(0, ("v", 1, 0), ldv(1, 0)); put(1, ("v", 1, 1), ldv(1, 1)); put(1, ("x", 1), ldx(1)); put(1, ("k", 2), ldk(2))
    put(2, ("v", 2, 0), ldv(2, 0)); put(2, ("v", 2, 1), ldv(2, 1)); put(2, ("k", 3), ldk(3)); put(3, ("v", 3, 0), ldv(3, 0)); put(3, ("v", 3, 1), ldv(3, 1))
    for t in range(12):
        put(4*t+3 + (t == 0), ("k", t+4), ldk(t+4)); put(4*t+4, ("v", t+4, 0), ldv(t+4, 0)); put(4*t+5, ("v", t+4, 1), ldv(t+4, 1))
    for j in range(6): put(8*j+6, ("x", j+2), ldx(j+2))
    for b in (7, 23, 39, 55): put(b, "pc", [CODE_TOUCH])
    B0 = CFG.get("b0", 4); B1 = B0 + CFG.get("b1", 8)
    if not CFG.get("noside"):
        put(3, "grp", [f"buffer_load_dword v9, v8, {S4(SWS)}, s77 offen sc1"])
        for i in range(10): put(B0+i, ("rd", i), rl_dma(i))
        for a_ in range(5):
            put(B1+2*a_, None, [("wait", ("rd", 2*a_+1))] + rl_read(a_, 0) + rl_read(a_, 1))
            put(B1+2*a_+1, "rs", ["s_waitcnt lgkmcnt(0)"] + rl_store(a_, 0) + rl_store(a_, 1)); mid[B1+2*a_+1] += [rl_sum(a_, 0), rl_sum(a_, 1)]
        put(B1+10, "rs", rl_cs(0) + rl_cs(1))
        B2 = B1 + 10 + CFG.get("b2", 5)
        put(B2, "fr", [("wait", "rs"), f"buffer_store_dword v10, off, {S4(SWS)}, s{sfr} sc1"])
        put(8, None, [("wait", "grp"), f"v_cmp_ne_u32 vcc, s{MYF}, v9", "s_nop 0", "s_cmp_eq_u64 vcc, 0", f"s_cselect_b32 s{MODE}, {0 if CFG.get('safe') else 1}, 0"])
        put(9, None, [f"s_cmp_eq_u32 s{MODE}, 0", f"s_cselect_b32 s{stch}, {OOB}, 0", f"s_add_u32 s76, s76, s{stch}", f"s_add_u32 s90, s90, s{stch}", f"s_add_u32 s93, s93, s{stch}"])
        B3 = B2 + CFG.get("b3", 5)
        frl = [f"buffer_load_dwordx4 {v(RLF,4)}, v11, {S4(SWS)}, s78 offen sc1"]
        put(B3, "frl", frl)
        chk = [f"v_min3_u32 {v(RLF)}, {v(RLF)}, {v(RLF+1)}, {v(RLF+2)}", f"v_min_u32 {v(RLF)}, {v(RLF)}, {v(RLF+3)}", f"v_cmp_eq_u32 vcc, 0, {v(RLF)}"]
        put(B3+3, None, [("wait", "frl")] + chk + ["s_nop 0", f"s_cbranch_vccnz {K}_frspin", f"{K}_frok:", "s_barrier"])
        pf = [x for st_ in range(3) for x in p4_dma(st_)]
        pf += [x for kq in range(4) for x in (f"buffer_load_dword {v(P3CS+kq)}, v146, {S4(SWS)}, s75 offen sc1", f"s_add_u32 s75, s75, {108*128}")]
        pf += io_rm("load", P3RES, SX)
        pf += [x for f in range(25) for x in p3_wload(f)]
        for b_, what in TOUCHES(): put(b_, "t", gtouch(what))
        PE = CFG.get("pfe", 61); nreal = sum(not is_salu(x) for x in pf)
        for b in range(B3+4, PE):
            take = -(-nreal//(PE-b))
            while pf and (take > 0 or is_salu(pf[0])):
                x = pf.pop(0); put(b, "pf", [x])
                if not is_salu(x): take -= 1; nreal -= 1
    else: A(f"s_mov_b32 s{MODE}, 1")
    for n in range(3):
        lp = order[n]
        put(61+n, None, [f"ds_write_b128 {v(cw+lp-1)}, {r(Oreg(lp)+16*j+4*g,4)} offset:{3072*j+1024*g}" for j in range(2) for g in range(3)])
    A.ext(Q.wait(("q", 1)))
    A(mf2b(S0, Xr(0), QX+2, "0", 0)); A("s_nop 15"); A("s_nop 1")
    A(mf32(S0, Kr(0), QM+8)); A(mf32(S0+16, Kr(0), QM+12))
    A.ext(Q.wait(("q", 2)))
    ST.mark()
    A("s_nop 10"); A(".p2align 3")
    def needs(b, k):
        if b > 63: return []
        t, t1_, lp1 = b >> 2, (b+1) >> 2, order[(b+1) & 3]
        if k == 0: return [("x", t1_ >> 1), ("q", lp1)] if b < 63 else []
        if k == 4: return [("k", t1_)] if b < 63 else []
        if k == 3: return [("v", t, 0)]
        if k == 6: return [("v", t, 1)]
        return []
    for b in range(64):
        t, lp = b >> 2, order[b & 3]
        t1_, lp1 = (b+1) >> 2, order[(b+1) & 3]
        cur, nxt = (S0, S1) if b % 2 == 0 else (S1, S0)
        c0 = "0" if t == 0 else None
        mf = {3: mf32(Oreg(lp), Vr(t, 0), P, c0), 6: mf32(Oreg(lp), Vr(t, 1), P+4), 7: mf32(Oreg(lp)+16, Vr(t, 0), P+8, c0)}
        if b: mf[2] = mf32(Oreg(order[(b-1) & 3])+16, Vr((b-1) >> 2, 1), P+12)
        if b < 63:
            mf[0] = mf2b(nxt, Xr(t1_ >> 1), QX+2*lp1, "0", t1_ & 1); mf[4] = mf32(nxt, Kr(t1_), QM+8*lp1); mf[5] = mf32(nxt+16, Kr(t1_), QM+8*lp1+4)
        q = side[b]; mq = list(mid[b])
        if b in ASTAMPS(): ST.mark()
        for k in range(8):
            if k in mf: A(mf[k])
            n0 = len(A.L)
            if k >= 2:
                tags = needs(b, k+1) if k < 7 else needs(b+1, 0)
                w_ = Q.wait(*tags) if tags else []
                A.ext(w_)
                free = not w_; nmem = 0
                left = sum(1 for tg, x in q if not (isinstance(x, tuple) or is_salu(x) or x.startswith("v_") or x.endswith(":")))
                want = -(-left//(8-k))
                while q:
                    tg, x = q[0]
                    if isinstance(x, tuple):
                        if not free and k < 7 and CFG.get("strict", 1): break
                        q.pop(0); w_ = Q.wait(x[1]); A.ext(w_); free = free and not w_
                    elif x.endswith(":") or x.startswith("v_"): q.pop(0); A(x); free = False; nmem = 99 if k < 7 else nmem
                    elif is_salu(x):
                        if not free and k < 7 and len(q) <= 2*(7-k): break
                        q.pop(0); A(x); free = False
                    else:
                        if nmem >= max(want, 1) and k < 7: break
                        q.pop(0); A.ext(Q.add(tg, [x])); nmem += 1; free = False
            four = sum(1 for x in A.L[n0:] if isize(x) == 4)
            pk = (k-1) % 8; eb = E + 4*(pk & 1)
            if b or k:
                for j in range(2): A(f"v_cvt_pk_bf16_f32 {v(P+2*pk+j)}, {v(eb+2*j)}, {v(eb+2*j+1)}")
            for j in range(4):
                wide = j == 0 and four % 2 == 1 and CFG.get("align", 1)
                A(f"v_exp_f32{'_e64' if wide else ''} {v(E+4*(k&1)+j)}, {v(cur+4*k+j)}")
                if j == 1 and k >= 3 and mq and not any(x == "s_waitcnt lgkmcnt(0)" for _, x in q): A(mq.pop(0))
        assert not q and not mq, (b, q)
    for j in range(2): A(f"v_cvt_pk_bf16_f32 {v(P+14+j)}, {v(E+4+2*j)}, {v(E+5+2*j)}")
    A("s_waitcnt lgkmcnt(0)"); A("s_barrier")
    A(mf32(O0+16, Vr(15, 1), P+12))
    ST.mark()
    for sl in range(3):
        for j in range(2):
            for g in range(3): A(f"ds_read_b128 {v(S0+24*sl+12*j+4*g,4)}, {v(cr)} offset:{6144*sl+3072*j+1024*g}")
        if sl == 1: A("s_waitcnt lgkmcnt(6)")
    A(f"s_lshl_b32 s38, s{qb}, 2"); A(f"s_add_u32 s38, s38, s{W}"); A("s_lshl_b32 s38, s38, 2"); A(f"s_lshr_b32 s39, s{head}, 3"); A("s_add_u32 s38, s38, s39"); A("s_lshl_b32 s38, s38, 5")
    A(f"s_and_b32 s39, s{head}, 7"); A("s_add_u32 s38, s38, s39"); A("s_lshl_b32 s38, s38, 2"); A(f"s_add_u32 s38, s38, {F2_OFF}")
    A(f"s_add_u32 s39, s{sob}, 40960")
    for sl in range(3):
        if sl: A(f"s_waitcnt lgkmcnt({12-6*sl})")
        for j in range(2):
            for i in range(0, 12, 2): A(f"v_pk_add_f32 {v(O0+16*j+i,2)}, {v(O0+16*j+i,2)}, {v(S0+24*sl+12*j+i,2)}")
    A(f"{K}_anorm:")
    A(f"v_mov_b32 v12, {v(O0+8)}"); A(f"v_mov_b32 v13, {v(O0+8)}"); A(f"v_mov_b32 v14, {v(O0+24)}"); A(f"v_mov_b32 v15, {v(O0+24)}")
    A(f"s_mov_b32 s36, {hex(f2u(2.0**60))}"); A(f"s_mov_b32 s37, {hex(f2u(2.0**-60))}")
    A("v_permlane32_swap_b32 v12, v13"); A("v_permlane32_swap_b32 v14, v15"); A("s_nop 1")
    A("v_rcp_f32 v12, v13"); A("v_rcp_f32 v14, v15")
    A("v_cmp_nlt_f32_e64 vcc, v13, s36"); A("v_cmp_nlt_f32_e64 s[40:41], v15, s36"); A("v_cmp_ngt_f32_e64 s[42:43], v13, s37"); A("v_cmp_ngt_f32_e64 s[56:57], v15, s37")
    A("s_or_b64 vcc, vcc, s[40:41]"); A("s_or_b64 vcc, vcc, s[42:43]"); A("s_or_b64 vcc, vcc, s[56:57]"); A(f"s_cbranch_scc1 {K}_aslow")
    A(f"{K}_afin:")
    for j in range(2):
        for i in range(0, 12, 2): A(f"v_pk_mul_f32 {v(O0+16*j+i,2)}, {v(O0+16*j+i,2)}, {v(12+2*j,2)} op_sel_hi:[1,0]")
        for i in range(6): A(f"v_cvt_pk_bf16_f32 {v(S0+8*j+i)}, {v(O0+16*j+2*i)}, {v(O0+16*j+2*i+1)}")
    def stores(fl):
        L = [f"buffer_store_dwordx4 {v(S0+8*j,4)}, {v(ov)}, {S4(SWS)}, s{sob if j == 0 else 39} offen {fl}" for j in range(2)]
        L.append("s_mov_b32 exec_hi, 0")
        L += [f"buffer_store_dwordx2 {v(S0+8*j+4,2)}, {v(oxv)}, {S4(SWS)}, s{sob if j == 0 else 39} offen {fl}" for j in range(2)]
        return L
    publish(A, stores, ["s_mov_b64 exec, 1", "s_waitcnt vmcnt(0)"], lambda fl: [f"buffer_store_dword v10, off, {S4(SWS)}, s38 {fl}", "s_mov_b64 exec, -1"], local=not CFG.get("hl", 1))
    ST.mark()
    def cold():
        if not CFG.get("noside"):
            A(f"{K}_frspin:")
            poll(A, frl, list(range(RLF, RLF+4)), sleep=8)
            A(f"s_branch {K}_frok")
        NM = S1
        A(f"{K}_aslow:")
        A(f"s_cmp_lg_u32 s{redo}, 0"); A(f"s_cbranch_scc1 {K}_afin")
        A(f"s_mov_b32 s{redo}, 1"); A(f"s_mov_b32 s{sok}, 0"); A(f"s_mov_b32 s{sox}, 0")
        A("v_mov_b32 v12, 0xff800000"); A("v_mov_b32 v13, 0xff800000")
        def scores(e, c):
            A(mf2b(S0, Xr(0), QX, c, e)); A("s_nop 15"); A("s_nop 1")
            A(mf32(S0, Kr(e), QM)); A(mf32(S0+16, Kr(e), QM+4)); A("s_nop 11")
        A(f"{K}_mloop:")
        A.ext(ldx(0) + ldk(0) + ldk(1)); A("s_waitcnt vmcnt(0)")
        for e in range(2):
            scores(e, "0")
            for j in range(2):
                for i in range(0, 16, 2): A(f"v_max3_f32 {v(12+j)}, {v(12+j)}, {v(S0+16*j+i)}, {v(S0+16*j+i+1)}")
        A(f"s_cmp_lt_u32 s{sok}, 163840"); A(f"s_cbranch_scc1 {K}_mloop")
        A("v_mov_b32 v14, v12"); A("v_mov_b32 v15, v13"); A("s_nop 1")
        A("v_permlane32_swap_b32 v12, v14"); A("v_permlane32_swap_b32 v13, v15"); A("s_nop 1")
        A("v_max_f32 v12, v12, v14"); A("v_max_f32 v13, v13, v15")
        for i in range(32): A(f"v_sub_f32 {v(NM+i)}, 0, {v(12+i//16)}"); A(f"v_mov_b32 {v(O0+i)}, 0")
        A(f"s_mov_b32 s{sok}, 0"); A(f"s_mov_b32 s{sox}, 0"); A(f"s_mul_i32 s{sov}, s{head}, 81920"); A(f"s_add_u32 s{sov}, s{sov}, {V_OFF}")
        A(f"{K}_sloop:")
        A.ext(ldx(0) + ldk(0) + ldk(1) + ldv(0, 0) + ldv(0, 1) + ldv(1, 0) + ldv(1, 1)); A("s_waitcnt vmcnt(0)")
        for e in range(2):
            scores(e, NM)
            for i in range(32): A(f"v_exp_f32 {v(S0+i)}, {v(S0+i)}")
            A("s_nop 0")
            for i in range(16): A(f"v_cvt_pk_bf16_f32 {v(P+i)}, {v(S0+2*i)}, {v(S0+2*i+1)}")
            A("s_nop 1")
            for j in range(2):
                for sx in range(2): A(mf32(O0+16*j, Vr(e, sx), P+8*j+4*sx))
        A(f"s_cmp_lt_u32 s{sok}, 163840"); A(f"s_cbranch_scc1 {K}_sloop")
        A("s_nop 15")
        A(f"s_branch {K}_anorm")
    return cold

RED = 86016
CSL = 147456
P4_SOW, P4_SOW2, P4_M0, P4_ST = 45, 46, 47, 48
class VQ:
    def __init__(self): self.q = []; self.done = 0
    def add(self, tag, ops):
        self.q += [tag for x in ops if x.startswith(("buffer", "global"))]
        assert len(self.q) - self.done <= 63, "too many outstanding"
        return ops
    def wait(self, *tags):
        idx = [i for i, x in enumerate(self.q) if x in tags]
        last = max(idx) + 1
        if last <= self.done: return []
        self.done = last
        return [f"s_waitcnt vmcnt({len(self.q) - last})"]

def p4_setup(A):
    A(f"s_lshr_b32 s36, s{GI}, 1"); A("s_mul_i32 s36, s36, 7"); A(f"s_min_u32 s{P4_ST}, s36, 101")
    A(f"s_mul_i32 s{P4_M0}, s{W}, 7168"); A(f"s_lshl_b32 s36, s{P4_ST}, 11"); A(f"s_add_u32 s36, s36, s{P4_M0}")
    A(f"s_lshr_b32 s37, s{W}, 1"); A(f"s_mul_i32 s37, s37, {221184-14336}"); A("s_add_u32 s36, s36, s37")
    A(f"s_add_u32 s{P4_SOW}, s36, {WGU_OFF}")
def p4_dma(stage):
    slot = stage % 5
    dw = lambda j: f"buffer_load_dwordx4 {v(LV)}, {S4(SWS)}, s{P4_SOW if j < 4 else P4_SOW2} offen offset:{(j&3)*1024} sc1 lds"
    return ([f"s_add_u32 m0, s{P4_M0}, {slot*28672}", f"s_add_u32 s{P4_SOW2}, s{P4_SOW}, 4096"] + [dw(j) for j in range(4)] +
            [f"s_add_u32 m0, s{P4_M0}, {slot*28672+4096}", f"s_add_u32 s{P4_SOW}, s{P4_SOW}, {2*221184}"] + [dw(j) for j in range(4, 7)])

def skinny_addr(A):
    for i in range(1, 4):
        A(f"s_add_u32 s36, s{W}, {i}"); A("s_and_b32 s36, s36, 3"); A("s_mul_i32 s36, s36, 15360"); A(f"s_add_u32 s36, s36, {RED+(i-1)*5120}"); A(f"v_add_u32 {v(SK_WR+i-1)}, s36, {v(LV)}")
    A(f"s_mul_i32 s36, s{W}, 15360"); A(f"s_add_u32 s36, s36, {RED}"); A(f"v_add_u32 {v(SK_RD)}, s36, {v(LV)}")
    A(f"v_and_b32 v2, 15, {v(LANE)}"); A(f"v_lshrrev_b32 v3, 4, {v(LANE)}")
    A("v_mul_u32_u24 v2, 1280, v2"); A(f"v_lshl_add_u32 {v(SK_RM)}, v3, 4, v2")
    A(f"s_lshl_b32 s49, s{GX}, 2"); A(f"s_and_b32 s36, s{GI}, 3"); A("s_add_u32 s49, s49, s36"); A("s_lshl_b32 s49, s49, 2"); A(f"s_add_u32 s49, s49, s{W}")
    A("s_mul_i32 s50, s49, 20480"); A(f"s_lshr_b32 s36, s{GI}, 3"); A("s_mul_i32 s37, s36, 320"); A("s_add_u32 s51, s50, s37")
    A("s_mul_i32 s37, s36, 5120"); A("s_add_u32 s50, s50, s37"); A(f"s_add_u32 s50, s50, {H_OFF}")
    A(f"s_bfe_u32 s36, s{GI}, 0x10002"); A("s_lshl_b32 s37, s36, 3")
    A("s_add_u32 s60, s50, s37"); A("s_add_u32 s60, s60, 2048"); A("s_add_u32 s61, s51, s37"); A("s_add_u32 s61, s61, 128")
    A("s_mul_i32 s37, s36, 3072"); A("s_add_u32 s50, s50, s37"); A("s_mul_i32 s37, s36, 192"); A("s_add_u32 s51, s51, s37")
def io_frag(op, regs, fl):
    return [f"buffer_{op}_dwordx4 {v(regs,4)}, {v(LV)}, {S4(SWS)}, s50 offen {fl}", f"buffer_{op}_dwordx4 {v(regs+4,4)}, {v(LV)}, {S4(SWS)}, s50 offen offset:1024 {fl}",
            f"buffer_{op}_dwordx2 {v(regs+8,2)}, {v(LV)}, {S4(SWS)}, s60 offen {fl}"]
def io_rm(op, regs, S):
    return [f"buffer_{op}_dwordx4 {v(regs,4)}, {v(SK_RM)}, {S4(S)}, s51 offen", f"buffer_{op}_dwordx4 {v(regs+4,4)}, {v(SK_RM)}, {S4(S)}, s51 offen offset:64",
            f"buffer_{op}_dwordx2 {v(regs+8,2)}, {v(SK_RM)}, {S4(S)}, s61 offen"]
def unpack(A, dst, src, n):
    for i in range(n): A(f"v_lshlrev_b32 {v(dst+2*i)}, 16, {v(src+i)}"); A(f"v_and_b32 {v(dst+2*i+1)}, 0xffff0000, {v(src+i)}")
def reduce_tail(A, ACC, rd):
    A("s_waitcnt lgkmcnt(0)"); A("s_barrier")
    for sl in range(3):
        for u in range(5): A(f"ds_read_b128 {v(ACC+20+20*sl+4*u,4)}, {v(rd)} offset:{5120*sl+1024*u}")
    for sl in range(3):
        A(f"s_waitcnt lgkmcnt({10-5*sl})")
        for i in range(0, 20, 2): A(f"v_pk_add_f32 {v(ACC+i,2)}, {v(ACC+i,2)}, {v(ACC+20+20*sl+i,2)}")
def quad_sum(A, regs, tmps):
    for swap in ("v_permlane32_swap_b32", "v_permlane16_swap_b32"):
        for x, t in zip(regs, tmps): A(f"v_mov_b32 {v(t)}, {v(x)}")
        A("s_nop 1")
        for x, t in zip(regs, tmps): A(f"{swap} {v(x)}, {v(t)}")
        A("s_nop 1")
        for x, t in zip(regs, tmps): A(f"v_add_f32 {v(x)}, {v(x)}, {v(t)}")

def phase3(A, ST):
    wr, rd = SK_WR, SK_RD
    ACC, RES, CSP, AF = 16, P3RES, P3CS, 256
    A("s_barrier")
    A(f"s_mul_i32 s36, s{W}, 14"); A(f"s_sub_i32 s37, s{W}, 2"); A("s_max_i32 s37, s37, 0"); A("s_sub_u32 s32, s36, s37")
    A(f"s_lshr_b32 s36, s{GI}, 2"); A("s_mul_i32 s36, s36, 5120"); A("s_mul_i32 s44, s32, 40960"); A("s_add_u32 s44, s44, s36"); A(f"s_add_u32 s44, s44, {WD_OFF}")
    A(f"s_cmp_ge_u32 s{W}, 2"); A(f"s_cselect_b32 s94, {OOB}, 0"); A("s_add_u32 s94, s94, 40960")
    unpack(A, ACC, RES, 10)
    A(f"v_add_f32 {v(CSP)}, {v(CSP)}, {v(CSP+1)}"); A(f"v_add_f32 {v(CSP+2)}, {v(CSP+2)}, {v(CSP+3)}"); A(f"v_add_f32 {v(CSP)}, {v(CSP)}, {v(CSP+2)}")
    A(f"v_add_u32 v12, {CSL}, v146"); A(f"ds_write_b32 v12, {v(CSP)}")
    for i in range(4):
        A(f"s_add_u32 s36, s{W}, {i}"); A("s_and_b32 s36, s36, 3"); A("s_andn2_b32 s37, s49, 3"); A("s_add_u32 s36, s36, s37"); A("s_mul_i32 s36, s36, 20480")
        A(f"s_mul_i32 s37, s{W}, 5120"); A("s_add_u32 s36, s36, s37"); A(f"s_add_u32 s{40+i}, s36, {O_OFF}")
    A("s_lshl_b32 s36, s49, 7"); A(f"s_add_u32 s36, s36, {F2_OFF}")
    A(f"v_lshlrev_b32 v13, 2, {v(LANE)}"); A("s_mov_b64 exec, 0xff")
    poll(A, [f"buffer_load_dword v14, v13, {S4(SWS)}, s36 offen sc1"], [14])
    A("s_mov_b64 exec, -1")
    ST.mark()
    Q = VQ()
    order = (1, 2, 3, 0)
    for i in order:
        A.ext(Q.add(("a", i), [f"buffer_load_dwordx4 {r(AF+20*i+4*ks,4)}, {v(LV if ks < 4 else 252)}, {S4(SWS)}, s{40+i} offen offset:{1024*(ks&3)} {CFG.get('al','sc1')}" for ks in range(5)]))
    for what in str(CFG.get("p3t", "")).split(","):
        if what: A.ext(Q.add("t", gtouch(what)))
    prev = None
    for n, i in enumerate(order):
        A.ext(Q.wait(("a", i)))
        if n == 0: ST.mark()
        mf = [mf16(ACC+20*i+4*u, w3reg(5*ks+u), AF+20*i+4*ks, "0" if (ks == 0 and i) else None) for u in range(5) for ks in range(5)]
        ops = []
        if prev is not None: ops += [f"ds_write_b128 {v(wr+prev-1)}, {v(ACC+20*prev+4*u,4)} offset:{1024*u}" for u in range(5)]
        slots = {k: [] for k in range(25)}
        for j, x in enumerate(ops): slots[5+2*j].append(x)
        nf = CFG.get("w5p3", 0)//4
        for j in range(nf): slots[(25*j)//nf].extend(Q.add("w5", w5load(nf*n+j)))
        for k in range(25): A(mf[k]); A.ext(slots[k])
        prev = i
    ST.mark()
    reduce_tail(A, ACC, rd)
    for i in range(10): A(f"v_cvt_pk_bf16_f32 {v(RES+i)}, {v(ACC+2*i)}, {v(ACC+2*i+1)}")
    stat = Asm(); sm, sq = 112, 114
    stat(f"v_pk_mul_f32 {v(sq,2)}, {v(ACC,2)}, {v(ACC,2)}"); stat(f"v_pk_add_f32 {v(sm,2)}, {v(ACC,2)}, {v(ACC+2,2)}")
    for i in range(2, 20, 2):
        stat(f"v_pk_fma_f32 {v(sq,2)}, {v(ACC+i,2)}, {v(ACC+i,2)}, {v(sq,2)}")
        if i > 2: stat(f"v_pk_add_f32 {v(sm,2)}, {v(sm,2)}, {v(ACC+i,2)}")
    stat(f"v_add_f32 {v(sm)}, {v(sm)}, {v(sm+1)}"); stat(f"v_add_f32 {v(sm+1)}, {v(sq)}, {v(sq+1)}")
    quad_sum(stat, [sm, sm+1], [sq, sq+1])
    A(f"s_lshr_b32 s37, s{GI}, 2"); A("s_lshl_b32 s36, s49, 3"); A("s_add_u32 s36, s36, s37"); A("s_lshl_b32 s36, s36, 7"); A(f"s_add_u32 s36, s36, {STAT_OFF}")
    A("s_lshr_b32 s38, s49, 1"); A("s_lshl_b32 s38, s38, 5"); A("s_lshl_b32 s37, s37, 1"); A("s_add_u32 s38, s38, s37"); A("s_and_b32 s37, s49, 1"); A("s_add_u32 s38, s38, s37")
    A("s_lshl_b32 s38, s38, 2"); A(f"s_add_u32 s38, s38, {F3_OFF}")
    A(f"v_lshlrev_b32 v13, 3, {v(LANE)}"); A("v_mov_b32 v12, 1")
    publish(A, lambda fl: io_frag("store", RES, fl) + [x.strip() for x in stat.L] + ["s_mov_b64 exec, 0xffff", f"buffer_store_dwordx2 {v(sm,2)}, v13, {S4(SWS)}, s36 offen {fl}"],
            ["s_mov_b64 exec, 1", "s_waitcnt vmcnt(0)"], lambda fl: [f"buffer_store_dword v12, off, {S4(SWS)}, s38 {fl}", "s_mov_b64 exec, -1"])
    ST.mark()

W5X = 208
def w5reg(f): return 256+80+4*f if f < 28 else 256+4*(f-28) if f < 48 else 256+4*f if f < 64 else W5X + 4*(f-64)
def w5load(f):
    ks, u = divmod(f, 5)
    L = [f"buffer_load_dwordx4 {r(w5reg(f),4)}, {v(WV if u < 4 else WV+1)}, {S4(SWS)}, s44 offen offset:{1024*(u&3)} sc1"]
    if u == 4: L.append("s_add_u32 s44, s44, 40960" if ks != 12 else "s_add_u32 s44, s44, s94")
    return L

def phase4(A, ST):
    soh, sohh, soh1 = 28, 29, 30
    la, lb, hv, sv, ca, cb = 4, 7, 10, 11, 12, 13
    STT, HR, ACC, WB = 232, 16, 96, 208
    WB = 208; NW = 3
    HD = 4
    WR = lambda n: (80 + 8*(n % 4)) if n % 4 < 2 else (WB + 8*(n % 4 - 2))
    A("s_barrier")
    Q = VQ()
    A(f"s_mov_b32 s92, {OOB}")
    A(f"s_and_b32 s36, s{GI}, 1"); A(f"s_lshl_b32 s37, s{GX}, 1"); A("s_add_u32 s36, s36, s37"); A("s_lshl_b32 s36, s36, 2"); A(f"s_add_u32 s36, s36, s{W}")
    A(f"s_mul_i32 s{soh}, s36, 40960"); A(f"s_add_u32 s{soh}, s{soh}, {H_OFF}")
    A(f"s_lshl_b32 s38, s36, 7"); A(f"s_add_u32 s38, s38, {F3_OFF}")
    A("s_lshl_b32 s39, s36, 11"); A(f"s_add_u32 s39, s39, {STAT_OFF}")
    A(f"s_lshl_b32 s31, s36, 5"); A(f"s_lshr_b32 s37, s{GI}, 1"); A("s_add_u32 s31, s31, s37"); A("s_lshl_b32 s31, s31, 2"); A(f"s_add_u32 s31, s31, {F4_OFF}")
    A(f"s_and_b32 s40, s{P4_ST}, 1")
    A(f"s_mul_i32 s{sohh}, s36, 110592"); A(f"s_add_u32 s{sohh}, s{sohh}, {HH_OFF}")
    A(f"s_lshr_b32 s37, s{P4_ST}, 1"); A("s_lshl_b32 s37, s37, 10"); A(f"s_add_u32 s{sohh}, s{sohh}, s37")
    A("s_cmp_eq_u32 s40, 0"); A("s_cselect_b32 s37, 3072, 8"); A(f"s_add_u32 s{soh1}, s{sohh}, s37")
    A("s_lshl_b32 s37, s40, 10"); A(f"s_add_u32 s{sohh}, s{sohh}, s37")
    A("s_lshl_b32 s41, s40, 11"); A("s_cmp_eq_u32 s40, 0"); A(f"s_cselect_b32 s42, {6*2048}, 0")
    for i in range(3):
        A(f"v_add_u32 {v(la+i)}, s41, {v(LV)}"); A(f"v_add_u32 {v(lb+i)}, s42, {v(LV)}"); A("s_add_u32 s41, s41, 57344"); A("s_add_u32 s42, s42, 57344")
    A(f"v_add_u32 {v(hv)}, 20480, {v(LV)}")
    A(f"v_lshrrev_b32 v2, 4, {v(LANE)}"); A(f"v_and_b32 v3, 15, {v(LANE)}"); A(f"v_lshlrev_b32 {v(sv)}, 8, v2"); A(f"v_lshl_add_u32 {v(sv)}, v3, 3, {v(sv)}")
    A("s_lshl_b32 s41, s40, 7"); A(f"s_add_u32 s41, s41, {CSL}"); A(f"v_lshl_add_u32 {v(ca)}, v2, 4, s41")
    A("s_cmp_eq_u32 s40, 0"); A(f"s_cselect_b32 s41, {6*128}, 0"); A(f"s_add_u32 s41, s41, {CSL}"); A(f"v_lshl_add_u32 {v(cb)}, v2, 4, s41")
    A(f"v_lshlrev_b32 v14, 2, {v(LANE)}"); A("s_mov_b64 exec, 0xffff")
    poll(A, [f"buffer_load_dword v15, v14, {S4(SWS)}, s38 offen sc1"], [15])
    A("s_mov_b64 exec, -1")
    ST.mark()
    def hl(s_): return [f"buffer_load_dwordx4 {v(HR+16*(s_%HD)+8*n+4*ks,4)}, {v(hv if n else LV)}, {S4(SWS)}, s{soh} offen offset:{1024*ks} {CFG.get('al','sc1')}" for n in range(2) for ks in range(2)] + [f"s_add_u32 s{soh}, s{soh}, 2048"]
    for s_ in range(HD): A.ext(Q.add(("h", s_), hl(s_)))
    A.ext(Q.add("st", [f"buffer_load_dwordx2 {v(STT+4*n+2*c,2)}, {v(sv)}, {S4(SWS)}, s39 offen offset:{1024*n+128*c} sc1" for n in range(2) for c in range(2)]))
    def reads(n):
        s_, m = divmod(n, 14); slot = s_ % 5; j, mat = divmod(m, 2)
        base, off = (la, j*2048) if j < 6 else (lb, 0)
        return [f"ds_read_b128 {v(WR(n)+4*ks,4)}, {v(base+slot//2)} offset:{(slot%2)*28672+off+mat*1024+ks*14336}" for ks in range(2)]
    for n in range(NW): A.ext(reads(n))
    w5 = [f for f in range(64) if f >= CFG.get("w5p3", 0)]; wq = list(range(3, 10))
    pend = []
    for s_ in range(10):
        if s_ >= 1 and s_+HD-1 < 10: pend.append((("h", s_+HD-1), hl(s_+HD-1)))
        while wq and wq[0] <= s_+CFG.get("wd", 3): pend.append((("w", wq[0]), p4_dma(wq.pop(0))))
        for b_, what in TOUCHES("p4t"):
            if b_ == s_: pend.append(("t", gtouch(what)))
        have = sum(1 for t, ops in pend for x in ops if not is_salu(x))
        later = 7*len(wq) + 4*max(0, 6-s_) + len(w5) + have
        nw5 = min(len(w5), max(0, -(-later//(10-s_)) - have))
        for _ in range(nw5): pend.append(("w5", w5load(w5.pop(0))))
        flat = [(t, x) for t, ops in pend for x in ops]; pend = []
        px = CFG.get("p4x", "")
        if "now5" in px: flat = [(t, x.replace("s44 offen", "s92 offen")) for t, x in flat]
        if "nodma" in px: flat = [(t, x.replace(f"s{P4_SOW} offen", "s92 offen").replace(f"s{P4_SOW2} offen", "s92 offen")) for t, x in flat]
        if "dropw5" in px: flat = [(t, x) for t, x in flat if t != "w5"]
        if "plain" in px: flat = [(t, x.replace(" sc1", "")) for t, x in flat]
        nreal = sum(1 for t, x in flat if not is_salu(x))
        for m in range(14):
            n = 14*s_ + m
            pre = []
            if m == 0: pre += Q.wait(("h", s_))
            if m == 11 and s_ < 9:
                pre += ["s_waitcnt lgkmcnt(0)"] + (Q.wait(("w", s_+1)) if s_+1 >= 3 else []) + ["s_barrier"]
            else: pre.append(f"s_waitcnt lgkmcnt({2*min(NW-1, 139-n)})")
            A.ext(pre)
            if n == 0: ST.mark()
            take = -(-nreal//(14-m)); ops = []
            while flat and (take > 0 or is_salu(flat[0][1])):
                t, x = flat.pop(0); ops += Q.add(t, [x])
                if not is_salu(x): take -= 1; nreal -= 1
            mf = [mf16(ACC+8*m+4*nn, WR(n)+4*ks, HR+16*(s_ % HD)+8*nn+4*ks, "0" if (s_ == 0 and ks == 0) else None) for nn in range(2) for ks in range(2)]
            weave(A, mf, (reads(n+NW) if n+NW < 140 else []) + ops, [], [2]*4)
        assert not flat
    assert not w5 and not wq
    ST.mark()
    CSR = 16
    for j in range(7):
        for mat in range(2): A(f"ds_read_b128 {v(CSR+8*j+4*mat,4)}, {v(ca if j < 6 else cb)} offset:{(128*j if j < 6 else 0)+64*mat}")
    for f in range(64, 70): A.ext(Q.add("w5", w5load(f)))
    for n in range(2): A(f"v_pk_add_f32 {v(STT+4*n,2)}, {v(STT+4*n,2)}, {v(STT+4*n+2,2)}")
    quad_sum(A, [STT, STT+1, STT+4, STT+5], [STT+2, STT+3, STT+6, STT+7])
    for n in range(2):
        nm, r2 = STT+4*n, STT+4*n+2
        A(f"v_mul_f32 {v(nm)}, {hex(f2u(-1/640))}, {v(nm)}"); A(f"v_mul_f32 {v(r2)}, {hex(f2u(1/640))}, {v(nm+1)}")
        A(f"v_fma_f32 {v(r2)}, -{v(nm)}, {v(nm)}, {v(r2)}"); A(f"v_max_f32 {v(r2)}, 0, {v(r2)}"); A(f"v_add_f32 {v(r2)}, {hex(f2u(1e-5))}, {v(r2)}"); A(f"v_rcp_f32 {v(r2)}, {v(r2)}")
    A(f"v_add_u32 {v(hv)}, 55296, {v(LV)}"); A("v_mov_b32 v14, 1")
    A("s_waitcnt lgkmcnt(0)")
    OB = 72
    def epi(fl):
        L = []
        for a_ in range(4):
            for n in range(2):
                nm, r2 = STT+4*n, STT+4*n+2; o = OB + 4*((2*a_+n) % 4)
                for j in ([2*a_, 2*a_+1] if a_ < 3 else [6]):
                    g, u = ACC+16*j+4*n, ACC+16*j+8+4*n
                    for i in (0, 2):
                        L.append(f"v_pk_fma_f32 {v(g+i,2)}, {v(CSR+8*j+i,2)}, {v(nm,2)}, {v(g+i,2)} op_sel_hi:[1,0,1]")
                        L.append(f"v_pk_fma_f32 {v(u+i,2)}, {v(CSR+8*j+4+i,2)}, {v(nm,2)}, {v(u+i,2)} op_sel_hi:[1,0,1]")
                    for i in (0, 2): L.append(f"v_pk_mul_f32 {v(g+i,2)}, {v(g+i,2)}, {v(r2,2)} op_sel_hi:[1,0]")
                    for i in (0, 2): L.append(f"v_pk_mul_f32 {v(g+i,2)}, {v(g+i,2)}, {v(u+i,2)}")
                    for i in (0, 1): L.append(f"v_cvt_pk_bf16_f32 {v(o+2*(j&1)+i)}, {v(g+2*i)}, {v(g+2*i+1)}")
                if a_ < 3: L.append(f"buffer_store_dwordx4 {v(o,4)}, {v(hv if n else LV)}, {S4(SWS)}, s{sohh} offen offset:{1024*a_} {fl}")
                else: L.append(f"buffer_store_dwordx2 {v(o,2)}, {v(hv if n else LV)}, {S4(SWS)}, s{soh1} offen {fl}")
        return L
    publish(A, epi, ["s_mov_b64 exec, 1", "s_waitcnt vmcnt(0)"], lambda fl: [f"buffer_store_dword v14, off, {S4(SWS)}, s31 {fl}", "s_mov_b64 exec, -1"])
    ST.mark()

def phase5(A, ST):
    wr, rd = SK_WR, SK_RD
    ACC, AF, RES = 16, 96, 232
    srd(A, SA, 86, 2621440)
    for i in range(4):
        A(f"s_add_u32 s36, s{W}, {i}"); A("s_and_b32 s36, s36, 3"); A("s_andn2_b32 s37, s49, 3"); A("s_add_u32 s36, s36, s37"); A("s_mul_i32 s36, s36, 55296")
        A("s_lshl_b32 s37, s32, 10"); A("s_add_u32 s36, s36, s37"); A(f"s_add_u32 s{52+i}, s36, {HH_OFF}")
    A(f"s_cmp_ge_u32 s{W}, 2"); A(f"s_cselect_b32 s43, {OOB}, 0"); A(f"v_add_u32 v12, s43, {v(LV)}")
    A("s_lshr_b32 s36, s49, 2"); A("s_lshl_b32 s36, s36, 8"); A(f"s_add_u32 s36, s36, {F4_OFF}")
    A(f"v_lshrrev_b32 v13, 4, {v(LANE)}"); A(f"v_and_b32 v14, 15, {v(LANE)}"); A("v_lshlrev_b32 v13, 7, v13"); A("v_lshl_add_u32 v13, v14, 2, v13")
    A.ext(io_frag("load", RES, "sc1"))
    A("s_barrier")
    A("s_mov_b32 exec_hi, 0")
    poll(A, [f"buffer_load_dword v14, v13, {S4(SWS)}, s36 offen sc1"], [14])
    A("s_mov_b64 exec, -1")
    ST.mark()
    Q = VQ()
    order = (1, 2, 3, 0)
    def al(n, ks):
        i = order[n]
        L = [f"buffer_load_dwordx4 {v(AF+56*(n&1)+4*ks,4)}, {v(12 if ks == 13 else LV)}, {S4(SWS)}, s{52+i} offen offset:{1024*(ks&3)} {CFG.get('al','sc1')}"]
        if ks & 3 == 3: L.append(f"s_add_u32 s{52+i}, s{52+i}, 4096")
        return L
    for n in range(2):
        for ks in range(14): A.ext(Q.add((n, ks), al(n, ks)))
    unpack(A, ACC, RES, 10)
    for n, i in enumerate(order):
        for kp in range(7):
            A.ext(Q.wait((n, 2*kp+1)))
            if n == 0 and kp == 0: ST.mark()
            mf = [mf16(ACC+20*i+4*u, w5reg(5*ks+u), AF+56*(n&1)+4*ks, "0" if (ks == 0 and i) else None) for u in range(5) for ks in (2*kp, 2*kp+1)]
            ops = []
            pn, pk = (n, kp-1) if kp else (n-1, 6)
            if pn >= 0 and pn+2 < 4:
                for ks in (2*pk, 2*pk+1): ops += Q.add((pn+2, ks), al(pn+2, ks))
            if n and 1 <= kp <= 5: ops.append(f"ds_write_b128 {v(wr+order[n-1]-1)}, {v(ACC+20*order[n-1]+4*(kp-1),4)} offset:{1024*(kp-1)}")
            weave(A, mf, ops, [], [2]*10)
    ST.mark()
    reduce_tail(A, ACC, rd)
    for i in range(10): A(f"v_cvt_pk_bf16_f32 {v(RES+i)}, {v(ACC+2*i)}, {v(ACC+2*i+1)}")
    A.ext(io_rm("store", RES, SA))

def build(**cfg):
    CFG.update(cfg)
    A = Asm(); ST = Stamps(A)
    kstart(A, K); ST.mark()
    if CFG.get("probe"):
        off, base = {"bx": (24, 0), "ws": (72, 40 << 20), "out": (56, 0), "wd": (48, 0)}[CFG["probe"]]
        A(f"s_load_dwordx2 s[4:5], s[0:1], {off}"); A("s_waitcnt lgkmcnt(0)"); A(f"s_mov_b32 s6, {base + (2<<20)}"); A("s_mov_b32 s7, 0x20000")
        A("s_and_b32 s8, s2, 255"); A("s_lshl_b32 s8, s8, 9"); A(f"s_add_u32 s8, s8, {base}"); A("v_lshrrev_b32 v2, 6, v0"); A("v_lshlrev_b32 v2, 7, v2")
        for i in range(16):
            A("buffer_load_dword v3, v2, s[4:7], s8 offen"); A("s_waitcnt vmcnt(0)"); A("s_add_u32 s8, s8, 131072")
    phase1(A, ST)
    cold = phase2(A, ST)
    phase3(A, ST); phase4(A, ST); phase5(A, ST)
    ST.flush()
    A("s_endpgm")
    cold()
    A(f"{K}_end:")
    A("s_endpgm")
    kdesc(A, K, 512, acc=256)
    head = open(f"cdna_kernels/{NAME}.s.ref").read().split("; Override launch")[0]
    head += "; @launch grid=(256,1,1) block=(256,1,1) lds=163840\n"
    return head + '.amdgcn_target "amdgcn-amd-amdhsa--gfx950"\n' + A.text()

if __name__ == "__main__":
    out = sys.argv[1] if len(sys.argv) > 1 else f"cdna_kernels/{NAME}.s"
    cfg = {}
    for x in sys.argv[2:]:
        k, val = x.split("=")
        cfg[k] = int(val) if val.lstrip("-").isdigit() else val
    txt = build(**cfg)
    names = STAMP_NAMES[:8] + [f"att body {b}" for b in ASTAMPS()] + STAMP_NAMES[8:]
    if CFG["stamps"]: txt = txt.replace(".amdgcn_target", "; STAMPS " + "|".join(names) + "\n.amdgcn_target", 1)
    open(out, "w").write(txt)
```

```python
import sys, math, struct
from dsl import *

NAME = "sequential_preLN__softmax_full_mha__glu_gated_bilinear__prompt"
K = NAME + "_kernel"
QK_OFF = 0
V_OFF = 32*163840
O_OFF = 8388608
H_OFF = O_OFF + 2621440
HH_OFF = H_OFF + 2621440
WGU_OFF = 20971520
WD_OFF = WGU_OFF + 4423680
WO_OFF = WD_OFF + 2211840
CS_OFF = WO_OFF + 819200
STAT_OFF = CS_OFF + 65536
F2_OFF = STAT_OFF + 131072
F3_OFF = F2_OFF + 128*128
F4_OFF = F3_OFF + 64*128
FR_OFF = F4_OFF + 64*128
F1_OFF = FR_OFF + 192*128
STAMP_OFF = 29360128
WS_SIZE = 33554432
OOB = 0x40000000
SPIN = 200000
assert F1_OFF + 256*128 < STAMP_OFF and STAT_OFF % 128 == 0
def f2u(x): return struct.unpack("<I", struct.pack("<f", x))[0]
QSCALE = f2u(20**-0.5 * math.log2(math.e))
assert all((u*205) >> 10 == u//5 for u in range(160))
assert all((f*3277) >> 16 == f//20 for f in range(640))
assert all((e*6554) >> 16 == e//10 for e in range(320))
CFG = dict(stamps=False, w5p3=28, b3=8, touch="24:n0,28:n1,42:n2,46:n3,50:n4,54:n5,52:h0,56:h1,58:s")
STAMP_NAMES = ["start", "p1 first dma issued", "p1 stage0 landed", "p1 loop end", "p1 stores issued", "p1 flag set", "F1 seen", "att loop start", "att loop end",
               "O published", "F2 seen", "p3 first act", "p3 mfma end", "H published", "F3 seen", "p4 first h", "p4 loop end", "HH published", "F4 seen", "p5 first act", "p5 mfma end", "end"]

W, SWS, SX, SA, SR = 3, 4, 8, 12, 16
GX, GI, MODE, MYF = 24, 25, 26, 27
LANE, LV = 1, 253
PCV = 247
CODE_TOUCH = f"global_load_dword v248, v{PCV}, s[20:21] sc1"
def S4(b): return f"s[{b}:{b+3}]"

def ASTAMPS(): return [int(x) for x in str(CFG.get("astamp", "")).split(",") if x]
class Stamps:
    def __init__(self, A): self.A, self.n = A, 0
    def mark(self, at=None):
        A = self.A; i = self.n if at is None else at
        if CFG.get("pad"):
            pi, pt = map(int, CFG["pad"].split(":"))
            if i == 0: A("s_memrealtime s[96:97]")
            if i == pi:
                lab = A.label("pad"); A("s_waitcnt lgkmcnt(0)"); A(f"s_add_u32 s95, s96, {pt*100}"); A(f"{lab}:"); A("s_memrealtime s[98:99]"); A("s_waitcnt lgkmcnt(0)")
                A("s_sub_u32 s98, s98, s95"); A("s_cmp_lt_i32 s98, 0"); A(f"s_cbranch_scc1 {lab}")
            if at is None: self.n += 1
            return
        if not CFG["stamps"]: return
        if i:
            A("s_waitcnt lgkmcnt(0)"); A(f"v_writelane_b32 v254, s96, {i-1}"); A(f"v_writelane_b32 v255, s98, {i-1}")
        A("s_memrealtime s[96:97]"); A("s_memtime s[98:99]")
        if at is None: self.n += 1
    def flush(self):
        if CFG.get("pad"): self.A("s_waitcnt vmcnt(0)"); self.mark(); return
        if not CFG["stamps"]: return
        A = self.A
        A("s_waitcnt vmcnt(0)"); self.mark(); self.mark(); n = self.n - 1
        A(f"v_writelane_b32 v254, s{MODE}, 30"); A(f"v_writelane_b32 v254, s{MYF}, 31")
        A(f"s_lshl_b32 s95, s2, 2"); A(f"s_add_u32 s95, s95, s{W}"); A("s_lshl_b32 s95, s95, 8"); A(f"s_add_u32 s95, s95, {STAMP_OFF}")
        A("s_mov_b64 exec, -1"); A(f"v_lshlrev_b32 v0, 2, {v(LANE)}"); A(f"s_mov_b32 exec_lo, {(1 << n) - 1 + (3 << 30)}"); A("s_mov_b32 exec_hi, 0")
        A(f"buffer_store_dword v254, v0, {S4(SWS)}, s95 offen"); A(f"buffer_store_dword v255, v0, {S4(SWS)}, s95 offen offset:128")

def swap01(A, dst, src, t):
    A(f"v_and_b32 {v(t)}, 1, {v(src)}"); A(f"v_lshlrev_b32 {v(t)}, 1, {v(t)}")
    A(f"v_bfe_u32 {v(dst)}, {v(src)}, 1, 1"); A(f"v_or_b32 {v(t)}, {v(t)}, {v(dst)}")
    A(f"v_and_b32 {v(dst)}, 4, {v(src)}"); A(f"v_or_b32 {v(dst)}, {v(dst)}, {v(t)}")

def make_sel(A, sel, t):
    A(f"v_lshrrev_b32 {v(t)}, 2, {v(LANE)}"); A(f"v_lshrrev_b32 {v(sel)}, 4, {v(LANE)}")
    A(f"v_xor_b32 {v(t)}, {v(t)}, {v(sel)}"); A(f"v_and_b32 {v(t)}, 1, {v(t)}")
    A(f"v_add_u32 {v(t)}, -1, {v(t)}")
    A(f"v_and_b32 {v(sel)}, 0x3f803f80, {v(t)}")
    for i in range(1, 4): A(f"v_mov_b32 {v(sel+i)}, {v(sel)}")

def poll(A, loads, regs, sleep=0, cnt=58):
    top, out = A.label("poll"), A.label("pollout")
    A(f"s_mov_b32 s{cnt}, {SPIN}")
    A(f"{top}:")
    A.ext(loads); A("s_waitcnt vmcnt(0)")
    for x in regs[1:]: A(f"v_min_u32 {v(regs[0])}, {v(regs[0])}, {v(x)}")
    A(f"v_cmp_eq_u32 vcc, 0, {v(regs[0])}")
    A(f"s_sub_u32 s{cnt}, s{cnt}, 1"); A(f"s_cbranch_scc1 {out}")
    if sleep:
        A(f"s_cbranch_vccz {out}"); A(f"s_sleep {sleep}"); A(f"s_branch {top}")
    else: A(f"s_cbranch_vccnz {top}")
    A(f"{out}:")

def publish(A, stores, mid, flag, local=True):
    if not local:
        A.ext(stores("sc1")); A.ext(mid); A.ext(flag("sc1")); return
    slow, done = A.label("st_slow"), A.label("st_done")
    A(f"s_cmp_eq_u32 s{MODE}, 0"); A(f"s_cbranch_scc1 {slow}")
    A.ext(stores("")); A.ext(mid); A.ext(flag("")); A(f"s_branch {done}")
    A(f"{slow}:")
    A.ext(stores("sc1")); A.ext(mid); A.ext(flag("sc1"))
    A(f"{done}:")

RSO, RA, RBA, RDS, RDH, RDAH, RCS, RLDS = 64, 65, 66, 67, 68, 69, 70, 71
RLV, RLT, RLC, RLO, RLF = 201, 202, 204, 212, 216
STG = 86016
def relayout_setup(A):
    t0, t1 = 2, 3
    two, none, done = A.label("rl2"), A.label("rl0"), A.label("rl_set")
    A(f"s_mul_i32 s{RLDS}, s{W}, 10240"); A(f"s_add_u32 s{RLDS}, s{RLDS}, {STG}")
    A(f"v_lshrrev_b32 {v(t0)}, 4, {v(LANE)}"); A(f"v_bfe_u32 {v(t1)}, {v(LANE)}, 2, 2"); A(f"v_lshl_add_u32 {v(t0)}, {v(t0)}, 3, {v(t1)}")
    A(f"v_and_b32 {v(t1)}, 3, {v(LANE)}"); A(f"v_lshlrev_b32 {v(t1)}, 4, {v(t1)}")
    A(f"v_lshl_add_u32 {v(t0)}, {v(t0)}, 6, {v(t1)}"); A(f"v_add_u32 {v(RLT)}, s{RLDS}, {v(t0)}")
    A(f"v_and_b32 {v(RLT+1)}, 15, {v(LANE)}"); A(f"v_lshlrev_b32 {v(RLT+1)}, 2, {v(RLT+1)}")
    for i in range(4): A(f"v_mov_b32 {v(RLO+i)}, 0x3f803f80")
    A(f"v_lshrrev_b32 {v(t0)}, 2, {v(LANE)}")
    A(f"s_mov_b32 s{RCS}, {OOB}")
    A("s_cmp_ge_u32 s2, 108"); A(f"s_cbranch_scc1 {two}")
    A(f"s_bitcmp1_b32 s{W}, 0"); A(f"s_cselect_b64 s[{SR}:{SR+1}], s[82:83], s[80:81]"); A(f"s_mov_b32 s{SR+2}, 2211840")
    A(f"s_mul_i32 s37, s2, {(65536+26)//27}"); A("s_lshr_b32 s37, s37, 16")
    A("s_mul_i32 s38, s37, 27"); A("s_sub_u32 s38, s2, s38"); A("s_lshl_b32 s38, s38, 1"); A(f"s_lshr_b32 s39, s{W}, 1"); A("s_add_u32 s38, s38, s39")
    A(f"s_mul_i32 s{RSO}, s37, {160*3456}"); A("s_lshl_b32 s39, s38, 6"); A(f"s_add_u32 s{RSO}, s{RSO}, s39")
    A(f"s_mov_b32 s{RA}, {16*3456}"); A(f"s_mov_b32 s{RBA}, {16*3456}"); A(f"s_mov_b32 s{RDH}, 2048"); A(f"s_mov_b32 s{RDAH}, {221184-2048}")
    A(f"s_and_b32 s39, s{W}, 1"); A("s_lshl_b32 s38, s38, 2"); A("s_add_u32 s38, s38, s39")
    A(f"s_mul_i32 s{RDS}, s37, {5*221184}"); A("s_lshl_b32 s39, s38, 10"); A(f"s_add_u32 s{RDS}, s{RDS}, s39"); A(f"s_add_u32 s{RDS}, s{RDS}, {WGU_OFF}")
    A(f"s_mul_i32 s{RCS}, s37, {108*128}"); A("s_lshl_b32 s39, s38, 6"); A(f"s_add_u32 s{RCS}, s{RCS}, s39"); A(f"s_add_u32 s{RCS}, s{RCS}, {CS_OFF}")
    A(f"v_mul_u32_u24 {v(t0)}, 3456, {v(t0)}")
    A(f"s_branch {done}")
    A(f"{two}:")
    A("s_sub_u32 s37, s2, 108"); A("s_mov_b32 s38, 819200"); A("s_cmp_lt_u32 s37, 54")
    A(f"s_cselect_b64 s[{SR}:{SR+1}], s[84:85], s[88:89]"); A(f"s_cselect_b32 s{SR+2}, 2211840, s38"); A("s_cselect_b32 s38, 0, 54")
    A("s_sub_u32 s38, s37, s38"); A(f"s_mul_i32 s{RSO}, s38, 40960"); A(f"s_mul_i32 s39, s{W}, 320"); A(f"s_add_u32 s{RSO}, s{RSO}, s39")
    A(f"s_mov_b32 s{RA}, {16*1280}"); A(f"s_mov_b32 s{RBA}, {(64-16*1280) & 0xffffffff}"); A(f"s_mov_b32 s{RDH}, 1024"); A(f"s_mov_b32 s{RDAH}, 1024")
    A(f"s_mul_i32 s{RDS}, s37, 40960"); A(f"s_mul_i32 s39, s{W}, 10240"); A(f"s_add_u32 s{RDS}, s{RDS}, s39"); A(f"s_add_u32 s{RDS}, s{RDS}, {WD_OFF}")
    A("s_cmp_lt_u32 s37, 74"); A(f"s_cselect_b32 s{RDS}, s{RDS}, {OOB}"); A(f"s_cselect_b32 s{SR+2}, s{SR+2}, 0")
    A(f"v_mul_u32_u24 {v(t0)}, 1280, {v(t0)}")
    A(f"{done}:")
    A(f"v_add_u32 {v(RLV)}, {v(t0)}, {v(t1)}")
def rl_dma(i):
    return [f"s_add_u32 m0, s{RLDS}, {i*1024}", f"s_add_u32 s{RSO}, s{RSO}, {'0' if i == 0 else 's%d' % (RA if i & 1 else RBA)}",
            f"buffer_load_dwordx4 {v(RLV)}, {S4(SR)}, s{RSO} offen lds"]
def rl_read(a_, hf): return [f"ds_read_b64_tr_b16 {v(RLF+8*(a_&1)+4*hf+2*q,2)}, {v(RLT)} offset:{2048*a_+256*q+8*hf}" for q in range(2)]
def rl_sum(a_, hf): return mf16(RLC+4*hf, RLO, RLF+8*(a_&1)+4*hf, "0" if a_ == 0 else None)
def rl_store(a_, hf): return [f"buffer_store_dwordx4 {v(RLF+8*(a_&1)+4*hf,4)}, {v(LV)}, {S4(SWS)}, s{RDS} offen sc1", f"s_add_u32 s{RDS}, s{RDS}, s{RDAH if hf else RDH}"]
def rl_cs(hf): return [f"buffer_store_dword {v(RLC+4*hf)}, {v(RLT+1)}, {S4(SWS)}, s{RCS} offen offset:{128*hf} sc1"]

WT = [(80, 2211840), (82, 2211840), (84, 2211840), (88, 819200)]
TV = 249
def wtouch(m_, so):
    p_, n_ = WT[m_]
    return [f"s_mov_b64 s[{SR}:{SR+1}], s[{p_}:{p_+1}]", f"s_mov_b32 s{SR+2}, {n_}", f"buffer_load_dword v248, {v(TV)}, {S4(SR)}, s{so} offen"]
def phase1(A, ST):
    rt, ct, wm, wn = 28, 29, 30, 31
    sox, sow, m0b, kst, sox1, sow1 = 32, 33, 34, 35, 58, 59
    SD = 52
    t0, t1, t2, t3 = 2, 3, 4, 5
    dmx, dmw, xa, wa = 8, 12, 16, 24
    sel, rs, cs, sq, tmp = 28, 32, 36, 40, 44
    ZR, ONE = 120, 124
    ACC, XF, WF = 128, 192, 200
    A("s_cmp_ge_u32 s2, 256"); A(f"s_cbranch_scc1 {K}_end")
    A("s_load_dwordx4 s[36:39], s[0:1], 0"); A("s_load_dwordx4 s[52:55], s[0:1], 64"); A("s_load_dwordx8 s[80:87], s[0:1], 32"); A("s_load_dwordx2 s[88:89], s[0:1], 16")
    A(f"v_lshrrev_b32 {v(t0)}, 6, v0"); A(f"v_and_b32 {v(LANE)}, 63, v0")
    A(f"v_readfirstlane_b32 s{W}, {v(t0)}")
    A(f"s_and_b32 s{GX}, s2, 7"); A(f"s_lshr_b32 s{GI}, s2, 3")
    A("s_getpc_b64 s[20:21]"); A(f"{K}_pc:")
    A(f"s_lshl_b32 s58, s{GI}, 2"); A(f"s_add_u32 s58, s58, s{W}"); A("s_lshl_b32 s58, s58, 7")
    A(f"v_and_b32 {v(PCV)}, 7, {v(LANE)}"); A(f"v_lshlrev_b32 {v(PCV)}, 14, {v(PCV)}"); A(f"v_add_u32 {v(PCV)}, s58, {v(PCV)}")
    A(f"v_min_u32 {v(PCV)}, {K}_end-{K}_pc, {v(PCV)}")
    A(CODE_TOUCH)
    A(f"s_lshr_b32 s56, s{GX}, 2"); A(f"s_lshl_b32 s{ct}, s56, 3"); A(f"s_lshr_b32 s57, s{GI}, 2"); A(f"s_add_u32 s{ct}, s{ct}, s57")
    A("s_lshl_b32 s56, s56, 1"); A(f"s_cmp_ge_u32 s{GI}, 28"); A("s_cselect_b32 s56, s56, 0"); A(f"s_cselect_b32 s{ct}, 7, s{ct}")
    A(f"s_and_b32 s57, s{GI}, 3"); A("s_add_u32 s57, s57, s56"); A(f"s_and_b32 s56, s{GX}, 3"); A("s_lshl_b32 s56, s56, 2"); A(f"s_add_u32 s{rt}, s56, s57")
    A(f"s_and_b32 s{wm}, s{W}, 1"); A(f"s_lshr_b32 s{wn}, s{W}, 1")
    A(f"v_lshlrev_b32 {v(LV)}, 4, {v(LANE)}")
    A(f"v_lshrrev_b32 {v(t0)}, 4, {v(LANE)}")
    A(f"v_and_b32 {v(t1)}, 7, {v(LANE)}"); A(f"v_xor_b32 {v(t1)}, {v(t1)}, {v(t0)}"); A(f"v_lshlrev_b32 {v(t1)}, 4, {v(t1)}")
    A(f"v_lshrrev_b32 {v(t2)}, 3, {v(LANE)}"); A(f"v_mul_u32_u24 {v(t2)}, 1280, {v(t2)}")
    A(f"v_add_u32 {v(dmx)}, {v(t1)}, {v(t2)}")
    A(f"v_xor_b32 {v(t1)}, 64, {v(t1)}"); A(f"v_add_u32 {v(t1)}, {v(t1)}, {v(t2)}"); A(f"v_add_u32 {v(dmx+1)}, 9216, {v(t1)}")
    A(f"v_add_u32 {v(dmx+2)}, {2*9216}, {v(dmx)}"); A(f"v_add_u32 {v(dmx+3)}, {2*9216}, {v(dmx+1)}")
    A(f"v_lshlrev_b32 {v(t1)}, 2, {v(t0)}"); A(f"v_and_b32 {v(t2)}, 15, {v(LANE)}"); A(f"v_xor_b32 {v(t1)}, {v(t1)}, {v(t2)}")
    A(f"v_lshlrev_b32 {v(t1)}, 4, {v(t1)}"); A(f"v_mul_u32_u24 {v(t2)}, 3840, {v(t0)}"); A(f"v_add_u32 {v(dmw)}, {v(t1)}, {v(t2)}")
    for b in range(1, 4): A(f"v_add_u32 {v(dmw+b)}, {b*14336}, {v(dmw)}")
    A(f"s_lshl_b32 s56, s{rt}, 2"); A(f"s_add_u32 s56, s56, s{W}"); A(f"s_mul_i32 s{sox}, s56, {32*1280}")
    A(f"s_mul_i32 s{sow}, s{W}, {16*3840}"); A(f"s_lshl_b32 s56, s{ct}, 8"); A(f"s_add_u32 s{sow}, s{sow}, s56")
    A(f"s_lshl_b32 s{m0b}, s{W}, 12")
    A(f"s_and_b32 s56, s{rt}, 3"); A("s_mul_i32 s56, s56, 5"); A("s_add_u32 s56, s56, 1"); A("s_lshr_b32 s56, s56, 1"); A(f"s_and_b32 s57, s{ct}, 7"); A("s_add_u32 s56, s56, s57")
    if CFG.get("norot"): A("s_mov_b32 s56, 0")
    A("s_cmp_ge_u32 s56, 10"); A("s_cselect_b32 s57, 10, 0"); A(f"s_sub_u32 s{kst}, s56, s57")
    A(f"s_sub_u32 s{kst}, s{kst}, 1")
    A("s_waitcnt lgkmcnt(0)")
    srd(A, SX, 36, 2621440); srd(A, SA, 38, 2457600); srd(A, SWS, 54, WS_SIZE)
    def dma_groups(stage):
        slot = stage % 5
        dx = lambda b: f"buffer_load_dwordx4 {v(dmx+b)}, {S4(SX)}, s{sox1} offen offset:{b*1024} lds"
        dw = lambda b: f"buffer_load_dwordx4 {v(dmw+b)}, {S4(SA)}, s{sow1} offen offset:{b*1024} lds"
        return [[f"s_add_u32 s{kst}, s{kst}, 1", f"s_cmp_eq_u32 s{kst}, 10", f"s_cselect_b32 s{kst}, 0, s{kst}", f"s_lshl_b32 s{sox1}, s{kst}, 7",
                 f"s_add_u32 m0, s{m0b}, {slot*32768}", f"s_add_u32 s{sox1}, s{sox1}, s{sox}", dx(0), dx(1)],
                [dx(2), dx(3)],
                [f"s_mul_i32 s{sow1}, s{kst}, {64*3840}", f"s_add_u32 m0, s{m0b}, {slot*32768+16384}", f"s_add_u32 s{sow1}, s{sow1}, s{sow}", dw(0), dw(1)],
                [dw(2), dw(3)]]
    PRE = CFG.get("p1pre", 2)
    lab = A.label("nodma")
    A("s_cmp_ge_u32 s2, 240"); A(f"s_cbranch_scc1 {lab}")
    for stg in range(PRE):
        for g in dma_groups(stg): A.ext(g)
    A(f"{lab}:")
    A(f"s_mov_b32 s{SD+2}, 256"); A(f"s_mov_b32 s{SD+3}, 0x20000")
    A(f"s_mov_b32 s{SR+3}, 0x20000"); A(f"v_lshlrev_b32 {v(TV)}, 7, {v(LANE)}")
    A(f"s_getreg_b32 s{MYF}, hwreg(HW_REG_XCC_ID, 0, 4)"); A(f"s_add_u32 s{MYF}, s{MYF}, 1")
    ST.mark()
    A("s_cmp_ge_u32 s2, 240"); A(f"s_cbranch_scc1 {K}_idle")
    A(f"v_and_b32 {v(t0)}, 31, {v(LANE)}"); A(f"v_lshrrev_b32 {v(t1)}, 5, {v(LANE)}")
    A(f"v_bfe_u32 {v(t2)}, {v(LANE)}, 1, 3"); A(f"v_xor_b32 {v(t2)}, {v(t2)}, {v(t1)}")
    A(f"s_lshl_b32 s56, s{wm}, 1"); A(f"s_add_u32 s56, s56, s{wn}"); A("s_lshl_b32 s56, s56, 12")
    A(f"v_lshlrev_b32 {v(t0)}, 7, {v(t0)}"); A(f"v_add_u32 {v(t0)}, s56, {v(t0)}")
    for ks in range(4):
        A(f"v_xor_b32 {v(t3)}, {2*ks}, {v(t2)}"); A(f"v_lshl_add_u32 {v(xa+ks)}, {v(t3)}, 4, {v(t0)}")
        A(f"v_xor_b32 {v(xa+4+ks)}, 4096, {v(xa+ks)}")
    A(f"v_bfe_u32 {v(t0)}, {v(LANE)}, 2, 2")
    A(f"v_lshl_add_u32 {v(t1)}, {v(t1)}, 3, {v(t0)}"); A(f"v_lshlrev_b32 {v(t1)}, 8, {v(t1)}")
    A(f"s_lshl_b32 s56, s{wn}, 1"); A(f"s_add_u32 s56, s56, s{wm}")
    A(f"v_xor_b32 {v(t0)}, s56, {v(t0)}"); A(f"v_lshl_add_u32 {v(t1)}, {v(t0)}, 6, {v(t1)}")
    A(f"v_bfe_u32 {v(t0)}, {v(LANE)}, 4, 1"); A(f"v_and_b32 {v(t2)}, 3, {v(LANE)}"); A(f"v_lshl_add_u32 {v(t0)}, {v(t0)}, 2, {v(t2)}")
    swap01(A, t2, t0, t3)
    A(f"v_lshl_add_u32 {v(t1)}, {v(t2)}, 3, {v(t1)}"); A(f"v_add_u32 {v(wa)}, 16384, {v(t1)}"); A(f"v_xor_b32 {v(wa+1)}, 64, {v(wa)}")
    make_sel(A, sel, t0)
    for i in range(4): A(f"v_mov_b32 {v(sq+i)}, 0")
    A(f"v_and_b32 {v(t2)}, 31, {v(LANE)}")
    A(f"s_lshl_b32 s40, s{wm}, 1"); A(f"s_add_u32 s40, s40, s{wn}"); A("s_lshl_b32 s40, s40, 7")
    A(f"s_lshl_b32 s41, s{wn}, 1"); A(f"s_add_u32 s41, s41, s{wm}"); A("s_lshl_b32 s41, s41, 7")
    xs, ws_, hh, sa, va = 6, 7, t3, 48, 52
    A(f"v_lshl_add_u32 {v(xs)}, {v(t2)}, 2, s40"); A(f"v_lshl_add_u32 {v(ws_)}, {v(t2)}, 2, s41")
    A(f"v_lshrrev_b32 {v(hh)}, 5, {v(LANE)}")
    A(f"s_lshl_b32 s36, s{rt}, 2"); A("s_lshr_b32 s37, s40, 7"); A("s_add_u32 s36, s36, s37"); A("s_xor_b32 s37, s36, 1")
    A(f"s_cmp_lt_u32 s{ct}, 5"); A(f"s_cselect_b32 s42, {hex(QSCALE)}, 1.0")
    done_ = CFG.get("idle_t", 2)*524288; per = -(-(2211840-done_)//(320*128))*128
    assert per <= 8192 and done_ >= 819200
    A(f"s_lshl_b32 s56, s2, 2"); A(f"s_add_u32 s56, s56, s{W}"); A(f"s_mul_i32 s57, s56, {(1 << 24)//320+1}"); A("s_lshr_b32 s57, s57, 24")
    A("s_mul_i32 s44, s57, 320"); A("s_sub_u32 s44, s56, s44"); A(f"s_mul_i32 s44, s44, {per}"); A(f"s_add_u32 s44, s44, {done_}")
    A("s_cmp_eq_u32 s57, 0"); A(f"s_cselect_b64 s[{SR}:{SR+1}], s[80:81], s[82:83]"); A("s_cmp_eq_u32 s57, 2"); A(f"s_cselect_b64 s[{SR}:{SR+1}], s[84:85], s[{SR}:{SR+1}]")
    A(f"s_mov_b32 s{SR+2}, 2211840"); A(f"v_min_u32 v55, {per-128}, {v(TV)}")
    A(f"s_cmp_ge_u32 s{ct}, 10"); A(f"s_cbranch_scc1 {K}_v")

    def base_of(stage): return {0: 0, 1: 0, 2: 65536, 3: 65536, 4: 131072}[stage % 5]
    def reads(g):
        stage, ks = divmod(g, 4); buf = g & 1
        so = (stage % 5)*32768 - base_of(stage)
        L = [f"ds_read_b128 {v(XF+16*buf,4)}, {v(xa+ks)} offset:{so}"]
        L += [f"ds_read_b64_tr_b16 {v(WF+16*buf+2*q,2)}, {v(wa)} offset:{so+(16*ks+4*q)*256}" for q in range(2)]
        L += [f"ds_read_b128 {v(XF+16*buf+4,4)}, {v(xa+4+ks)} offset:{so}"]
        L += [f"ds_read_b64_tr_b16 {v(WF+16*buf+4+2*q,2)}, {v(wa+1)} offset:{so+(16*ks+4*q)*256}" for q in range(2)]
        return L
    def mainloop(isv):
        if not isv:
            A("s_mul_i32 s36, s36, 2560"); A("s_mul_i32 s37, s37, 2560")
            A(f"s_lshl_b32 s38, s{ct}, 4"); A("s_lshr_b32 s39, s41, 5"); A("s_add_u32 s38, s38, s39")
            A("s_mov_b32 s39, 163840")
            for jw in range(2):
                for aa in range(2):
                    d = sa + 2*jw + aa
                    A(f"s_xor_b32 s43, s38, {4*jw}"); A(f"s_add_u32 s43, s43, {2*aa}")
                    A(f"v_add_u32 {v(tmp)}, s43, {v(hh)}"); A(f"v_mul_u32_u24 {v(tmp+1)}, 205, {v(tmp)}"); A(f"v_lshrrev_b32 {v(tmp+1)}, 10, {v(tmp+1)}")
                    A(f"v_mul_u32_u24 {v(tmp+2)}, 5, {v(tmp+1)}"); A(f"v_sub_u32 {v(tmp)}, {v(tmp)}, {v(tmp+2)}")
                    A(f"v_mul_u32_u24 {v(tmp+1)}, s39, {v(tmp+1)}"); A(f"v_lshl_add_u32 {v(tmp)}, {v(tmp)}, 9, {v(tmp+1)}")
                    A(f"v_lshl_add_u32 {v(d)}, {v(t2)}, 4, {v(tmp)}")
        else:
            A("s_mul_i32 s36, s36, 1280"); A("s_mul_i32 s37, s37, 1280"); A(f"s_add_u32 s36, s36, {V_OFF}"); A(f"s_add_u32 s37, s37, {V_OFF}")
            A(f"s_sub_u32 s38, s{ct}, 10"); A("s_lshl_b32 s38, s38, 7"); A("s_lshr_b32 s39, s41, 2"); A("s_add_u32 s38, s38, s39")
            A(f"v_lshrrev_b32 {v(tmp)}, 2, {v(t2)}"); swap01(A, tmp+1, tmp, tmp+2)
            A(f"v_and_b32 {v(tmp)}, 3, {v(t2)}"); A(f"v_lshl_add_u32 {v(tmp+3)}, {v(tmp+1)}, 2, {v(tmp)}")
            A("s_mov_b32 s39, 81920")
            for jw in range(2):
                A(f"s_xor_b32 s43, s38, {32*jw}")
                A(f"v_add_u32 {v(tmp)}, s43, {v(tmp+3)}"); A(f"v_mul_u32_u24 {v(tmp+1)}, 3277, {v(tmp)}"); A(f"v_lshrrev_b32 {v(tmp+1)}, 16, {v(tmp+1)}")
                A(f"v_mul_u32_u24 {v(tmp+2)}, 20, {v(tmp+1)}"); A(f"v_sub_u32 {v(tmp)}, {v(tmp)}, {v(tmp+2)}")
                A(f"v_mul_u32_u24 {v(tmp+1)}, s39, {v(tmp+1)}"); A(f"v_lshl_add_u32 {v(tmp)}, {v(tmp)}, 4, {v(tmp+1)}")
                A(f"v_mul_u32_u24 {v(tmp+1)}, 320, {v(hh)}"); A(f"v_add_u32 {v(sa+jw)}, {v(tmp)}, {v(tmp+1)}")
        A(f"v_lshlrev_b32 {v(va)}, 4, {v(hh)}"); A(f"v_add_u32 {v(va)}, s{40 if isv else 41}, {v(va)}"); A(f"v_xor_b32 {v(va+1)}, 128, {v(va)}")
        A(f"v_xor_b32 {v(va+2)}, 128, {v(ws_ if isv else xs)}")
        vq = [s_ for s_ in range(PRE) for _ in range(8)]
        def after(tag): return len(vq) - 1 - max(i for i, x in enumerate(vq) if x == tag)
        pend = [(s_, g) for s_ in range(PRE, 10) for g in dma_groups(s_)]
        A(f"s_waitcnt vmcnt({after(0)})"); A("s_barrier"); ST.mark(2)
        A.ext(reads(0))
        for g in range(40):
            stage, ks = divmod(g, 4); buf = g & 1
            X = lambda j: XF+16*buf+4*j
            Wf = lambda j: WF+16*buf+4*j
            A("s_waitcnt lgkmcnt(0)")
            if ks == 3 and stage < 9:
                assert vq.count(stage+1) == 8
                n = after(stage+1); A(f"s_waitcnt vmcnt({n})"); A("s_barrier")
            c0 = "0" if g == 0 else None
            mm = lambda jw, jx: mf32(ACC+32*jw+16*jx, X(jx), Wf(jw), c0) if isv else mf32(ACC+32*jw+16*jx, Wf(jw), X(jx), c0)
            mf = [mm(0,0), mm(0,1), mf16(rs, sel, X(0), c0), mm(1,0), mm(1,1), mf16(cs, sel, Wf(0), c0)]
            ops = reads(g+1) if g < 39 else []
            for _ in range(2):
                if pend and g >= 4*(pend[0][0]-5)+3 and (_ == 0 or pend[0][0] < 5 or g > 4*(pend[0][0]-5)+6):
                    s_, grp = pend.pop(0); ops = ops + grp; vq += [s_, s_]
            if not pend and "t" not in vq and CFG.get("busy_t", 1):
                ops = ops + [f"buffer_load_dword v248, v55, {S4(SR)}, s44 offen"]; vq.append("t")
            valu = []
            for i in range(4):
                valu += [f"v_and_b32 {v(tmp)}, 0xffff0000, {v(X(0)+i)}", f"v_lshlrev_b32 {v(tmp+1)}, 16, {v(X(0)+i)}",
                         f"v_fmac_f32 {v(sq)}, {v(tmp)}, {v(tmp)}", f"v_fmac_f32 {v(sq+1)}, {v(tmp+1)}, {v(tmp+1)}"]
            weave(A, mf, ops, valu, [6, 6, 2, 6, 6, 2])
            if ks == 2 and stage < 9 and base_of(stage+1) != base_of(stage):
                d = (base_of(stage+1) - base_of(stage)) & 0xffffffff
                A.ext([f"v_add_u32 {v(x)}, {d}, {v(x)}" for x in list(range(xa, xa+8)) + [wa, wa+1]])
        assert not pend
        ST.mark(3)
        A(f"v_add_f32 {v(sq)}, {v(sq)}, {v(sq+1)}"); A(f"v_mul_f32 {v(t0)}, {hex(f2u(-1/640))}, {v(rs)}"); A(f"v_mov_b32 {v(sq+1)}, {v(sq)}"); A("s_nop 1")
        A(f"v_permlane32_swap_b32 {v(sq)}, {v(sq+1)}"); A("s_nop 1")
        A(f"v_add_f32 {v(sq)}, {v(sq)}, {v(sq+1)}")
        A(f"v_mul_f32 {v(sq)}, {hex(f2u(1/640))}, {v(sq)}")
        A(f"v_fma_f32 {v(sq)}, -{v(t0)}, {v(t0)}, {v(sq)}"); A(f"v_max_f32 {v(sq)}, 0, {v(sq)}")
        A(f"v_add_f32 {v(sq)}, {hex(f2u(1e-5))}, {v(sq)}"); A(f"v_rsq_f32 {v(t1)}, {v(sq)}")
        A(f"ds_write_b32 {v(xs)}, {v(t0)} offset:512"); A(f"ds_write_b32 {v(ws_)}, {v(cs)} offset:1024")
        A(f"v_mul_f32 {v(t1)}, s42, {v(t1)}")
        A(f"ds_write_b32 {v(xs)}, {v(t1)}")
        PR, SC = 56, 120
        A("s_waitcnt lgkmcnt(0)"); A("s_barrier")
        if not isv:
            A(f"ds_read_b32 {v(SC+2)}, {v(va+2)}"); A(f"ds_read_b32 {v(SC+6)}, {v(va+2)} offset:512")
            for j in range(2):
                for rg in range(4): A(f"ds_read_b128 {v(PR+16*j+4*rg,4)}, {v(va+j)} offset:{1024+32*rg}")
            A(f"v_mov_b32 {v(SC)}, {v(t1)}"); A(f"v_mov_b32 {v(SC+4)}, {v(t0)}")
        else:
            A(f"ds_read_b32 {v(SC+2)}, {v(va+2)} offset:1024")
            for j in range(2):
                for rg in range(4): A(f"ds_read_b128 {v(PR+32*j+16+4*rg,4)}, {v(va+j)} offset:{512+32*rg}")
                for rg in range(4): A(f"ds_read_b128 {v(PR+32*j+4*rg,4)}, {v(va+j)} offset:{32*rg}")
                if j == 0: A("s_waitcnt lgkmcnt(6)")
            A(f"v_mov_b32 {v(SC)}, {v(cs)}")
        A("s_waitcnt lgkmcnt(0)")
        for jw in range(2):
            for jx in range(2):
                ac = ACC+32*jw+16*jx
                for i in range(0, 16, 2):
                    if not isv: A(f"v_pk_fma_f32 {v(ac+i,2)}, {v(PR+16*jw+i,2)}, {v(SC+4+2*jx,2)}, {v(ac+i,2)} op_sel_hi:[1,0,1]")
                    else: A(f"v_pk_fma_f32 {v(ac+i,2)}, {v(PR+32*jx+16+i,2)}, {v(SC+2*jw,2)}, {v(ac+i,2)} op_sel_hi:[1,0,1]")
                for i in range(0, 16, 2):
                    if not isv: A(f"v_pk_mul_f32 {v(ac+i,2)}, {v(ac+i,2)}, {v(SC+2*jx,2)} op_sel_hi:[1,0]")
                    else: A(f"v_pk_mul_f32 {v(ac+i,2)}, {v(ac+i,2)}, {v(PR+32*jx+i,2)}")
                o = XF + 8*(2*jw+jx)
                for i in range(8): A(f"v_cvt_pk_bf16_f32 {v(o+i)}, {v(ac+2*i)}, {v(ac+2*i+1)}")
                for aa in range(2):
                    if not isv: A(f"buffer_store_dwordx4 {v(o+4*aa,4)}, {v(sa+2*jw+aa)}, {S4(SWS)}, s{36+jx} offen sc1")
                    else: A(f"buffer_store_dwordx4 {v(o+4*aa,4)}, {v(sa+jw)}, {S4(SWS)}, s{36+jx} offen offset:{640*aa} sc1")
    mainloop(False)
    A(f"s_branch {K}_p1done")
    A(f"{K}_idle:")
    ST.mark(2); ST.mark(3)
    for i in range(4): A(f"v_mov_b32 {v(8+i)}, 0"); A(f"v_mov_b32 {v(4+i)}, 0x3f803f80")
    A(f"s_sub_u32 s{rt}, s2, 240"); A(f"v_mov_b32 v3, {OOB}")
    A(f"s_mul_i32 s56, s{rt}, 5504"); A(f"s_add_u32 s56, s56, {F2_OFF}"); A("v_lshlrev_b32 v2, 4, v0")
    A(f"buffer_store_dwordx4 v[8:11], v2, {S4(SWS)}, s56 offen sc1"); A(f"buffer_store_dwordx4 v[8:11], v2, {S4(SWS)}, s56 offen offset:1408 sc1")
    A(f"s_lshl_b32 s57, s{rt}, 3"); A("v_add_u32 v2, s57, v0")
    A("v_mul_u32_u24 v2, 640, v2"); A("v_cmp_gt_u32 vcc, 8, v0"); A("s_nop 1"); A("v_cndmask_b32 v2, v3, v2, vcc")
    A(f"s_mov_b32 s56, {V_OFF + 32*81920}")
    A(f"buffer_store_dwordx4 v[4:7], v2, {S4(SWS)}, s56 offen sc1")
    A(f"s_lshl_b32 s56, s2, 7"); A(f"s_add_u32 s56, s56, {F1_OFF}"); A(f"v_mov_b32 v12, s{MYF}"); A(f"buffer_store_dword v12, off, {S4(SWS)}, s56 sc1")
    A(f"s_lshl_b32 s57, s{rt}, 2"); A(f"s_cmp_eq_u32 s{W}, 0"); A(f"s_cselect_b32 s57, s57, {OOB}"); A("v_mov_b32 v2, 1")
    A("s_waitcnt vmcnt(0)"); A("s_barrier")
    A("s_mov_b64 exec, 1"); A(f"buffer_store_dword v2, off, {S4(SD)}, s57 sc1"); A("s_mov_b64 exec, -1")
    A(f"s_lshl_b32 s56, s{rt}, 2"); A(f"s_add_u32 s56, s56, s{W}"); A("s_lshl_b32 s56, s56, 13")
    for it in range(CFG.get("idle_t", 2)):
        for m_ in range(4):
            if it*524288 < WT[m_][1]: A.ext(wtouch(m_, 56))
        A("s_add_u32 s56, s56, 524288")
    A(f"s_branch {K}_p1done")
    A(f"{K}_v:")
    mainloop(True)
    A(f"{K}_p1done:")
    ST.n = 4
    ST.mark()
    A(f"v_lshlrev_b32 v2, 2, {v(LANE)}"); A(f"v_mov_b32 v3, s{MYF}")
    A(f"s_lshl_b32 s56, s2, 7"); A(f"s_add_u32 s56, s56, {F1_OFF}"); A(f"s_cmp_eq_u32 s{W}, 0"); A(f"s_cselect_b32 s56, s56, {OOB}")
    A("s_mov_b64 exec, 0xffff")
    poll(A, [f"buffer_load_dword v4, v2, {S4(SD)}, 0 offen sc1"], [4], sleep=8)
    A("s_barrier")
    A("s_mov_b64 exec, 1"); A(f"buffer_store_dword v3, off, {S4(SWS)}, s56 sc1"); A("s_mov_b64 exec, -1")
    ST.mark()
    relayout_setup(A)

def w3reg(f): return 256 + 192 + 4*f if f < 16 else 148 + 4*(f-16)
WV = 250
P3RES, P3CS = 184, 194
SK_WR, SK_RD, SK_RM = 242, 245, 246
def p3_wload(f):
    ks, u = divmod(f, 5)
    L = [f"buffer_load_dwordx4 {r(w3reg(f),4)}, {v(WV if u < 4 else WV+1)}, {S4(SWS)}, s44 offen offset:{1024*(u&3)} sc1"]
    if u == 4: L.append("s_add_u32 s44, s44, 40960")
    return L
CMB = 86016

def TOUCHES(key="touch", dflt=""): return [(int(x.split(":")[0]), x.split(":")[1]) for x in str(CFG.get(key, dflt)).split(",") if x]
def gtouch(what):
    c, k_ = what[0], int(what[1:] or 0)
    reg, vr, base = {"n": (76, 145, HH_OFF + 1152*k_), "N": (76, TV, HH_OFF + 3456*k_), "h": (90, 147, H_OFF + 1280*k_), "o": (90, 147, O_OFF + 1280*k_),
                     "s": (93, None, STAT_OFF), "g": (79, TV, WGU_OFF + 442368*k_), "d": (79, TV, WD_OFF + 442368*k_)}[c]
    return [f"s_add_u32 s91, s{reg}, {base}", f"buffer_load_dword v248, {v(vr) if vr else 'off'}, {S4(SWS)}, s91 {'offen' if vr else ''} sc1"]
def phase2(A, ST):
    odd, sok, sov, sox, redo, sob, sfr, stch = 28, 72, 73, 74, 32, 33, 34, 35
    S0, S1, P, E, O0 = 16, 48, 80, 96, 104
    kv, kxv, vv, ov, oxv, cw, cr, tv = 136, 137, 138, 139, 140, 141, 144, 145
    OA, QM, QX, KR, VR, XR = 256, 256+96, 256+128, 256+136, 256+152, 256+184
    Oreg = lambda lp: O0 if lp == 0 else OA + 32*(lp-1)
    t0, t1, t2, t3, t4 = 2, 3, 4, 5, 6
    LD = CFG.get("ld", "sc1")
    head, qb = 30, 31
    if CFG.get("hl", 1):
        A(f"s_lshl_b32 s{head}, s{GX}, 2"); A(f"s_and_b32 s36, s{GI}, 3"); A(f"s_add_u32 s{head}, s{head}, s36"); A(f"s_lshr_b32 s{qb}, s{GI}, 2")
    else:
        A(f"s_mov_b32 s{head}, s{GI}"); A(f"s_mov_b32 s{qb}, s{GX}")
    A(f"s_and_b32 s{odd}, s{head}, 1")
    A(f"s_lshr_b32 s36, s{head}, 1"); A("s_mul_i32 s37, s36, 163840")
    A(f"s_add_u32 s38, s37, {16*163840}"); A(f"s_add_u32 s{SA}, s{SWS}, s38"); A(f"s_addc_u32 s{SA+1}, s{SWS+1}, 0"); A(f"s_mov_b32 s{SA+2}, 163840")
    A(f"s_lshl_b32 s38, s{qb}, 2"); A(f"s_add_u32 s39, s38, s{W}")
    A(f"s_mul_i32 s{sob}, s39, 81920"); A("s_mul_i32 s36, s36, 1280"); A(f"s_add_u32 s{sob}, s{sob}, s36"); A(f"s_add_u32 s{sob}, s{sob}, {O_OFF}")
    for i in range(4):
        A(f"s_add_u32 s36, s{W}, {i}"); A("s_and_b32 s36, s36, 3")
        if i: A("s_mul_i32 s39, s36, 18432"); A(f"s_add_u32 s39, s39, {CMB+(i-1)*6144}"); A(f"v_add_u32 {v(cw+i-1)}, s39, {v(LV)}")
        else: A("s_mul_i32 s39, s36, 18432"); A(f"s_add_u32 s39, s39, {CMB}"); A(f"v_add_u32 {v(cr)}, s39, {v(LV)}")
        A("s_add_u32 s36, s36, s38"); A("s_mul_i32 s36, s36, 5120"); A(f"s_add_u32 s{40+i}, s36, s37")
    A(f"s_mul_i32 s36, s{odd}, 1536"); A(f"v_add_u32 {v(kv)}, s36, {v(LV)}")
    A(f"v_and_b32 {v(t0)}, 31, {v(LANE)}"); A(f"v_lshrrev_b32 {v(t1)}, 5, {v(LANE)}")
    A(f"s_lshl_b32 s36, s{odd}, 3"); A("s_add_u32 s37, s36, 1024")
    A(f"v_lshl_add_u32 {v(t4)}, {v(t0)}, 4, s37")
    A(f"v_mul_u32_u24 {v(t2)}, 2560, {v(t1)}"); A(f"v_add_u32 {v(kxv)}, {v(t4)}, {v(t2)}")
    A(f"v_bfe_u32 {v(t2)}, {v(LANE)}, 4, 1"); A(f"v_mul_u32_u24 {v(t2)}, 20480, {v(t2)}"); A(f"v_and_b32 {v(t3)}, 15, {v(LANE)}"); A(f"v_lshl_add_u32 {v(t2)}, {v(t3)}, 4, {v(t2)}")
    A("s_add_u32 s37, s36, 512"); A(f"v_add_u32 {v(oxv)}, s37, {v(t2)}")
    A(f"s_mul_i32 s37, s{odd}, 768"); A(f"v_lshl_add_u32 {v(t2)}, {v(t1)}, 8, {v(t2)}"); A(f"v_add_u32 {v(ov)}, s37, {v(t2)}")
    A(f"v_lshrrev_b32 {v(t2)}, 2, {v(t0)}"); swap01(A, t3, t2, 7)
    A(f"v_and_b32 {v(t2)}, 3, {v(t0)}"); A(f"v_lshl_add_u32 {v(t2)}, {v(t3)}, 2, {v(t2)}")
    A(f"s_lshl_b32 s36, s{odd}, 2"); A(f"v_add_u32 {v(t2)}, s36, {v(t2)}")
    A(f"v_add_u32 {v(t3)}, -20, {v(t2)}"); A(f"v_min_u32 {v(t2)}, {v(t2)}, {v(t3)}")
    A(f"v_mul_u32_u24 {v(t3)}, 320, {v(t1)}"); A(f"v_lshl_add_u32 {v(t2)}, {v(t2)}, 4, {v(t3)}")
    A(f"v_mov_b32 {v(t3)}, {OOB}"); A(f"v_cmp_gt_u32 vcc, 20, {v(t0)}"); A("s_nop 1"); A(f"v_cndmask_b32 {v(t2)}, {v(t3)}, {v(t2)}, vcc")
    A(f"s_sub_u32 s36, 32, s{head}"); A("s_mul_i32 s36, s36, 81920"); A(f"v_mov_b32 {v(t3)}, s36")
    A(f"v_cmp_eq_u32 vcc, 20, {v(t0)}"); A("s_nop 1"); A(f"v_cndmask_b32 {v(vv)}, {v(t2)}, {v(t3)}, vcc")
    A(f"s_mul_i32 s{sok}, s{W}, {16*2560}"); A(f"s_mov_b32 s{sox}, s{sok}")
    A(f"s_mul_i32 s{sov}, s{head}, 81920"); A(f"s_mul_i32 s36, s{W}, {16*1280}"); A(f"s_add_u32 s{sov}, s{sov}, s36"); A(f"s_add_u32 s{sov}, s{sov}, {V_OFF}")
    A(f"s_mov_b32 s{redo}, 0")
    A(f"v_add_u32 v252, 4096, {v(LV)}")
    A(f"s_bfe_u32 s36, s{GI}, 0x10002"); A("s_lshl_b32 s37, s36, 10"); A(f"v_add_u32 {v(WV)}, s37, {v(LV)}")
    A("s_xor_b32 s36, s36, 1"); A("s_lshl_b32 s37, s36, 12"); A(f"v_add_u32 {v(WV+1)}, s37, {v(LV)}")
    A(f"s_lshr_b32 s36, s{GI}, 2"); A("s_mul_i32 s36, s36, 5120"); A(f"s_mul_i32 s44, s{W}, {5*40960}"); A("s_add_u32 s44, s44, s36"); A(f"s_add_u32 s44, s44, {WO_OFF}")
    skinny_addr(A); p4_setup(A)
    A(f"s_lshl_b32 s75, s{P4_ST}, 7"); A(f"s_add_u32 s75, s75, {CS_OFF}"); A("v_lshlrev_b32 v146, 2, v0")
    A(f"s_lshl_b32 s{sfr}, s2, 5"); A(f"s_add_u32 s{sfr}, s{sfr}, s{W}"); A(f"s_lshl_b32 s{sfr}, s{sfr}, 2"); A(f"s_add_u32 s{sfr}, s{sfr}, {FR_OFF}")
    A("s_cmp_lt_u32 s2, 192"); A(f"s_cselect_b32 s{sfr}, s{sfr}, {OOB}"); A(f"v_min_u32 v11, {47*128}, {v(TV)}")
    A(f"s_lshl_b32 s36, s{GX}, 5"); A(f"s_add_u32 s36, s36, s{GI}"); A("s_lshl_b32 s36, s36, 2"); A(f"s_add_u32 s36, s36, s{W}")
    A("s_mul_i32 s76, s36, 6912"); A("s_mul_i32 s90, s36, 2560"); A("s_lshl_b32 s93, s36, 7")
    A("s_and_b32 s79, s36, 127"); A("s_mul_i32 s79, s79, 3456")
    A(f"v_min_u32 {v(tv)}, {8*128}, {v(TV)}"); A(f"v_min_u32 v147, {9*128}, {v(TV)}"); A(f"v_min_u32 {v(TV)}, {26*128}, {v(TV)}")
    A(f"v_and_b32 v8, 31, {v(LANE)}"); A("v_lshlrev_b32 v8, 10, v8"); A(f"s_lshl_b32 s77, s{GX}, 7"); A(f"s_add_u32 s77, s77, {F1_OFF}"); A("v_mov_b32 v10, 1")
    A(f"s_mul_i32 s78, s{W}, {48*128}"); A(f"s_add_u32 s78, s78, {FR_OFF}")
    A("s_and_b32 s36, s2, 0x7f"); A("s_lshl_b32 s36, s36, 7"); A(f"s_add_u32 s36, s36, {F1_OFF}")
    lab = A.label("busy"); A("s_cmp_lt_u32 s2, 240"); A(f"s_cbranch_scc1 {lab}")
    poll(A, [f"buffer_load_dword v4, off, {S4(SWS)}, s36 sc1"], [4], sleep=6)
    A(f"{lab}:")
    A("v_lshlrev_b32 v2, 7, v0"); A(f"s_mov_b32 s36, {F1_OFF}")
    poll(A, [f"buffer_load_dword v4, v2, {S4(SWS)}, s36 offen sc1"], [4])
    A("s_barrier")
    ST.mark()
    Kr = lambda t: KR + 4*(t % 4)
    Vr = lambda t, sx: VR + 8*(t % 4) + 4*sx
    Xr = lambda j: XR + 2*(j % 2)
    def ldk(t): return [f"buffer_load_dwordx4 {r(Kr(t),4)}, {v(kv)}, {S4(SA)}, s{sok} offen offset:{2560*(t&1)} {LD}"] + ([f"s_add_u32 s{sok}, s{sok}, 5120"] if t & 1 else [])
    def ldx(j): return [f"buffer_load_dwordx2 {r(Xr(j),2)}, {v(kxv)}, {S4(SA)}, s{sox} offen sc1", f"s_add_u32 s{sox}, s{sox}, 5120"]
    def ldv(t, sx): return [f"buffer_load_dwordx4 {r(Vr(t,sx),4)}, {v(vv)}, {S4(SWS)}, s{sov} offen offset:{1280*(t&1)+640*sx} {LD}"] + ([f"s_add_u32 s{sov}, s{sov}, 2560"] if (t & 1 and sx) else [])
    def ldq(lp): return ([f"buffer_load_dwordx2 {r(QX+2*lp,2)}, {v(kxv)}, {S4(SWS)}, s{40+lp} offen sc1"] +
                         [f"buffer_load_dwordx4 {r(QM+8*lp+4*j,4)}, {v(kv)}, {S4(SWS)}, s{40+lp} offen offset:{2560*j} sc1" for j in range(2)])
    Q = VQ()
    order = (1, 2, 3, 0)
    for tag, ops in ((("x", 0), ldx(0)), (("k", 0), ldk(0)), (("q", 1), ldq(1)), (("q", 2), ldq(2)), (("v", 0, 0), ldv(0, 0)), (("v", 0, 1), ldv(0, 1)),
                     (("q", 3), ldq(3)), (("q", 0), ldq(0))):
        A.ext(Q.add(tag, ops))
    side = {b: [] for b in range(64)}
    mid = {b: [] for b in range(64)}
    def put(b, tag, ops): side[b] += [(tag, x) for x in ops]
    put(0, ("k", 1), ldk(1)); put(0, ("v", 1, 0), ldv(1, 0)); put(1, ("v", 1, 1), ldv(1, 1)); put(1, ("x", 1), ldx(1)); put(1, ("k", 2), ldk(2))
    put(2, ("v", 2, 0), ldv(2, 0)); put(2, ("v", 2, 1), ldv(2, 1)); put(2, ("k", 3), ldk(3)); put(3, ("v", 3, 0), ldv(3, 0)); put(3, ("v", 3, 1), ldv(3, 1))
    for t in range(12):
        put(4*t+3 + (t == 0), ("k", t+4), ldk(t+4)); put(4*t+4, ("v", t+4, 0), ldv(t+4, 0)); put(4*t+5, ("v", t+4, 1), ldv(t+4, 1))
    for j in range(6): put(8*j+6, ("x", j+2), ldx(j+2))
    for b in (7, 23, 39, 55): put(b, "pc", [CODE_TOUCH])
    B0 = CFG.get("b0", 4); B1 = B0 + CFG.get("b1", 8)
    if not CFG.get("noside"):
        put(3, "grp", [f"buffer_load_dword v9, v8, {S4(SWS)}, s77 offen sc1"])
        for i in range(10): put(B0+i, ("rd", i), rl_dma(i))
        for a_ in range(5):
            put(B1+2*a_, None, [("wait", ("rd", 2*a_+1))] + rl_read(a_, 0) + rl_read(a_, 1))
            put(B1+2*a_+1, "rs", ["s_waitcnt lgkmcnt(0)"] + rl_store(a_, 0) + rl_store(a_, 1)); mid[B1+2*a_+1] += [rl_sum(a_, 0), rl_sum(a_, 1)]
        put(B1+10, "rs", rl_cs(0) + rl_cs(1))
        B2 = B1 + 10 + CFG.get("b2", 5)
        put(B2, "fr", [("wait", "rs"), f"buffer_store_dword v10, off, {S4(SWS)}, s{sfr} sc1"])
        put(8, None, [("wait", "grp"), f"v_cmp_ne_u32 vcc, s{MYF}, v9", "s_nop 0", "s_cmp_eq_u64 vcc, 0", f"s_cselect_b32 s{MODE}, {0 if CFG.get('safe') else 1}, 0"])
        put(9, None, [f"s_cmp_eq_u32 s{MODE}, 0", f"s_cselect_b32 s{stch}, {OOB}, 0", f"s_add_u32 s76, s76, s{stch}", f"s_add_u32 s90, s90, s{stch}", f"s_add_u32 s93, s93, s{stch}"])
        B3 = B2 + CFG.get("b3", 5)
        frl = [f"buffer_load_dwordx4 {v(RLF,4)}, v11, {S4(SWS)}, s78 offen sc1"]
        put(B3, "frl", frl)
        chk = [f"v_min3_u32 {v(RLF)}, {v(RLF)}, {v(RLF+1)}, {v(RLF+2)}", f"v_min_u32 {v(RLF)}, {v(RLF)}, {v(RLF+3)}", f"v_cmp_eq_u32 vcc, 0, {v(RLF)}"]
        put(B3+3, None, [("wait", "frl")] + chk + ["s_nop 0", f"s_cbranch_vccnz {K}_frspin", f"{K}_frok:", "s_barrier"])
        pf = [x for st_ in range(3) for x in p4_dma(st_)]
        pf += [x for kq in range(4) for x in (f"buffer_load_dword {v(P3CS+kq)}, v146, {S4(SWS)}, s75 offen sc1", f"s_add_u32 s75, s75, {108*128}")]
        pf += io_rm("load", P3RES, SX)
        pf += [x for f in range(25) for x in p3_wload(f)]
        for b_, what in TOUCHES(): put(b_, "t", gtouch(what))
        PE = CFG.get("pfe", 61); nreal = sum(not is_salu(x) for x in pf)
        for b in range(B3+4, PE):
            take = -(-nreal//(PE-b))
            while pf and (take > 0 or is_salu(pf[0])):
                x = pf.pop(0); put(b, "pf", [x])
                if not is_salu(x): take -= 1; nreal -= 1
    else: A(f"s_mov_b32 s{MODE}, 1")
    for n in range(3):
        lp = order[n]
        put(61+n, None, [f"ds_write_b128 {v(cw+lp-1)}, {r(Oreg(lp)+16*j+4*g,4)} offset:{3072*j+1024*g}" for j in range(2) for g in range(3)])
    A.ext(Q.wait(("q", 1)))
    A(mf2b(S0, Xr(0), QX+2, "0", 0)); A("s_nop 15"); A("s_nop 1")
    A(mf32(S0, Kr(0), QM+8)); A(mf32(S0+16, Kr(0), QM+12))
    A.ext(Q.wait(("q", 2)))
    ST.mark()
    A("s_nop 10"); A(".p2align 3")
    def needs(b, k):
        if b > 63: return []
        t, t1_, lp1 = b >> 2, (b+1) >> 2, order[(b+1) & 3]
        if k == 0: return [("x", t1_ >> 1), ("q", lp1)] if b < 63 else []
        if k == 4: return [("k", t1_)] if b < 63 else []
        if k == 3: return [("v", t, 0)]
        if k == 6: return [("v", t, 1)]
        return []
    for b in range(64):
        t, lp = b >> 2, order[b & 3]
        t1_, lp1 = (b+1) >> 2, order[(b+1) & 3]
        cur, nxt = (S0, S1) if b % 2 == 0 else (S1, S0)
        c0 = "0" if t == 0 else None
        mf = {3: mf32(Oreg(lp), Vr(t, 0), P, c0), 6: mf32(Oreg(lp), Vr(t, 1), P+4), 7: mf32(Oreg(lp)+16, Vr(t, 0), P+8, c0)}
        if b: mf[2] = mf32(Oreg(order[(b-1) & 3])+16, Vr((b-1) >> 2, 1), P+12)
        if b < 63:
            mf[0] = mf2b(nxt, Xr(t1_ >> 1), QX+2*lp1, "0", t1_ & 1); mf[4] = mf32(nxt, Kr(t1_), QM+8*lp1); mf[5] = mf32(nxt+16, Kr(t1_), QM+8*lp1+4)
        q = side[b]; mq = list(mid[b])
        if b in ASTAMPS(): ST.mark()
        for k in range(8):
            if k in mf: A(mf[k])
            n0 = len(A.L)
            if k >= 2:
                tags = needs(b, k+1) if k < 7 else needs(b+1, 0)
                w_ = Q.wait(*tags) if tags else []
                A.ext(w_)
                free = not w_; nmem = 0
                left = sum(1 for tg, x in q if not (isinstance(x, tuple) or is_salu(x) or x.startswith("v_") or x.endswith(":")))
                want = -(-left//(8-k))
                while q:
                    tg, x = q[0]
                    if isinstance(x, tuple):
                        if not free and k < 7 and CFG.get("strict", 1): break
                        q.pop(0); w_ = Q.wait(x[1]); A.ext(w_); free = free and not w_
                    elif x.endswith(":") or x.startswith("v_"): q.pop(0); A(x); free = False; nmem = 99 if k < 7 else nmem
                    elif is_salu(x):
                        if not free and k < 7 and len(q) <= 2*(7-k): break
                        q.pop(0); A(x); free = False
                    else:
                        if nmem >= max(want, 1) and k < 7: break
                        q.pop(0); A.ext(Q.add(tg, [x])); nmem += 1; free = False
            four = sum(1 for x in A.L[n0:] if isize(x) == 4)
            pk = (k-1) % 8; eb = E + 4*(pk & 1)
            if b or k:
                for j in range(2): A(f"v_cvt_pk_bf16_f32 {v(P+2*pk+j)}, {v(eb+2*j)}, {v(eb+2*j+1)}")
            for j in range(4):
                wide = j == 0 and four % 2 == 1 and CFG.get("align", 1)
                A(f"v_exp_f32{'_e64' if wide else ''} {v(E+4*(k&1)+j)}, {v(cur+4*k+j)}")
                if j == 1 and k >= 3 and mq and not any(x == "s_waitcnt lgkmcnt(0)" for _, x in q): A(mq.pop(0))
        assert not q and not mq, (b, q)
    for j in range(2): A(f"v_cvt_pk_bf16_f32 {v(P+14+j)}, {v(E+4+2*j)}, {v(E+5+2*j)}")
    A("s_waitcnt lgkmcnt(0)"); A("s_barrier")
    A(mf32(O0+16, Vr(15, 1), P+12))
    ST.mark()
    for sl in range(3):
        for j in range(2):
            for g in range(3): A(f"ds_read_b128 {v(S0+24*sl+12*j+4*g,4)}, {v(cr)} offset:{6144*sl+3072*j+1024*g}")
        if sl == 1: A("s_waitcnt lgkmcnt(6)")
    A(f"s_lshl_b32 s38, s{qb}, 2"); A(f"s_add_u32 s38, s38, s{W}"); A("s_lshl_b32 s38, s38, 2"); A(f"s_lshr_b32 s39, s{head}, 3"); A("s_add_u32 s38, s38, s39"); A("s_lshl_b32 s38, s38, 5")
    A(f"s_and_b32 s39, s{head}, 7"); A("s_add_u32 s38, s38, s39"); A("s_lshl_b32 s38, s38, 2"); A(f"s_add_u32 s38, s38, {F2_OFF}")
    A(f"s_add_u32 s39, s{sob}, 40960")
    for sl in range(3):
        if sl: A(f"s_waitcnt lgkmcnt({12-6*sl})")
        for j in range(2):
            for i in range(0, 12, 2): A(f"v_pk_add_f32 {v(O0+16*j+i,2)}, {v(O0+16*j+i,2)}, {v(S0+24*sl+12*j+i,2)}")
    A(f"{K}_anorm:")
    A(f"v_mov_b32 v12, {v(O0+8)}"); A(f"v_mov_b32 v13, {v(O0+8)}"); A(f"v_mov_b32 v14, {v(O0+24)}"); A(f"v_mov_b32 v15, {v(O0+24)}")
    A(f"s_mov_b32 s36, {hex(f2u(2.0**60))}"); A(f"s_mov_b32 s37, {hex(f2u(2.0**-60))}")
    A("v_permlane32_swap_b32 v12, v13"); A("v_permlane32_swap_b32 v14, v15"); A("s_nop 1")
    A("v_rcp_f32 v12, v13"); A("v_rcp_f32 v14, v15")
    A("v_cmp_nlt_f32_e64 vcc, v13, s36"); A("v_cmp_nlt_f32_e64 s[40:41], v15, s36"); A("v_cmp_ngt_f32_e64 s[42:43], v13, s37"); A("v_cmp_ngt_f32_e64 s[56:57], v15, s37")
    A("s_or_b64 vcc, vcc, s[40:41]"); A("s_or_b64 vcc, vcc, s[42:43]"); A("s_or_b64 vcc, vcc, s[56:57]"); A(f"s_cbranch_scc1 {K}_aslow")
    A(f"{K}_afin:")
    for j in range(2):
        for i in range(0, 12, 2): A(f"v_pk_mul_f32 {v(O0+16*j+i,2)}, {v(O0+16*j+i,2)}, {v(12+2*j,2)} op_sel_hi:[1,0]")
        for i in range(6): A(f"v_cvt_pk_bf16_f32 {v(S0+8*j+i)}, {v(O0+16*j+2*i)}, {v(O0+16*j+2*i+1)}")
    def stores(fl):
        L = [f"buffer_store_dwordx4 {v(S0+8*j,4)}, {v(ov)}, {S4(SWS)}, s{sob if j == 0 else 39} offen {fl}" for j in range(2)]
        L.append("s_mov_b32 exec_hi, 0")
        L += [f"buffer_store_dwordx2 {v(S0+8*j+4,2)}, {v(oxv)}, {S4(SWS)}, s{sob if j == 0 else 39} offen {fl}" for j in range(2)]
        return L
    publish(A, stores, ["s_mov_b64 exec, 1", "s_waitcnt vmcnt(0)"], lambda fl: [f"buffer_store_dword v10, off, {S4(SWS)}, s38 {fl}", "s_mov_b64 exec, -1"], local=not CFG.get("hl", 1))
    ST.mark()
    def cold():
        if not CFG.get("noside"):
            A(f"{K}_frspin:")
            poll(A, frl, list(range(RLF, RLF+4)), sleep=8)
            A(f"s_branch {K}_frok")
        NM = S1
        A(f"{K}_aslow:")
        A(f"s_cmp_lg_u32 s{redo}, 0"); A(f"s_cbranch_scc1 {K}_afin")
        A(f"s_mov_b32 s{redo}, 1"); A(f"s_mov_b32 s{sok}, 0"); A(f"s_mov_b32 s{sox}, 0")
        A("v_mov_b32 v12, 0xff800000"); A("v_mov_b32 v13, 0xff800000")
        def scores(e, c):
            A(mf2b(S0, Xr(0), QX, c, e)); A("s_nop 15"); A("s_nop 1")
            A(mf32(S0, Kr(e), QM)); A(mf32(S0+16, Kr(e), QM+4)); A("s_nop 11")
        A(f"{K}_mloop:")
        A.ext(ldx(0) + ldk(0) + ldk(1)); A("s_waitcnt vmcnt(0)")
        for e in range(2):
            scores(e, "0")
            for j in range(2):
                for i in range(0, 16, 2): A(f"v_max3_f32 {v(12+j)}, {v(12+j)}, {v(S0+16*j+i)}, {v(S0+16*j+i+1)}")
        A(f"s_cmp_lt_u32 s{sok}, 163840"); A(f"s_cbranch_scc1 {K}_mloop")
        A("v_mov_b32 v14, v12"); A("v_mov_b32 v15, v13"); A("s_nop 1")
        A("v_permlane32_swap_b32 v12, v14"); A("v_permlane32_swap_b32 v13, v15"); A("s_nop 1")
        A("v_max_f32 v12, v12, v14"); A("v_max_f32 v13, v13, v15")
        for i in range(32): A(f"v_sub_f32 {v(NM+i)}, 0, {v(12+i//16)}"); A(f"v_mov_b32 {v(O0+i)}, 0")
        A(f"s_mov_b32 s{sok}, 0"); A(f"s_mov_b32 s{sox}, 0"); A(f"s_mul_i32 s{sov}, s{head}, 81920"); A(f"s_add_u32 s{sov}, s{sov}, {V_OFF}")
        A(f"{K}_sloop:")
        A.ext(ldx(0) + ldk(0) + ldk(1) + ldv(0, 0) + ldv(0, 1) + ldv(1, 0) + ldv(1, 1)); A("s_waitcnt vmcnt(0)")
        for e in range(2):
            scores(e, NM)
            for i in range(32): A(f"v_exp_f32 {v(S0+i)}, {v(S0+i)}")
            A("s_nop 0")
            for i in range(16): A(f"v_cvt_pk_bf16_f32 {v(P+i)}, {v(S0+2*i)}, {v(S0+2*i+1)}")
            A("s_nop 1")
            for j in range(2):
                for sx in range(2): A(mf32(O0+16*j, Vr(e, sx), P+8*j+4*sx))
        A(f"s_cmp_lt_u32 s{sok}, 163840"); A(f"s_cbranch_scc1 {K}_sloop")
        A("s_nop 15")
        A(f"s_branch {K}_anorm")
    return cold

RED = 86016
CSL = 147456
P4_SOW, P4_SOW2, P4_M0, P4_ST = 45, 46, 47, 48
class VQ:
    def __init__(self): self.q = []; self.done = 0
    def add(self, tag, ops):
        self.q += [tag for x in ops if x.startswith(("buffer", "global"))]
        assert len(self.q) - self.done <= 63, "too many outstanding"
        return ops
    def wait(self, *tags):
        idx = [i for i, x in enumerate(self.q) if x in tags]
        last = max(idx) + 1
        if last <= self.done: return []
        self.done = last
        return [f"s_waitcnt vmcnt({len(self.q) - last})"]

def p4_setup(A):
    A(f"s_lshr_b32 s36, s{GI}, 1"); A("s_mul_i32 s36, s36, 7"); A(f"s_min_u32 s{P4_ST}, s36, 101")
    A(f"s_mul_i32 s{P4_M0}, s{W}, 7168"); A(f"s_lshl_b32 s36, s{P4_ST}, 11"); A(f"s_add_u32 s36, s36, s{P4_M0}")
    A(f"s_lshr_b32 s37, s{W}, 1"); A(f"s_mul_i32 s37, s37, {221184-14336}"); A("s_add_u32 s36, s36, s37")
    A(f"s_add_u32 s{P4_SOW}, s36, {WGU_OFF}")
def p4_dma(stage):
    slot = stage % 5
    dw = lambda j: f"buffer_load_dwordx4 {v(LV)}, {S4(SWS)}, s{P4_SOW if j < 4 else P4_SOW2} offen offset:{(j&3)*1024} sc1 lds"
    return ([f"s_add_u32 m0, s{P4_M0}, {slot*28672}", f"s_add_u32 s{P4_SOW2}, s{P4_SOW}, 4096"] + [dw(j) for j in range(4)] +
            [f"s_add_u32 m0, s{P4_M0}, {slot*28672+4096}", f"s_add_u32 s{P4_SOW}, s{P4_SOW}, {2*221184}"] + [dw(j) for j in range(4, 7)])

def skinny_addr(A):
    for i in range(1, 4):
        A(f"s_add_u32 s36, s{W}, {i}"); A("s_and_b32 s36, s36, 3"); A("s_mul_i32 s36, s36, 15360"); A(f"s_add_u32 s36, s36, {RED+(i-1)*5120}"); A(f"v_add_u32 {v(SK_WR+i-1)}, s36, {v(LV)}")
    A(f"s_mul_i32 s36, s{W}, 15360"); A(f"s_add_u32 s36, s36, {RED}"); A(f"v_add_u32 {v(SK_RD)}, s36, {v(LV)}")
    A(f"v_and_b32 v2, 15, {v(LANE)}"); A(f"v_lshrrev_b32 v3, 4, {v(LANE)}")
    A("v_mul_u32_u24 v2, 1280, v2"); A(f"v_lshl_add_u32 {v(SK_RM)}, v3, 4, v2")
    A(f"s_lshl_b32 s49, s{GX}, 2"); A(f"s_and_b32 s36, s{GI}, 3"); A("s_add_u32 s49, s49, s36"); A("s_lshl_b32 s49, s49, 2"); A(f"s_add_u32 s49, s49, s{W}")
    A("s_mul_i32 s50, s49, 20480"); A(f"s_lshr_b32 s36, s{GI}, 3"); A("s_mul_i32 s37, s36, 320"); A("s_add_u32 s51, s50, s37")
    A("s_mul_i32 s37, s36, 5120"); A("s_add_u32 s50, s50, s37"); A(f"s_add_u32 s50, s50, {H_OFF}")
    A(f"s_bfe_u32 s36, s{GI}, 0x10002"); A("s_lshl_b32 s37, s36, 3")
    A("s_add_u32 s60, s50, s37"); A("s_add_u32 s60, s60, 2048"); A("s_add_u32 s61, s51, s37"); A("s_add_u32 s61, s61, 128")
    A("s_mul_i32 s37, s36, 3072"); A("s_add_u32 s50, s50, s37"); A("s_mul_i32 s37, s36, 192"); A("s_add_u32 s51, s51, s37")
def io_frag(op, regs, fl):
    return [f"buffer_{op}_dwordx4 {v(regs,4)}, {v(LV)}, {S4(SWS)}, s50 offen {fl}", f"buffer_{op}_dwordx4 {v(regs+4,4)}, {v(LV)}, {S4(SWS)}, s50 offen offset:1024 {fl}",
            f"buffer_{op}_dwordx2 {v(regs+8,2)}, {v(LV)}, {S4(SWS)}, s60 offen {fl}"]
def io_rm(op, regs, S):
    return [f"buffer_{op}_dwordx4 {v(regs,4)}, {v(SK_RM)}, {S4(S)}, s51 offen", f"buffer_{op}_dwordx4 {v(regs+4,4)}, {v(SK_RM)}, {S4(S)}, s51 offen offset:64",
            f"buffer_{op}_dwordx2 {v(regs+8,2)}, {v(SK_RM)}, {S4(S)}, s61 offen"]
def unpack(A, dst, src, n):
    for i in range(n): A(f"v_lshlrev_b32 {v(dst+2*i)}, 16, {v(src+i)}"); A(f"v_and_b32 {v(dst+2*i+1)}, 0xffff0000, {v(src+i)}")
def reduce_tail(A, ACC, rd):
    A("s_waitcnt lgkmcnt(0)"); A("s_barrier")
    for sl in range(3):
        for u in range(5): A(f"ds_read_b128 {v(ACC+20+20*sl+4*u,4)}, {v(rd)} offset:{5120*sl+1024*u}")
    for sl in range(3):
        A(f"s_waitcnt lgkmcnt({10-5*sl})")
        for i in range(0, 20, 2): A(f"v_pk_add_f32 {v(ACC+i,2)}, {v(ACC+i,2)}, {v(ACC+20+20*sl+i,2)}")
def quad_sum(A, regs, tmps):
    for swap in ("v_permlane32_swap_b32", "v_permlane16_swap_b32"):
        for x, t in zip(regs, tmps): A(f"v_mov_b32 {v(t)}, {v(x)}")
        A("s_nop 1")
        for x, t in zip(regs, tmps): A(f"{swap} {v(x)}, {v(t)}")
        A("s_nop 1")
        for x, t in zip(regs, tmps): A(f"v_add_f32 {v(x)}, {v(x)}, {v(t)}")

def phase3(A, ST):
    wr, rd = SK_WR, SK_RD
    ACC, RES, CSP, AF = 16, P3RES, P3CS, 256
    A("s_barrier")
    A(f"s_mul_i32 s36, s{W}, 14"); A(f"s_sub_i32 s37, s{W}, 2"); A("s_max_i32 s37, s37, 0"); A("s_sub_u32 s32, s36, s37")
    A(f"s_lshr_b32 s36, s{GI}, 2"); A("s_mul_i32 s36, s36, 5120"); A("s_mul_i32 s44, s32, 40960"); A("s_add_u32 s44, s44, s36"); A(f"s_add_u32 s44, s44, {WD_OFF}")
    A(f"s_cmp_ge_u32 s{W}, 2"); A(f"s_cselect_b32 s94, {OOB}, 0"); A("s_add_u32 s94, s94, 40960")
    unpack(A, ACC, RES, 10)
    A(f"v_add_f32 {v(CSP)}, {v(CSP)}, {v(CSP+1)}"); A(f"v_add_f32 {v(CSP+2)}, {v(CSP+2)}, {v(CSP+3)}"); A(f"v_add_f32 {v(CSP)}, {v(CSP)}, {v(CSP+2)}")
    A(f"v_add_u32 v12, {CSL}, v146"); A(f"ds_write_b32 v12, {v(CSP)}")
    for i in range(4):
        A(f"s_add_u32 s36, s{W}, {i}"); A("s_and_b32 s36, s36, 3"); A("s_andn2_b32 s37, s49, 3"); A("s_add_u32 s36, s36, s37"); A("s_mul_i32 s36, s36, 20480")
        A(f"s_mul_i32 s37, s{W}, 5120"); A("s_add_u32 s36, s36, s37"); A(f"s_add_u32 s{40+i}, s36, {O_OFF}")
    A("s_lshl_b32 s36, s49, 7"); A(f"s_add_u32 s36, s36, {F2_OFF}")
    A(f"v_lshlrev_b32 v13, 2, {v(LANE)}"); A("s_mov_b64 exec, 0xff")
    poll(A, [f"buffer_load_dword v14, v13, {S4(SWS)}, s36 offen sc1"], [14])
    A("s_mov_b64 exec, -1")
    ST.mark()
    Q = VQ()
    order = (1, 2, 3, 0)
    for i in order:
        A.ext(Q.add(("a", i), [f"buffer_load_dwordx4 {r(AF+20*i+4*ks,4)}, {v(LV if ks < 4 else 252)}, {S4(SWS)}, s{40+i} offen offset:{1024*(ks&3)} {CFG.get('al','sc1')}" for ks in range(5)]))
    for what in str(CFG.get("p3t", "")).split(","):
        if what: A.ext(Q.add("t", gtouch(what)))
    prev = None
    for n, i in enumerate(order):
        A.ext(Q.wait(("a", i)))
        if n == 0: ST.mark()
        mf = [mf16(ACC+20*i+4*u, w3reg(5*ks+u), AF+20*i+4*ks, "0" if (ks == 0 and i) else None) for u in range(5) for ks in range(5)]
        ops = []
        if prev is not None: ops += [f"ds_write_b128 {v(wr+prev-1)}, {v(ACC+20*prev+4*u,4)} offset:{1024*u}" for u in range(5)]
        slots = {k: [] for k in range(25)}
        for j, x in enumerate(ops): slots[5+2*j].append(x)
        nf = CFG.get("w5p3", 0)//4
        for j in range(nf): slots[(25*j)//nf].extend(Q.add("w5", w5load(nf*n+j)))
        for k in range(25): A(mf[k]); A.ext(slots[k])
        prev = i
    ST.mark()
    reduce_tail(A, ACC, rd)
    for i in range(10): A(f"v_cvt_pk_bf16_f32 {v(RES+i)}, {v(ACC+2*i)}, {v(ACC+2*i+1)}")
    stat = Asm(); sm, sq = 112, 114
    stat(f"v_pk_mul_f32 {v(sq,2)}, {v(ACC,2)}, {v(ACC,2)}"); stat(f"v_pk_add_f32 {v(sm,2)}, {v(ACC,2)}, {v(ACC+2,2)}")
    for i in range(2, 20, 2):
        stat(f"v_pk_fma_f32 {v(sq,2)}, {v(ACC+i,2)}, {v(ACC+i,2)}, {v(sq,2)}")
        if i > 2: stat(f"v_pk_add_f32 {v(sm,2)}, {v(sm,2)}, {v(ACC+i,2)}")
    stat(f"v_add_f32 {v(sm)}, {v(sm)}, {v(sm+1)}"); stat(f"v_add_f32 {v(sm+1)}, {v(sq)}, {v(sq+1)}")
    quad_sum(stat, [sm, sm+1], [sq, sq+1])
    A(f"s_lshr_b32 s37, s{GI}, 2"); A("s_lshl_b32 s36, s49, 3"); A("s_add_u32 s36, s36, s37"); A("s_lshl_b32 s36, s36, 7"); A(f"s_add_u32 s36, s36, {STAT_OFF}")
    A("s_lshr_b32 s38, s49, 1"); A("s_lshl_b32 s38, s38, 5"); A("s_lshl_b32 s37, s37, 1"); A("s_add_u32 s38, s38, s37"); A("s_and_b32 s37, s49, 1"); A("s_add_u32 s38, s38, s37")
    A("s_lshl_b32 s38, s38, 2"); A(f"s_add_u32 s38, s38, {F3_OFF}")
    A(f"v_lshlrev_b32 v13, 3, {v(LANE)}"); A("v_mov_b32 v12, 1")
    publish(A, lambda fl: io_frag("store", RES, fl) + [x.strip() for x in stat.L] + ["s_mov_b64 exec, 0xffff", f"buffer_store_dwordx2 {v(sm,2)}, v13, {S4(SWS)}, s36 offen {fl}"],
            ["s_mov_b64 exec, 1", "s_waitcnt vmcnt(0)"], lambda fl: [f"buffer_store_dword v12, off, {S4(SWS)}, s38 {fl}", "s_mov_b64 exec, -1"])
    ST.mark()

W5X = 208
def w5reg(f): return 256+80+4*f if f < 28 else 256+4*(f-28) if f < 48 else 256+4*f if f < 64 else W5X + 4*(f-64)
def w5load(f):
    ks, u = divmod(f, 5)
    L = [f"buffer_load_dwordx4 {r(w5reg(f),4)}, {v(WV if u < 4 else WV+1)}, {S4(SWS)}, s44 offen offset:{1024*(u&3)} sc1"]
    if u == 4: L.append("s_add_u32 s44, s44, 40960" if ks != 12 else "s_add_u32 s44, s44, s94")
    return L

def phase4(A, ST):
    soh, sohh, soh1 = 28, 29, 30
    la, lb, hv, sv, ca, cb = 4, 7, 10, 11, 12, 13
    STT, HR, ACC, WB = 232, 16, 96, 208
    WB = 208; NW = 3
    HD = 4
    WR = lambda n: (80 + 8*(n % 4)) if n % 4 < 2 else (WB + 8*(n % 4 - 2))
    A("s_barrier")
    Q = VQ()
    A(f"s_mov_b32 s92, {OOB}")
    A(f"s_and_b32 s36, s{GI}, 1"); A(f"s_lshl_b32 s37, s{GX}, 1"); A("s_add_u32 s36, s36, s37"); A("s_lshl_b32 s36, s36, 2"); A(f"s_add_u32 s36, s36, s{W}")
    A(f"s_mul_i32 s{soh}, s36, 40960"); A(f"s_add_u32 s{soh}, s{soh}, {H_OFF}")
    A(f"s_lshl_b32 s38, s36, 7"); A(f"s_add_u32 s38, s38, {F3_OFF}")
    A("s_lshl_b32 s39, s36, 11"); A(f"s_add_u32 s39, s39, {STAT_OFF}")
    A(f"s_lshl_b32 s31, s36, 5"); A(f"s_lshr_b32 s37, s{GI}, 1"); A("s_add_u32 s31, s31, s37"); A("s_lshl_b32 s31, s31, 2"); A(f"s_add_u32 s31, s31, {F4_OFF}")
    A(f"s_and_b32 s40, s{P4_ST}, 1")
    A(f"s_mul_i32 s{sohh}, s36, 110592"); A(f"s_add_u32 s{sohh}, s{sohh}, {HH_OFF}")
    A(f"s_lshr_b32 s37, s{P4_ST}, 1"); A("s_lshl_b32 s37, s37, 10"); A(f"s_add_u32 s{sohh}, s{sohh}, s37")
    A("s_cmp_eq_u32 s40, 0"); A("s_cselect_b32 s37, 3072, 8"); A(f"s_add_u32 s{soh1}, s{sohh}, s37")
    A("s_lshl_b32 s37, s40, 10"); A(f"s_add_u32 s{sohh}, s{sohh}, s37")
    A("s_lshl_b32 s41, s40, 11"); A("s_cmp_eq_u32 s40, 0"); A(f"s_cselect_b32 s42, {6*2048}, 0")
    for i in range(3):
        A(f"v_add_u32 {v(la+i)}, s41, {v(LV)}"); A(f"v_add_u32 {v(lb+i)}, s42, {v(LV)}"); A("s_add_u32 s41, s41, 57344"); A("s_add_u32 s42, s42, 57344")
    A(f"v_add_u32 {v(hv)}, 20480, {v(LV)}")
    A(f"v_lshrrev_b32 v2, 4, {v(LANE)}"); A(f"v_and_b32 v3, 15, {v(LANE)}"); A(f"v_lshlrev_b32 {v(sv)}, 8, v2"); A(f"v_lshl_add_u32 {v(sv)}, v3, 3, {v(sv)}")
    A("s_lshl_b32 s41, s40, 7"); A(f"s_add_u32 s41, s41, {CSL}"); A(f"v_lshl_add_u32 {v(ca)}, v2, 4, s41")
    A("s_cmp_eq_u32 s40, 0"); A(f"s_cselect_b32 s41, {6*128}, 0"); A(f"s_add_u32 s41, s41, {CSL}"); A(f"v_lshl_add_u32 {v(cb)}, v2, 4, s41")
    A(f"v_lshlrev_b32 v14, 2, {v(LANE)}"); A("s_mov_b64 exec, 0xffff")
    poll(A, [f"buffer_load_dword v15, v14, {S4(SWS)}, s38 offen sc1"], [15])
    A("s_mov_b64 exec, -1")
    ST.mark()
    def hl(s_): return [f"buffer_load_dwordx4 {v(HR+16*(s_%HD)+8*n+4*ks,4)}, {v(hv if n else LV)}, {S4(SWS)}, s{soh} offen offset:{1024*ks} {CFG.get('al','sc1')}" for n in range(2) for ks in range(2)] + [f"s_add_u32 s{soh}, s{soh}, 2048"]
    for s_ in range(HD): A.ext(Q.add(("h", s_), hl(s_)))
    A.ext(Q.add("st", [f"buffer_load_dwordx2 {v(STT+4*n+2*c,2)}, {v(sv)}, {S4(SWS)}, s39 offen offset:{1024*n+128*c} sc1" for n in range(2) for c in range(2)]))
    def reads(n):
        s_, m = divmod(n, 14); slot = s_ % 5; j, mat = divmod(m, 2)
        base, off = (la, j*2048) if j < 6 else (lb, 0)
        return [f"ds_read_b128 {v(WR(n)+4*ks,4)}, {v(base+slot//2)} offset:{(slot%2)*28672+off+mat*1024+ks*14336}" for ks in range(2)]
    for n in range(NW): A.ext(reads(n))
    w5 = [f for f in range(64) if f >= CFG.get("w5p3", 0)]; wq = list(range(3, 10))
    pend = []
    for s_ in range(10):
        if s_ >= 1 and s_+HD-1 < 10: pend.append((("h", s_+HD-1), hl(s_+HD-1)))
        while wq and wq[0] <= s_+CFG.get("wd", 3): pend.append((("w", wq[0]), p4_dma(wq.pop(0))))
        for b_, what in TOUCHES("p4t"):
            if b_ == s_: pend.append(("t", gtouch(what)))
        have = sum(1 for t, ops in pend for x in ops if not is_salu(x))
        later = 7*len(wq) + 4*max(0, 6-s_) + len(w5) + have
        nw5 = min(len(w5), max(0, -(-later//(10-s_)) - have))
        for _ in range(nw5): pend.append(("w5", w5load(w5.pop(0))))
        flat = [(t, x) for t, ops in pend for x in ops]; pend = []
        px = CFG.get("p4x", "")
        if "now5" in px: flat = [(t, x.replace("s44 offen", "s92 offen")) for t, x in flat]
        if "nodma" in px: flat = [(t, x.replace(f"s{P4_SOW} offen", "s92 offen").replace(f"s{P4_SOW2} offen", "s92 offen")) for t, x in flat]
        if "dropw5" in px: flat = [(t, x) for t, x in flat if t != "w5"]
        if "plain" in px: flat = [(t, x.replace(" sc1", "")) for t, x in flat]
        nreal = sum(1 for t, x in flat if not is_salu(x))
        for m in range(14):
            n = 14*s_ + m
            pre = []
            if m == 0: pre += Q.wait(("h", s_))
            if m == 11 and s_ < 9:
                pre += ["s_waitcnt lgkmcnt(0)"] + (Q.wait(("w", s_+1)) if s_+1 >= 3 else []) + ["s_barrier"]
            else: pre.append(f"s_waitcnt lgkmcnt({2*min(NW-1, 139-n)})")
            A.ext(pre)
            if n == 0: ST.mark()
            take = -(-nreal//(14-m)); ops = []
            while flat and (take > 0 or is_salu(flat[0][1])):
                t, x = flat.pop(0); ops += Q.add(t, [x])
                if not is_salu(x): take -= 1; nreal -= 1
            mf = [mf16(ACC+8*m+4*nn, WR(n)+4*ks, HR+16*(s_ % HD)+8*nn+4*ks, "0" if (s_ == 0 and ks == 0) else None) for nn in range(2) for ks in range(2)]
            weave(A, mf, (reads(n+NW) if n+NW < 140 else []) + ops, [], [2]*4)
        assert not flat
    assert not w5 and not wq
    ST.mark()
    CSR = 16
    for j in range(7):
        for mat in range(2): A(f"ds_read_b128 {v(CSR+8*j+4*mat,4)}, {v(ca if j < 6 else cb)} offset:{(128*j if j < 6 else 0)+64*mat}")
    for f in range(64, 70): A.ext(Q.add("w5", w5load(f)))
    for n in range(2): A(f"v_pk_add_f32 {v(STT+4*n,2)}, {v(STT+4*n,2)}, {v(STT+4*n+2,2)}")
    quad_sum(A, [STT, STT+1, STT+4, STT+5], [STT+2, STT+3, STT+6, STT+7])
    for n in range(2):
        nm, r2 = STT+4*n, STT+4*n+2
        A(f"v_mul_f32 {v(nm)}, {hex(f2u(-1/640))}, {v(nm)}"); A(f"v_mul_f32 {v(r2)}, {hex(f2u(1/640))}, {v(nm+1)}")
        A(f"v_fma_f32 {v(r2)}, -{v(nm)}, {v(nm)}, {v(r2)}"); A(f"v_max_f32 {v(r2)}, 0, {v(r2)}"); A(f"v_add_f32 {v(r2)}, {hex(f2u(1e-5))}, {v(r2)}"); A(f"v_rcp_f32 {v(r2)}, {v(r2)}")
    A(f"v_add_u32 {v(hv)}, 55296, {v(LV)}"); A("v_mov_b32 v14, 1")
    A("s_waitcnt lgkmcnt(0)")
    OB = 72
    def epi(fl):
        L = []
        for a_ in range(4):
            for n in range(2):
                nm, r2 = STT+4*n, STT+4*n+2; o = OB + 4*((2*a_+n) % 4)
                for j in ([2*a_, 2*a_+1] if a_ < 3 else [6]):
                    g, u = ACC+16*j+4*n, ACC+16*j+8+4*n
                    for i in (0, 2):
                        L.append(f"v_pk_fma_f32 {v(g+i,2)}, {v(CSR+8*j+i,2)}, {v(nm,2)}, {v(g+i,2)} op_sel_hi:[1,0,1]")
                        L.append(f"v_pk_fma_f32 {v(u+i,2)}, {v(CSR+8*j+4+i,2)}, {v(nm,2)}, {v(u+i,2)} op_sel_hi:[1,0,1]")
                    for i in (0, 2): L.append(f"v_pk_mul_f32 {v(g+i,2)}, {v(g+i,2)}, {v(r2,2)} op_sel_hi:[1,0]")
                    for i in (0, 2): L.append(f"v_pk_mul_f32 {v(g+i,2)}, {v(g+i,2)}, {v(u+i,2)}")
                    for i in (0, 1): L.append(f"v_cvt_pk_bf16_f32 {v(o+2*(j&1)+i)}, {v(g+2*i)}, {v(g+2*i+1)}")
                if a_ < 3: L.append(f"buffer_store_dwordx4 {v(o,4)}, {v(hv if n else LV)}, {S4(SWS)}, s{sohh} offen offset:{1024*a_} {fl}")
                else: L.append(f"buffer_store_dwordx2 {v(o,2)}, {v(hv if n else LV)}, {S4(SWS)}, s{soh1} offen {fl}")
        return L
    publish(A, epi, ["s_mov_b64 exec, 1", "s_waitcnt vmcnt(0)"], lambda fl: [f"buffer_store_dword v14, off, {S4(SWS)}, s31 {fl}", "s_mov_b64 exec, -1"])
    ST.mark()

def phase5(A, ST):
    wr, rd = SK_WR, SK_RD
    ACC, AF, RES = 16, 96, 232
    srd(A, SA, 86, 2621440)
    for i in range(4):
        A(f"s_add_u32 s36, s{W}, {i}"); A("s_and_b32 s36, s36, 3"); A("s_andn2_b32 s37, s49, 3"); A("s_add_u32 s36, s36, s37"); A("s_mul_i32 s36, s36, 55296")
        A("s_lshl_b32 s37, s32, 10"); A("s_add_u32 s36, s36, s37"); A(f"s_add_u32 s{52+i}, s36, {HH_OFF}")
    A(f"s_cmp_ge_u32 s{W}, 2"); A(f"s_cselect_b32 s43, {OOB}, 0"); A(f"v_add_u32 v12, s43, {v(LV)}")
    A("s_lshr_b32 s36, s49, 2"); A("s_lshl_b32 s36, s36, 8"); A(f"s_add_u32 s36, s36, {F4_OFF}")
    A(f"v_lshrrev_b32 v13, 4, {v(LANE)}"); A(f"v_and_b32 v14, 15, {v(LANE)}"); A("v_lshlrev_b32 v13, 7, v13"); A("v_lshl_add_u32 v13, v14, 2, v13")
    A.ext(io_frag("load", RES, "sc1"))
    A("s_barrier")
    A("s_mov_b32 exec_hi, 0")
    poll(A, [f"buffer_load_dword v14, v13, {S4(SWS)}, s36 offen sc1"], [14])
    A("s_mov_b64 exec, -1")
    ST.mark()
    Q = VQ()
    order = (1, 2, 3, 0)
    def al(n, ks):
        i = order[n]
        L = [f"buffer_load_dwordx4 {v(AF+56*(n&1)+4*ks,4)}, {v(12 if ks == 13 else LV)}, {S4(SWS)}, s{52+i} offen offset:{1024*(ks&3)} {CFG.get('al','sc1')}"]
        if ks & 3 == 3: L.append(f"s_add_u32 s{52+i}, s{52+i}, 4096")
        return L
    for n in range(2):
        for ks in range(14): A.ext(Q.add((n, ks), al(n, ks)))
    unpack(A, ACC, RES, 10)
    for n, i in enumerate(order):
        for kp in range(7):
            A.ext(Q.wait((n, 2*kp+1)))
            if n == 0 and kp == 0: ST.mark()
            mf = [mf16(ACC+20*i+4*u, w5reg(5*ks+u), AF+56*(n&1)+4*ks, "0" if (ks == 0 and i) else None) for u in range(5) for ks in (2*kp, 2*kp+1)]
            ops = []
            pn, pk = (n, kp-1) if kp else (n-1, 6)
            if pn >= 0 and pn+2 < 4:
                for ks in (2*pk, 2*pk+1): ops += Q.add((pn+2, ks), al(pn+2, ks))
            if n and 1 <= kp <= 5: ops.append(f"ds_write_b128 {v(wr+order[n-1]-1)}, {v(ACC+20*order[n-1]+4*(kp-1),4)} offset:{1024*(kp-1)}")
            weave(A, mf, ops, [], [2]*10)
    ST.mark()
    reduce_tail(A, ACC, rd)
    for i in range(10): A(f"v_cvt_pk_bf16_f32 {v(RES+i)}, {v(ACC+2*i)}, {v(ACC+2*i+1)}")
    A.ext(io_rm("store", RES, SA))

def build(**cfg):
    CFG.update(cfg)
    A = Asm(); ST = Stamps(A)
    kstart(A, K); ST.mark()
    if CFG.get("probe"):
        off, base = {"bx": (24, 0), "ws": (72, 40 << 20), "out": (56, 0), "wd": (48, 0)}[CFG["probe"]]
        A(f"s_load_dwordx2 s[4:5], s[0:1], {off}"); A("s_waitcnt lgkmcnt(0)"); A(f"s_mov_b32 s6, {base + (2<<20)}"); A("s_mov_b32 s7, 0x20000")
        A("s_and_b32 s8, s2, 255"); A("s_lshl_b32 s8, s8, 9"); A(f"s_add_u32 s8, s8, {base}"); A("v_lshrrev_b32 v2, 6, v0"); A("v_lshlrev_b32 v2, 7, v2")
        for i in range(16):
            A("buffer_load_dword v3, v2, s[4:7], s8 offen"); A("s_waitcnt vmcnt(0)"); A("s_add_u32 s8, s8, 131072")
    phase1(A, ST)
    cold = phase2(A, ST)
    phase3(A, ST); phase4(A, ST); phase5(A, ST)
    ST.flush()
    A("s_endpgm")
    cold()
    A(f"{K}_end:")
    A("s_endpgm")
    kdesc(A, K, 512, acc=256)
    head = open(f"cdna_kernels/{NAME}.s.ref").read().split("; Override launch")[0]
    head += "; @launch grid=(256,1,1) block=(256,1,1) lds=163840\n"
    return head + '.amdgcn_target "amdgcn-amd-amdhsa--gfx950"\n' + A.text()

if __name__ == "__main__":
    out = sys.argv[1] if len(sys.argv) > 1 else f"cdna_kernels/{NAME}.s"
    cfg = {}
    for x in sys.argv[2:]:
        k, val = x.split("=")
        cfg[k] = int(val) if val.lstrip("-").isdigit() else val
    txt = build(**cfg)
    names = STAMP_NAMES[:8] + [f"att body {b}" for b in ASTAMPS()] + STAMP_NAMES[8:]
    if CFG["stamps"]: txt = txt.replace(".amdgcn_target", "; STAMPS " + "|".join(names) + "\n.amdgcn_target", 1)
    open(out, "w").write(txt)
```

```python
import sys, math, struct
from dsl import *

NAME = "sequential_preLN__softmax_full_mha__glu_gated_bilinear__prompt"
K = NAME + "_kernel"
QK_OFF = 0
V_OFF = 32*163840
O_OFF = 8388608
H_OFF = O_OFF + 2621440
HH_OFF = H_OFF + 2621440
WGU_OFF = 20971520
WD_OFF = WGU_OFF + 4423680
WO_OFF = WD_OFF + 2211840
CS_OFF = WO_OFF + 819200
STAT_OFF = CS_OFF + 65536
RS_OFF = STAT_OFF + 131072
F2_OFF = RS_OFF + 16384
F3_OFF = F2_OFF + 128*128
F4_OFF = F3_OFF + 64*128
FR_OFF = F4_OFF + 64*128
F1_OFF = FR_OFF + 192*128
STAMP_OFF = 29360128
WS_SIZE = 33554432
OOB = 0x40000000
SPIN = 200000
assert F1_OFF + 256*128 < STAMP_OFF and STAT_OFF % 128 == 0
def f2u(x): return struct.unpack("<I", struct.pack("<f", x))[0]
QSCALE = f2u(20**-0.5 * math.log2(math.e))
assert all((u*205) >> 10 == u//5 for u in range(160))
assert all((f*3277) >> 16 == f//20 for f in range(640))
assert all((e*6554) >> 16 == e//10 for e in range(320))
CFG = dict(stamps=False, w5p3=28, b0=2, b1=7, b2=4, b3=6, touch="44:n0,46:n1,48:n2,50:n3,52:n4,54:n5,56:h0,58:h1,59:s")
STAMP_NAMES = ["start", "p1 first dma issued", "p1 stage0 landed", "p1 loop end", "p1 stores issued", "p1 flag set", "F1 seen", "att loop start", "att loop end",
               "O published", "F2 seen", "p3 first act", "p3 mfma end", "H published", "F3 seen", "p4 first h", "p4 loop end", "HH published", "F4 seen", "p5 first act", "p5 mfma end", "end"]

W, SWS, SX, SA, SR = 3, 4, 8, 12, 16
GX, GI, MODE, MYF = 24, 25, 26, 27
LANE, LV = 1, 253
PCV = 247
CODE_TOUCH = f"global_load_dword v248, v{PCV}, s[20:21] sc1"
def S4(b): return f"s[{b}:{b+3}]"

def ASTAMPS(): return [int(x) for x in str(CFG.get("astamp", "")).split(",") if x]
def P1ST(): return [int(x) for x in str(CFG.get("p1st", "")).split(",") if x]
class Stamps:
    def __init__(self, A): self.A, self.n = A, 0
    def mark(self, at=None):
        A = self.A; i = self.n if at is None else at
        if CFG.get("pad"):
            pi, pt = map(int, CFG["pad"].split(":"))
            if i == 0: A("s_memrealtime s[96:97]")
            if i == pi:
                lab = A.label("pad"); A("s_waitcnt lgkmcnt(0)"); A(f"s_add_u32 s95, s96, {pt*100}"); A(f"{lab}:"); A("s_memrealtime s[98:99]"); A("s_waitcnt lgkmcnt(0)")
                A("s_sub_u32 s98, s98, s95"); A("s_cmp_lt_i32 s98, 0"); A(f"s_cbranch_scc1 {lab}")
            if at is None: self.n += 1
            return
        if not CFG["stamps"]: return
        if i:
            A("s_waitcnt lgkmcnt(0)"); A(f"v_writelane_b32 v254, s96, {i-1}"); A(f"v_writelane_b32 v255, s98, {i-1}")
        A("s_memrealtime s[96:97]"); A("s_memtime s[98:99]")
        if at is None: self.n += 1
    def flush(self):
        if CFG.get("pad"): self.A("s_waitcnt vmcnt(0)"); self.mark(); return
        if not CFG["stamps"]: return
        A = self.A
        A("s_waitcnt vmcnt(0)"); self.mark(); self.mark(); n = self.n - 1
        A(f"v_writelane_b32 v254, s{MODE}, 30"); A(f"v_writelane_b32 v254, s{MYF}, 31")
        A(f"s_lshl_b32 s95, s2, 2"); A(f"s_add_u32 s95, s95, s{W}"); A("s_lshl_b32 s95, s95, 8"); A(f"s_add_u32 s95, s95, {STAMP_OFF}")
        A("s_mov_b64 exec, -1"); A(f"v_lshlrev_b32 v0, 2, {v(LANE)}"); A(f"s_mov_b32 exec_lo, {(1 << n) - 1 + (3 << 30)}"); A("s_mov_b32 exec_hi, 0")
        A(f"buffer_store_dword v254, v0, {S4(SWS)}, s95 offen"); A(f"buffer_store_dword v255, v0, {S4(SWS)}, s95 offen offset:128")

def swap01(A, dst, src, t):
    A(f"v_and_b32 {v(t)}, 1, {v(src)}"); A(f"v_lshlrev_b32 {v(t)}, 1, {v(t)}")
    A(f"v_bfe_u32 {v(dst)}, {v(src)}, 1, 1"); A(f"v_or_b32 {v(t)}, {v(t)}, {v(dst)}")
    A(f"v_and_b32 {v(dst)}, 4, {v(src)}"); A(f"v_or_b32 {v(dst)}, {v(dst)}, {v(t)}")

def make_sel(A, sel, t):
    A(f"v_lshrrev_b32 {v(t)}, 2, {v(LANE)}"); A(f"v_lshrrev_b32 {v(sel)}, 4, {v(LANE)}")
    A(f"v_xor_b32 {v(t)}, {v(t)}, {v(sel)}"); A(f"v_and_b32 {v(t)}, 1, {v(t)}")
    A(f"v_add_u32 {v(t)}, -1, {v(t)}")
    A(f"v_and_b32 {v(sel)}, 0x3f803f80, {v(t)}")
    for i in range(1, 4): A(f"v_mov_b32 {v(sel+i)}, {v(sel)}")

def poll(A, loads, regs, sleep=0, cnt=58):
    top, out = A.label("poll"), A.label("pollout")
    A(f"s_mov_b32 s{cnt}, {SPIN}")
    A(f"{top}:")
    A.ext(loads); A("s_waitcnt vmcnt(0)")
    for x in regs[1:]: A(f"v_min_u32 {v(regs[0])}, {v(regs[0])}, {v(x)}")
    A(f"v_cmp_eq_u32 vcc, 0, {v(regs[0])}")
    A(f"s_sub_u32 s{cnt}, s{cnt}, 1"); A(f"s_cbranch_scc1 {out}")
    if sleep:
        A(f"s_cbranch_vccz {out}"); A(f"s_sleep {sleep}"); A(f"s_branch {top}")
    else: A(f"s_cbranch_vccnz {top}")
    A(f"{out}:")

def publish(A, stores, mid, flag, local=True):
    if not local:
        A.ext(stores("sc1")); A.ext(mid); A.ext(flag("sc1")); return
    slow, done = A.label("st_slow"), A.label("st_done")
    A(f"s_cmp_eq_u32 s{MODE}, 0"); A(f"s_cbranch_scc1 {slow}")
    A.ext(stores("")); A.ext(mid); A.ext(flag("")); A(f"s_branch {done}")
    A(f"{slow}:")
    A.ext(stores("sc1")); A.ext(mid); A.ext(flag("sc1"))
    A(f"{done}:")

RSO, RA, RBA, RDS, RDH, RDAH, RCS, RLDS = 64, 65, 66, 67, 68, 69, 70, 71
RLV, RLT, RLC, RLO, RLF = 201, 202, 204, 212, 216
STG = 86016
def relayout_setup(A):
    t0, t1 = 2, 3
    two, none, done = A.label("rl2"), A.label("rl0"), A.label("rl_set")
    A(f"s_mul_i32 s{RLDS}, s{W}, 10240"); A(f"s_add_u32 s{RLDS}, s{RLDS}, {STG}")
    A(f"v_lshrrev_b32 {v(t0)}, 4, {v(LANE)}"); A(f"v_bfe_u32 {v(t1)}, {v(LANE)}, 2, 2"); A(f"v_lshl_add_u32 {v(t0)}, {v(t0)}, 3, {v(t1)}")
    A(f"v_and_b32 {v(t1)}, 3, {v(LANE)}"); A(f"v_lshlrev_b32 {v(t1)}, 4, {v(t1)}")
    A(f"v_lshl_add_u32 {v(t0)}, {v(t0)}, 6, {v(t1)}"); A(f"v_add_u32 {v(RLT)}, s{RLDS}, {v(t0)}")
    A(f"v_and_b32 {v(RLT+1)}, 15, {v(LANE)}"); A(f"v_lshlrev_b32 {v(RLT+1)}, 2, {v(RLT+1)}")
    for i in range(4): A(f"v_mov_b32 {v(RLO+i)}, 0x3f803f80")
    A(f"v_lshrrev_b32 {v(t0)}, 2, {v(LANE)}")
    A(f"s_mov_b32 s{RCS}, {OOB}")
    A("s_cmp_ge_u32 s2, 108"); A(f"s_cbranch_scc1 {two}")
    A(f"s_bitcmp1_b32 s{W}, 0"); A(f"s_cselect_b64 s[{SR}:{SR+1}], s[82:83], s[80:81]"); A(f"s_mov_b32 s{SR+2}, 2211840")
    A(f"s_mul_i32 s37, s2, {(65536+26)//27}"); A("s_lshr_b32 s37, s37, 16")
    A("s_mul_i32 s38, s37, 27"); A("s_sub_u32 s38, s2, s38"); A("s_lshl_b32 s38, s38, 1"); A(f"s_lshr_b32 s39, s{W}, 1"); A("s_add_u32 s38, s38, s39")
    A(f"s_mul_i32 s{RSO}, s37, {160*3456}"); A("s_lshl_b32 s39, s38, 6"); A(f"s_add_u32 s{RSO}, s{RSO}, s39")
    A(f"s_mov_b32 s{RA}, {16*3456}"); A(f"s_mov_b32 s{RBA}, {16*3456}"); A(f"s_mov_b32 s{RDH}, 2048"); A(f"s_mov_b32 s{RDAH}, {221184-2048}")
    A(f"s_and_b32 s39, s{W}, 1"); A("s_lshl_b32 s38, s38, 2"); A("s_add_u32 s38, s38, s39")
    A(f"s_mul_i32 s{RDS}, s37, {5*221184}"); A("s_lshl_b32 s39, s38, 10"); A(f"s_add_u32 s{RDS}, s{RDS}, s39"); A(f"s_add_u32 s{RDS}, s{RDS}, {WGU_OFF}")
    A(f"s_mul_i32 s{RCS}, s37, {108*128}"); A("s_lshl_b32 s39, s38, 6"); A(f"s_add_u32 s{RCS}, s{RCS}, s39"); A(f"s_add_u32 s{RCS}, s{RCS}, {CS_OFF}")
    A(f"v_mul_u32_u24 {v(t0)}, 3456, {v(t0)}")
    A(f"s_branch {done}")
    A(f"{two}:")
    A("s_sub_u32 s37, s2, 108"); A("s_mov_b32 s38, 819200"); A("s_cmp_lt_u32 s37, 54")
    A(f"s_cselect_b64 s[{SR}:{SR+1}], s[84:85], s[88:89]"); A(f"s_cselect_b32 s{SR+2}, 2211840, s38"); A("s_cselect_b32 s38, 0, 54")
    A("s_sub_u32 s38, s37, s38"); A(f"s_mul_i32 s{RSO}, s38, 40960"); A(f"s_mul_i32 s39, s{W}, 320"); A(f"s_add_u32 s{RSO}, s{RSO}, s39")
    A(f"s_mov_b32 s{RA}, {16*1280}"); A(f"s_mov_b32 s{RBA}, {(64-16*1280) & 0xffffffff}"); A(f"s_mov_b32 s{RDH}, 1024"); A(f"s_mov_b32 s{RDAH}, 1024")
    A(f"s_mul_i32 s{RDS}, s37, 40960"); A(f"s_mul_i32 s39, s{W}, 10240"); A(f"s_add_u32 s{RDS}, s{RDS}, s39"); A(f"s_add_u32 s{RDS}, s{RDS}, {WD_OFF}")
    A("s_cmp_lt_u32 s37, 74"); A(f"s_cselect_b32 s{RDS}, s{RDS}, {OOB}"); A(f"s_cselect_b32 s{SR+2}, s{SR+2}, 0")
    A(f"v_mul_u32_u24 {v(t0)}, 1280, {v(t0)}")
    A(f"{done}:")
    A(f"v_add_u32 {v(RLV)}, {v(t0)}, {v(t1)}")
def rl_dma(i):
    return [f"s_add_u32 m0, s{RLDS}, {i*1024}", f"s_add_u32 s{RSO}, s{RSO}, {'0' if i == 0 else 's%d' % (RA if i & 1 else RBA)}",
            f"buffer_load_dwordx4 {v(RLV)}, {S4(SR)}, s{RSO} offen lds"]
def rl_read(a_, hf): return [f"ds_read_b64_tr_b16 {v(RLF+8*(a_&1)+4*hf+2*q,2)}, {v(RLT)} offset:{2048*a_+256*q+8*hf}" for q in range(2)]
def rl_sum(a_, hf): return mf16(RLC+4*hf, RLO, RLF+8*(a_&1)+4*hf, "0" if a_ == 0 else None)
def rl_store(a_, hf): return [f"buffer_store_dwordx4 {v(RLF+8*(a_&1)+4*hf,4)}, {v(LV)}, {S4(SWS)}, s{RDS} offen sc1", f"s_add_u32 s{RDS}, s{RDS}, s{RDAH if hf else RDH}"]
def rl_cs(hf): return [f"buffer_store_dword {v(RLC+4*hf)}, {v(RLT+1)}, {S4(SWS)}, s{RCS} offen offset:{128*hf} sc1"]

WT = [(80, 2211840), (82, 2211840), (84, 2211840), (88, 819200)]
TV = 249
def wtouch(m_, so):
    p_, n_ = WT[m_]
    return [f"s_mov_b64 s[{SR}:{SR+1}], s[{p_}:{p_+1}]", f"s_mov_b32 s{SR+2}, {n_}", f"buffer_load_dword v248, {v(TV)}, {S4(SR)}, s{so} offen"]
def phase1(A, ST):
    rt, ct, wm, wn = 28, 29, 30, 31
    sox, sow, m0b, sst, srs = 32, 33, 34, 35, 59
    SD = 52
    t0, t1, t2, t3, nn, qq = 2, 3, 4, 5, 6, 7
    dmx, dmw, xa, wa, sa, rv, ex = 12, 16, 20, 22, 26, 30, 31
    ONES, CS, ACC, RS, OB = 32, 36, 64, 148, 180
    FR = 256
    A("s_cmp_ge_u32 s2, 256"); A(f"s_cbranch_scc1 {K}_end")
    A("s_load_dwordx4 s[36:39], s[0:1], 0"); A("s_load_dwordx4 s[52:55], s[0:1], 64"); A("s_load_dwordx8 s[80:87], s[0:1], 32"); A("s_load_dwordx2 s[88:89], s[0:1], 16")
    A(f"v_lshrrev_b32 {v(t0)}, 6, v0"); A(f"v_and_b32 {v(LANE)}, 63, v0")
    A(f"v_readfirstlane_b32 s{W}, {v(t0)}")
    A(f"s_and_b32 s{GX}, s2, 7"); A(f"s_lshr_b32 s{GI}, s2, 3")
    A("s_getpc_b64 s[20:21]"); A(f"{K}_pc:")
    A(f"s_lshl_b32 s58, s{GI}, 2"); A(f"s_add_u32 s58, s58, s{W}"); A("s_lshl_b32 s58, s58, 7")
    A(f"v_and_b32 {v(PCV)}, 7, {v(LANE)}"); A(f"v_lshlrev_b32 {v(PCV)}, 14, {v(PCV)}"); A(f"v_add_u32 {v(PCV)}, s58, {v(PCV)}")
    A(f"v_min_u32 {v(PCV)}, {K}_end-{K}_pc, {v(PCV)}")
    A(CODE_TOUCH)
    A(f"s_lshr_b32 s56, s{GX}, 2"); A(f"s_lshl_b32 s{ct}, s56, 3"); A(f"s_lshr_b32 s57, s{GI}, 2"); A(f"s_add_u32 s{ct}, s{ct}, s57")
    A("s_lshl_b32 s56, s56, 1"); A(f"s_cmp_ge_u32 s{GI}, 28"); A("s_cselect_b32 s56, s56, 0"); A(f"s_cselect_b32 s{ct}, 7, s{ct}")
    A(f"s_and_b32 s57, s{GI}, 3"); A("s_add_u32 s57, s57, s56"); A(f"s_and_b32 s56, s{GX}, 3"); A("s_lshl_b32 s56, s56, 2")
    A("s_and_b32 s57, s57, 3"); A(f"s_add_u32 s{rt}, s56, s57")
    A(f"v_lshrrev_b32 {v(qq)}, 4, {v(LANE)}"); A(f"v_and_b32 {v(nn)}, 15, {v(LANE)}")
    A(f"v_and_b32 {v(t1)}, 7, {v(LANE)}"); A(f"v_xor_b32 {v(t1)}, {v(t1)}, {v(qq)}"); A(f"v_lshlrev_b32 {v(t1)}, 4, {v(t1)}")
    A(f"v_lshrrev_b32 {v(t2)}, 3, {v(LANE)}"); A(f"v_mul_u32_u24 {v(t2)}, 1280, {v(t2)}")
    A(f"v_add_u32 {v(dmx)}, {v(t1)}, {v(t2)}")
    A(f"v_xor_b32 {v(t1)}, 64, {v(t1)}"); A(f"v_add_u32 {v(t1)}, {v(t1)}, {v(t2)}"); A(f"v_add_u32 {v(dmx+1)}, 9216, {v(t1)}")
    A(f"v_add_u32 {v(dmx+2)}, {2*9216}, {v(dmx)}"); A(f"v_add_u32 {v(dmx+3)}, {2*9216}, {v(dmx+1)}")
    A(f"v_lshlrev_b32 {v(t1)}, 1, {v(qq)}"); A(f"v_xor_b32 {v(t1)}, {v(t1)}, {v(nn)}"); A(f"v_lshlrev_b32 {v(t1)}, 4, {v(t1)}")
    A(f"v_mul_u32_u24 {v(t2)}, 3840, {v(qq)}"); A(f"v_add_u32 {v(dmw)}, {v(t1)}, {v(t2)}"); A(f"v_add_u32 {v(dmw+1)}, 14336, {v(dmw)}")
    A(f"v_xor_b32 {v(t1)}, 128, {v(t1)}"); A(f"v_add_u32 {v(t1)}, {v(t1)}, {v(t2)}"); A(f"v_add_u32 {v(dmw+2)}, {2*14336}, {v(t1)}"); A(f"v_add_u32 {v(dmw+3)}, {3*14336}, {v(t1)}")
    A(f"s_lshl_b32 s56, s{rt}, 2"); A(f"s_add_u32 s56, s56, s{W}"); A(f"s_mul_i32 s{sox}, s56, {32*1280}")
    A(f"s_mul_i32 s{sow}, s{W}, {16*3840}"); A(f"s_lshl_b32 s57, s{ct}, 8"); A(f"s_add_u32 s{sow}, s{sow}, s57")
    A("s_mul_i32 s56, s56, 3840"); A("s_add_u32 s56, s56, s57")
    NT = CFG.get("p1t", 9)
    A(f"v_min_u32 {v(t0)}, {max(2*NT-1, 0)}, {v(LANE)}"); A(f"v_lshrrev_b32 {v(t1)}, 1, {v(t0)}"); A(f"v_mul_u32_u24 {v(t1)}, {64*3840}, {v(t1)}")
    A(f"v_and_b32 {v(t0)}, 1, {v(t0)}"); A(f"v_lshl_add_u32 {v(t0)}, {v(t0)}, 7, {v(t1)}"); A(f"v_add_u32 {v(t0)}, {64*3840}, {v(t0)}")
    NX = CFG.get("p1x_t", 4); PX = -(-NX*128//60)
    if NX:
        A(f"s_lshl_b32 s57, s{ct}, 2"); A(f"s_add_u32 s57, s57, s{W}"); A(f"s_mul_i32 s57, s57, {PX}"); A(f"v_min_u32 {v(t3)}, {PX-1}, {v(LANE)}"); A(f"v_add_u32 {v(t3)}, s57, {v(t3)}")
        A(f"v_min_u32 {v(t3)}, {NX*128-1}, {v(t3)}"); A(f"v_and_b32 {v(t1)}, 127, {v(t3)}"); A(f"v_mul_u32_u24 {v(t1)}, 1279, {v(t1)}"); A(f"v_add_u32 {v(t3)}, {v(t3)}, {v(t1)}")
        A(f"s_mul_i32 s57, s{rt}, {128*1280}")
    A(f"s_lshl_b32 s{m0b}, s{W}, 12")
    A("s_waitcnt lgkmcnt(0)")
    srd(A, SX, 36, 2621440)
    A("s_cmp_ge_u32 s2, 240"); A(f"s_cbranch_scc1 {K}_idle0")
    srd(A, SA, 38, 2457600)
    def dma(stage):
        slot = stage % 5
        dx = lambda b: f"buffer_load_dwordx4 {v(dmx+b)}, {S4(SX)}, s{sox} offen offset:{b*1024} lds"
        dw = lambda b: f"buffer_load_dwordx4 {v(dmw+b)}, {S4(SA)}, s{sow} offen offset:{b*1024} lds"
        return ([f"s_add_u32 m0, s{m0b}, {slot*32768}", f"s_add_u32 s{sow}, s{sow}, {64*3840 if stage else 0}"] + [dx(b) for b in range(4)] +
                [f"s_add_u32 m0, s{m0b}, {slot*32768+16384}", f"s_add_u32 s{sox}, s{sox}, 128"] + [dw(b) for b in range(4)])
    A.ext(dma(0))
    if NX: A(f"buffer_load_dword v248, {v(t3)}, {S4(SX)}, s57 offen offset:128")
    if NT: A(f"buffer_load_dword v248, {v(t0)}, {S4(SA)}, s56 offen")
    def common():
        srd(A, SWS, 54, WS_SIZE)
        A(f"s_mov_b32 s{SD+2}, 256"); A(f"s_mov_b32 s{SD+3}, 0x20000"); A(f"s_mov_b32 s{SA+3}, 0x20000")
        A(f"s_mov_b32 s{SR+3}, 0x20000"); A(f"v_lshlrev_b32 {v(TV)}, 7, {v(LANE)}"); A(f"v_lshlrev_b32 {v(LV)}, 4, {v(LANE)}")
        A(f"s_getreg_b32 s{MYF}, hwreg(HW_REG_XCC_ID, 0, 4)"); A(f"s_add_u32 s{MYF}, s{MYF}, 1")
    common()
    TL = CFG.get("tlb", 0)
    if TL:
        A(f"v_lshlrev_b32 v8, {TL}, {v(LANE)}"); A(f"s_lshl_b32 s56, s2, 7")
        A(f"s_cmp_eq_u32 s{W}, 1"); A(f"s_cselect_b64 s[{SR}:{SR+1}], s[82:83], s[80:81]"); A(f"s_cmp_eq_u32 s{W}, 2"); A(f"s_cselect_b64 s[{SR}:{SR+1}], s[84:85], s[{SR}:{SR+1}]")
        A(f"s_cmp_eq_u32 s{W}, 3"); A(f"s_cselect_b64 s[{SR}:{SR+1}], s[86:87], s[{SR}:{SR+1}]"); A(f"s_mov_b32 s{SR+2}, 2211840")
        A(f"buffer_load_dword v248, v8, {S4(SR)}, s56 offen")
        A(f"s_cmp_eq_u32 s{W}, 0"); A(f"s_cselect_b64 s[{SR}:{SR+1}], s[88:89], s[{SWS}:{SWS+1}]"); A(f"s_cselect_b32 s{SR+2}, 819200, s{SWS+2}")
        A(f"v_lshlrev_b32 v8, 21, {v(LANE)}"); A(f"s_add_u32 s56, s56, {(1<<21) - 65536}"); A(f"s_cmp_eq_u32 s{W}, 0"); A("s_cselect_b32 s56, 0, s56")
        A(f"buffer_load_dword v248, v8, {S4(SR)}, s56 offen")
    ST.mark()
    A(f"s_and_b32 s{wm}, s{W}, 1"); A(f"s_lshr_b32 s{wn}, s{W}, 1")
    A(f"v_lshrrev_b32 {v(t0)}, 1, {v(nn)}"); A(f"v_xor_b32 {v(t0)}, {v(t0)}, {v(qq)}"); A(f"v_lshlrev_b32 {v(t0)}, 4, {v(t0)}")
    A(f"v_lshl_add_u32 {v(t0)}, {v(nn)}, 7, {v(t0)}"); A(f"s_lshl_b32 s56, s{wm}, 13"); A(f"v_add_u32 {v(xa)}, s56, {v(t0)}"); A(f"v_xor_b32 {v(xa+1)}, 64, {v(xa)}")
    A(f"v_lshrrev_b32 {v(t0)}, 2, {v(nn)}"); A(f"v_lshl_add_u32 {v(t1)}, {v(qq)}, 3, {v(t0)}"); A(f"v_lshlrev_b32 {v(t1)}, 8, {v(t1)}")
    A(f"v_and_b32 {v(t2)}, 1, {v(qq)}"); A(f"v_lshl_add_u32 {v(t0)}, {v(t2)}, 2, {v(t0)}")
    A(f"s_lshl_b32 s40, s{wn}, 1"); A(f"s_add_u32 s40, s40, s{wm}"); A("s_lshl_b32 s40, s40, 1")
    A(f"v_xor_b32 {v(t0)}, s40, {v(t0)}"); A(f"v_lshl_add_u32 {v(t1)}, {v(t0)}, 5, {v(t1)}")
    A(f"v_and_b32 {v(t0)}, 3, {v(nn)}"); A(f"v_lshl_add_u32 {v(t1)}, {v(t0)}, 3, {v(t1)}"); A(f"v_add_u32 {v(wa)}, 16384, {v(t1)}")
    for i in range(1, 4): A(f"v_xor_b32 {v(wa+i)}, {32*i}, {v(wa)}")
    for i in range(4): A(f"v_mov_b32 {v(ONES+i)}, 0x3f803f80")
    A(f"s_lshl_b32 s56, s{W}, 11"); A(f"v_add_u32 {v(ex)}, s56, {v(LV)}")
    A(f"s_lshl_b32 s41, s{rt}, 1"); A(f"s_add_u32 s41, s41, s{wm}")
    A(f"s_lshl_b32 s{srs}, s41, 8"); A(f"s_add_u32 s{srs}, s{srs}, {RS_OFF}"); A(f"s_add_u32 s43, s{srs}, 8192")
    A(f"s_cmp_lt_u32 s{ct}, 5"); A(f"s_cselect_b32 s42, {hex(QSCALE)}, 1.0"); A(f"s_lshl_b32 s44, s{rt}, 2"); A(f"s_cmp_eq_u32 s{W}, 0"); A(f"s_cselect_b32 s44, s44, {OOB}")
    A(f"s_cmp_ge_u32 s{ct}, 10"); A(f"s_cbranch_scc1 {K}_v")

    def base_of(stage): return {0: 0, 1: 0, 2: 65536, 3: 65536, 4: 131072}[stage % 5]
    def reads(stage):
        so = (stage % 5)*32768 - base_of(stage); f = FR + 64*(stage & 1)
        X = [[f"ds_read_b128 {r(f+8*xi+4*ks,4)}, {v(xa+ks)} offset:{so+2048*xi}" for ks in range(2)] for xi in range(4)]
        Wt = [[f"ds_read_b64_tr_b16 {r(f+32+8*wi+4*ks+2*h,2)}, {v(wa+wi)} offset:{so+(32*ks+4*h)*256}" for ks in range(2) for h in range(2)] for wi in range(4)]
        return Wt[0] + X[0] + X[1] + X[2] + X[3] + Wt[1] + Wt[2] + Wt[3]
    def mainloop(isv):
        tag = "v" if isv else "q"
        if not isv:
            A(f"s_mul_i32 s{sst}, s41, 5120")
            A(f"s_lshl_b32 s38, s{ct}, 4"); A("s_lshl_b32 s39, s40, 1"); A("s_add_u32 s38, s38, s39"); A("s_mov_b32 s39, 163840")
            A(f"v_and_b32 {v(t0)}, 1, {v(qq)}"); A(f"v_lshrrev_b32 {v(t3)}, 1, {v(qq)}"); A(f"v_lshl_add_u32 {v(t3)}, {v(t0)}, 1, {v(t3)}")
            for a_ in range(2):
                A(f"s_xor_b32 s45, s38, {4*a_}")
                A(f"v_add_u32 {v(t0)}, s45, {v(t3)}"); A(f"v_mul_u32_u24 {v(t1)}, 205, {v(t0)}"); A(f"v_lshrrev_b32 {v(t1)}, 10, {v(t1)}")
                A(f"v_mul_u32_u24 {v(t2)}, 5, {v(t1)}"); A(f"v_sub_u32 {v(t0)}, {v(t0)}, {v(t2)}")
                A(f"v_mul_u32_u24 {v(t1)}, s39, {v(t1)}"); A(f"v_lshl_add_u32 {v(t0)}, {v(t0)}, 9, {v(t1)}"); A(f"v_lshl_add_u32 {v(sa+a_)}, {v(nn)}, 4, {v(t0)}")
            A(f"v_lshlrev_b32 {v(rv)}, 2, {v(nn)}")
        else:
            A(f"s_mul_i32 s{sst}, s41, 2560"); A(f"s_add_u32 s{sst}, s{sst}, {V_OFF}")
            A(f"s_sub_u32 s38, s{ct}, 10"); A("s_lshl_b32 s38, s38, 7"); A("s_lshl_b32 s39, s40, 4"); A("s_add_u32 s38, s38, s39"); A("s_mov_b32 s39, 81920")
            A(f"v_mul_u32_u24 {v(t3)}, 320, {v(qq)}")
            for wi in range(4):
                A(f"s_xor_b32 s45, s38, {16*wi}")
                A(f"v_add_u32 {v(t0)}, s45, {v(nn)}"); A(f"v_mul_u32_u24 {v(t1)}, 3277, {v(t0)}"); A(f"v_lshrrev_b32 {v(t1)}, 16, {v(t1)}")
                A(f"v_mul_u32_u24 {v(t2)}, 20, {v(t1)}"); A(f"v_sub_u32 {v(t0)}, {v(t0)}, {v(t2)}")
                A(f"v_mul_u32_u24 {v(t1)}, s39, {v(t1)}"); A(f"v_lshl_add_u32 {v(t0)}, {v(t0)}, 4, {v(t1)}"); A(f"v_add_u32 {v(sa+wi)}, {v(t0)}, {v(t3)}")
            A(f"v_lshlrev_b32 {v(rv)}, 4, {v(qq)}")
        Q = VQ(); Q.add(0, dma(0))
        Q.q += ["t"]*((NT > 0) + (NX > 0) + 2*(TL > 0))
        A.ext(Q.add(1, dma(1)))
        A.ext(Q.wait(0)); A("s_barrier"); ST.mark(2)
        A.ext(reads(0))
        BP = CFG.get("p1bp", 8); FS = CFG.get("p1fs", 7)
        rsl = [f"buffer_load_dword{'x4' if isv else ''} {v(RS+16*k_+4*xi, 4 if isv else 1)}, {v(rv)}, {S4(SWS)}, s{43 if k_ else srs} offen offset:{64*xi} sc1" for k_ in range(2) for xi in range(4)]
        flag = f"buffer_load_dword {v(t0)}, off, {S4(SD)}, s44 sc1"
        for st in range(10):
            if 4*st in P1ST(): ST.mark(3 + P1ST().index(4*st))
            f = FR + 64*(st & 1); X = lambda xi, ks: f+8*xi+4*ks; Wf = lambda wi, ks: f+32+8*wi+4*ks
            mf = []
            for wi in range(4):
                if wi < 2:
                    for ks in range(2):
                        c0 = "0" if (st == 0 and ks == 0) else None
                        mf.append(mf16(CS+4*wi, ONES, Wf(wi, ks), c0) if isv else mf16(CS+4*wi, Wf(wi, ks), ONES, c0))
                for xi in range(4):
                    for ks in range(2):
                        c0 = "0" if (st == 0 and ks == 0) else None
                        mf.append(mf16(ACC+16*wi+4*xi, X(xi, ks), Wf(wi, ks), c0) if isv else mf16(ACC+16*wi+4*xi, Wf(wi, ks), X(xi, ks), c0))
            A("s_waitcnt lgkmcnt(0)")
            head, valu = [], []
            if st == 0: head = Q.add(2, dma(2))
            if st < 9 and base_of(st+1) != base_of(st):
                d = (base_of(st+1) - base_of(st)) & 0xffffffff
                valu = [f"v_add_u32 {v(x)}, {d}, {v(x)}" for x in range(xa, xa+6)]
            if st == FS: head = head + Q.add("f", [flag])
            dm = dma(st+3) if st+3 < 10 else []
            if st < 9:
                slots = {k: [] for k in range(36)}
                rd = reads(st+1); RE = CFG.get("p1re", 31)
                for j, x in enumerate(rd): slots[BP + (j*(RE-BP))//24].append((None, x))
                if st == 0:
                    for j, x in enumerate(head): slots[min(j, BP-1)].append((None, x))
                    pos = [BP+1 + (27*j)//8 for j in range(8)]
                else:
                    slots[0] += [(None, x) for x in head]
                    pos = [1 + (36*j)//8 for j in range(8)]
                if st == FS+1: dm = rsl; pos = [BP+1 + 3*j for j in range(8)]
                j = 0
                for k_, x in enumerate(dm):
                    if is_salu(x): slots[max(pos[j] - (2 if is_salu(dm[k_+1]) else 1), pos[j-1] if j else (BP if st == 0 else 0))].append((None, x))
                    else: slots[pos[j]].append(("rs" if st == FS+1 else st+3, x)); j += 1
                for k in range(36):
                    if k == BP:
                        A.ext(Q.wait(st+1))
                        if st == FS+1:
                            A.ext(Q.wait("f")); A(f"v_or_b32 {v(t0)}, s{W}, {v(t0)}"); A(f"v_cmp_eq_u32 vcc, 0, {v(t0)}"); A("s_nop 1"); A(f"s_cbranch_vccnz {K}_rsspin{tag}"); A(f"{K}_rsok{tag}:")
                        A("s_barrier")
                    A(mf[k])
                    sl = slots[k]
                    first = [e for e in sl if is_salu(e[1])][:1] if (sl and not sl[0][1].startswith("buffer") and st) else []
                    for e in first + [e for e in sl if e not in first]:
                        if e[0] is not None: Q.add(e[0], [e[1]])
                        A(e[1])
                    if k < len(valu): A(valu[k])
            else:
                A.ext(mf[:22])
                A(f"ds_write_b128 {v(ex)}, {v(CS,4)}"); A(f"ds_write_b128 {v(ex)}, {v(CS+4,4)} offset:1024"); A.ext(mf[22:28])
                A(f"v_xor_b32 {v(ex)}, 2048, {v(ex)}"); A("s_waitcnt lgkmcnt(0)"); A("s_barrier"); A(mf[28])
                A(f"ds_read_b128 {v(CS+8,4)}, {v(ex)}"); A(f"ds_read_b128 {v(CS+12,4)}, {v(ex)} offset:1024"); A.ext(mf[29:])
        ST.mark(3 + len(P1ST()))
        A.ext(Q.wait("rs"))
        if not isv:
            for xi in range(4): A(f"v_mul_f32 {v(RS+16+4*xi)}, s42, {v(RS+16+4*xi)}")
        n_ = 0
        for grp in ([(a_, xi) for a_ in range(2) for xi in range(4)] if not isv else [(wi, xp) for wi in range(4) for xp in range(2)]):
            tiles = [(2*grp[0]+j, grp[1]) for j in range(2)] if not isv else [(grp[0], 2*grp[1]+j) for j in range(2)]
            if n_ == 4: A("s_waitcnt lgkmcnt(0)")
            o = OB + 4*(n_ % 4); n_ += 1
            for wi, xi in tiles:
                ac = ACC+16*wi+4*xi
                for i in (0, 2):
                    if not isv: A(f"v_pk_fma_f32 {v(ac+i,2)}, {v(CS+4*wi+i,2)}, {v(RS+4*xi,2)}, {v(ac+i,2)} op_sel_hi:[1,0,1]")
                    else: A(f"v_pk_fma_f32 {v(ac+i,2)}, {v(RS+4*xi+i,2)}, {v(CS+4*wi,2)}, {v(ac+i,2)} op_sel_hi:[1,0,1]")
            for wi, xi in tiles:
                ac = ACC+16*wi+4*xi
                for i in (0, 2):
                    if not isv: A(f"v_pk_mul_f32 {v(ac+i,2)}, {v(ac+i,2)}, {v(RS+16+4*xi,2)} op_sel_hi:[1,0]")
                    else: A(f"v_pk_mul_f32 {v(ac+i,2)}, {v(ac+i,2)}, {v(RS+16+4*xi+i,2)}")
            for i in range(2):
                for j, (wi, xi) in enumerate(tiles): A(f"v_cvt_pk_bf16_f32 {v(o+2*j+i)}, {v(ACC+16*wi+4*xi+2*i)}, {v(ACC+16*wi+4*xi+2*i+1)}")
            sw = "v_permlane32_swap_b32" if isv else "v_permlane16_swap_b32"
            A(f"{sw} {v(o)}, {v(o+2)}"); A("s_nop 0"); A(f"{sw} {v(o+1)}, {v(o+3)}")
            if not isv: A(f"buffer_store_dwordx4 {v(o,4)}, {v(sa+grp[0])}, {S4(SWS)}, s{sst} offen offset:{2560*(grp[1]>>1)+256*(grp[1]&1)} sc1")
            else: A(f"buffer_store_dwordx4 {v(o,4)}, {v(sa+grp[0])}, {S4(SWS)}, s{sst} offen offset:{1280*grp[1]} sc1")
        def spin():
            A(f"{K}_rsspin{tag}:"); poll(A, [flag], [t0], sleep=10); A(f"s_branch {K}_rsok{tag}")
        return spin
    spq = mainloop(False)
    A(f"s_branch {K}_p1done")
    A(f"{K}_idle0:")
    XB, SM = 64, 40
    KS = CFG.get("idle_k", 5)
    A(f"s_add_u32 s{sox}, s{sox}, {128*KS}")
    def xl(i):
        st_, b_ = divmod(i, 4)
        L = [f"buffer_load_dwordx4 {v(XB+4*i,4)}, {v(dmx+b_)}, {S4(SX)}, s{sox} offen offset:{b_*1024}"]
        if b_ == 3: L.append(f"s_add_u32 s{sox}, s{sox}, {128 if st_+KS != 9 else (128-1280) & 0xffffffff}")
        return L
    for i in range(8): A.ext(xl(i))
    common()
    for i in range(1, 4 + len(P1ST())): ST.mark(i)
    for i in range(4): A(f"v_mov_b32 {v(8+i)}, 0"); A(f"v_mov_b32 {v(ONES+i)}, 0x3f803f80")
    for i in range(8): A(f"v_mov_b32 {v(SM+i)}, 0")
    def dots(i):
        for j in range(4): A(f"v_dot2c_f32_bf16 {v(SM+2*(i%4))}, {v(ONES)}, {v(XB+4*i+j)}"); A(f"v_dot2c_f32_bf16 {v(SM+2*(i%4)+1)}, {v(XB+4*i+j)}, {v(XB+4*i+j)}")
    for i in range(8, 40):
        A.ext(xl(i))
        if i >= 12: A("s_waitcnt vmcnt(12)"); dots(i-12)
    A(f"v_mov_b32 v3, {OOB}")
    A(f"s_mul_i32 s56, s{rt}, 5504"); A(f"s_add_u32 s56, s56, {F2_OFF}"); A("v_lshlrev_b32 v2, 4, v0")
    A(f"buffer_store_dwordx4 v[8:11], v2, {S4(SWS)}, s56 offen sc1"); A(f"buffer_store_dwordx4 v[8:11], v2, {S4(SWS)}, s56 offen offset:1408 sc1")
    A(f"s_lshl_b32 s57, s{rt}, 3"); A("v_add_u32 v2, s57, v0")
    A("v_mul_u32_u24 v2, 640, v2"); A("v_cmp_gt_u32 vcc, 8, v0"); A("s_nop 1"); A("v_cndmask_b32 v2, v3, v2, vcc")
    A(f"s_mov_b32 s56, {V_OFF + 32*81920}")
    A(f"buffer_store_dwordx4 {v(ONES,4)}, v2, {S4(SWS)}, s56 offen sc1")
    A(f"s_lshl_b32 s56, s2, 7"); A(f"s_add_u32 s56, s56, {F1_OFF}"); A(f"v_mov_b32 v4, s{MYF}"); A(f"buffer_store_dword v4, off, {S4(SWS)}, s56 sc1")
    for i in range(28, 40):
        A(f"s_waitcnt vmcnt({43-i})"); dots(i)
    A("s_nop 2")
    for mod in ("quad_perm:[1,0,3,2]", "quad_perm:[2,3,0,1]", "row_half_mirror"):
        for i in range(8): A(f"v_add_f32_dpp {v(SM+i)}, {v(SM+i)}, {v(SM+i)} {mod} row_mask:0xf bank_mask:0xf")
    A(f"v_and_b32 v2, 7, {v(LANE)}")
    for b_ in range(1, 4):
        A(f"v_cmp_eq_u32 vcc, {b_}, v2"); A("s_nop 1"); A(f"v_cndmask_b32 {v(SM)}, {v(SM)}, {v(SM+2*b_)}, vcc"); A(f"v_cndmask_b32 {v(SM+1)}, {v(SM+1)}, {v(SM+2*b_+1)}, vcc")
    A(f"v_mul_f32 {v(SM)}, {hex(f2u(-1/640))}, {v(SM)}"); A(f"v_mul_f32 {v(SM+1)}, {hex(f2u(1/640))}, {v(SM+1)}")
    A(f"v_fma_f32 {v(SM+1)}, -{v(SM)}, {v(SM)}, {v(SM+1)}"); A(f"v_max_f32 {v(SM+1)}, 0, {v(SM+1)}")
    A(f"v_add_f32 {v(SM+1)}, {hex(f2u(1e-5))}, {v(SM+1)}"); A(f"v_rsq_f32 {v(SM+1)}, {v(SM+1)}")
    A(f"v_lshrrev_b32 v4, 3, {v(LANE)}"); A("v_lshl_add_u32 v4, v2, 3, v4"); A("v_lshlrev_b32 v4, 2, v4"); A("v_cmp_gt_u32 vcc, 4, v2"); A("s_nop 1"); A("v_cndmask_b32 v4, v3, v4, vcc")
    A(f"s_lshl_b32 s56, s{rt}, 2"); A(f"s_add_u32 s56, s56, s{W}"); A("s_lshl_b32 s57, s56, 7"); A(f"s_add_u32 s57, s57, {RS_OFF}"); A("s_add_u32 s58, s57, 8192")
    A(f"buffer_store_dword {v(SM)}, v4, {S4(SWS)}, s57 offen sc1"); A(f"buffer_store_dword {v(SM+1)}, v4, {S4(SWS)}, s58 offen sc1")
    A(f"s_lshl_b32 s57, s{rt}, 2"); A(f"s_cmp_eq_u32 s{W}, 0"); A(f"s_cselect_b32 s57, s57, {OOB}"); A("v_mov_b32 v2, 1")
    A("s_waitcnt vmcnt(0)"); A("s_barrier")
    A("s_mov_b64 exec, 1"); A(f"buffer_store_dword v2, off, {S4(SD)}, s57 sc1"); A("s_mov_b64 exec, -1")
    A("s_lshl_b32 s56, s56, 13")
    for it in range(CFG.get("idle_t", 0)):
        for m_ in range(4):
            if it*524288 < WT[m_][1]: A.ext(wtouch(m_, 56))
        A("s_add_u32 s56, s56, 524288")
    A(f"s_branch {K}_p1done")
    A(f"{K}_v:")
    spv = mainloop(True)
    A(f"{K}_p1done:")
    ST.n = 4 + len(P1ST())
    ST.mark()
    A(f"v_and_b32 v14, 15, {v(LANE)}"); A("v_lshlrev_b32 v14, 2, v14"); A(f"s_cmp_eq_u32 s{W}, 0"); A(f"s_cselect_b32 s22, 0, {OOB}")
    r0l = f"buffer_load_dword v15, v14, {S4(SD)}, s22 offen sc1"
    A(r0l)
    relayout_setup(A)
    def finish():
        A(f"v_mov_b32 v3, s{MYF}")
        A(f"s_lshl_b32 s56, s2, 7"); A(f"s_add_u32 s56, s56, {F1_OFF}"); A("s_add_u32 s56, s56, s22")
        ok = A.label("r0ok")
        A("s_waitcnt vmcnt(0)"); A(f"v_or_b32 v15, s{W}, v15"); A("v_cmp_eq_u32 vcc, 0, v15"); A("s_nop 1"); A(f"s_cbranch_vccz {ok}")
        poll(A, [r0l], [15], sleep=10)
        A(f"{ok}:")
        A("s_barrier")
        A("s_mov_b64 exec, 1"); A(f"buffer_store_dword v3, off, {S4(SWS)}, s56 sc1"); A("s_mov_b64 exec, -1")
        ST.mark()
    return finish, (lambda: (spq(), spv()))

def w3reg(f): return 256 + 192 + 4*f if f < 16 else 148 + 4*(f-16)
WV = 250
P3RES, P3CS = 184, 194
SK_WR, SK_RD, SK_RM = 242, 245, 246
def p3_wload(f):
    ks, u = divmod(f, 5)
    L = [f"buffer_load_dwordx4 {r(w3reg(f),4)}, {v(WV if u < 4 else WV+1)}, {S4(SWS)}, s44 offen offset:{1024*(u&3)} sc1"]
    if u == 4: L.append("s_add_u32 s44, s44, 40960")
    return L
CMB = 86016

def TOUCHES(key="touch", dflt=""): return [(int(x.split(":")[0]), x.split(":")[1]) for x in str(CFG.get(key, dflt)).split(",") if x]
def gtouch(what):
    c, k_ = what[0], int(what[1:] or 0)
    if c == "u": return [f"s_mov_b64 s[{SR}:{SR+1}], s[86:87]", f"s_mov_b32 s{SR+2}, 2621440", f"buffer_load_dword v248, v147, {S4(SR)}, s90 offen offset:{1280*k_} sc1"]
    reg, vr, base = {"n": (76, 145, HH_OFF + 1152*k_), "N": (76, TV, HH_OFF + 3456*k_), "h": (90, 147, H_OFF + 1280*k_), "o": (90, 147, O_OFF + 1280*k_),
                     "s": (93, None, STAT_OFF), "g": (79, TV, WGU_OFF + 442368*k_), "d": (79, TV, WD_OFF + 442368*k_)}[c]
    return [f"s_add_u32 s91, s{reg}, {base}", f"buffer_load_dword v248, {v(vr) if vr else 'off'}, {S4(SWS)}, s91 {'offen' if vr else ''} sc1"]
def phase2(A, ST, finish1):
    odd, sok, sov, sox, redo, sob, sfr, stch = 28, 72, 73, 74, 32, 33, 34, 35
    S0, S1, P, E, O0 = 16, 48, 80, 96, 104
    kv, kxv, vv, ov, oxv, cw, cr, tv = 136, 137, 138, 139, 140, 141, 144, 145
    OA, QM, QX, KR, VR, XR = 256, 256+96, 256+128, 256+136, 256+152, 256+184
    Oreg = lambda lp: O0 if lp == 0 else OA + 32*(lp-1)
    t0, t1, t2, t3, t4 = 2, 3, 4, 5, 6
    LD = CFG.get("ld", "sc1")
    head, qb = 30, 31
    if CFG.get("hl", 1):
        A(f"s_lshl_b32 s{head}, s{GX}, 2"); A(f"s_and_b32 s36, s{GI}, 3"); A(f"s_add_u32 s{head}, s{head}, s36"); A(f"s_lshr_b32 s{qb}, s{GI}, 2")
    else:
        A(f"s_mov_b32 s{head}, s{GI}"); A(f"s_mov_b32 s{qb}, s{GX}")
    A(f"s_and_b32 s{odd}, s{head}, 1")
    A(f"s_lshr_b32 s36, s{head}, 1"); A("s_mul_i32 s37, s36, 163840")
    A(f"s_add_u32 s38, s37, {16*163840}"); A(f"s_add_u32 s{SA}, s{SWS}, s38"); A(f"s_addc_u32 s{SA+1}, s{SWS+1}, 0"); A(f"s_mov_b32 s{SA+2}, 163840")
    A(f"s_lshl_b32 s38, s{qb}, 2"); A(f"s_add_u32 s39, s38, s{W}")
    A(f"s_mul_i32 s{sob}, s39, 81920"); A("s_mul_i32 s36, s36, 1280"); A(f"s_add_u32 s{sob}, s{sob}, s36"); A(f"s_add_u32 s{sob}, s{sob}, {O_OFF}")
    for i in range(4):
        A(f"s_add_u32 s36, s{W}, {i}"); A("s_and_b32 s36, s36, 3")
        if i: A("s_mul_i32 s39, s36, 18432"); A(f"s_add_u32 s39, s39, {CMB+(i-1)*6144}"); A(f"v_add_u32 {v(cw+i-1)}, s39, {v(LV)}")
        else: A("s_mul_i32 s39, s36, 18432"); A(f"s_add_u32 s39, s39, {CMB}"); A(f"v_add_u32 {v(cr)}, s39, {v(LV)}")
        A("s_add_u32 s36, s36, s38"); A("s_mul_i32 s36, s36, 5120"); A(f"s_add_u32 s{40+i}, s36, s37")
    A(f"s_mul_i32 s36, s{odd}, 1536"); A(f"v_add_u32 {v(kv)}, s36, {v(LV)}")
    A(f"v_and_b32 {v(t0)}, 31, {v(LANE)}"); A(f"v_lshrrev_b32 {v(t1)}, 5, {v(LANE)}")
    A(f"s_lshl_b32 s36, s{odd}, 3"); A("s_add_u32 s37, s36, 1024")
    A(f"v_lshl_add_u32 {v(t4)}, {v(t0)}, 4, s37")
    A(f"v_mul_u32_u24 {v(t2)}, 2560, {v(t1)}"); A(f"v_add_u32 {v(kxv)}, {v(t4)}, {v(t2)}")
    A(f"v_bfe_u32 {v(t2)}, {v(LANE)}, 4, 1"); A(f"v_mul_u32_u24 {v(t2)}, 20480, {v(t2)}"); A(f"v_and_b32 {v(t3)}, 15, {v(LANE)}"); A(f"v_lshl_add_u32 {v(t2)}, {v(t3)}, 4, {v(t2)}")
    A("s_add_u32 s37, s36, 512"); A(f"v_add_u32 {v(oxv)}, s37, {v(t2)}")
    A(f"s_mul_i32 s37, s{odd}, 768"); A(f"v_lshl_add_u32 {v(t2)}, {v(t1)}, 8, {v(t2)}"); A(f"v_add_u32 {v(ov)}, s37, {v(t2)}")
    A(f"v_lshrrev_b32 {v(t2)}, 2, {v(t0)}"); swap01(A, t3, t2, 7)
    A(f"v_and_b32 {v(t2)}, 3, {v(t0)}"); A(f"v_lshl_add_u32 {v(t2)}, {v(t3)}, 2, {v(t2)}")
    A(f"s_lshl_b32 s36, s{odd}, 2"); A(f"v_add_u32 {v(t2)}, s36, {v(t2)}")
    A(f"v_add_u32 {v(t3)}, -20, {v(t2)}"); A(f"v_min_u32 {v(t2)}, {v(t2)}, {v(t3)}")
    A(f"v_mul_u32_u24 {v(t3)}, 320, {v(t1)}"); A(f"v_lshl_add_u32 {v(t2)}, {v(t2)}, 4, {v(t3)}")
    A(f"v_mov_b32 {v(t3)}, {OOB}"); A(f"v_cmp_gt_u32 vcc, 20, {v(t0)}"); A("s_nop 1"); A(f"v_cndmask_b32 {v(t2)}, {v(t3)}, {v(t2)}, vcc")
    A(f"s_sub_u32 s36, 32, s{head}"); A("s_mul_i32 s36, s36, 81920"); A(f"v_mov_b32 {v(t3)}, s36")
    A(f"v_cmp_eq_u32 vcc, 20, {v(t0)}"); A("s_nop 1"); A(f"v_cndmask_b32 {v(vv)}, {v(t2)}, {v(t3)}, vcc")
    A(f"s_mul_i32 s{sok}, s{W}, {16*2560}"); A(f"s_mov_b32 s{sox}, s{sok}")
    A(f"s_mul_i32 s{sov}, s{head}, 81920"); A(f"s_mul_i32 s36, s{W}, {16*1280}"); A(f"s_add_u32 s{sov}, s{sov}, s36"); A(f"s_add_u32 s{sov}, s{sov}, {V_OFF}")
    A(f"s_mov_b32 s{redo}, 0")
    A(f"v_add_u32 v252, 4096, {v(LV)}")
    A(f"s_bfe_u32 s36, s{GI}, 0x10002"); A("s_lshl_b32 s37, s36, 10"); A(f"v_add_u32 {v(WV)}, s37, {v(LV)}")
    A("s_xor_b32 s36, s36, 1"); A("s_lshl_b32 s37, s36, 12"); A(f"v_add_u32 {v(WV+1)}, s37, {v(LV)}")
    A(f"s_lshr_b32 s36, s{GI}, 2"); A("s_mul_i32 s36, s36, 5120"); A(f"s_mul_i32 s44, s{W}, {5*40960}"); A("s_add_u32 s44, s44, s36"); A(f"s_add_u32 s44, s44, {WO_OFF}")
    skinny_addr(A); p4_setup(A)
    A(f"s_lshl_b32 s75, s{P4_ST}, 7"); A(f"s_add_u32 s75, s75, {CS_OFF}"); A("v_lshlrev_b32 v146, 2, v0")
    A(f"s_lshl_b32 s{sfr}, s2, 5"); A(f"s_add_u32 s{sfr}, s{sfr}, s{W}"); A(f"s_lshl_b32 s{sfr}, s{sfr}, 2"); A(f"s_add_u32 s{sfr}, s{sfr}, {FR_OFF}")
    A("s_cmp_lt_u32 s2, 192"); A(f"s_cselect_b32 s{sfr}, s{sfr}, {OOB}"); A(f"v_min_u32 v11, {47*128}, {v(TV)}")
    A(f"s_lshl_b32 s36, s{GX}, 5"); A(f"s_add_u32 s36, s36, s{GI}"); A("s_lshl_b32 s36, s36, 2"); A(f"s_add_u32 s36, s36, s{W}")
    A("s_mul_i32 s76, s36, 6912"); A("s_mul_i32 s90, s36, 2560"); A("s_lshl_b32 s93, s36, 7")
    A("s_and_b32 s79, s36, 127"); A("s_mul_i32 s79, s79, 3456")
    A(f"v_min_u32 {v(tv)}, {8*128}, {v(TV)}"); A(f"v_min_u32 v147, {9*128}, {v(TV)}"); A(f"v_min_u32 {v(TV)}, {26*128}, {v(TV)}")
    A(f"v_and_b32 v8, 31, {v(LANE)}"); A("v_lshlrev_b32 v8, 10, v8"); A(f"s_lshl_b32 s77, s{GX}, 7"); A(f"s_add_u32 s77, s77, {F1_OFF}"); A("v_mov_b32 v10, 1")
    A(f"s_mul_i32 s78, s{W}, {48*128}"); A(f"s_add_u32 s78, s78, {FR_OFF}")
    finish1()
    A("s_and_b32 s36, s2, 0x7f"); A("s_lshl_b32 s36, s36, 7"); A(f"s_add_u32 s36, s36, {F1_OFF}")
    lab = A.label("busy"); A("s_cmp_lt_u32 s2, 240"); A(f"s_cbranch_scc1 {lab}")
    poll(A, [f"buffer_load_dword v4, off, {S4(SWS)}, s36 sc1"], [4], sleep=6)
    A(f"{lab}:")
    A("v_lshlrev_b32 v2, 7, v0"); A(f"s_mov_b32 s36, {F1_OFF}")
    poll(A, [f"buffer_load_dword v4, v2, {S4(SWS)}, s36 offen sc1"], [4])
    A("s_barrier")
    ST.mark()
    Kr = lambda t: KR + 4*(t % 4)
    Vr = lambda t, sx: VR + 8*(t % 4) + 4*sx
    Xr = lambda j: XR + 2*(j % 2)
    def ldk(t): return [f"buffer_load_dwordx4 {r(Kr(t),4)}, {v(kv)}, {S4(SA)}, s{sok} offen offset:{2560*(t&1)} {LD}"] + ([f"s_add_u32 s{sok}, s{sok}, 5120"] if t & 1 else [])
    def ldx(j): return [f"buffer_load_dwordx2 {r(Xr(j),2)}, {v(kxv)}, {S4(SA)}, s{sox} offen sc1", f"s_add_u32 s{sox}, s{sox}, 5120"]
    def ldv(t, sx): return [f"buffer_load_dwordx4 {r(Vr(t,sx),4)}, {v(vv)}, {S4(SWS)}, s{sov} offen offset:{1280*(t&1)+640*sx} {LD}"] + ([f"s_add_u32 s{sov}, s{sov}, 2560"] if (t & 1 and sx) else [])
    def ldq(lp): return ([f"buffer_load_dwordx2 {r(QX+2*lp,2)}, {v(kxv)}, {S4(SWS)}, s{40+lp} offen sc1"] +
                         [f"buffer_load_dwordx4 {r(QM+8*lp+4*j,4)}, {v(kv)}, {S4(SWS)}, s{40+lp} offen offset:{2560*j} sc1" for j in range(2)])
    Q = VQ()
    order = (1, 2, 3, 0)
    for tag, ops in ((("x", 0), ldx(0)), (("k", 0), ldk(0)), (("q", 1), ldq(1)), (("q", 2), ldq(2)), (("v", 0, 0), ldv(0, 0)), (("v", 0, 1), ldv(0, 1)),
                     (("q", 3), ldq(3)), (("q", 0), ldq(0))):
        A.ext(Q.add(tag, ops))
    side = {b: [] for b in range(64)}
    mid = {b: [] for b in range(64)}
    def put(b, tag, ops): side[b] += [(tag, x) for x in ops]
    put(0, ("k", 1), ldk(1)); put(0, ("v", 1, 0), ldv(1, 0)); put(1, ("v", 1, 1), ldv(1, 1)); put(1, ("x", 1), ldx(1)); put(1, ("k", 2), ldk(2))
    put(2, ("v", 2, 0), ldv(2, 0)); put(2, ("v", 2, 1), ldv(2, 1)); put(2, ("k", 3), ldk(3)); put(3, ("v", 3, 0), ldv(3, 0)); put(3, ("v", 3, 1), ldv(3, 1))
    for t in range(12):
        put(4*t+3 + (t == 0), ("k", t+4), ldk(t+4)); put(4*t+4, ("v", t+4, 0), ldv(t+4, 0)); put(4*t+5, ("v", t+4, 1), ldv(t+4, 1))
    for j in range(6): put(8*j+6, ("x", j+2), ldx(j+2))
    for b in (7, 23, 39, 55): put(b, "pc", [CODE_TOUCH])
    B0 = CFG.get("b0", 4); B1 = B0 + CFG.get("b1", 8)
    if not CFG.get("noside"):
        put(3, "grp", [f"buffer_load_dword v9, v8, {S4(SWS)}, s77 offen sc1"])
        SP = CFG.get("rsp", 2)
        for i in range(10): put(B0+SP*i, ("rd", i), rl_dma(i))
        for a_ in range(5):
            b_ = B1 + SP - 1 + 2*SP*a_
            put(b_, None, [("wait", ("rd", 2*a_+1))] + rl_read(a_, 0) + rl_read(a_, 1))
            put(b_+1, "rs", ["s_waitcnt lgkmcnt(0)"] + rl_store(a_, 0) + rl_store(a_, 1)); mid[b_+1] += [rl_sum(a_, 0), rl_sum(a_, 1)]
        put(b_+2, "rs", rl_cs(0) + rl_cs(1))
        B2 = b_ + 2 + CFG.get("b2", 5)
        put(B2, "fr", [("wait", "rs"), f"buffer_store_dword v10, off, {S4(SWS)}, s{sfr} sc1"])
        put(8, None, [("wait", "grp"), f"v_cmp_ne_u32 vcc, s{MYF}, v9", "s_nop 0", "s_cmp_eq_u64 vcc, 0", f"s_cselect_b32 s{MODE}, {0 if CFG.get('safe') else 1}, 0"])
        put(9, None, [f"s_cmp_eq_u32 s{MODE}, 0", f"s_cselect_b32 s{stch}, {OOB}, 0", f"s_add_u32 s76, s76, s{stch}", f"s_add_u32 s90, s90, s{stch}", f"s_add_u32 s93, s93, s{stch}"])
        B3 = B2 + CFG.get("b3", 5)
        frl = [f"buffer_load_dwordx4 {v(RLF,4)}, v11, {S4(SWS)}, s78 offen sc1"]
        put(B3, "frl", frl)
        chk = [f"v_min3_u32 {v(RLF)}, {v(RLF)}, {v(RLF+1)}, {v(RLF+2)}", f"v_min_u32 {v(RLF)}, {v(RLF)}, {v(RLF+3)}", f"v_cmp_eq_u32 vcc, 0, {v(RLF)}"]
        put(B3+3, None, [("wait", "frl")] + chk + ["s_nop 0", f"s_cbranch_vccnz {K}_frspin", f"{K}_frok:", "s_barrier"])
        pf = [x for st_ in range(3) for x in p4_dma(st_)]
        pf += [x for kq in range(4) for x in (f"buffer_load_dword {v(P3CS+kq)}, v146, {S4(SWS)}, s75 offen sc1", f"s_add_u32 s75, s75, {108*128}")]
        pf += io_rm("load", P3RES, SX)
        pf += [x for f in range(25) for x in p3_wload(f)]
        for b_, what in TOUCHES(): put(b_, "t", gtouch(what))
        PE = CFG.get("pfe", 61); nreal = sum(not is_salu(x) for x in pf)
        for b in range(B3+4, PE):
            take = -(-nreal//(PE-b))
            while pf and (take > 0 or is_salu(pf[0])):
                x = pf.pop(0); put(b, "pf", [x])
                if not is_salu(x): take -= 1; nreal -= 1
    else: A(f"s_mov_b32 s{MODE}, 1")
    for n in range(3):
        lp = order[n]
        put(61+n, None, [f"ds_write_b128 {v(cw+lp-1)}, {r(Oreg(lp)+16*j+4*g,4)} offset:{3072*j+1024*g}" for j in range(2) for g in range(3)])
    A.ext(Q.wait(("q", 1)))
    A(mf2b(S0, Xr(0), QX+2, "0", 0)); A("s_nop 15"); A("s_nop 1")
    A(mf32(S0, Kr(0), QM+8)); A(mf32(S0+16, Kr(0), QM+12))
    A.ext(Q.wait(("q", 2)))
    ST.mark()
    A("s_nop 10"); A(".p2align 3")
    def needs(b, k):
        if b > 63: return []
        t, t1_, lp1 = b >> 2, (b+1) >> 2, order[(b+1) & 3]
        if k == 0: return [("x", t1_ >> 1), ("q", lp1)] if b < 63 else []
        if k == 4: return [("k", t1_)] if b < 63 else []
        if k == 3: return [("v", t, 0)]
        if k == 6: return [("v", t, 1)]
        return []
    for b in range(64):
        t, lp = b >> 2, order[b & 3]
        t1_, lp1 = (b+1) >> 2, order[(b+1) & 3]
        cur, nxt = (S0, S1) if b % 2 == 0 else (S1, S0)
        c0 = "0" if t == 0 else None
        mf = {3: mf32(Oreg(lp), Vr(t, 0), P, c0), 6: mf32(Oreg(lp), Vr(t, 1), P+4), 7: mf32(Oreg(lp)+16, Vr(t, 0), P+8, c0)}
        if b: mf[2] = mf32(Oreg(order[(b-1) & 3])+16, Vr((b-1) >> 2, 1), P+12)
        if b < 63:
            mf[0] = mf2b(nxt, Xr(t1_ >> 1), QX+2*lp1, "0", t1_ & 1); mf[4] = mf32(nxt, Kr(t1_), QM+8*lp1); mf[5] = mf32(nxt+16, Kr(t1_), QM+8*lp1+4)
        q = side[b]; mq = list(mid[b])
        if b in ASTAMPS(): ST.mark()
        for k in range(8):
            if k in mf: A(mf[k])
            n0 = len(A.L)
            if k >= 2:
                tags = needs(b, k+1) if k < 7 else needs(b+1, 0)
                w_ = Q.wait(*tags) if tags else []
                A.ext(w_)
                free = not w_; nmem = 0
                left = sum(1 for tg, x in q if not (isinstance(x, tuple) or is_salu(x) or x.startswith("v_") or x.endswith(":")))
                want = -(-left//(8-k))
                while q:
                    tg, x = q[0]
                    if isinstance(x, tuple):
                        if not free and k < 7 and CFG.get("strict", 1): break
                        q.pop(0); w_ = Q.wait(x[1]); A.ext(w_); free = free and not w_
                    elif x.endswith(":") or x.startswith("v_"): q.pop(0); A(x); free = False; nmem = 99 if k < 7 else nmem
                    elif is_salu(x):
                        if not free and k < 7 and len(q) <= 2*(7-k): break
                        q.pop(0); A(x); free = False
                    else:
                        if nmem >= max(want, 1) and k < 7: break
                        q.pop(0); A.ext(Q.add(tg, [x])); nmem += 1; free = False
            four = sum(1 for x in A.L[n0:] if isize(x) == 4)
            pk = (k-1) % 8; eb = E + 4*(pk & 1)
            if b or k:
                for j in range(2): A(f"v_cvt_pk_bf16_f32 {v(P+2*pk+j)}, {v(eb+2*j)}, {v(eb+2*j+1)}")
            for j in range(4):
                wide = j == 0 and four % 2 == 1 and CFG.get("align", 1)
                A(f"v_exp_f32{'_e64' if wide else ''} {v(E+4*(k&1)+j)}, {v(cur+4*k+j)}")
                if j == 1 and k >= 3 and mq and not any(x == "s_waitcnt lgkmcnt(0)" for _, x in q): A(mq.pop(0))
        assert not q and not mq, (b, q)
    for j in range(2): A(f"v_cvt_pk_bf16_f32 {v(P+14+j)}, {v(E+4+2*j)}, {v(E+5+2*j)}")
    A("s_waitcnt lgkmcnt(0)"); A("s_barrier")
    A(mf32(O0+16, Vr(15, 1), P+12))
    ST.mark()
    for sl in range(3):
        for j in range(2):
            for g in range(3): A(f"ds_read_b128 {v(S0+24*sl+12*j+4*g,4)}, {v(cr)} offset:{6144*sl+3072*j+1024*g}")
        if sl == 1: A("s_waitcnt lgkmcnt(6)")
    A(f"s_lshl_b32 s38, s{qb}, 2"); A(f"s_add_u32 s38, s38, s{W}"); A("s_lshl_b32 s38, s38, 2"); A(f"s_lshr_b32 s39, s{head}, 3"); A("s_add_u32 s38, s38, s39"); A("s_lshl_b32 s38, s38, 5")
    A(f"s_and_b32 s39, s{head}, 7"); A("s_add_u32 s38, s38, s39"); A("s_lshl_b32 s38, s38, 2"); A(f"s_add_u32 s38, s38, {F2_OFF}")
    A(f"s_add_u32 s39, s{sob}, 40960")
    for sl in range(3):
        if sl: A(f"s_waitcnt lgkmcnt({12-6*sl})")
        for j in range(2):
            for i in range(0, 12, 2): A(f"v_pk_add_f32 {v(O0+16*j+i,2)}, {v(O0+16*j+i,2)}, {v(S0+24*sl+12*j+i,2)}")
    A(f"{K}_anorm:")
    A(f"v_mov_b32 v12, {v(O0+8)}"); A(f"v_mov_b32 v13, {v(O0+8)}"); A(f"v_mov_b32 v14, {v(O0+24)}"); A(f"v_mov_b32 v15, {v(O0+24)}")
    A(f"s_mov_b32 s36, {hex(f2u(2.0**60))}"); A(f"s_mov_b32 s37, {hex(f2u(2.0**-60))}")
    A("v_permlane32_swap_b32 v12, v13"); A("v_permlane32_swap_b32 v14, v15"); A("s_nop 1")
    A("v_rcp_f32 v12, v13"); A("v_rcp_f32 v14, v15")
    A("v_cmp_nlt_f32_e64 vcc, v13, s36"); A("v_cmp_nlt_f32_e64 s[40:41], v15, s36"); A("v_cmp_ngt_f32_e64 s[42:43], v13, s37"); A("v_cmp_ngt_f32_e64 s[56:57], v15, s37")
    A("s_or_b64 vcc, vcc, s[40:41]"); A("s_or_b64 vcc, vcc, s[42:43]"); A("s_or_b64 vcc, vcc, s[56:57]"); A(f"s_cbranch_scc1 {K}_aslow")
    A(f"{K}_afin:")
    for j in range(2):
        for i in range(0, 12, 2): A(f"v_pk_mul_f32 {v(O0+16*j+i,2)}, {v(O0+16*j+i,2)}, {v(12+2*j,2)} op_sel_hi:[1,0]")
        for i in range(6): A(f"v_cvt_pk_bf16_f32 {v(S0+8*j+i)}, {v(O0+16*j+2*i)}, {v(O0+16*j+2*i+1)}")
    def stores(fl):
        L = [f"buffer_store_dwordx4 {v(S0+8*j,4)}, {v(ov)}, {S4(SWS)}, s{sob if j == 0 else 39} offen {fl}" for j in range(2)]
        L.append("s_mov_b32 exec_hi, 0")
        if CFG.get("noex"): return L
        L += [f"buffer_store_dwordx2 {v(S0+8*j+4,2)}, {v(oxv)}, {S4(SWS)}, s{sob if j == 0 else 39} offen {fl}" for j in range(2)]
        return L
    publish(A, stores, ["s_mov_b64 exec, 1", "s_waitcnt vmcnt(0)"], lambda fl: [f"buffer_store_dword v10, off, {S4(SWS)}, s38 {fl}", "s_mov_b64 exec, -1"], local=not CFG.get("hl", 1))
    ST.mark()
    def cold():
        if not CFG.get("noside"):
            A(f"{K}_frspin:")
            poll(A, frl, list(range(RLF, RLF+4)), sleep=8)
            A(f"s_branch {K}_frok")
        NM = S1
        A(f"{K}_aslow:")
        A(f"s_cmp_lg_u32 s{redo}, 0"); A(f"s_cbranch_scc1 {K}_afin")
        A(f"s_mov_b32 s{redo}, 1"); A(f"s_mov_b32 s{sok}, 0"); A(f"s_mov_b32 s{sox}, 0")
        A("v_mov_b32 v12, 0xff800000"); A("v_mov_b32 v13, 0xff800000")
        def scores(e, c):
            A(mf2b(S0, Xr(0), QX, c, e)); A("s_nop 15"); A("s_nop 1")
            A(mf32(S0, Kr(e), QM)); A(mf32(S0+16, Kr(e), QM+4)); A("s_nop 11")
        A(f"{K}_mloop:")
        A.ext(ldx(0) + ldk(0) + ldk(1)); A("s_waitcnt vmcnt(0)")
        for e in range(2):
            scores(e, "0")
            for j in range(2):
                for i in range(0, 16, 2): A(f"v_max3_f32 {v(12+j)}, {v(12+j)}, {v(S0+16*j+i)}, {v(S0+16*j+i+1)}")
        A(f"s_cmp_lt_u32 s{sok}, 163840"); A(f"s_cbranch_scc1 {K}_mloop")
        A("v_mov_b32 v14, v12"); A("v_mov_b32 v15, v13"); A("s_nop 1")
        A("v_permlane32_swap_b32 v12, v14"); A("v_permlane32_swap_b32 v13, v15"); A("s_nop 1")
        A("v_max_f32 v12, v12, v14"); A("v_max_f32 v13, v13, v15")
        for i in range(32): A(f"v_sub_f32 {v(NM+i)}, 0, {v(12+i//16)}"); A(f"v_mov_b32 {v(O0+i)}, 0")
        A(f"s_mov_b32 s{sok}, 0"); A(f"s_mov_b32 s{sox}, 0"); A(f"s_mul_i32 s{sov}, s{head}, 81920"); A(f"s_add_u32 s{sov}, s{sov}, {V_OFF}")
        A(f"{K}_sloop:")
        A.ext(ldx(0) + ldk(0) + ldk(1) + ldv(0, 0) + ldv(0, 1) + ldv(1, 0) + ldv(1, 1)); A("s_waitcnt vmcnt(0)")
        for e in range(2):
            scores(e, NM)
            for i in range(32): A(f"v_exp_f32 {v(S0+i)}, {v(S0+i)}")
            A("s_nop 0")
            for i in range(16): A(f"v_cvt_pk_bf16_f32 {v(P+i)}, {v(S0+2*i)}, {v(S0+2*i+1)}")
            A("s_nop 1")
            for j in range(2):
                for sx in range(2): A(mf32(O0+16*j, Vr(e, sx), P+8*j+4*sx))
        A(f"s_cmp_lt_u32 s{sok}, 163840"); A(f"s_cbranch_scc1 {K}_sloop")
        A("s_nop 15")
        A(f"s_branch {K}_anorm")
    return cold

RED = 86016
CSL = 147456
P4_SOW, P4_SOW2, P4_M0, P4_ST = 45, 46, 47, 48
class VQ:
    def __init__(self): self.q = []; self.done = 0
    def add(self, tag, ops):
        self.q += [tag for x in ops if x.startswith(("buffer", "global"))]
        assert len(self.q) - self.done <= 63, "too many outstanding"
        return ops
    def wait(self, *tags):
        idx = [i for i, x in enumerate(self.q) if x in tags]
        last = max(idx) + 1
        if last <= self.done: return []
        self.done = last
        return [f"s_waitcnt vmcnt({len(self.q) - last})"]

def p4_setup(A):
    A(f"s_lshr_b32 s36, s{GI}, 1"); A("s_mul_i32 s36, s36, 7"); A(f"s_min_u32 s{P4_ST}, s36, 101")
    A(f"s_mul_i32 s{P4_M0}, s{W}, 7168"); A(f"s_lshl_b32 s36, s{P4_ST}, 11"); A(f"s_add_u32 s36, s36, s{P4_M0}")
    A(f"s_lshr_b32 s37, s{W}, 1"); A(f"s_mul_i32 s37, s37, {221184-14336}"); A("s_add_u32 s36, s36, s37")
    A(f"s_add_u32 s{P4_SOW}, s36, {WGU_OFF}")
def p4_dma(stage):
    slot = stage % 5
    dw = lambda j: f"buffer_load_dwordx4 {v(LV)}, {S4(SWS)}, s{P4_SOW if j < 4 else P4_SOW2} offen offset:{(j&3)*1024} sc1 lds"
    return ([f"s_add_u32 m0, s{P4_M0}, {slot*28672}", f"s_add_u32 s{P4_SOW2}, s{P4_SOW}, 4096"] + [dw(j) for j in range(4)] +
            [f"s_add_u32 m0, s{P4_M0}, {slot*28672+4096}", f"s_add_u32 s{P4_SOW}, s{P4_SOW}, {2*221184}"] + [dw(j) for j in range(4, 7)])

def skinny_addr(A):
    for i in range(1, 4):
        A(f"s_add_u32 s36, s{W}, {i}"); A("s_and_b32 s36, s36, 3"); A("s_mul_i32 s36, s36, 15360"); A(f"s_add_u32 s36, s36, {RED+(i-1)*5120}"); A(f"v_add_u32 {v(SK_WR+i-1)}, s36, {v(LV)}")
    A(f"s_mul_i32 s36, s{W}, 15360"); A(f"s_add_u32 s36, s36, {RED}"); A(f"v_add_u32 {v(SK_RD)}, s36, {v(LV)}")
    A(f"v_and_b32 v2, 15, {v(LANE)}"); A(f"v_lshrrev_b32 v3, 4, {v(LANE)}")
    A("v_mul_u32_u24 v2, 1280, v2"); A(f"v_lshl_add_u32 {v(SK_RM)}, v3, 4, v2")
    A(f"s_lshl_b32 s49, s{GX}, 2"); A(f"s_and_b32 s36, s{GI}, 3"); A("s_add_u32 s49, s49, s36"); A("s_lshl_b32 s49, s49, 2"); A(f"s_add_u32 s49, s49, s{W}")
    A("s_mul_i32 s50, s49, 20480"); A(f"s_lshr_b32 s36, s{GI}, 3"); A("s_mul_i32 s37, s36, 320"); A("s_add_u32 s51, s50, s37")
    A("s_mul_i32 s37, s36, 5120"); A("s_add_u32 s50, s50, s37"); A(f"s_add_u32 s50, s50, {H_OFF}")
    A(f"s_bfe_u32 s36, s{GI}, 0x10002"); A("s_lshl_b32 s37, s36, 3")
    A("s_add_u32 s60, s50, s37"); A("s_add_u32 s60, s60, 2048"); A("s_add_u32 s61, s51, s37"); A("s_add_u32 s61, s61, 128")
    A("s_mul_i32 s37, s36, 3072"); A("s_add_u32 s50, s50, s37"); A("s_mul_i32 s37, s36, 192"); A("s_add_u32 s51, s51, s37")
def io_frag(op, regs, fl):
    return [f"buffer_{op}_dwordx4 {v(regs,4)}, {v(LV)}, {S4(SWS)}, s50 offen {fl}", f"buffer_{op}_dwordx4 {v(regs+4,4)}, {v(LV)}, {S4(SWS)}, s50 offen offset:1024 {fl}",
            f"buffer_{op}_dwordx2 {v(regs+8,2)}, {v(LV)}, {S4(SWS)}, s60 offen {fl}"]
def io_rm(op, regs, S):
    return [f"buffer_{op}_dwordx4 {v(regs,4)}, {v(SK_RM)}, {S4(S)}, s51 offen", f"buffer_{op}_dwordx4 {v(regs+4,4)}, {v(SK_RM)}, {S4(S)}, s51 offen offset:64",
            f"buffer_{op}_dwordx2 {v(regs+8,2)}, {v(SK_RM)}, {S4(S)}, s61 offen"]
def unpack(A, dst, src, n):
    for i in range(n): A(f"v_lshlrev_b32 {v(dst+2*i)}, 16, {v(src+i)}"); A(f"v_and_b32 {v(dst+2*i+1)}, 0xffff0000, {v(src+i)}")
def reduce_tail(A, ACC, rd):
    A("s_waitcnt lgkmcnt(0)"); A("s_barrier")
    for sl in range(3):
        for u in range(5): A(f"ds_read_b128 {v(ACC+20+20*sl+4*u,4)}, {v(rd)} offset:{5120*sl+1024*u}")
    for sl in range(3):
        A(f"s_waitcnt lgkmcnt({10-5*sl})")
        for i in range(0, 20, 2): A(f"v_pk_add_f32 {v(ACC+i,2)}, {v(ACC+i,2)}, {v(ACC+20+20*sl+i,2)}")
def quad_sum(A, regs, tmps):
    for swap in ("v_permlane32_swap_b32", "v_permlane16_swap_b32"):
        for x, t in zip(regs, tmps): A(f"v_mov_b32 {v(t)}, {v(x)}")
        A("s_nop 1")
        for x, t in zip(regs, tmps): A(f"{swap} {v(x)}, {v(t)}")
        A("s_nop 1")
        for x, t in zip(regs, tmps): A(f"v_add_f32 {v(x)}, {v(x)}, {v(t)}")

def phase3(A, ST):
    wr, rd = SK_WR, SK_RD
    ACC, RES, CSP, AF = 16, P3RES, P3CS, 256
    A("s_barrier")
    A(f"s_mul_i32 s36, s{W}, 14"); A(f"s_sub_i32 s37, s{W}, 2"); A("s_max_i32 s37, s37, 0"); A("s_sub_u32 s32, s36, s37")
    A(f"s_lshr_b32 s36, s{GI}, 2"); A("s_mul_i32 s36, s36, 5120"); A("s_mul_i32 s44, s32, 40960"); A("s_add_u32 s44, s44, s36"); A(f"s_add_u32 s44, s44, {WD_OFF}")
    A(f"s_cmp_ge_u32 s{W}, 2"); A(f"s_cselect_b32 s94, {OOB}, 0"); A("s_add_u32 s94, s94, 40960")
    unpack(A, ACC, RES, 10)
    A(f"v_add_f32 {v(CSP)}, {v(CSP)}, {v(CSP+1)}"); A(f"v_add_f32 {v(CSP+2)}, {v(CSP+2)}, {v(CSP+3)}"); A(f"v_add_f32 {v(CSP)}, {v(CSP)}, {v(CSP+2)}")
    A(f"v_add_u32 v12, {CSL}, v146"); A(f"ds_write_b32 v12, {v(CSP)}")
    for i in range(4):
        A(f"s_add_u32 s36, s{W}, {i}"); A("s_and_b32 s36, s36, 3"); A("s_andn2_b32 s37, s49, 3"); A("s_add_u32 s36, s36, s37"); A("s_mul_i32 s36, s36, 20480")
        A(f"s_mul_i32 s37, s{W}, 5120"); A("s_add_u32 s36, s36, s37"); A(f"s_add_u32 s{40+i}, s36, {O_OFF}")
    A("s_lshl_b32 s36, s49, 7"); A(f"s_add_u32 s36, s36, {F2_OFF}")
    A(f"v_lshlrev_b32 v13, 2, {v(LANE)}"); A("s_mov_b64 exec, 0xff")
    poll(A, [f"buffer_load_dword v14, v13, {S4(SWS)}, s36 offen sc1"], [14])
    A("s_mov_b64 exec, -1")
    ST.mark()
    Q = VQ()
    order = (1, 2, 3, 0)
    for i in order:
        A.ext(Q.add(("a", i), [f"buffer_load_dwordx4 {r(AF+20*i+4*ks,4)}, {v(LV if ks < 4 else 252)}, {S4(SWS)}, s{40+i} offen offset:{1024*(ks&3)} {CFG.get('al','sc1')}" for ks in range(5)]))
    for what in str(CFG.get("p3t", "")).split(","):
        if what: A.ext(Q.add("t", gtouch(what)))
    prev = None
    for n, i in enumerate(order):
        A.ext(Q.wait(("a", i)))
        if n == 0: ST.mark()
        mf = [mf16(ACC+20*i+4*u, w3reg(5*ks+u), AF+20*i+4*ks, "0" if (ks == 0 and i) else None) for u in range(5) for ks in range(5)]
        ops = []
        if prev is not None: ops += [f"ds_write_b128 {v(wr+prev-1)}, {v(ACC+20*prev+4*u,4)} offset:{1024*u}" for u in range(5)]
        slots = {k: [] for k in range(25)}
        for j, x in enumerate(ops): slots[5+2*j].append(x)
        nf = CFG.get("w5p3", 0)//4
        for j in range(nf): slots[(25*j)//nf].extend(Q.add("w5", w5load(nf*n+j)))
        for k in range(25): A(mf[k]); A.ext(slots[k])
        prev = i
    ST.mark()
    reduce_tail(A, ACC, rd)
    for i in range(10): A(f"v_cvt_pk_bf16_f32 {v(RES+i)}, {v(ACC+2*i)}, {v(ACC+2*i+1)}")
    stat = Asm(); sm, sq = 112, 114
    stat(f"v_pk_mul_f32 {v(sq,2)}, {v(ACC,2)}, {v(ACC,2)}"); stat(f"v_pk_add_f32 {v(sm,2)}, {v(ACC,2)}, {v(ACC+2,2)}")
    for i in range(2, 20, 2):
        stat(f"v_pk_fma_f32 {v(sq,2)}, {v(ACC+i,2)}, {v(ACC+i,2)}, {v(sq,2)}")
        if i > 2: stat(f"v_pk_add_f32 {v(sm,2)}, {v(sm,2)}, {v(ACC+i,2)}")
    stat(f"v_add_f32 {v(sm)}, {v(sm)}, {v(sm+1)}"); stat(f"v_add_f32 {v(sm+1)}, {v(sq)}, {v(sq+1)}")
    quad_sum(stat, [sm, sm+1], [sq, sq+1])
    A(f"s_lshr_b32 s37, s{GI}, 2"); A("s_lshl_b32 s36, s49, 3"); A("s_add_u32 s36, s36, s37"); A("s_lshl_b32 s36, s36, 7"); A(f"s_add_u32 s36, s36, {STAT_OFF}")
    A("s_lshr_b32 s38, s49, 1"); A("s_lshl_b32 s38, s38, 5"); A("s_lshl_b32 s37, s37, 1"); A("s_add_u32 s38, s38, s37"); A("s_and_b32 s37, s49, 1"); A("s_add_u32 s38, s38, s37")
    A("s_lshl_b32 s38, s38, 2"); A(f"s_add_u32 s38, s38, {F3_OFF}")
    A(f"v_lshlrev_b32 v13, 3, {v(LANE)}"); A("v_mov_b32 v12, 1")
    publish(A, lambda fl: io_frag("store", RES, fl) + [x.strip() for x in stat.L] + ["s_mov_b64 exec, 0xffff", f"buffer_store_dwordx2 {v(sm,2)}, v13, {S4(SWS)}, s36 offen {fl}"],
            ["s_mov_b64 exec, 1", "s_waitcnt vmcnt(0)"], lambda fl: [f"buffer_store_dword v12, off, {S4(SWS)}, s38 {fl}", "s_mov_b64 exec, -1"])
    ST.mark()

W5X = 208
def w5reg(f): return 256+80+4*f if f < 28 else 256+4*(f-28) if f < 48 else 256+4*f if f < 64 else W5X + 4*(f-64)
def w5load(f):
    ks, u = divmod(f, 5)
    L = [f"buffer_load_dwordx4 {r(w5reg(f),4)}, {v(WV if u < 4 else WV+1)}, {S4(SWS)}, s44 offen offset:{1024*(u&3)} sc1"]
    if u == 4: L.append("s_add_u32 s44, s44, 40960" if ks != 12 else "s_add_u32 s44, s44, s94")
    return L

def phase4(A, ST):
    soh, sohh, soh1 = 28, 29, 30
    la, lb, hv, sv, ca, cb = 4, 7, 10, 11, 12, 13
    STT, HR, ACC, WB = 232, 16, 96, 208
    WB = 208; NW = 3
    HD = 4
    WR = lambda n: (80 + 8*(n % 4)) if n % 4 < 2 else (WB + 8*(n % 4 - 2))
    A("s_barrier")
    Q = VQ()
    A(f"s_mov_b32 s92, {OOB}")
    A(f"s_and_b32 s36, s{GI}, 1"); A(f"s_lshl_b32 s37, s{GX}, 1"); A("s_add_u32 s36, s36, s37"); A("s_lshl_b32 s36, s36, 2"); A(f"s_add_u32 s36, s36, s{W}")
    A(f"s_mul_i32 s{soh}, s36, 40960"); A(f"s_add_u32 s{soh}, s{soh}, {H_OFF}")
    A(f"s_lshl_b32 s38, s36, 7"); A(f"s_add_u32 s38, s38, {F3_OFF}")
    A("s_lshl_b32 s39, s36, 11"); A(f"s_add_u32 s39, s39, {STAT_OFF}")
    A(f"s_lshl_b32 s31, s36, 5"); A(f"s_lshr_b32 s37, s{GI}, 1"); A("s_add_u32 s31, s31, s37"); A("s_lshl_b32 s31, s31, 2"); A(f"s_add_u32 s31, s31, {F4_OFF}")
    A(f"s_and_b32 s40, s{P4_ST}, 1")
    A(f"s_mul_i32 s{sohh}, s36, 110592"); A(f"s_add_u32 s{sohh}, s{sohh}, {HH_OFF}")
    A(f"s_lshr_b32 s37, s{P4_ST}, 1"); A("s_lshl_b32 s37, s37, 10"); A(f"s_add_u32 s{sohh}, s{sohh}, s37")
    A("s_cmp_eq_u32 s40, 0"); A("s_cselect_b32 s37, 3072, 8"); A(f"s_add_u32 s{soh1}, s{sohh}, s37")
    A("s_lshl_b32 s37, s40, 10"); A(f"s_add_u32 s{sohh}, s{sohh}, s37")
    A("s_lshl_b32 s41, s40, 11"); A("s_cmp_eq_u32 s40, 0"); A(f"s_cselect_b32 s42, {6*2048}, 0")
    for i in range(3):
        A(f"v_add_u32 {v(la+i)}, s41, {v(LV)}"); A(f"v_add_u32 {v(lb+i)}, s42, {v(LV)}"); A("s_add_u32 s41, s41, 57344"); A("s_add_u32 s42, s42, 57344")
    A(f"v_add_u32 {v(hv)}, 20480, {v(LV)}")
    A(f"v_lshrrev_b32 v2, 4, {v(LANE)}"); A(f"v_and_b32 v3, 15, {v(LANE)}"); A(f"v_lshlrev_b32 {v(sv)}, 8, v2"); A(f"v_lshl_add_u32 {v(sv)}, v3, 3, {v(sv)}")
    A("s_lshl_b32 s41, s40, 7"); A(f"s_add_u32 s41, s41, {CSL}"); A(f"v_lshl_add_u32 {v(ca)}, v2, 4, s41")
    A("s_cmp_eq_u32 s40, 0"); A(f"s_cselect_b32 s41, {6*128}, 0"); A(f"s_add_u32 s41, s41, {CSL}"); A(f"v_lshl_add_u32 {v(cb)}, v2, 4, s41")
    A(f"v_lshlrev_b32 v14, 2, {v(LANE)}"); A("s_mov_b64 exec, 0xffff")
    poll(A, [f"buffer_load_dword v15, v14, {S4(SWS)}, s38 offen sc1"], [15])
    A("s_mov_b64 exec, -1")
    ST.mark()
    def hl(s_): return [f"buffer_load_dwordx4 {v(HR+16*(s_%HD)+8*n+4*ks,4)}, {v(hv if n else LV)}, {S4(SWS)}, s{soh} offen offset:{1024*ks} {CFG.get('al','sc1')}" for n in range(2) for ks in range(2)] + [f"s_add_u32 s{soh}, s{soh}, 2048"]
    for s_ in range(HD): A.ext(Q.add(("h", s_), hl(s_)))
    A.ext(Q.add("st", [f"buffer_load_dwordx2 {v(STT+4*n+2*c,2)}, {v(sv)}, {S4(SWS)}, s39 offen offset:{1024*n+128*c} sc1" for n in range(2) for c in range(2)]))
    def reads(n):
        s_, m = divmod(n, 14); slot = s_ % 5; j, mat = divmod(m, 2)
        base, off = (la, j*2048) if j < 6 else (lb, 0)
        return [f"ds_read_b128 {v(WR(n)+4*ks,4)}, {v(base+slot//2)} offset:{(slot%2)*28672+off+mat*1024+ks*14336}" for ks in range(2)]
    for n in range(NW): A.ext(reads(n))
    w5 = [f for f in range(64) if f >= CFG.get("w5p3", 0)]; wq = list(range(3, 10))
    pend = []
    for s_ in range(10):
        if s_ >= 1 and s_+HD-1 < 10: pend.append((("h", s_+HD-1), hl(s_+HD-1)))
        while wq and wq[0] <= s_+CFG.get("wd", 3): pend.append((("w", wq[0]), p4_dma(wq.pop(0))))
        for b_, what in TOUCHES("p4t"):
            if b_ == s_: pend.append(("t", gtouch(what)))
        have = sum(1 for t, ops in pend for x in ops if not is_salu(x))
        later = 7*len(wq) + 4*max(0, 6-s_) + len(w5) + have
        nw5 = min(len(w5), max(0, -(-later//(10-s_)) - have))
        for _ in range(nw5): pend.append(("w5", w5load(w5.pop(0))))
        flat = [(t, x) for t, ops in pend for x in ops]; pend = []
        px = CFG.get("p4x", "")
        if "now5" in px: flat = [(t, x.replace("s44 offen", "s92 offen")) for t, x in flat]
        if "nodma" in px: flat = [(t, x.replace(f"s{P4_SOW} offen", "s92 offen").replace(f"s{P4_SOW2} offen", "s92 offen")) for t, x in flat]
        if "dropw5" in px: flat = [(t, x) for t, x in flat if t != "w5"]
        if "plain" in px: flat = [(t, x.replace(" sc1", "")) for t, x in flat]
        nreal = sum(1 for t, x in flat if not is_salu(x))
        for m in range(14):
            n = 14*s_ + m
            pre = []
            if m == 0: pre += Q.wait(("h", s_))
            if m == 11 and s_ < 9:
                pre += ["s_waitcnt lgkmcnt(0)"] + (Q.wait(("w", s_+1)) if s_+1 >= 3 else []) + ["s_barrier"]
            else: pre.append(f"s_waitcnt lgkmcnt({2*min(NW-1, 139-n)})")
            A.ext(pre)
            if n == 0: ST.mark()
            take = -(-nreal//(14-m)); ops = []
            while flat and (take > 0 or is_salu(flat[0][1])):
                t, x = flat.pop(0); ops += Q.add(t, [x])
                if not is_salu(x): take -= 1; nreal -= 1
            mf = [mf16(ACC+8*m+4*nn, WR(n)+4*ks, HR+16*(s_ % HD)+8*nn+4*ks, "0" if (s_ == 0 and ks == 0) else None) for nn in range(2) for ks in range(2)]
            weave(A, mf, (reads(n+NW) if n+NW < 140 else []) + ops, [], [2]*4)
        assert not flat
    assert not w5 and not wq
    ST.mark()
    CSR = 16
    for j in range(7):
        for mat in range(2): A(f"ds_read_b128 {v(CSR+8*j+4*mat,4)}, {v(ca if j < 6 else cb)} offset:{(128*j if j < 6 else 0)+64*mat}")
    for f in range(64, 70): A.ext(Q.add("w5", w5load(f)))
    for n in range(2): A(f"v_pk_add_f32 {v(STT+4*n,2)}, {v(STT+4*n,2)}, {v(STT+4*n+2,2)}")
    quad_sum(A, [STT, STT+1, STT+4, STT+5], [STT+2, STT+3, STT+6, STT+7])
    for n in range(2):
        nm, r2 = STT+4*n, STT+4*n+2
        A(f"v_mul_f32 {v(nm)}, {hex(f2u(-1/640))}, {v(nm)}"); A(f"v_mul_f32 {v(r2)}, {hex(f2u(1/640))}, {v(nm+1)}")
        A(f"v_fma_f32 {v(r2)}, -{v(nm)}, {v(nm)}, {v(r2)}"); A(f"v_max_f32 {v(r2)}, 0, {v(r2)}"); A(f"v_add_f32 {v(r2)}, {hex(f2u(1e-5))}, {v(r2)}"); A(f"v_rcp_f32 {v(r2)}, {v(r2)}")
    A(f"v_add_u32 {v(hv)}, 55296, {v(LV)}"); A("v_mov_b32 v14, 1")
    A("s_waitcnt lgkmcnt(0)")
    OB = 72
    def epi(fl):
        L = []
        for a_ in range(4):
            for n in range(2):
                nm, r2 = STT+4*n, STT+4*n+2; o = OB + 4*((2*a_+n) % 4)
                for j in ([2*a_, 2*a_+1] if a_ < 3 else [6]):
                    g, u = ACC+16*j+4*n, ACC+16*j+8+4*n
                    for i in (0, 2):
                        L.append(f"v_pk_fma_f32 {v(g+i,2)}, {v(CSR+8*j+i,2)}, {v(nm,2)}, {v(g+i,2)} op_sel_hi:[1,0,1]")
                        L.append(f"v_pk_fma_f32 {v(u+i,2)}, {v(CSR+8*j+4+i,2)}, {v(nm,2)}, {v(u+i,2)} op_sel_hi:[1,0,1]")
                    for i in (0, 2): L.append(f"v_pk_mul_f32 {v(g+i,2)}, {v(g+i,2)}, {v(r2,2)} op_sel_hi:[1,0]")
                    for i in (0, 2): L.append(f"v_pk_mul_f32 {v(g+i,2)}, {v(g+i,2)}, {v(u+i,2)}")
                    for i in (0, 1): L.append(f"v_cvt_pk_bf16_f32 {v(o+2*(j&1)+i)}, {v(g+2*i)}, {v(g+2*i+1)}")
                if a_ < 3: L.append(f"buffer_store_dwordx4 {v(o,4)}, {v(hv if n else LV)}, {S4(SWS)}, s{sohh} offen offset:{1024*a_} {fl}")
                else: L.append(f"buffer_store_dwordx2 {v(o,2)}, {v(hv if n else LV)}, {S4(SWS)}, s{soh1} offen {fl}")
        return L
    publish(A, epi, ["s_mov_b64 exec, 1", "s_waitcnt vmcnt(0)"], lambda fl: [f"buffer_store_dword v14, off, {S4(SWS)}, s31 {fl}", "s_mov_b64 exec, -1"])
    ST.mark()

def phase5(A, ST):
    wr, rd = SK_WR, SK_RD
    ACC, AF, RES = 16, 96, 232
    srd(A, SA, 86, 2621440)
    for i in range(4):
        A(f"s_add_u32 s36, s{W}, {i}"); A("s_and_b32 s36, s36, 3"); A("s_andn2_b32 s37, s49, 3"); A("s_add_u32 s36, s36, s37"); A("s_mul_i32 s36, s36, 55296")
        A("s_lshl_b32 s37, s32, 10"); A("s_add_u32 s36, s36, s37"); A(f"s_add_u32 s{52+i}, s36, {HH_OFF}")
    A(f"s_cmp_ge_u32 s{W}, 2"); A(f"s_cselect_b32 s43, {OOB}, 0"); A(f"v_add_u32 v12, s43, {v(LV)}")
    A("s_lshr_b32 s36, s49, 2"); A("s_lshl_b32 s36, s36, 8"); A(f"s_add_u32 s36, s36, {F4_OFF}")
    A(f"v_lshrrev_b32 v13, 4, {v(LANE)}"); A(f"v_and_b32 v14, 15, {v(LANE)}"); A("v_lshlrev_b32 v13, 7, v13"); A("v_lshl_add_u32 v13, v14, 2, v13")
    A.ext(io_frag("load", RES, "sc1"))
    A("s_barrier")
    A("s_mov_b32 exec_hi, 0")
    poll(A, [f"buffer_load_dword v14, v13, {S4(SWS)}, s36 offen sc1"], [14])
    A("s_mov_b64 exec, -1")
    ST.mark()
    Q = VQ()
    order = (1, 2, 3, 0)
    def al(n, ks):
        i = order[n]
        L = [f"buffer_load_dwordx4 {v(AF+56*(n&1)+4*ks,4)}, {v(12 if ks == 13 else LV)}, {S4(SWS)}, s{52+i} offen offset:{1024*(ks&3)} {CFG.get('al','sc1')}"]
        if ks & 3 == 3: L.append(f"s_add_u32 s{52+i}, s{52+i}, 4096")
        return L
    for n in range(2):
        for ks in range(14): A.ext(Q.add((n, ks), al(n, ks)))
    unpack(A, ACC, RES, 10)
    for n, i in enumerate(order):
        if CFG.get("wb") == n:
            lab = A.label("nowb"); A(f"s_cmp_lg_u32 s{W}, 0"); A(f"s_cbranch_scc1 {lab}"); A(f"s_cmp_ge_u32 s{GI}, {CFG.get('wbn', 1)}"); A(f"s_cbranch_scc1 {lab}")
            A("buffer_wbl2 sc1"); A(f"{lab}:")
        for kp in range(7):
            A.ext(Q.wait((n, 2*kp+1)))
            if n == 0 and kp == 0: ST.mark()
            mf = [mf16(ACC+20*i+4*u, w5reg(5*ks+u), AF+56*(n&1)+4*ks, "0" if (ks == 0 and i) else None) for u in range(5) for ks in (2*kp, 2*kp+1)]
            ops = []
            pn, pk = (n, kp-1) if kp else (n-1, 6)
            if pn >= 0 and pn+2 < 4:
                for ks in (2*pk, 2*pk+1): ops += Q.add((pn+2, ks), al(pn+2, ks))
            if n and 1 <= kp <= 5: ops.append(f"ds_write_b128 {v(wr+order[n-1]-1)}, {v(ACC+20*order[n-1]+4*(kp-1),4)} offset:{1024*(kp-1)}")
            weave(A, mf, ops, [], [2]*10)
    ST.mark()
    reduce_tail(A, ACC, rd)
    for i in range(10): A(f"v_cvt_pk_bf16_f32 {v(RES+i)}, {v(ACC+2*i)}, {v(ACC+2*i+1)}")
    A.ext([x + " " + CFG.get("ost", "") for x in io_rm("store", RES, SA)])

def build(**cfg):
    CFG.update(cfg)
    A = Asm(); ST = Stamps(A)
    kstart(A, K)
    if CFG.get("empty"): A("s_endpgm")
    ST.mark()
    if CFG.get("probe"):
        off, base = {"bx": (24, 0), "ws": (72, 40 << 20), "out": (56, 0), "wd": (48, 0)}[CFG["probe"]]
        A(f"s_load_dwordx2 s[4:5], s[0:1], {off}"); A("s_waitcnt lgkmcnt(0)"); A(f"s_mov_b32 s6, {base + (2<<20)}"); A("s_mov_b32 s7, 0x20000")
        A("s_and_b32 s8, s2, 255"); A("s_lshl_b32 s8, s8, 9"); A(f"s_add_u32 s8, s8, {base}"); A("v_lshrrev_b32 v2, 6, v0"); A("v_lshlrev_b32 v2, 7, v2")
        for i in range(16):
            A("buffer_load_dword v3, v2, s[4:7], s8 offen"); A("s_waitcnt vmcnt(0)"); A("s_add_u32 s8, s8, 131072")
    fin1, cold1 = phase1(A, ST)
    cold = phase2(A, ST, fin1)
    phase3(A, ST); phase4(A, ST); phase5(A, ST)
    ST.flush()
    A("s_endpgm")
    cold1(); cold()
    A(f"{K}_end:")
    A("s_endpgm")
    kdesc(A, K, 512, acc=256)
    head = open(f"cdna_kernels/{NAME}.s.ref").read().split("; Override launch")[0]
    head += "; @launch grid=(256,1,1) block=(256,1,1) lds=163840\n"
    return head + '.amdgcn_target "amdgcn-amd-amdhsa--gfx950"\n' + A.text()

if __name__ == "__main__":
    out = sys.argv[1] if len(sys.argv) > 1 else f"cdna_kernels/{NAME}.s"
    cfg = {}
    for x in sys.argv[2:]:
        k, val = x.split("=")
        cfg[k] = int(val) if val.lstrip("-").isdigit() else val
    txt = build(**cfg)
    names = STAMP_NAMES[:3] + [f"p1 kstep {g}" for g in P1ST()] + STAMP_NAMES[3:8] + [f"att body {b}" for b in ASTAMPS()] + STAMP_NAMES[8:]
    if CFG["stamps"]: txt = txt.replace(".amdgcn_target", "; STAMPS " + "|".join(names) + "\n.amdgcn_target", 1)
    open(out, "w").write(txt)
```

```python
import sys, math, struct
from dsl import *

NAME = "sequential_preLN__softmax_full_mha__glu_gated_bilinear__prompt"
K = NAME + "_kernel"
GS = 1310720
K_OFF, V_OFF, O_OFF = 327680, 655360, 983040
OX_OFF = O_OFF + 262144
def H_OFF(): return 8*GS if CFG.get("sep") else 0
def HH_OFF(): return H_OFF() + 327680
WGU_OFF = 20971520
WD_OFF = WGU_OFF + 4423680
WO_OFF = WD_OFF + 2211840
CS_OFF = WO_OFF + 819200
STAT_OFF = CS_OFF + 65536
RS_OFF = STAT_OFF + 131072
F2_OFF = RS_OFF + 16384
F3_OFF = F2_OFF + 128*128
F4_OFF = F3_OFF + 64*128
FR_OFF = F4_OFF + 64*128
F1_OFF = FR_OFF + 256*128
ONES_OFF = F1_OFF + 256*128
STAMP_OFF = 29360128
WS_SIZE = 33554432
OOB = 0x40000000
SPIN = 200000
assert ONES_OFF + 128*2560 < STAMP_OFF and STAT_OFF % 128 == 0
def f2u(x): return struct.unpack("<I", struct.pack("<f", x))[0]
QSCALE = f2u(20**-0.5 * math.log2(math.e))
assert all((u*205) >> 10 == u//5 for u in range(160))
assert all((f*3277) >> 16 == f//20 for f in range(640))
assert all((e*6554) >> 16 == e//10 for e in range(320))
CFG = dict(stamps=False, w5a=5, w5b=22, p4last=9.6, b0=4, b1=11, b2=3, b3=5, touch="41:s,56:h", p4t="")
STAMP_NAMES = ["start", "p1 first dma issued", "p1 stage0 landed", "p1 loop end", "p1 stores issued", "p1 flag set", "F1 seen", "att loop start", "att loop end",
               "O published", "F2 seen", "p3 first act", "p3 mfma end", "H published", "F3 seen", "p4 first h", "p4 loop end", "HH published", "F4 seen", "p5 first act", "p5 mfma end", "end"]

W, SWS, SX, SA, SR = 3, 4, 8, 12, 16
GX, GI, MODE, MYF, GB = 24, 25, 26, 27, 23
LANE, LV = 1, 253
PCV = 247
CODE_TOUCH = f"global_load_dword v248, v{PCV}, s[20:21] sc1"
def S4(b): return f"s[{b}:{b+3}]"

def ASTAMPS(): return [int(x) for x in str(CFG.get("astamp", "")).split(",") if x]
def P1ST(): return [int(x) for x in str(CFG.get("p1st", "")).split(",") if x]
class Stamps:
    def __init__(self, A): self.A, self.n = A, 0
    def mark(self, at=None):
        A = self.A; i = self.n if at is None else at
        if CFG.get("pad"):
            pi, pt = map(int, CFG["pad"].split(":"))
            if i == 0: A("s_memrealtime s[96:97]")
            if i == pi:
                lab = A.label("pad"); A("s_waitcnt lgkmcnt(0)"); A(f"s_add_u32 s95, s96, {pt*100}"); A(f"{lab}:"); A("s_memrealtime s[98:99]"); A("s_waitcnt lgkmcnt(0)")
                A("s_sub_u32 s98, s98, s95"); A("s_cmp_lt_i32 s98, 0"); A(f"s_cbranch_scc1 {lab}")
            if at is None: self.n += 1
            return
        if not CFG["stamps"]: return
        if i:
            A("s_waitcnt lgkmcnt(0)"); A(f"v_writelane_b32 v254, s96, {i-1}"); A(f"v_writelane_b32 v255, s98, {i-1}")
        A("s_memrealtime s[96:97]"); A("s_memtime s[98:99]")
        if at is None: self.n += 1
    def flush(self):
        if CFG.get("pad"): self.A("s_waitcnt vmcnt(0)"); self.mark(); return
        if not CFG["stamps"]: return
        A = self.A
        A("s_waitcnt vmcnt(0)"); self.mark(); self.mark(); n = self.n - 1
        A(f"v_writelane_b32 v254, s{MODE}, 30"); A(f"v_writelane_b32 v254, s{MYF}, 31")
        A(f"s_lshl_b32 s95, s2, 2"); A(f"s_add_u32 s95, s95, s{W}"); A("s_lshl_b32 s95, s95, 8"); A(f"s_add_u32 s95, s95, {STAMP_OFF}")
        A("s_mov_b64 exec, -1"); A(f"v_lshlrev_b32 v0, 2, {v(LANE)}"); A(f"s_mov_b32 exec_lo, {(1 << n) - 1 + (3 << 30)}"); A("s_mov_b32 exec_hi, 0")
        A(f"buffer_store_dword v254, v0, {S4(SWS)}, s95 offen"); A(f"buffer_store_dword v255, v0, {S4(SWS)}, s95 offen offset:128")

def swap01(A, dst, src, t):
    A(f"v_and_b32 {v(t)}, 1, {v(src)}"); A(f"v_lshlrev_b32 {v(t)}, 1, {v(t)}")
    A(f"v_bfe_u32 {v(dst)}, {v(src)}, 1, 1"); A(f"v_or_b32 {v(t)}, {v(t)}, {v(dst)}")
    A(f"v_and_b32 {v(dst)}, 4, {v(src)}"); A(f"v_or_b32 {v(dst)}, {v(dst)}, {v(t)}")

def make_sel(A, sel, t):
    A(f"v_lshrrev_b32 {v(t)}, 2, {v(LANE)}"); A(f"v_lshrrev_b32 {v(sel)}, 4, {v(LANE)}")
    A(f"v_xor_b32 {v(t)}, {v(t)}, {v(sel)}"); A(f"v_and_b32 {v(t)}, 1, {v(t)}")
    A(f"v_add_u32 {v(t)}, -1, {v(t)}")
    A(f"v_and_b32 {v(sel)}, 0x3f803f80, {v(t)}")
    for i in range(1, 4): A(f"v_mov_b32 {v(sel+i)}, {v(sel)}")

def poll(A, loads, regs, sleep=0, cnt=58):
    top, out = A.label("poll"), A.label("pollout")
    A(f"s_mov_b32 s{cnt}, {SPIN}")
    A(f"{top}:")
    A.ext(loads); A("s_waitcnt vmcnt(0)")
    for x in regs[1:]: A(f"v_min_u32 {v(regs[0])}, {v(regs[0])}, {v(x)}")
    A(f"v_cmp_eq_u32 vcc, 0, {v(regs[0])}")
    A(f"s_sub_u32 s{cnt}, s{cnt}, 1"); A(f"s_cbranch_scc1 {out}")
    if sleep:
        A(f"s_cbranch_vccz {out}"); A(f"s_sleep {sleep}"); A(f"s_branch {top}")
    else: A(f"s_cbranch_vccnz {top}")
    A(f"{out}:")

def publish(A, stores, mid, flag, local=True):
    if not local:
        A.ext(stores("sc1")); A.ext(mid); A.ext(flag("sc1")); return
    slow, done = A.label("st_slow"), A.label("st_done")
    A(f"s_cmp_eq_u32 s{MODE}, 0"); A(f"s_cbranch_scc1 {slow}")
    A.ext(stores("")); A.ext(mid); A.ext(flag("")); A(f"s_branch {done}")
    A(f"{slow}:")
    A.ext(stores("sc1")); A.ext(mid); A.ext(flag("sc1"))
    A(f"{done}:")

RSO, RA, RBA, RDS, RDH, RDAH, RCS, RLDS = 64, 65, 66, 67, 68, 69, 70, 71
RLV, RLT, RLC, RLO, RLF = 201, 202, 204, 212, 216
STG = 86016
def relayout_setup(A):
    t0, t1 = 2, 3
    two, none, done = A.label("rl2"), A.label("rl0"), A.label("rl_set")
    A(f"s_mul_i32 s{RLDS}, s{W}, 10240"); A(f"s_add_u32 s{RLDS}, s{RLDS}, {STG}")
    A(f"v_lshrrev_b32 {v(t0)}, 4, {v(LANE)}"); A(f"v_bfe_u32 {v(t1)}, {v(LANE)}, 2, 2"); A(f"v_lshl_add_u32 {v(t0)}, {v(t0)}, 3, {v(t1)}")
    A(f"v_and_b32 {v(t1)}, 3, {v(LANE)}"); A(f"v_lshlrev_b32 {v(t1)}, 4, {v(t1)}")
    A(f"v_lshl_add_u32 {v(t0)}, {v(t0)}, 6, {v(t1)}"); A(f"v_add_u32 {v(RLT)}, s{RLDS}, {v(t0)}")
    A(f"v_and_b32 {v(RLT+1)}, 15, {v(LANE)}"); A(f"v_lshlrev_b32 {v(RLT+1)}, 2, {v(RLT+1)}")
    for i in range(4): A(f"v_mov_b32 {v(RLO+i)}, 0x3f803f80")
    A(f"v_lshrrev_b32 {v(t0)}, 2, {v(LANE)}")
    A(f"s_mov_b32 s{RCS}, {OOB}")
    A("s_cmp_ge_u32 s2, 108"); A(f"s_cbranch_scc1 {two}")
    A(f"s_bitcmp1_b32 s{W}, 0"); A(f"s_cselect_b64 s[{SR}:{SR+1}], s[82:83], s[80:81]"); A(f"s_mov_b32 s{SR+2}, 2211840")
    A(f"s_mul_i32 s37, s2, {(65536+26)//27}"); A("s_lshr_b32 s37, s37, 16")
    A("s_mul_i32 s38, s37, 27"); A("s_sub_u32 s38, s2, s38"); A("s_lshl_b32 s38, s38, 1"); A(f"s_lshr_b32 s39, s{W}, 1"); A("s_add_u32 s38, s38, s39")
    A(f"s_mul_i32 s{RSO}, s37, {160*3456}"); A("s_lshl_b32 s39, s38, 6"); A(f"s_add_u32 s{RSO}, s{RSO}, s39")
    A(f"s_mov_b32 s{RA}, {16*3456}"); A(f"s_mov_b32 s{RBA}, {16*3456}"); A(f"s_mov_b32 s{RDH}, 2048"); A(f"s_mov_b32 s{RDAH}, {221184-2048}")
    A(f"s_and_b32 s39, s{W}, 1"); A("s_lshl_b32 s38, s38, 2"); A("s_add_u32 s38, s38, s39")
    A(f"s_mul_i32 s{RDS}, s37, {5*221184}"); A("s_lshl_b32 s39, s38, 10"); A(f"s_add_u32 s{RDS}, s{RDS}, s39"); A(f"s_add_u32 s{RDS}, s{RDS}, {WGU_OFF}")
    A(f"s_mul_i32 s{RCS}, s37, {108*128}"); A("s_lshl_b32 s39, s38, 6"); A(f"s_add_u32 s{RCS}, s{RCS}, s39"); A(f"s_add_u32 s{RCS}, s{RCS}, {CS_OFF}")
    A(f"v_mul_u32_u24 {v(t0)}, 3456, {v(t0)}")
    A(f"s_branch {done}")
    A(f"{two}:")
    A("s_sub_u32 s37, s2, 108"); A(f"s_mov_b32 s{RDH}, 1024"); A(f"s_mov_b32 s{RDAH}, 1024")
    A(f"s_mul_i32 s{RDS}, s37, 40960"); A(f"s_mul_i32 s39, s{W}, 10240"); A(f"s_add_u32 s{RDS}, s{RDS}, s39"); A(f"s_add_u32 s{RDS}, s{RDS}, {WD_OFF}")
    A(f"s_mov_b64 s[{SR}:{SR+1}], s[84:85]"); A(f"s_mov_b32 s{SR+2}, 2211840"); A(f"s_lshl_b32 s{RSO}, s37, 5"); A(f"s_mov_b32 s{RA}, 16")
    A("s_cmp_lt_u32 s37, 54"); A(f"s_cbranch_scc1 {none}")
    A(f"s_mov_b64 s[{SR}:{SR+1}], s[88:89]"); A("s_cmp_lt_u32 s37, 74"); A(f"s_cselect_b32 s{RDS}, s{RDS}, {OOB}"); A(f"s_cselect_b32 s{SR+2}, 819200, 0")
    A("s_sub_u32 s37, s37, 54"); A("s_mul_i32 s38, s37, 205"); A("s_lshr_b32 s38, s38, 10"); A("s_mul_i32 s39, s38, 5"); A("s_sub_u32 s37, s37, s39")
    A(f"s_mul_i32 s{RSO}, s38, 160"); A("s_mul_i32 s39, s37, 40"); A("s_cmp_eq_u32 s37, 4"); A("s_cselect_b32 s39, 16, s39"); A(f"s_cselect_b32 s{RA}, 80, 20"); A("s_cselect_b32 s38, 16, 0")
    A(f"s_add_u32 s{RSO}, s{RSO}, s39"); A(f"v_lshrrev_b32 v4, 4, {v(LANE)}"); A(f"v_mad_u32_u24 {v(t0)}, v4, s38, {v(t0)}")
    A(f"{none}:")
    A(f"s_mul_i32 s{RSO}, s{RSO}, 1280"); A(f"s_mul_i32 s39, s{W}, 320"); A(f"s_add_u32 s{RSO}, s{RSO}, s39"); A(f"s_mul_i32 s{RA}, s{RA}, 1280"); A(f"s_sub_u32 s{RBA}, 64, s{RA}")
    A(f"v_mul_u32_u24 {v(t0)}, 1280, {v(t0)}")
    A(f"{done}:")
    A(f"v_add_u32 {v(RLV)}, {v(t0)}, {v(t1)}")
def rl_dma(i):
    return [f"s_add_u32 m0, s{RLDS}, {i*1024}", f"s_add_u32 s{RSO}, s{RSO}, {'0' if i == 0 else 's%d' % (RA if i & 1 else RBA)}",
            f"buffer_load_dwordx4 {v(RLV)}, {S4(SR)}, s{RSO} offen lds"]
def rl_read(a_, hf): return [f"ds_read_b64_tr_b16 {v(RLF+8*(a_&1)+4*hf+2*q,2)}, {v(RLT)} offset:{2048*a_+256*q+8*hf}" for q in range(2)]
def rl_sum(a_, hf): return mf16(RLC+4*hf, RLO, RLF+8*(a_&1)+4*hf, "0" if a_ == 0 else None)
def rl_store(a_, hf): return [f"buffer_store_dwordx4 {v(RLF+8*(a_&1)+4*hf,4)}, {v(LV)}, {S4(SWS)}, s{RDS} offen sc1", f"s_add_u32 s{RDS}, s{RDS}, s{RDAH if hf else RDH}"]
def rl_cs(hf): return [f"buffer_store_dword {v(RLC+4*hf)}, {v(RLT+1)}, {S4(SWS)}, s{RCS} offen offset:{128*hf} sc1"]

WT = [(80, 2211840), (82, 2211840), (84, 2211840), (88, 819200)]
TV = 249
def wtouch(m_, so):
    p_, n_ = WT[m_]
    return [f"s_mov_b64 s[{SR}:{SR+1}], s[{p_}:{p_+1}]", f"s_mov_b32 s{SR+2}, {n_}", f"buffer_load_dword v248, {v(TV)}, {S4(SR)}, s{so} offen"]
def f1addr_s(A, x):
    if CFG.get("pack", 1): A(f"s_and_b32 s57, s{x}, 3"); A("s_mul_i32 s57, s57, 124"); A(f"s_lshl_b32 s{x}, s{x}, 7"); A(f"s_sub_u32 s{x}, s{x}, s57")
    else: A(f"s_lshl_b32 s{x}, s{x}, 7")
def f1addr_v(A, d, x):
    if CFG.get("pack", 1): A(f"v_and_b32 v5, 3, {v(x)}"); A("v_mul_u32_u24 v5, 124, v5"); A(f"v_lshlrev_b32 {v(d)}, 7, {v(x)}"); A(f"v_sub_u32 {v(d)}, {v(d)}, v5")
    else: A(f"v_lshlrev_b32 {v(d)}, 7, {v(x)}")
def phase1(A, ST):
    rt, ct, wm, wn = 28, 29, 30, 31
    sox, sow, m0b, sst, srs = 32, 33, 34, 35, 59
    SD = 52
    t0, t1, t2, t3, nn, qq = 2, 3, 4, 5, 6, 7
    dmx, dmw, xa, wa, sa, rv, ex = 12, 16, 20, 22, 26, 30, 31
    ONES, CS, ACC, RS, OB = 32, 36, 64, 148, 180
    FR = 256
    A("s_cmp_ge_u32 s2, 256"); A(f"s_cbranch_scc1 {K}_end")
    A("s_load_dwordx4 s[36:39], s[0:1], 0"); A("s_load_dwordx4 s[52:55], s[0:1], 64"); A("s_load_dwordx8 s[80:87], s[0:1], 32"); A("s_load_dwordx2 s[88:89], s[0:1], 16")
    A(f"v_lshrrev_b32 {v(t0)}, 6, v0"); A(f"v_and_b32 {v(LANE)}, 63, v0")
    A(f"v_readfirstlane_b32 s{W}, {v(t0)}")
    A(f"s_and_b32 s{GX}, s2, 7"); A(f"s_lshr_b32 s{GI}, s2, 3")
    A("s_getpc_b64 s[20:21]"); A(f"{K}_pc:")
    A(f"s_lshl_b32 s58, s{GI}, 2"); A(f"s_add_u32 s58, s58, s{W}"); A("s_lshl_b32 s58, s58, 7")
    A(f"v_and_b32 {v(PCV)}, 7, {v(LANE)}"); A(f"v_lshlrev_b32 {v(PCV)}, 14, {v(PCV)}"); A(f"v_add_u32 {v(PCV)}, s58, {v(PCV)}")
    A(f"v_min_u32 {v(PCV)}, {K}_end-{K}_pc, {v(PCV)}")
    A(CODE_TOUCH)
    A(f"s_lshr_b32 s56, s{GX}, 2"); A(f"s_lshl_b32 s{ct}, s56, 3"); A(f"s_lshr_b32 s57, s{GI}, 2"); A(f"s_add_u32 s{ct}, s{ct}, s57")
    A("s_lshl_b32 s56, s56, 1"); A(f"s_cmp_ge_u32 s{GI}, 28"); A("s_cselect_b32 s56, s56, 0"); A(f"s_cselect_b32 s{ct}, 7, s{ct}")
    A(f"s_and_b32 s57, s{GI}, 3"); A("s_add_u32 s57, s57, s56"); A(f"s_and_b32 s56, s{GX}, 3"); A("s_lshl_b32 s56, s56, 2")
    A("s_and_b32 s57, s57, 3"); A(f"s_add_u32 s{rt}, s56, s57")
    A(f"v_lshrrev_b32 {v(qq)}, 4, {v(LANE)}"); A(f"v_and_b32 {v(nn)}, 15, {v(LANE)}")
    A(f"v_and_b32 {v(t1)}, 7, {v(LANE)}"); A(f"v_xor_b32 {v(t1)}, {v(t1)}, {v(qq)}"); A(f"v_lshlrev_b32 {v(t1)}, 4, {v(t1)}")
    A(f"v_lshrrev_b32 {v(t2)}, 3, {v(LANE)}"); A(f"v_mul_u32_u24 {v(t2)}, 1280, {v(t2)}")
    A(f"v_add_u32 {v(dmx)}, {v(t1)}, {v(t2)}")
    A(f"v_xor_b32 {v(t1)}, 64, {v(t1)}"); A(f"v_add_u32 {v(t1)}, {v(t1)}, {v(t2)}"); A(f"v_add_u32 {v(dmx+1)}, 9216, {v(t1)}")
    A(f"v_add_u32 {v(dmx+2)}, {2*9216}, {v(dmx)}"); A(f"v_add_u32 {v(dmx+3)}, {2*9216}, {v(dmx+1)}")
    A(f"v_lshlrev_b32 {v(t1)}, 1, {v(qq)}"); A(f"v_xor_b32 {v(t1)}, {v(t1)}, {v(nn)}"); A(f"v_lshlrev_b32 {v(t1)}, 4, {v(t1)}")
    A(f"v_mul_u32_u24 {v(t2)}, 3840, {v(qq)}"); A(f"v_add_u32 {v(dmw)}, {v(t1)}, {v(t2)}"); A(f"v_add_u32 {v(dmw+1)}, 14336, {v(dmw)}")
    A(f"v_xor_b32 {v(t1)}, 128, {v(t1)}"); A(f"v_add_u32 {v(t1)}, {v(t1)}, {v(t2)}"); A(f"v_add_u32 {v(dmw+2)}, {2*14336}, {v(t1)}"); A(f"v_add_u32 {v(dmw+3)}, {3*14336}, {v(t1)}")
    A(f"s_lshl_b32 s56, s{rt}, 2"); A(f"s_add_u32 s56, s56, s{W}"); A(f"s_mul_i32 s{sox}, s56, {32*1280}")
    A(f"s_mul_i32 s{sow}, s{W}, {16*3840}"); A(f"s_lshl_b32 s57, s{ct}, 8"); A(f"s_add_u32 s{sow}, s{sow}, s57")
    A("s_mul_i32 s56, s56, 3840"); A("s_add_u32 s56, s56, s57")
    NT = CFG.get("p1t", 9)
    A(f"v_min_u32 {v(t0)}, {max(2*NT-1, 0)}, {v(LANE)}"); A(f"v_lshrrev_b32 {v(t1)}, 1, {v(t0)}"); A(f"v_mul_u32_u24 {v(t1)}, {64*3840}, {v(t1)}")
    A(f"v_and_b32 {v(t0)}, 1, {v(t0)}"); A(f"v_lshl_add_u32 {v(t0)}, {v(t0)}, 7, {v(t1)}"); A(f"v_add_u32 {v(t0)}, {64*3840}, {v(t0)}")
    NX = CFG.get("p1x_t", 4); PX = -(-NX*128//60)
    if NX:
        A(f"s_lshl_b32 s57, s{ct}, 2"); A(f"s_add_u32 s57, s57, s{W}"); A(f"s_mul_i32 s57, s57, {PX}"); A(f"v_min_u32 {v(t3)}, {PX-1}, {v(LANE)}"); A(f"v_add_u32 {v(t3)}, s57, {v(t3)}")
        A(f"v_min_u32 {v(t3)}, {NX*128-1}, {v(t3)}"); A(f"v_and_b32 {v(t1)}, 127, {v(t3)}"); A(f"v_mul_u32_u24 {v(t1)}, 1279, {v(t1)}"); A(f"v_add_u32 {v(t3)}, {v(t3)}, {v(t1)}")
        A(f"s_mul_i32 s57, s{rt}, {128*1280}")
    A(f"s_lshl_b32 s{m0b}, s{W}, 12")
    A("s_waitcnt lgkmcnt(0)")
    srd(A, SX, 36, 2621440)
    A("s_cmp_ge_u32 s2, 240"); A(f"s_cbranch_scc1 {K}_idle0")
    srd(A, SA, 38, 2457600)
    def dma(stage):
        slot = stage % 5
        dx = lambda b: f"buffer_load_dwordx4 {v(dmx+b)}, {S4(SX)}, s{sox} offen offset:{b*1024} lds"
        dw = lambda b: f"buffer_load_dwordx4 {v(dmw+b)}, {S4(SA)}, s{sow} offen offset:{b*1024} lds"
        return ([f"s_add_u32 m0, s{m0b}, {slot*32768}", f"s_add_u32 s{sow}, s{sow}, {64*3840 if stage else 0}"] + [dx(b) for b in range(4)] +
                [f"s_add_u32 m0, s{m0b}, {slot*32768+16384}", f"s_add_u32 s{sox}, s{sox}, 128"] + [dw(b) for b in range(4)])
    A.ext(dma(0))
    if NX: A(f"buffer_load_dword v248, {v(t3)}, {S4(SX)}, s57 offen offset:128")
    if NT: A(f"buffer_load_dword v248, {v(t0)}, {S4(SA)}, s56 offen")
    def common():
        srd(A, SWS, 54, WS_SIZE)
        A(f"s_mov_b32 s{SD+2}, 256"); A(f"s_mov_b32 s{SD+3}, 0x20000"); A(f"s_mov_b32 s{SA+3}, 0x20000")
        A(f"s_mov_b32 s{SR+3}, 0x20000"); A(f"v_lshlrev_b32 {v(TV)}, 7, {v(LANE)}"); A(f"v_lshlrev_b32 {v(LV)}, 4, {v(LANE)}")
        A(f"s_mul_i32 s{GB}, s{GX}, {GS}")
        A(f"s_getreg_b32 s{MYF}, hwreg(HW_REG_XCC_ID, 0, 4)"); A(f"s_add_u32 s{MYF}, s{MYF}, 1")
    common()
    ST.mark()
    A(f"s_and_b32 s{wm}, s{W}, 1"); A(f"s_lshr_b32 s{wn}, s{W}, 1")
    A(f"v_lshrrev_b32 {v(t0)}, 1, {v(nn)}"); A(f"v_xor_b32 {v(t0)}, {v(t0)}, {v(qq)}"); A(f"v_lshlrev_b32 {v(t0)}, 4, {v(t0)}")
    A(f"v_lshl_add_u32 {v(t0)}, {v(nn)}, 7, {v(t0)}"); A(f"s_lshl_b32 s56, s{wm}, 13"); A(f"v_add_u32 {v(xa)}, s56, {v(t0)}"); A(f"v_xor_b32 {v(xa+1)}, 64, {v(xa)}")
    A(f"v_lshrrev_b32 {v(t0)}, 2, {v(nn)}"); A(f"v_lshl_add_u32 {v(t1)}, {v(qq)}, 3, {v(t0)}"); A(f"v_lshlrev_b32 {v(t1)}, 8, {v(t1)}")
    A(f"v_and_b32 {v(t2)}, 1, {v(qq)}"); A(f"v_lshl_add_u32 {v(t0)}, {v(t2)}, 2, {v(t0)}")
    A(f"s_lshl_b32 s40, s{wn}, 1"); A(f"s_add_u32 s40, s40, s{wm}"); A("s_lshl_b32 s40, s40, 1")
    A(f"v_xor_b32 {v(t0)}, s40, {v(t0)}"); A(f"v_lshl_add_u32 {v(t1)}, {v(t0)}, 5, {v(t1)}")
    A(f"v_and_b32 {v(t0)}, 3, {v(nn)}"); A(f"v_lshl_add_u32 {v(t1)}, {v(t0)}, 3, {v(t1)}"); A(f"v_add_u32 {v(wa)}, 16384, {v(t1)}")
    for i in range(1, 4): A(f"v_xor_b32 {v(wa+i)}, {32*i}, {v(wa)}")
    for i in range(4): A(f"v_mov_b32 {v(ONES+i)}, 0x3f803f80")
    A(f"s_lshl_b32 s56, s{W}, 11"); A(f"v_add_u32 {v(ex)}, s56, {v(LV)}")
    A(f"s_lshl_b32 s41, s{rt}, 1"); A(f"s_add_u32 s41, s41, s{wm}")
    A(f"s_lshl_b32 s{srs}, s41, 8"); A(f"s_add_u32 s{srs}, s{srs}, {RS_OFF}"); A(f"s_add_u32 s43, s{srs}, 8192")
    A(f"s_cmp_lt_u32 s{ct}, 5"); A(f"s_cselect_b32 s42, {hex(QSCALE)}, 1.0"); A(f"s_lshl_b32 s44, s{rt}, 2"); A(f"s_cmp_eq_u32 s{W}, 0"); A(f"s_cselect_b32 s44, s44, {OOB}")
    A(f"s_cmp_ge_u32 s{ct}, 10"); A(f"s_cbranch_scc1 {K}_v")

    def base_of(stage): return {0: 0, 1: 0, 2: 65536, 3: 65536, 4: 131072}[stage % 5]
    def reads(stage):
        so = (stage % 5)*32768 - base_of(stage); f = FR + 64*(stage & 1)
        X = [[f"ds_read_b128 {r(f+8*xi+4*ks,4)}, {v(xa+ks)} offset:{so+2048*xi}" for ks in range(2)] for xi in range(4)]
        Wt = [[f"ds_read_b64_tr_b16 {r(f+32+8*wi+4*ks+2*h,2)}, {v(wa+wi)} offset:{so+(32*ks+4*h)*256}" for ks in range(2) for h in range(2)] for wi in range(4)]
        return Wt[0] + X[0] + X[1] + X[2] + X[3] + Wt[1] + Wt[2] + Wt[3]
    def mainloop(isv):
        tag = "v" if isv else "q"
        if not isv:
            A(f"s_mul_i32 s{sst}, s41, 5120")
            A(f"s_cmp_ge_u32 s{ct}, 5"); A(f"s_cselect_b32 s38, {K_OFF}, 0"); A("s_cselect_b32 s39, 5, 0"); A(f"s_add_u32 s{sst}, s{sst}, s38"); A(f"s_sub_u32 s38, s{ct}, s39")
            A("s_lshl_b32 s38, s38, 4"); A("s_lshl_b32 s39, s40, 1"); A("s_add_u32 s38, s38, s39"); A("s_mov_b32 s39, 163840"); A(f"s_mov_b32 s46, {GS-2*163840}")
            A(f"v_and_b32 {v(t0)}, 1, {v(qq)}"); A(f"v_lshrrev_b32 {v(t3)}, 1, {v(qq)}"); A(f"v_lshl_add_u32 {v(t3)}, {v(t0)}, 1, {v(t3)}")
            for a_ in range(2):
                A(f"s_xor_b32 s45, s38, {4*a_}")
                A(f"v_add_u32 {v(t0)}, s45, {v(t3)}"); A(f"v_mul_u32_u24 {v(t1)}, 205, {v(t0)}"); A(f"v_lshrrev_b32 {v(t1)}, 10, {v(t1)}")
                A(f"v_mul_u32_u24 {v(t2)}, 5, {v(t1)}"); A(f"v_sub_u32 {v(t0)}, {v(t0)}, {v(t2)}"); A(f"v_lshrrev_b32 {v(t2)}, 1, {v(t1)}")
                A(f"v_mul_u32_u24 {v(t1)}, s39, {v(t1)}"); A(f"v_mad_u32_u24 {v(t1)}, {v(t2)}, s46, {v(t1)}")
                A(f"v_lshl_add_u32 {v(t0)}, {v(t0)}, 9, {v(t1)}"); A(f"v_lshl_add_u32 {v(sa+a_)}, {v(nn)}, 4, {v(t0)}")
            A(f"v_lshlrev_b32 {v(rv)}, 2, {v(nn)}")
        else:
            A(f"s_mul_i32 s{sst}, s41, 10240"); A(f"s_add_u32 s{sst}, s{sst}, {V_OFF}")
            A(f"s_sub_u32 s38, s{ct}, 10"); A("s_lshl_b32 s38, s38, 3"); A("s_add_u32 s38, s38, s40")
            for wi in range(4):
                A(f"s_xor_b32 s45, s38, {wi}"); A("s_mul_i32 s39, s45, 205"); A("s_lshr_b32 s39, s39, 10"); A("s_lshl_b32 s45, s45, 8")
                A(f"s_mul_i32 s39, s39, {GS-1280}"); A("s_add_u32 s45, s45, s39"); A(f"s_add_u32 s{46+wi}, s45, s{sst}")
            A(f"v_mul_u32_u24 {v(t3)}, 1280, {v(qq)}"); A(f"v_lshl_add_u32 {v(sa)}, {v(nn)}, 4, {v(t3)}"); A(f"v_add_u32 {v(sa+1)}, 5120, {v(sa)}")
            A(f"v_lshlrev_b32 {v(rv)}, 4, {v(qq)}")
        Q = VQ(); Q.add(0, dma(0))
        Q.q += ["t"]*((NT > 0) + (NX > 0))
        A.ext(Q.add(1, dma(1)))
        A.ext(Q.wait(0)); A("s_barrier"); ST.mark(2)
        A.ext(reads(0))
        BP = CFG.get("p1bp", 8); FS = CFG.get("p1fs", 7)
        rsl = [f"buffer_load_dword{'x4' if isv else ''} {v(RS+16*k_+4*xi, 4 if isv else 1)}, {v(rv)}, {S4(SWS)}, s{43 if k_ else srs} offen offset:{64*xi} sc1" for k_ in range(2) for xi in range(4)]
        flag = f"buffer_load_dword {v(t0)}, off, {S4(SD)}, s44 sc1"
        for st in range(10):
            if 4*st in P1ST(): ST.mark(3 + P1ST().index(4*st))
            f = FR + 64*(st & 1); X = lambda xi, ks: f+8*xi+4*ks; Wf = lambda wi, ks: f+32+8*wi+4*ks
            mf = []
            for wi in range(4):
                if wi < 2:
                    for ks in range(2):
                        c0 = "0" if (st == 0 and ks == 0) else None
                        mf.append(mf16(CS+4*wi, ONES, Wf(wi, ks), c0) if isv else mf16(CS+4*wi, Wf(wi, ks), ONES, c0))
                for xi in range(4):
                    for ks in range(2):
                        c0 = "0" if (st == 0 and ks == 0) else None
                        mf.append(mf16(ACC+16*wi+4*xi, X(xi, ks), Wf(wi, ks), c0) if isv else mf16(ACC+16*wi+4*xi, Wf(wi, ks), X(xi, ks), c0))
            A("s_waitcnt lgkmcnt(12)")
            head, valu = [], []
            if st == 0: head = Q.add(2, dma(2))
            if st < 9 and base_of(st+1) != base_of(st):
                d = (base_of(st+1) - base_of(st)) & 0xffffffff
                valu = [f"v_add_u32 {v(x)}, {d}, {v(x)}" for x in range(xa, xa+6)]
            if st == FS: head = head + Q.add("f", [flag])
            dm = dma(st+3) if st+3 < 10 else []
            if st < 9:
                slots = {k: [] for k in range(36)}
                rd = reads(st+1); RE = CFG.get("p1re", 35)
                for j, x in enumerate(rd): slots[BP + (j*(RE-BP))//24].append((None, x))
                if st == 0:
                    for j, x in enumerate(head): slots[min(j, BP-1)].append((None, x))
                    pos = [BP+1 + (27*j)//8 for j in range(8)]
                else:
                    slots[0] += [(None, x) for x in head]
                    pos = [1 + (36*j)//8 for j in range(8)]
                if st == FS+1: dm = rsl; pos = [BP+1 + 3*j for j in range(8)]
                j = 0
                for k_, x in enumerate(dm):
                    if is_salu(x): slots[max(pos[j] - (2 if is_salu(dm[k_+1]) else 1), pos[j-1] if j else (BP if st == 0 else 0))].append((None, x))
                    else: slots[pos[j]].append(("rs" if st == FS+1 else st+3, x)); j += 1
                for k in range(36):
                    if k == BP:
                        A("s_waitcnt lgkmcnt(0)"); A.ext(Q.wait(st+1))
                        if st == FS+1:
                            A.ext(Q.wait("f")); A(f"v_or_b32 {v(t0)}, s{W}, {v(t0)}"); A(f"v_cmp_eq_u32 vcc, 0, {v(t0)}"); A("s_nop 1"); A(f"s_cbranch_vccnz {K}_rsspin{tag}"); A(f"{K}_rsok{tag}:")
                        A("s_barrier")
                    A(mf[k])
                    sl = slots[k]
                    first = [e for e in sl if is_salu(e[1])][:1] if (sl and not sl[0][1].startswith("buffer") and st) else []
                    for e in first + [e for e in sl if e not in first]:
                        if e[0] is not None: Q.add(e[0], [e[1]])
                        A(e[1])
                    if k < len(valu): A(valu[k])
            else:
                A.ext(mf[:BP]); A("s_waitcnt lgkmcnt(0)"); A.ext(mf[BP:22])
                A(f"ds_write_b128 {v(ex)}, {v(CS,4)}"); A(f"ds_write_b128 {v(ex)}, {v(CS+4,4)} offset:1024"); A.ext(mf[22:28])
                A(f"v_xor_b32 {v(ex)}, 2048, {v(ex)}"); A("s_waitcnt lgkmcnt(0)"); A("s_barrier"); A(mf[28])
                A(f"ds_read_b128 {v(CS+8,4)}, {v(ex)}"); A(f"ds_read_b128 {v(CS+12,4)}, {v(ex)} offset:1024"); A.ext(mf[29:])
        ST.mark(3 + len(P1ST()))
        A.ext(Q.wait("rs"))
        if not isv:
            for xi in range(4): A(f"v_mul_f32 {v(RS+16+4*xi)}, s42, {v(RS+16+4*xi)}")
        n_ = 0
        for grp in ([(a_, xi) for a_ in range(2) for xi in range(4)] if not isv else [(wi, xp) for wi in range(4) for xp in range(2)]):
            tiles = [(2*grp[0]+j, grp[1]) for j in range(2)] if not isv else [(grp[0], 2*grp[1]+j) for j in range(2)]
            if n_ == 4: A("s_waitcnt lgkmcnt(0)")
            o = OB + 4*(n_ % 4); n_ += 1
            for wi, xi in tiles:
                ac = ACC+16*wi+4*xi
                for i in (0, 2):
                    if not isv: A(f"v_pk_fma_f32 {v(ac+i,2)}, {v(CS+4*wi+i,2)}, {v(RS+4*xi,2)}, {v(ac+i,2)} op_sel_hi:[1,0,1]")
                    else: A(f"v_pk_fma_f32 {v(ac+i,2)}, {v(RS+4*xi+i,2)}, {v(CS+4*wi,2)}, {v(ac+i,2)} op_sel_hi:[1,0,1]")
            for wi, xi in tiles:
                ac = ACC+16*wi+4*xi
                for i in (0, 2):
                    if not isv: A(f"v_pk_mul_f32 {v(ac+i,2)}, {v(ac+i,2)}, {v(RS+16+4*xi,2)} op_sel_hi:[1,0]")
                    else: A(f"v_pk_mul_f32 {v(ac+i,2)}, {v(ac+i,2)}, {v(RS+16+4*xi+i,2)}")
            for i in range(2):
                for j, (wi, xi) in enumerate(tiles): A(f"v_cvt_pk_bf16_f32 {v(o+2*j+i)}, {v(ACC+16*wi+4*xi+2*i)}, {v(ACC+16*wi+4*xi+2*i+1)}")
            sw = "v_permlane32_swap_b32" if isv else "v_permlane16_swap_b32"
            A(f"{sw} {v(o)}, {v(o+2)}"); A("s_nop 0"); A(f"{sw} {v(o+1)}, {v(o+3)}")
            if not isv: A(f"buffer_store_dwordx4 {v(o,4)}, {v(sa+grp[0])}, {S4(SWS)}, s{sst} offen offset:{2560*(grp[1]>>1)+256*(grp[1]&1)} sc1")
            else: A(f"buffer_store_dwordx4 {v(o,4)}, {v(sa+grp[1])}, {S4(SWS)}, s{46+grp[0]} offen sc1")
        def spin():
            A(f"{K}_rsspin{tag}:"); poll(A, [flag], [t0], sleep=10); A(f"s_branch {K}_rsok{tag}")
        return spin
    spq = mainloop(False)
    A(f"s_branch {K}_p1done")
    A(f"{K}_idle0:")
    XB, SM = 64, 40
    KS = CFG.get("idle_k", 5)
    A(f"s_add_u32 s{sox}, s{sox}, {128*KS}")
    def xl(i):
        st_, b_ = divmod(i, 4)
        L = [f"buffer_load_dwordx4 {v(XB+4*i,4)}, {v(dmx+b_)}, {S4(SX)}, s{sox} offen offset:{b_*1024}"]
        if b_ == 3: L.append(f"s_add_u32 s{sox}, s{sox}, {128 if st_+KS != 9 else (128-1280) & 0xffffffff}")
        return L
    for i in range(8): A.ext(xl(i))
    common()
    for i in range(1, 4 + len(P1ST())): ST.mark(i)
    for i in range(4): A(f"v_mov_b32 {v(8+i)}, 0"); A(f"v_mov_b32 {v(ONES+i)}, 0x3f803f80")
    for i in range(8): A(f"v_mov_b32 {v(SM+i)}, 0")
    def dots(i):
        for j in range(4): A(f"v_dot2c_f32_bf16 {v(SM+2*(i%4))}, {v(ONES)}, {v(XB+4*i+j)}"); A(f"v_dot2c_f32_bf16 {v(SM+2*(i%4)+1)}, {v(XB+4*i+j)}, {v(XB+4*i+j)}")
    for i in range(8, 40):
        A.ext(xl(i))
        if i >= 12: A("s_waitcnt vmcnt(12)"); dots(i-12)
    A(f"v_mov_b32 v3, {OOB}")
    A(f"s_mul_i32 s56, s{rt}, 6016"); A(f"s_add_u32 s56, s56, {F2_OFF}"); A("v_lshlrev_b32 v2, 4, v0")
    A(f"buffer_store_dwordx4 v[8:11], v2, {S4(SWS)}, s56 offen sc1"); A(f"buffer_store_dwordx4 v[8:11], v2, {S4(SWS)}, s56 offen offset:1920 sc1")
    A(f"s_lshl_b32 s57, s{rt}, 3"); A("v_add_u32 v2, s57, v0")
    A("v_mul_u32_u24 v2, 2560, v2"); A("v_cmp_gt_u32 vcc, 8, v0"); A("s_nop 1"); A("v_cndmask_b32 v2, v3, v2, vcc")
    A(f"s_mov_b32 s56, {ONES_OFF}")
    A(f"buffer_store_dwordx4 {v(ONES,4)}, v2, {S4(SWS)}, s56 offen sc1")
    A("s_mov_b32 s56, s2"); f1addr_s(A, 56); A(f"s_add_u32 s56, s56, {F1_OFF}"); A(f"v_mov_b32 v4, s{MYF}"); A(f"buffer_store_dword v4, off, {S4(SWS)}, s56 sc1")
    for i in range(28, 40):
        A(f"s_waitcnt vmcnt({43-i})"); dots(i)
    A("s_nop 2")
    for mod in ("quad_perm:[1,0,3,2]", "quad_perm:[2,3,0,1]", "row_half_mirror"):
        for i in range(8): A(f"v_add_f32_dpp {v(SM+i)}, {v(SM+i)}, {v(SM+i)} {mod} row_mask:0xf bank_mask:0xf")
    A(f"v_and_b32 v2, 7, {v(LANE)}")
    for b_ in range(1, 4):
        A(f"v_cmp_eq_u32 vcc, {b_}, v2"); A("s_nop 1"); A(f"v_cndmask_b32 {v(SM)}, {v(SM)}, {v(SM+2*b_)}, vcc"); A(f"v_cndmask_b32 {v(SM+1)}, {v(SM+1)}, {v(SM+2*b_+1)}, vcc")
    A(f"v_mul_f32 {v(SM)}, {hex(f2u(-1/640))}, {v(SM)}"); A(f"v_mul_f32 {v(SM+1)}, {hex(f2u(1/640))}, {v(SM+1)}")
    A(f"v_fma_f32 {v(SM+1)}, -{v(SM)}, {v(SM)}, {v(SM+1)}"); A(f"v_max_f32 {v(SM+1)}, 0, {v(SM+1)}")
    A(f"v_add_f32 {v(SM+1)}, {hex(f2u(1e-5))}, {v(SM+1)}"); A(f"v_rsq_f32 {v(SM+1)}, {v(SM+1)}")
    A(f"v_lshrrev_b32 v4, 3, {v(LANE)}"); A("v_lshl_add_u32 v4, v2, 3, v4"); A("v_lshlrev_b32 v4, 2, v4"); A("v_cmp_gt_u32 vcc, 4, v2"); A("s_nop 1"); A("v_cndmask_b32 v4, v3, v4, vcc")
    A(f"s_lshl_b32 s56, s{rt}, 2"); A(f"s_add_u32 s56, s56, s{W}"); A("s_lshl_b32 s57, s56, 7"); A(f"s_add_u32 s57, s57, {RS_OFF}"); A("s_add_u32 s58, s57, 8192")
    A(f"buffer_store_dword {v(SM)}, v4, {S4(SWS)}, s57 offen sc1"); A(f"buffer_store_dword {v(SM+1)}, v4, {S4(SWS)}, s58 offen sc1")
    A(f"s_lshl_b32 s57, s{rt}, 2"); A(f"s_cmp_eq_u32 s{W}, 0"); A(f"s_cselect_b32 s57, s57, {OOB}"); A("v_mov_b32 v2, 1")
    A("s_waitcnt vmcnt(0)"); A("s_barrier")
    A("s_mov_b64 exec, 1"); A(f"buffer_store_dword v2, off, {S4(SD)}, s57 sc1"); A("s_mov_b64 exec, -1")
    A("s_lshl_b32 s56, s56, 13")
    for it in range(CFG.get("idle_t", 0)):
        for m_ in range(4):
            if it*524288 < WT[m_][1]: A.ext(wtouch(m_, 56))
        A("s_add_u32 s56, s56, 524288")
    A(f"s_branch {K}_p1done")
    A(f"{K}_v:")
    spv = mainloop(True)
    A(f"{K}_p1done:")
    ST.n = 4 + len(P1ST())
    ST.mark()
    A(f"v_and_b32 v14, 15, {v(LANE)}"); A("v_lshlrev_b32 v14, 2, v14"); A(f"s_cmp_eq_u32 s{W}, 0"); A(f"s_cselect_b32 s22, 0, {OOB}")
    A(f"s_lshl_b32 s62, s{ct}, 4"); A(f"s_add_u32 s62, s62, s{rt}"); A("s_cmp_lt_u32 s2, 240"); A("s_cselect_b32 s62, s62, s2")
    f1addr_s(A, 62); A(f"s_add_u32 s62, s62, {F1_OFF}"); A("s_add_u32 s62, s62, s22")
    r0l = f"buffer_load_dword v15, v14, {S4(SD)}, s22 offen sc1"
    A(r0l)
    relayout_setup(A)
    def finish():
        A(f"v_mov_b32 v3, s{MYF}")
        ok = A.label("r0ok")
        A("s_waitcnt vmcnt(0)"); A(f"v_or_b32 v15, s{W}, v15"); A("v_cmp_eq_u32 vcc, 0, v15"); A("s_nop 1"); A(f"s_cbranch_vccz {ok}")
        poll(A, [r0l], [15], sleep=10)
        A(f"{ok}:")
        A("s_barrier")
        A("s_mov_b64 exec, 1"); A(f"buffer_store_dword v3, off, {S4(SWS)}, s62 sc1"); A("s_mov_b64 exec, -1")
        ST.mark()
    return finish, (lambda: (spq(), spv()))

def w3reg(f): return 256 + 192 + 4*f if f < 16 else 148 + 4*(f-16)
WV = 250
P3RES, P3CS = 184, 194
SK_WR, SK_RD, SK_RM = 242, 245, 246
def p3_wload(f):
    ks, u = divmod(f, 5)
    L = [f"buffer_load_dwordx4 {r(w3reg(f),4)}, {v(WV if u < 4 else WV+1)}, {S4(SWS)}, s44 offen offset:{1024*(u&3)} sc1"]
    if u == 4: L.append("s_add_u32 s44, s44, 40960")
    return L
CMB = 86016

def TOUCHES(key="touch", dflt=""): return [(int(x.split(":")[0]), x.split(":")[1]) for x in str(CFG.get(key, dflt)).split(",") if x]
def gtouch(what):
    c, k_ = what[0], int(what[1:] or 0)
    if c == "u": return [f"s_mov_b64 s[{SR}:{SR+1}], s[86:87]", f"s_mov_b32 s{SR+2}, 2621440", f"buffer_load_dword v248, v147, {S4(SR)}, s90 offen offset:{1280*k_} sc1"]
    reg, vr, base = {"N": (76, TV, HH_OFF() + 3456*k_), "h": (90, 147, H_OFF()),
                     "s": (93, None, STAT_OFF), "g": (79, TV, WGU_OFF + 442368*k_), "d": (79, TV, WD_OFF + 442368*k_)}[c]
    return [f"s_add_u32 s91, s{reg}, {base}", f"buffer_load_dword v248, {v(vr) if vr else 'off'}, {S4(SWS)}, s91 {'offen' if vr else ''} sc1"]
def phase2(A, ST, finish1):
    odd, sok, sov, sox, redo, sob, sfr, stch = 28, 72, 73, 74, 32, 33, 34, 35
    S0, S1, P, E, O0 = 16, 48, 80, 96, 104
    kv, kxv, vv, ov, oxv, cw, cr, tv = 136, 137, 138, 139, 140, 141, 144, 145
    OA, QM, QX, KR, VR, XR = 256, 256+96, 256+128, 256+136, 256+152, 256+184
    Oreg = lambda lp: O0 if lp == 0 else OA + 32*(lp-1)
    t0, t1, t2, t3, t4 = 2, 3, 4, 5, 6
    LD = CFG.get("ld", "sc1")
    head, qb = 30, 31
    A(f"s_lshl_b32 s{head}, s{GX}, 2"); A(f"s_and_b32 s36, s{GI}, 3"); A(f"s_add_u32 s{head}, s{head}, s36"); A(f"s_lshr_b32 s{qb}, s{GI}, 2")
    A(f"s_and_b32 s{odd}, s{head}, 1")
    A(f"s_bfe_u32 s36, s{head}, 0x10001"); A("s_mul_i32 s37, s36, 163840"); A(f"s_add_u32 s37, s37, s{GB}")
    A(f"s_add_u32 s38, s37, {K_OFF}"); A(f"s_add_u32 s{SA}, s{SWS}, s38"); A(f"s_addc_u32 s{SA+1}, s{SWS+1}, 0"); A(f"s_mov_b32 s{SA+2}, 163840")
    A(f"s_mul_i32 s{sob}, s{qb}, {GS}"); A(f"s_lshl_b32 s36, s{head}, 9"); A(f"s_add_u32 s{sob}, s{sob}, s36")
    A(f"s_lshl_b32 s36, s{W}, 14"); A(f"s_add_u32 s63, s{sob}, s36"); A(f"s_add_u32 s63, s63, {OX_OFF}")
    A(f"s_lshl_b32 s36, s{W}, 16"); A(f"s_add_u32 s{sob}, s{sob}, s36"); A(f"s_add_u32 s{sob}, s{sob}, {O_OFF}")
    A(f"s_lshl_b32 s38, s{qb}, 2")
    for i in range(4):
        A(f"s_add_u32 s36, s{W}, {i}"); A("s_and_b32 s36, s36, 3")
        if i: A("s_mul_i32 s39, s36, 18432"); A(f"s_add_u32 s39, s39, {CMB+(i-1)*6144}"); A(f"v_add_u32 {v(cw+i-1)}, s39, {v(LV)}")
        else: A("s_mul_i32 s39, s36, 18432"); A(f"s_add_u32 s39, s39, {CMB}"); A(f"v_add_u32 {v(cr)}, s39, {v(LV)}")
        A("s_add_u32 s36, s36, s38"); A("s_mul_i32 s36, s36, 5120"); A(f"s_add_u32 s{40+i}, s36, s37")
    A(f"s_mul_i32 s36, s{odd}, 1536"); A(f"v_add_u32 {v(kv)}, s36, {v(LV)}")
    A(f"v_and_b32 {v(t0)}, 31, {v(LANE)}"); A(f"v_lshrrev_b32 {v(t1)}, 5, {v(LANE)}")
    A(f"s_lshl_b32 s36, s{odd}, 3"); A("s_add_u32 s37, s36, 1024")
    A(f"v_lshl_add_u32 {v(t4)}, {v(t0)}, 4, s37")
    A(f"v_mul_u32_u24 {v(t2)}, 2560, {v(t1)}"); A(f"v_add_u32 {v(kxv)}, {v(t4)}, {v(t2)}")
    A(f"v_bfe_u32 {v(t2)}, {v(LANE)}, 4, 1"); A(f"v_lshlrev_b32 {v(t2)}, 14, {v(t2)}"); A(f"v_and_b32 {v(t3)}, 15, {v(LANE)}"); A(f"v_lshl_add_u32 {v(t2)}, {v(t3)}, 4, {v(t2)}")
    A(f"v_lshl_add_u32 {v(ov)}, {v(t1)}, 8, {v(t2)}")
    A(f"v_lshrrev_b32 {v(t2)}, 2, {v(t0)}"); swap01(A, t3, t2, 7)
    A(f"v_and_b32 {v(t2)}, 3, {v(t0)}"); A(f"v_lshl_add_u32 {v(t2)}, {v(t3)}, 2, {v(t2)}")
    A(f"v_mul_u32_u24 {v(t3)}, 1280, {v(t1)}"); A(f"v_lshl_add_u32 {v(t2)}, {v(t2)}, 4, {v(t3)}")
    A(f"s_and_b32 s36, s{head}, 3"); A("s_mul_i32 s36, s36, 320"); A(f"v_add_u32 {v(t2)}, s36, {v(t2)}")
    A(f"v_mov_b32 {v(t3)}, {OOB}"); A(f"v_cmp_gt_u32 vcc, 20, {v(t0)}"); A("s_nop 1"); A(f"v_cndmask_b32 {v(t2)}, {v(t3)}, {v(t2)}, vcc")
    A(f"s_sub_u32 s36, {ONES_OFF-V_OFF}, s{GB}"); A(f"v_mov_b32 {v(t3)}, s36")
    A(f"v_cmp_eq_u32 vcc, 20, {v(t0)}"); A("s_nop 1"); A(f"v_cndmask_b32 {v(vv)}, {v(t2)}, {v(t3)}, vcc")
    A(f"s_mul_i32 s{sok}, s{W}, {16*2560}"); A(f"s_mov_b32 s{sox}, s{sok}")
    A(f"s_mul_i32 s36, s{W}, {16*5120}"); A(f"s_add_u32 s{sov}, s{GB}, s36"); A(f"s_add_u32 s{sov}, s{sov}, {V_OFF}")
    A(f"s_mov_b32 s{redo}, 0")
    A(f"s_bfe_u32 s36, s{GI}, 0x10002"); A("s_lshl_b32 s37, s36, 10"); A(f"v_add_u32 {v(WV)}, s37, {v(LV)}")
    A("s_xor_b32 s36, s36, 1"); A("s_lshl_b32 s37, s36, 12"); A(f"v_add_u32 {v(WV+1)}, s37, {v(LV)}")
    A(f"s_lshr_b32 s36, s{GI}, 2"); A("s_mul_i32 s36, s36, 5120"); A(f"s_mul_i32 s44, s{W}, {5*40960}"); A("s_add_u32 s44, s44, s36"); A(f"s_add_u32 s44, s44, {WO_OFF}")
    skinny_addr(A); p4_setup(A)
    A(f"s_lshl_b32 s75, s{P4_ST}, 7"); A(f"s_add_u32 s75, s75, {CS_OFF}"); A("v_lshlrev_b32 v146, 2, v0")
    A(f"s_lshl_b32 s{sfr}, s2, 5"); A(f"s_add_u32 s{sfr}, s{sfr}, s{W}"); A(f"s_lshl_b32 s{sfr}, s{sfr}, 2"); A(f"s_add_u32 s{sfr}, s{sfr}, {FR_OFF}")
    A(f"v_mov_b32 v11, {v(TV)}")
    A(f"s_lshl_b32 s36, s{GX}, 5"); A(f"s_add_u32 s36, s36, s{GI}"); A("s_lshl_b32 s36, s36, 2"); A(f"s_add_u32 s36, s36, s{W}")
    A("s_lshl_b32 s93, s36, 7"); A("s_and_b32 s36, s36, 127"); A("s_mul_i32 s79, s36, 3456")
    A("s_mul_i32 s76, s36, 6912"); A(f"s_add_u32 s76, s76, s{GB}"); A("s_mul_i32 s90, s36, 2560"); A(f"s_add_u32 s90, s90, s{GB}")
    A(f"v_min_u32 v147, {19*128}, {v(TV)}"); A(f"v_min_u32 {v(TV)}, {26*128}, {v(TV)}")
    A(f"v_and_b32 v2, 31, {v(LANE)}"); A("v_lshrrev_b32 v3, 2, v2"); A(f"s_lshr_b32 s36, s{GX}, 2"); A("s_lshl_b32 s37, s36, 3"); A("v_add_u32 v3, s37, v3")
    A("v_and_b32 v4, 3, v2"); A("s_lshl_b32 s36, s36, 1"); A("v_add_u32 v5, s36, v4"); A("v_cmp_lt_u32 vcc, 27, v2"); A(f"s_and_b32 s36, s{GX}, 3"); A("s_lshl_b32 s36, s36, 2")
    A("v_cndmask_b32 v4, v4, v5, vcc"); A("v_cndmask_b32 v3, v3, 7, vcc"); A("v_lshl_add_u32 v3, v3, 4, v4"); A("v_add_u32 v3, s36, v3")
    A(f"v_lshl_add_u32 v4, v2, 3, s{GX}"); A("v_cmp_lt_u32 vcc, 29, v2"); A(f"s_mov_b32 s77, {F1_OFF}"); A("v_mov_b32 v10, 1")
    A("v_cndmask_b32 v8, v3, v4, vcc"); f1addr_v(A, 8, 8)
    A(f"s_mul_i32 s36, s{head}, 20"); A("s_add_u32 s37, s36, 19"); A("s_lshr_b32 s36, s36, 7"); A("s_lshr_b32 s37, s37, 7"); A("s_sub_u32 s37, s37, s36")
    A(f"v_min_u32 v2, 23, {v(LANE)}"); A("v_bfe_u32 v3, v2, 2, 1"); A("v_mul_u32_u24 v3, s37, v3"); A("v_lshrrev_b32 v4, 3, v2"); A("v_mad_u32_u24 v3, v4, 5, v3"); A("v_add_u32 v3, s36, v3")
    A(f"s_lshl_b32 s36, s{W}, 2"); A("v_and_b32 v4, 3, v2"); A("v_add_u32 v4, s36, v4"); A(f"s_lshl_b32 s36, s{qb}, 1"); A("v_and_b32 v5, 1, v2"); A("v_add_u32 v5, s36, v5")
    A("v_cmp_gt_u32 vcc, 8, v2"); A("s_nop 1"); A("v_cndmask_b32 v4, v4, v5, vcc"); A("v_lshl_add_u32 v3, v3, 4, v4"); f1addr_v(A, tv, 3)
    A(f"s_mul_i32 s78, s{W}, {64*128}"); A(f"s_add_u32 s78, s78, {FR_OFF}")
    finish1()
    f1l = [f"buffer_load_dword v4, {v(tv)}, {S4(SWS)}, s77 offen {CFG.get('pf1', 'sc1').replace('_', ' ')}"]
    lab = A.label("busy"); A("s_cmp_lt_u32 s2, 240"); A(f"s_cbranch_scc1 {lab}")
    A("s_mov_b64 exec, 1"); poll(A, f1l, [4], sleep=6); A("s_mov_b64 exec, -1")
    A(f"{lab}:")
    poll(A, f1l, [4], sleep=CFG.get("f1s", 0))
    ST.mark()
    Kr = lambda t: KR + 4*(t % 4)
    Vr = lambda t, sx: VR + 8*(t % 4) + 4*sx
    Xr = lambda j: XR + 2*(j % 2)
    def ldk(t): return [f"buffer_load_dwordx4 {r(Kr(t),4)}, {v(kv)}, {S4(SA)}, s{sok} offen offset:{2560*(t&1)} {LD}"] + ([f"s_add_u32 s{sok}, s{sok}, 5120"] if t & 1 else [])
    def ldx(j): return [f"buffer_load_dwordx2 {r(Xr(j),2)}, {v(kxv)}, {S4(SA)}, s{sox} offen sc1", f"s_add_u32 s{sox}, s{sox}, 5120"]
    def ldv(t, sx): return [f"buffer_load_dwordx4 {r(Vr(t,sx),4)}, {v(vv)}, {S4(SWS)}, s{sov} offen offset:{2560*sx} {LD}"] + ([f"s_add_u32 s{sov}, s{sov}, 5120"] if sx else [])
    def ldq(lp): return ([f"buffer_load_dwordx2 {r(QX+2*lp,2)}, {v(kxv)}, {S4(SWS)}, s{40+lp} offen sc1"] +
                         [f"buffer_load_dwordx4 {r(QM+8*lp+4*j,4)}, {v(kv)}, {S4(SWS)}, s{40+lp} offen offset:{2560*j} sc1" for j in range(2)])
    Q = VQ()
    order = (1, 2, 3, 0)
    for tag, ops in ((("x", 0), ldx(0)), (("k", 0), ldk(0)), (("q", 1), ldq(1)), (("q", 2), ldq(2))): A.ext(Q.add(tag, ops))
    side = {b: [] for b in range(64)}
    mid = {b: [] for b in range(64)}
    def put(b, tag, ops): side[b] += [(tag, x) for x in ops]
    put(0, ("k", 1), ldk(1)); put(0, ("v", 1, 0), ldv(1, 0)); put(1, ("v", 1, 1), ldv(1, 1)); put(1, ("x", 1), ldx(1)); put(1, ("k", 2), ldk(2))
    put(2, ("v", 2, 0), ldv(2, 0)); put(2, ("v", 2, 1), ldv(2, 1)); put(2, ("k", 3), ldk(3)); put(3, ("v", 3, 0), ldv(3, 0)); put(3, ("v", 3, 1), ldv(3, 1))
    for t in range(12):
        put(4*t+3 + (t == 0), ("k", t+4), ldk(t+4)); put(4*t+4, ("v", t+4, 0), ldv(t+4, 0)); put(4*t+5, ("v", t+4, 1), ldv(t+4, 1))
    for j in range(6): put(8*j+6, ("x", j+2), ldx(j+2))
    for b in (7, 23, 39, 55): put(b, "pc", [CODE_TOUCH])
    B0 = CFG.get("b0", 4); B1 = B0 + CFG.get("b1", 8)
    if not CFG.get("noside"):
        SP = CFG.get("rsp", 2)
        for i in range(10): put(B0+SP*i, ("rd", i), rl_dma(i))
        for a_ in range(5):
            b_ = B1 + SP - 1 + 2*SP*a_
            put(b_, None, [("wait", ("rd", 2*a_+1))] + rl_read(a_, 0) + rl_read(a_, 1))
            put(b_+1, "rs", ["s_waitcnt lgkmcnt(0)"] + rl_store(a_, 0) + rl_store(a_, 1)); mid[b_+1] += [rl_sum(a_, 0), rl_sum(a_, 1)]
        put(b_+2, "rs", rl_cs(0) + rl_cs(1))
        B2 = b_ + 2 + CFG.get("b2", 5)
        put(B2, "fr", [("wait", "rs"), f"buffer_store_dword v10, off, {S4(SWS)}, s{sfr} sc1"])
        put(B2-4, "grp", [f"buffer_load_dword v9, v8, {S4(SWS)}, s77 offen sc1"])
        put(B2+1, None, [("wait", "grp"), f"v_cmp_ne_u32 vcc, s{MYF}, v9", "s_nop 0", "s_cmp_eq_u64 vcc, 0", f"s_cselect_b32 s{MODE}, {0 if CFG.get('safe') else 1}, 0"])
        put(B2+2, None, [f"s_cmp_eq_u32 s{MODE}, 0", f"s_cselect_b32 s{stch}, {OOB}, 0", f"s_add_u32 s76, s76, s{stch}", f"s_add_u32 s90, s90, s{stch}", f"s_add_u32 s93, s93, s{stch}"])
        B3 = B2 + CFG.get("b3", 5)
        frl = [f"buffer_load_dwordx4 {v(RLF,4)}, v11, {S4(SWS)}, s78 offen sc1"]
        put(B3, "frl", frl)
        chk = [f"v_min3_u32 {v(RLF)}, {v(RLF)}, {v(RLF+1)}, {v(RLF+2)}", f"v_min_u32 {v(RLF)}, {v(RLF)}, {v(RLF+3)}", f"v_cmp_eq_u32 vcc, 0, {v(RLF)}"]
        put(B3+3, None, [("wait", "frl")] + chk + ["s_nop 0", f"s_cbranch_vccnz {K}_frspin", f"{K}_frok:", "s_barrier"])
        pf = [x for st_ in range(3) for x in p4_dma(st_)]
        pf += [x for kq in range(4) for x in (f"buffer_load_dword {v(P3CS+kq)}, v146, {S4(SWS)}, s75 offen sc1", f"s_add_u32 s75, s75, {108*128}")]
        pf += io_rm("load", P3RES, SX)
        pf += [x for f in range(25) for x in p3_wload(f)]
        for b_, what in TOUCHES(): put(b_, "t", gtouch(what))
        PE = CFG.get("pfe", 61); nreal = sum(not is_salu(x) for x in pf)
        for b in range(B3+4, PE):
            take = -(-nreal//(PE-b))
            while pf and (take > 0 or is_salu(pf[0])):
                x = pf.pop(0); put(b, "pf", [x])
                if not is_salu(x): take -= 1; nreal -= 1
    else: A(f"s_mov_b32 s{MODE}, 1")
    for n in range(3):
        lp = order[n]
        put(61+n, None, [f"ds_write_b128 {v(cw+lp-1)}, {r(Oreg(lp)+16*j+4*g,4)} offset:{3072*j+1024*g}" for j in range(2) for g in range(3)])
    A.ext(Q.wait(("q", 1)))
    A(mf2b(S0, Xr(0), QX+2, "0", 0))
    for tag, ops in ((("v", 0, 0), ldv(0, 0)), (("v", 0, 1), ldv(0, 1)), (("q", 3), ldq(3))): A.ext(Q.add(tag, ops))
    A("s_nop 11")
    A(mf32(S0, Kr(0), QM+8)); A(mf32(S0+16, Kr(0), QM+12))
    A.ext(Q.add(("q", 0), ldq(0)))
    A.ext(Q.wait(("q", 2)))
    ST.mark()
    A("s_nop 7"); A(".p2align 3")
    def needs(b, k):
        if b > 63: return []
        t, t1_, lp1 = b >> 2, (b+1) >> 2, order[(b+1) & 3]
        if k == 0: return [("x", t1_ >> 1), ("q", lp1)] if b < 63 else []
        if k == 4: return [("k", t1_)] if b < 63 else []
        if k == 3: return [("v", t, 0)]
        if k == 6: return [("v", t, 1)]
        return []
    for b in range(64):
        t, lp = b >> 2, order[b & 3]
        t1_, lp1 = (b+1) >> 2, order[(b+1) & 3]
        cur, nxt = (S0, S1) if b % 2 == 0 else (S1, S0)
        c0 = "0" if t == 0 else None
        mf = {3: mf32(Oreg(lp), Vr(t, 0), P, c0), 6: mf32(Oreg(lp), Vr(t, 1), P+4), 7: mf32(Oreg(lp)+16, Vr(t, 0), P+8, c0)}
        if b: mf[2] = mf32(Oreg(order[(b-1) & 3])+16, Vr((b-1) >> 2, 1), P+12)
        if b < 63:
            mf[0] = mf2b(nxt, Xr(t1_ >> 1), QX+2*lp1, "0", t1_ & 1); mf[4] = mf32(nxt, Kr(t1_), QM+8*lp1); mf[5] = mf32(nxt+16, Kr(t1_), QM+8*lp1+4)
        q = side[b]; mq = list(mid[b])
        if b in ASTAMPS(): ST.mark()
        for k in range(8):
            if k in mf: A(mf[k])
            n0 = len(A.L)
            if k >= 2:
                tags = needs(b, k+1) if k < 7 else needs(b+1, 0)
                w_ = Q.wait(*tags) if tags else []
                A.ext(w_)
                free = not w_; nmem = 0
                left = sum(1 for tg, x in q if not (isinstance(x, tuple) or is_salu(x) or x.startswith("v_") or x.endswith(":")))
                want = -(-left//(8-k))
                while q:
                    tg, x = q[0]
                    if isinstance(x, tuple):
                        if not free and k < 7 and CFG.get("strict", 1): break
                        q.pop(0); w_ = Q.wait(x[1]); A.ext(w_); free = free and not w_
                    elif x.endswith(":") or x.startswith("v_"): q.pop(0); A(x); free = False; nmem = 99 if k < 7 else nmem
                    elif is_salu(x):
                        if not free and k < 7 and len(q) <= 2*(7-k): break
                        q.pop(0); A(x); free = False
                    else:
                        if nmem >= max(want, 1) and k < 7: break
                        q.pop(0); A.ext(Q.add(tg, [x])); nmem += 1; free = False
            four = sum(1 for x in A.L[n0:] if isize(x) == 4)
            pk = (k-1) % 8; eb = E + 4*(pk & 1)
            if b or k:
                for j in range(2): A(f"v_cvt_pk_bf16_f32 {v(P+2*pk+j)}, {v(eb+2*j)}, {v(eb+2*j+1)}")
            for j in range(4):
                wide = j == 0 and four % 2 == 1 and CFG.get("align", 1)
                A(f"v_exp_f32{'_e64' if wide else ''} {v(E+4*(k&1)+j)}, {v(cur+4*k+j)}")
                if j == 1 and k >= 3 and mq and not any(x == "s_waitcnt lgkmcnt(0)" for _, x in q): A(mq.pop(0))
        assert not q and not mq, (b, q)
    for j in range(2): A(f"v_cvt_pk_bf16_f32 {v(P+14+j)}, {v(E+4+2*j)}, {v(E+5+2*j)}")
    A("s_waitcnt lgkmcnt(0)"); A("s_barrier")
    A(mf32(O0+16, Vr(15, 1), P+12))
    ST.mark()
    for sl in range(3):
        for j in range(2):
            for g in range(3): A(f"ds_read_b128 {v(S0+24*sl+12*j+4*g,4)}, {v(cr)} offset:{6144*sl+3072*j+1024*g}")
        if sl == 1: A("s_waitcnt lgkmcnt(6)")
    A(f"s_lshl_b32 s38, s{qb}, 2"); A(f"s_add_u32 s38, s38, s{W}"); A("s_lshl_b32 s38, s38, 2"); A(f"s_lshr_b32 s39, s{head}, 3"); A("s_add_u32 s38, s38, s39"); A("s_lshl_b32 s38, s38, 5")
    A(f"s_and_b32 s39, s{head}, 7"); A("s_add_u32 s38, s38, s39"); A("s_lshl_b32 s38, s38, 2"); A(f"s_add_u32 s38, s38, {F2_OFF}")
    A(f"s_add_u32 s39, s{sob}, 32768"); w5_setup(A)
    for sl in range(3):
        if sl: A(f"s_waitcnt lgkmcnt({12-6*sl})")
        for j in range(2):
            for i in range(0, 12, 2): A(f"v_pk_add_f32 {v(O0+16*j+i,2)}, {v(O0+16*j+i,2)}, {v(S0+24*sl+12*j+i,2)}")
    A(f"{K}_anorm:")
    A(f"v_mov_b32 v12, {v(O0+8)}"); A(f"v_mov_b32 v13, {v(O0+8)}"); A(f"v_mov_b32 v14, {v(O0+24)}"); A(f"v_mov_b32 v15, {v(O0+24)}")
    A(f"s_mov_b32 s36, {hex(f2u(2.0**60))}"); A(f"s_mov_b32 s37, {hex(f2u(2.0**-60))}")
    A("v_permlane32_swap_b32 v12, v13"); A("v_permlane32_swap_b32 v14, v15"); A("s_nop 1")
    A("v_rcp_f32 v12, v13"); A("v_rcp_f32 v14, v15")
    A("v_cmp_nlt_f32_e64 vcc, v13, s36"); A("v_cmp_nlt_f32_e64 s[40:41], v15, s36"); A("v_cmp_ngt_f32_e64 s[42:43], v13, s37"); A("v_cmp_ngt_f32_e64 s[56:57], v15, s37")
    A("s_or_b64 vcc, vcc, s[40:41]"); A("s_or_b64 vcc, vcc, s[42:43]"); A("s_or_b64 vcc, vcc, s[56:57]"); A(f"s_cbranch_scc1 {K}_aslow")
    A(f"{K}_afin:")
    for j in range(2):
        for i in range(0, 12, 2): A(f"v_pk_mul_f32 {v(O0+16*j+i,2)}, {v(O0+16*j+i,2)}, {v(12+2*j,2)} op_sel_hi:[1,0]")
        for i in range(6): A(f"v_cvt_pk_bf16_f32 {v(S0+4*j+i if i < 4 else S0+8+2*j+i-4)}, {v(O0+16*j+2*i)}, {v(O0+16*j+2*i+1)}")
    def stores(fl):
        return ([f"buffer_store_dwordx4 {v(S0+4*j,4)}, {v(ov)}, {S4(SWS)}, s{sob if j == 0 else 39} offen {fl}" for j in range(2)] +
                ["s_mov_b32 exec_hi, 0", f"buffer_store_dwordx4 {v(S0+8,4)}, {v(LV)}, {S4(SWS)}, s63 offen {fl}"])
    A.ext(stores("sc1")); A("s_mov_b64 exec, -1")
    for f in range(CFG["w5a"]): A.ext(w5load(f))
    late_setup(A); A("v_mov_b32 v240, 1")
    A(f"s_waitcnt vmcnt({CFG['w5a']})"); A(f"buffer_store_dword v10, off, {S4(SWS)}, s38 sc1")
    ST.mark()
    def cold():
        if not CFG.get("noside"):
            A(f"{K}_frspin:")
            poll(A, frl, list(range(RLF, RLF+4)), sleep=8)
            A(f"s_branch {K}_frok")
        NM = S1
        A(f"{K}_aslow:")
        A(f"s_cmp_lg_u32 s{redo}, 0"); A(f"s_cbranch_scc1 {K}_afin")
        A(f"s_mov_b32 s{redo}, 1"); A(f"s_mov_b32 s{sok}, 0"); A(f"s_mov_b32 s{sox}, 0")
        A("v_mov_b32 v12, 0xff800000"); A("v_mov_b32 v13, 0xff800000")
        def scores(e, c):
            A(mf2b(S0, Xr(0), QX, c, e)); A("s_nop 15"); A("s_nop 1")
            A(mf32(S0, Kr(e), QM)); A(mf32(S0+16, Kr(e), QM+4)); A("s_nop 11")
        A(f"{K}_mloop:")
        A.ext(ldx(0) + ldk(0) + ldk(1)); A("s_waitcnt vmcnt(0)")
        for e in range(2):
            scores(e, "0")
            for j in range(2):
                for i in range(0, 16, 2): A(f"v_max3_f32 {v(12+j)}, {v(12+j)}, {v(S0+16*j+i)}, {v(S0+16*j+i+1)}")
        A(f"s_cmp_lt_u32 s{sok}, 163840"); A(f"s_cbranch_scc1 {K}_mloop")
        A("v_mov_b32 v14, v12"); A("v_mov_b32 v15, v13"); A("s_nop 1")
        A("v_permlane32_swap_b32 v12, v14"); A("v_permlane32_swap_b32 v13, v15"); A("s_nop 1")
        A("v_max_f32 v12, v12, v14"); A("v_max_f32 v13, v13, v15")
        for i in range(32): A(f"v_sub_f32 {v(NM+i)}, 0, {v(12+i//16)}"); A(f"v_mov_b32 {v(O0+i)}, 0")
        A(f"s_mov_b32 s{sok}, 0"); A(f"s_mov_b32 s{sox}, 0"); A(f"s_add_u32 s{sov}, s{GB}, {V_OFF}")
        A(f"{K}_sloop:")
        A.ext(ldx(0) + ldk(0) + ldk(1) + ldv(0, 0) + ldv(0, 1) + ldv(1, 0) + ldv(1, 1)); A("s_waitcnt vmcnt(0)")
        for e in range(2):
            scores(e, NM)
            for i in range(32): A(f"v_exp_f32 {v(S0+i)}, {v(S0+i)}")
            A("s_nop 0")
            for i in range(16): A(f"v_cvt_pk_bf16_f32 {v(P+i)}, {v(S0+2*i)}, {v(S0+2*i+1)}")
            A("s_nop 1")
            for j in range(2):
                for sx in range(2): A(mf32(O0+16*j, Vr(e, sx), P+8*j+4*sx))
        A(f"s_cmp_lt_u32 s{sok}, 163840"); A(f"s_cbranch_scc1 {K}_sloop")
        A("s_nop 15")
        A(f"s_branch {K}_anorm")
    return cold

RED = 86016
CSL = 147456
P4_SOW, P4_SOW2, P4_M0, P4_ST = 45, 46, 47, 48
class VQ:
    def __init__(self): self.q = []; self.done = 0
    def add(self, tag, ops):
        self.q += [tag for x in ops if x.startswith(("buffer", "global"))]
        assert len(self.q) - self.done <= 63, "too many outstanding"
        return ops
    def wait(self, *tags):
        idx = [i for i, x in enumerate(self.q) if x in tags]
        last = max(idx) + 1
        if last <= self.done: return []
        self.done = last
        return [f"s_waitcnt vmcnt({len(self.q) - last})"]

def p4_setup(A):
    A(f"s_lshr_b32 s36, s{GI}, 1"); A("s_mul_i32 s36, s36, 7"); A(f"s_min_u32 s{P4_ST}, s36, 101")
    A(f"s_mul_i32 s{P4_M0}, s{W}, 7168"); A(f"s_lshl_b32 s36, s{P4_ST}, 11"); A(f"s_add_u32 s36, s36, s{P4_M0}")
    A(f"s_lshr_b32 s37, s{W}, 1"); A(f"s_mul_i32 s37, s37, {221184-14336}"); A("s_add_u32 s36, s36, s37")
    A(f"s_add_u32 s{P4_SOW}, s36, {WGU_OFF}")
def p4_dma(stage):
    slot = stage % 5
    dw = lambda j: f"buffer_load_dwordx4 {v(LV)}, {S4(SWS)}, s{P4_SOW if j < 4 else P4_SOW2} offen offset:{(j&3)*1024} sc1 lds"
    return ([f"s_add_u32 m0, s{P4_M0}, {slot*28672}", f"s_add_u32 s{P4_SOW2}, s{P4_SOW}, 4096"] + [dw(j) for j in range(4)] +
            [f"s_add_u32 m0, s{P4_M0}, {slot*28672+4096}", f"s_add_u32 s{P4_SOW}, s{P4_SOW}, {2*221184}"] + [dw(j) for j in range(4, 7)])

def skinny_addr(A):
    for i in range(1, 4):
        A(f"s_add_u32 s36, s{W}, {i}"); A("s_and_b32 s36, s36, 3"); A("s_mul_i32 s36, s36, 15360"); A(f"s_add_u32 s36, s36, {RED+(i-1)*5120}"); A(f"v_add_u32 {v(SK_WR+i-1)}, s36, {v(LV)}")
    A(f"s_mul_i32 s36, s{W}, 15360"); A(f"s_add_u32 s36, s36, {RED}"); A(f"v_add_u32 {v(SK_RD)}, s36, {v(LV)}")
    A(f"v_and_b32 v2, 15, {v(LANE)}"); A(f"v_lshrrev_b32 v3, 4, {v(LANE)}")
    A("v_mul_u32_u24 v2, 1280, v2"); A(f"v_lshl_add_u32 {v(SK_RM)}, v3, 4, v2")
    A(f"s_lshl_b32 s49, s{GX}, 2"); A(f"s_and_b32 s36, s{GI}, 3"); A("s_add_u32 s49, s49, s36"); A("s_lshl_b32 s49, s49, 2"); A(f"s_add_u32 s49, s49, s{W}")
    A("s_mul_i32 s50, s49, 20480"); A(f"s_lshr_b32 s36, s{GI}, 3"); A("s_mul_i32 s37, s36, 320"); A("s_add_u32 s51, s50, s37")
    A("s_mul_i32 s37, s36, 5120"); A("s_add_u32 s50, s50, s37"); A(f"s_mul_i32 s37, s{GX}, {GS-327680}"); A("s_add_u32 s50, s50, s37"); A(f"s_add_u32 s50, s50, {H_OFF()}")
    A(f"s_bfe_u32 s36, s{GI}, 0x10002"); A("s_lshl_b32 s37, s36, 3")
    A("s_add_u32 s60, s50, s37"); A("s_add_u32 s60, s60, 2048"); A("s_add_u32 s61, s51, s37"); A("s_add_u32 s61, s61, 128")
    A("s_mul_i32 s37, s36, 3072"); A("s_add_u32 s50, s50, s37"); A("s_mul_i32 s37, s36, 192"); A("s_add_u32 s51, s51, s37")
def io_frag(op, regs, fl):
    return [f"buffer_{op}_dwordx4 {v(regs,4)}, {v(LV)}, {S4(SWS)}, s50 offen {fl}", f"buffer_{op}_dwordx4 {v(regs+4,4)}, {v(LV)}, {S4(SWS)}, s50 offen offset:1024 {fl}",
            f"buffer_{op}_dwordx2 {v(regs+8,2)}, {v(LV)}, {S4(SWS)}, s60 offen {fl}"]
def io_rm(op, regs, S):
    return [f"buffer_{op}_dwordx4 {v(regs,4)}, {v(SK_RM)}, {S4(S)}, s51 offen", f"buffer_{op}_dwordx4 {v(regs+4,4)}, {v(SK_RM)}, {S4(S)}, s51 offen offset:64",
            f"buffer_{op}_dwordx2 {v(regs+8,2)}, {v(SK_RM)}, {S4(S)}, s61 offen"]
def unpack(A, dst, src, n):
    for i in range(n): A(f"v_lshlrev_b32 {v(dst+2*i)}, 16, {v(src+i)}"); A(f"v_and_b32 {v(dst+2*i+1)}, 0xffff0000, {v(src+i)}")
def reduce_tail(A, ACC, rd):
    A("s_waitcnt lgkmcnt(0)"); A("s_barrier")
    for sl in range(3):
        for u in range(5): A(f"ds_read_b128 {v(ACC+20+20*sl+4*u,4)}, {v(rd)} offset:{5120*sl+1024*u}")
    for sl in range(3):
        A(f"s_waitcnt lgkmcnt({10-5*sl})")
        for i in range(0, 20, 2): A(f"v_pk_add_f32 {v(ACC+i,2)}, {v(ACC+i,2)}, {v(ACC+20+20*sl+i,2)}")
def quad_sum(A, regs, tmps):
    for swap in ("v_permlane32_swap_b32", "v_permlane16_swap_b32"):
        for x, t in zip(regs, tmps): A(f"v_mov_b32 {v(t)}, {v(x)}")
        A("s_nop 1")
        for x, t in zip(regs, tmps): A(f"{swap} {v(x)}, {v(t)}")
        A("s_nop 1")
        for x, t in zip(regs, tmps): A(f"v_add_f32 {v(x)}, {v(x)}, {v(t)}")

class TL:
    def __init__(self, A, Q, mf):
        self.A, self.Q, self.mf = A, Q, mf
        self.pre = [[] for _ in mf]; self.post = [[] for _ in mf]; self.valu = [[] for _ in mf]
    def spread(self, items, k0, step):
        k = float(k0); last = 0; hold = []
        for t, x in items:
            if is_salu(x): hold.append(x); continue
            kk = min(int(k), len(self.mf)-1)
            for j, h in enumerate(hold): self.post[max(last, kk-len(hold)+j)].append((None, h))
            hold = []; self.post[kk].append((t, x)); last = kk; k += step
        for j, h in enumerate(hold): self.post[min(last+1+j, len(self.mf)-1)].append((None, h))
        return k
    def vspread(self, ops, k0, k1, cap=2):
        ops = list(ops); k = k0
        while ops:
            assert k < len(self.mf), "no room"
            room = cap - len(self.valu[k]) - sum(1 for t, x in self.post[k] if not (isinstance(x, str) and is_salu(x)))
            want = -(-len(ops)//max(k1-k, 1))
            for _ in range(min(len(ops), max(room, 0) if k < k1-1 else len(ops), want if k < k1-1 else len(ops))): self.valu[k].append(ops.pop(0))
            k += 1
        return k
    def emit(self):
        A, Q = self.A, self.Q
        def one(t, x):
            if callable(x): x()
            elif isinstance(x, tuple): A.ext(Q.wait(*x[1:]))
            else:
                if t is not None: Q.add(t, [x])
                A(x)
        for k, m in enumerate(self.mf):
            for x in self.pre[k]: one(None, x)
            A(m)
            for t, x in self.post[k]: one(t, x)
            A.ext(self.valu[k])

W5X = 208
def w5reg(f): return 256+80+4*f if f < 28 else 256+4*(f-28) if f < 48 else 256+4*f if f < 64 else W5X + 4*(f-64)
def w5load(f):
    ks, u = divmod(f, 5)
    L = [f"buffer_load_dwordx4 {r(w5reg(f),4)}, {v(WV if u < 4 else WV+1)}, {S4(SWS)}, s44 offen offset:{1024*(u&3)} sc1"]
    if u == 4: L.append("s_add_u32 s44, s44, 40960" if ks != 12 else "s_add_u32 s44, s44, s94")
    return L
S_F2P, S_STW, S_F3W, S_F3P, S_STR, S_F4W, S_F4P, S_F3A, S_OH, S_OHH, S_OH1, S_A5 = 64, 65, 66, 67, 68, 69, 70, 71, 28, 29, 30, 72
P4_LA, P4_LB, P4_HV, P4_SV, P4_CA, P4_CB, P4_F3V, L4V, ONEV = 4, 7, 11, 12, 13, 14, 15, 241, 10
def w5_setup(A):
    A(f"s_mul_i32 s36, s{W}, 14"); A(f"s_sub_i32 s37, s{W}, 2"); A("s_max_i32 s37, s37, 0"); A("s_sub_u32 s31, s36, s37")
    A(f"s_lshr_b32 s36, s{GI}, 2"); A("s_mul_i32 s36, s36, 5120"); A("s_mul_i32 s44, s31, 40960"); A("s_add_u32 s44, s44, s36"); A(f"s_add_u32 s44, s44, {WD_OFF}")
    A(f"s_cmp_ge_u32 s{W}, 2"); A(f"s_cselect_b32 s92, {OOB}, 0"); A("s_add_u32 s94, s92, 40960")
def late_setup(A):
    A(f"s_and_b32 s56, s{GI}, 3"); A(f"s_lshl_b32 s37, s{W}, 12"); A(f"s_add_u32 s37, s37, s{GB}")
    A("s_lshl_b32 s39, s56, 14"); A("s_add_u32 s39, s39, s37"); A(f"s_add_u32 s39, s39, {OX_OFF}")
    A("s_lshl_b32 s56, s56, 16"); A("s_add_u32 s56, s56, s37"); A(f"s_add_u32 s56, s56, {O_OFF}")
    A("s_and_b32 s57, s49, 12"); A("s_mul_i32 s57, s57, 55296"); A("s_lshl_b32 s37, s31, 10"); A("s_add_u32 s57, s57, s37"); A(f"s_add_u32 s57, s57, s{GB}"); A(f"s_add_u32 s57, s57, {HH_OFF()}")
    for i in range(4):
        A(f"s_add_u32 s36, s{W}, {i}"); A("s_and_b32 s36, s36, 3"); A("s_lshl_b32 s37, s36, 14"); A(f"s_add_u32 s{40+i}, s56, s37")
        A("s_mul_i32 s37, s36, 55296"); A(f"s_add_u32 s{S_A5+i}, s57, s37")
        A("s_and_b32 s37, s36, 1"); A("s_lshl_b32 s37, s37, 8"); A("s_lshr_b32 s36, s36, 1"); A("s_lshl_b32 s36, s36, 3"); A("s_add_u32 s36, s36, s37"); A(f"s_add_u32 s{52+i}, s39, s36")
    A(f"v_lshrrev_b32 v2, 4, {v(LANE)}"); A(f"v_and_b32 v3, 15, {v(LANE)}"); A(f"v_mul_u32_u24 v252, 768, v2"); A(f"v_add_u32 v252, v252, {v(LV)}")
    A(f"v_lshlrev_b32 {v(L4V)}, 2, {v(LANE)}")
    A(f"s_lshl_b32 s{S_F2P}, s49, 7"); A(f"s_add_u32 s{S_F2P}, s{S_F2P}, {F2_OFF}")
    A(f"s_lshr_b32 s37, s{GI}, 2"); A("s_lshl_b32 s36, s49, 3"); A("s_add_u32 s36, s36, s37"); A("s_lshl_b32 s36, s36, 7"); A(f"s_add_u32 s{S_STW}, s36, {STAT_OFF}")
    A("s_lshr_b32 s36, s49, 1"); A("s_lshl_b32 s36, s36, 5"); A("s_lshl_b32 s37, s37, 1"); A("s_add_u32 s36, s36, s37"); A("s_and_b32 s37, s49, 1"); A("s_add_u32 s36, s36, s37")
    A("s_lshl_b32 s36, s36, 2"); A(f"s_add_u32 s{S_F3W}, s36, {F3_OFF}")
    A("s_lshr_b32 s36, s49, 2"); A("s_lshl_b32 s36, s36, 8"); A(f"s_add_u32 s{S_F4P}, s36, {F4_OFF}")
    A(f"s_and_b32 s36, s{GI}, 1"); A(f"s_lshl_b32 s37, s{GX}, 1"); A("s_add_u32 s36, s36, s37"); A("s_lshl_b32 s36, s36, 2"); A(f"s_add_u32 s36, s36, s{W}")
    A("s_and_b32 s56, s36, 7"); A(f"s_mul_i32 s{S_OH}, s56, 40960"); A(f"s_add_u32 s{S_OH}, s{S_OH}, s{GB}"); A(f"s_add_u32 s{S_OH}, s{S_OH}, {H_OFF()}")
    A(f"s_lshl_b32 s37, s36, 7"); A(f"s_add_u32 s{S_F3P}, s37, {F3_OFF}")
    A(f"s_lshr_b32 s39, s{GI}, 1"); A("s_lshl_b32 s39, s39, 2"); A("s_add_u32 s37, s37, s39"); A(f"s_add_u32 s{S_F4W}, s37, {F4_OFF}")
    A("s_lshl_b32 s37, s36, 11"); A(f"s_add_u32 s{S_STR}, s37, {STAT_OFF}")
    A(f"s_lshl_b32 s37, s{GX}, 10"); A(f"s_add_u32 s{S_F3A}, s37, {F3_OFF}")
    A(f"s_and_b32 s57, s{P4_ST}, 1")
    A(f"s_mul_i32 s{S_OHH}, s56, 110592"); A(f"s_add_u32 s{S_OHH}, s{S_OHH}, s{GB}"); A(f"s_add_u32 s{S_OHH}, s{S_OHH}, {HH_OFF()}")
    A(f"s_lshr_b32 s37, s{P4_ST}, 1"); A("s_lshl_b32 s37, s37, 10"); A(f"s_add_u32 s{S_OHH}, s{S_OHH}, s37")
    A("s_cmp_eq_u32 s57, 0"); A("s_cselect_b32 s37, 3072, 8"); A(f"s_cselect_b32 s39, {6*2048}, 0"); A(f"s_cselect_b32 s56, {6*128}, 0"); A(f"s_add_u32 s{S_OH1}, s{S_OHH}, s37")
    A("s_lshl_b32 s37, s57, 10"); A(f"s_add_u32 s{S_OHH}, s{S_OHH}, s37"); A("s_lshl_b32 s36, s57, 11")
    A(f"s_cmp_ge_u32 s{GI}, 28"); A(f"s_cselect_b32 s{S_OH1}, {OOB}, s{S_OH1}"); A(f"s_cmp_ge_u32 s{GI}, 30"); A(f"s_cselect_b32 s33, {OOB}, s{S_OHH}")
    for i in range(3):
        A(f"v_add_u32 {v(P4_LA+i)}, s36, {v(LV)}"); A(f"v_add_u32 {v(P4_LB+i)}, s39, {v(LV)}"); A("s_add_u32 s36, s36, 57344"); A("s_add_u32 s39, s39, 57344")
    A(f"v_add_u32 {v(P4_HV)}, 20480, {v(LV)}")
    A(f"v_lshlrev_b32 {v(P4_SV)}, 8, v2"); A(f"v_lshl_add_u32 {v(P4_SV)}, v3, 3, {v(P4_SV)}")
    A("s_lshl_b32 s36, s57, 7"); A(f"s_add_u32 s36, s36, {CSL}"); A(f"v_lshl_add_u32 {v(P4_CA)}, v2, 4, s36")
    A(f"s_add_u32 s56, s56, {CSL}"); A(f"v_lshl_add_u32 {v(P4_CB)}, v2, 4, s56")
    A(f"v_lshrrev_b32 v2, 3, {v(LANE)}"); A(f"v_and_b32 v3, 7, {v(LANE)}"); A("v_lshlrev_b32 v2, 7, v2"); A(f"v_lshl_add_u32 {v(P4_F3V)}, v3, 3, v2")
    srd(A, SA, 86, 2621440)

COLD = []
def mode_store(A, ins):
    alt, back = A.label("wt"), A.label("wb")
    COLD.append([f"{alt}:"] + [x + " sc1" for x in ins] + [f"s_branch {back}"])
    return [f"s_cbranch_vccz {alt}"] + ins + [f"{back}:"]
def set_mode(A): A(f"s_mov_b32 vcc_lo, s{MODE}"); A("s_mov_b32 vcc_hi, 0")
def red_write(ACC, i, u): return f"ds_write_b128 {v(SK_WR+i-1)}, {v(ACC+20*i+4*u,4)} offset:{1024*u}"
def red_read(ACC, sl): return [f"ds_read_b128 {v(ACC+20+20*sl+4*u,4)}, {v(SK_RD)} offset:{5120*sl+1024*u}" for u in range(5)]

def phase3(A, ST):
    ACC, RES, CSP, AF = 16, P3RES, P3CS, 256
    A("s_barrier")
    unpack(A, ACC, RES, 10)
    A(f"v_add_f32 {v(CSP)}, {v(CSP)}, {v(CSP+1)}"); A(f"v_add_f32 {v(CSP+2)}, {v(CSP+2)}, {v(CSP+3)}"); A(f"v_add_f32 {v(CSP)}, {v(CSP)}, {v(CSP+2)}")
    A(f"v_add_u32 v146, {CSL}, v146"); A(f"ds_write_b32 v146, {v(CSP)}")
    A("s_mov_b64 exec, 0xff")
    poll(A, [f"buffer_load_dword v2, {v(L4V)}, {S4(SWS)}, s{S_F2P} offen sc1"], [2])
    A("s_mov_b64 exec, -1")
    ST.mark()
    Q = VQ()
    order = (1, 2, 3, 0)
    al = lambda i: ([f"buffer_load_dwordx4 {r(AF+20*i+4*ks,4)}, {v(LV)}, {S4(SWS)}, s{40+i} offen offset:{1024*ks} sc1" for ks in range(4)] +
                    [f"buffer_load_dwordx2 {r(AF+20*i+16+2*j,2)}, v252, {S4(SWS)}, s{52+i} offen offset:{512*j} sc1" for j in range(2)])
    UP = CFG.get("p3up", 2)
    for i in order[:UP]: A.ext(Q.add(("a", i), al(i)))
    set_mode(A)
    T = TL(A, Q, [mf16(ACC+20*i+4*u, w3reg(5*ks+u), AF+20*i+4*ks, "0" if (ks == 0 and i) else None) for i in order for u in range(5) for ks in range(5)])
    for n, i in enumerate(order): T.pre[25*n].append(("wait", ("a", i)))
    T.pre[0].append(ST.mark)
    k = T.spread([(("a", i), x) for i in order[UP:] for x in al(i)], 0, CFG.get("p3as", 2))
    T.spread([("w5", x) for f in range(CFG["w5a"], CFG["w5b"]) for x in w5load(f)], k+1, 4)
    for n in range(3):
        for u in range(5): T.post[25*n+5*u+13].append((None, red_write(ACC, order[n], u)))
    T.pre[66] += ["s_waitcnt lgkmcnt(1)", "s_barrier"]
    T.spread([(None, x) for x in red_read(ACC, 0) + red_read(ACC, 1)], 66, 2)
    T.pre[88] += ["s_waitcnt lgkmcnt(0)", "s_barrier"]
    T.spread([(None, x) for x in red_read(ACC, 2)], 88, 1)
    T.vspread([f"v_add_f32 {v(ACC+20+i)}, {v(ACC+20+i)}, {v(ACC+40+i)}" for i in range(20)], 88, 100)
    T.emit()
    ST.mark()
    A("s_waitcnt lgkmcnt(0)")
    for i in range(0, 20, 2): A(f"v_pk_add_f32 {v(ACC+20+i,2)}, {v(ACC+20+i,2)}, {v(ACC+60+i,2)}")
    for i in range(0, 20, 2): A(f"v_pk_add_f32 {v(ACC+i,2)}, {v(ACC+i,2)}, {v(ACC+20+i,2)}")
    for i in range(10): A(f"v_cvt_pk_bf16_f32 {v(RES+i)}, {v(ACC+2*i)}, {v(ACC+2*i+1)}")
    A.ext(mode_store(A, io_frag("store", RES, "")))
    sm, sq = 112, 114
    A(f"v_pk_mul_f32 {v(sq,2)}, {v(ACC,2)}, {v(ACC,2)}"); A(f"v_pk_add_f32 {v(sm,2)}, {v(ACC,2)}, {v(ACC+2,2)}")
    for i in range(2, 20, 2):
        A(f"v_pk_fma_f32 {v(sq,2)}, {v(ACC+i,2)}, {v(ACC+i,2)}, {v(sq,2)}")
        if i > 2: A(f"v_pk_add_f32 {v(sm,2)}, {v(sm,2)}, {v(ACC+i,2)}")
    A(f"v_add_f32 {v(sm)}, {v(sm)}, {v(sm+1)}"); A(f"v_add_f32 {v(sm+1)}, {v(sq)}, {v(sq+1)}")
    quad_sum(A, [sm, sm+1], [sq, sq+1])
    A("s_mov_b64 exec, 0xffff"); A.ext(mode_store(A, [f"buffer_store_dwordx2 {v(sm,2)}, {v(P4_SV)}, {S4(SWS)}, s{S_STW} offen"])); A("s_mov_b64 exec, -1")

def phase4(A, ST):
    la, lb, hv, sv, ca, cb = P4_LA, P4_LB, P4_HV, P4_SV, P4_CA, P4_CB
    STT, HR, ACC, WB, CR = 232, 16, 96, 208, 224
    NW, HD = 3, 4
    WR = lambda n: (80 + 8*(n % 4)) if n % 4 < 2 else (WB + 8*(n % 4 - 2))
    def reads(n):
        s_, m = divmod(n, 14); slot = s_ % 5; j, mat = divmod(m, 2)
        base, off = (la, j*2048) if j < 6 else (lb, 0)
        return [f"ds_read_b128 {v(WR(n)+4*ks,4)}, {v(base+slot//2)} offset:{(slot%2)*28672+off+mat*1024+ks*14336}" for ks in range(2)]
    for n in range(NW): A.ext(reads(n))
    A("s_barrier")
    A("s_waitcnt vmcnt(0)")
    A.ext(mode_store(A, [f"buffer_store_dword {v(ONEV)}, off, {S4(SWS)}, s{S_F3W}"]))
    ST.mark()
    A("s_mov_b64 exec, 0xffff")
    poll(A, [f"buffer_load_dword v2, {v(L4V)}, {S4(SWS)}, s{S_F3P} offen sc1"], [2])
    A("s_mov_b64 exec, -1")
    ST.mark()
    Q = VQ()
    def hl(s_): return [f"buffer_load_dwordx4 {v(HR+16*(s_%HD)+8*n+4*ks,4)}, {v(hv if n else LV)}, {S4(SWS)}, s{S_OH} offen offset:{1024*ks} sc1" for n in range(2) for ks in range(2)] + [f"s_add_u32 s{S_OH}, s{S_OH}, 2048"]
    UP = CFG.get("p4up", 2)
    for s_ in range(UP): A.ext(Q.add(("h", s_), hl(s_)))
    f3l = [f"buffer_load_dwordx2 v[2:3], {v(P4_F3V)}, {S4(SWS)}, s{S_F3A} offen sc1"]
    stl = [f"buffer_load_dwordx2 {v(STT+4*n+2*c,2)}, {v(sv)}, {S4(SWS)}, s{S_STR} offen offset:{1024*n+128*c} sc1" for n in range(2) for c in range(2)]
    T = TL(A, Q, [mf16(ACC+8*m+4*nn, WR(14*s_+m)+4*ks, HR+16*(s_ % HD)+8*nn+4*ks, "0" if (s_ == 0 and ks == 0) else None)
                  for s_ in range(10) for m in range(14) for nn in range(2) for ks in range(2)])
    MS = 6
    lq = [0, 0, 1, 1, 2, 2]
    for n in range(140):
        s_, m = divmod(n, 14)
        need = [i for i, x in enumerate(lq) if x == n or x == ("c", n)]
        T.pre[4*n].append(f"s_waitcnt lgkmcnt({len(lq)-1-max(need)})")
        if m == 0: T.pre[4*n].append(("wait", ("h", s_)))
        if m == 11 and s_ < 9:
            if s_+1 >= 3: T.pre[4*n].append(("wait", ("w", s_+1)))
            T.pre[4*n].append("s_barrier")
        e2 = n + 2 - 14*MS
        if 0 <= e2 < 28 and e2 % 2 == 0:
            e = e2//2; mu = (2*e + 6 + (e >= 7)) % 14; j, mat = divmod(mu, 2)
            T.post[4*n].append((None, f"ds_read_b128 {v(CR+4*(e&1),4)}, {v(ca if j < 6 else cb)} offset:{(128*j if j < 6 else 0)+64*mat}")); lq.append(("c", n+2))
            for i in range(8): T.valu[4*(n+2)+i].append(f"v_fmac_f32 {v(ACC+8*mu+i)}, {v(CR+4*(e&1)+i%4)}, {v(STT+4*(i//4))}")
        if n+NW < 140:
            for j, x in enumerate(reads(n+NW)): T.post[4*n+j+1].append((None, x))
            lq += [n+NW, n+NW]
    T.pre[0].append(ST.mark)
    w5 = list(range(CFG["w5b"], 64)); LAST = CFG.get("p4last", 9.0)
    base = {s_: [] for s_ in range(10)}
    for s_ in range(UP, 10): base[max(0, s_-HD+1)] += [(("h", s_), x) for x in hl(s_)]
    for s_ in range(3, 10): base[s_-3] += [(("w", s_), x) for x in p4_dma(s_)]
    base[1] += [("st", x) for x in stl]; base[4] += [("f3", x) for x in f3l]
    cnt = lambda L: sum(1 for t, x in L if not is_salu(x))
    for s_ in range(10):
        span = min(1.0, LAST - s_)
        if span > 0:
            later = sum(cnt(base[j]) for j in range(s_, 10)) + len(w5)
            for _ in range(min(len(w5), max(0, math.ceil(later*span/(LAST-s_)) - cnt(base[s_])))): base[s_] += [("w5", x) for x in w5load(w5.pop(0))]
        if base[s_]: T.spread(base[s_], 56*s_+3, (56*span-4)/cnt(base[s_]))
    assert not w5
    B = Asm()
    for n in range(2):
        for i in range(2): B(f"v_add_f32 {v(STT+4*n+i)}, {v(STT+4*n+i)}, {v(STT+4*n+2+i)}")
    quad_sum(B, [STT, STT+1, STT+4, STT+5], [STT+2, STT+3, STT+6, STT+7])
    for n in range(2):
        nm, r2 = STT+4*n, STT+4*n+2
        B(f"v_mul_f32 {v(nm)}, {hex(f2u(-1/640))}, {v(nm)}"); B(f"v_mul_f32 {v(r2)}, {hex(f2u(1/640))}, {v(nm+1)}")
        B(f"v_fma_f32 {v(r2)}, -{v(nm)}, {v(nm)}, {v(r2)}"); B(f"v_max_f32 {v(r2)}, 0, {v(r2)}"); B(f"v_add_f32 {v(r2)}, {hex(f2u(1e-5))}, {v(r2)}"); B(f"v_rcp_f32 {v(r2)}, {v(r2)}")
    T.pre[56*4].append(("wait", "st"))
    for j, x in enumerate(x.strip() for x in B.L if "s_nop" not in x): T.valu[56*4+2*j].append(x)
    T.pre[56*8] += [("wait", "f3"), "v_min_u32 v2, v2, v3", "v_cmp_eq_u32 vcc, 0, v2", "s_nop 1", f"s_cbranch_vccnz {K}_f3spin", f"{K}_f3ok:", lambda: set_mode(A)]
    T.valu[56*8+2].append(f"v_add_u32 {v(hv)}, 55296, {v(LV)}")
    COLD.append(lambda: (A(f"{K}_f3spin:"), poll(A, f3l, [2, 3], sleep=4), A(f"s_branch {K}_f3ok")))
    OB = 48
    def strip(j, n, pk):
        r2 = STT+4*n+2; o = OB + 8*((j >> 1) % 2) + 4*n + 2*(j & 1); g, u = ACC+16*j+4*n, ACC+16*j+8+4*n
        if pk: L = [f"v_pk_mul_f32 {v(g+i,2)}, {v(g+i,2)}, {v(r2,2)} op_sel_hi:[1,0]" for i in (0, 2)] + [f"v_pk_mul_f32 {v(g+i,2)}, {v(g+i,2)}, {v(u+i,2)}" for i in (0, 2)]
        else: L = [f"v_mul_f32 {v(g+i)}, {v(g+i)}, {v(r2)}" for i in range(4)] + [f"v_mul_f32 {v(g+i)}, {v(g+i)}, {v(u+i)}" for i in range(4)]
        return L + [f"v_cvt_pk_bf16_f32 {v(o+i)}, {v(g+2*i)}, {v(g+2*i+1)}" for i in range(2)]
    def hst(a_): return [f"buffer_store_dwordx{4 if a_ < 3 else 2} {v(OB+8*(a_%2)+4*n, 4 if a_ < 3 else 2)}, {v(hv if n else LV)}, {S4(SWS)}, s{33 if a_ == 0 else S_OHH if a_ < 3 else S_OH1} offen" + (f" offset:{1024*a_}" if a_ < 3 else "") for n in range(2)]
    NI = CFG.get("p4ni", 4); k = 0
    for j in range(NI):
        k0 = max(k, 56*9 + 8*(j+1) + 5)
        k = T.vspread(strip(j, 0, False) + strip(j, 1, False), k0, min(k0+10, 560), cap=CFG.get("p4cap", 2))
        if j & 1 and k < 560:
            st_ = hst(j >> 1); T.post[k].append((None, (lambda st_=st_: (A.ext(mode_store(A, st_)), Q.add("hh", st_)))))
    stored = [j >> 1 for j in range(NI) if j & 1]
    if NI and NI % 2 == 0 and k >= 560: stored.pop()
    T.emit()
    ST.mark()
    for a_ in range(4):
        for j in ([2*a_, 2*a_+1] if a_ < 3 else [6]):
            if j >= NI: A.ext(strip(j, 0, True) + strip(j, 1, True))
        if a_ not in stored: A.ext(mode_store(A, hst(a_))); Q.add("hh", hst(a_))
    for f in range(64, 70): A.ext(Q.add("w5", w5load(f)))
    return Q

def phase5(A, ST, Q):
    ACC, AF, RES = 16, 96, 232
    A.ext(Q.add("res", io_frag("load", 4, "sc1")))
    A(f"v_add_u32 v14, s92, {v(LV)}")
    A(f"v_lshrrev_b32 v15, 4, {v(LANE)}"); A(f"v_mul_u32_u24 v15, 64, v15"); A(f"v_add_u32 v15, v15, {v(L4V)}")
    A("s_barrier")
    A.ext(Q.wait("hh"))
    A.ext(mode_store(A, [f"buffer_store_dword v240, off, {S4(SWS)}, s{S_F4W}"]))
    ST.mark()
    A("s_waitcnt vmcnt(1)"); unpack(A, ACC, 4, 10)
    A("s_mov_b32 exec_hi, 0")
    poll(A, [f"buffer_load_dword v2, v15, {S4(SWS)}, s{S_F4P} offen sc1"], [2])
    A("s_mov_b64 exec, -1")
    ST.mark()
    Q = VQ()
    order = (1, 2, 3, 0)
    def al(n, ks):
        i = order[n]
        L = [f"buffer_load_dwordx4 {v(AF+56*(n&1)+4*ks,4)}, {v(14 if ks == 13 else LV)}, {S4(SWS)}, s{S_A5+i} offen offset:{1024*(ks&3)} sc1"]
        if ks & 3 == 3: L.append(f"s_add_u32 s{S_A5+i}, s{S_A5+i}, 4096")
        return L
    UP = CFG.get("p5up", 8); STEP = CFG.get("p5st", 4)
    for ks in range(UP): A.ext(Q.add((0, ks), al(0, ks)))
    T = TL(A, Q, [mf16(ACC+20*i+4*u, w5reg(5*ks+u), AF+56*(n&1)+4*ks, "0" if (ks == 0 and i) else None)
                  for n, i in enumerate(order) for kp in range(7) for u in range(5) for ks in (2*kp, 2*kp+1)])
    k = 0
    for g in range(UP, 56):
        n, ks = divmod(g, 14)
        if n >= 2: k = max(k, 70*(n-2) + 10*(ks//2+1) - 1)
        assert k < 70*n + 10*(ks//2)
        k = T.spread([((n, ks), x) for x in al(n, ks)], k, STEP)
    for n in range(4):
        for kp in range(7): T.pre[70*n+10*kp].append(("wait", (n, 2*kp+1)))
    T.pre[0].append(ST.mark)
    for n in range(3):
        for u in range(5): T.post[70*(n+1)+2+5*u].append((None, red_write(ACC, order[n], u)))
    T.pre[237] += ["s_waitcnt lgkmcnt(0)", "s_barrier"]
    T.spread([(None, x) for sl in range(3) for x in red_read(ACC, sl)], 237, 1)
    T.pre[254].append("s_waitcnt lgkmcnt(5)"); T.vspread([f"v_add_f32 {v(ACC+20+i)}, {v(ACC+20+i)}, {v(ACC+40+i)}" for i in range(20)], 254, 266)
    T.pre[266].append("s_waitcnt lgkmcnt(0)"); T.vspread([f"v_add_f32 {v(ACC+20+i)}, {v(ACC+20+i)}, {v(ACC+60+i)}" for i in range(20)], 266, 280)
    T.emit()
    ST.mark()
    A("s_nop 1")
    for i in range(0, 20, 2): A(f"v_pk_add_f32 {v(ACC+i,2)}, {v(ACC+i,2)}, {v(ACC+20+i,2)}")
    for i in range(10): A(f"v_cvt_pk_bf16_f32 {v(RES+i)}, {v(ACC+2*i)}, {v(ACC+2*i+1)}")
    A.ext(io_rm("store", RES, SA))

def build(**cfg):
    CFG.update(cfg)
    A = Asm(); ST = Stamps(A)
    kstart(A, K)
    if CFG.get("empty"): A("s_endpgm")
    ST.mark()
    if CFG.get("probe"):
        off, base = {"bx": (24, 0), "ws": (72, 40 << 20), "out": (56, 0), "wd": (48, 0)}[CFG["probe"]]
        A(f"s_load_dwordx2 s[4:5], s[0:1], {off}"); A("s_waitcnt lgkmcnt(0)"); A(f"s_mov_b32 s6, {base + (2<<20)}"); A("s_mov_b32 s7, 0x20000")
        A("s_and_b32 s8, s2, 255"); A("s_lshl_b32 s8, s8, 9"); A(f"s_add_u32 s8, s8, {base}"); A("v_lshrrev_b32 v2, 6, v0"); A("v_lshlrev_b32 v2, 7, v2")
        for i in range(16):
            A("buffer_load_dword v3, v2, s[4:7], s8 offen"); A("s_waitcnt vmcnt(0)"); A("s_add_u32 s8, s8, 131072")
    fin1, cold1 = phase1(A, ST)
    cold = phase2(A, ST, fin1)
    COLD.clear(); phase3(A, ST); phase5(A, ST, phase4(A, ST))
    ST.flush()
    A("s_endpgm")
    cold1(); cold()
    for c in COLD: c() if callable(c) else A.ext(c)
    A(f"{K}_end:")
    A("s_endpgm")
    kdesc(A, K, 512, acc=256)
    head = open(f"cdna_kernels/{NAME}.s.ref").read().split("; Override launch")[0]
    head += "; @launch grid=(256,1,1) block=(256,1,1) lds=163840\n"
    return head + '.amdgcn_target "amdgcn-amd-amdhsa--gfx950"\n' + A.text()

if __name__ == "__main__":
    out = sys.argv[1] if len(sys.argv) > 1 else f"cdna_kernels/{NAME}.s"
    cfg = {}
    for x in sys.argv[2:]:
        k, val = x.split("=")
        cfg[k] = int(val) if val.lstrip("-").isdigit() else float(val) if val.replace(".", "", 1).isdigit() else val
    txt = build(**cfg)
    names = STAMP_NAMES[:3] + [f"p1 kstep {g}" for g in P1ST()] + STAMP_NAMES[3:8] + [f"att body {b}" for b in ASTAMPS()] + STAMP_NAMES[8:]
    if CFG["stamps"]: txt = txt.replace(".amdgcn_target", "; STAMPS " + "|".join(names) + "\n.amdgcn_target", 1)
    open(out, "w").write(txt)
```

```python
import sys, math, struct, re as _re
from dsl import *

NAME = "sequential_preLN__softmax_full_mha__glu_gated_bilinear__prompt"
K = NAME + "_kernel"
GS = 1310720
K_OFF, V_OFF, O_OFF = 327680, 655360, 983040
OX_OFF = O_OFF + 262144
def H_OFF(): return 8*GS if CFG.get("sep") else 0
def HH_OFF(): return H_OFF() + 327680
WGU_OFF = 20971520
WD_OFF = WGU_OFF + 4423680
WO_OFF = WD_OFF + 2211840
CS_OFF = WO_OFF + 819200
STAT_OFF = CS_OFF + 65536
RS_OFF = STAT_OFF + 131072
C1_OFF = RS_OFF + 16384
F2_OFF = C1_OFF + 8192
F3_OFF = F2_OFF + 128*128
F4_OFF = F3_OFF + 64*128
FR_OFF = F4_OFF + 64*128
F1_OFF = FR_OFF + 256*128
ONES_OFF = F1_OFF + 128*128
STAMP_OFF = 29360128
WS_SIZE = 33554432
OOB = 0x40000000
SPIN = 200000
assert ONES_OFF + 128*2560 < STAMP_OFF and STAT_OFF % 128 == 0
def f2u(x): return struct.unpack("<I", struct.pack("<f", x))[0]
QSCALE = f2u(20**-0.5 * math.log2(math.e))
assert all((u*(65536//54+1)) >> 16 == u//54 for u in range(162)) and all((u*6554) >> 16 == u//10 for u in range(100))
assert all((f*3277) >> 16 == f//20 for f in range(640))
assert all((e*3277) >> 16 == e//20 for e in range(320))
CFG = dict(stamps=False, w5z=16, w5a=20, w5b=36, p4last=9.6, touch="46:s,52:h", p4t="")
STAMP_NAMES = ["start", "p1 first dma issued", "p1 stage0 landed", "p1 loop end", "p1 stores issued", "p1 flag set", "F1 seen", "att loop start", "att loop end",
               "O published", "F2 seen", "p3 first act", "p3 mfma end", "H published", "F3 seen", "p4 first h", "p4 loop end", "HH published", "F4 seen", "p5 first act", "p5 mfma end", "end"]

W, SWS, SX, SA, SR = 3, 4, 8, 12, 16
GX, GI, MODE, MYF, GB = 24, 25, 26, 27, 23
LANE, LV = 1, 253
PCV = 247
CODE_TOUCH = f"global_load_dword v248, v{PCV}, s[20:21] sc1"
def S4(b): return f"s[{b}:{b+3}]"

def ASTAMPS(): return [int(x) for x in str(CFG.get("astamp", "")).split(",") if x]
def P1ST(): return [int(x) for x in str(CFG.get("p1st", "")).split(",") if x]
class Stamps:
    def __init__(self, A): self.A, self.n = A, 0
    def mark(self, at=None):
        A = self.A; i = self.n if at is None else at
        if CFG.get("pad"):
            pi, pt = map(int, CFG["pad"].split(":"))
            if i == 0: A("s_memrealtime s[96:97]")
            if i == pi:
                lab = A.label("pad"); A("s_waitcnt lgkmcnt(0)"); A(f"s_add_u32 s95, s96, {pt*100}"); A(f"{lab}:"); A("s_memrealtime s[98:99]"); A("s_waitcnt lgkmcnt(0)")
                A("s_sub_u32 s98, s98, s95"); A("s_cmp_lt_i32 s98, 0"); A(f"s_cbranch_scc1 {lab}")
            if at is None: self.n += 1
            return
        if not CFG["stamps"]: return
        if i:
            A("s_waitcnt lgkmcnt(0)"); A(f"v_writelane_b32 v254, s96, {i-1}"); A(f"v_writelane_b32 v255, s98, {i-1}")
        A("s_memrealtime s[96:97]"); A("s_memtime s[98:99]")
        if at is None: self.n += 1
    def flush(self):
        if CFG.get("pad"): self.A("s_waitcnt vmcnt(0)"); self.mark(); return
        if not CFG["stamps"]: return
        A = self.A
        A("s_waitcnt vmcnt(0)"); self.mark(); self.mark(); n = self.n - 1
        A(f"v_writelane_b32 v254, s{MODE}, 30"); A(f"v_writelane_b32 v254, s{MYF}, 31")
        A(f"s_lshl_b32 s95, s2, 2"); A(f"s_add_u32 s95, s95, s{W}"); A("s_lshl_b32 s95, s95, 8"); A(f"s_add_u32 s95, s95, {STAMP_OFF}")
        A("s_mov_b64 exec, -1"); A(f"v_lshlrev_b32 v0, 2, {v(LANE)}"); A(f"s_mov_b32 exec_lo, {(1 << n) - 1 + (3 << 30)}"); A("s_mov_b32 exec_hi, 0")
        A(f"buffer_store_dword v254, v0, {S4(SWS)}, s95 offen"); A(f"buffer_store_dword v255, v0, {S4(SWS)}, s95 offen offset:128")

def swap01(A, dst, src, t):
    A(f"v_and_b32 {v(t)}, 1, {v(src)}"); A(f"v_lshlrev_b32 {v(t)}, 1, {v(t)}")
    A(f"v_bfe_u32 {v(dst)}, {v(src)}, 1, 1"); A(f"v_or_b32 {v(t)}, {v(t)}, {v(dst)}")
    A(f"v_and_b32 {v(dst)}, 4, {v(src)}"); A(f"v_or_b32 {v(dst)}, {v(dst)}, {v(t)}")

def make_sel(A, sel, t):
    A(f"v_lshrrev_b32 {v(t)}, 2, {v(LANE)}"); A(f"v_lshrrev_b32 {v(sel)}, 4, {v(LANE)}")
    A(f"v_xor_b32 {v(t)}, {v(t)}, {v(sel)}"); A(f"v_and_b32 {v(t)}, 1, {v(t)}")
    A(f"v_add_u32 {v(t)}, -1, {v(t)}")
    A(f"v_and_b32 {v(sel)}, 0x3f803f80, {v(t)}")
    for i in range(1, 4): A(f"v_mov_b32 {v(sel+i)}, {v(sel)}")

def poll(A, loads, regs, sleep=0, cnt=58, post=()):
    top, out = A.label("poll"), A.label("pollout")
    A(f"s_mov_b32 s{cnt}, {SPIN}")
    A(f"{top}:")
    A.ext(loads); A("s_waitcnt vmcnt(0)"); A.ext(post)
    for x in regs[1:]: A(f"v_min_u32 {v(regs[0])}, {v(regs[0])}, {v(x)}")
    A(f"v_cmp_eq_u32 vcc, 0, {v(regs[0])}")
    A(f"s_sub_u32 s{cnt}, s{cnt}, 1"); A(f"s_cbranch_scc1 {out}")
    if sleep:
        A(f"s_cbranch_vccz {out}"); A(f"s_sleep {sleep}"); A(f"s_branch {top}")
    else: A(f"s_cbranch_vccnz {top}")
    A(f"{out}:")

def publish(A, stores, mid, flag, local=True):
    if not local:
        A.ext(stores("sc1")); A.ext(mid); A.ext(flag("sc1")); return
    slow, done = A.label("st_slow"), A.label("st_done")
    A(f"s_cmp_eq_u32 s{MODE}, 0"); A(f"s_cbranch_scc1 {slow}")
    A.ext(stores("")); A.ext(mid); A.ext(flag("")); A(f"s_branch {done}")
    A(f"{slow}:")
    A.ext(stores("sc1")); A.ext(mid); A.ext(flag("sc1"))
    A(f"{done}:")

RSO, RA, RBA, RDS, RDH, RDAH, RCS, RLDS = 64, 65, 66, 67, 68, 69, 70, 71
RLV, RLT, RLC, RLO, RLF = 201, 202, 204, 212, 216
STG = 86016
def relayout_setup(A):
    t0, t1 = 2, 3
    two, none, done = A.label("rl2"), A.label("rl0"), A.label("rl_set")
    A(f"s_mul_i32 s{RLDS}, s{W}, 10240"); A(f"s_add_u32 s{RLDS}, s{RLDS}, {STG}")
    A(f"v_lshrrev_b32 {v(t0)}, 4, {v(LANE)}"); A(f"v_bfe_u32 {v(t1)}, {v(LANE)}, 2, 2"); A(f"v_lshl_add_u32 {v(t0)}, {v(t0)}, 3, {v(t1)}")
    A(f"v_and_b32 {v(t1)}, 3, {v(LANE)}"); A(f"v_lshlrev_b32 {v(t1)}, 4, {v(t1)}")
    A(f"v_lshl_add_u32 {v(t0)}, {v(t0)}, 6, {v(t1)}"); A(f"v_add_u32 {v(RLT)}, s{RLDS}, {v(t0)}")
    A(f"v_and_b32 {v(RLT+1)}, 15, {v(LANE)}"); A(f"v_lshlrev_b32 {v(RLT+1)}, 2, {v(RLT+1)}")
    for i in range(4): A(f"v_mov_b32 {v(RLO+i)}, 0x3f803f80")
    A(f"v_lshrrev_b32 {v(t0)}, 2, {v(LANE)}")
    A(f"s_mov_b32 s{RCS}, {OOB}"); A(f"s_mov_b32 s{SR+3}, 0x20000")
    A("s_cmp_ge_u32 s2, 108"); A(f"s_cbranch_scc1 {two}")
    A(f"s_bitcmp1_b32 s{W}, 0"); A(f"s_cselect_b64 s[{SR}:{SR+1}], s[82:83], s[80:81]"); A(f"s_mov_b32 s{SR+2}, 2211840")
    A(f"s_mul_i32 s37, s2, {(65536+26)//27}"); A("s_lshr_b32 s37, s37, 16")
    A("s_mul_i32 s38, s37, 27"); A("s_sub_u32 s38, s2, s38"); A("s_lshl_b32 s38, s38, 1"); A(f"s_lshr_b32 s39, s{W}, 1"); A("s_add_u32 s38, s38, s39")
    A(f"s_mul_i32 s{RSO}, s37, {160*3456}"); A("s_lshl_b32 s39, s38, 6"); A(f"s_add_u32 s{RSO}, s{RSO}, s39")
    A(f"s_mov_b32 s{RA}, {16*3456}"); A(f"s_mov_b32 s{RBA}, {16*3456}"); A(f"s_mov_b32 s{RDH}, 2048"); A(f"s_mov_b32 s{RDAH}, {221184-2048}")
    A(f"s_and_b32 s39, s{W}, 1"); A("s_lshl_b32 s38, s38, 2"); A("s_add_u32 s38, s38, s39")
    A(f"s_mul_i32 s{RDS}, s37, {5*221184}"); A("s_lshl_b32 s39, s38, 10"); A(f"s_add_u32 s{RDS}, s{RDS}, s39"); A(f"s_add_u32 s{RDS}, s{RDS}, {WGU_OFF}")
    A(f"s_mul_i32 s{RCS}, s37, {108*128}"); A("s_lshl_b32 s39, s38, 6"); A(f"s_add_u32 s{RCS}, s{RCS}, s39"); A(f"s_add_u32 s{RCS}, s{RCS}, {CS_OFF}")
    A(f"v_mul_u32_u24 {v(t0)}, 3456, {v(t0)}")
    A(f"s_branch {done}")
    A(f"{two}:")
    A("s_sub_u32 s37, s2, 108"); A(f"s_mov_b32 s{RDH}, 1024"); A(f"s_mov_b32 s{RDAH}, 1024")
    A(f"s_mul_i32 s{RDS}, s37, 40960"); A(f"s_mul_i32 s39, s{W}, 10240"); A(f"s_add_u32 s{RDS}, s{RDS}, s39"); A(f"s_add_u32 s{RDS}, s{RDS}, {WD_OFF}")
    A(f"s_mov_b64 s[{SR}:{SR+1}], s[84:85]"); A(f"s_mov_b32 s{SR+2}, 2211840"); A(f"s_lshl_b32 s{RSO}, s37, 5"); A(f"s_mov_b32 s{RA}, 16")
    A("s_cmp_lt_u32 s37, 54"); A(f"s_cbranch_scc1 {none}")
    A(f"s_mov_b64 s[{SR}:{SR+1}], s[88:89]"); A("s_cmp_lt_u32 s37, 74"); A(f"s_cselect_b32 s{RDS}, s{RDS}, {OOB}"); A(f"s_cselect_b32 s{SR+2}, 819200, 0")
    A("s_sub_u32 s37, s37, 54"); A(f"s_mul_i32 s{RSO}, s37, 40"); A("s_mul_i32 s39, s37, 160"); A(f"s_sub_u32 s39, s39, {16*160-16}")
    A("s_cmp_ge_u32 s37, 16"); A(f"s_cselect_b32 s{RSO}, s39, s{RSO}"); A(f"s_cselect_b32 s{RA}, 80, 20"); A("s_cselect_b32 s38, 16, 0")
    A(f"v_lshrrev_b32 v4, 4, {v(LANE)}"); A(f"v_mad_u32_u24 {v(t0)}, v4, s38, {v(t0)}")
    A(f"{none}:")
    A(f"s_mul_i32 s{RSO}, s{RSO}, 1280"); A(f"s_mul_i32 s39, s{W}, 320"); A(f"s_add_u32 s{RSO}, s{RSO}, s39"); A(f"s_mul_i32 s{RA}, s{RA}, 1280"); A(f"s_sub_u32 s{RBA}, 64, s{RA}")
    A(f"v_mul_u32_u24 {v(t0)}, 1280, {v(t0)}")
    A(f"{done}:")
    A(f"v_add_u32 {v(RLV)}, {v(t0)}, {v(t1)}")
def rl_dma(i):
    return [f"s_add_u32 m0, s{RLDS}, {i*1024}", f"s_add_u32 s{RSO}, s{RSO}, {'0' if i == 0 else 's%d' % (RA if i & 1 else RBA)}",
            f"buffer_load_dwordx4 {v(RLV)}, {S4(SR)}, s{RSO} offen lds"]
def rl_read(a_, hf): return [f"ds_read_b64_tr_b16 {v(RLF+8*(a_&1)+4*hf+2*q,2)}, {v(RLT)} offset:{2048*a_+256*q+8*hf}" for q in range(2)]
def rl_sum(a_, hf): return mf16(RLC+4*hf, RLO, RLF+8*(a_&1)+4*hf, "0" if a_ == 0 else None)
def rl_store(a_, hf): return [f"buffer_store_dwordx4 {v(RLF+8*(a_&1)+4*hf,4)}, {v(LV)}, {S4(SWS)}, s{RDS} offen sc1", f"s_add_u32 s{RDS}, s{RDS}, s{RDAH if hf else RDH}"]
def rl_cs(hf): return [f"buffer_store_dword {v(RLC+4*hf)}, {v(RLT+1)}, {S4(SWS)}, s{RCS} offen offset:{128*hf} sc1"]


TV = 249
SD = 52
def phase1(A, ST):
    rt, ct, wm, wn = 28, 29, 30, 31
    sox, sow, m0x, m0w, sst, srs = 32, 33, 34, 35, 46, 59
    t0, t1, t2, t3, nn, qq = 2, 3, 4, 5, 6, 7
    dmx, dmw, xa, wa, sa, rv, cv = 12, 16, 22, 24, 26, 30, 31
    CS, ACC, RS, OB = 32, 56, 148, 180
    FR = 256
    SL = 36864
    A("s_cmp_ge_u32 s2, 256"); A(f"s_cbranch_scc1 {K}_end")
    A("s_load_dwordx4 s[36:39], s[0:1], 0"); A("s_load_dwordx4 s[52:55], s[0:1], 64"); A("s_load_dwordx8 s[80:87], s[0:1], 32"); A("s_load_dwordx2 s[88:89], s[0:1], 16")
    A(f"v_lshrrev_b32 {v(t0)}, 6, v0"); A(f"v_and_b32 {v(LANE)}, 63, v0")
    A(f"v_readfirstlane_b32 s{W}, {v(t0)}")
    A(f"s_and_b32 s{GX}, s2, 7"); A(f"s_lshr_b32 s{GI}, s2, 3")
    A("s_getpc_b64 s[20:21]"); A(f"{K}_pc:")
    A(f"s_lshl_b32 s58, s{GI}, 2"); A(f"s_add_u32 s58, s58, s{W}"); A("s_lshl_b32 s58, s58, 7")
    A(f"v_and_b32 {v(PCV)}, 7, {v(LANE)}"); A(f"v_lshlrev_b32 {v(PCV)}, 14, {v(PCV)}"); A(f"v_add_u32 {v(PCV)}, s58, {v(PCV)}")
    A(f"v_min_u32 {v(PCV)}, {K}_end-{K}_pc, {v(PCV)}")
    A(CODE_TOUCH)
    A(f"v_lshrrev_b32 {v(qq)}, 4, {v(LANE)}"); A(f"v_and_b32 {v(nn)}, 15, {v(LANE)}")
    A("s_cmp_ge_u32 s2, 192"); A(f"s_cbranch_scc1 {K}_help")
    A(f"s_lshr_b32 s56, s{GX}, 2"); A(f"s_mul_i32 s{ct}, s56, 6"); A(f"s_lshr_b32 s57, s{GI}, 2"); A(f"s_add_u32 s{ct}, s{ct}, s57")
    A(f"s_and_b32 s57, s{GI}, 3"); A(f"s_and_b32 s56, s{GX}, 3"); A("s_lshl_b32 s56, s56, 2"); A(f"s_add_u32 s{rt}, s56, s57")
    A(f"v_and_b32 {v(t1)}, 7, {v(LANE)}"); A(f"v_xor_b32 {v(t1)}, {v(t1)}, {v(qq)}"); A(f"v_lshlrev_b32 {v(t1)}, 4, {v(t1)}")
    A(f"v_lshrrev_b32 {v(t2)}, 3, {v(LANE)}"); A(f"v_mul_u32_u24 {v(t2)}, 1280, {v(t2)}")
    A(f"v_add_u32 {v(dmx)}, {v(t1)}, {v(t2)}")
    A(f"v_xor_b32 {v(t1)}, 64, {v(t1)}"); A(f"v_add_u32 {v(t1)}, {v(t1)}, {v(t2)}"); A(f"v_add_u32 {v(dmx+1)}, 9216, {v(t1)}")
    A(f"v_add_u32 {v(dmx+2)}, {2*9216}, {v(dmx)}"); A(f"v_add_u32 {v(dmx+3)}, {2*9216}, {v(dmx+1)}")
    for i in range(5):
        A(f"v_add_u32 {v(t0)}, {64*i}, {v(LANE)}"); A(f"v_mul_u32_u24 {v(t1)}, 3277, {v(t0)}"); A(f"v_lshrrev_b32 {v(t1)}, 16, {v(t1)}")
        A(f"v_mul_u32_u24 {v(t2)}, 20, {v(t1)}"); A(f"v_sub_u32 {v(t0)}, {v(t0)}, {v(t2)}")
        if i == 2: A(f"v_lshrrev_b32 {v(t2)}, 2, {v(t1)}"); A(f"v_and_b32 {v(t2)}, 2, {v(t2)}"); A(f"v_xor_b32 {v(t0)}, {v(t0)}, {v(t2)}")
        elif i > 2: A(f"v_xor_b32 {v(t0)}, 2, {v(t0)}")
        A(f"v_mul_u32_u24 {v(t1)}, 3840, {v(t1)}"); A(f"v_lshl_add_u32 {v(dmw+i)}, {v(t0)}, 4, {v(t1)}")
        if i & 3: A(f"v_subrev_u32 {v(dmw+i)}, {1024*i}, {v(dmw+i)}")
    A(f"s_lshl_b32 s56, s{rt}, 2"); A(f"s_add_u32 s56, s56, s{W}"); A(f"s_mul_i32 s{sox}, s56, {32*1280}")
    A(f"s_mul_i32 s{sow}, s{W}, {16*3840}"); A(f"s_mul_i32 s57, s{ct}, 320"); A(f"s_add_u32 s{sow}, s{sow}, s57")
    A(f"s_lshl_b32 s{m0x}, s{W}, 12"); A(f"s_mul_i32 s{m0w}, s{W}, 5120")
    A("s_waitcnt lgkmcnt(0)")
    srd(A, SX, 36, 2621440); srd(A, SA, 38, 2457600)
    def dma(stage):
        o = (stage % 4)*SL
        dx = lambda b: f"buffer_load_dwordx4 {v(dmx+b)}, {S4(SX)}, s{sox} offen offset:{b*1024} lds"
        dw = lambda b: f"buffer_load_dwordx4 {v(dmw+b)}, {S4(SA)}, s{sow} offen offset:{(b&3)*1024} lds"
        return ([f"s_add_u32 m0, s{m0x}, {o}", f"s_add_u32 s{sow}, s{sow}, {64*3840 if stage else 0}"] + [dx(b) for b in range(4)] +
                [f"s_add_u32 m0, s{m0w}, {o+16384}", f"s_add_u32 s{sox}, s{sox}, 128"] + [dw(b) for b in range(4)] + [f"s_add_u32 m0, s{m0w}, {o+20480}", "s_nop 0", dw(4)])
    A.ext(dma(0))
    def common():
        srd(A, SWS, 54, WS_SIZE)
        A(f"s_mov_b32 s{SD+2}, 256"); A(f"s_mov_b32 s{SD+3}, 0x20000")
        A(f"v_lshlrev_b32 {v(TV)}, 7, {v(LANE)}"); A(f"v_lshlrev_b32 {v(LV)}, 4, {v(LANE)}"); A(f"v_lshlrev_b32 {v(L4V)}, 2, {v(LANE)}")
        A(f"s_mul_i32 s{GB}, s{GX}, {GS}"); A(f"s_cmp_eq_u32 s{W}, 0"); A(f"s_cselect_b32 s22, 0, {OOB}")
        A(f"s_getreg_b32 s{MYF}, hwreg(HW_REG_XCC_ID, 0, 4)"); A(f"s_add_u32 s{MYF}, s{MYF}, 1")
    common()
    ST.mark()
    A(f"s_and_b32 s{wm}, s{W}, 1"); A(f"s_lshr_b32 s{wn}, s{W}, 1")
    A(f"v_lshrrev_b32 {v(t0)}, 1, {v(nn)}"); A(f"v_xor_b32 {v(t0)}, {v(t0)}, {v(qq)}"); A(f"v_lshlrev_b32 {v(t0)}, 4, {v(t0)}")
    A(f"v_lshl_add_u32 {v(t0)}, {v(nn)}, 7, {v(t0)}"); A(f"s_lshl_b32 s56, s{wm}, 13"); A(f"v_add_u32 {v(xa)}, s56, {v(t0)}"); A(f"v_xor_b32 {v(xa+1)}, 64, {v(xa)}")
    A(f"v_lshrrev_b32 {v(t0)}, 2, {v(nn)}"); A(f"v_lshl_add_u32 {v(t1)}, {v(qq)}, 3, {v(t0)}"); A(f"v_mul_u32_u24 {v(t1)}, 320, {v(t1)}")
    A(f"v_and_b32 {v(t0)}, 3, {v(nn)}"); A(f"v_lshl_add_u32 {v(t1)}, {v(t0)}, 3, {v(t1)}"); A(f"s_mul_i32 s56, s{wn}, 160"); A("s_add_u32 s56, s56, 16384"); A(f"v_add_u32 {v(t1)}, s56, {v(t1)}")
    A(f"v_and_b32 {v(t0)}, 1, {v(qq)}"); A(f"s_lshl_b32 s56, s{wn}, 6"); A("s_sub_u32 s56, 32, s56"); A(f"v_mul_i32_i24 {v(t0)}, s56, {v(t0)}")
    A(f"v_add_u32 {v(wa)}, {v(t1)}, {v(t0)}"); A(f"v_sub_u32 {v(wa+1)}, {v(t1)}, {v(t0)}")
    A(f"s_lshl_b32 s41, s{rt}, 1"); A(f"s_add_u32 s41, s41, s{wm}")
    A(f"s_lshl_b32 s{srs}, s41, 8"); A(f"s_add_u32 s{srs}, s{srs}, {RS_OFF}"); A(f"s_add_u32 s43, s{srs}, 8192")
    A(f"s_lshl_b32 s40, s{ct}, 1"); A(f"s_add_u32 s40, s40, s{wn}")
    A(f"s_mul_i32 s44, s40, 320"); A(f"s_add_u32 s44, s44, {C1_OFF}")
    A(f"s_cmp_lt_u32 s{ct}, 4"); A(f"s_cselect_b32 s42, {hex(QSCALE)}, 1.0")
    A("s_and_b32 s56, s40, 7"); A("s_lshr_b32 s57, s40, 3"); A(f"s_mul_i32 s{sst}, s56, {GS}"); A(f"s_mul_i32 s58, s57, {K_OFF}"); A(f"s_add_u32 s{sst}, s{sst}, s58")
    A("s_mul_i32 s56, s56, 3"); A("s_add_u32 s56, s56, s57"); A("s_lshl_b32 s56, s56, 2"); A("s_lshr_b32 s57, s41, 3"); A("s_add_u32 s56, s56, s57"); A("s_lshl_b32 s56, s56, 5")
    A("s_and_b32 s57, s41, 7"); A("s_add_u32 s56, s56, s57"); A("s_lshl_b32 s56, s56, 2"); A(f"s_add_u32 s62, s56, {F1_OFF}")
    A(f"s_cmp_ge_u32 s{ct}, 8"); A(f"s_cbranch_scc1 {K}_v")

    def reads(stage):
        so = (stage & 1)*SL; f = FR + 72*(stage & 1)
        X = [[f"ds_read_b128 {r(f+8*xi+4*ks,4)}, {v(xa+ks)} offset:{so+2048*xi}" for ks in range(2)] for xi in range(4)]
        Wt = [[f"ds_read_b64_tr_b16 {r(f+32+8*wi+4*ks+2*h,2)}, {v(wa+(wi&1))} offset:{so+(32*ks+4*h)*320+32*wi}" for ks in range(2) for h in range(2)] for wi in range(5)]
        return Wt[0] + X[0] + X[1] + X[2] + X[3] + Wt[1] + Wt[2] + Wt[3] + Wt[4]
    flag = f"buffer_load_dword {v(t0)}, {v(L4V)}, {S4(SD)}, s22 offen sc1"
    def mainloop(isv):
        tag = "v" if isv else "q"
        if not isv:
            A("s_mul_i32 s56, s41, 5120"); A(f"s_add_u32 s{sst}, s{sst}, s56"); A(f"s_add_u32 s{sst+1}, s{sst}, 2560")
            A(f"s_add_u32 s{sst+2}, s{sst}, {163840+512}"); A(f"s_add_u32 s{sst+3}, s{sst+1}, {163840+512}")
            A(f"v_lshrrev_b32 {v(t0)}, 5, {v(LANE)}"); A(f"v_mul_u32_u24 {v(t0)}, {163840-2560}, {v(t0)}"); A(f"v_add_u32 {v(sa)}, {v(t0)}, {v(LV)}")
            A(f"v_lshlrev_b32 {v(rv)}, 2, {v(nn)}"); A(f"v_lshlrev_b32 {v(cv)}, 4, {v(qq)}")
        else:
            A("s_mul_i32 s56, s41, 10240"); A(f"s_add_u32 s{sst}, s{sst}, s56"); A(f"s_add_u32 s{sst+1}, s{sst}, 5120")
            A(f"v_mul_u32_u24 {v(t3)}, 1280, {v(qq)}"); A(f"v_lshl_add_u32 {v(sa)}, {v(nn)}, 4, {v(t3)}")
            A(f"v_lshlrev_b32 {v(rv)}, 4, {v(qq)}"); A(f"v_lshlrev_b32 {v(cv)}, 2, {v(nn)}")
        Q = VQ(); Q.add(0, dma(0))
        A.ext(Q.add(1, dma(1)))
        A.ext(Q.wait(0)); A("s_barrier"); ST.mark(2)
        A.ext(reads(0))
        BP = 8; FS = CFG.get("p1fs", 7)
        rsl = [f"buffer_load_dword{'x4' if isv else ''} {v(RS+16*k_+4*xi, 4 if isv else 1)}, {v(rv)}, {S4(SWS)}, s{43 if k_ else srs} offen offset:{64*xi} sc1" for k_ in range(2) for xi in range(4)]
        rsl += [f"buffer_load_dword{'' if isv else 'x4'} {v(CS+4*wi, 1 if isv else 4)}, {v(cv)}, {S4(SWS)}, s44 offen offset:{64*wi} sc1" for wi in range(5)]
        mf = []
        for st in range(10):
            f = FR + 72*(st & 1); X = lambda xi, ks: f+8*xi+4*ks; Wf = lambda wi, ks: f+32+8*wi+4*ks
            for wi in range(5):
                for xi in range(4):
                    for ks in range(2):
                        c0 = "0" if (st == 0 and ks == 0) else None
                        mf.append(mf16(ACC+16*wi+4*xi, X(xi, ks), Wf(wi, ks), c0) if isv else mf16(ACC+16*wi+4*xi, Wf(wi, ks), X(xi, ks), c0))
        T = TL(A, Q, mf)
        nonop = lambda L: [x for x in L if x != "s_nop 0"]
        for st in range(10):
            k0 = 40*st
            if 4*st in P1ST(): T.pre[k0].append(lambda i=3+P1ST().index(4*st): ST.mark(i))
            T.pre[k0].append("s_waitcnt lgkmcnt(15)"); T.pre[k0+BP].append("s_waitcnt lgkmcnt(0)")
            if st == 0:
                T.spread([(2, x) for x in dma(2)], 0, 0.8); T.spread([(3, x) for x in nonop(dma(3))], BP+2, 3.3)
            elif st+3 < 10: T.spread([(st+3, x) for x in nonop(dma(st+3))], k0+2, 4.3)
            if st == FS: T.post[k0+1].append(("f", flag))
            if st < 9:
                T.pre[k0+BP].append(("wait", st+1))
                if st == FS+1:
                    T.pre[k0+BP] += [("wait", "f"), f"v_or_b32 {v(t0)}, s{W}, {v(t0)}", f"v_cmp_eq_u32 vcc, 0, {v(t0)}", "s_nop 1", f"s_cbranch_vccnz {K}_rsspin{tag}", f"{K}_rsok{tag}:"]
                    T.spread([("rs", x) for x in rsl], k0+BP+1, 2.3)
                T.pre[k0+BP].append("s_barrier")
                T.spread([(None, x) for x in reads(st+1)], k0+BP, 31/28)
                if st & 1:
                    d = (2*SL if (st & 2) == 0 else -2*SL) & 0xffffffff
                    for j, x in enumerate(range(xa, xa+4)): T.valu[k0+3+j].append(f"v_add_u32 {v(x)}, {d}, {v(x)}")
        T.emit()
        ST.mark(3 + len(P1ST()))
        A.ext(Q.wait("rs"))
        if not isv:
            for xi in range(4): A(f"v_mul_f32 {v(RS+16+4*xi)}, s42, {v(RS+16+4*xi)}")
        n_ = 0
        for wi in range(5):
            for xp in range(2):
                o = OB + 4*(n_ % 4); n_ += 1
                for xi in (2*xp, 2*xp+1):
                    ac = ACC+16*wi+4*xi
                    for i in (0, 2):
                        if not isv: A(f"v_pk_fma_f32 {v(ac+i,2)}, {v(CS+4*wi+i,2)}, {v(RS+4*xi,2)}, {v(ac+i,2)} op_sel_hi:[1,0,1]")
                        else: A(f"v_pk_fma_f32 {v(ac+i,2)}, {v(RS+4*xi+i,2)}, {v(CS+4*wi,2)}, {v(ac+i,2)} op_sel_hi:[1,0,1]")
                for xi in (2*xp, 2*xp+1):
                    ac = ACC+16*wi+4*xi
                    for i in (0, 2):
                        if not isv: A(f"v_pk_mul_f32 {v(ac+i,2)}, {v(ac+i,2)}, {v(RS+16+4*xi,2)} op_sel_hi:[1,0]")
                        else: A(f"v_pk_mul_f32 {v(ac+i,2)}, {v(ac+i,2)}, {v(RS+16+4*xi+i,2)}")
                for i in range(2):
                    for j in range(2): A(f"v_cvt_pk_bf16_f32 {v(o+2*j+i)}, {v(ACC+16*wi+8*xp+4*j+2*i)}, {v(ACC+16*wi+8*xp+4*j+2*i+1)}")
                sw = "v_permlane32_swap_b32" if isv else "v_permlane16_swap_b32"
                A(f"{sw} {v(o)}, {v(o+2)}"); A("s_nop 0"); A(f"{sw} {v(o+1)}, {v(o+3)}")
                if isv: A(f"buffer_store_dwordx4 {v(o,4)}, {v(sa)}, {S4(SWS)}, s{sst+xp} offen offset:{256*wi} sc1")
                else: A(f"buffer_store_dwordx4 {v(o,4)}, {v(sa if wi == 2 else LV)}, {S4(SWS)}, s{sst+xp+2*(wi > 2)} offen offset:{1024*(wi if wi < 3 else wi-3)} sc1")
        COLD.append(lambda: (A(f"{K}_rsspin{tag}:"), poll(A, [flag], [t0], sleep=10), A(f"s_branch {K}_rsok{tag}")))
    mainloop(False)
    A(f"s_branch {K}_p1done")
    helper(A, ST, common, flag)
    A(f"{K}_v:")
    mainloop(True)
    A(f"{K}_p1done:")
    ST.n = 4 + len(P1ST())
    ST.mark()

def helper(A, ST, common, flag):
    hid, so, stp = 28, 32, 33
    nn, qq, sv = 6, 7, 12
    XB, SM, ONE = 64, 40, 32
    KS = CFG.get("hk", 0)
    A(f"{K}_help:")
    A(f"s_sub_u32 s{hid}, s2, 192")
    A(f"s_cmp_lt_u32 s{hid}, 32"); A("s_cselect_b32 s56, 1280, s56"); A("s_cselect_b32 s29, 1, 0")
    A("s_cmp_eq_u32 s29, 0"); A("s_cselect_b32 s56, 3840, s56")
    A(f"v_lshrrev_b32 v2, 3, {v(LANE)}"); A(f"v_and_b32 v3, 7, {v(LANE)}"); A("v_mul_u32_u24 v4, s56, v2"); A(f"v_lshl_add_u32 {v(sv)}, v3, 4, v4")
    A("s_lshl_b32 s57, s56, 3"); A(f"v_add_u32 {v(sv+1)}, s57, {v(sv)}")
    A(f"s_lshl_b32 s57, s56, 4"); A(f"s_mul_i32 s{so}, s57, s{W}")
    A(f"s_and_b32 s30, s{GX}, 3"); A("s_lshl_b32 s30, s30, 3"); A(f"s_lshr_b32 s57, s{hid}, 2"); A("s_and_b32 s57, s57, 7"); A("s_add_u32 s30, s30, s57")
    A(f"s_sub_u32 s31, s{hid}, 32"); A(f"s_mul_i32 s57, s30, {64*1280}"); A("s_lshl_b32 s58, s31, 7")
    A("s_cmp_eq_u32 s29, 0"); A("s_cselect_b32 s57, s58, s57"); A(f"s_cselect_b32 s{stp}, {64*3840}, s56"); A(f"s_add_u32 s{so}, s{so}, s57")
    A("s_cmp_eq_u32 s29, 1"); A(f"s_cselect_b32 s{stp}, 128, s{stp}")
    A(f"s_mul_i32 s57, s{stp}, {KS}"); A(f"s_add_u32 s{so}, s{so}, s57"); A(f"s_mul_i32 s34, s{stp}, -9")
    A("s_waitcnt lgkmcnt(0)")
    srd(A, SX, 36, 2621440)
    A("s_cmp_eq_u32 s29, 1"); A(f"s_cselect_b64 s[{SA}:{SA+1}], s[36:37], s[38:39]"); A(f"s_cselect_b32 s{SA+2}, s{SX+2}, 2457600"); A(f"s_mov_b32 s{SA+3}, 0x20000")
    A(f"s_cmp_lt_u32 s{hid}, 62"); A(f"s_cselect_b32 s{SA+2}, s{SA+2}, 0")
    Q = VQ()
    def xl(i):
        L = [f"buffer_load_dwordx4 {v(XB+4*i,4)}, {v(sv+(i&1))}, {S4(SA)}, s{so} offen"]
        if i & 1: L.append(f"s_add_u32 s{so}, s{so}, s{stp if i//2+KS != 9 else 34}")
        return L
    for i in range(10): A.ext(Q.add(("x", i), xl(i)))
    common()
    marks = list(range(1, 4 + len(P1ST())))
    def mk():
        if marks: ST.mark(marks.pop(0))
    mk()
    for i in range(4): A(f"v_mov_b32 {v(8+i)}, 0"); A(f"v_mov_b32 {v(ONE+i)}, 0x3f803f80")
    for i in range(8): A(f"v_mov_b32 {v(SM+i)}, 0")
    col, both = A.label("hcol"), A.label("hboth")
    def stats(proc, fin):
        Q2 = VQ(); Q2.q = list(Q.q)
        for i in range(10, 20): A.ext(Q2.add(("x", i), xl(i))); A.ext(Q2.wait(("x", i-10))); proc(i-10)
        for i in range(10, 20): A.ext(Q2.wait(("x", i))); proc(i)
        fin(Q2); return Q2
    A("s_cmp_eq_u32 s29, 0"); A(f"s_cbranch_scc1 {col}")
    def rproc(i):
        for j in range(4): A(f"v_dot2c_f32_bf16 {v(SM+2*(i&1))}, {v(ONE)}, {v(XB+4*i+j)}"); A(f"v_dot2c_f32_bf16 {v(SM+2*(i&1)+1)}, {v(XB+4*i+j)}, {v(XB+4*i+j)}")
    def rfin(Q2):
        A("s_nop 2")
        for mod in ("quad_perm:[1,0,3,2]", "quad_perm:[2,3,0,1]", "row_half_mirror"):
            for i in range(4): A(f"v_add_f32_dpp {v(SM+i)}, {v(SM+i)}, {v(SM+i)} {mod} row_mask:0xf bank_mask:0xf")
        A("v_cmp_eq_u32 vcc, 1, v3"); A(f"v_lshrrev_b32 v4, 3, {v(LANE)}"); A("v_lshl_add_u32 v4, v3, 3, v4")
        A(f"v_cndmask_b32 {v(SM)}, {v(SM)}, {v(SM+2)}, vcc"); A(f"v_cndmask_b32 {v(SM+1)}, {v(SM+1)}, {v(SM+3)}, vcc")
        A(f"v_mul_f32 {v(SM)}, {hex(f2u(-1/640))}, {v(SM)}"); A(f"v_mul_f32 {v(SM+1)}, {hex(f2u(1/640))}, {v(SM+1)}")
        A(f"v_fma_f32 {v(SM+1)}, -{v(SM)}, {v(SM)}, {v(SM+1)}"); A(f"v_max_f32 {v(SM+1)}, 0, {v(SM+1)}")
        A(f"v_add_f32 {v(SM+1)}, {hex(f2u(1e-5))}, {v(SM+1)}"); A(f"v_rsq_f32 {v(SM+1)}, {v(SM+1)}")
        A("v_lshlrev_b32 v4, 2, v4"); A(f"v_mov_b32 v5, {OOB}"); A("v_cmp_gt_u32 vcc, 2, v3"); A("s_lshl_b32 s57, s30, 2"); A(f"s_add_u32 s57, s57, s{W}"); A("v_cndmask_b32 v4, v5, v4, vcc")
        A("s_lshl_b32 s57, s57, 6"); A(f"s_add_u32 s57, s57, {RS_OFF}"); A("s_add_u32 s58, s57, 8192")
        A.ext(Q2.add("s", [f"buffer_store_dword {v(SM)}, v4, {S4(SWS)}, s57 offen sc1", f"buffer_store_dword {v(SM+1)}, v4, {S4(SWS)}, s58 offen sc1"]))
    stats(rproc, rfin)
    A(f"s_branch {both}")
    A(f"{col}:")
    def cproc(i):
        for j in range(4):
            A(f"v_lshlrev_b32 v16, 16, {v(XB+4*i+j)}"); A(f"v_and_b32 v17, 0xffff0000, {v(XB+4*i+j)}"); A(f"v_pk_add_f32 {v(SM+2*j,2)}, {v(SM+2*j,2)}, v[16:17]")
    def cfin(Q2):
        A("s_nop 1")
        for i in range(8): A(f"v_add_f32_dpp {v(SM+i)}, {v(SM+i)}, {v(SM+i)} row_ror:8 row_mask:0xf bank_mask:0xf")
        quad_sum(A, list(range(SM, SM+8)), list(range(16, 24)))
        EX = 147456
        A(f"s_lshl_b32 s57, s{W}, 8"); A(f"s_add_u32 s57, s57, {EX}"); A("v_lshl_add_u32 v4, v3, 5, s57")
        A(f"ds_write_b128 v4, {v(SM,4)}"); A(f"ds_write_b128 v4, {v(SM+4,4)} offset:16"); A(f"v_add_u32 v4, {EX}, {v(L4V)}")
        A("s_waitcnt lgkmcnt(0)"); A("s_barrier")
        for i in range(4): A(f"ds_read_b32 {v(16+i)}, v4 offset:{256*i}")
        A("s_lshl_b32 s57, s31, 8"); A(f"s_add_u32 s57, s57, {C1_OFF}"); A("s_add_u32 s57, s57, s22"); A(f"s_mov_b32 s58, {OOB}")
        A("s_waitcnt lgkmcnt(0)"); A("v_add_f32 v16, v16, v17"); A("v_add_f32 v18, v18, v19"); A("v_add_f32 v16, v16, v18")
        A.ext(Q2.add("s", [f"buffer_store_dword v16, {v(L4V)}, {S4(SWS)}, s57 offen sc1", f"buffer_store_dword v16, {v(L4V)}, {S4(SWS)}, s58 offen sc1"]))
    Q = stats(cproc, cfin)
    A(f"{both}:"); mk()
    A(f"s_lshr_b32 s57, s{W}, 1"); A(f"s_lshl_b32 s56, s{hid}, 1"); A("s_add_u32 s56, s56, s57"); A("s_mul_i32 s56, s56, 640"); A(f"s_add_u32 s56, s56, {F2_OFF}")
    A(f"s_bitcmp1_b32 s{W}, 0"); A(f"s_cselect_b32 s56, s56, {OOB}"); A(f"v_min_u32 v4, {39*16}, {v(LV)}")
    A(f"s_mul_i32 s57, s{hid}, 5120"); A(f"s_add_u32 s57, s57, {ONES_OFF}"); A(f"s_cmp_eq_u32 s{W}, 2"); A(f"s_cselect_b32 s57, s57, {OOB}"); A(f"v_and_b32 v5, 1, {v(LANE)}"); A("v_mul_u32_u24 v5, 2560, v5")
    A.ext(Q.add("s", [f"buffer_store_dwordx4 v[8:11], v4, {S4(SWS)}, s56 offen sc1", f"buffer_store_dwordx4 {v(ONE,4)}, v5, {S4(SWS)}, s57 offen sc1"]))
    A(f"s_lshl_b32 s35, s{hid}, 2"); A("s_add_u32 s35, s35, s22"); A("v_mov_b32 v16, 1")
    A.ext(Q.wait("s")); A("s_barrier")
    A.ext(Q.add("f", [f"buffer_store_dword v16, off, {S4(SD)}, s35 sc1"]))
    mk()
    def touch(S, i0, i1):
        A(f"s_cmp_eq_u32 s{W}, 1"); A("s_cselect_b64 s[56:57], s[82:83], s[80:81]"); A(f"s_cmp_eq_u32 s{W}, 2"); A("s_cselect_b64 s[56:57], s[84:85], s[56:57]")
        A("s_mov_b32 s36, 34560"); A(f"s_cmp_eq_u32 s{W}, 3"); A(f"s_cselect_b64 s[{S}:{S+1}], s[88:89], s[56:57]"); A("s_cselect_b32 s36, 12800, s36"); A(f"s_mov_b32 s{S+3}, 0x20000")
        A("s_sub_u32 s56, s2, 192"); A("s_mul_i32 s56, s56, s36"); A(f"s_add_u32 s{S+2}, s56, s36"); A(f"s_add_u32 s56, s56, {8192*i0}"); A(f"v_lshlrev_b32 v3, 7, {v(LANE)}")
        for it in range(i0, i1): A(f"buffer_load_dword v248, v3, {S4(S)}, s56 offen"); A("s_add_u32 s56, s56, 8192")
    H1 = CFG.get("ht1", 5)
    touch(SR, 0, H1)
    while marks: mk()
    def rest():
        A(f"{K}_help2:")
        touch(80, H1, CFG.get("ht", 5))
        A(flag); A("s_waitcnt vmcnt(0)"); A(f"v_or_b32 v2, s{W}, v2"); A("v_cmp_eq_u32 vcc, 0, v2"); A("s_nop 1")
        A(f"s_cbranch_vccz {K}_help3"); poll(A, [flag], [2], sleep=10); A(f"s_branch {K}_help3")
    COLD.append(rest)
    A(f"s_branch {K}_p1done")

def w3reg(f): return 256 + 192 + 4*f if f < 16 else 148 + 4*(f-16)
WV = 250
P3RES, P3CS = 184, 194
SK_WR, SK_RD, SK_RM = 242, 245, 246
def p3_wload(f):
    ks, u = divmod(f, 5)
    L = [f"buffer_load_dwordx4 {r(w3reg(f),4)}, {v(WV if u < 4 else WV+1)}, {S4(SWS)}, s44 offen offset:{1024*(u&3)} sc1"]
    if u == 4: L.append("s_add_u32 s44, s44, 40960" if ks != 3 else "s_mov_b32 s44, s78")
    return L
CMB = 86016

def TOUCHES(key="touch", dflt=""): return [(int(x.split(":")[0]), x.split(":")[1]) for x in str(CFG.get(key, dflt)).split(",") if x]
def gtouch(what):
    c, k_ = what[0], int(what[1:] or 0)
    if c == "u": return [f"s_mov_b64 s[{SR}:{SR+1}], s[86:87]", f"s_mov_b32 s{SR+2}, 2621440", f"buffer_load_dword v248, v147, {S4(SR)}, s90 offen offset:{1280*k_} sc1"]
    reg, vr, base = {"N": (76, TV, HH_OFF() + 3456*k_), "h": (90, 147, H_OFF()),
                     "s": (93, None, STAT_OFF), "g": (79, TV, WGU_OFF + 442368*k_), "d": (79, TV, WD_OFF + 442368*k_)}[c]
    return [f"s_add_u32 s91, s{reg}, {base}", f"buffer_load_dword v248, {v(vr) if vr else 'off'}, {S4(SWS)}, s91 {'offen' if vr else ''} sc1"]
def phase2(A, ST):
    odd, sok, sov, sox, redo, sob, sfr, stch = 28, 72, 73, 74, 32, 33, 34, 35
    S0, S1, P, E, O0 = 16, 48, 80, 96, 104
    kv, kxv, vv, ov, oxv, cw, cr, tv = 136, 137, 138, 139, 140, 141, 144, 145
    OA, QM, QX, KR, VR, XR = 256, 256+96, 256+128, 256+136, 256+152, 256+184
    Oreg = lambda lp: O0 if lp == 0 else OA + 32*(lp-1)
    t0, t1, t2, t3, t4 = 2, 3, 4, 5, 6
    LD = CFG.get("ld", "sc1")
    head, qb = 30, 31
    A(f"s_lshl_b32 s{head}, s{GX}, 2"); A(f"s_and_b32 s36, s{GI}, 3"); A(f"s_add_u32 s{head}, s{head}, s36"); A(f"s_lshr_b32 s{qb}, s{GI}, 2")
    A(f"s_and_b32 s{odd}, s{head}, 1")
    A(f"s_bfe_u32 s36, s{head}, 0x10001"); A("s_mul_i32 s37, s36, 163840"); A(f"s_add_u32 s37, s37, s{GB}")
    A(f"s_add_u32 s38, s37, {K_OFF}"); A(f"s_add_u32 s{SA}, s{SWS}, s38"); A(f"s_addc_u32 s{SA+1}, s{SWS+1}, 0"); A(f"s_mov_b32 s{SA+2}, 163840")
    A(f"s_mul_i32 s{sob}, s{qb}, {GS}"); A(f"s_lshl_b32 s36, s{head}, 9"); A(f"s_add_u32 s{sob}, s{sob}, s36")
    A(f"s_lshl_b32 s36, s{W}, 14"); A(f"s_add_u32 s63, s{sob}, s36"); A(f"s_add_u32 s63, s63, {OX_OFF}")
    A(f"s_lshl_b32 s36, s{W}, 16"); A(f"s_add_u32 s{sob}, s{sob}, s36"); A(f"s_add_u32 s{sob}, s{sob}, {O_OFF}")
    A(f"s_lshl_b32 s38, s{qb}, 2")
    for i in range(4):
        A(f"s_add_u32 s36, s{W}, {i}"); A("s_and_b32 s36, s36, 3")
        if i: A("s_mul_i32 s39, s36, 18432"); A(f"s_add_u32 s39, s39, {CMB+(i-1)*6144}"); A(f"v_add_u32 {v(cw+i-1)}, s39, {v(LV)}")
        else: A("s_mul_i32 s39, s36, 18432"); A(f"s_add_u32 s39, s39, {CMB}"); A(f"v_add_u32 {v(cr)}, s39, {v(LV)}")
        A("s_add_u32 s36, s36, s38"); A("s_mul_i32 s36, s36, 5120"); A(f"s_add_u32 s{40+i}, s36, s37")
    A(f"s_mul_i32 s36, s{odd}, 1536"); A(f"v_add_u32 {v(kv)}, s36, {v(LV)}")
    A(f"v_and_b32 {v(t0)}, 31, {v(LANE)}"); A(f"v_lshrrev_b32 {v(t1)}, 5, {v(LANE)}")
    A(f"s_lshl_b32 s36, s{odd}, 3"); A("s_add_u32 s37, s36, 1024")
    A(f"v_lshl_add_u32 {v(t4)}, {v(t0)}, 4, s37")
    A(f"v_mul_u32_u24 {v(t2)}, 2560, {v(t1)}"); A(f"v_add_u32 {v(kxv)}, {v(t4)}, {v(t2)}")
    A(f"v_bfe_u32 {v(t2)}, {v(LANE)}, 4, 1"); A(f"v_lshlrev_b32 {v(t2)}, 14, {v(t2)}"); A(f"v_and_b32 {v(t3)}, 15, {v(LANE)}"); A(f"v_lshl_add_u32 {v(t2)}, {v(t3)}, 4, {v(t2)}")
    A(f"v_lshl_add_u32 {v(ov)}, {v(t1)}, 8, {v(t2)}")
    A(f"v_lshrrev_b32 {v(t2)}, 2, {v(t0)}"); swap01(A, t3, t2, 7)
    A(f"v_and_b32 {v(t2)}, 3, {v(t0)}"); A(f"v_lshl_add_u32 {v(t2)}, {v(t3)}, 2, {v(t2)}")
    A(f"v_mul_u32_u24 {v(t3)}, 1280, {v(t1)}"); A(f"v_lshl_add_u32 {v(t2)}, {v(t2)}, 4, {v(t3)}")
    A(f"s_and_b32 s36, s{head}, 3"); A("s_mul_i32 s36, s36, 320"); A(f"v_add_u32 {v(t2)}, s36, {v(t2)}")
    A(f"v_mov_b32 {v(t3)}, {OOB}"); A(f"v_cmp_gt_u32 vcc, 20, {v(t0)}"); A("s_nop 1"); A(f"v_cndmask_b32 {v(t2)}, {v(t3)}, {v(t2)}, vcc")
    A(f"s_sub_u32 s36, {ONES_OFF-V_OFF}, s{GB}"); A(f"v_mov_b32 {v(t3)}, s36")
    A(f"v_cmp_eq_u32 vcc, 20, {v(t0)}"); A("s_nop 1"); A(f"v_cndmask_b32 {v(vv)}, {v(t2)}, {v(t3)}, vcc")
    A(f"s_mul_i32 s{sok}, s{W}, {16*2560}"); A(f"s_mov_b32 s{sox}, s{sok}")
    A(f"s_mul_i32 s36, s{W}, {16*5120}"); A(f"s_add_u32 s{sov}, s{GB}, s36"); A(f"s_add_u32 s{sov}, s{sov}, {V_OFF}")
    A(f"s_mov_b32 s{redo}, 0"); A("v_mov_b32 v10, 1")
    def setflag():
        lab = A.label("noflag"); A("s_cmp_ge_u32 s2, 192"); A(f"s_cbranch_scc1 {lab}")
        A("s_waitcnt vmcnt(0)"); A(f"buffer_store_dword v10, off, {S4(SWS)}, s62 sc1"); A(f"{lab}:"); ST.mark()
    if CFG.get("fpos", 1) == 0: setflag()
    A(f"s_bfe_u32 s36, s{GI}, 0x10002"); A("s_lshl_b32 s37, s36, 10"); A(f"v_add_u32 {v(WV)}, s37, {v(LV)}")
    A("s_xor_b32 s36, s36, 1"); A("s_lshl_b32 s37, s36, 12"); A(f"v_add_u32 {v(WV+1)}, s37, {v(LV)}")
    A(f"s_lshr_b32 s36, s{GI}, 2"); A("s_mul_i32 s36, s36, 5120"); A(f"s_mul_i32 s44, s{W}, {4*40960}"); A("s_add_u32 s44, s44, s36"); A(f"s_add_u32 s44, s44, {WO_OFF}")
    A(f"s_mul_i32 s78, s{W}, 40960"); A("s_add_u32 s78, s78, s36"); A(f"s_add_u32 s78, s78, {WO_OFF+16*40960}")
    skinny_addr(A); p4_setup(A)
    A(f"s_lshl_b32 s75, s{P4_ST}, 7"); A(f"s_add_u32 s75, s75, {CS_OFF}"); A("v_lshlrev_b32 v146, 2, v0")
    if CFG.get("fpos", 1) == 1: setflag()
    relayout_setup(A)
    A(f"s_lshl_b32 s36, s{GX}, 5"); A(f"s_add_u32 s36, s36, s{GI}"); A("s_lshl_b32 s36, s36, 2"); A(f"s_add_u32 s36, s36, s{W}")
    A(f"s_lshl_b32 s{sfr}, s2, 5"); A(f"s_add_u32 s{sfr}, s{sfr}, s{W}"); A(f"s_lshl_b32 s{sfr}, s{sfr}, 2"); A(f"s_add_u32 s{sfr}, s{sfr}, {FR_OFF}")
    A(f"s_lshl_b32 s77, s{GX}, 7"); A(f"s_add_u32 s77, s77, {FR_OFF}"); A(f"s_lshl_b32 s101, s{W}, 13"); A(f"s_add_u32 s101, s101, {FR_OFF}")
    A(f"v_mov_b32 v11, {v(TV)}"); A(f"v_and_b32 v8, 31, {v(LANE)}"); A("v_lshlrev_b32 v8, 10, v8")
    A("s_lshl_b32 s93, s36, 7"); A("s_and_b32 s36, s36, 127"); A("s_mul_i32 s79, s36, 3456")
    A("s_mul_i32 s76, s36, 6912"); A(f"s_add_u32 s76, s76, s{GB}"); A("s_mul_i32 s90, s36, 2560"); A(f"s_add_u32 s90, s90, s{GB}")
    A(f"v_min_u32 v147, {19*128}, {v(TV)}"); A(f"v_min_u32 {v(TV)}, {26*128}, {v(TV)}"); A(f"v_mov_b32 v7, s{MYF}")
    A(f"s_lshl_b32 s38, s{qb}, 2"); A(f"s_add_u32 s38, s38, s{W}"); A("s_lshl_b32 s38, s38, 2"); A(f"s_lshr_b32 s39, s{head}, 3"); A("s_add_u32 s38, s38, s39"); A("s_lshl_b32 s38, s38, 5")
    A(f"s_and_b32 s39, s{head}, 7"); A("s_add_u32 s38, s38, s39"); A("s_lshl_b32 s38, s38, 2"); A(f"s_add_u32 s38, s38, {F2_OFF}")
    A(f"s_add_u32 s39, s{sob}, 32768")
    A(f"v_min_u32 v2, 23, {v(LANE)}"); A("v_lshrrev_b32 v3, 3, v2"); A("v_and_b32 v4, 7, v2"); A("v_lshlrev_b32 v3, 9, v3"); A("v_lshl_add_u32 v3, v4, 2, v3"); A(f"s_lshl_b32 s36, s{W}, 7"); A("v_add_u32 v3, s36, v3")
    A(f"s_lshr_b32 s36, s{qb}, 1"); A("s_lshl_b32 s36, s36, 7"); A(f"s_and_b32 s37, s{qb}, 1"); A("s_lshl_b32 s37, s37, 4"); A("s_add_u32 s36, s36, s37")
    A("v_and_b32 v4, 3, v2"); A("v_cmp_gt_u32 vcc, 8, v2"); A("v_lshl_add_u32 v4, v4, 2, s36"); A(f"s_mul_i32 s59, s{GX}, 1536"); A(f"v_cndmask_b32 {v(tv)}, v3, v4, vcc"); A(f"s_add_u32 s59, s59, {F1_OFF}")
    w5_setup(A)
    if CFG.get("fpos", 1) == 2: setflag()
    A("s_cmp_ge_u32 s2, 192"); A(f"s_cbranch_scc1 {K}_help2"); A(f"{K}_help3:")
    A("s_barrier")
    f1l = [f"buffer_load_dword v4, {v(tv)}, {S4(SWS)}, s59 offen sc1"]
    poll(A, f1l, [4], sleep=CFG.get("f1s", 1))
    ST.mark()
    Kr = lambda t: KR + 4*(t % 4)
    Vr = lambda t, sx: VR + 8*(t % 4) + 4*sx
    Xr = lambda j: XR + 2*(j % 2)
    def ldk(t): return [f"buffer_load_dwordx4 {r(Kr(t),4)}, {v(kv)}, {S4(SA)}, s{sok} offen offset:{2560*(t&1)} {LD}"] + ([f"s_add_u32 s{sok}, s{sok}, 5120"] if t & 1 else [])
    def ldx(j): return [f"buffer_load_dwordx2 {r(Xr(j),2)}, {v(kxv)}, {S4(SA)}, s{sox} offen sc1", f"s_add_u32 s{sox}, s{sox}, 5120"]
    def ldv(t, sx): return [f"buffer_load_dwordx4 {r(Vr(t,sx),4)}, {v(vv)}, {S4(SWS)}, s{sov} offen offset:{2560*sx} {LD}"] + ([f"s_add_u32 s{sov}, s{sov}, 5120"] if sx else [])
    def ldq(lp): return ([f"buffer_load_dwordx2 {r(QX+2*lp,2)}, {v(kxv)}, {S4(SWS)}, s{40+lp} offen sc1"] +
                         [f"buffer_load_dwordx4 {r(QM+8*lp+4*j,4)}, {v(kv)}, {S4(SWS)}, s{40+lp} offen offset:{2560*j} sc1" for j in range(2)])
    Q = VQ()
    order = (1, 2, 3, 0)
    NT = CFG.get("tail", 3)
    seq = [(t, lp) for t in range(16-NT) for lp in order] + [(t, lp) for lp in order for t in range(16-NT, 16)]
    first = [(("x", 0), ldx(0)), (("k", 0), ldk(0)), (("q", 1), ldq(1)), (("q", 2), ldq(2)), (("v", 0, 0), ldv(0, 0)), (("v", 0, 1), ldv(0, 1)), (("q", 3), ldq(3)), (("q", 0), ldq(0))]
    U0 = CFG.get("au", 6)
    for tag, ops in first[:U0]: A.ext(Q.add(tag, ops))
    side = {b: [] for b in range(64)}
    fix = {(b, k): [] for b in range(64) for k in range(8)}
    def put(b, tag, ops): side[b] += [(tag, x) for x in ops]
    put(0, ("k", 1), ldk(1)); put(0, ("v", 1, 0), ldv(1, 0)); put(1, ("v", 1, 1), ldv(1, 1)); put(1, ("x", 1), ldx(1)); put(2, ("k", 2), ldk(2))
    put(2, ("v", 2, 0), ldv(2, 0)); put(3, ("v", 2, 1), ldv(2, 1)); put(3, ("k", 3), ldk(3)); put(4, ("v", 3, 0), ldv(3, 0)); put(4, ("v", 3, 1), ldv(3, 1))
    for t in range(12):
        d = 2*(t == 0)
        put(4*t+3+d, ("k", t+4), ldk(t+4)); put(4*t+4+d, ("v", t+4, 0), ldv(t+4, 0)); put(4*t+5+d, ("v", t+4, 1), ldv(t+4, 1))
    for j in range(6): put(8*j+6, ("x", j+2), ldx(j+2))
    for b in (10, 26, 42, 54): put(b, "pc", [CODE_TOUCH])
    mid = {b: [] for b in range(64)}
    B0, SP, B1, SS = CFG.get("b0", 3), CFG.get("rsp", 1), CFG.get("b1", 10), CFG.get("rss", 3)
    for i in range(10): put(B0+SP*i, ("rd", i), rl_dma(i))
    for a_ in range(5):
        b_ = B1 + SS*a_
        assert b_ > B0+SP*(2*a_+1)
        put(b_, None, [("wait", ("rd", 2*a_+1))] + rl_read(a_, 0) + rl_read(a_, 1))
        put(b_+1, "rs", ["s_waitcnt lgkmcnt(0)"] + rl_store(a_, 0)); put(b_+2, "rs", rl_store(a_, 1)); mid[b_+1] += [rl_sum(a_, 0), rl_sum(a_, 1)]
    put(b_+2, "rs", rl_cs(0) + rl_cs(1))
    B2 = b_ + 2 + CFG.get("b2", 3)
    put(B2, "fr", [("wait", "rs"), f"buffer_store_dword v7, off, {S4(SWS)}, s{sfr} sc1"])
    BR = B2 + CFG.get("b3", 5); BQ = BR + 4
    frl = [f"buffer_load_dwordx4 {v(RLF,4)}, v11, {S4(SWS)}, s101 offen sc1"]
    put(BR, "frl", frl)
    chk = [f"v_min3_u32 {v(RLF)}, {v(RLF)}, {v(RLF+1)}, {v(RLF+2)}", f"v_min_u32 {v(RLF)}, {v(RLF)}, {v(RLF+3)}", f"v_cmp_eq_u32 vcc, 0, {v(RLF)}"]
    put(BR+3, None, [("wait", "frl")] + chk + ["s_nop 0", f"s_cbranch_vccnz {K}_frspin", f"{K}_frok:", "s_barrier"])
    put(BQ, "grp", [f"buffer_load_dword v9, v8, {S4(SWS)}, s77 offen sc1"])
    put(BQ+4, None, [("wait", "grp"), "v_cmp_ne_u32 vcc, v7, v9", "s_nop 0", "s_cmp_eq_u64 vcc, 0", f"s_cselect_b32 s{MODE}, {0 if CFG.get('safe') else 1}, 0"])
    put(BQ+5, None, [f"s_cmp_eq_u32 s{MODE}, 0", f"s_cselect_b32 s{stch}, {OOB}, 0", f"s_add_u32 s76, s76, s{stch}", f"s_add_u32 s90, s90, s{stch}", f"s_add_u32 s93, s93, s{stch}"])
    pf = [x for st_ in range(3) for x in p4_dma(st_)]
    pf += [x for kq in range(4) for x in (f"buffer_load_dword {v(P3CS+kq)}, v146, {S4(SWS)}, s75 offen sc1", f"s_add_u32 s75, s75, {108*128}")]
    pf += io_rm("load", P3RES, SX)
    pf += [x for f in range(25) for x in p3_wload(f)]
    for b_, what in TOUCHES():
        assert b_ > BQ+5; put(b_, "t", gtouch(what))
    PE = CFG.get("pfe", 57); nreal = sum(not is_salu(x) for x in pf)
    bl = [b for b in range(BR+4, PE) if b not in (BQ+4, BQ+5)]
    for i, b in enumerate(bl):
        take = -(-nreal//(len(bl)-i))
        while pf and take > 0:
            x = pf.pop(0); put(b, "pf", [x])
            if not is_salu(x): take -= 1; nreal -= 1
    cwr = lambda lp: [f"ds_write_b128 {v(cw+lp-1)}, {r(Oreg(lp)+16*j+4*g,4)} offset:{3072*j+1024*g}" for j in range(2) for g in range(3)]
    E0 = 64 - 3*NT
    for n in range(3):
        b0 = E0 + NT*n
        for x, pos in zip(cwr(order[n]), [(b0, 3), (b0, 5), (b0, 7), (b0+1, 3), (b0+1, 5), (b0+1, 7)]): fix[pos].append(x)
    for f in range(CFG["w5z"]):
        b_ = E0 + NT*(f//8) + 2 + ((f % 8)*3)//8
        if f % 8 == 0: fix[(b_, 2)].append("s_waitcnt lgkmcnt(0)")
        put(b_, "w5", w5load(f))
    nxt63 = S0
    CB = [[204+4*i for i in range(6)], [nxt63+4*i for i in range(6)], [228, 232, 236, 200, nxt63+24, nxt63+28]]
    crd = lambda sl: [f"ds_read_b128 {v(CB[sl][3*j+g],4)}, {v(cr)} offset:{6144*sl+3072*j+1024*g}" for j in range(2) for g in range(3)]
    fix[(63, 2)] += ["s_waitcnt lgkmcnt(0)", "s_barrier"] + crd(0)
    fix[(63, 3)] += crd(1); fix[(63, 6)] += crd(2)
    A.ext(Q.wait(("q", 1)))
    A(mf2b(S0, Xr(0), QX+2, "0", 0))
    n0 = len(A.L)
    for tag, ops in first[U0:]: A.ext(Q.add(tag, ops))
    n0 = 18 - (len(A.L) - n0)
    if n0 > 16: A("s_nop 1"); n0 -= 2
    A(f"s_nop {n0-1}")
    A(mf32(S0, Kr(0), QM+8)); A(mf32(S0+16, Kr(0), QM+12))
    A.ext(Q.wait(("q", 2)))
    ST.mark()
    A("s_nop 9"); A(".p2align 3")
    def needs(b, k):
        if b > 63: return []
        t = seq[b][0]; t1_, lp1 = seq[min(b+1, 63)]
        if k == 0: return [("x", t1_ >> 1), ("q", lp1)] if b < 63 else []
        if k == 4: return [("k", t1_)] if b < 63 else []
        if k == 3: return [("v", t, 0)]
        if k == 6: return [("v", t, 1)]
        return []
    ismem = lambda x: not (isinstance(x, tuple) or is_salu(x) or x.startswith("v_") or x.endswith(":"))
    for b in range(64):
        t, lp = seq[b]
        cur, nxt = (S0, S1) if b % 2 == 0 else (S1, S0)
        c0 = "0" if t == 0 else None
        mf = {3: mf32(Oreg(lp), Vr(t, 0), P, c0), 6: mf32(Oreg(lp), Vr(t, 1), P+4), 7: mf32(Oreg(lp)+16, Vr(t, 0), P+8, c0)}
        if b: mf[2] = mf32(Oreg(seq[b-1][1])+16, Vr(seq[b-1][0], 1), P+12)
        if b < 63:
            t1_, lp1 = seq[b+1]
            mf[0] = mf2b(nxt, Xr(t1_ >> 1), QX+2*lp1, "0", t1_ & 1); mf[4] = mf32(nxt, Kr(t1_), QM+8*lp1); mf[5] = mf32(nxt+16, Kr(t1_), QM+8*lp1+4)
        q = side[b]; mq = list(mid[b])
        if b in ASTAMPS(): ST.mark()
        for k in range(8):
            if k in mf: A(mf[k])
            n0 = len(A.L)
            if k >= 2:
                tags = needs(b, k+1) if k < 7 else needs(b+1, 0)
                w_ = Q.wait(*tags) if tags else []
                A.ext(w_); A.ext(fix[(b, k)])
                free = not w_ and not fix[(b, k)]; nmem = 0
                left = sum(1 for tg, x in q if ismem(x))
                even = len([j for j in range(k, 8) if j % 2 == 0])
                want = (1 if k % 2 == 0 else 0) if left <= even else -(-left//(8-k))
                while q:
                    tg, x = q[0]
                    if isinstance(x, tuple):
                        if not free and k < 7: break
                        q.pop(0); w_ = Q.wait(x[1]); A.ext(w_); free = free and not w_
                    elif x.endswith(":") or x.startswith("v_"): q.pop(0); A(x); free = False; nmem = 99 if k < 7 else nmem
                    elif is_salu(x):
                        if not free and k < 7 and len(q) <= 2*(7-k): break
                        q.pop(0); A(x); free = False
                    else:
                        if nmem >= want and k < 7: break
                        q.pop(0); A.ext(Q.add(tg, [x])); nmem += 1; free = False
            four = sum(1 for x in A.L[n0:] if isize(x) == 4)
            pk = (k-1) % 8; eb = E + 4*(pk & 1)
            if b or k:
                for j in range(2): A(f"v_cvt_pk_bf16_f32 {v(P+2*pk+j)}, {v(eb+2*j)}, {v(eb+2*j+1)}")
            for j in range(4):
                wide = j == 0 and four % 2 == 1
                A(f"v_exp_f32{'_e64' if wide else ''} {v(E+4*(k&1)+j)}, {v(cur+4*k+j)}")
                if j == 1 and k >= 3 and mq and not any(x == "s_waitcnt lgkmcnt(0)" for _, x in q): A(mq.pop(0))
        assert not q and not mq, (b, q)
    for j in range(2): A(f"v_cvt_pk_bf16_f32 {v(P+14+j)}, {v(E+4+2*j)}, {v(E+5+2*j)}")
    A("s_waitcnt lgkmcnt(0)"); A("s_nop 0")
    A(mf32(O0+16, Vr(15, 1), P+12))
    ST.mark()
    for j in range(2):
        for g in range(3):
            for i in range(4): A(f"v_add_f32 {v(CB[0][3*j+g]+i)}, {v(CB[0][3*j+g]+i)}, {v(CB[1][3*j+g]+i)}") if (j == 0 and g < 2) else None
            if not (j == 0 and g < 2):
                for i in (0, 2): A(f"v_pk_add_f32 {v(CB[0][3*j+g]+i,2)}, {v(CB[0][3*j+g]+i,2)}, {v(CB[1][3*j+g]+i,2)}")
    for sl in (0, 2):
        for j in range(2):
            for g in range(3):
                for i in (0, 2): A(f"v_pk_add_f32 {v(O0+16*j+4*g+i,2)}, {v(O0+16*j+4*g+i,2)}, {v(CB[sl][3*j+g]+i,2)}")
    A(f"{K}_anorm:")
    A(f"v_mov_b32 v12, {v(O0+8)}"); A(f"v_mov_b32 v13, {v(O0+8)}"); A(f"v_mov_b32 v14, {v(O0+24)}"); A(f"v_mov_b32 v15, {v(O0+24)}")
    A(f"s_mov_b32 s36, {hex(f2u(2.0**60))}"); A(f"s_mov_b32 s37, {hex(f2u(2.0**-60))}")
    A("v_permlane32_swap_b32 v12, v13"); A("v_permlane32_swap_b32 v14, v15"); A("s_nop 1")
    A("v_rcp_f32 v12, v13"); A("v_rcp_f32 v14, v15")
    A("v_cmp_nlt_f32_e64 vcc, v13, s36"); A("v_cmp_nlt_f32_e64 s[40:41], v15, s36"); A("v_cmp_ngt_f32_e64 s[42:43], v13, s37"); A("v_cmp_ngt_f32_e64 s[56:57], v15, s37")
    A("s_or_b64 vcc, vcc, s[40:41]"); A("s_or_b64 vcc, vcc, s[42:43]"); A("s_or_b64 vcc, vcc, s[56:57]"); A(f"s_cbranch_scc1 {K}_aslow")
    A(f"{K}_afin:")
    for j in range(2):
        for i in range(0, 12, 2): A(f"v_pk_mul_f32 {v(O0+16*j+i,2)}, {v(O0+16*j+i,2)}, {v(12+2*j,2)} op_sel_hi:[1,0]")
        for i in range(6): A(f"v_cvt_pk_bf16_f32 {v(S0+4*j+i if i < 4 else S0+8+2*j+i-4)}, {v(O0+16*j+2*i)}, {v(O0+16*j+2*i+1)}")
    def stores(fl):
        return ([f"buffer_store_dwordx4 {v(S0+4*j,4)}, {v(ov)}, {S4(SWS)}, s{sob if j == 0 else 39} offen {fl}" for j in range(2)] +
                ["s_mov_b32 exec_hi, 0", f"buffer_store_dwordx4 {v(S0+8,4)}, {v(LV)}, {S4(SWS)}, s63 offen {fl}"])
    A.ext(stores("sc1")); A("s_mov_b64 exec, -1")
    for f in range(CFG["w5z"], CFG["w5a"]): A.ext(w5load(f))
    late_setup(A); A("v_mov_b32 v240, 1")
    A(f"s_waitcnt vmcnt({CFG['w5a']-CFG['w5z']})"); A(f"buffer_store_dword v10, off, {S4(SWS)}, s38 sc1")
    ST.mark()
    def cold():
        A(f"{K}_frspin:"); poll(A, frl, list(range(RLF, RLF+4)), sleep=8); A(f"s_branch {K}_frok")
        NM = S1
        A(f"{K}_aslow:")
        A(f"s_cmp_lg_u32 s{redo}, 0"); A(f"s_cbranch_scc1 {K}_afin")
        A(f"s_mov_b32 s{redo}, 1"); A(f"s_mov_b32 s{sok}, 0"); A(f"s_mov_b32 s{sox}, 0")
        A("v_mov_b32 v12, 0xff800000"); A("v_mov_b32 v13, 0xff800000")
        def scores(e, c):
            A(mf2b(S0, Xr(0), QX, c, e)); A("s_nop 15"); A("s_nop 1")
            A(mf32(S0, Kr(e), QM)); A(mf32(S0+16, Kr(e), QM+4)); A("s_nop 11")
        A(f"{K}_mloop:")
        A.ext(ldx(0) + ldk(0) + ldk(1)); A("s_waitcnt vmcnt(0)")
        for e in range(2):
            scores(e, "0")
            for j in range(2):
                for i in range(0, 16, 2): A(f"v_max3_f32 {v(12+j)}, {v(12+j)}, {v(S0+16*j+i)}, {v(S0+16*j+i+1)}")
        A(f"s_cmp_lt_u32 s{sok}, 163840"); A(f"s_cbranch_scc1 {K}_mloop")
        A("v_mov_b32 v14, v12"); A("v_mov_b32 v15, v13"); A("s_nop 1")
        A("v_permlane32_swap_b32 v12, v14"); A("v_permlane32_swap_b32 v13, v15"); A("s_nop 1")
        A("v_max_f32 v12, v12, v14"); A("v_max_f32 v13, v13, v15")
        for i in range(32): A(f"v_sub_f32 {v(NM+i)}, 0, {v(12+i//16)}"); A(f"v_mov_b32 {v(O0+i)}, 0")
        A(f"s_mov_b32 s{sok}, 0"); A(f"s_mov_b32 s{sox}, 0"); A(f"s_add_u32 s{sov}, s{GB}, {V_OFF}")
        A(f"{K}_sloop:")
        A.ext(ldx(0) + ldk(0) + ldk(1) + ldv(0, 0) + ldv(0, 1) + ldv(1, 0) + ldv(1, 1)); A("s_waitcnt vmcnt(0)")
        for e in range(2):
            scores(e, NM)
            for i in range(32): A(f"v_exp_f32 {v(S0+i)}, {v(S0+i)}")
            A("s_nop 0")
            for i in range(16): A(f"v_cvt_pk_bf16_f32 {v(P+i)}, {v(S0+2*i)}, {v(S0+2*i+1)}")
            A("s_nop 1")
            for j in range(2):
                for sx in range(2): A(mf32(O0+16*j, Vr(e, sx), P+8*j+4*sx))
        A(f"s_cmp_lt_u32 s{sok}, 163840"); A(f"s_cbranch_scc1 {K}_sloop")
        A("s_nop 15")
        A(f"s_branch {K}_anorm")
    return cold

RED = 86016
CSL = 147456
P4_SOW, P4_SOW2, P4_M0, P4_ST = 45, 46, 47, 48
class VQ:
    def __init__(self): self.q = []; self.done = 0
    def add(self, tag, ops):
        self.q += [tag for x in ops if x.startswith(("buffer", "global"))]
        assert len(self.q) - self.done <= 63, "too many outstanding"
        return ops
    def wait(self, *tags):
        idx = [i for i, x in enumerate(self.q) if x in tags]
        last = max(idx) + 1
        if last <= self.done: return []
        self.done = last
        return [f"s_waitcnt vmcnt({len(self.q) - last})"]

def p4_setup(A):
    A(f"s_lshr_b32 s36, s{GI}, 1"); A("s_mul_i32 s36, s36, 7"); A(f"s_min_u32 s{P4_ST}, s36, 101")
    A(f"s_mul_i32 s{P4_M0}, s{W}, 7168"); A(f"s_lshl_b32 s36, s{P4_ST}, 11"); A(f"s_add_u32 s36, s36, s{P4_M0}")
    A(f"s_lshr_b32 s37, s{W}, 1"); A(f"s_mul_i32 s37, s37, {221184-14336}"); A("s_add_u32 s36, s36, s37")
    A(f"s_add_u32 s{P4_SOW}, s36, {WGU_OFF}")
def p4_dma(stage):
    slot = stage % 5
    dw = lambda j: f"buffer_load_dwordx4 {v(LV)}, {S4(SWS)}, s{P4_SOW if j < 4 else P4_SOW2} offen offset:{(j&3)*1024} sc1 lds"
    return ([f"s_add_u32 m0, s{P4_M0}, {slot*28672}", f"s_add_u32 s{P4_SOW2}, s{P4_SOW}, 4096"] + [dw(j) for j in range(4)] +
            [f"s_add_u32 m0, s{P4_M0}, {slot*28672+4096}", f"s_add_u32 s{P4_SOW}, s{P4_SOW}, {2*221184}"] + [dw(j) for j in range(4, 7)])

def skinny_addr(A):
    for i in range(1, 4):
        A(f"s_add_u32 s36, s{W}, {i}"); A("s_and_b32 s36, s36, 3"); A("s_mul_i32 s36, s36, 15360"); A(f"s_add_u32 s36, s36, {RED+(i-1)*5120}"); A(f"v_add_u32 {v(SK_WR+i-1)}, s36, {v(LV)}")
    A(f"s_mul_i32 s36, s{W}, 15360"); A(f"s_add_u32 s36, s36, {RED}"); A(f"v_add_u32 {v(SK_RD)}, s36, {v(LV)}")
    A(f"v_and_b32 v2, 15, {v(LANE)}"); A(f"v_lshrrev_b32 v3, 4, {v(LANE)}")
    A("v_mul_u32_u24 v2, 1280, v2"); A(f"v_lshl_add_u32 {v(SK_RM)}, v3, 4, v2")
    A(f"s_lshl_b32 s49, s{GX}, 2"); A(f"s_and_b32 s36, s{GI}, 3"); A("s_add_u32 s49, s49, s36"); A("s_lshl_b32 s49, s49, 2"); A(f"s_add_u32 s49, s49, s{W}")
    A("s_mul_i32 s50, s49, 20480"); A(f"s_lshr_b32 s36, s{GI}, 3"); A("s_mul_i32 s37, s36, 320"); A("s_add_u32 s51, s50, s37")
    A("s_mul_i32 s37, s36, 5120"); A("s_add_u32 s50, s50, s37"); A(f"s_mul_i32 s37, s{GX}, {GS-327680}"); A("s_add_u32 s50, s50, s37"); A(f"s_add_u32 s50, s50, {H_OFF()}")
    A(f"s_bfe_u32 s36, s{GI}, 0x10002"); A("s_lshl_b32 s37, s36, 3")
    A("s_add_u32 s60, s50, s37"); A("s_add_u32 s60, s60, 2048"); A("s_add_u32 s61, s51, s37"); A("s_add_u32 s61, s61, 128")
    A("s_mul_i32 s37, s36, 3072"); A("s_add_u32 s50, s50, s37"); A("s_mul_i32 s37, s36, 192"); A("s_add_u32 s51, s51, s37")
def io_frag(op, regs, fl):
    return [f"buffer_{op}_dwordx4 {v(regs,4)}, {v(LV)}, {S4(SWS)}, s50 offen {fl}", f"buffer_{op}_dwordx4 {v(regs+4,4)}, {v(LV)}, {S4(SWS)}, s50 offen offset:1024 {fl}",
            f"buffer_{op}_dwordx2 {v(regs+8,2)}, {v(LV)}, {S4(SWS)}, s60 offen {fl}"]
def io_rm(op, regs, S):
    return [f"buffer_{op}_dwordx4 {v(regs,4)}, {v(SK_RM)}, {S4(S)}, s51 offen", f"buffer_{op}_dwordx4 {v(regs+4,4)}, {v(SK_RM)}, {S4(S)}, s51 offen offset:64",
            f"buffer_{op}_dwordx2 {v(regs+8,2)}, {v(SK_RM)}, {S4(S)}, s61 offen"]
def unpack(A, dst, src, n):
    for i in range(n): A(f"v_lshlrev_b32 {v(dst+2*i)}, 16, {v(src+i)}"); A(f"v_and_b32 {v(dst+2*i+1)}, 0xffff0000, {v(src+i)}")
def reduce_tail(A, ACC, rd):
    A("s_waitcnt lgkmcnt(0)"); A("s_barrier")
    for sl in range(3):
        for u in range(5): A(f"ds_read_b128 {v(ACC+20+20*sl+4*u,4)}, {v(rd)} offset:{5120*sl+1024*u}")
    for sl in range(3):
        A(f"s_waitcnt lgkmcnt({10-5*sl})")
        for i in range(0, 20, 2): A(f"v_pk_add_f32 {v(ACC+i,2)}, {v(ACC+i,2)}, {v(ACC+20+20*sl+i,2)}")
def quad_sum(A, regs, tmps):
    for swap in ("v_permlane32_swap_b32", "v_permlane16_swap_b32"):
        for x, t in zip(regs, tmps): A(f"v_mov_b32 {v(t)}, {v(x)}")
        A("s_nop 1")
        for x, t in zip(regs, tmps): A(f"{swap} {v(x)}, {v(t)}")
        A("s_nop 1")
        for x, t in zip(regs, tmps): A(f"v_add_f32 {v(x)}, {v(x)}, {v(t)}")

class TL:
    def __init__(self, A, Q, mf):
        self.A, self.Q, self.mf = A, Q, mf
        self.pre = [[] for _ in mf]; self.post = [[] for _ in mf]; self.valu = [[] for _ in mf]
    def spread(self, items, k0, step):
        k = float(k0); last = 0; hold = []
        for t, x in items:
            if is_salu(x): hold.append(x); continue
            kk = min(int(k), len(self.mf)-1)
            for j, h in enumerate(hold): self.post[max(last, kk-len(hold)+j)].append((None, h))
            hold = []; self.post[kk].append((t, x)); last = kk; k += step
        for j, h in enumerate(hold): self.post[min(last+1+j, len(self.mf)-1)].append((None, h))
        return k
    def vspread(self, ops, k0, k1, cap=2):
        ops = list(ops); k = k0
        while ops:
            assert k < len(self.mf), "no room"
            room = cap - len(self.valu[k]) - sum(1 for t, x in self.post[k] if not (isinstance(x, str) and is_salu(x)))
            want = -(-len(ops)//max(k1-k, 1))
            for _ in range(min(len(ops), max(room, 0) if k < k1-1 else len(ops), want if k < k1-1 else len(ops))): self.valu[k].append(ops.pop(0))
            k += 1
        return k
    def emit(self):
        A, Q = self.A, self.Q
        def one(t, x):
            if callable(x): x()
            elif isinstance(x, tuple): A.ext(Q.wait(*x[1:]))
            else:
                if t is not None: Q.add(t, [x])
                A(x)
        for k, m in enumerate(self.mf):
            for x in self.pre[k]: one(None, x)
            A(m)
            for t, x in self.post[k]: one(t, x)
            A.ext(self.valu[k])

W5X = 208
def w5reg(f): return 256+4*f if f < 24 else 256+176+4*(f-24) if f < 28 else 256+96+4*(f-28) if f < 48 else 256+4*f if f < 64 else W5X + 4*(f-64)
def w5load(f):
    ks, u = divmod(f, 5)
    L = [f"buffer_load_dwordx4 {r(w5reg(f),4)}, {v(WV if u < 4 else WV+1)}, {S4(SWS)}, s100 offen offset:{1024*(u&3)} sc1"]
    if u == 4: L.append("s_add_u32 s100, s100, 40960" if ks != 12 else "s_add_u32 s100, s100, s94")
    return L
S_F2P, S_STW, S_F3W, S_F3P, S_STR, S_F4W, S_F4P, S_F3A, S_OH, S_OHH, S_OH1, S_A5 = 64, 65, 66, 67, 68, 69, 70, 71, 28, 29, 30, 72
P4_LA, P4_LB, P4_HV, P4_SV, P4_CA, P4_CB, P4_F3V, L4V, ONEV = 4, 7, 11, 12, 13, 14, 15, 241, 10
def w5_setup(A):
    A(f"s_mul_i32 s36, s{W}, 14"); A(f"s_sub_i32 s37, s{W}, 2"); A("s_max_i32 s37, s37, 0"); A("s_sub_u32 s31, s36, s37")
    A(f"s_lshr_b32 s36, s{GI}, 2"); A("s_mul_i32 s36, s36, 5120"); A("s_mul_i32 s100, s31, 40960"); A("s_add_u32 s100, s100, s36"); A(f"s_add_u32 s100, s100, {WD_OFF}")
    A(f"s_cmp_ge_u32 s{W}, 2"); A(f"s_cselect_b32 s92, {OOB}, 0"); A("s_add_u32 s94, s92, 40960")
def late_setup(A):
    A(f"s_and_b32 s56, s{GI}, 3"); A(f"s_lshl_b32 s37, s{W}, 12"); A(f"s_add_u32 s37, s37, s{GB}")
    A("s_lshl_b32 s39, s56, 14"); A("s_add_u32 s39, s39, s37"); A(f"s_add_u32 s39, s39, {OX_OFF}")
    A("s_lshl_b32 s56, s56, 16"); A("s_add_u32 s56, s56, s37"); A(f"s_add_u32 s56, s56, {O_OFF}")
    A("s_and_b32 s57, s49, 12"); A("s_mul_i32 s57, s57, 55296"); A("s_lshl_b32 s37, s31, 10"); A("s_add_u32 s57, s57, s37"); A(f"s_add_u32 s57, s57, s{GB}"); A(f"s_add_u32 s57, s57, {HH_OFF()}")
    for i in range(4):
        A(f"s_add_u32 s36, s{W}, {i}"); A("s_and_b32 s36, s36, 3"); A("s_lshl_b32 s37, s36, 14"); A(f"s_add_u32 s{40+i}, s56, s37")
        A("s_mul_i32 s37, s36, 55296"); A(f"s_add_u32 s{S_A5+i}, s57, s37")
        A("s_and_b32 s37, s36, 1"); A("s_lshl_b32 s37, s37, 8"); A("s_lshr_b32 s36, s36, 1"); A("s_lshl_b32 s36, s36, 3"); A("s_add_u32 s36, s36, s37"); A(f"s_add_u32 s{52+i}, s39, s36")
    A(f"v_lshrrev_b32 v2, 4, {v(LANE)}"); A(f"v_and_b32 v3, 15, {v(LANE)}"); A(f"v_mul_u32_u24 v252, 768, v2"); A(f"v_add_u32 v252, v252, {v(LV)}")
    A(f"s_lshl_b32 s{S_F2P}, s49, 7"); A(f"s_add_u32 s{S_F2P}, s{S_F2P}, {F2_OFF}")
    A(f"s_lshr_b32 s37, s{GI}, 2"); A("s_lshl_b32 s36, s49, 3"); A("s_add_u32 s36, s36, s37"); A("s_lshl_b32 s36, s36, 7"); A(f"s_add_u32 s{S_STW}, s36, {STAT_OFF}")
    A("s_lshr_b32 s36, s49, 1"); A("s_lshl_b32 s36, s36, 5"); A("s_lshl_b32 s37, s37, 1"); A("s_add_u32 s36, s36, s37"); A("s_and_b32 s37, s49, 1"); A("s_add_u32 s36, s36, s37")
    A("s_lshl_b32 s36, s36, 2"); A(f"s_add_u32 s{S_F3W}, s36, {F3_OFF}")
    A("s_lshr_b32 s36, s49, 2"); A("s_lshl_b32 s36, s36, 8"); A(f"s_add_u32 s{S_F4P}, s36, {F4_OFF}")
    A(f"s_and_b32 s36, s{GI}, 1"); A(f"s_lshl_b32 s37, s{GX}, 1"); A("s_add_u32 s36, s36, s37"); A("s_lshl_b32 s36, s36, 2"); A(f"s_add_u32 s36, s36, s{W}")
    A("s_and_b32 s56, s36, 7"); A(f"s_mul_i32 s{S_OH}, s56, 40960"); A(f"s_add_u32 s{S_OH}, s{S_OH}, s{GB}"); A(f"s_add_u32 s{S_OH}, s{S_OH}, {H_OFF()}")
    A(f"s_lshl_b32 s37, s36, 7"); A(f"s_add_u32 s{S_F3P}, s37, {F3_OFF}")
    A(f"s_lshr_b32 s39, s{GI}, 1"); A("s_lshl_b32 s39, s39, 2"); A("s_add_u32 s37, s37, s39"); A(f"s_add_u32 s{S_F4W}, s37, {F4_OFF}")
    A("s_lshl_b32 s37, s36, 11"); A(f"s_add_u32 s{S_STR}, s37, {STAT_OFF}")
    A(f"s_lshl_b32 s37, s{GX}, 10"); A(f"s_add_u32 s{S_F3A}, s37, {F3_OFF}")
    A(f"s_and_b32 s57, s{P4_ST}, 1")
    A(f"s_mul_i32 s{S_OHH}, s56, 110592"); A(f"s_add_u32 s{S_OHH}, s{S_OHH}, s{GB}"); A(f"s_add_u32 s{S_OHH}, s{S_OHH}, {HH_OFF()}")
    A(f"s_lshr_b32 s37, s{P4_ST}, 1"); A("s_lshl_b32 s37, s37, 10"); A(f"s_add_u32 s{S_OHH}, s{S_OHH}, s37")
    A("s_cmp_eq_u32 s57, 0"); A("s_cselect_b32 s37, 3072, 8"); A(f"s_cselect_b32 s39, {6*2048}, 0"); A(f"s_cselect_b32 s56, {6*128}, 0"); A(f"s_add_u32 s{S_OH1}, s{S_OHH}, s37")
    A("s_lshl_b32 s37, s57, 10"); A(f"s_add_u32 s{S_OHH}, s{S_OHH}, s37"); A("s_lshl_b32 s36, s57, 11")
    A(f"s_cmp_ge_u32 s{GI}, 28"); A(f"s_cselect_b32 s{S_OH1}, {OOB}, s{S_OH1}"); A(f"s_cmp_ge_u32 s{GI}, 30"); A(f"s_cselect_b32 s33, {OOB}, s{S_OHH}")
    for i in range(3):
        A(f"v_add_u32 {v(P4_LA+i)}, s36, {v(LV)}"); A(f"v_add_u32 {v(P4_LB+i)}, s39, {v(LV)}"); A("s_add_u32 s36, s36, 57344"); A("s_add_u32 s39, s39, 57344")
    A(f"v_add_u32 {v(P4_HV)}, 20480, {v(LV)}")
    A(f"v_lshlrev_b32 {v(P4_SV)}, 8, v2"); A(f"v_lshl_add_u32 {v(P4_SV)}, v3, 3, {v(P4_SV)}")
    A("s_lshl_b32 s36, s57, 7"); A(f"s_add_u32 s36, s36, {CSL}"); A(f"v_lshl_add_u32 {v(P4_CA)}, v2, 4, s36")
    A(f"s_add_u32 s56, s56, {CSL}"); A(f"v_lshl_add_u32 {v(P4_CB)}, v2, 4, s56")
    A(f"v_lshrrev_b32 v2, 3, {v(LANE)}"); A(f"v_and_b32 v3, 7, {v(LANE)}"); A("v_lshlrev_b32 v2, 7, v2"); A(f"v_lshl_add_u32 {v(P4_F3V)}, v3, 3, v2")
    srd(A, SA, 86, 2621440)

COLD = []
def mode_store(A, ins):
    alt, back = A.label("wt"), A.label("wb")
    COLD.append([f"{alt}:"] + [x + " sc1" for x in ins] + [f"s_branch {back}"])
    return [f"s_cbranch_vccz {alt}"] + ins + [f"{back}:"]
def set_mode(A): A(f"s_mov_b32 vcc_lo, s{MODE}"); A("s_mov_b32 vcc_hi, 0")
def red_write(ACC, i, u): return f"ds_write_b128 {v(SK_WR+i-1)}, {v(ACC+20*i+4*u,4)} offset:{1024*u}"
def red_read(ACC, sl): return [f"ds_read_b128 {v(ACC+20+20*sl+4*u,4)}, {v(SK_RD)} offset:{5120*sl+1024*u}" for u in range(5)]

def phase3(A, ST):
    ACC, RES, CSP, AF = 16, P3RES, P3CS, 256+96
    A("s_barrier")
    unpack(A, ACC, RES, 10)
    A(f"v_add_f32 {v(CSP)}, {v(CSP)}, {v(CSP+1)}"); A(f"v_add_f32 {v(CSP+2)}, {v(CSP+2)}, {v(CSP+3)}"); A(f"v_add_f32 {v(CSP)}, {v(CSP)}, {v(CSP+2)}")
    A(f"v_add_u32 v146, {CSL}, v146"); A(f"ds_write_b32 v146, {v(CSP)}")
    A("s_mov_b64 exec, 0xff")
    poll(A, [f"buffer_load_dword v2, {v(L4V)}, {S4(SWS)}, s{S_F2P} offen sc1"], [2])
    A("s_mov_b64 exec, -1")
    ST.mark()
    Q = VQ()
    order = (1, 2, 3, 0)
    al = lambda i: ([f"buffer_load_dwordx4 {r(AF+20*((i-1)%4)+4*ks,4)}, {v(LV)}, {S4(SWS)}, s{40+i} offen offset:{1024*ks} sc1" for ks in range(4)] +
                    [f"buffer_load_dwordx2 {r(AF+20*((i-1)%4)+16+2*j,2)}, v252, {S4(SWS)}, s{52+i} offen offset:{512*j} sc1" for j in range(2)])
    UP = CFG.get("p3up", 2)
    for i in order[:UP]: A.ext(Q.add(("a", i), al(i)))
    set_mode(A)
    T = TL(A, Q, [mf16(ACC+20*i+4*u, w3reg(5*ks+u), AF+20*((i-1)%4)+4*ks, "0" if (ks == 0 and i) else None) for i in order for u in range(5) for ks in range(5)])
    for n, i in enumerate(order): T.pre[25*n].append(("wait", ("a", i)))
    T.pre[0].append(ST.mark)
    k = T.spread([(("a", i), x) for i in order[UP:] for x in al(i)], 0, CFG.get("p3as", 2))
    k = T.spread([("w5", x) for f in range(CFG["w5a"], min(CFG["w5b"], 28)) for x in w5load(f)], k+1, 4)
    assert CFG["w5b"] <= 38
    AFR = lambda f: 25*((f-28)//5 + 1)
    for f in range(28, CFG["w5b"]): k = T.spread([("w5", x) for x in w5load(f)], max(k, AFR(f)), 4)
    for n in range(3):
        for u in range(5): T.post[25*n+5*u+13].append((None, red_write(ACC, order[n], u)))
    T.pre[66] += ["s_waitcnt lgkmcnt(1)", "s_barrier"]
    T.spread([(None, x) for x in red_read(ACC, 0) + red_read(ACC, 1)], 66, 2)
    T.pre[88] += ["s_waitcnt lgkmcnt(0)", "s_barrier"]
    T.spread([(None, x) for x in red_read(ACC, 2)], 88, 1)
    T.vspread([f"v_add_f32 {v(ACC+20+i)}, {v(ACC+20+i)}, {v(ACC+40+i)}" for i in range(20)], 88, 100)
    T.emit()
    ST.mark()
    A("s_waitcnt lgkmcnt(0)")
    for i in range(0, 20, 2): A(f"v_pk_add_f32 {v(ACC+20+i,2)}, {v(ACC+20+i,2)}, {v(ACC+60+i,2)}")
    for i in range(0, 20, 2): A(f"v_pk_add_f32 {v(ACC+i,2)}, {v(ACC+i,2)}, {v(ACC+20+i,2)}")
    for i in range(10): A(f"v_cvt_pk_bf16_f32 {v(RES+i)}, {v(ACC+2*i)}, {v(ACC+2*i+1)}")
    A.ext(mode_store(A, io_frag("store", RES, "")))
    sm, sq = 112, 114
    A(f"v_pk_mul_f32 {v(sq,2)}, {v(ACC,2)}, {v(ACC,2)}"); A(f"v_pk_add_f32 {v(sm,2)}, {v(ACC,2)}, {v(ACC+2,2)}")
    for i in range(2, 20, 2):
        A(f"v_pk_fma_f32 {v(sq,2)}, {v(ACC+i,2)}, {v(ACC+i,2)}, {v(sq,2)}")
        if i > 2: A(f"v_pk_add_f32 {v(sm,2)}, {v(sm,2)}, {v(ACC+i,2)}")
    A(f"v_add_f32 {v(sm)}, {v(sm)}, {v(sm+1)}"); A(f"v_add_f32 {v(sm+1)}, {v(sq)}, {v(sq+1)}")
    quad_sum(A, [sm, sm+1], [sq, sq+1])
    A("s_mov_b64 exec, 0xffff"); A.ext(mode_store(A, [f"buffer_store_dwordx2 {v(sm,2)}, {v(P4_SV)}, {S4(SWS)}, s{S_STW} offen"])); A("s_mov_b64 exec, -1")

def phase4(A, ST):
    la, lb, hv, sv, ca, cb = P4_LA, P4_LB, P4_HV, P4_SV, P4_CA, P4_CB
    STT, HR, ACC, WB, CR = 232, 16, 96, 208, 224
    NW, HD = 3, 4
    WR = lambda n: (80 + 8*(n % 4)) if n % 4 < 2 else (WB + 8*(n % 4 - 2))
    U = [(s_, m) for s_ in range(8) for m in range(14)] + ([(s_, m) for m in range(14) for s_ in (8, 9)] if CFG.get("p4tail", 1) else [(s_, m) for s_ in (8, 9) for m in range(14)])
    def reads(n):
        s_, m = U[n]; slot = s_ % 5; j, mat = divmod(m, 2)
        base, off = (la, j*2048) if j < 6 else (lb, 0)
        return [f"ds_read_b128 {v(WR(n)+4*ks,4)}, {v(base+slot//2)} offset:{(slot%2)*28672+off+mat*1024+ks*14336}" for ks in range(2)]
    for n in range(NW): A.ext(reads(n))
    A("s_barrier")
    A("s_waitcnt vmcnt(0)")
    A.ext(mode_store(A, [f"buffer_store_dword {v(ONEV)}, off, {S4(SWS)}, s{S_F3W}"]))
    ST.mark()
    A("s_mov_b64 exec, 0xffff")
    poll(A, [f"buffer_load_dword v2, {v(L4V)}, {S4(SWS)}, s{S_F3P} offen sc1"], [2])
    A("s_mov_b64 exec, -1")
    ST.mark()
    Q = VQ()
    def hl(s_): return [f"buffer_load_dwordx4 {v(HR+16*(s_%HD)+8*n+4*ks,4)}, {v(hv if n else LV)}, {S4(SWS)}, s{S_OH} offen offset:{1024*ks} sc1" for n in range(2) for ks in range(2)] + [f"s_add_u32 s{S_OH}, s{S_OH}, 2048"]
    UP = CFG.get("p4up", 2)
    for s_ in range(UP): A.ext(Q.add(("h", s_), hl(s_)))
    f3l = [f"buffer_load_dwordx2 v[2:3], {v(P4_F3V)}, {S4(SWS)}, s{S_F3A} offen sc1"]
    stl = [f"buffer_load_dwordx2 {v(STT+4*n+2*c,2)}, {v(sv)}, {S4(SWS)}, s{S_STR} offen offset:{1024*n+128*c} sc1" for n in range(2) for c in range(2)]
    T = TL(A, Q, [mf16(ACC+8*m+4*nn, WR(n)+4*ks, HR+16*(s_ % HD)+8*nn+4*ks, "0" if (s_ == 0 and ks == 0) else None)
                  for n, (s_, m) in enumerate(U) for nn in ((1, 0) if (s_ == 9 and CFG.get("p4tail", 1)) else (0, 1)) for ks in range(2)])
    MS = 6
    lq = [0, 0, 1, 1, 2, 2]
    for n in range(140):
        s_, m = U[n]
        need = [i for i, x in enumerate(lq) if x == n or x == ("c", n)]
        T.pre[4*n].append(f"s_waitcnt lgkmcnt({len(lq)-1-max(need)})")
        if m == 0: T.pre[4*n].append(("wait", ("h", s_)))
        if m == 11 and s_ < (8 if CFG.get("p4tail", 1) else 9):
            if s_+1 >= 3: T.pre[4*n].append(("wait", ("w", s_+1 + (s_ == 7 and CFG.get("p4tail", 1)))))
            T.pre[4*n].append("s_barrier")
        e2 = n + 2 - 14*MS
        if 0 <= e2 < 28 and e2 % 2 == 0:
            e = e2//2; mu = (2*e + 6 + (e >= 7)) % 14; j, mat = divmod(mu, 2)
            T.post[4*n].append((None, f"ds_read_b128 {v(CR+4*(e&1),4)}, {v(ca if j < 6 else cb)} offset:{(128*j if j < 6 else 0)+64*mat}")); lq.append(("c", n+2))
            for i in range(8): T.valu[4*(n+2)+i].append(f"v_fmac_f32 {v(ACC+8*mu+i)}, {v(CR+4*(e&1)+i%4)}, {v(STT+4*(i//4))}")
        if n+NW < 140:
            for j, x in enumerate(reads(n+NW)): T.post[4*n+j+1].append((None, x))
            lq += [n+NW, n+NW]
    T.pre[0].append(ST.mark)
    w5 = list(range(CFG["w5b"], 64)); LAST = CFG.get("p4last", 9.0)
    base = {s_: [] for s_ in range(10)}
    for s_ in range(UP, 10): base[max(0, s_-HD+1)] += [(("h", s_), x) for x in hl(s_)]
    for s_ in range(3, 10): base[s_-3] += [(("w", s_), x) for x in p4_dma(s_)]
    base[1] += [("st", x) for x in stl]; base[4] += [("f3", x) for x in f3l]
    cnt = lambda L: sum(1 for t, x in L if not is_salu(x))
    for s_ in range(10):
        span = min(1.0, LAST - s_)
        if span > 0:
            later = sum(cnt(base[j]) for j in range(s_, 10)) + len(w5)
            for _ in range(min(len(w5), max(0, math.ceil(later*span/(LAST-s_)) - cnt(base[s_])))): base[s_] += [("w5", x) for x in w5load(w5.pop(0))]
        if base[s_]: T.spread(base[s_], 56*s_+3, (56*span-4)/cnt(base[s_]))
    assert not w5
    B = Asm()
    for n in range(2):
        for i in range(2): B(f"v_add_f32 {v(STT+4*n+i)}, {v(STT+4*n+i)}, {v(STT+4*n+2+i)}")
    quad_sum(B, [STT, STT+1, STT+4, STT+5], [STT+2, STT+3, STT+6, STT+7])
    for n in range(2):
        nm, r2 = STT+4*n, STT+4*n+2
        B(f"v_mul_f32 {v(nm)}, {hex(f2u(-1/640))}, {v(nm)}"); B(f"v_mul_f32 {v(r2)}, {hex(f2u(1/640))}, {v(nm+1)}")
        B(f"v_fma_f32 {v(r2)}, -{v(nm)}, {v(nm)}, {v(r2)}"); B(f"v_max_f32 {v(r2)}, 0, {v(r2)}"); B(f"v_add_f32 {v(r2)}, {hex(f2u(1e-5))}, {v(r2)}"); B(f"v_rcp_f32 {v(r2)}, {v(r2)}")
    T.pre[56*4].append(("wait", "st"))
    for j, x in enumerate(x.strip() for x in B.L if "s_nop" not in x): T.valu[56*4+2*j].append(x)
    T.pre[56*8] += [("wait", "f3"), "v_min_u32 v2, v2, v3", "v_cmp_eq_u32 vcc, 0, v2", "s_nop 1", f"s_cbranch_vccnz {K}_f3spin", f"{K}_f3ok:", lambda: set_mode(A)]
    T.valu[56*8+2].append(f"v_add_u32 {v(hv)}, 55296, {v(LV)}")
    COLD.append(lambda: (A(f"{K}_f3spin:"), poll(A, f3l, [2, 3], sleep=4), A(f"s_branch {K}_f3ok")))
    OB = 48
    def strip(j, n, pk):
        r2 = STT+4*n+2; o = OB + 8*((j >> 1) % 2) + 4*n + 2*(j & 1); g, u = ACC+16*j+4*n, ACC+16*j+8+4*n
        if pk: L = [f"v_pk_mul_f32 {v(g+i,2)}, {v(g+i,2)}, {v(r2,2)} op_sel_hi:[1,0]" for i in (0, 2)] + [f"v_pk_mul_f32 {v(g+i,2)}, {v(g+i,2)}, {v(u+i,2)}" for i in (0, 2)]
        else: L = [f"v_mul_f32 {v(g+i)}, {v(g+i)}, {v(r2)}" for i in range(4)] + [f"v_mul_f32 {v(g+i)}, {v(g+i)}, {v(u+i)}" for i in range(4)]
        return L + [f"v_cvt_pk_bf16_f32 {v(o+i)}, {v(g+2*i)}, {v(g+2*i+1)}" for i in range(2)]
    def hst(a_): return [f"buffer_store_dwordx{4 if a_ < 3 else 2} {v(OB+8*(a_%2)+4*n, 4 if a_ < 3 else 2)}, {v(hv if n else LV)}, {S4(SWS)}, s{33 if a_ == 0 else S_OHH if a_ < 3 else S_OH1} offen" + (f" offset:{1024*a_}" if a_ < 3 else "") for n in range(2)]
    NI = CFG.get("p4ni", 6 if CFG.get("p4tail", 1) else 4); k = 0
    for j in range(NI):
        k0 = max(k, (56*8 + 16*(j+1) + 3) if CFG.get("p4tail", 1) else (56*9 + 8*(j+1) + 5))
        a0, a1 = strip(j, 1, False), strip(j, 0, False)
        k = T.vspread(a0[:4] + a1[:4] + a0[4:] + a1[4:], k0, min(k0+12, 560), cap=CFG.get("p4cap", 2))
        if j & 1 and k < 560:
            st_ = hst(j >> 1); T.post[k].append((None, (lambda st_=st_: (A.ext(mode_store(A, st_)), Q.add("hh", st_)))))
    stored = [j >> 1 for j in range(NI) if j & 1]
    if NI and NI % 2 == 0 and k >= 560: stored.pop()
    T.emit()
    ST.mark()
    for a_ in range(4):
        for j in ([2*a_, 2*a_+1] if a_ < 3 else [6]):
            if j >= NI:
                a0, a1 = strip(j, 1, True), strip(j, 0, True)
                A.ext(a0[:2] + a1[:2] + (["s_nop 1"] if j == NI else []) + a0[2:] + a1[2:])
        if a_ not in stored: A.ext(mode_store(A, hst(a_))); Q.add("hh", hst(a_))
    for f in range(64, 70): A.ext(Q.add("w5", w5load(f)))
    return Q

def phase5(A, ST, Q):
    ACC, AF, RES = 16, 96, 232
    A.ext(Q.add("res", io_frag("load", 4, "sc1")))
    A(f"v_add_u32 v14, s92, {v(LV)}")
    A(f"v_lshrrev_b32 v15, 4, {v(LANE)}"); A(f"v_mul_u32_u24 v15, 64, v15"); A(f"v_add_u32 v15, v15, {v(L4V)}")
    A("s_barrier")
    A.ext(Q.wait("hh"))
    A.ext(mode_store(A, [f"buffer_store_dword v240, off, {S4(SWS)}, s{S_F4W}"]))
    ST.mark()
    A("s_waitcnt vmcnt(1)"); unpack(A, ACC, 4, 10)
    A("s_mov_b32 exec_hi, 0")
    poll(A, [f"buffer_load_dword v2, v15, {S4(SWS)}, s{S_F4P} offen sc1"], [2])
    A("s_mov_b64 exec, -1")
    ST.mark()
    Q = VQ()
    order = (1, 2, 3, 0)
    def al(n, ks):
        i = order[n]
        L = [f"buffer_load_dwordx4 {v(AF+56*(n&1)+4*ks,4)}, {v(14 if ks == 13 else LV)}, {S4(SWS)}, s{S_A5+i} offen offset:{1024*(ks&3)} sc1"]
        if ks & 3 == 3: L.append(f"s_add_u32 s{S_A5+i}, s{S_A5+i}, 4096")
        return L
    UP = CFG.get("p5up", 8); STEP = CFG.get("p5st", 4)
    for ks in range(UP): A.ext(Q.add((0, ks), al(0, ks)))
    T = TL(A, Q, [mf16(ACC+20*i+4*u, w5reg(5*ks+u), AF+56*(n&1)+4*ks, "0" if (ks == 0 and i) else None)
                  for n, i in enumerate(order) for kp in range(7) for u in range(5) for ks in (2*kp, 2*kp+1)])
    k = 0
    for g in range(UP, 56):
        n, ks = divmod(g, 14)
        if n >= 2: k = max(k, 70*(n-2) + 10*(ks//2+1) - 1)
        assert k < 70*n + 10*(ks//2)
        k = T.spread([((n, ks), x) for x in al(n, ks)], k, STEP)
    for n in range(4):
        for kp in range(7): T.pre[70*n+10*kp].append(("wait", (n, 2*kp+1)))
    T.pre[0].append(ST.mark)
    for n in range(3):
        for u in range(5): T.post[70*(n+1)+2+5*u].append((None, red_write(ACC, order[n], u)))
    T.pre[237] += ["s_waitcnt lgkmcnt(0)", "s_barrier"]
    T.spread([(None, x) for sl in range(3) for x in red_read(ACC, sl)], 237, 1)
    T.pre[254].append("s_waitcnt lgkmcnt(5)"); T.vspread([f"v_add_f32 {v(ACC+20+i)}, {v(ACC+20+i)}, {v(ACC+40+i)}" for i in range(20)], 254, 266)
    T.pre[266].append("s_waitcnt lgkmcnt(0)"); T.vspread([f"v_add_f32 {v(ACC+20+i)}, {v(ACC+20+i)}, {v(ACC+60+i)}" for i in range(20)], 266, 280)
    T.emit()
    ST.mark()
    A("s_nop 1")
    for i in range(0, 20, 2): A(f"v_pk_add_f32 {v(ACC+i,2)}, {v(ACC+i,2)}, {v(ACC+20+i,2)}")
    for i in range(10): A(f"v_cvt_pk_bf16_f32 {v(RES+i)}, {v(ACC+2*i)}, {v(ACC+2*i+1)}")
    A.ext(io_rm("store", RES, SA))

def build(**cfg):
    CFG.update(cfg)
    A = Asm(); ST = Stamps(A)
    kstart(A, K)
    if CFG.get("empty"): A("s_endpgm")
    ST.mark()
    if CFG.get("probe"):
        off, base = {"bx": (24, 0), "ws": (72, 40 << 20), "out": (56, 0), "wd": (48, 0)}[CFG["probe"]]
        A(f"s_load_dwordx2 s[4:5], s[0:1], {off}"); A("s_waitcnt lgkmcnt(0)"); A(f"s_mov_b32 s6, {base + (2<<20)}"); A("s_mov_b32 s7, 0x20000")
        A("s_and_b32 s8, s2, 255"); A("s_lshl_b32 s8, s8, 9"); A(f"s_add_u32 s8, s8, {base}"); A("v_lshrrev_b32 v2, 6, v0"); A("v_lshlrev_b32 v2, 7, v2")
        for i in range(16):
            A("buffer_load_dword v3, v2, s[4:7], s8 offen"); A("s_waitcnt vmcnt(0)"); A("s_add_u32 s8, s8, 131072")
    COLD.clear(); phase1(A, ST)
    cold = phase2(A, ST)
    phase3(A, ST); phase5(A, ST, phase4(A, ST))
    ST.flush()
    A("s_endpgm")
    cold()
    for c in COLD: c() if callable(c) else A.ext(c)
    A(f"{K}_end:")
    A("s_endpgm")
    kdesc(A, K, 512, acc=256)
    head = open(f"cdna_kernels/{NAME}.s.ref").read().split("; Override launch")[0]
    head += "; @launch grid=(256,1,1) block=(256,1,1) lds=163840\n"
    return head + '.amdgcn_target "amdgcn-amd-amdhsa--gfx950"\n' + A.text()

if __name__ == "__main__":
    out = sys.argv[1] if len(sys.argv) > 1 else f"cdna_kernels/{NAME}.s"
    cfg = {}
    for x in sys.argv[2:]:
        k, val = x.split("=")
        cfg[k] = int(val) if val.lstrip("-").isdigit() else float(val) if val.replace(".", "", 1).isdigit() else val
    txt = build(**cfg)
    names = STAMP_NAMES[:3] + [f"p1 kstep {g}" for g in P1ST()] + STAMP_NAMES[3:8] + [f"att body {b}" for b in ASTAMPS()] + STAMP_NAMES[8:]
    if CFG["stamps"]: txt = txt.replace(".amdgcn_target", "; STAMPS " + "|".join(names) + "\n.amdgcn_target", 1)
    open(out, "w").write(txt)
```

```python
import sys, math, struct, re as _re
from dsl import *

NAME = "sequential_preLN__softmax_full_mha__glu_gated_bilinear__prompt"
K = NAME + "_kernel"
GS = 1310720
K_OFF, V_OFF, O_OFF = 327680, 655360, 983040
OX_OFF = O_OFF + 262144
def H_OFF(): return 8*GS if CFG.get("sep") else 0
def HH_OFF(): return H_OFF() + 327680
WGU_OFF = 20971520
WD_OFF = WGU_OFF + 4423680
WO_OFF = WD_OFF + 2211840
CS_OFF = WO_OFF + 819200
STAT_OFF = CS_OFF + 65536
RS_OFF = STAT_OFF + 131072
C1_OFF = RS_OFF + 16384
F2_OFF = C1_OFF + 8192
F3_OFF = F2_OFF + 128*128
F4_OFF = F3_OFF + 64*128
FR_OFF = F4_OFF + 64*128
F1_OFF = FR_OFF + 256*128
ONES_OFF = F1_OFF + 128*128
STAMP_OFF = 29360128
WS_SIZE = 33554432
OOB = 0x40000000
SPIN = 200000
assert ONES_OFF + 128*2560 < STAMP_OFF and STAT_OFF % 128 == 0
def f2u(x): return struct.unpack("<I", struct.pack("<f", x))[0]
QSCALE = f2u(20**-0.5 * math.log2(math.e))
assert all((u*(65536//54+1)) >> 16 == u//54 for u in range(162)) and all((u*6554) >> 16 == u//10 for u in range(100))
assert all((f*3277) >> 16 == f//20 for f in range(640))
assert all((e*3277) >> 16 == e//20 for e in range(320))
CFG = dict(stamps=False, w5z=16, w5a=20, w5b=36, p4last=9.6, touch="46:s,52:h", p4t="")
STAMP_NAMES = ["start", "p1 first dma issued", "p1 stage0 landed", "p1 loop end", "p1 stores issued", "p1 flag set", "F1 seen", "att loop start", "att loop end",
               "O published", "F2 seen", "p3 first act", "p3 mfma end", "H published", "F3 seen", "p4 first h", "p4 loop end", "HH published", "F4 seen", "p5 first act", "p5 mfma end", "end"]

W, SWS, SX, SA, SR = 3, 4, 8, 12, 16
GX, GI, MODE, MYF, GB = 24, 25, 26, 27, 23
LANE, LV = 1, 253
PCV = 247
CODE_TOUCH = f"global_load_dword v248, v{PCV}, s[20:21] sc1"
def S4(b): return f"s[{b}:{b+3}]"

def ASTAMPS(): return [int(x) for x in str(CFG.get("astamp", "")).split(",") if x]
def P1ST(): return [int(x) for x in str(CFG.get("p1st", "")).split(",") if x]
class Stamps:
    def __init__(self, A): self.A, self.n = A, 0
    def mark(self, at=None):
        A = self.A; i = self.n if at is None else at
        if CFG.get("pad"):
            pi, pt = map(int, CFG["pad"].split(":"))
            if i == 0: A("s_memrealtime s[96:97]")
            if i == pi:
                lab = A.label("pad")
                if "padwg" in CFG: A(f"s_cmp_lg_u32 s2, {CFG['padwg']}"); A(f"s_cbranch_scc1 {lab}x")
                A("s_waitcnt lgkmcnt(0)"); A(f"s_add_u32 s95, s96, {pt*100}"); A(f"{lab}:"); A("s_memrealtime s[98:99]"); A("s_waitcnt lgkmcnt(0)")
                A("s_sub_u32 s98, s98, s95"); A("s_cmp_lt_i32 s98, 0"); A(f"s_cbranch_scc1 {lab}"); A(f"{lab}x:")
            if at is None: self.n += 1
            return
        if not CFG["stamps"]: return
        if i:
            A("s_waitcnt lgkmcnt(0)"); A(f"v_writelane_b32 v254, s96, {i-1}"); A(f"v_writelane_b32 v255, s98, {i-1}")
        A("s_memrealtime s[96:97]"); A("s_memtime s[98:99]")
        if at is None: self.n += 1
    def flush(self):
        if CFG.get("pad"): self.A("s_waitcnt vmcnt(0)"); self.mark(); return
        if not CFG["stamps"]: return
        A = self.A
        A("s_waitcnt vmcnt(0)"); self.mark(); self.mark(); n = self.n - 1
        A(f"v_writelane_b32 v254, s{MODE}, 30"); A(f"v_writelane_b32 v254, s{MYF}, 31")
        A(f"s_lshl_b32 s95, s2, 2"); A(f"s_add_u32 s95, s95, s{W}"); A("s_lshl_b32 s95, s95, 8"); A(f"s_add_u32 s95, s95, {STAMP_OFF}")
        A("s_mov_b64 exec, -1"); A(f"v_lshlrev_b32 v0, 2, {v(LANE)}"); A(f"s_mov_b32 exec_lo, {(1 << n) - 1 + (3 << 30)}"); A("s_mov_b32 exec_hi, 0")
        A(f"buffer_store_dword v254, v0, {S4(SWS)}, s95 offen"); A(f"buffer_store_dword v255, v0, {S4(SWS)}, s95 offen offset:128")

def swap01(A, dst, src, t):
    A(f"v_and_b32 {v(t)}, 1, {v(src)}"); A(f"v_lshlrev_b32 {v(t)}, 1, {v(t)}")
    A(f"v_bfe_u32 {v(dst)}, {v(src)}, 1, 1"); A(f"v_or_b32 {v(t)}, {v(t)}, {v(dst)}")
    A(f"v_and_b32 {v(dst)}, 4, {v(src)}"); A(f"v_or_b32 {v(dst)}, {v(dst)}, {v(t)}")

def make_sel(A, sel, t):
    A(f"v_lshrrev_b32 {v(t)}, 2, {v(LANE)}"); A(f"v_lshrrev_b32 {v(sel)}, 4, {v(LANE)}")
    A(f"v_xor_b32 {v(t)}, {v(t)}, {v(sel)}"); A(f"v_and_b32 {v(t)}, 1, {v(t)}")
    A(f"v_add_u32 {v(t)}, -1, {v(t)}")
    A(f"v_and_b32 {v(sel)}, 0x3f803f80, {v(t)}")
    for i in range(1, 4): A(f"v_mov_b32 {v(sel+i)}, {v(sel)}")

def poll(A, loads, regs, sleep=0, cnt=58, post=()):
    top, out = A.label("poll"), A.label("pollout")
    A(f"s_mov_b32 s{cnt}, {SPIN}")
    A(f"{top}:")
    A.ext(loads); A("s_waitcnt vmcnt(0)"); A.ext(post)
    for x in regs[1:]: A(f"v_min_u32 {v(regs[0])}, {v(regs[0])}, {v(x)}")
    A(f"v_cmp_eq_u32 vcc, 0, {v(regs[0])}")
    A(f"s_sub_u32 s{cnt}, s{cnt}, 1"); A(f"s_cbranch_scc1 {out}")
    if sleep:
        A(f"s_cbranch_vccz {out}"); A(f"s_sleep {sleep}"); A(f"s_branch {top}")
    else: A(f"s_cbranch_vccnz {top}")
    A(f"{out}:")

def publish(A, stores, mid, flag, local=True):
    if not local:
        A.ext(stores("sc1")); A.ext(mid); A.ext(flag("sc1")); return
    slow, done = A.label("st_slow"), A.label("st_done")
    A(f"s_cmp_eq_u32 s{MODE}, 0"); A(f"s_cbranch_scc1 {slow}")
    A.ext(stores("")); A.ext(mid); A.ext(flag("")); A(f"s_branch {done}")
    A(f"{slow}:")
    A.ext(stores("sc1")); A.ext(mid); A.ext(flag("sc1"))
    A(f"{done}:")

RSO, RA, RBA, RDS, RDH, RDAH, RCS, RLDS = 64, 65, 66, 67, 68, 69, 70, 71
RLV, RLT, RLC, RLO, RLF = 201, 202, 204, 212, 216
STG = 86016
def relayout_setup(A):
    t0, t1 = 2, 3
    two, none, done = A.label("rl2"), A.label("rl0"), A.label("rl_set")
    A(f"s_mul_i32 s{RLDS}, s{W}, 10240"); A(f"s_add_u32 s{RLDS}, s{RLDS}, {STG}")
    A(f"v_lshrrev_b32 {v(t0)}, 4, {v(LANE)}"); A(f"v_bfe_u32 {v(t1)}, {v(LANE)}, 2, 2"); A(f"v_lshl_add_u32 {v(t0)}, {v(t0)}, 3, {v(t1)}")
    A(f"v_and_b32 {v(t1)}, 3, {v(LANE)}"); A(f"v_lshlrev_b32 {v(t1)}, 4, {v(t1)}")
    A(f"v_lshl_add_u32 {v(t0)}, {v(t0)}, 6, {v(t1)}"); A(f"v_add_u32 {v(RLT)}, s{RLDS}, {v(t0)}")
    A(f"v_and_b32 {v(RLT+1)}, 15, {v(LANE)}"); A(f"v_lshlrev_b32 {v(RLT+1)}, 2, {v(RLT+1)}")
    for i in range(4): A(f"v_mov_b32 {v(RLO+i)}, 0x3f803f80")
    A(f"v_lshrrev_b32 {v(t0)}, 2, {v(LANE)}")
    A(f"s_mov_b32 s{RCS}, {OOB}"); A(f"s_mov_b32 s{SR+3}, 0x20000")
    A("s_cmp_ge_u32 s2, 108"); A(f"s_cbranch_scc1 {two}")
    A(f"s_bitcmp1_b32 s{W}, 0"); A(f"s_cselect_b64 s[{SR}:{SR+1}], s[82:83], s[80:81]"); A(f"s_mov_b32 s{SR+2}, 2211840")
    A(f"s_mul_i32 s37, s2, {(65536+26)//27}"); A("s_lshr_b32 s37, s37, 16")
    A("s_mul_i32 s38, s37, 27"); A("s_sub_u32 s38, s2, s38"); A("s_lshl_b32 s38, s38, 1"); A(f"s_lshr_b32 s39, s{W}, 1"); A("s_add_u32 s38, s38, s39")
    A(f"s_mul_i32 s{RSO}, s37, {160*3456}"); A("s_lshl_b32 s39, s38, 6"); A(f"s_add_u32 s{RSO}, s{RSO}, s39")
    A(f"s_mov_b32 s{RA}, {16*3456}"); A(f"s_mov_b32 s{RBA}, {16*3456}"); A(f"s_mov_b32 s{RDH}, 2048"); A(f"s_mov_b32 s{RDAH}, {221184-2048}")
    A(f"s_and_b32 s39, s{W}, 1"); A("s_lshl_b32 s38, s38, 2"); A("s_add_u32 s38, s38, s39")
    A(f"s_mul_i32 s{RDS}, s37, {5*221184}"); A("s_lshl_b32 s39, s38, 10"); A(f"s_add_u32 s{RDS}, s{RDS}, s39"); A(f"s_add_u32 s{RDS}, s{RDS}, {WGU_OFF}")
    A(f"s_mul_i32 s{RCS}, s37, {108*128}"); A("s_lshl_b32 s39, s38, 6"); A(f"s_add_u32 s{RCS}, s{RCS}, s39"); A(f"s_add_u32 s{RCS}, s{RCS}, {CS_OFF}")
    A(f"v_mul_u32_u24 {v(t0)}, 3456, {v(t0)}")
    A(f"s_branch {done}")
    A(f"{two}:")
    A("s_sub_u32 s37, s2, 108"); A(f"s_mov_b32 s{RDH}, 1024"); A(f"s_mov_b32 s{RDAH}, 1024")
    A(f"s_mul_i32 s{RDS}, s37, 40960"); A(f"s_mul_i32 s39, s{W}, 10240"); A(f"s_add_u32 s{RDS}, s{RDS}, s39"); A(f"s_add_u32 s{RDS}, s{RDS}, {WD_OFF}")
    A(f"s_mov_b64 s[{SR}:{SR+1}], s[84:85]"); A(f"s_mov_b32 s{SR+2}, 2211840"); A(f"s_lshl_b32 s{RSO}, s37, 5"); A(f"s_mov_b32 s{RA}, 16")
    A("s_cmp_lt_u32 s37, 54"); A(f"s_cbranch_scc1 {none}")
    A(f"s_mov_b64 s[{SR}:{SR+1}], s[88:89]"); A("s_cmp_lt_u32 s37, 74"); A(f"s_cselect_b32 s{RDS}, s{RDS}, {OOB}"); A(f"s_cselect_b32 s{SR+2}, 819200, 0")
    A("s_sub_u32 s37, s37, 54"); A(f"s_mul_i32 s{RSO}, s37, 40"); A("s_mul_i32 s39, s37, 160"); A(f"s_sub_u32 s39, s39, {16*160-16}")
    A("s_cmp_ge_u32 s37, 16"); A(f"s_cselect_b32 s{RSO}, s39, s{RSO}"); A(f"s_cselect_b32 s{RA}, 80, 20"); A("s_cselect_b32 s38, 16, 0")
    A(f"v_lshrrev_b32 v4, 4, {v(LANE)}"); A(f"v_mad_u32_u24 {v(t0)}, v4, s38, {v(t0)}")
    A(f"{none}:")
    A(f"s_mul_i32 s{RSO}, s{RSO}, 1280"); A(f"s_mul_i32 s39, s{W}, 320"); A(f"s_add_u32 s{RSO}, s{RSO}, s39"); A(f"s_mul_i32 s{RA}, s{RA}, 1280"); A(f"s_sub_u32 s{RBA}, 64, s{RA}")
    A(f"v_mul_u32_u24 {v(t0)}, 1280, {v(t0)}")
    A(f"{done}:")
    A(f"v_add_u32 {v(RLV)}, {v(t0)}, {v(t1)}")
def rl_dma(i):
    return [f"s_add_u32 m0, s{RLDS}, {i*1024}", f"s_add_u32 s{RSO}, s{RSO}, {'0' if i == 0 else 's%d' % (RA if i & 1 else RBA)}",
            f"buffer_load_dwordx4 {v(RLV)}, {S4(SR)}, s{RSO} offen lds"]
def rl_read(a_, hf): return [f"ds_read_b64_tr_b16 {v(RLF+8*(a_&1)+4*hf+2*q,2)}, {v(RLT)} offset:{2048*a_+256*q+8*hf}" for q in range(2)]
def rl_sum(a_, hf): return mf16(RLC+4*hf, RLO, RLF+8*(a_&1)+4*hf, "0" if a_ == 0 else None)
def rl_store(a_, hf): return [f"buffer_store_dwordx4 {v(RLF+8*(a_&1)+4*hf,4)}, {v(LV)}, {S4(SWS)}, s{RDS} offen sc1", f"s_add_u32 s{RDS}, s{RDS}, s{RDAH if hf else RDH}"]
def rl_cs(hf): return [f"buffer_store_dword {v(RLC+4*hf)}, {v(RLT+1)}, {S4(SWS)}, s{RCS} offen offset:{128*hf} sc1"]


TV = 249
SD = 52
def phase1(A, ST):
    rt, ct, wm, wn = 28, 29, 30, 31
    sox, sow, m0x, m0w, sst, srs = 32, 33, 34, 35, 46, 59
    t0, t1, t2, t3, nn, qq = 2, 3, 4, 5, 6, 7
    dmx, dmw, xa, wa, sa, rv, cv = 12, 16, 22, 24, 26, 30, 31
    CS, ACC, RS, OB = 32, 56, 148, 180
    FR = 256
    SL = 36864
    A("s_cmp_ge_u32 s2, 256"); A(f"s_cbranch_scc1 {K}_end")
    A("s_load_dwordx4 s[36:39], s[0:1], 0"); A("s_load_dwordx4 s[52:55], s[0:1], 64"); A("s_load_dwordx8 s[80:87], s[0:1], 32"); A("s_load_dwordx2 s[88:89], s[0:1], 16")
    A(f"v_lshrrev_b32 {v(t0)}, 6, v0"); A(f"v_and_b32 {v(LANE)}, 63, v0")
    A(f"v_readfirstlane_b32 s{W}, {v(t0)}")
    A(f"s_and_b32 s{GX}, s2, 7"); A(f"s_lshr_b32 s{GI}, s2, 3")
    A("s_getpc_b64 s[20:21]"); A(f"{K}_pc:")
    A(f"s_lshl_b32 s58, s{GI}, 2"); A(f"s_add_u32 s58, s58, s{W}"); A("s_lshl_b32 s58, s58, 7")
    A(f"v_and_b32 {v(PCV)}, 7, {v(LANE)}"); A(f"v_lshlrev_b32 {v(PCV)}, 14, {v(PCV)}"); A(f"v_add_u32 {v(PCV)}, s58, {v(PCV)}")
    A(f"v_min_u32 {v(PCV)}, {K}_end-{K}_pc, {v(PCV)}")
    A(CODE_TOUCH)
    A(f"v_lshrrev_b32 {v(qq)}, 4, {v(LANE)}"); A(f"v_and_b32 {v(nn)}, 15, {v(LANE)}")
    A("s_cmp_ge_u32 s2, 192"); A(f"s_cbranch_scc1 {K}_help")
    A(f"s_lshr_b32 s56, s{GX}, 2"); A(f"s_mul_i32 s{ct}, s56, 6"); A(f"s_lshr_b32 s57, s{GI}, 2"); A(f"s_add_u32 s{ct}, s{ct}, s57")
    A(f"s_and_b32 s57, s{GI}, 3"); A(f"s_and_b32 s56, s{GX}, 3"); A("s_lshl_b32 s56, s56, 2"); A(f"s_add_u32 s{rt}, s56, s57")
    A(f"v_and_b32 {v(t1)}, 7, {v(LANE)}"); A(f"v_xor_b32 {v(t1)}, {v(t1)}, {v(qq)}"); A(f"v_lshlrev_b32 {v(t1)}, 4, {v(t1)}")
    A(f"v_lshrrev_b32 {v(t2)}, 3, {v(LANE)}"); A(f"v_mul_u32_u24 {v(t2)}, 1280, {v(t2)}")
    A(f"v_add_u32 {v(dmx)}, {v(t1)}, {v(t2)}")
    A(f"v_xor_b32 {v(t1)}, 64, {v(t1)}"); A(f"v_add_u32 {v(t1)}, {v(t1)}, {v(t2)}"); A(f"v_add_u32 {v(dmx+1)}, 9216, {v(t1)}")
    A(f"v_add_u32 {v(dmx+2)}, {2*9216}, {v(dmx)}"); A(f"v_add_u32 {v(dmx+3)}, {2*9216}, {v(dmx+1)}")
    for i in range(5):
        A(f"v_add_u32 {v(t0)}, {64*i}, {v(LANE)}"); A(f"v_mul_u32_u24 {v(t1)}, 3277, {v(t0)}"); A(f"v_lshrrev_b32 {v(t1)}, 16, {v(t1)}")
        A(f"v_mul_u32_u24 {v(t2)}, 20, {v(t1)}"); A(f"v_sub_u32 {v(t0)}, {v(t0)}, {v(t2)}")
        if i == 2: A(f"v_lshrrev_b32 {v(t2)}, 2, {v(t1)}"); A(f"v_and_b32 {v(t2)}, 2, {v(t2)}"); A(f"v_xor_b32 {v(t0)}, {v(t0)}, {v(t2)}")
        elif i > 2: A(f"v_xor_b32 {v(t0)}, 2, {v(t0)}")
        A(f"v_mul_u32_u24 {v(t1)}, 3840, {v(t1)}"); A(f"v_lshl_add_u32 {v(dmw+i)}, {v(t0)}, 4, {v(t1)}")
        if i & 3: A(f"v_subrev_u32 {v(dmw+i)}, {1024*i}, {v(dmw+i)}")
    A(f"s_lshl_b32 s56, s{rt}, 2"); A(f"s_add_u32 s56, s56, s{W}"); A(f"s_mul_i32 s{sox}, s56, {32*1280}")
    A(f"s_mul_i32 s{sow}, s{W}, {16*3840}"); A(f"s_mul_i32 s57, s{ct}, 320"); A(f"s_add_u32 s{sow}, s{sow}, s57")
    A(f"s_lshl_b32 s{m0x}, s{W}, 12"); A(f"s_mul_i32 s{m0w}, s{W}, 5120")
    A("s_waitcnt lgkmcnt(0)")
    srd(A, SX, 36, 2621440); srd(A, SA, 38, 2457600)
    def dma(stage):
        o = (stage % 4)*SL
        dx = lambda b: f"buffer_load_dwordx4 {v(dmx+b)}, {S4(SX)}, s{sox} offen offset:{b*1024} lds"
        dw = lambda b: f"buffer_load_dwordx4 {v(dmw+b)}, {S4(SA)}, s{sow} offen offset:{(b&3)*1024} lds"
        return ([f"s_add_u32 m0, s{m0x}, {o}", f"s_add_u32 s{sow}, s{sow}, {64*3840 if stage else 0}"] + [dx(b) for b in range(4)] +
                [f"s_add_u32 m0, s{m0w}, {o+16384}", f"s_add_u32 s{sox}, s{sox}, 128"] + [dw(b) for b in range(4)] + [f"s_add_u32 m0, s{m0w}, {o+20480}", "s_nop 0", dw(4)])
    A.ext(dma(0))
    def common():
        srd(A, SWS, 54, WS_SIZE)
        A(f"s_mov_b32 s{SD+2}, 256"); A(f"s_mov_b32 s{SD+3}, 0x20000")
        A(f"v_lshlrev_b32 {v(TV)}, 7, {v(LANE)}"); A(f"v_lshlrev_b32 {v(LV)}, 4, {v(LANE)}"); A(f"v_lshlrev_b32 {v(L4V)}, 2, {v(LANE)}")
        A(f"s_mul_i32 s{GB}, s{GX}, {GS}"); A(f"s_cmp_eq_u32 s{W}, 0"); A(f"s_cselect_b32 s22, 0, {OOB}")
        A(f"s_getreg_b32 s{MYF}, hwreg(HW_REG_XCC_ID, 0, 4)"); A(f"s_add_u32 s{MYF}, s{MYF}, 1")
    common()
    ST.mark()
    A(f"s_and_b32 s{wm}, s{W}, 1"); A(f"s_lshr_b32 s{wn}, s{W}, 1")
    A(f"v_lshrrev_b32 {v(t0)}, 1, {v(nn)}"); A(f"v_xor_b32 {v(t0)}, {v(t0)}, {v(qq)}"); A(f"v_lshlrev_b32 {v(t0)}, 4, {v(t0)}")
    A(f"v_lshl_add_u32 {v(t0)}, {v(nn)}, 7, {v(t0)}"); A(f"s_lshl_b32 s56, s{wm}, 13"); A(f"v_add_u32 {v(xa)}, s56, {v(t0)}"); A(f"v_xor_b32 {v(xa+1)}, 64, {v(xa)}")
    A(f"v_lshrrev_b32 {v(t0)}, 2, {v(nn)}"); A(f"v_lshl_add_u32 {v(t1)}, {v(qq)}, 3, {v(t0)}"); A(f"v_mul_u32_u24 {v(t1)}, 320, {v(t1)}")
    A(f"v_and_b32 {v(t0)}, 3, {v(nn)}"); A(f"v_lshl_add_u32 {v(t1)}, {v(t0)}, 3, {v(t1)}"); A(f"s_mul_i32 s56, s{wn}, 160"); A("s_add_u32 s56, s56, 16384"); A(f"v_add_u32 {v(t1)}, s56, {v(t1)}")
    A(f"v_and_b32 {v(t0)}, 1, {v(qq)}"); A(f"s_lshl_b32 s56, s{wn}, 6"); A("s_sub_u32 s56, 32, s56"); A(f"v_mul_i32_i24 {v(t0)}, s56, {v(t0)}")
    A(f"v_add_u32 {v(wa)}, {v(t1)}, {v(t0)}"); A(f"v_sub_u32 {v(wa+1)}, {v(t1)}, {v(t0)}")
    A(f"s_lshl_b32 s41, s{rt}, 1"); A(f"s_add_u32 s41, s41, s{wm}")
    A(f"s_lshl_b32 s{srs}, s41, 8"); A(f"s_add_u32 s{srs}, s{srs}, {RS_OFF}"); A(f"s_add_u32 s43, s{srs}, 8192")
    A(f"s_lshl_b32 s40, s{ct}, 1"); A(f"s_add_u32 s40, s40, s{wn}")
    A(f"s_mul_i32 s44, s40, 320"); A(f"s_add_u32 s44, s44, {C1_OFF}")
    A(f"s_cmp_lt_u32 s{ct}, 4"); A(f"s_cselect_b32 s42, {hex(QSCALE)}, 1.0")
    A("s_and_b32 s56, s40, 7"); A("s_lshr_b32 s57, s40, 3"); A(f"s_mul_i32 s{sst}, s56, {GS}"); A(f"s_mul_i32 s58, s57, {K_OFF}"); A(f"s_add_u32 s{sst}, s{sst}, s58")
    A("s_mul_i32 s56, s56, 3"); A("s_add_u32 s56, s56, s57"); A("s_lshl_b32 s56, s56, 2"); A("s_lshr_b32 s57, s41, 3"); A("s_add_u32 s56, s56, s57"); A("s_lshl_b32 s56, s56, 5")
    A("s_and_b32 s57, s41, 7"); A("s_add_u32 s56, s56, s57"); A("s_lshl_b32 s56, s56, 2"); A(f"s_add_u32 s62, s56, {F1_OFF}")
    A(f"s_cmp_ge_u32 s{ct}, 8"); A(f"s_cbranch_scc1 {K}_v")

    def reads(stage):
        so = (stage & 1)*SL; f = FR + 72*(stage & 1)
        X = [[f"ds_read_b128 {r(f+8*xi+4*ks,4)}, {v(xa+ks)} offset:{so+2048*xi}" for ks in range(2)] for xi in range(4)]
        Wt = [[f"ds_read_b64_tr_b16 {r(f+32+8*wi+4*ks+2*h,2)}, {v(wa+(wi&1))} offset:{so+(32*ks+4*h)*320+32*wi}" for ks in range(2) for h in range(2)] for wi in range(5)]
        return Wt[0] + X[0] + X[1] + X[2] + X[3] + Wt[1] + Wt[2] + Wt[3] + Wt[4]
    flag = f"buffer_load_dword {v(t0)}, {v(L4V)}, {S4(SD)}, s22 offen sc1"
    def mainloop(isv):
        tag = "v" if isv else "q"
        if not isv:
            A("s_mul_i32 s56, s41, 5120"); A(f"s_add_u32 s{sst}, s{sst}, s56"); A(f"s_add_u32 s{sst+1}, s{sst}, 2560")
            A(f"s_add_u32 s{sst+2}, s{sst}, {163840+512}"); A(f"s_add_u32 s{sst+3}, s{sst+1}, {163840+512}")
            A(f"v_lshrrev_b32 {v(t0)}, 5, {v(LANE)}"); A(f"v_mul_u32_u24 {v(t0)}, {163840-2560}, {v(t0)}"); A(f"v_add_u32 {v(sa)}, {v(t0)}, {v(LV)}")
            A(f"v_lshlrev_b32 {v(rv)}, 2, {v(nn)}"); A(f"v_lshlrev_b32 {v(cv)}, 4, {v(qq)}")
        else:
            A("s_mul_i32 s56, s41, 10240"); A(f"s_add_u32 s{sst}, s{sst}, s56"); A(f"s_add_u32 s{sst+1}, s{sst}, 5120")
            A(f"v_mul_u32_u24 {v(t3)}, 1280, {v(qq)}"); A(f"v_lshl_add_u32 {v(sa)}, {v(nn)}, 4, {v(t3)}")
            A(f"v_lshlrev_b32 {v(rv)}, 4, {v(qq)}"); A(f"v_lshlrev_b32 {v(cv)}, 2, {v(nn)}")
        Q = VQ(); Q.add(0, dma(0))
        A.ext(Q.add(1, dma(1)))
        A.ext(Q.wait(0)); A("s_barrier"); ST.mark(2)
        A.ext(reads(0))
        BP = 8; FS = CFG.get("p1fs", 7)
        rsl = [f"buffer_load_dword{'x4' if isv else ''} {v(RS+16*k_+4*xi, 4 if isv else 1)}, {v(rv)}, {S4(SWS)}, s{43 if k_ else srs} offen offset:{64*xi} sc1" for k_ in range(2) for xi in range(4)]
        rsl += [f"buffer_load_dword{'' if isv else 'x4'} {v(CS+4*wi, 1 if isv else 4)}, {v(cv)}, {S4(SWS)}, s44 offen offset:{64*wi} sc1" for wi in range(5)]
        mf = []
        for st in range(10):
            f = FR + 72*(st & 1); X = lambda xi, ks: f+8*xi+4*ks; Wf = lambda wi, ks: f+32+8*wi+4*ks
            for wi in range(5):
                for xi in range(4):
                    for ks in range(2):
                        c0 = "0" if (st == 0 and ks == 0) else None
                        mf.append(mf16(ACC+16*wi+4*xi, X(xi, ks), Wf(wi, ks), c0) if isv else mf16(ACC+16*wi+4*xi, Wf(wi, ks), X(xi, ks), c0))
        T = TL(A, Q, mf)
        nonop = lambda L: [x for x in L if x != "s_nop 0"]
        for st in range(10):
            k0 = 40*st
            if 4*st in P1ST(): T.pre[k0].append(lambda i=3+P1ST().index(4*st): ST.mark(i))
            T.pre[k0].append("s_waitcnt lgkmcnt(15)"); T.pre[k0+BP].append("s_waitcnt lgkmcnt(0)")
            if st == 0:
                T.spread([(2, x) for x in dma(2)], 0, 0.8); T.spread([(3, x) for x in nonop(dma(3))], BP+2, 3.3)
            elif st+3 < 10: T.spread([(st+3, x) for x in nonop(dma(st+3))], k0+2, 4.3)
            if st == FS: T.post[k0+1].append(("f", flag))
            if st < 9:
                T.pre[k0+BP].append(("wait", st+1))
                if st == FS+1:
                    T.pre[k0+BP] += [("wait", "f"), f"v_or_b32 {v(t0)}, s{W}, {v(t0)}", f"v_cmp_eq_u32 vcc, 0, {v(t0)}", "s_nop 1", f"s_cbranch_vccnz {K}_rsspin{tag}", f"{K}_rsok{tag}:"]
                    T.spread([("rs", x) for x in rsl], k0+BP+1, 2.3)
                T.pre[k0+BP].append("s_barrier")
                T.spread([(None, x) for x in reads(st+1)], k0+BP, 31/28)
                if st & 1:
                    d = (2*SL if (st & 2) == 0 else -2*SL) & 0xffffffff
                    for j, x in enumerate(range(xa, xa+4)): T.valu[k0+3+j].append(f"v_add_u32 {v(x)}, {d}, {v(x)}")
        T.emit()
        ST.mark(3 + len(P1ST()))
        A.ext(Q.wait("rs"))
        if not isv:
            for xi in range(4): A(f"v_mul_f32 {v(RS+16+4*xi)}, s42, {v(RS+16+4*xi)}")
        n_ = 0
        for wi in range(5):
            for xp in range(2):
                o = OB + 4*(n_ % 4); n_ += 1
                for xi in (2*xp, 2*xp+1):
                    ac = ACC+16*wi+4*xi
                    for i in (0, 2):
                        if not isv: A(f"v_pk_fma_f32 {v(ac+i,2)}, {v(CS+4*wi+i,2)}, {v(RS+4*xi,2)}, {v(ac+i,2)} op_sel_hi:[1,0,1]")
                        else: A(f"v_pk_fma_f32 {v(ac+i,2)}, {v(RS+4*xi+i,2)}, {v(CS+4*wi,2)}, {v(ac+i,2)} op_sel_hi:[1,0,1]")
                for xi in (2*xp, 2*xp+1):
                    ac = ACC+16*wi+4*xi
                    for i in (0, 2):
                        if not isv: A(f"v_pk_mul_f32 {v(ac+i,2)}, {v(ac+i,2)}, {v(RS+16+4*xi,2)} op_sel_hi:[1,0]")
                        else: A(f"v_pk_mul_f32 {v(ac+i,2)}, {v(ac+i,2)}, {v(RS+16+4*xi+i,2)}")
                for i in range(2):
                    for j in range(2): A(f"v_cvt_pk_bf16_f32 {v(o+2*j+i)}, {v(ACC+16*wi+8*xp+4*j+2*i)}, {v(ACC+16*wi+8*xp+4*j+2*i+1)}")
                sw = "v_permlane32_swap_b32" if isv else "v_permlane16_swap_b32"
                A(f"{sw} {v(o)}, {v(o+2)}"); A("s_nop 0"); A(f"{sw} {v(o+1)}, {v(o+3)}")
                if isv: A(f"buffer_store_dwordx4 {v(o,4)}, {v(sa)}, {S4(SWS)}, s{sst+xp} offen offset:{256*wi} sc1")
                else: A(f"buffer_store_dwordx4 {v(o,4)}, {v(sa if wi == 2 else LV)}, {S4(SWS)}, s{sst+xp+2*(wi > 2)} offen offset:{1024*(wi if wi < 3 else wi-3)} sc1")
        COLD.append(lambda: (A(f"{K}_rsspin{tag}:"), poll(A, [flag], [t0], sleep=10), A(f"s_branch {K}_rsok{tag}")))
    mainloop(False)
    A(f"s_branch {K}_p1done")
    helper(A, ST, common, flag)
    A(f"{K}_v:")
    mainloop(True)
    A(f"{K}_p1done:")
    ST.n = 4 + len(P1ST())
    ST.mark()

def helper(A, ST, common, flag):
    hid, so, stp = 28, 32, 33
    nn, qq, sv = 6, 7, 12
    XB, SM, ONE = 64, 40, 32
    KS = CFG.get("hk", 1)
    A(f"{K}_help:")
    A(f"s_sub_u32 s{hid}, s2, 192")
    A(f"s_cmp_lt_u32 s{hid}, 32"); A("s_cselect_b32 s56, 1280, s56"); A("s_cselect_b32 s29, 1, 0")
    A("s_cmp_eq_u32 s29, 0"); A("s_cselect_b32 s56, 3840, s56")
    A(f"v_lshrrev_b32 v2, 3, {v(LANE)}"); A(f"v_and_b32 v3, 7, {v(LANE)}"); A("v_mul_u32_u24 v4, s56, v2"); A(f"v_lshl_add_u32 {v(sv)}, v3, 4, v4")
    A("s_lshl_b32 s57, s56, 3"); A(f"v_add_u32 {v(sv+1)}, s57, {v(sv)}")
    A(f"s_lshl_b32 s57, s56, 4"); A(f"s_mul_i32 s{so}, s57, s{W}")
    A(f"s_and_b32 s30, s{GX}, 3"); A("s_lshl_b32 s30, s30, 3"); A(f"s_lshr_b32 s57, s{hid}, 2"); A("s_and_b32 s57, s57, 7"); A("s_add_u32 s30, s30, s57")
    A(f"s_sub_u32 s31, s{hid}, 32"); A(f"s_mul_i32 s57, s30, {64*1280}"); A("s_lshl_b32 s58, s31, 7")
    A("s_cmp_eq_u32 s29, 0"); A("s_cselect_b32 s57, s58, s57"); A(f"s_cselect_b32 s{stp}, {64*3840}, s56"); A(f"s_add_u32 s{so}, s{so}, s57")
    A("s_cmp_eq_u32 s29, 1"); A(f"s_cselect_b32 s{stp}, 128, s{stp}")
    A(f"s_mul_i32 s57, s{stp}, {KS}"); A(f"s_add_u32 s{so}, s{so}, s57"); A(f"s_mul_i32 s34, s{stp}, -9")
    A("s_waitcnt lgkmcnt(0)")
    srd(A, SX, 36, 2621440)
    A("s_cmp_eq_u32 s29, 1"); A(f"s_cselect_b64 s[{SA}:{SA+1}], s[36:37], s[38:39]"); A(f"s_cselect_b32 s{SA+2}, s{SX+2}, 2457600"); A(f"s_mov_b32 s{SA+3}, 0x20000")
    A(f"s_cmp_lt_u32 s{hid}, 62"); A(f"s_cselect_b32 s{SA+2}, s{SA+2}, 0")
    Q = VQ()
    def xl(i):
        L = [f"buffer_load_dwordx4 {v(XB+4*i,4)}, {v(sv+(i&1))}, {S4(SA)}, s{so} offen"]
        if i & 1: L.append(f"s_add_u32 s{so}, s{so}, s{stp if i//2+KS != 9 else 34}")
        return L
    for i in range(10): A.ext(Q.add(("x", i), xl(i)))
    common()
    marks = list(range(1, 4 + len(P1ST())))
    def mk():
        if marks: ST.mark(marks.pop(0))
    mk()
    for i in range(4): A(f"v_mov_b32 {v(8+i)}, 0"); A(f"v_mov_b32 {v(ONE+i)}, 0x3f803f80")
    for i in range(8): A(f"v_mov_b32 {v(SM+i)}, 0")
    col, both = A.label("hcol"), A.label("hboth")
    def stats(proc, fin):
        Q2 = VQ(); Q2.q = list(Q.q)
        for i in range(10, 20): A.ext(Q2.add(("x", i), xl(i))); A.ext(Q2.wait(("x", i-10))); proc(i-10)
        for i in range(10, 20): A.ext(Q2.wait(("x", i))); proc(i)
        fin(Q2); return Q2
    A("s_cmp_eq_u32 s29, 0"); A(f"s_cbranch_scc1 {col}")
    def rproc(i):
        for j in range(4): A(f"v_dot2c_f32_bf16 {v(SM+2*(i&1))}, {v(ONE)}, {v(XB+4*i+j)}"); A(f"v_dot2c_f32_bf16 {v(SM+2*(i&1)+1)}, {v(XB+4*i+j)}, {v(XB+4*i+j)}")
    def rfin(Q2):
        A("s_nop 2")
        for mod in ("quad_perm:[1,0,3,2]", "quad_perm:[2,3,0,1]", "row_half_mirror"):
            for i in range(4): A(f"v_add_f32_dpp {v(SM+i)}, {v(SM+i)}, {v(SM+i)} {mod} row_mask:0xf bank_mask:0xf")
        A("v_cmp_eq_u32 vcc, 1, v3"); A(f"v_lshrrev_b32 v4, 3, {v(LANE)}"); A("v_lshl_add_u32 v4, v3, 3, v4")
        A(f"v_cndmask_b32 {v(SM)}, {v(SM)}, {v(SM+2)}, vcc"); A(f"v_cndmask_b32 {v(SM+1)}, {v(SM+1)}, {v(SM+3)}, vcc")
        A(f"v_mul_f32 {v(SM)}, {hex(f2u(-1/640))}, {v(SM)}"); A(f"v_mul_f32 {v(SM+1)}, {hex(f2u(1/640))}, {v(SM+1)}")
        A(f"v_fma_f32 {v(SM+1)}, -{v(SM)}, {v(SM)}, {v(SM+1)}"); A(f"v_max_f32 {v(SM+1)}, 0, {v(SM+1)}")
        A(f"v_add_f32 {v(SM+1)}, {hex(f2u(1e-5))}, {v(SM+1)}"); A(f"v_rsq_f32 {v(SM+1)}, {v(SM+1)}")
        A("v_lshlrev_b32 v4, 2, v4"); A(f"v_mov_b32 v5, {OOB}"); A("v_cmp_gt_u32 vcc, 2, v3"); A("s_lshl_b32 s57, s30, 2"); A(f"s_add_u32 s57, s57, s{W}"); A("v_cndmask_b32 v4, v5, v4, vcc")
        A("s_lshl_b32 s57, s57, 6"); A(f"s_add_u32 s57, s57, {RS_OFF}"); A("s_add_u32 s58, s57, 8192")
        A.ext(Q2.add("s", [f"buffer_store_dword {v(SM)}, v4, {S4(SWS)}, s57 offen sc1", f"buffer_store_dword {v(SM+1)}, v4, {S4(SWS)}, s58 offen sc1"]))
    stats(rproc, rfin)
    A(f"s_branch {both}")
    A(f"{col}:")
    def cproc(i):
        for j in range(4):
            A(f"v_lshlrev_b32 v16, 16, {v(XB+4*i+j)}"); A(f"v_and_b32 v17, 0xffff0000, {v(XB+4*i+j)}"); A(f"v_pk_add_f32 {v(SM+2*j,2)}, {v(SM+2*j,2)}, v[16:17]")
    def cfin(Q2):
        A("s_nop 1")
        for i in range(8): A(f"v_add_f32_dpp {v(SM+i)}, {v(SM+i)}, {v(SM+i)} row_ror:8 row_mask:0xf bank_mask:0xf")
        quad_sum(A, list(range(SM, SM+8)), list(range(16, 24)))
        EX = 147456
        A(f"s_lshl_b32 s57, s{W}, 8"); A(f"s_add_u32 s57, s57, {EX}"); A("v_lshl_add_u32 v4, v3, 5, s57")
        A(f"ds_write_b128 v4, {v(SM,4)}"); A(f"ds_write_b128 v4, {v(SM+4,4)} offset:16"); A(f"v_add_u32 v4, {EX}, {v(L4V)}")
        A("s_waitcnt lgkmcnt(0)"); A("s_barrier")
        for i in range(4): A(f"ds_read_b32 {v(16+i)}, v4 offset:{256*i}")
        A("s_lshl_b32 s57, s31, 8"); A(f"s_add_u32 s57, s57, {C1_OFF}"); A("s_add_u32 s57, s57, s22"); A(f"s_mov_b32 s58, {OOB}")
        A("s_waitcnt lgkmcnt(0)"); A("v_add_f32 v16, v16, v17"); A("v_add_f32 v18, v18, v19"); A("v_add_f32 v16, v16, v18")
        A.ext(Q2.add("s", [f"buffer_store_dword v16, {v(L4V)}, {S4(SWS)}, s57 offen sc1", f"buffer_store_dword v16, {v(L4V)}, {S4(SWS)}, s58 offen sc1"]))
    Q = stats(cproc, cfin)
    A(f"{both}:"); mk()
    A(f"s_lshr_b32 s57, s{W}, 1"); A(f"s_lshl_b32 s56, s{hid}, 1"); A("s_add_u32 s56, s56, s57"); A("s_mul_i32 s56, s56, 640"); A(f"s_add_u32 s56, s56, {F2_OFF}")
    A(f"s_bitcmp1_b32 s{W}, 0"); A(f"s_cselect_b32 s56, s56, {OOB}"); A(f"v_min_u32 v4, {39*16}, {v(LV)}")
    A(f"s_mul_i32 s57, s{hid}, 5120"); A(f"s_add_u32 s57, s57, {ONES_OFF}"); A(f"s_cmp_eq_u32 s{W}, 2"); A(f"s_cselect_b32 s57, s57, {OOB}"); A(f"v_and_b32 v5, 1, {v(LANE)}"); A("v_mul_u32_u24 v5, 2560, v5")
    A.ext(Q.add("s", [f"buffer_store_dwordx4 v[8:11], v4, {S4(SWS)}, s56 offen sc1", f"buffer_store_dwordx4 {v(ONE,4)}, v5, {S4(SWS)}, s57 offen sc1"]))
    A(f"s_lshl_b32 s35, s{hid}, 2"); A("s_add_u32 s35, s35, s22"); A("v_mov_b32 v16, 1")
    A.ext(Q.wait("s")); A("s_barrier")
    A.ext(Q.add("f", [f"buffer_store_dword v16, off, {S4(SD)}, s35 sc1"]))
    mk()
    def touch(S, i0, i1):
        A(f"s_cmp_eq_u32 s{W}, 1"); A("s_cselect_b64 s[56:57], s[82:83], s[80:81]"); A(f"s_cmp_eq_u32 s{W}, 2"); A("s_cselect_b64 s[56:57], s[84:85], s[56:57]")
        A("s_mov_b32 s36, 34560"); A(f"s_cmp_eq_u32 s{W}, 3"); A(f"s_cselect_b64 s[{S}:{S+1}], s[88:89], s[56:57]"); A("s_cselect_b32 s36, 12800, s36"); A(f"s_mov_b32 s{S+3}, 0x20000")
        A("s_sub_u32 s56, s2, 192"); A("s_mul_i32 s56, s56, s36"); A(f"s_add_u32 s{S+2}, s56, s36"); A(f"s_add_u32 s56, s56, {8192*i0}"); A(f"v_lshlrev_b32 v3, 7, {v(LANE)}")
        for it in range(i0, i1): A(f"buffer_load_dword v248, v3, {S4(S)}, s56 offen"); A("s_add_u32 s56, s56, 8192")
    H1 = CFG.get("ht1", 5)
    touch(SR, 0, H1)
    while marks: mk()
    def rest():
        A(f"{K}_help2:")
        touch(80, H1, CFG.get("ht", 5))
        A(flag); A("s_waitcnt vmcnt(0)"); A(f"v_or_b32 v2, s{W}, v2"); A("v_cmp_eq_u32 vcc, 0, v2"); A("s_nop 1")
        A(f"s_cbranch_vccz {K}_help3"); poll(A, [flag], [2], sleep=10); A(f"s_branch {K}_help3")
    COLD.append(rest)
    A(f"s_branch {K}_p1done")

def w3reg(f): return 256 + 192 + 4*f if f < 16 else 148 + 4*(f-16)
WV = 250
P3RES, P3CS = 184, 194
SK_WR, SK_RD, SK_RM = 242, 245, 246
def p3_wload(f):
    ks, u = divmod(f, 5)
    L = [f"buffer_load_dwordx4 {r(w3reg(f),4)}, {v(WV if u < 4 else WV+1)}, {S4(SWS)}, s44 offen offset:{1024*(u&3)} sc1"]
    if u == 4: L.append("s_add_u32 s44, s44, 40960" if ks != 3 else "s_mov_b32 s44, s78")
    return L
CMB = 86016

def TOUCHES(key="touch", dflt=""): return [(int(x.split(":")[0]), x.split(":")[1]) for x in str(CFG.get(key, dflt)).split(",") if x]
def gtouch(what):
    c, k_ = what[0], int(what[1:] or 0)
    if c == "u": return [f"s_mov_b64 s[{SR}:{SR+1}], s[86:87]", f"s_mov_b32 s{SR+2}, 2621440", f"buffer_load_dword v248, v147, {S4(SR)}, s90 offen offset:{1280*k_} sc1"]
    reg, vr, base = {"N": (76, TV, HH_OFF() + 3456*k_), "h": (90, 147, H_OFF()),
                     "s": (93, None, STAT_OFF), "g": (79, TV, WGU_OFF + 442368*k_), "d": (79, TV, WD_OFF + 442368*k_)}[c]
    return [f"s_add_u32 s91, s{reg}, {base}", f"buffer_load_dword v248, {v(vr) if vr else 'off'}, {S4(SWS)}, s91 {'offen' if vr else ''} sc1"]
def phase2(A, ST):
    odd, sok, sov, sox, redo, sob, sfr, stch = 28, 72, 73, 74, 32, 33, 34, 35
    S0, S1, P, E, O0 = 16, 48, 80, 96, 104
    kv, kxv, vv, ov, oxv, cw, cr, tv = 136, 137, 138, 139, 140, 141, 144, 145
    OA, QM, QX, KR, VR, XR = 256, 256+96, 256+128, 256+136, 256+152, 256+184
    Oreg = lambda lp: O0 if lp == 0 else OA + 32*(lp-1)
    t0, t1, t2, t3, t4 = 2, 3, 4, 5, 6
    LD = CFG.get("ld", "sc1")
    head, qb = 30, 31
    A(f"s_lshl_b32 s{head}, s{GX}, 2"); A(f"s_and_b32 s36, s{GI}, 3"); A(f"s_add_u32 s{head}, s{head}, s36"); A(f"s_lshr_b32 s{qb}, s{GI}, 2")
    A(f"s_and_b32 s{odd}, s{head}, 1")
    A(f"s_bfe_u32 s36, s{head}, 0x10001"); A("s_mul_i32 s37, s36, 163840"); A(f"s_add_u32 s37, s37, s{GB}")
    A(f"s_add_u32 s38, s37, {K_OFF}"); A(f"s_add_u32 s{SA}, s{SWS}, s38"); A(f"s_addc_u32 s{SA+1}, s{SWS+1}, 0"); A(f"s_mov_b32 s{SA+2}, 163840")
    A(f"s_mul_i32 s{sob}, s{qb}, {GS}"); A(f"s_lshl_b32 s36, s{head}, 9"); A(f"s_add_u32 s{sob}, s{sob}, s36")
    A(f"s_lshl_b32 s36, s{W}, 14"); A(f"s_add_u32 s63, s{sob}, s36"); A(f"s_add_u32 s63, s63, {OX_OFF}")
    A(f"s_lshl_b32 s36, s{W}, 16"); A(f"s_add_u32 s{sob}, s{sob}, s36"); A(f"s_add_u32 s{sob}, s{sob}, {O_OFF}")
    A(f"s_lshl_b32 s38, s{qb}, 2")
    for i in range(4):
        A(f"s_add_u32 s36, s{W}, {i}"); A("s_and_b32 s36, s36, 3")
        if i: A("s_mul_i32 s39, s36, 18432"); A(f"s_add_u32 s39, s39, {CMB+(i-1)*6144}"); A(f"v_add_u32 {v(cw+i-1)}, s39, {v(LV)}")
        else: A("s_mul_i32 s39, s36, 18432"); A(f"s_add_u32 s39, s39, {CMB}"); A(f"v_add_u32 {v(cr)}, s39, {v(LV)}")
        A("s_add_u32 s36, s36, s38"); A("s_mul_i32 s36, s36, 5120"); A(f"s_add_u32 s{40+i}, s36, s37")
    A(f"s_mul_i32 s36, s{odd}, 1536"); A(f"v_add_u32 {v(kv)}, s36, {v(LV)}")
    A(f"v_and_b32 {v(t0)}, 31, {v(LANE)}"); A(f"v_lshrrev_b32 {v(t1)}, 5, {v(LANE)}")
    A(f"s_lshl_b32 s36, s{odd}, 3"); A("s_add_u32 s37, s36, 1024")
    A(f"v_lshl_add_u32 {v(t4)}, {v(t0)}, 4, s37")
    A(f"v_mul_u32_u24 {v(t2)}, 2560, {v(t1)}"); A(f"v_add_u32 {v(kxv)}, {v(t4)}, {v(t2)}")
    A(f"v_bfe_u32 {v(t2)}, {v(LANE)}, 4, 1"); A(f"v_lshlrev_b32 {v(t2)}, 14, {v(t2)}"); A(f"v_and_b32 {v(t3)}, 15, {v(LANE)}"); A(f"v_lshl_add_u32 {v(t2)}, {v(t3)}, 4, {v(t2)}")
    A(f"v_lshl_add_u32 {v(ov)}, {v(t1)}, 8, {v(t2)}")
    A(f"v_lshrrev_b32 {v(t2)}, 2, {v(t0)}"); swap01(A, t3, t2, 7)
    A(f"v_and_b32 {v(t2)}, 3, {v(t0)}"); A(f"v_lshl_add_u32 {v(t2)}, {v(t3)}, 2, {v(t2)}")
    A(f"v_mul_u32_u24 {v(t3)}, 1280, {v(t1)}"); A(f"v_lshl_add_u32 {v(t2)}, {v(t2)}, 4, {v(t3)}")
    A(f"s_and_b32 s36, s{head}, 3"); A("s_mul_i32 s36, s36, 320"); A(f"v_add_u32 {v(t2)}, s36, {v(t2)}")
    A(f"v_mov_b32 {v(t3)}, {OOB}"); A(f"v_cmp_gt_u32 vcc, 20, {v(t0)}"); A("s_nop 1"); A(f"v_cndmask_b32 {v(t2)}, {v(t3)}, {v(t2)}, vcc")
    A(f"s_sub_u32 s36, {ONES_OFF-V_OFF}, s{GB}"); A(f"v_mov_b32 {v(t3)}, s36")
    A(f"v_cmp_eq_u32 vcc, 20, {v(t0)}"); A("s_nop 1"); A(f"v_cndmask_b32 {v(vv)}, {v(t2)}, {v(t3)}, vcc")
    A(f"s_mul_i32 s{sok}, s{W}, {16*2560}"); A(f"s_mov_b32 s{sox}, s{sok}")
    A(f"s_mul_i32 s36, s{W}, {16*5120}"); A(f"s_add_u32 s{sov}, s{GB}, s36"); A(f"s_add_u32 s{sov}, s{sov}, {V_OFF}")
    A(f"s_mov_b32 s{redo}, 0"); A("v_mov_b32 v10, 1")
    def setflag():
        lab = A.label("noflag"); A("s_cmp_ge_u32 s2, 192"); A(f"s_cbranch_scc1 {lab}")
        A("s_waitcnt vmcnt(0)"); A(f"buffer_store_dword v10, off, {S4(SWS)}, s62 sc1"); A(f"{lab}:"); ST.mark()
    if CFG.get("fpos", 1) == 0: setflag()
    A(f"s_bfe_u32 s36, s{GI}, 0x10002"); A("s_lshl_b32 s37, s36, 10"); A(f"v_add_u32 {v(WV)}, s37, {v(LV)}")
    A("s_xor_b32 s36, s36, 1"); A("s_lshl_b32 s37, s36, 12"); A(f"v_add_u32 {v(WV+1)}, s37, {v(LV)}")
    A(f"s_lshr_b32 s36, s{GI}, 2"); A("s_mul_i32 s36, s36, 5120"); A(f"s_mul_i32 s44, s{W}, {4*40960}"); A("s_add_u32 s44, s44, s36"); A(f"s_add_u32 s44, s44, {WO_OFF}")
    A(f"s_mul_i32 s78, s{W}, 40960"); A("s_add_u32 s78, s78, s36"); A(f"s_add_u32 s78, s78, {WO_OFF+16*40960}")
    skinny_addr(A); p4_setup(A)
    A(f"s_lshl_b32 s75, s{P4_ST}, 7"); A(f"s_add_u32 s75, s75, {CS_OFF}"); A("v_lshlrev_b32 v146, 2, v0")
    if CFG.get("fpos", 1) == 1: setflag()
    relayout_setup(A)
    A(f"s_lshl_b32 s36, s{GX}, 5"); A(f"s_add_u32 s36, s36, s{GI}"); A("s_lshl_b32 s36, s36, 2"); A(f"s_add_u32 s36, s36, s{W}")
    A(f"s_lshl_b32 s{sfr}, s2, 5"); A(f"s_add_u32 s{sfr}, s{sfr}, s{W}"); A(f"s_lshl_b32 s{sfr}, s{sfr}, 2"); A(f"s_add_u32 s{sfr}, s{sfr}, {FR_OFF}")
    A(f"s_lshl_b32 s77, s{GX}, 7"); A(f"s_add_u32 s77, s77, {FR_OFF}"); A(f"s_lshl_b32 s101, s{W}, 13"); A(f"s_add_u32 s101, s101, {FR_OFF}")
    A(f"v_mov_b32 v11, {v(TV)}"); A(f"v_and_b32 v8, 31, {v(LANE)}"); A("v_lshlrev_b32 v8, 10, v8")
    A("s_lshl_b32 s93, s36, 7"); A("s_and_b32 s36, s36, 127"); A("s_mul_i32 s79, s36, 3456")
    A("s_mul_i32 s76, s36, 6912"); A(f"s_add_u32 s76, s76, s{GB}"); A("s_mul_i32 s90, s36, 2560"); A(f"s_add_u32 s90, s90, s{GB}")
    A(f"v_min_u32 v147, {19*128}, {v(TV)}"); A(f"v_min_u32 {v(TV)}, {26*128}, {v(TV)}"); A(f"v_mov_b32 v7, s{MYF}")
    A(f"s_lshl_b32 s38, s{qb}, 2"); A(f"s_add_u32 s38, s38, s{W}"); A("s_lshl_b32 s38, s38, 2"); A(f"s_lshr_b32 s39, s{head}, 3"); A("s_add_u32 s38, s38, s39"); A("s_lshl_b32 s38, s38, 5")
    A(f"s_and_b32 s39, s{head}, 7"); A("s_add_u32 s38, s38, s39"); A("s_lshl_b32 s38, s38, 2"); A(f"s_add_u32 s38, s38, {F2_OFF}")
    A(f"s_add_u32 s39, s{sob}, 32768")
    A(f"v_min_u32 v2, 23, {v(LANE)}"); A("v_lshrrev_b32 v3, 3, v2"); A("v_and_b32 v4, 7, v2"); A("v_lshlrev_b32 v3, 9, v3"); A("v_lshl_add_u32 v3, v4, 2, v3"); A(f"s_lshl_b32 s36, s{W}, 7"); A("v_add_u32 v3, s36, v3")
    A(f"s_lshr_b32 s36, s{qb}, 1"); A("s_lshl_b32 s36, s36, 7"); A(f"s_and_b32 s37, s{qb}, 1"); A("s_lshl_b32 s37, s37, 4"); A("s_add_u32 s36, s36, s37")
    A("v_and_b32 v4, 3, v2"); A("v_cmp_gt_u32 vcc, 8, v2"); A("v_lshl_add_u32 v4, v4, 2, s36"); A(f"s_mul_i32 s59, s{GX}, 1536"); A(f"v_cndmask_b32 {v(tv)}, v3, v4, vcc"); A(f"s_add_u32 s59, s59, {F1_OFF}")
    w5_setup(A)
    if CFG.get("fpos", 1) == 2: setflag()
    A("s_cmp_ge_u32 s2, 192"); A(f"s_cbranch_scc1 {K}_help2"); A(f"{K}_help3:")
    A("s_barrier")
    f1l = [f"buffer_load_dword v4, {v(tv)}, {S4(SWS)}, s59 offen sc1"]
    poll(A, f1l, [4], sleep=CFG.get("f1s", 1))
    ST.mark()
    Kr = lambda t: KR + 4*(t % 4)
    Vr = lambda t, sx: VR + 8*(t % 4) + 4*sx
    Xr = lambda j: XR + 2*(j % 2)
    def ldk(t): return [f"buffer_load_dwordx4 {r(Kr(t),4)}, {v(kv)}, {S4(SA)}, s{sok} offen offset:{2560*(t&1)} {LD}"] + ([f"s_add_u32 s{sok}, s{sok}, 5120"] if t & 1 else [])
    def ldx(j): return [f"buffer_load_dwordx2 {r(Xr(j),2)}, {v(kxv)}, {S4(SA)}, s{sox} offen sc1", f"s_add_u32 s{sox}, s{sox}, 5120"]
    def ldv(t, sx): return [f"buffer_load_dwordx4 {r(Vr(t,sx),4)}, {v(vv)}, {S4(SWS)}, s{sov} offen offset:{2560*sx} {LD}"] + ([f"s_add_u32 s{sov}, s{sov}, 5120"] if sx else [])
    def ldq(lp): return ([f"buffer_load_dwordx2 {r(QX+2*lp,2)}, {v(kxv)}, {S4(SWS)}, s{40+lp} offen sc1"] +
                         [f"buffer_load_dwordx4 {r(QM+8*lp+4*j,4)}, {v(kv)}, {S4(SWS)}, s{40+lp} offen offset:{2560*j} sc1" for j in range(2)])
    Q = VQ()
    order = (1, 2, 3, 0)
    NT = CFG.get("tail", 3)
    seq = [(t, lp) for t in range(16-NT) for lp in order] + [(t, lp) for lp in order for t in range(16-NT, 16)]
    first = [(("x", 0), ldx(0)), (("k", 0), ldk(0)), (("q", 1), ldq(1)), (("q", 2), ldq(2)), (("v", 0, 0), ldv(0, 0)), (("v", 0, 1), ldv(0, 1)), (("q", 3), ldq(3)), (("q", 0), ldq(0))]
    U0 = CFG.get("au", 6)
    for tag, ops in first[:U0]: A.ext(Q.add(tag, ops))
    side = {b: [] for b in range(64)}
    fix = {(b, k): [] for b in range(64) for k in range(8)}
    def put(b, tag, ops): side[b] += [(tag, x) for x in ops]
    put(0, ("k", 1), ldk(1)); put(0, ("v", 1, 0), ldv(1, 0)); put(1, ("v", 1, 1), ldv(1, 1)); put(1, ("x", 1), ldx(1)); put(2, ("k", 2), ldk(2))
    put(2, ("v", 2, 0), ldv(2, 0)); put(3, ("v", 2, 1), ldv(2, 1)); put(3, ("k", 3), ldk(3)); put(4, ("v", 3, 0), ldv(3, 0)); put(4, ("v", 3, 1), ldv(3, 1))
    for t in range(12):
        d = 2*(t == 0)
        put(4*t+3+d, ("k", t+4), ldk(t+4)); put(4*t+4+d, ("v", t+4, 0), ldv(t+4, 0)); put(4*t+5+d, ("v", t+4, 1), ldv(t+4, 1))
    for j in range(6): put(8*j+6, ("x", j+2), ldx(j+2))
    for b in (10, 26, 42, 54): put(b, "pc", [CODE_TOUCH])
    mid = {b: [] for b in range(64)}
    B0, SP, B1, SS = CFG.get("b0", 3), CFG.get("rsp", 1), CFG.get("b1", 10), CFG.get("rss", 3)
    for i in range(10): put(B0+SP*i, ("rd", i), rl_dma(i))
    for a_ in range(5):
        b_ = B1 + SS*a_
        assert b_ > B0+SP*(2*a_+1)
        put(b_, None, [("wait", ("rd", 2*a_+1))] + rl_read(a_, 0) + rl_read(a_, 1))
        put(b_+1, "rs", ["s_waitcnt lgkmcnt(0)"] + rl_store(a_, 0)); put(b_+2, "rs", rl_store(a_, 1)); mid[b_+1] += [rl_sum(a_, 0), rl_sum(a_, 1)]
    put(b_+2, "rs", rl_cs(0) + rl_cs(1))
    B2 = b_ + 2 + CFG.get("b2", 3)
    put(B2, "fr", [("wait", "rs"), f"buffer_store_dword v7, off, {S4(SWS)}, s{sfr} sc1"])
    BR = B2 + CFG.get("b3", 5); BQ = BR + 4
    frl = [f"buffer_load_dwordx4 {v(RLF,4)}, v11, {S4(SWS)}, s101 offen sc1"]
    put(BR, "frl", frl)
    chk = [f"v_min3_u32 {v(RLF)}, {v(RLF)}, {v(RLF+1)}, {v(RLF+2)}", f"v_min_u32 {v(RLF)}, {v(RLF)}, {v(RLF+3)}", f"v_cmp_eq_u32 vcc, 0, {v(RLF)}"]
    put(BR+3, None, [("wait", "frl")] + chk + ["s_nop 0", f"s_cbranch_vccnz {K}_frspin", f"{K}_frok:", "s_barrier"])
    put(BQ, "grp", [f"buffer_load_dword v9, v8, {S4(SWS)}, s77 offen sc1"])
    put(BQ+4, None, [("wait", "grp"), "v_cmp_ne_u32 vcc, v7, v9", "s_nop 0", "s_cmp_eq_u64 vcc, 0", f"s_cselect_b32 s{MODE}, {0 if CFG.get('safe') else 1}, 0"])
    put(BQ+5, None, [f"s_cmp_eq_u32 s{MODE}, 0", f"s_cselect_b32 s{stch}, {OOB}, 0", f"s_add_u32 s76, s76, s{stch}", f"s_add_u32 s90, s90, s{stch}", f"s_add_u32 s93, s93, s{stch}"])
    pf = [x for st_ in range(3) for x in p4_dma(st_)]
    pf += [x for kq in range(4) for x in (f"buffer_load_dword {v(P3CS+kq)}, v146, {S4(SWS)}, s75 offen sc1", f"s_add_u32 s75, s75, {108*128}")]
    pf += io_rm("load", P3RES, SX)
    pf += [x for f in range(25) for x in p3_wload(f)]
    for b_, what in TOUCHES():
        assert b_ > BQ+5; put(b_, "t", gtouch(what))
    PE = CFG.get("pfe", 57); nreal = sum(not is_salu(x) for x in pf)
    bl = [b for b in range(BR+4, PE) if b not in (BQ+4, BQ+5)]
    for i, b in enumerate(bl):
        take = -(-nreal//(len(bl)-i))
        while pf and take > 0:
            x = pf.pop(0); put(b, "pf", [x])
            if not is_salu(x): take -= 1; nreal -= 1
    cwr = lambda lp: [f"ds_write_b128 {v(cw+lp-1)}, {r(Oreg(lp)+16*j+4*g,4)} offset:{3072*j+1024*g}" for j in range(2) for g in range(3)]
    E0 = 64 - 3*NT
    for n in range(3):
        b0 = E0 + NT*n
        for x, pos in zip(cwr(order[n]), [(b0, 3), (b0, 5), (b0, 7), (b0+1, 3), (b0+1, 5), (b0+1, 7)]): fix[pos].append(x)
    for f in range(CFG["w5z"]):
        b_ = E0 + NT*(f//8) + 2 + ((f % 8)*3)//8
        if f % 8 == 0: fix[(b_, 2)].append("s_waitcnt lgkmcnt(0)")
        put(b_, "w5", w5load(f))
    nxt63 = S0
    CB = [[204+4*i for i in range(6)], [nxt63+4*i for i in range(6)], [228, 232, 236, 200, nxt63+24, nxt63+28]]
    crd = lambda sl: [f"ds_read_b128 {v(CB[sl][3*j+g],4)}, {v(cr)} offset:{6144*sl+3072*j+1024*g}" for j in range(2) for g in range(3)]
    fix[(63, 2)] += ["s_waitcnt lgkmcnt(0)", "s_barrier"] + crd(0)
    fix[(63, 3)] += crd(1); fix[(63, 6)] += crd(2)
    A.ext(Q.wait(("q", 1)))
    A(mf2b(S0, Xr(0), QX+2, "0", 0))
    n0 = len(A.L)
    for tag, ops in first[U0:]: A.ext(Q.add(tag, ops))
    n0 = 18 - (len(A.L) - n0)
    if n0 > 16: A("s_nop 1"); n0 -= 2
    A(f"s_nop {n0-1}")
    A(mf32(S0, Kr(0), QM+8)); A(mf32(S0+16, Kr(0), QM+12))
    A.ext(Q.wait(("q", 2)))
    ST.mark()
    A("s_nop 9"); A(".p2align 3")
    def needs(b, k):
        if b > 63: return []
        t = seq[b][0]; t1_, lp1 = seq[min(b+1, 63)]
        if k == 0: return [("x", t1_ >> 1), ("q", lp1)] if b < 63 else []
        if k == 4: return [("k", t1_)] if b < 63 else []
        if k == 3: return [("v", t, 0)]
        if k == 6: return [("v", t, 1)]
        return []
    ismem = lambda x: not (isinstance(x, tuple) or is_salu(x) or x.startswith("v_") or x.endswith(":"))
    for b in range(64):
        t, lp = seq[b]
        cur, nxt = (S0, S1) if b % 2 == 0 else (S1, S0)
        c0 = "0" if t == 0 else None
        mf = {3: mf32(Oreg(lp), Vr(t, 0), P, c0), 6: mf32(Oreg(lp), Vr(t, 1), P+4), 7: mf32(Oreg(lp)+16, Vr(t, 0), P+8, c0)}
        if b: mf[2] = mf32(Oreg(seq[b-1][1])+16, Vr(seq[b-1][0], 1), P+12)
        if b < 63:
            t1_, lp1 = seq[b+1]
            mf[0] = mf2b(nxt, Xr(t1_ >> 1), QX+2*lp1, "0", t1_ & 1); mf[4] = mf32(nxt, Kr(t1_), QM+8*lp1); mf[5] = mf32(nxt+16, Kr(t1_), QM+8*lp1+4)
        q = side[b]; mq = list(mid[b])
        if b in ASTAMPS(): ST.mark()
        for k in range(8):
            if k in mf: A(mf[k])
            n0 = len(A.L)
            if k >= 2:
                tags = needs(b, k+1) if k < 7 else needs(b+1, 0)
                w_ = Q.wait(*tags) if tags else []
                A.ext(w_); A.ext(fix[(b, k)])
                free = not w_ and not fix[(b, k)]; nmem = 0
                left = sum(1 for tg, x in q if ismem(x))
                even = len([j for j in range(k, 8) if j % 2 == 0])
                want = (1 if k % 2 == 0 else 0) if left <= even else -(-left//(8-k))
                while q:
                    tg, x = q[0]
                    if isinstance(x, tuple):
                        if not free and k < 7: break
                        q.pop(0); w_ = Q.wait(x[1]); A.ext(w_); free = free and not w_
                    elif x.endswith(":") or x.startswith("v_"): q.pop(0); A(x); free = False; nmem = 99 if k < 7 else nmem
                    elif is_salu(x):
                        if not free and k < 7 and len(q) <= 2*(7-k): break
                        q.pop(0); A(x); free = False
                    else:
                        if nmem >= want and k < 7: break
                        q.pop(0); A.ext(Q.add(tg, [x])); nmem += 1; free = False
            four = sum(1 for x in A.L[n0:] if isize(x) == 4)
            pk = (k-1) % 8; eb = E + 4*(pk & 1)
            if b or k:
                for j in range(2): A(f"v_cvt_pk_bf16_f32 {v(P+2*pk+j)}, {v(eb+2*j)}, {v(eb+2*j+1)}")
            for j in range(4):
                wide = j == 0 and four % 2 == 1
                A(f"v_exp_f32{'_e64' if wide else ''} {v(E+4*(k&1)+j)}, {v(cur+4*k+j)}")
                if j == 1 and k >= 3 and mq and not any(x == "s_waitcnt lgkmcnt(0)" for _, x in q): A(mq.pop(0))
        assert not q and not mq, (b, q)
    for j in range(2): A(f"v_cvt_pk_bf16_f32 {v(P+14+j)}, {v(E+4+2*j)}, {v(E+5+2*j)}")
    A("s_waitcnt lgkmcnt(0)"); A("s_nop 0")
    A(mf32(O0+16, Vr(15, 1), P+12))
    ST.mark()
    for j in range(2):
        for g in range(3):
            for i in range(4): A(f"v_add_f32 {v(CB[0][3*j+g]+i)}, {v(CB[0][3*j+g]+i)}, {v(CB[1][3*j+g]+i)}") if (j == 0 and g < 2) else None
            if not (j == 0 and g < 2):
                for i in (0, 2): A(f"v_pk_add_f32 {v(CB[0][3*j+g]+i,2)}, {v(CB[0][3*j+g]+i,2)}, {v(CB[1][3*j+g]+i,2)}")
    for sl in (0, 2):
        for j in range(2):
            for g in range(3):
                for i in (0, 2): A(f"v_pk_add_f32 {v(O0+16*j+4*g+i,2)}, {v(O0+16*j+4*g+i,2)}, {v(CB[sl][3*j+g]+i,2)}")
    A(f"{K}_anorm:")
    A(f"v_mov_b32 v12, {v(O0+8)}"); A(f"v_mov_b32 v13, {v(O0+8)}"); A(f"v_mov_b32 v14, {v(O0+24)}"); A(f"v_mov_b32 v15, {v(O0+24)}")
    A(f"s_mov_b32 s36, {hex(f2u(2.0**60))}"); A(f"s_mov_b32 s37, {hex(f2u(2.0**-60))}")
    A("v_permlane32_swap_b32 v12, v13"); A("v_permlane32_swap_b32 v14, v15"); A("s_nop 1")
    A("v_rcp_f32 v12, v13"); A("v_rcp_f32 v14, v15")
    A("v_cmp_nlt_f32_e64 vcc, v13, s36"); A("v_cmp_nlt_f32_e64 s[40:41], v15, s36"); A("v_cmp_ngt_f32_e64 s[42:43], v13, s37"); A("v_cmp_ngt_f32_e64 s[56:57], v15, s37")
    A("s_or_b64 vcc, vcc, s[40:41]"); A("s_or_b64 vcc, vcc, s[42:43]"); A("s_or_b64 vcc, vcc, s[56:57]"); A(f"s_cbranch_scc1 {K}_aslow")
    A(f"{K}_afin:")
    for j in range(2):
        for i in range(0, 12, 2): A(f"v_pk_mul_f32 {v(O0+16*j+i,2)}, {v(O0+16*j+i,2)}, {v(12+2*j,2)} op_sel_hi:[1,0]")
        for i in range(6): A(f"v_cvt_pk_bf16_f32 {v(S0+4*j+i if i < 4 else S0+8+2*j+i-4)}, {v(O0+16*j+2*i)}, {v(O0+16*j+2*i+1)}")
    def stores(fl):
        return ([f"buffer_store_dwordx4 {v(S0+4*j,4)}, {v(ov)}, {S4(SWS)}, s{sob if j == 0 else 39} offen {fl}" for j in range(2)] +
                ["s_mov_b32 exec_hi, 0", f"buffer_store_dwordx4 {v(S0+8,4)}, {v(LV)}, {S4(SWS)}, s63 offen {fl}"])
    A.ext(stores("sc1")); A("s_mov_b64 exec, -1")
    for f in range(CFG["w5z"], CFG["w5a"]): A.ext(w5load(f))
    late_setup(A); A("v_mov_b32 v240, 1")
    A(f"s_waitcnt vmcnt({CFG['w5a']-CFG['w5z']})"); A(f"buffer_store_dword v10, off, {S4(SWS)}, s38 sc1")
    ST.mark()
    def cold():
        A(f"{K}_frspin:"); poll(A, frl, list(range(RLF, RLF+4)), sleep=8); A(f"s_branch {K}_frok")
        NM = S1
        A(f"{K}_aslow:")
        A(f"s_cmp_lg_u32 s{redo}, 0"); A(f"s_cbranch_scc1 {K}_afin")
        A(f"s_mov_b32 s{redo}, 1"); A(f"s_mov_b32 s{sok}, 0"); A(f"s_mov_b32 s{sox}, 0")
        A("v_mov_b32 v12, 0xff800000"); A("v_mov_b32 v13, 0xff800000")
        def scores(e, c):
            A(mf2b(S0, Xr(0), QX, c, e)); A("s_nop 15"); A("s_nop 1")
            A(mf32(S0, Kr(e), QM)); A(mf32(S0+16, Kr(e), QM+4)); A("s_nop 11")
        A(f"{K}_mloop:")
        A.ext(ldx(0) + ldk(0) + ldk(1)); A("s_waitcnt vmcnt(0)")
        for e in range(2):
            scores(e, "0")
            for j in range(2):
                for i in range(0, 16, 2): A(f"v_max3_f32 {v(12+j)}, {v(12+j)}, {v(S0+16*j+i)}, {v(S0+16*j+i+1)}")
        A(f"s_cmp_lt_u32 s{sok}, 163840"); A(f"s_cbranch_scc1 {K}_mloop")
        A("v_mov_b32 v14, v12"); A("v_mov_b32 v15, v13"); A("s_nop 1")
        A("v_permlane32_swap_b32 v12, v14"); A("v_permlane32_swap_b32 v13, v15"); A("s_nop 1")
        A("v_max_f32 v12, v12, v14"); A("v_max_f32 v13, v13, v15")
        for i in range(32): A(f"v_sub_f32 {v(NM+i)}, 0, {v(12+i//16)}"); A(f"v_mov_b32 {v(O0+i)}, 0")
        A(f"s_mov_b32 s{sok}, 0"); A(f"s_mov_b32 s{sox}, 0"); A(f"s_add_u32 s{sov}, s{GB}, {V_OFF}")
        A(f"{K}_sloop:")
        A.ext(ldx(0) + ldk(0) + ldk(1) + ldv(0, 0) + ldv(0, 1) + ldv(1, 0) + ldv(1, 1)); A("s_waitcnt vmcnt(0)")
        for e in range(2):
            scores(e, NM)
            for i in range(32): A(f"v_exp_f32 {v(S0+i)}, {v(S0+i)}")
            A("s_nop 0")
            for i in range(16): A(f"v_cvt_pk_bf16_f32 {v(P+i)}, {v(S0+2*i)}, {v(S0+2*i+1)}")
            A("s_nop 1")
            for j in range(2):
                for sx in range(2): A(mf32(O0+16*j, Vr(e, sx), P+8*j+4*sx))
        A(f"s_cmp_lt_u32 s{sok}, 163840"); A(f"s_cbranch_scc1 {K}_sloop")
        A("s_nop 15")
        A(f"s_branch {K}_anorm")
    return cold

RED = 86016
CSL = 147456
P4_SOW, P4_SOW2, P4_M0, P4_ST = 45, 46, 47, 48
class VQ:
    def __init__(self): self.q = []; self.done = 0
    def add(self, tag, ops):
        self.q += [tag for x in ops if x.startswith(("buffer", "global"))]
        assert len(self.q) - self.done <= 63, "too many outstanding"
        return ops
    def wait(self, *tags):
        idx = [i for i, x in enumerate(self.q) if x in tags]
        last = max(idx) + 1
        if last <= self.done: return []
        self.done = last
        return [f"s_waitcnt vmcnt({len(self.q) - last})"]

def p4_setup(A):
    A(f"s_lshr_b32 s36, s{GI}, 1"); A("s_mul_i32 s36, s36, 7"); A(f"s_min_u32 s{P4_ST}, s36, 101")
    A(f"s_mul_i32 s{P4_M0}, s{W}, 7168"); A(f"s_lshl_b32 s36, s{P4_ST}, 11"); A(f"s_add_u32 s36, s36, s{P4_M0}")
    A(f"s_lshr_b32 s37, s{W}, 1"); A(f"s_mul_i32 s37, s37, {221184-14336}"); A("s_add_u32 s36, s36, s37")
    A(f"s_add_u32 s{P4_SOW}, s36, {WGU_OFF}")
def p4_dma(stage):
    slot = stage % 5
    dw = lambda j: f"buffer_load_dwordx4 {v(LV)}, {S4(SWS)}, s{P4_SOW if j < 4 else P4_SOW2} offen offset:{(j&3)*1024} sc1 lds"
    return ([f"s_add_u32 m0, s{P4_M0}, {slot*28672}", f"s_add_u32 s{P4_SOW2}, s{P4_SOW}, 4096"] + [dw(j) for j in range(4)] +
            [f"s_add_u32 m0, s{P4_M0}, {slot*28672+4096}", f"s_add_u32 s{P4_SOW}, s{P4_SOW}, {2*221184}"] + [dw(j) for j in range(4, 7)])

def skinny_addr(A):
    for i in range(1, 4):
        A(f"s_add_u32 s36, s{W}, {i}"); A("s_and_b32 s36, s36, 3"); A("s_mul_i32 s36, s36, 15360"); A(f"s_add_u32 s36, s36, {RED+(i-1)*5120}"); A(f"v_add_u32 {v(SK_WR+i-1)}, s36, {v(LV)}")
    A(f"s_mul_i32 s36, s{W}, 15360"); A(f"s_add_u32 s36, s36, {RED}"); A(f"v_add_u32 {v(SK_RD)}, s36, {v(LV)}")
    A(f"v_and_b32 v2, 15, {v(LANE)}"); A(f"v_lshrrev_b32 v3, 4, {v(LANE)}")
    A("v_mul_u32_u24 v2, 1280, v2"); A(f"v_lshl_add_u32 {v(SK_RM)}, v3, 4, v2")
    A(f"s_lshl_b32 s49, s{GX}, 2"); A(f"s_and_b32 s36, s{GI}, 3"); A("s_add_u32 s49, s49, s36"); A("s_lshl_b32 s49, s49, 2"); A(f"s_add_u32 s49, s49, s{W}")
    A("s_mul_i32 s50, s49, 20480"); A(f"s_lshr_b32 s36, s{GI}, 3"); A("s_mul_i32 s37, s36, 320"); A("s_add_u32 s51, s50, s37")
    A("s_mul_i32 s37, s36, 5120"); A("s_add_u32 s50, s50, s37"); A(f"s_mul_i32 s37, s{GX}, {GS-327680}"); A("s_add_u32 s50, s50, s37"); A(f"s_add_u32 s50, s50, {H_OFF()}")
    A(f"s_bfe_u32 s36, s{GI}, 0x10002"); A("s_lshl_b32 s37, s36, 3")
    A("s_add_u32 s60, s50, s37"); A("s_add_u32 s60, s60, 2048"); A("s_add_u32 s61, s51, s37"); A("s_add_u32 s61, s61, 128")
    A("s_mul_i32 s37, s36, 3072"); A("s_add_u32 s50, s50, s37"); A("s_mul_i32 s37, s36, 192"); A("s_add_u32 s51, s51, s37")
def io_frag(op, regs, fl):
    return [f"buffer_{op}_dwordx4 {v(regs,4)}, {v(LV)}, {S4(SWS)}, s50 offen {fl}", f"buffer_{op}_dwordx4 {v(regs+4,4)}, {v(LV)}, {S4(SWS)}, s50 offen offset:1024 {fl}",
            f"buffer_{op}_dwordx2 {v(regs+8,2)}, {v(LV)}, {S4(SWS)}, s60 offen {fl}"]
def io_rm(op, regs, S):
    return [f"buffer_{op}_dwordx4 {v(regs,4)}, {v(SK_RM)}, {S4(S)}, s51 offen", f"buffer_{op}_dwordx4 {v(regs+4,4)}, {v(SK_RM)}, {S4(S)}, s51 offen offset:64",
            f"buffer_{op}_dwordx2 {v(regs+8,2)}, {v(SK_RM)}, {S4(S)}, s61 offen"]
def unpack(A, dst, src, n):
    for i in range(n): A(f"v_lshlrev_b32 {v(dst+2*i)}, 16, {v(src+i)}"); A(f"v_and_b32 {v(dst+2*i+1)}, 0xffff0000, {v(src+i)}")
def reduce_tail(A, ACC, rd):
    A("s_waitcnt lgkmcnt(0)"); A("s_barrier")
    for sl in range(3):
        for u in range(5): A(f"ds_read_b128 {v(ACC+20+20*sl+4*u,4)}, {v(rd)} offset:{5120*sl+1024*u}")
    for sl in range(3):
        A(f"s_waitcnt lgkmcnt({10-5*sl})")
        for i in range(0, 20, 2): A(f"v_pk_add_f32 {v(ACC+i,2)}, {v(ACC+i,2)}, {v(ACC+20+20*sl+i,2)}")
def quad_sum(A, regs, tmps):
    for swap in ("v_permlane32_swap_b32", "v_permlane16_swap_b32"):
        for x, t in zip(regs, tmps): A(f"v_mov_b32 {v(t)}, {v(x)}")
        A("s_nop 1")
        for x, t in zip(regs, tmps): A(f"{swap} {v(x)}, {v(t)}")
        A("s_nop 1")
        for x, t in zip(regs, tmps): A(f"v_add_f32 {v(x)}, {v(x)}, {v(t)}")

class TL:
    def __init__(self, A, Q, mf):
        self.A, self.Q, self.mf = A, Q, mf
        self.pre = [[] for _ in mf]; self.post = [[] for _ in mf]; self.valu = [[] for _ in mf]
    def spread(self, items, k0, step):
        k = float(k0); last = 0; hold = []
        for t, x in items:
            if is_salu(x): hold.append(x); continue
            kk = min(int(k), len(self.mf)-1)
            for j, h in enumerate(hold): self.post[max(last, kk-len(hold)+j)].append((None, h))
            hold = []; self.post[kk].append((t, x)); last = kk; k += step
        for j, h in enumerate(hold): self.post[min(last+1+j, len(self.mf)-1)].append((None, h))
        return k
    def vspread(self, ops, k0, k1, cap=2):
        ops = list(ops); k = k0
        while ops:
            assert k < len(self.mf), "no room"
            room = cap - len(self.valu[k]) - sum(1 for t, x in self.post[k] if not (isinstance(x, str) and is_salu(x)))
            want = -(-len(ops)//max(k1-k, 1))
            for _ in range(min(len(ops), max(room, 0) if k < k1-1 else len(ops), want if k < k1-1 else len(ops))): self.valu[k].append(ops.pop(0))
            k += 1
        return k
    def emit(self):
        A, Q = self.A, self.Q
        def one(t, x):
            if callable(x): x()
            elif isinstance(x, tuple): A.ext(Q.wait(*x[1:]))
            else:
                if t is not None: Q.add(t, [x])
                A(x)
        for k, m in enumerate(self.mf):
            for x in self.pre[k]: one(None, x)
            A(m)
            for t, x in self.post[k]: one(t, x)
            A.ext(self.valu[k])

W5X = 208
def w5reg(f): return 256+4*f if f < 24 else 256+176+4*(f-24) if f < 28 else 256+96+4*(f-28) if f < 48 else 256+4*f if f < 64 else W5X + 4*(f-64)
def w5load(f):
    ks, u = divmod(f, 5)
    L = [f"buffer_load_dwordx4 {r(w5reg(f),4)}, {v(WV if u < 4 else WV+1)}, {S4(SWS)}, s100 offen offset:{1024*(u&3)} sc1"]
    if u == 4: L.append("s_add_u32 s100, s100, 40960" if ks != 12 else "s_add_u32 s100, s100, s94")
    return L
S_F2P, S_STW, S_F3W, S_F3P, S_STR, S_F4W, S_F4P, S_F3A, S_OH, S_OHH, S_OH1, S_A5 = 64, 65, 66, 67, 68, 69, 70, 71, 28, 29, 30, 72
P4_LA, P4_LB, P4_HV, P4_SV, P4_CA, P4_CB, P4_F3V, L4V, ONEV = 4, 7, 11, 12, 13, 14, 15, 241, 10
def w5_setup(A):
    A(f"s_mul_i32 s36, s{W}, 14"); A(f"s_sub_i32 s37, s{W}, 2"); A("s_max_i32 s37, s37, 0"); A("s_sub_u32 s31, s36, s37")
    A(f"s_lshr_b32 s36, s{GI}, 2"); A("s_mul_i32 s36, s36, 5120"); A("s_mul_i32 s100, s31, 40960"); A("s_add_u32 s100, s100, s36"); A(f"s_add_u32 s100, s100, {WD_OFF}")
    A(f"s_cmp_ge_u32 s{W}, 2"); A(f"s_cselect_b32 s92, {OOB}, 0"); A("s_add_u32 s94, s92, 40960")
def late_setup(A):
    A(f"s_and_b32 s56, s{GI}, 3"); A(f"s_lshl_b32 s37, s{W}, 12"); A(f"s_add_u32 s37, s37, s{GB}")
    A("s_lshl_b32 s39, s56, 14"); A("s_add_u32 s39, s39, s37"); A(f"s_add_u32 s39, s39, {OX_OFF}")
    A("s_lshl_b32 s56, s56, 16"); A("s_add_u32 s56, s56, s37"); A(f"s_add_u32 s56, s56, {O_OFF}")
    A("s_and_b32 s57, s49, 12"); A("s_mul_i32 s57, s57, 55296"); A("s_lshl_b32 s37, s31, 10"); A("s_add_u32 s57, s57, s37"); A(f"s_add_u32 s57, s57, s{GB}"); A(f"s_add_u32 s57, s57, {HH_OFF()}")
    for i in range(4):
        A(f"s_add_u32 s36, s{W}, {i}"); A("s_and_b32 s36, s36, 3"); A("s_lshl_b32 s37, s36, 14"); A(f"s_add_u32 s{40+i}, s56, s37")
        A("s_mul_i32 s37, s36, 55296"); A(f"s_add_u32 s{S_A5+i}, s57, s37")
        A("s_and_b32 s37, s36, 1"); A("s_lshl_b32 s37, s37, 8"); A("s_lshr_b32 s36, s36, 1"); A("s_lshl_b32 s36, s36, 3"); A("s_add_u32 s36, s36, s37"); A(f"s_add_u32 s{52+i}, s39, s36")
    A(f"v_lshrrev_b32 v2, 4, {v(LANE)}"); A(f"v_and_b32 v3, 15, {v(LANE)}"); A(f"v_mul_u32_u24 v252, 768, v2"); A(f"v_add_u32 v252, v252, {v(LV)}")
    A(f"s_lshl_b32 s{S_F2P}, s49, 7"); A(f"s_add_u32 s{S_F2P}, s{S_F2P}, {F2_OFF}")
    A(f"s_lshr_b32 s37, s{GI}, 2"); A("s_lshl_b32 s36, s49, 3"); A("s_add_u32 s36, s36, s37"); A("s_lshl_b32 s36, s36, 7"); A(f"s_add_u32 s{S_STW}, s36, {STAT_OFF}")
    A("s_lshr_b32 s36, s49, 1"); A("s_lshl_b32 s36, s36, 5"); A("s_lshl_b32 s37, s37, 1"); A("s_add_u32 s36, s36, s37"); A("s_and_b32 s37, s49, 1"); A("s_add_u32 s36, s36, s37")
    A("s_lshl_b32 s36, s36, 2"); A(f"s_add_u32 s{S_F3W}, s36, {F3_OFF}")
    A("s_lshr_b32 s36, s49, 2"); A("s_lshl_b32 s36, s36, 8"); A(f"s_add_u32 s{S_F4P}, s36, {F4_OFF}")
    A(f"s_and_b32 s36, s{GI}, 1"); A(f"s_lshl_b32 s37, s{GX}, 1"); A("s_add_u32 s36, s36, s37"); A("s_lshl_b32 s36, s36, 2"); A(f"s_add_u32 s36, s36, s{W}")
    A("s_and_b32 s56, s36, 7"); A(f"s_mul_i32 s{S_OH}, s56, 40960"); A(f"s_add_u32 s{S_OH}, s{S_OH}, s{GB}"); A(f"s_add_u32 s{S_OH}, s{S_OH}, {H_OFF()}")
    A(f"s_lshl_b32 s37, s36, 7"); A(f"s_add_u32 s{S_F3P}, s37, {F3_OFF}")
    A(f"s_lshr_b32 s39, s{GI}, 1"); A("s_lshl_b32 s39, s39, 2"); A("s_add_u32 s37, s37, s39"); A(f"s_add_u32 s{S_F4W}, s37, {F4_OFF}")
    A("s_lshl_b32 s37, s36, 11"); A(f"s_add_u32 s{S_STR}, s37, {STAT_OFF}")
    A(f"s_lshl_b32 s37, s{GX}, 10"); A(f"s_add_u32 s{S_F3A}, s37, {F3_OFF}")
    A(f"s_and_b32 s57, s{P4_ST}, 1")
    A(f"s_mul_i32 s{S_OHH}, s56, 110592"); A(f"s_add_u32 s{S_OHH}, s{S_OHH}, s{GB}"); A(f"s_add_u32 s{S_OHH}, s{S_OHH}, {HH_OFF()}")
    A(f"s_lshr_b32 s37, s{P4_ST}, 1"); A("s_lshl_b32 s37, s37, 10"); A(f"s_add_u32 s{S_OHH}, s{S_OHH}, s37")
    A("s_cmp_eq_u32 s57, 0"); A("s_cselect_b32 s37, 3072, 8"); A(f"s_cselect_b32 s39, {6*2048}, 0"); A(f"s_cselect_b32 s56, {6*128}, 0"); A(f"s_add_u32 s{S_OH1}, s{S_OHH}, s37")
    A("s_lshl_b32 s37, s57, 10"); A(f"s_add_u32 s{S_OHH}, s{S_OHH}, s37"); A("s_lshl_b32 s36, s57, 11")
    A(f"s_cmp_ge_u32 s{GI}, 28"); A(f"s_cselect_b32 s{S_OH1}, {OOB}, s{S_OH1}"); A(f"s_cmp_ge_u32 s{GI}, 30"); A(f"s_cselect_b32 s33, {OOB}, s{S_OHH}")
    for i in range(3):
        A(f"v_add_u32 {v(P4_LA+i)}, s36, {v(LV)}"); A(f"v_add_u32 {v(P4_LB+i)}, s39, {v(LV)}"); A("s_add_u32 s36, s36, 57344"); A("s_add_u32 s39, s39, 57344")
    A(f"v_add_u32 {v(P4_HV)}, 20480, {v(LV)}")
    A(f"v_lshlrev_b32 {v(P4_SV)}, 8, v2"); A(f"v_lshl_add_u32 {v(P4_SV)}, v3, 3, {v(P4_SV)}")
    A("s_lshl_b32 s36, s57, 7"); A(f"s_add_u32 s36, s36, {CSL}"); A(f"v_lshl_add_u32 {v(P4_CA)}, v2, 4, s36")
    A(f"s_add_u32 s56, s56, {CSL}"); A(f"v_lshl_add_u32 {v(P4_CB)}, v2, 4, s56")
    A(f"v_lshrrev_b32 v2, 3, {v(LANE)}"); A(f"v_and_b32 v3, 7, {v(LANE)}"); A("v_lshlrev_b32 v2, 7, v2"); A(f"v_lshl_add_u32 {v(P4_F3V)}, v3, 3, v2")
    srd(A, SA, 86, 2621440)

COLD = []
def mode_store(A, ins):
    alt, back = A.label("wt"), A.label("wb")
    COLD.append([f"{alt}:"] + [x + " sc1" for x in ins] + [f"s_branch {back}"])
    return [f"s_cbranch_vccz {alt}"] + ins + [f"{back}:"]
def set_mode(A): A(f"s_mov_b32 vcc_lo, s{MODE}"); A("s_mov_b32 vcc_hi, 0")
def red_write(ACC, i, u): return f"ds_write_b128 {v(SK_WR+i-1)}, {v(ACC+20*i+4*u,4)} offset:{1024*u}"
def red_read(ACC, sl): return [f"ds_read_b128 {v(ACC+20+20*sl+4*u,4)}, {v(SK_RD)} offset:{5120*sl+1024*u}" for u in range(5)]

def phase3(A, ST):
    ACC, RES, CSP, AF = 16, P3RES, P3CS, 256+96
    A("s_barrier")
    unpack(A, ACC, RES, 10)
    A(f"v_add_f32 {v(CSP)}, {v(CSP)}, {v(CSP+1)}"); A(f"v_add_f32 {v(CSP+2)}, {v(CSP+2)}, {v(CSP+3)}"); A(f"v_add_f32 {v(CSP)}, {v(CSP)}, {v(CSP+2)}")
    A(f"v_add_u32 v146, {CSL}, v146"); A(f"ds_write_b32 v146, {v(CSP)}")
    A("s_mov_b64 exec, 0xff")
    poll(A, [f"buffer_load_dword v2, {v(L4V)}, {S4(SWS)}, s{S_F2P} offen sc1"], [2])
    A("s_mov_b64 exec, -1")
    ST.mark()
    Q = VQ()
    order = (1, 2, 3, 0)
    al = lambda i: ([f"buffer_load_dwordx4 {r(AF+20*((i-1)%4)+4*ks,4)}, {v(LV)}, {S4(SWS)}, s{40+i} offen offset:{1024*ks} sc1" for ks in range(4)] +
                    [f"buffer_load_dwordx2 {r(AF+20*((i-1)%4)+16+2*j,2)}, v252, {S4(SWS)}, s{52+i} offen offset:{512*j} sc1" for j in range(2)])
    UP = CFG.get("p3up", 2)
    for i in order[:UP]: A.ext(Q.add(("a", i), al(i)))
    set_mode(A)
    T = TL(A, Q, [mf16(ACC+20*i+4*u, w3reg(5*ks+u), AF+20*((i-1)%4)+4*ks, "0" if (ks == 0 and i) else None) for i in order for u in range(5) for ks in range(5)])
    for n, i in enumerate(order): T.pre[25*n].append(("wait", ("a", i)))
    T.pre[0].append(ST.mark)
    k = T.spread([(("a", i), x) for i in order[UP:] for x in al(i)], 0, CFG.get("p3as", 2))
    k = T.spread([("w5", x) for f in range(CFG["w5a"], min(CFG["w5b"], 28)) for x in w5load(f)], k+1, 4)
    assert CFG["w5b"] <= 38
    AFR = lambda f: 25*((f-28)//5 + 1)
    for f in range(28, CFG["w5b"]): k = T.spread([("w5", x) for x in w5load(f)], max(k, AFR(f)), 4)
    for n in range(3):
        for u in range(5): T.post[25*n+5*u+13].append((None, red_write(ACC, order[n], u)))
    T.pre[66] += ["s_waitcnt lgkmcnt(1)", "s_barrier"]
    T.spread([(None, x) for x in red_read(ACC, 0) + red_read(ACC, 1)], 66, 2)
    T.pre[88] += ["s_waitcnt lgkmcnt(0)", "s_barrier"]
    T.spread([(None, x) for x in red_read(ACC, 2)], 88, 1)
    T.vspread([f"v_add_f32 {v(ACC+20+i)}, {v(ACC+20+i)}, {v(ACC+40+i)}" for i in range(20)], 88, 100)
    T.emit()
    ST.mark()
    A("s_waitcnt lgkmcnt(0)")
    for i in range(0, 20, 2): A(f"v_pk_add_f32 {v(ACC+20+i,2)}, {v(ACC+20+i,2)}, {v(ACC+60+i,2)}")
    for i in range(0, 20, 2): A(f"v_pk_add_f32 {v(ACC+i,2)}, {v(ACC+i,2)}, {v(ACC+20+i,2)}")
    for i in range(10): A(f"v_cvt_pk_bf16_f32 {v(RES+i)}, {v(ACC+2*i)}, {v(ACC+2*i+1)}")
    A.ext(mode_store(A, io_frag("store", RES, "")))
    sm, sq = 112, 114
    A(f"v_pk_mul_f32 {v(sq,2)}, {v(ACC,2)}, {v(ACC,2)}"); A(f"v_pk_add_f32 {v(sm,2)}, {v(ACC,2)}, {v(ACC+2,2)}")
    for i in range(2, 20, 2):
        A(f"v_pk_fma_f32 {v(sq,2)}, {v(ACC+i,2)}, {v(ACC+i,2)}, {v(sq,2)}")
        if i > 2: A(f"v_pk_add_f32 {v(sm,2)}, {v(sm,2)}, {v(ACC+i,2)}")
    A(f"v_add_f32 {v(sm)}, {v(sm)}, {v(sm+1)}"); A(f"v_add_f32 {v(sm+1)}, {v(sq)}, {v(sq+1)}")
    quad_sum(A, [sm, sm+1], [sq, sq+1])
    A("s_mov_b64 exec, 0xffff"); A.ext(mode_store(A, [f"buffer_store_dwordx2 {v(sm,2)}, {v(P4_SV)}, {S4(SWS)}, s{S_STW} offen"])); A("s_mov_b64 exec, -1")

def phase4(A, ST):
    la, lb, hv, sv, ca, cb = P4_LA, P4_LB, P4_HV, P4_SV, P4_CA, P4_CB
    STT, HR, ACC, WB, CR = 232, 16, 96, 208, 224
    NW, HD = 3, 4
    WR = lambda n: (80 + 8*(n % 4)) if n % 4 < 2 else (WB + 8*(n % 4 - 2))
    U = [(s_, m) for s_ in range(8) for m in range(14)] + ([(s_, m) for m in range(14) for s_ in (8, 9)] if CFG.get("p4tail", 1) else [(s_, m) for s_ in (8, 9) for m in range(14)])
    def reads(n):
        s_, m = U[n]; slot = s_ % 5; j, mat = divmod(m, 2)
        base, off = (la, j*2048) if j < 6 else (lb, 0)
        return [f"ds_read_b128 {v(WR(n)+4*ks,4)}, {v(base+slot//2)} offset:{(slot%2)*28672+off+mat*1024+ks*14336}" for ks in range(2)]
    for n in range(NW): A.ext(reads(n))
    A("s_barrier")
    A("s_waitcnt vmcnt(0)")
    A.ext(mode_store(A, [f"buffer_store_dword {v(ONEV)}, off, {S4(SWS)}, s{S_F3W}"]))
    ST.mark()
    A("s_mov_b64 exec, 0xffff")
    poll(A, [f"buffer_load_dword v2, {v(L4V)}, {S4(SWS)}, s{S_F3P} offen sc1"], [2])
    A("s_mov_b64 exec, -1")
    ST.mark()
    Q = VQ()
    def hl(s_): return [f"buffer_load_dwordx4 {v(HR+16*(s_%HD)+8*n+4*ks,4)}, {v(hv if n else LV)}, {S4(SWS)}, s{S_OH} offen offset:{1024*ks} sc1" for n in range(2) for ks in range(2)] + [f"s_add_u32 s{S_OH}, s{S_OH}, 2048"]
    UP = CFG.get("p4up", 2)
    for s_ in range(UP): A.ext(Q.add(("h", s_), hl(s_)))
    f3l = [f"buffer_load_dwordx2 v[2:3], {v(P4_F3V)}, {S4(SWS)}, s{S_F3A} offen sc1"]
    stl = [f"buffer_load_dwordx2 {v(STT+4*n+2*c,2)}, {v(sv)}, {S4(SWS)}, s{S_STR} offen offset:{1024*n+128*c} sc1" for n in range(2) for c in range(2)]
    T = TL(A, Q, [mf16(ACC+8*m+4*nn, WR(n)+4*ks, HR+16*(s_ % HD)+8*nn+4*ks, "0" if (s_ == 0 and ks == 0) else None)
                  for n, (s_, m) in enumerate(U) for nn in ((1, 0) if (s_ == 9 and CFG.get("p4tail", 1)) else (0, 1)) for ks in range(2)])
    MS = 6
    lq = [0, 0, 1, 1, 2, 2]
    for n in range(140):
        s_, m = U[n]
        need = [i for i, x in enumerate(lq) if x == n or x == ("c", n)]
        T.pre[4*n].append(f"s_waitcnt lgkmcnt({len(lq)-1-max(need)})")
        if m == 0: T.pre[4*n].append(("wait", ("h", s_)))
        if m == 11 and s_ < (8 if CFG.get("p4tail", 1) else 9):
            if s_+1 >= 3: T.pre[4*n].append(("wait", ("w", s_+1 + (s_ == 7 and CFG.get("p4tail", 1)))))
            T.pre[4*n].append("s_barrier")
        e2 = n + 2 - 14*MS
        if 0 <= e2 < 28 and e2 % 2 == 0:
            e = e2//2; mu = (2*e + 6 + (e >= 7)) % 14; j, mat = divmod(mu, 2)
            T.post[4*n].append((None, f"ds_read_b128 {v(CR+4*(e&1),4)}, {v(ca if j < 6 else cb)} offset:{(128*j if j < 6 else 0)+64*mat}")); lq.append(("c", n+2))
            for i in range(8): T.valu[4*(n+2)+i].append(f"v_fmac_f32 {v(ACC+8*mu+i)}, {v(CR+4*(e&1)+i%4)}, {v(STT+4*(i//4))}")
        if n+NW < 140:
            for j, x in enumerate(reads(n+NW)): T.post[4*n+j+1].append((None, x))
            lq += [n+NW, n+NW]
    T.pre[0].append(ST.mark)
    w5 = list(range(CFG["w5b"], 64)); LAST = CFG.get("p4last", 9.0)
    base = {s_: [] for s_ in range(10)}
    for s_ in range(UP, 10): base[max(0, s_-HD+1)] += [(("h", s_), x) for x in hl(s_)]
    for s_ in range(3, 10): base[s_-3] += [(("w", s_), x) for x in p4_dma(s_)]
    base[1] += [("st", x) for x in stl]; base[4] += [("f3", x) for x in f3l]
    cnt = lambda L: sum(1 for t, x in L if not is_salu(x))
    for s_ in range(10):
        span = min(1.0, LAST - s_)
        if span > 0:
            later = sum(cnt(base[j]) for j in range(s_, 10)) + len(w5)
            for _ in range(min(len(w5), max(0, math.ceil(later*span/(LAST-s_)) - cnt(base[s_])))): base[s_] += [("w5", x) for x in w5load(w5.pop(0))]
        if base[s_]: T.spread(base[s_], 56*s_+3, (56*span-4)/cnt(base[s_]))
    assert not w5
    B = Asm()
    for n in range(2):
        for i in range(2): B(f"v_add_f32 {v(STT+4*n+i)}, {v(STT+4*n+i)}, {v(STT+4*n+2+i)}")
    quad_sum(B, [STT, STT+1, STT+4, STT+5], [STT+2, STT+3, STT+6, STT+7])
    for n in range(2):
        nm, r2 = STT+4*n, STT+4*n+2
        B(f"v_mul_f32 {v(nm)}, {hex(f2u(-1/640))}, {v(nm)}"); B(f"v_mul_f32 {v(r2)}, {hex(f2u(1/640))}, {v(nm+1)}")
        B(f"v_fma_f32 {v(r2)}, -{v(nm)}, {v(nm)}, {v(r2)}"); B(f"v_max_f32 {v(r2)}, 0, {v(r2)}"); B(f"v_add_f32 {v(r2)}, {hex(f2u(1e-5))}, {v(r2)}"); B(f"v_rcp_f32 {v(r2)}, {v(r2)}")
    T.pre[56*4].append(("wait", "st"))
    for j, x in enumerate(x.strip() for x in B.L if "s_nop" not in x): T.valu[56*4+2*j].append(x)
    T.pre[56*8] += [("wait", "f3"), "v_min_u32 v2, v2, v3", "v_cmp_eq_u32 vcc, 0, v2", "s_nop 1", f"s_cbranch_vccnz {K}_f3spin", f"{K}_f3ok:", lambda: set_mode(A)]
    T.valu[56*8+2].append(f"v_add_u32 {v(hv)}, 55296, {v(LV)}")
    COLD.append(lambda: (A(f"{K}_f3spin:"), poll(A, f3l, [2, 3], sleep=4), A(f"s_branch {K}_f3ok")))
    OB = 48
    def strip(j, n, pk):
        r2 = STT+4*n+2; o = OB + 8*((j >> 1) % 2) + 4*n + 2*(j & 1); g, u = ACC+16*j+4*n, ACC+16*j+8+4*n
        if pk: L = [f"v_pk_mul_f32 {v(g+i,2)}, {v(g+i,2)}, {v(r2,2)} op_sel_hi:[1,0]" for i in (0, 2)] + [f"v_pk_mul_f32 {v(g+i,2)}, {v(g+i,2)}, {v(u+i,2)}" for i in (0, 2)]
        else: L = [f"v_mul_f32 {v(g+i)}, {v(g+i)}, {v(r2)}" for i in range(4)] + [f"v_mul_f32 {v(g+i)}, {v(g+i)}, {v(u+i)}" for i in range(4)]
        return L + [f"v_cvt_pk_bf16_f32 {v(o+i)}, {v(g+2*i)}, {v(g+2*i+1)}" for i in range(2)]
    def hst(a_): return [f"buffer_store_dwordx{4 if a_ < 3 else 2} {v(OB+8*(a_%2)+4*n, 4 if a_ < 3 else 2)}, {v(hv if n else LV)}, {S4(SWS)}, s{33 if a_ == 0 else S_OHH if a_ < 3 else S_OH1} offen" + (f" offset:{1024*a_}" if a_ < 3 else "") for n in range(2)]
    NI = CFG.get("p4ni", 6 if CFG.get("p4tail", 1) else 4); k = 0
    for j in range(NI):
        k0 = max(k, (56*8 + 16*(j+1) + 3) if CFG.get("p4tail", 1) else (56*9 + 8*(j+1) + 5))
        a0, a1 = strip(j, 1, False), strip(j, 0, False)
        k = T.vspread(a0[:4] + a1[:4] + a0[4:] + a1[4:], k0, min(k0+12, 560), cap=CFG.get("p4cap", 2))
        if j & 1 and k < 560:
            st_ = hst(j >> 1); T.post[k].append((None, (lambda st_=st_: (A.ext(mode_store(A, st_)), Q.add("hh", st_)))))
    stored = [j >> 1 for j in range(NI) if j & 1]
    if NI and NI % 2 == 0 and k >= 560: stored.pop()
    T.emit()
    ST.mark()
    for a_ in range(4):
        for j in ([2*a_, 2*a_+1] if a_ < 3 else [6]):
            if j >= NI:
                a0, a1 = strip(j, 1, True), strip(j, 0, True)
                A.ext(a0[:2] + a1[:2] + (["s_nop 1"] if j == NI else []) + a0[2:] + a1[2:])
        if a_ not in stored: A.ext(mode_store(A, hst(a_))); Q.add("hh", hst(a_))
    for f in range(64, 70): A.ext(Q.add("w5", w5load(f)))
    return Q

def phase5(A, ST, Q):
    ACC, AF, RES = 16, 96, 232
    A.ext(Q.add("res", io_frag("load", 4, "sc1")))
    A(f"v_add_u32 v14, s92, {v(LV)}")
    A(f"v_lshrrev_b32 v15, 4, {v(LANE)}"); A(f"v_mul_u32_u24 v15, 64, v15"); A(f"v_add_u32 v15, v15, {v(L4V)}")
    A("s_barrier")
    A.ext(Q.wait("hh"))
    A.ext(mode_store(A, [f"buffer_store_dword v240, off, {S4(SWS)}, s{S_F4W}"]))
    ST.mark()
    A("s_waitcnt vmcnt(1)"); unpack(A, ACC, 4, 10)
    A("s_mov_b32 exec_hi, 0")
    poll(A, [f"buffer_load_dword v2, v15, {S4(SWS)}, s{S_F4P} offen sc1"], [2])
    A("s_mov_b64 exec, -1")
    ST.mark()
    Q = VQ()
    order = (1, 2, 3, 0)
    def al(n, ks):
        i = order[n]
        L = [f"buffer_load_dwordx4 {v(AF+56*(n&1)+4*ks,4)}, {v(14 if ks == 13 else LV)}, {S4(SWS)}, s{S_A5+i} offen offset:{1024*(ks&3)} sc1"]
        if ks & 3 == 3: L.append(f"s_add_u32 s{S_A5+i}, s{S_A5+i}, 4096")
        return L
    UP = CFG.get("p5up", 8); STEP = CFG.get("p5st", 4)
    for ks in range(UP): A.ext(Q.add((0, ks), al(0, ks)))
    T = TL(A, Q, [mf16(ACC+20*i+4*u, w5reg(5*ks+u), AF+56*(n&1)+4*ks, "0" if (ks == 0 and i) else None)
                  for n, i in enumerate(order) for kp in range(7) for u in range(5) for ks in (2*kp, 2*kp+1)])
    k = 0
    for g in range(UP, 56):
        n, ks = divmod(g, 14)
        if n >= 2: k = max(k, 70*(n-2) + 10*(ks//2+1) - 1)
        assert k < 70*n + 10*(ks//2)
        k = T.spread([((n, ks), x) for x in al(n, ks)], k, STEP)
    for n in range(4):
        for kp in range(7): T.pre[70*n+10*kp].append(("wait", (n, 2*kp+1)))
    T.pre[0].append(ST.mark)
    for n in range(3):
        for u in range(5): T.post[70*(n+1)+2+5*u].append((None, red_write(ACC, order[n], u)))
    T.pre[237] += ["s_waitcnt lgkmcnt(0)", "s_barrier"]
    T.spread([(None, x) for sl in range(3) for x in red_read(ACC, sl)], 237, 1)
    T.pre[254].append("s_waitcnt lgkmcnt(5)"); T.vspread([f"v_add_f32 {v(ACC+20+i)}, {v(ACC+20+i)}, {v(ACC+40+i)}" for i in range(20)], 254, 266)
    T.pre[266].append("s_waitcnt lgkmcnt(0)"); T.vspread([f"v_add_f32 {v(ACC+20+i)}, {v(ACC+20+i)}, {v(ACC+60+i)}" for i in range(20)], 266, 280)
    T.emit()
    ST.mark()
    A("s_nop 1")
    for i in range(0, 20, 2): A(f"v_pk_add_f32 {v(ACC+i,2)}, {v(ACC+i,2)}, {v(ACC+20+i,2)}")
    for i in range(10): A(f"v_cvt_pk_bf16_f32 {v(RES+i)}, {v(ACC+2*i)}, {v(ACC+2*i+1)}")
    A.ext(io_rm("store", RES, SA))

def build(**cfg):
    CFG.update(cfg)
    A = Asm(); ST = Stamps(A)
    kstart(A, K)
    if CFG.get("empty"): A("s_endpgm")
    ST.mark()
    if CFG.get("probe"):
        off, base = {"bx": (24, 0), "ws": (72, 40 << 20), "out": (56, 0), "wd": (48, 0)}[CFG["probe"]]
        A(f"s_load_dwordx2 s[4:5], s[0:1], {off}"); A("s_waitcnt lgkmcnt(0)"); A(f"s_mov_b32 s6, {base + (2<<20)}"); A("s_mov_b32 s7, 0x20000")
        A("s_and_b32 s8, s2, 255"); A("s_lshl_b32 s8, s8, 9"); A(f"s_add_u32 s8, s8, {base}"); A("v_lshrrev_b32 v2, 6, v0"); A("v_lshlrev_b32 v2, 7, v2")
        for i in range(16):
            A("buffer_load_dword v3, v2, s[4:7], s8 offen"); A("s_waitcnt vmcnt(0)"); A("s_add_u32 s8, s8, 131072")
    COLD.clear(); phase1(A, ST)
    cold = phase2(A, ST)
    phase3(A, ST); phase5(A, ST, phase4(A, ST))
    ST.flush()
    A("s_endpgm")
    cold()
    for c in COLD: c() if callable(c) else A.ext(c)
    A(f"{K}_end:")
    A("s_endpgm")
    kdesc(A, K, 512, acc=256)
    head = open(f"cdna_kernels/{NAME}.s.ref").read().split("; Override launch")[0]
    head += "; @launch grid=(256,1,1) block=(256,1,1) lds=163840\n"
    return head + '.amdgcn_target "amdgcn-amd-amdhsa--gfx950"\n' + A.text()

if __name__ == "__main__":
    out = sys.argv[1] if len(sys.argv) > 1 else f"cdna_kernels/{NAME}.s"
    cfg = {}
    for x in sys.argv[2:]:
        k, val = x.split("=")
        cfg[k] = int(val) if val.lstrip("-").isdigit() else float(val) if val.replace(".", "", 1).isdigit() else val
    txt = build(**cfg)
    names = STAMP_NAMES[:3] + [f"p1 kstep {g}" for g in P1ST()] + STAMP_NAMES[3:8] + [f"att body {b}" for b in ASTAMPS()] + STAMP_NAMES[8:]
    if CFG["stamps"]: txt = txt.replace(".amdgcn_target", "; STAMPS " + "|".join(names) + "\n.amdgcn_target", 1)
    open(out, "w").write(txt)
```

```python
import sys, math, struct, re as _re
from dsl import *

NAME = "sequential_preLN__softmax_full_mha__glu_gated_bilinear__prompt"
K = NAME + "_kernel"
GS = 1310720
K_OFF, V_OFF, O_OFF = 327680, 655360, 983040
OX_OFF = O_OFF + 262144
def H_OFF(): return 8*GS if CFG.get("sep") else 0
def HH_OFF(): return H_OFF() + 327680
WGU_OFF = 20971520
WD_OFF = WGU_OFF + 4423680
WO_OFF = WD_OFF + 2211840
CS_OFF = WO_OFF + 819200
STAT_OFF = CS_OFF + 65536
RS_OFF = STAT_OFF + 131072
C1_OFF = RS_OFF + 16384
F2_OFF = C1_OFF + 8192
F3_OFF = F2_OFF + 128*128
F4_OFF = F3_OFF + 64*128
FR_OFF = F4_OFF + 64*128
F1_OFF = FR_OFF + 256*128
ONES_OFF = F1_OFF + 128*128
STAMP_OFF = 29360128
WS_SIZE = 33554432
OOB = 0x40000000
SPIN = 200000
assert ONES_OFF + 128*2560 < STAMP_OFF and STAT_OFF % 128 == 0
def f2u(x): return struct.unpack("<I", struct.pack("<f", x))[0]
QSCALE = f2u(20**-0.5 * math.log2(math.e))
assert all((u*(65536//54+1)) >> 16 == u//54 for u in range(162)) and all((u*6554) >> 16 == u//10 for u in range(100))
assert all((f*3277) >> 16 == f//20 for f in range(640))
assert all((e*3277) >> 16 == e//20 for e in range(320))
CFG = dict(stamps=False, w5z=16, w5a=20, w5b=36, p4last=9.6, touch="46:s,52:h", p4t="")
STAMP_NAMES = ["start", "p1 first dma issued", "p1 stage0 landed", "p1 loop end", "p1 stores issued", "p1 flag set", "F1 seen", "att loop start", "att loop end",
               "O published", "F2 seen", "p3 first act", "p3 mfma end", "H published", "F3 seen", "p4 first h", "p4 loop end", "HH published", "F4 seen", "p5 first act", "p5 mfma end", "end"]

W, SWS, SX, SA, SR = 3, 4, 8, 12, 16
GX, GI, MODE, MYF, GB = 24, 25, 26, 27, 23
LANE, LV = 1, 253
PCV = 247
CODE_TOUCH = f"global_load_dword v248, v{PCV}, s[20:21] sc1"
def S4(b): return f"s[{b}:{b+3}]"

def ASTAMPS(): return [int(x) for x in str(CFG.get("astamp", "")).split(",") if x]
def P1ST(): return [int(x) for x in str(CFG.get("p1st", "")).split(",") if x]
class Stamps:
    def __init__(self, A): self.A, self.n = A, 0
    def mark(self, at=None):
        A = self.A; i = self.n if at is None else at
        if CFG.get("pad"):
            pi, pt = map(int, CFG["pad"].split(":"))
            if i == 0: A("s_memrealtime s[96:97]")
            if i == pi:
                lab = A.label("pad")
                if "padwg" in CFG: A(f"s_cmp_lg_u32 s2, {CFG['padwg']}"); A(f"s_cbranch_scc1 {lab}x")
                A("s_waitcnt lgkmcnt(0)"); A(f"s_add_u32 s95, s96, {pt*100}"); A(f"{lab}:"); A("s_memrealtime s[98:99]"); A("s_waitcnt lgkmcnt(0)")
                A("s_sub_u32 s98, s98, s95"); A("s_cmp_lt_i32 s98, 0"); A(f"s_cbranch_scc1 {lab}"); A(f"{lab}x:")
            if at is None: self.n += 1
            return
        if not CFG["stamps"]: return
        if i:
            A("s_waitcnt lgkmcnt(0)"); A(f"v_writelane_b32 v254, s96, {i-1}"); A(f"v_writelane_b32 v255, s98, {i-1}")
        A("s_memrealtime s[96:97]"); A("s_memtime s[98:99]")
        if at is None: self.n += 1
    def flush(self):
        if CFG.get("pad"): self.A("s_waitcnt vmcnt(0)"); self.mark(); return
        if not CFG["stamps"]: return
        A = self.A
        A("s_waitcnt vmcnt(0)"); self.mark(); self.mark(); n = self.n - 1
        A(f"v_writelane_b32 v254, s{MODE}, 30"); A(f"v_writelane_b32 v254, s{MYF}, 31")
        A(f"s_lshl_b32 s95, s2, 2"); A(f"s_add_u32 s95, s95, s{W}"); A("s_lshl_b32 s95, s95, 8"); A(f"s_add_u32 s95, s95, {STAMP_OFF}")
        A("s_mov_b64 exec, -1"); A(f"v_lshlrev_b32 v0, 2, {v(LANE)}"); A(f"s_mov_b32 exec_lo, {(1 << n) - 1 + (3 << 30)}"); A("s_mov_b32 exec_hi, 0")
        A(f"buffer_store_dword v254, v0, {S4(SWS)}, s95 offen"); A(f"buffer_store_dword v255, v0, {S4(SWS)}, s95 offen offset:128")

def swap01(A, dst, src, t):
    A(f"v_and_b32 {v(t)}, 1, {v(src)}"); A(f"v_lshlrev_b32 {v(t)}, 1, {v(t)}")
    A(f"v_bfe_u32 {v(dst)}, {v(src)}, 1, 1"); A(f"v_or_b32 {v(t)}, {v(t)}, {v(dst)}")
    A(f"v_and_b32 {v(dst)}, 4, {v(src)}"); A(f"v_or_b32 {v(dst)}, {v(dst)}, {v(t)}")

def make_sel(A, sel, t):
    A(f"v_lshrrev_b32 {v(t)}, 2, {v(LANE)}"); A(f"v_lshrrev_b32 {v(sel)}, 4, {v(LANE)}")
    A(f"v_xor_b32 {v(t)}, {v(t)}, {v(sel)}"); A(f"v_and_b32 {v(t)}, 1, {v(t)}")
    A(f"v_add_u32 {v(t)}, -1, {v(t)}")
    A(f"v_and_b32 {v(sel)}, 0x3f803f80, {v(t)}")
    for i in range(1, 4): A(f"v_mov_b32 {v(sel+i)}, {v(sel)}")

def poll(A, loads, regs, sleep=0, cnt=58, post=()):
    top, out = A.label("poll"), A.label("pollout")
    A(f"s_mov_b32 s{cnt}, {SPIN}")
    A(f"{top}:")
    A.ext(loads); A("s_waitcnt vmcnt(0)"); A.ext(post)
    for x in regs[1:]: A(f"v_min_u32 {v(regs[0])}, {v(regs[0])}, {v(x)}")
    A(f"v_cmp_eq_u32 vcc, 0, {v(regs[0])}")
    A(f"s_sub_u32 s{cnt}, s{cnt}, 1"); A(f"s_cbranch_scc1 {out}")
    if sleep:
        A(f"s_cbranch_vccz {out}"); A(f"s_sleep {sleep}"); A(f"s_branch {top}")
    else: A(f"s_cbranch_vccnz {top}")
    A(f"{out}:")

def publish(A, stores, mid, flag, local=True):
    if not local:
        A.ext(stores("sc1")); A.ext(mid); A.ext(flag("sc1")); return
    slow, done = A.label("st_slow"), A.label("st_done")
    A(f"s_cmp_eq_u32 s{MODE}, 0"); A(f"s_cbranch_scc1 {slow}")
    A.ext(stores("")); A.ext(mid); A.ext(flag("")); A(f"s_branch {done}")
    A(f"{slow}:")
    A.ext(stores("sc1")); A.ext(mid); A.ext(flag("sc1"))
    A(f"{done}:")

RSO, RA, RBA, RDS, RDH, RDAH, RCS, RLDS = 64, 65, 66, 67, 68, 69, 70, 71
RLV, RLT, RLC, RLO, RLF = 201, 202, 204, 212, 216
STG = 86016
def relayout_setup(A):
    t0, t1 = 2, 3
    two, none, done = A.label("rl2"), A.label("rl0"), A.label("rl_set")
    A(f"s_mul_i32 s{RLDS}, s{W}, 10240"); A(f"s_add_u32 s{RLDS}, s{RLDS}, {STG}")
    A(f"v_lshrrev_b32 {v(t0)}, 4, {v(LANE)}"); A(f"v_bfe_u32 {v(t1)}, {v(LANE)}, 2, 2"); A(f"v_lshl_add_u32 {v(t0)}, {v(t0)}, 3, {v(t1)}")
    A(f"v_and_b32 {v(t1)}, 3, {v(LANE)}"); A(f"v_lshlrev_b32 {v(t1)}, 4, {v(t1)}")
    A(f"v_lshl_add_u32 {v(t0)}, {v(t0)}, 6, {v(t1)}"); A(f"v_add_u32 {v(RLT)}, s{RLDS}, {v(t0)}")
    A(f"v_and_b32 {v(RLT+1)}, 15, {v(LANE)}"); A(f"v_lshlrev_b32 {v(RLT+1)}, 2, {v(RLT+1)}")
    for i in range(4): A(f"v_mov_b32 {v(RLO+i)}, 0x3f803f80")
    A(f"v_lshrrev_b32 {v(t0)}, 2, {v(LANE)}")
    A(f"s_mov_b32 s{RCS}, {OOB}"); A(f"s_mov_b32 s{SR+3}, 0x20000")
    A("s_cmp_ge_u32 s2, 108"); A(f"s_cbranch_scc1 {two}")
    A(f"s_bitcmp1_b32 s{W}, 0"); A(f"s_cselect_b64 s[{SR}:{SR+1}], s[82:83], s[80:81]"); A(f"s_mov_b32 s{SR+2}, 2211840")
    A(f"s_mul_i32 s37, s2, {(65536+26)//27}"); A("s_lshr_b32 s37, s37, 16")
    A("s_mul_i32 s38, s37, 27"); A("s_sub_u32 s38, s2, s38"); A("s_lshl_b32 s38, s38, 1"); A(f"s_lshr_b32 s39, s{W}, 1"); A("s_add_u32 s38, s38, s39")
    A(f"s_mul_i32 s{RSO}, s37, {160*3456}"); A("s_lshl_b32 s39, s38, 6"); A(f"s_add_u32 s{RSO}, s{RSO}, s39")
    A(f"s_mov_b32 s{RA}, {16*3456}"); A(f"s_mov_b32 s{RBA}, {16*3456}"); A(f"s_mov_b32 s{RDH}, 2048"); A(f"s_mov_b32 s{RDAH}, {221184-2048}")
    A(f"s_and_b32 s39, s{W}, 1"); A("s_lshl_b32 s38, s38, 2"); A("s_add_u32 s38, s38, s39")
    A(f"s_mul_i32 s{RDS}, s37, {5*221184}"); A("s_lshl_b32 s39, s38, 10"); A(f"s_add_u32 s{RDS}, s{RDS}, s39"); A(f"s_add_u32 s{RDS}, s{RDS}, {WGU_OFF}")
    A(f"s_mul_i32 s{RCS}, s37, {108*128}"); A("s_lshl_b32 s39, s38, 6"); A(f"s_add_u32 s{RCS}, s{RCS}, s39"); A(f"s_add_u32 s{RCS}, s{RCS}, {CS_OFF}")
    A(f"v_mul_u32_u24 {v(t0)}, 3456, {v(t0)}")
    A(f"s_branch {done}")
    A(f"{two}:")
    A("s_sub_u32 s37, s2, 108"); A(f"s_mov_b32 s{RDH}, 1024"); A(f"s_mov_b32 s{RDAH}, 1024")
    A(f"s_mul_i32 s{RDS}, s37, 40960"); A(f"s_mul_i32 s39, s{W}, 10240"); A(f"s_add_u32 s{RDS}, s{RDS}, s39"); A(f"s_add_u32 s{RDS}, s{RDS}, {WD_OFF}")
    A(f"s_mov_b64 s[{SR}:{SR+1}], s[84:85]"); A(f"s_mov_b32 s{SR+2}, 2211840"); A(f"s_lshl_b32 s{RSO}, s37, 5"); A(f"s_mov_b32 s{RA}, 16")
    A("s_cmp_lt_u32 s37, 54"); A(f"s_cbranch_scc1 {none}")
    A(f"s_mov_b64 s[{SR}:{SR+1}], s[88:89]"); A("s_cmp_lt_u32 s37, 74"); A(f"s_cselect_b32 s{RDS}, s{RDS}, {OOB}"); A(f"s_cselect_b32 s{SR+2}, 819200, 0")
    A("s_sub_u32 s37, s37, 54"); A(f"s_mul_i32 s{RSO}, s37, 40"); A("s_mul_i32 s39, s37, 160"); A(f"s_sub_u32 s39, s39, {16*160-16}")
    A("s_cmp_ge_u32 s37, 16"); A(f"s_cselect_b32 s{RSO}, s39, s{RSO}"); A(f"s_cselect_b32 s{RA}, 80, 20"); A("s_cselect_b32 s38, 16, 0")
    A(f"v_lshrrev_b32 v4, 4, {v(LANE)}"); A(f"v_mad_u32_u24 {v(t0)}, v4, s38, {v(t0)}")
    A(f"{none}:")
    A(f"s_mul_i32 s{RSO}, s{RSO}, 1280"); A(f"s_mul_i32 s39, s{W}, 320"); A(f"s_add_u32 s{RSO}, s{RSO}, s39"); A(f"s_mul_i32 s{RA}, s{RA}, 1280"); A(f"s_sub_u32 s{RBA}, 64, s{RA}")
    A(f"v_mul_u32_u24 {v(t0)}, 1280, {v(t0)}")
    A(f"{done}:")
    A(f"v_add_u32 {v(RLV)}, {v(t0)}, {v(t1)}")
def rl_dma(i):
    return [f"s_add_u32 m0, s{RLDS}, {i*1024}", f"s_add_u32 s{RSO}, s{RSO}, {'0' if i == 0 else 's%d' % (RA if i & 1 else RBA)}",
            f"buffer_load_dwordx4 {v(RLV)}, {S4(SR)}, s{RSO} offen lds"]
def rl_read(a_, hf): return [f"ds_read_b64_tr_b16 {v(RLF+8*(a_&1)+4*hf+2*q,2)}, {v(RLT)} offset:{2048*a_+256*q+8*hf}" for q in range(2)]
def rl_sum(a_, hf): return mf16(RLC+4*hf, RLO, RLF+8*(a_&1)+4*hf, "0" if a_ == 0 else None)
def rl_store(a_, hf): return [f"buffer_store_dwordx4 {v(RLF+8*(a_&1)+4*hf,4)}, {v(LV)}, {S4(SWS)}, s{RDS} offen sc1", f"s_add_u32 s{RDS}, s{RDS}, s{RDAH if hf else RDH}"]
def rl_cs(hf): return [f"buffer_store_dword {v(RLC+4*hf)}, {v(RLT+1)}, {S4(SWS)}, s{RCS} offen offset:{128*hf} sc1"]


TV = 249
SD = 52
def phase1(A, ST):
    rt, ct, wm, wn = 28, 29, 30, 31
    sox, sow, m0x, m0w, sst, srs = 32, 33, 34, 35, 46, 59
    t0, t1, t2, t3, nn, qq = 2, 3, 4, 5, 6, 7
    dmx, dmw, xa, wa, sa, rv, cv = 12, 16, 22, 24, 26, 30, 31
    CS, ACC, RS, OB = 32, 56, 148, 180
    FR = 256
    SL = 36864
    A("s_cmp_ge_u32 s2, 256"); A(f"s_cbranch_scc1 {K}_end")
    A("s_load_dwordx4 s[36:39], s[0:1], 0"); A("s_load_dwordx4 s[52:55], s[0:1], 64"); A("s_load_dwordx8 s[80:87], s[0:1], 32"); A("s_load_dwordx2 s[88:89], s[0:1], 16")
    A(f"v_lshrrev_b32 {v(t0)}, 6, v0"); A(f"v_and_b32 {v(LANE)}, 63, v0")
    A(f"v_readfirstlane_b32 s{W}, {v(t0)}")
    A(f"s_and_b32 s{GX}, s2, 7"); A(f"s_lshr_b32 s{GI}, s2, 3")
    A("s_getpc_b64 s[20:21]"); A(f"{K}_pc:")
    A(f"s_lshl_b32 s58, s{GI}, 2"); A(f"s_add_u32 s58, s58, s{W}"); A("s_lshl_b32 s58, s58, 7")
    A(f"v_and_b32 {v(PCV)}, 7, {v(LANE)}"); A(f"v_lshlrev_b32 {v(PCV)}, 14, {v(PCV)}"); A(f"v_add_u32 {v(PCV)}, s58, {v(PCV)}")
    A(f"v_min_u32 {v(PCV)}, {K}_end-{K}_pc, {v(PCV)}")
    A(CODE_TOUCH)
    A(f"v_lshrrev_b32 {v(qq)}, 4, {v(LANE)}"); A(f"v_and_b32 {v(nn)}, 15, {v(LANE)}")
    A("s_cmp_ge_u32 s2, 192"); A(f"s_cbranch_scc1 {K}_help")
    A(f"s_lshr_b32 s56, s{GX}, 2"); A(f"s_mul_i32 s{ct}, s56, 6"); A(f"s_lshr_b32 s57, s{GI}, 2"); A(f"s_add_u32 s{ct}, s{ct}, s57")
    A(f"s_and_b32 s57, s{GI}, 3"); A(f"s_and_b32 s56, s{GX}, 3"); A("s_lshl_b32 s56, s56, 2"); A(f"s_add_u32 s{rt}, s56, s57")
    A(f"v_and_b32 {v(t1)}, 7, {v(LANE)}"); A(f"v_xor_b32 {v(t1)}, {v(t1)}, {v(qq)}"); A(f"v_lshlrev_b32 {v(t1)}, 4, {v(t1)}")
    A(f"v_lshrrev_b32 {v(t2)}, 3, {v(LANE)}"); A(f"v_mul_u32_u24 {v(t2)}, 1280, {v(t2)}")
    A(f"v_add_u32 {v(dmx)}, {v(t1)}, {v(t2)}")
    A(f"v_xor_b32 {v(t1)}, 64, {v(t1)}"); A(f"v_add_u32 {v(t1)}, {v(t1)}, {v(t2)}"); A(f"v_add_u32 {v(dmx+1)}, 9216, {v(t1)}")
    A(f"v_add_u32 {v(dmx+2)}, {2*9216}, {v(dmx)}"); A(f"v_add_u32 {v(dmx+3)}, {2*9216}, {v(dmx+1)}")
    for i in range(5):
        A(f"v_add_u32 {v(t0)}, {64*i}, {v(LANE)}"); A(f"v_mul_u32_u24 {v(t1)}, 3277, {v(t0)}"); A(f"v_lshrrev_b32 {v(t1)}, 16, {v(t1)}")
        A(f"v_mul_u32_u24 {v(t2)}, 20, {v(t1)}"); A(f"v_sub_u32 {v(t0)}, {v(t0)}, {v(t2)}")
        if i == 2: A(f"v_lshrrev_b32 {v(t2)}, 2, {v(t1)}"); A(f"v_and_b32 {v(t2)}, 2, {v(t2)}"); A(f"v_xor_b32 {v(t0)}, {v(t0)}, {v(t2)}")
        elif i > 2: A(f"v_xor_b32 {v(t0)}, 2, {v(t0)}")
        A(f"v_mul_u32_u24 {v(t1)}, 3840, {v(t1)}"); A(f"v_lshl_add_u32 {v(dmw+i)}, {v(t0)}, 4, {v(t1)}")
        if i & 3: A(f"v_subrev_u32 {v(dmw+i)}, {1024*i}, {v(dmw+i)}")
    A(f"s_lshl_b32 s56, s{rt}, 2"); A(f"s_add_u32 s56, s56, s{W}"); A(f"s_mul_i32 s{sox}, s56, {32*1280}")
    A(f"s_mul_i32 s{sow}, s{W}, {16*3840}"); A(f"s_mul_i32 s57, s{ct}, 320"); A(f"s_add_u32 s{sow}, s{sow}, s57")
    A(f"s_lshl_b32 s{m0x}, s{W}, 12"); A(f"s_mul_i32 s{m0w}, s{W}, 5120")
    A("s_waitcnt lgkmcnt(0)")
    srd(A, SX, 36, 2621440); srd(A, SA, 38, 2457600)
    def dma(stage):
        o = (stage % 4)*SL
        dx = lambda b: f"buffer_load_dwordx4 {v(dmx+b)}, {S4(SX)}, s{sox} offen offset:{b*1024} lds"
        dw = lambda b: f"buffer_load_dwordx4 {v(dmw+b)}, {S4(SA)}, s{sow} offen offset:{(b&3)*1024} lds"
        return ([f"s_add_u32 m0, s{m0x}, {o}", f"s_add_u32 s{sow}, s{sow}, {64*3840 if stage else 0}"] + [dx(b) for b in range(4)] +
                [f"s_add_u32 m0, s{m0w}, {o+16384}", f"s_add_u32 s{sox}, s{sox}, 128"] + [dw(b) for b in range(4)] + [f"s_add_u32 m0, s{m0w}, {o+20480}", "s_nop 0", dw(4)])
    A.ext(dma(0))
    def common():
        srd(A, SWS, 54, WS_SIZE)
        A(f"s_mov_b32 s{SD+2}, 256"); A(f"s_mov_b32 s{SD+3}, 0x20000")
        A(f"v_lshlrev_b32 {v(TV)}, 7, {v(LANE)}"); A(f"v_lshlrev_b32 {v(LV)}, 4, {v(LANE)}"); A(f"v_lshlrev_b32 {v(L4V)}, 2, {v(LANE)}")
        A(f"s_mul_i32 s{GB}, s{GX}, {GS}"); A(f"s_cmp_eq_u32 s{W}, 0"); A(f"s_cselect_b32 s22, 0, {OOB}")
        A(f"s_getreg_b32 s{MYF}, hwreg(HW_REG_XCC_ID, 0, 4)"); A(f"s_add_u32 s{MYF}, s{MYF}, 1")
    common()
    ST.mark()
    A(f"s_and_b32 s{wm}, s{W}, 1"); A(f"s_lshr_b32 s{wn}, s{W}, 1")
    A(f"v_lshrrev_b32 {v(t0)}, 1, {v(nn)}"); A(f"v_xor_b32 {v(t0)}, {v(t0)}, {v(qq)}"); A(f"v_lshlrev_b32 {v(t0)}, 4, {v(t0)}")
    A(f"v_lshl_add_u32 {v(t0)}, {v(nn)}, 7, {v(t0)}"); A(f"s_lshl_b32 s56, s{wm}, 13"); A(f"v_add_u32 {v(xa)}, s56, {v(t0)}"); A(f"v_xor_b32 {v(xa+1)}, 64, {v(xa)}")
    A(f"v_lshrrev_b32 {v(t0)}, 2, {v(nn)}"); A(f"v_lshl_add_u32 {v(t1)}, {v(qq)}, 3, {v(t0)}"); A(f"v_mul_u32_u24 {v(t1)}, 320, {v(t1)}")
    A(f"v_and_b32 {v(t0)}, 3, {v(nn)}"); A(f"v_lshl_add_u32 {v(t1)}, {v(t0)}, 3, {v(t1)}"); A(f"s_mul_i32 s56, s{wn}, 160"); A("s_add_u32 s56, s56, 16384"); A(f"v_add_u32 {v(t1)}, s56, {v(t1)}")
    A(f"v_and_b32 {v(t0)}, 1, {v(qq)}"); A(f"s_lshl_b32 s56, s{wn}, 6"); A("s_sub_u32 s56, 32, s56"); A(f"v_mul_i32_i24 {v(t0)}, s56, {v(t0)}")
    A(f"v_add_u32 {v(wa)}, {v(t1)}, {v(t0)}"); A(f"v_sub_u32 {v(wa+1)}, {v(t1)}, {v(t0)}")
    A(f"s_lshl_b32 s41, s{rt}, 1"); A(f"s_add_u32 s41, s41, s{wm}")
    A(f"s_lshl_b32 s{srs}, s41, 8"); A(f"s_add_u32 s{srs}, s{srs}, {RS_OFF}"); A(f"s_add_u32 s43, s{srs}, 8192")
    A(f"s_lshl_b32 s40, s{ct}, 1"); A(f"s_add_u32 s40, s40, s{wn}")
    A(f"s_mul_i32 s44, s40, 320"); A(f"s_add_u32 s44, s44, {C1_OFF}")
    A(f"s_cmp_lt_u32 s{ct}, 4"); A(f"s_cselect_b32 s42, {hex(QSCALE)}, 1.0")
    A("s_and_b32 s56, s40, 7"); A("s_lshr_b32 s57, s40, 3"); A(f"s_mul_i32 s{sst}, s56, {GS}"); A(f"s_mul_i32 s58, s57, {K_OFF}"); A(f"s_add_u32 s{sst}, s{sst}, s58")
    A("s_mul_i32 s56, s56, 3"); A("s_add_u32 s56, s56, s57"); A("s_lshl_b32 s56, s56, 2"); A("s_lshr_b32 s57, s41, 3"); A("s_add_u32 s56, s56, s57"); A("s_lshl_b32 s56, s56, 5")
    A("s_and_b32 s57, s41, 7"); A("s_add_u32 s56, s56, s57"); A("s_lshl_b32 s56, s56, 2"); A(f"s_add_u32 s62, s56, {F1_OFF}")
    A(f"s_cmp_ge_u32 s{ct}, 8"); A(f"s_cbranch_scc1 {K}_v")

    def reads(stage):
        so = (stage & 1)*SL; f = FR + 72*(stage & 1)
        X = [[f"ds_read_b128 {r(f+8*xi+4*ks,4)}, {v(xa+ks)} offset:{so+2048*xi}" for ks in range(2)] for xi in range(4)]
        Wt = [[f"ds_read_b64_tr_b16 {r(f+32+8*wi+4*ks+2*h,2)}, {v(wa+(wi&1))} offset:{so+(32*ks+4*h)*320+32*wi}" for ks in range(2) for h in range(2)] for wi in range(5)]
        return Wt[0] + X[0] + X[1] + X[2] + X[3] + Wt[1] + Wt[2] + Wt[3] + Wt[4]
    flag = f"buffer_load_dword {v(t0)}, {v(L4V)}, {S4(SD)}, s22 offen sc1"
    def mainloop(isv):
        tag = "v" if isv else "q"
        if not isv:
            A("s_mul_i32 s56, s41, 5120"); A(f"s_add_u32 s{sst}, s{sst}, s56"); A(f"s_add_u32 s{sst+1}, s{sst}, 2560")
            A(f"s_add_u32 s{sst+2}, s{sst}, {163840+512}"); A(f"s_add_u32 s{sst+3}, s{sst+1}, {163840+512}")
            A(f"v_lshrrev_b32 {v(t0)}, 5, {v(LANE)}"); A(f"v_mul_u32_u24 {v(t0)}, {163840-2560}, {v(t0)}"); A(f"v_add_u32 {v(sa)}, {v(t0)}, {v(LV)}")
            A(f"v_lshlrev_b32 {v(rv)}, 2, {v(nn)}"); A(f"v_lshlrev_b32 {v(cv)}, 4, {v(qq)}")
        else:
            A("s_mul_i32 s56, s41, 10240"); A(f"s_add_u32 s{sst}, s{sst}, s56"); A(f"s_add_u32 s{sst+1}, s{sst}, 5120")
            A(f"v_mul_u32_u24 {v(t3)}, 1280, {v(qq)}"); A(f"v_lshl_add_u32 {v(sa)}, {v(nn)}, 4, {v(t3)}")
            A(f"v_lshlrev_b32 {v(rv)}, 4, {v(qq)}"); A(f"v_lshlrev_b32 {v(cv)}, 2, {v(nn)}")
        Q = VQ(); Q.add(0, dma(0))
        A.ext(Q.add(1, dma(1)))
        A.ext(Q.wait(0)); A("s_barrier"); ST.mark(2)
        A.ext(reads(0))
        BP = 8; FS = CFG.get("p1fs", 7)
        rsl = [f"buffer_load_dword{'x4' if isv else ''} {v(RS+16*k_+4*xi, 4 if isv else 1)}, {v(rv)}, {S4(SWS)}, s{43 if k_ else srs} offen offset:{64*xi} sc1" for k_ in range(2) for xi in range(4)]
        rsl += [f"buffer_load_dword{'' if isv else 'x4'} {v(CS+4*wi, 1 if isv else 4)}, {v(cv)}, {S4(SWS)}, s44 offen offset:{64*wi} sc1" for wi in range(5)]
        mf = []
        for st in range(10):
            f = FR + 72*(st & 1); X = lambda xi, ks: f+8*xi+4*ks; Wf = lambda wi, ks: f+32+8*wi+4*ks
            for wi in range(5):
                for xi in range(4):
                    for ks in range(2):
                        c0 = "0" if (st == 0 and ks == 0) else None
                        mf.append(mf16(ACC+16*wi+4*xi, X(xi, ks), Wf(wi, ks), c0) if isv else mf16(ACC+16*wi+4*xi, Wf(wi, ks), X(xi, ks), c0))
        T = TL(A, Q, mf)
        nonop = lambda L: [x for x in L if x != "s_nop 0"]
        for st in range(10):
            k0 = 40*st
            if 4*st in P1ST(): T.pre[k0].append(lambda i=3+P1ST().index(4*st): ST.mark(i))
            T.pre[k0].append("s_waitcnt lgkmcnt(15)"); T.pre[k0+BP].append("s_waitcnt lgkmcnt(0)")
            if st == 0:
                T.spread([(2, x) for x in dma(2)], 0, 0.8); T.spread([(3, x) for x in nonop(dma(3))], BP+2, 3.3)
            elif st+3 < 10: T.spread([(st+3, x) for x in nonop(dma(st+3))], k0+2, 4.3)
            if st == FS: T.post[k0+1].append(("f", flag))
            if st < 9:
                T.pre[k0+BP].append(("wait", st+1))
                if st == FS+1:
                    T.pre[k0+BP] += [("wait", "f"), f"v_or_b32 {v(t0)}, s{W}, {v(t0)}", f"v_cmp_eq_u32 vcc, 0, {v(t0)}", "s_nop 1", f"s_cbranch_vccnz {K}_rsspin{tag}", f"{K}_rsok{tag}:"]
                    T.spread([("rs", x) for x in rsl], k0+BP+1, 2.3)
                T.pre[k0+BP].append("s_barrier")
                T.spread([(None, x) for x in reads(st+1)], k0+BP, 31/28)
                if st & 1:
                    d = (2*SL if (st & 2) == 0 else -2*SL) & 0xffffffff
                    for j, x in enumerate(range(xa, xa+4)): T.valu[k0+3+j].append(f"v_add_u32 {v(x)}, {d}, {v(x)}")
        T.emit()
        ST.mark(3 + len(P1ST()))
        A.ext(Q.wait("rs"))
        if not isv:
            for xi in range(4): A(f"v_mul_f32 {v(RS+16+4*xi)}, s42, {v(RS+16+4*xi)}")
        n_ = 0
        for wi in range(5):
            for xp in range(2):
                o = OB + 4*(n_ % 4); n_ += 1
                for xi in (2*xp, 2*xp+1):
                    ac = ACC+16*wi+4*xi
                    for i in (0, 2):
                        if not isv: A(f"v_pk_fma_f32 {v(ac+i,2)}, {v(CS+4*wi+i,2)}, {v(RS+4*xi,2)}, {v(ac+i,2)} op_sel_hi:[1,0,1]")
                        else: A(f"v_pk_fma_f32 {v(ac+i,2)}, {v(RS+4*xi+i,2)}, {v(CS+4*wi,2)}, {v(ac+i,2)} op_sel_hi:[1,0,1]")
                for xi in (2*xp, 2*xp+1):
                    ac = ACC+16*wi+4*xi
                    for i in (0, 2):
                        if not isv: A(f"v_pk_mul_f32 {v(ac+i,2)}, {v(ac+i,2)}, {v(RS+16+4*xi,2)} op_sel_hi:[1,0]")
                        else: A(f"v_pk_mul_f32 {v(ac+i,2)}, {v(ac+i,2)}, {v(RS+16+4*xi+i,2)}")
                for i in range(2):
                    for j in range(2): A(f"v_cvt_pk_bf16_f32 {v(o+2*j+i)}, {v(ACC+16*wi+8*xp+4*j+2*i)}, {v(ACC+16*wi+8*xp+4*j+2*i+1)}")
                sw = "v_permlane32_swap_b32" if isv else "v_permlane16_swap_b32"
                A(f"{sw} {v(o)}, {v(o+2)}"); A("s_nop 0"); A(f"{sw} {v(o+1)}, {v(o+3)}")
                if isv: A(f"buffer_store_dwordx4 {v(o,4)}, {v(sa)}, {S4(SWS)}, s{sst+xp} offen offset:{256*wi} sc1")
                else: A(f"buffer_store_dwordx4 {v(o,4)}, {v(sa if wi == 2 else LV)}, {S4(SWS)}, s{sst+xp+2*(wi > 2)} offen offset:{1024*(wi if wi < 3 else wi-3)} sc1")
        COLD.append(lambda: (A(f"{K}_rsspin{tag}:"), poll(A, [flag], [t0], sleep=10), A(f"s_branch {K}_rsok{tag}")))
    mainloop(False)
    A(f"s_branch {K}_p1done")
    helper(A, ST, common, flag)
    A(f"{K}_v:")
    mainloop(True)
    A(f"{K}_p1done:")
    ST.n = 4 + len(P1ST())
    ST.mark()

def helper(A, ST, common, flag):
    hid, so, stp = 28, 32, 33
    nn, qq, sv = 6, 7, 12
    XB, SM, ONE = 64, 40, 32
    KS = CFG.get("hk", 1)
    A(f"{K}_help:")
    A(f"s_sub_u32 s{hid}, s2, 192")
    A(f"s_cmp_lt_u32 s{hid}, 32"); A("s_cselect_b32 s56, 1280, s56"); A("s_cselect_b32 s29, 1, 0")
    A("s_cmp_eq_u32 s29, 0"); A("s_cselect_b32 s56, 3840, s56")
    A(f"v_lshrrev_b32 v2, 3, {v(LANE)}"); A(f"v_and_b32 v3, 7, {v(LANE)}"); A("v_mul_u32_u24 v4, s56, v2"); A(f"v_lshl_add_u32 {v(sv)}, v3, 4, v4")
    A("s_lshl_b32 s57, s56, 3"); A(f"v_add_u32 {v(sv+1)}, s57, {v(sv)}")
    A(f"s_lshl_b32 s57, s56, 4"); A(f"s_mul_i32 s{so}, s57, s{W}")
    A(f"s_and_b32 s30, s{GX}, 3"); A("s_lshl_b32 s30, s30, 3"); A(f"s_lshr_b32 s57, s{hid}, 2"); A("s_and_b32 s57, s57, 7"); A("s_add_u32 s30, s30, s57")
    A(f"s_sub_u32 s31, s{hid}, 32"); A(f"s_mul_i32 s57, s30, {64*1280}"); A("s_lshl_b32 s58, s31, 7")
    A("s_cmp_eq_u32 s29, 0"); A("s_cselect_b32 s57, s58, s57"); A(f"s_cselect_b32 s{stp}, {64*3840}, s56"); A(f"s_add_u32 s{so}, s{so}, s57")
    A("s_cmp_eq_u32 s29, 1"); A(f"s_cselect_b32 s{stp}, 128, s{stp}")
    A(f"s_mul_i32 s57, s{stp}, {KS}"); A(f"s_add_u32 s{so}, s{so}, s57"); A(f"s_mul_i32 s34, s{stp}, -9")
    A("s_waitcnt lgkmcnt(0)")
    srd(A, SX, 36, 2621440)
    A("s_cmp_eq_u32 s29, 1"); A(f"s_cselect_b64 s[{SA}:{SA+1}], s[36:37], s[38:39]"); A(f"s_cselect_b32 s{SA+2}, s{SX+2}, 2457600"); A(f"s_mov_b32 s{SA+3}, 0x20000")
    A(f"s_cmp_lt_u32 s{hid}, 62"); A(f"s_cselect_b32 s{SA+2}, s{SA+2}, 0")
    Q = VQ()
    def xl(i):
        L = [f"buffer_load_dwordx4 {v(XB+4*i,4)}, {v(sv+(i&1))}, {S4(SA)}, s{so} offen"]
        if i & 1: L.append(f"s_add_u32 s{so}, s{so}, s{stp if i//2+KS != 9 else 34}")
        return L
    for i in range(10): A.ext(Q.add(("x", i), xl(i)))
    common()
    marks = list(range(1, 4 + len(P1ST())))
    def mk():
        if marks: ST.mark(marks.pop(0))
    mk()
    for i in range(4): A(f"v_mov_b32 {v(8+i)}, 0"); A(f"v_mov_b32 {v(ONE+i)}, 0x3f803f80")
    for i in range(8): A(f"v_mov_b32 {v(SM+i)}, 0")
    col, both = A.label("hcol"), A.label("hboth")
    def stats(proc, fin):
        Q2 = VQ(); Q2.q = list(Q.q)
        for i in range(10, 20): A.ext(Q2.add(("x", i), xl(i))); A.ext(Q2.wait(("x", i-10))); proc(i-10)
        for i in range(10, 20): A.ext(Q2.wait(("x", i))); proc(i)
        fin(Q2); return Q2
    A("s_cmp_eq_u32 s29, 0"); A(f"s_cbranch_scc1 {col}")
    def rproc(i):
        for j in range(4): A(f"v_dot2c_f32_bf16 {v(SM+2*(i&1))}, {v(ONE)}, {v(XB+4*i+j)}"); A(f"v_dot2c_f32_bf16 {v(SM+2*(i&1)+1)}, {v(XB+4*i+j)}, {v(XB+4*i+j)}")
    def rfin(Q2):
        A("s_nop 2")
        for mod in ("quad_perm:[1,0,3,2]", "quad_perm:[2,3,0,1]", "row_half_mirror"):
            for i in range(4): A(f"v_add_f32_dpp {v(SM+i)}, {v(SM+i)}, {v(SM+i)} {mod} row_mask:0xf bank_mask:0xf")
        A("v_cmp_eq_u32 vcc, 1, v3"); A(f"v_lshrrev_b32 v4, 3, {v(LANE)}"); A("v_lshl_add_u32 v4, v3, 3, v4")
        A(f"v_cndmask_b32 {v(SM)}, {v(SM)}, {v(SM+2)}, vcc"); A(f"v_cndmask_b32 {v(SM+1)}, {v(SM+1)}, {v(SM+3)}, vcc")
        A(f"v_mul_f32 {v(SM)}, {hex(f2u(-1/640))}, {v(SM)}"); A(f"v_mul_f32 {v(SM+1)}, {hex(f2u(1/640))}, {v(SM+1)}")
        A(f"v_fma_f32 {v(SM+1)}, -{v(SM)}, {v(SM)}, {v(SM+1)}"); A(f"v_max_f32 {v(SM+1)}, 0, {v(SM+1)}")
        A(f"v_add_f32 {v(SM+1)}, {hex(f2u(1e-5))}, {v(SM+1)}"); A(f"v_rsq_f32 {v(SM+1)}, {v(SM+1)}")
        A("v_lshlrev_b32 v4, 2, v4"); A(f"v_mov_b32 v5, {OOB}"); A("v_cmp_gt_u32 vcc, 2, v3"); A("s_lshl_b32 s57, s30, 2"); A(f"s_add_u32 s57, s57, s{W}"); A("v_cndmask_b32 v4, v5, v4, vcc")
        A("s_lshl_b32 s57, s57, 6"); A(f"s_add_u32 s57, s57, {RS_OFF}"); A("s_add_u32 s58, s57, 8192")
        A.ext(Q2.add("s", [f"buffer_store_dword {v(SM)}, v4, {S4(SWS)}, s57 offen sc1", f"buffer_store_dword {v(SM+1)}, v4, {S4(SWS)}, s58 offen sc1"]))
    stats(rproc, rfin)
    A(f"s_branch {both}")
    A(f"{col}:")
    def cproc(i):
        for j in range(4):
            A(f"v_lshlrev_b32 v16, 16, {v(XB+4*i+j)}"); A(f"v_and_b32 v17, 0xffff0000, {v(XB+4*i+j)}"); A(f"v_pk_add_f32 {v(SM+2*j,2)}, {v(SM+2*j,2)}, v[16:17]")
    def cfin(Q2):
        A("s_nop 1")
        for i in range(8): A(f"v_add_f32_dpp {v(SM+i)}, {v(SM+i)}, {v(SM+i)} row_ror:8 row_mask:0xf bank_mask:0xf")
        quad_sum(A, list(range(SM, SM+8)), list(range(16, 24)))
        EX = 147456
        A(f"s_lshl_b32 s57, s{W}, 8"); A(f"s_add_u32 s57, s57, {EX}"); A("v_lshl_add_u32 v4, v3, 5, s57")
        A(f"ds_write_b128 v4, {v(SM,4)}"); A(f"ds_write_b128 v4, {v(SM+4,4)} offset:16"); A(f"v_add_u32 v4, {EX}, {v(L4V)}")
        A("s_waitcnt lgkmcnt(0)"); A("s_barrier")
        for i in range(4): A(f"ds_read_b32 {v(16+i)}, v4 offset:{256*i}")
        A("s_lshl_b32 s57, s31, 8"); A(f"s_add_u32 s57, s57, {C1_OFF}"); A("s_add_u32 s57, s57, s22"); A(f"s_mov_b32 s58, {OOB}")
        A("s_waitcnt lgkmcnt(0)"); A("v_add_f32 v16, v16, v17"); A("v_add_f32 v18, v18, v19"); A("v_add_f32 v16, v16, v18")
        A.ext(Q2.add("s", [f"buffer_store_dword v16, {v(L4V)}, {S4(SWS)}, s57 offen sc1", f"buffer_store_dword v16, {v(L4V)}, {S4(SWS)}, s58 offen sc1"]))
    Q = stats(cproc, cfin)
    A(f"{both}:"); mk()
    A(f"s_lshr_b32 s57, s{W}, 1"); A(f"s_lshl_b32 s56, s{hid}, 1"); A("s_add_u32 s56, s56, s57"); A("s_mul_i32 s56, s56, 640"); A(f"s_add_u32 s56, s56, {F2_OFF}")
    A(f"s_bitcmp1_b32 s{W}, 0"); A(f"s_cselect_b32 s56, s56, {OOB}"); A(f"v_min_u32 v4, {39*16}, {v(LV)}")
    A(f"s_mul_i32 s57, s{hid}, 5120"); A(f"s_add_u32 s57, s57, {ONES_OFF}"); A(f"s_cmp_eq_u32 s{W}, 2"); A(f"s_cselect_b32 s57, s57, {OOB}"); A(f"v_and_b32 v5, 1, {v(LANE)}"); A("v_mul_u32_u24 v5, 2560, v5")
    A.ext(Q.add("s", [f"buffer_store_dwordx4 v[8:11], v4, {S4(SWS)}, s56 offen sc1", f"buffer_store_dwordx4 {v(ONE,4)}, v5, {S4(SWS)}, s57 offen sc1"]))
    A(f"s_lshl_b32 s35, s{hid}, 2"); A("s_add_u32 s35, s35, s22"); A("v_mov_b32 v16, 1")
    A.ext(Q.wait("s")); A("s_barrier")
    A.ext(Q.add("f", [f"buffer_store_dword v16, off, {S4(SD)}, s35 sc1"]))
    mk()
    def touch(S, i0, i1):
        A(f"s_cmp_eq_u32 s{W}, 1"); A("s_cselect_b64 s[56:57], s[82:83], s[80:81]"); A(f"s_cmp_eq_u32 s{W}, 2"); A("s_cselect_b64 s[56:57], s[84:85], s[56:57]")
        A("s_mov_b32 s36, 34560"); A(f"s_cmp_eq_u32 s{W}, 3"); A(f"s_cselect_b64 s[{S}:{S+1}], s[88:89], s[56:57]"); A("s_cselect_b32 s36, 12800, s36"); A(f"s_mov_b32 s{S+3}, 0x20000")
        A("s_sub_u32 s56, s2, 192"); A("s_mul_i32 s56, s56, s36"); A(f"s_add_u32 s{S+2}, s56, s36"); A(f"s_add_u32 s56, s56, {8192*i0}"); A(f"v_lshlrev_b32 v3, 7, {v(LANE)}")
        for it in range(i0, i1): A(f"buffer_load_dword v248, v3, {S4(S)}, s56 offen"); A("s_add_u32 s56, s56, 8192")
    H1 = CFG.get("ht1", 5)
    touch(SR, 0, H1)
    while marks: mk()
    def rest():
        A(f"{K}_help2:")
        touch(80, H1, CFG.get("ht", 5))
        A(flag); A("s_waitcnt vmcnt(0)"); A(f"v_or_b32 v2, s{W}, v2"); A("v_cmp_eq_u32 vcc, 0, v2"); A("s_nop 1")
        A(f"s_cbranch_vccz {K}_help4"); A("s_sleep 40"); poll(A, [flag], [2], sleep=40); A(f"{K}_help4:"); A("s_barrier")
        A("s_mov_b64 exec, 1"); poll(A, [f"buffer_load_dword v4, v145, {S4(SWS)}, s59 offen sc1"], [4], sleep=6); A("s_mov_b64 exec, -1"); A(f"s_branch {K}_help3")
    COLD.append(rest)
    A(f"s_branch {K}_p1done")

def w3reg(f): return 256 + 192 + 4*f if f < 16 else 148 + 4*(f-16)
WV = 250
P3RES, P3CS = 184, 194
SK_WR, SK_RD, SK_RM = 242, 245, 246
def p3_wload(f):
    ks, u = divmod(f, 5)
    L = [f"buffer_load_dwordx4 {r(w3reg(f),4)}, {v(WV if u < 4 else WV+1)}, {S4(SWS)}, s44 offen offset:{1024*(u&3)} sc1"]
    if u == 4: L.append("s_add_u32 s44, s44, 40960" if ks != 3 else "s_mov_b32 s44, s78")
    return L
CMB = 86016

def TOUCHES(key="touch", dflt=""): return [(int(x.split(":")[0]), x.split(":")[1]) for x in str(CFG.get(key, dflt)).split(",") if x]
def gtouch(what):
    c, k_ = what[0], int(what[1:] or 0)
    if c == "u": return [f"s_mov_b64 s[{SR}:{SR+1}], s[86:87]", f"s_mov_b32 s{SR+2}, 2621440", f"buffer_load_dword v248, v147, {S4(SR)}, s90 offen offset:{1280*k_} sc1"]
    reg, vr, base = {"N": (76, TV, HH_OFF() + 3456*k_), "h": (90, 147, H_OFF()),
                     "s": (93, None, STAT_OFF), "g": (79, TV, WGU_OFF + 442368*k_), "d": (79, TV, WD_OFF + 442368*k_)}[c]
    return [f"s_add_u32 s91, s{reg}, {base}", f"buffer_load_dword v248, {v(vr) if vr else 'off'}, {S4(SWS)}, s91 {'offen' if vr else ''} sc1"]
def phase2(A, ST):
    odd, sok, sov, sox, redo, sob, sfr, stch = 28, 72, 73, 74, 32, 33, 34, 35
    S0, S1, P, E, O0 = 16, 48, 80, 96, 104
    kv, kxv, vv, ov, oxv, cw, cr, tv = 136, 137, 138, 139, 140, 141, 144, 145
    OA, QM, QX, KR, VR, XR = 256, 256+96, 256+128, 256+136, 256+152, 256+184
    Oreg = lambda lp: O0 if lp == 0 else OA + 32*(lp-1)
    t0, t1, t2, t3, t4 = 2, 3, 4, 5, 6
    LD = CFG.get("ld", "sc1")
    head, qb = 30, 31
    A(f"s_lshl_b32 s{head}, s{GX}, 2"); A(f"s_and_b32 s36, s{GI}, 3"); A(f"s_add_u32 s{head}, s{head}, s36"); A(f"s_lshr_b32 s{qb}, s{GI}, 2")
    A(f"s_and_b32 s{odd}, s{head}, 1")
    A(f"s_bfe_u32 s36, s{head}, 0x10001"); A("s_mul_i32 s37, s36, 163840"); A(f"s_add_u32 s37, s37, s{GB}")
    A(f"s_add_u32 s38, s37, {K_OFF}"); A(f"s_add_u32 s{SA}, s{SWS}, s38"); A(f"s_addc_u32 s{SA+1}, s{SWS+1}, 0"); A(f"s_mov_b32 s{SA+2}, 163840")
    A(f"s_mul_i32 s{sob}, s{qb}, {GS}"); A(f"s_lshl_b32 s36, s{head}, 9"); A(f"s_add_u32 s{sob}, s{sob}, s36")
    A(f"s_lshl_b32 s36, s{W}, 14"); A(f"s_add_u32 s63, s{sob}, s36"); A(f"s_add_u32 s63, s63, {OX_OFF}")
    A(f"s_lshl_b32 s36, s{W}, 16"); A(f"s_add_u32 s{sob}, s{sob}, s36"); A(f"s_add_u32 s{sob}, s{sob}, {O_OFF}")
    A(f"s_lshl_b32 s38, s{qb}, 2")
    for i in range(4):
        A(f"s_add_u32 s36, s{W}, {i}"); A("s_and_b32 s36, s36, 3")
        if i: A("s_mul_i32 s39, s36, 18432"); A(f"s_add_u32 s39, s39, {CMB+(i-1)*6144}"); A(f"v_add_u32 {v(cw+i-1)}, s39, {v(LV)}")
        else: A("s_mul_i32 s39, s36, 18432"); A(f"s_add_u32 s39, s39, {CMB}"); A(f"v_add_u32 {v(cr)}, s39, {v(LV)}")
        A("s_add_u32 s36, s36, s38"); A("s_mul_i32 s36, s36, 5120"); A(f"s_add_u32 s{40+i}, s36, s37")
    A(f"s_mul_i32 s36, s{odd}, 1536"); A(f"v_add_u32 {v(kv)}, s36, {v(LV)}")
    A(f"v_and_b32 {v(t0)}, 31, {v(LANE)}"); A(f"v_lshrrev_b32 {v(t1)}, 5, {v(LANE)}")
    A(f"s_lshl_b32 s36, s{odd}, 3"); A("s_add_u32 s37, s36, 1024")
    A(f"v_lshl_add_u32 {v(t4)}, {v(t0)}, 4, s37")
    A(f"v_mul_u32_u24 {v(t2)}, 2560, {v(t1)}"); A(f"v_add_u32 {v(kxv)}, {v(t4)}, {v(t2)}")
    A(f"v_bfe_u32 {v(t2)}, {v(LANE)}, 4, 1"); A(f"v_lshlrev_b32 {v(t2)}, 14, {v(t2)}"); A(f"v_and_b32 {v(t3)}, 15, {v(LANE)}"); A(f"v_lshl_add_u32 {v(t2)}, {v(t3)}, 4, {v(t2)}")
    A(f"v_lshl_add_u32 {v(ov)}, {v(t1)}, 8, {v(t2)}")
    A(f"v_lshrrev_b32 {v(t2)}, 2, {v(t0)}"); swap01(A, t3, t2, 7)
    A(f"v_and_b32 {v(t2)}, 3, {v(t0)}"); A(f"v_lshl_add_u32 {v(t2)}, {v(t3)}, 2, {v(t2)}")
    A(f"v_mul_u32_u24 {v(t3)}, 1280, {v(t1)}"); A(f"v_lshl_add_u32 {v(t2)}, {v(t2)}, 4, {v(t3)}")
    A(f"s_and_b32 s36, s{head}, 3"); A("s_mul_i32 s36, s36, 320"); A(f"v_add_u32 {v(t2)}, s36, {v(t2)}")
    A(f"v_mov_b32 {v(t3)}, {OOB}"); A(f"v_cmp_gt_u32 vcc, 20, {v(t0)}"); A("s_nop 1"); A(f"v_cndmask_b32 {v(t2)}, {v(t3)}, {v(t2)}, vcc")
    A(f"s_sub_u32 s36, {ONES_OFF-V_OFF}, s{GB}"); A(f"v_mov_b32 {v(t3)}, s36")
    A(f"v_cmp_eq_u32 vcc, 20, {v(t0)}"); A("s_nop 1"); A(f"v_cndmask_b32 {v(vv)}, {v(t2)}, {v(t3)}, vcc")
    A(f"s_mul_i32 s{sok}, s{W}, {16*2560}"); A(f"s_mov_b32 s{sox}, s{sok}")
    A(f"s_mul_i32 s36, s{W}, {16*5120}"); A(f"s_add_u32 s{sov}, s{GB}, s36"); A(f"s_add_u32 s{sov}, s{sov}, {V_OFF}")
    A(f"s_mov_b32 s{redo}, 0"); A("v_mov_b32 v10, 1")
    def setflag():
        lab = A.label("noflag"); A("s_cmp_ge_u32 s2, 192"); A(f"s_cbranch_scc1 {lab}")
        A("s_waitcnt vmcnt(0)"); A(f"buffer_store_dword v10, off, {S4(SWS)}, s62 sc1"); A(f"{lab}:"); ST.mark()
    if CFG.get("fpos", 1) == 0: setflag()
    A(f"s_bfe_u32 s36, s{GI}, 0x10002"); A("s_lshl_b32 s37, s36, 10"); A(f"v_add_u32 {v(WV)}, s37, {v(LV)}")
    A("s_xor_b32 s36, s36, 1"); A("s_lshl_b32 s37, s36, 12"); A(f"v_add_u32 {v(WV+1)}, s37, {v(LV)}")
    A(f"s_lshr_b32 s36, s{GI}, 2"); A("s_mul_i32 s36, s36, 5120"); A(f"s_mul_i32 s44, s{W}, {4*40960}"); A("s_add_u32 s44, s44, s36"); A(f"s_add_u32 s44, s44, {WO_OFF}")
    A(f"s_mul_i32 s78, s{W}, 40960"); A("s_add_u32 s78, s78, s36"); A(f"s_add_u32 s78, s78, {WO_OFF+16*40960}")
    skinny_addr(A); p4_setup(A)
    A(f"s_lshl_b32 s75, s{P4_ST}, 7"); A(f"s_add_u32 s75, s75, {CS_OFF}"); A("v_lshlrev_b32 v146, 2, v0")
    if CFG.get("fpos", 1) == 1: setflag()
    relayout_setup(A)
    A(f"s_lshl_b32 s36, s{GX}, 5"); A(f"s_add_u32 s36, s36, s{GI}"); A("s_lshl_b32 s36, s36, 2"); A(f"s_add_u32 s36, s36, s{W}")
    A(f"s_lshl_b32 s{sfr}, s2, 5"); A(f"s_add_u32 s{sfr}, s{sfr}, s{W}"); A(f"s_lshl_b32 s{sfr}, s{sfr}, 2"); A(f"s_add_u32 s{sfr}, s{sfr}, {FR_OFF}")
    A(f"s_lshl_b32 s77, s{GX}, 7"); A(f"s_add_u32 s77, s77, {FR_OFF}"); A(f"s_lshl_b32 s101, s{W}, 13"); A(f"s_add_u32 s101, s101, {FR_OFF}")
    A(f"v_mov_b32 v11, {v(TV)}"); A(f"v_and_b32 v8, 31, {v(LANE)}"); A("v_lshlrev_b32 v8, 10, v8")
    A("s_lshl_b32 s93, s36, 7"); A("s_and_b32 s36, s36, 127"); A("s_mul_i32 s79, s36, 3456")
    A("s_mul_i32 s76, s36, 6912"); A(f"s_add_u32 s76, s76, s{GB}"); A("s_mul_i32 s90, s36, 2560"); A(f"s_add_u32 s90, s90, s{GB}")
    A(f"v_min_u32 v147, {19*128}, {v(TV)}"); A(f"v_min_u32 {v(TV)}, {26*128}, {v(TV)}"); A(f"v_mov_b32 v7, s{MYF}")
    A(f"s_lshl_b32 s38, s{qb}, 2"); A(f"s_add_u32 s38, s38, s{W}"); A("s_lshl_b32 s38, s38, 2"); A(f"s_lshr_b32 s39, s{head}, 3"); A("s_add_u32 s38, s38, s39"); A("s_lshl_b32 s38, s38, 5")
    A(f"s_and_b32 s39, s{head}, 7"); A("s_add_u32 s38, s38, s39"); A("s_lshl_b32 s38, s38, 2"); A(f"s_add_u32 s38, s38, {F2_OFF}")
    A(f"s_add_u32 s39, s{sob}, 32768")
    A(f"v_min_u32 v2, 23, {v(LANE)}"); A("v_lshrrev_b32 v3, 3, v2"); A("v_and_b32 v4, 7, v2"); A("v_lshlrev_b32 v3, 9, v3"); A("v_lshl_add_u32 v3, v4, 2, v3"); A(f"s_lshl_b32 s36, s{W}, 7"); A("v_add_u32 v3, s36, v3")
    A(f"s_lshr_b32 s36, s{qb}, 1"); A("s_lshl_b32 s36, s36, 7"); A(f"s_and_b32 s37, s{qb}, 1"); A("s_lshl_b32 s37, s37, 4"); A("s_add_u32 s36, s36, s37")
    A("v_and_b32 v4, 3, v2"); A("v_cmp_gt_u32 vcc, 8, v2"); A("v_lshl_add_u32 v4, v4, 2, s36"); A(f"s_mul_i32 s59, s{GX}, 1536"); A(f"v_cndmask_b32 {v(tv)}, v3, v4, vcc"); A(f"s_add_u32 s59, s59, {F1_OFF}")
    w5_setup(A)
    if CFG.get("fpos", 1) == 2: setflag()
    A("s_cmp_ge_u32 s2, 192"); A(f"s_cbranch_scc1 {K}_help2"); A(f"{K}_help3:")
    A("s_barrier")
    f1l = [f"buffer_load_dword v4, {v(tv)}, {S4(SWS)}, s59 offen sc1"]
    poll(A, f1l, [4], sleep=CFG.get("f1s", 1))
    ST.mark()
    Kr = lambda t: KR + 4*(t % 4)
    Vr = lambda t, sx: VR + 8*(t % 4) + 4*sx
    Xr = lambda j: XR + 2*(j % 2)
    def ldk(t): return [f"buffer_load_dwordx4 {r(Kr(t),4)}, {v(kv)}, {S4(SA)}, s{sok} offen offset:{2560*(t&1)} {LD}"] + ([f"s_add_u32 s{sok}, s{sok}, 5120"] if t & 1 else [])
    def ldx(j): return [f"buffer_load_dwordx2 {r(Xr(j),2)}, {v(kxv)}, {S4(SA)}, s{sox} offen sc1", f"s_add_u32 s{sox}, s{sox}, 5120"]
    def ldv(t, sx): return [f"buffer_load_dwordx4 {r(Vr(t,sx),4)}, {v(vv)}, {S4(SWS)}, s{sov} offen offset:{2560*sx} {LD}"] + ([f"s_add_u32 s{sov}, s{sov}, 5120"] if sx else [])
    def ldq(lp): return ([f"buffer_load_dwordx2 {r(QX+2*lp,2)}, {v(kxv)}, {S4(SWS)}, s{40+lp} offen sc1"] +
                         [f"buffer_load_dwordx4 {r(QM+8*lp+4*j,4)}, {v(kv)}, {S4(SWS)}, s{40+lp} offen offset:{2560*j} sc1" for j in range(2)])
    Q = VQ()
    order = (1, 2, 3, 0)
    NT = CFG.get("tail", 3)
    seq = [(t, lp) for t in range(16-NT) for lp in order] + [(t, lp) for lp in order for t in range(16-NT, 16)]
    first = [(("x", 0), ldx(0)), (("k", 0), ldk(0)), (("q", 1), ldq(1)), (("q", 2), ldq(2)), (("v", 0, 0), ldv(0, 0)), (("v", 0, 1), ldv(0, 1)), (("q", 3), ldq(3)), (("q", 0), ldq(0))]
    U0 = CFG.get("au", 6)
    for tag, ops in first[:U0]: A.ext(Q.add(tag, ops))
    side = {b: [] for b in range(64)}
    fix = {(b, k): [] for b in range(64) for k in range(8)}
    def put(b, tag, ops): side[b] += [(tag, x) for x in ops]
    put(0, ("k", 1), ldk(1)); put(0, ("v", 1, 0), ldv(1, 0)); put(1, ("v", 1, 1), ldv(1, 1)); put(1, ("x", 1), ldx(1)); put(2, ("k", 2), ldk(2))
    put(2, ("v", 2, 0), ldv(2, 0)); put(3, ("v", 2, 1), ldv(2, 1)); put(3, ("k", 3), ldk(3)); put(4, ("v", 3, 0), ldv(3, 0)); put(4, ("v", 3, 1), ldv(3, 1))
    for t in range(12):
        d = 2*(t == 0)
        put(4*t+3+d, ("k", t+4), ldk(t+4)); put(4*t+4+d, ("v", t+4, 0), ldv(t+4, 0)); put(4*t+5+d, ("v", t+4, 1), ldv(t+4, 1))
    for j in range(6): put(8*j+6, ("x", j+2), ldx(j+2))
    for b in (10, 26, 42, 54): put(b, "pc", [CODE_TOUCH])
    mid = {b: [] for b in range(64)}
    B0, SP, B1, SS = CFG.get("b0", 3), CFG.get("rsp", 1), CFG.get("b1", 10), CFG.get("rss", 3)
    for i in range(10): put(B0+SP*i, ("rd", i), rl_dma(i))
    for a_ in range(5):
        b_ = B1 + SS*a_
        assert b_ > B0+SP*(2*a_+1)
        put(b_, None, [("wait", ("rd", 2*a_+1))] + rl_read(a_, 0) + rl_read(a_, 1))
        put(b_+1, "rs", ["s_waitcnt lgkmcnt(0)"] + rl_store(a_, 0)); put(b_+2, "rs", rl_store(a_, 1)); mid[b_+1] += [rl_sum(a_, 0), rl_sum(a_, 1)]
    put(b_+2, "rs", rl_cs(0) + rl_cs(1))
    B2 = b_ + 2 + CFG.get("b2", 3)
    put(B2, "fr", [("wait", "rs"), f"buffer_store_dword v7, off, {S4(SWS)}, s{sfr} sc1"])
    BR = B2 + CFG.get("b3", 5); BQ = BR + 4
    frl = [f"buffer_load_dwordx4 {v(RLF,4)}, v11, {S4(SWS)}, s101 offen sc1"]
    put(BR, "frl", frl)
    chk = [f"v_min3_u32 {v(RLF)}, {v(RLF)}, {v(RLF+1)}, {v(RLF+2)}", f"v_min_u32 {v(RLF)}, {v(RLF)}, {v(RLF+3)}", f"v_cmp_eq_u32 vcc, 0, {v(RLF)}"]
    put(BR+3, None, [("wait", "frl")] + chk + ["s_nop 0", f"s_cbranch_vccnz {K}_frspin", f"{K}_frok:", "s_barrier"])
    put(BQ, "grp", [f"buffer_load_dword v9, v8, {S4(SWS)}, s77 offen sc1"])
    put(BQ+4, None, [("wait", "grp"), "v_cmp_ne_u32 vcc, v7, v9", "s_nop 0", "s_cmp_eq_u64 vcc, 0", f"s_cselect_b32 s{MODE}, {0 if CFG.get('safe') else 1}, 0"])
    put(BQ+5, None, [f"s_cmp_eq_u32 s{MODE}, 0", f"s_cselect_b32 s{stch}, {OOB}, 0", f"s_add_u32 s76, s76, s{stch}", f"s_add_u32 s90, s90, s{stch}", f"s_add_u32 s93, s93, s{stch}"])
    pf = [x for st_ in range(3) for x in p4_dma(st_)]
    pf += [x for kq in range(4) for x in (f"buffer_load_dword {v(P3CS+kq)}, v146, {S4(SWS)}, s75 offen sc1", f"s_add_u32 s75, s75, {108*128}")]
    pf += io_rm("load", P3RES, SX)
    pf += [x for f in range(25) for x in p3_wload(f)]
    for b_, what in TOUCHES():
        assert b_ > BQ+5; put(b_, "t", gtouch(what))
    PE = CFG.get("pfe", 57); nreal = sum(not is_salu(x) for x in pf)
    bl = [b for b in range(BR+4, PE) if b not in (BQ+4, BQ+5)]
    for i, b in enumerate(bl):
        take = -(-nreal//(len(bl)-i))
        while pf and take > 0:
            x = pf.pop(0); put(b, "pf", [x])
            if not is_salu(x): take -= 1; nreal -= 1
    cwr = lambda lp: [f"ds_write_b128 {v(cw+lp-1)}, {r(Oreg(lp)+16*j+4*g,4)} offset:{3072*j+1024*g}" for j in range(2) for g in range(3)]
    E0 = 64 - 3*NT
    for n in range(3):
        b0 = E0 + NT*n
        for x, pos in zip(cwr(order[n]), [(b0, 3), (b0, 5), (b0, 7), (b0+1, 3), (b0+1, 5), (b0+1, 7)]): fix[pos].append(x)
    for f in range(CFG["w5z"]):
        b_ = E0 + NT*(f//8) + 2 + ((f % 8)*3)//8
        if f % 8 == 0: fix[(b_, 2)].append("s_waitcnt lgkmcnt(0)")
        put(b_, "w5", w5load(f))
    nxt63 = S0
    CB = [[204+4*i for i in range(6)], [nxt63+4*i for i in range(6)], [228, 232, 236, 200, nxt63+24, nxt63+28]]
    crd = lambda sl: [f"ds_read_b128 {v(CB[sl][3*j+g],4)}, {v(cr)} offset:{6144*sl+3072*j+1024*g}" for j in range(2) for g in range(3)]
    fix[(63, 2)] += ["s_waitcnt lgkmcnt(0)", "s_barrier"] + crd(0)
    fix[(63, 3)] += crd(1); fix[(63, 6)] += crd(2)
    A.ext(Q.wait(("q", 1)))
    A(mf2b(S0, Xr(0), QX+2, "0", 0))
    n0 = len(A.L)
    for tag, ops in first[U0:]: A.ext(Q.add(tag, ops))
    n0 = 18 - (len(A.L) - n0)
    if n0 > 16: A("s_nop 1"); n0 -= 2
    A(f"s_nop {n0-1}")
    A(mf32(S0, Kr(0), QM+8)); A(mf32(S0+16, Kr(0), QM+12))
    A.ext(Q.wait(("q", 2)))
    ST.mark()
    A("s_nop 9"); A(".p2align 3")
    def needs(b, k):
        if b > 63: return []
        t = seq[b][0]; t1_, lp1 = seq[min(b+1, 63)]
        if k == 0: return [("x", t1_ >> 1), ("q", lp1)] if b < 63 else []
        if k == 4: return [("k", t1_)] if b < 63 else []
        if k == 3: return [("v", t, 0)]
        if k == 6: return [("v", t, 1)]
        return []
    ismem = lambda x: not (isinstance(x, tuple) or is_salu(x) or x.startswith("v_") or x.endswith(":"))
    for b in range(64):
        t, lp = seq[b]
        cur, nxt = (S0, S1) if b % 2 == 0 else (S1, S0)
        c0 = "0" if t == 0 else None
        mf = {3: mf32(Oreg(lp), Vr(t, 0), P, c0), 6: mf32(Oreg(lp), Vr(t, 1), P+4), 7: mf32(Oreg(lp)+16, Vr(t, 0), P+8, c0)}
        if b: mf[2] = mf32(Oreg(seq[b-1][1])+16, Vr(seq[b-1][0], 1), P+12)
        if b < 63:
            t1_, lp1 = seq[b+1]
            mf[0] = mf2b(nxt, Xr(t1_ >> 1), QX+2*lp1, "0", t1_ & 1); mf[4] = mf32(nxt, Kr(t1_), QM+8*lp1); mf[5] = mf32(nxt+16, Kr(t1_), QM+8*lp1+4)
        q = side[b]; mq = list(mid[b])
        if b in ASTAMPS(): ST.mark()
        for k in range(8):
            if k in mf: A(mf[k])
            n0 = len(A.L)
            if k >= 2:
                tags = needs(b, k+1) if k < 7 else needs(b+1, 0)
                w_ = Q.wait(*tags) if tags else []
                A.ext(w_); A.ext(fix[(b, k)])
                free = not w_ and not fix[(b, k)]; nmem = 0
                left = sum(1 for tg, x in q if ismem(x))
                even = len([j for j in range(k, 8) if j % 2 == 0])
                want = (1 if k % 2 == 0 else 0) if left <= even else -(-left//(8-k))
                while q:
                    tg, x = q[0]
                    if isinstance(x, tuple):
                        if not free and k < 7: break
                        q.pop(0); w_ = Q.wait(x[1]); A.ext(w_); free = free and not w_
                    elif x.endswith(":") or x.startswith("v_"): q.pop(0); A(x); free = False; nmem = 99 if k < 7 else nmem
                    elif is_salu(x):
                        if not free and k < 7 and len(q) <= 2*(7-k): break
                        q.pop(0); A(x); free = False
                    else:
                        if nmem >= want and k < 7: break
                        q.pop(0); A.ext(Q.add(tg, [x])); nmem += 1; free = False
            four = sum(1 for x in A.L[n0:] if isize(x) == 4)
            pk = (k-1) % 8; eb = E + 4*(pk & 1)
            if b or k:
                for j in range(2): A(f"v_cvt_pk_bf16_f32 {v(P+2*pk+j)}, {v(eb+2*j)}, {v(eb+2*j+1)}")
            for j in range(4):
                wide = j == 0 and four % 2 == 1
                A(f"v_exp_f32{'_e64' if wide else ''} {v(E+4*(k&1)+j)}, {v(cur+4*k+j)}")
                if j == 1 and k >= 3 and mq and not any(x == "s_waitcnt lgkmcnt(0)" for _, x in q): A(mq.pop(0))
        assert not q and not mq, (b, q)
    for j in range(2): A(f"v_cvt_pk_bf16_f32 {v(P+14+j)}, {v(E+4+2*j)}, {v(E+5+2*j)}")
    A("s_waitcnt lgkmcnt(0)"); A("s_nop 0")
    A(mf32(O0+16, Vr(15, 1), P+12))
    ST.mark()
    for j in range(2):
        for g in range(3):
            for i in range(4): A(f"v_add_f32 {v(CB[0][3*j+g]+i)}, {v(CB[0][3*j+g]+i)}, {v(CB[1][3*j+g]+i)}") if (j == 0 and g < 2) else None
            if not (j == 0 and g < 2):
                for i in (0, 2): A(f"v_pk_add_f32 {v(CB[0][3*j+g]+i,2)}, {v(CB[0][3*j+g]+i,2)}, {v(CB[1][3*j+g]+i,2)}")
    for sl in (0, 2):
        for j in range(2):
            for g in range(3):
                for i in (0, 2): A(f"v_pk_add_f32 {v(O0+16*j+4*g+i,2)}, {v(O0+16*j+4*g+i,2)}, {v(CB[sl][3*j+g]+i,2)}")
    A(f"{K}_anorm:")
    A(f"v_mov_b32 v12, {v(O0+8)}"); A(f"v_mov_b32 v13, {v(O0+8)}"); A(f"v_mov_b32 v14, {v(O0+24)}"); A(f"v_mov_b32 v15, {v(O0+24)}")
    A(f"s_mov_b32 s36, {hex(f2u(2.0**60))}"); A(f"s_mov_b32 s37, {hex(f2u(2.0**-60))}")
    A("v_permlane32_swap_b32 v12, v13"); A("v_permlane32_swap_b32 v14, v15"); A("s_nop 1")
    A("v_rcp_f32 v12, v13"); A("v_rcp_f32 v14, v15")
    A("v_cmp_nlt_f32_e64 vcc, v13, s36"); A("v_cmp_nlt_f32_e64 s[40:41], v15, s36"); A("v_cmp_ngt_f32_e64 s[42:43], v13, s37"); A("v_cmp_ngt_f32_e64 s[56:57], v15, s37")
    A("s_or_b64 vcc, vcc, s[40:41]"); A("s_or_b64 vcc, vcc, s[42:43]"); A("s_or_b64 vcc, vcc, s[56:57]"); A(f"s_cbranch_scc1 {K}_aslow")
    A(f"{K}_afin:")
    for j in range(2):
        for i in range(0, 12, 2): A(f"v_pk_mul_f32 {v(O0+16*j+i,2)}, {v(O0+16*j+i,2)}, {v(12+2*j,2)} op_sel_hi:[1,0]")
        for i in range(6): A(f"v_cvt_pk_bf16_f32 {v(S0+4*j+i if i < 4 else S0+8+2*j+i-4)}, {v(O0+16*j+2*i)}, {v(O0+16*j+2*i+1)}")
    def stores(fl):
        return ([f"buffer_store_dwordx4 {v(S0+4*j,4)}, {v(ov)}, {S4(SWS)}, s{sob if j == 0 else 39} offen {fl}" for j in range(2)] +
                ["s_mov_b32 exec_hi, 0", f"buffer_store_dwordx4 {v(S0+8,4)}, {v(LV)}, {S4(SWS)}, s63 offen {fl}"])
    A.ext(stores("sc1")); A("s_mov_b64 exec, -1")
    for f in range(CFG["w5z"], CFG["w5a"]): A.ext(w5load(f))
    late_setup(A); A("v_mov_b32 v240, 1")
    A(f"s_waitcnt vmcnt({CFG['w5a']-CFG['w5z']})"); A(f"buffer_store_dword v10, off, {S4(SWS)}, s38 sc1")
    ST.mark()
    def cold():
        A(f"{K}_frspin:"); poll(A, frl, list(range(RLF, RLF+4)), sleep=8); A(f"s_branch {K}_frok")
        NM = S1
        A(f"{K}_aslow:")
        A(f"s_cmp_lg_u32 s{redo}, 0"); A(f"s_cbranch_scc1 {K}_afin")
        A(f"s_mov_b32 s{redo}, 1"); A(f"s_mov_b32 s{sok}, 0"); A(f"s_mov_b32 s{sox}, 0")
        A("v_mov_b32 v12, 0xff800000"); A("v_mov_b32 v13, 0xff800000")
        def scores(e, c):
            A(mf2b(S0, Xr(0), QX, c, e)); A("s_nop 15"); A("s_nop 1")
            A(mf32(S0, Kr(e), QM)); A(mf32(S0+16, Kr(e), QM+4)); A("s_nop 11")
        A(f"{K}_mloop:")
        A.ext(ldx(0) + ldk(0) + ldk(1)); A("s_waitcnt vmcnt(0)")
        for e in range(2):
            scores(e, "0")
            for j in range(2):
                for i in range(0, 16, 2): A(f"v_max3_f32 {v(12+j)}, {v(12+j)}, {v(S0+16*j+i)}, {v(S0+16*j+i+1)}")
        A(f"s_cmp_lt_u32 s{sok}, 163840"); A(f"s_cbranch_scc1 {K}_mloop")
        A("v_mov_b32 v14, v12"); A("v_mov_b32 v15, v13"); A("s_nop 1")
        A("v_permlane32_swap_b32 v12, v14"); A("v_permlane32_swap_b32 v13, v15"); A("s_nop 1")
        A("v_max_f32 v12, v12, v14"); A("v_max_f32 v13, v13, v15")
        for i in range(32): A(f"v_sub_f32 {v(NM+i)}, 0, {v(12+i//16)}"); A(f"v_mov_b32 {v(O0+i)}, 0")
        A(f"s_mov_b32 s{sok}, 0"); A(f"s_mov_b32 s{sox}, 0"); A(f"s_add_u32 s{sov}, s{GB}, {V_OFF}")
        A(f"{K}_sloop:")
        A.ext(ldx(0) + ldk(0) + ldk(1) + ldv(0, 0) + ldv(0, 1) + ldv(1, 0) + ldv(1, 1)); A("s_waitcnt vmcnt(0)")
        for e in range(2):
            scores(e, NM)
            for i in range(32): A(f"v_exp_f32 {v(S0+i)}, {v(S0+i)}")
            A("s_nop 0")
            for i in range(16): A(f"v_cvt_pk_bf16_f32 {v(P+i)}, {v(S0+2*i)}, {v(S0+2*i+1)}")
            A("s_nop 1")
            for j in range(2):
                for sx in range(2): A(mf32(O0+16*j, Vr(e, sx), P+8*j+4*sx))
        A(f"s_cmp_lt_u32 s{sok}, 163840"); A(f"s_cbranch_scc1 {K}_sloop")
        A("s_nop 15")
        A(f"s_branch {K}_anorm")
    return cold

RED = 86016
CSL = 147456
P4_SOW, P4_SOW2, P4_M0, P4_ST = 45, 46, 47, 48
class VQ:
    def __init__(self): self.q = []; self.done = 0
    def add(self, tag, ops):
        self.q += [tag for x in ops if x.startswith(("buffer", "global"))]
        assert len(self.q) - self.done <= 63, "too many outstanding"
        return ops
    def wait(self, *tags):
        idx = [i for i, x in enumerate(self.q) if x in tags]
        last = max(idx) + 1
        if last <= self.done: return []
        self.done = last
        return [f"s_waitcnt vmcnt({len(self.q) - last})"]

def p4_setup(A):
    A(f"s_lshr_b32 s36, s{GI}, 1"); A("s_mul_i32 s36, s36, 7"); A(f"s_min_u32 s{P4_ST}, s36, 101")
    A(f"s_mul_i32 s{P4_M0}, s{W}, 7168"); A(f"s_lshl_b32 s36, s{P4_ST}, 11"); A(f"s_add_u32 s36, s36, s{P4_M0}")
    A(f"s_lshr_b32 s37, s{W}, 1"); A(f"s_mul_i32 s37, s37, {221184-14336}"); A("s_add_u32 s36, s36, s37")
    A(f"s_add_u32 s{P4_SOW}, s36, {WGU_OFF}")
def p4_dma(stage):
    slot = stage % 5
    dw = lambda j: f"buffer_load_dwordx4 {v(LV)}, {S4(SWS)}, s{P4_SOW if j < 4 else P4_SOW2} offen offset:{(j&3)*1024} sc1 lds"
    return ([f"s_add_u32 m0, s{P4_M0}, {slot*28672}", f"s_add_u32 s{P4_SOW2}, s{P4_SOW}, 4096"] + [dw(j) for j in range(4)] +
            [f"s_add_u32 m0, s{P4_M0}, {slot*28672+4096}", f"s_add_u32 s{P4_SOW}, s{P4_SOW}, {2*221184}"] + [dw(j) for j in range(4, 7)])

def skinny_addr(A):
    for i in range(1, 4):
        A(f"s_add_u32 s36, s{W}, {i}"); A("s_and_b32 s36, s36, 3"); A("s_mul_i32 s36, s36, 15360"); A(f"s_add_u32 s36, s36, {RED+(i-1)*5120}"); A(f"v_add_u32 {v(SK_WR+i-1)}, s36, {v(LV)}")
    A(f"s_mul_i32 s36, s{W}, 15360"); A(f"s_add_u32 s36, s36, {RED}"); A(f"v_add_u32 {v(SK_RD)}, s36, {v(LV)}")
    A(f"v_and_b32 v2, 15, {v(LANE)}"); A(f"v_lshrrev_b32 v3, 4, {v(LANE)}")
    A("v_mul_u32_u24 v2, 1280, v2"); A(f"v_lshl_add_u32 {v(SK_RM)}, v3, 4, v2")
    A(f"s_lshl_b32 s49, s{GX}, 2"); A(f"s_and_b32 s36, s{GI}, 3"); A("s_add_u32 s49, s49, s36"); A("s_lshl_b32 s49, s49, 2"); A(f"s_add_u32 s49, s49, s{W}")
    A("s_mul_i32 s50, s49, 20480"); A(f"s_lshr_b32 s36, s{GI}, 3"); A("s_mul_i32 s37, s36, 320"); A("s_add_u32 s51, s50, s37")
    A("s_mul_i32 s37, s36, 5120"); A("s_add_u32 s50, s50, s37"); A(f"s_mul_i32 s37, s{GX}, {GS-327680}"); A("s_add_u32 s50, s50, s37"); A(f"s_add_u32 s50, s50, {H_OFF()}")
    A(f"s_bfe_u32 s36, s{GI}, 0x10002"); A("s_lshl_b32 s37, s36, 3")
    A("s_add_u32 s60, s50, s37"); A("s_add_u32 s60, s60, 2048"); A("s_add_u32 s61, s51, s37"); A("s_add_u32 s61, s61, 128")
    A("s_mul_i32 s37, s36, 3072"); A("s_add_u32 s50, s50, s37"); A("s_mul_i32 s37, s36, 192"); A("s_add_u32 s51, s51, s37")
def io_frag(op, regs, fl):
    return [f"buffer_{op}_dwordx4 {v(regs,4)}, {v(LV)}, {S4(SWS)}, s50 offen {fl}", f"buffer_{op}_dwordx4 {v(regs+4,4)}, {v(LV)}, {S4(SWS)}, s50 offen offset:1024 {fl}",
            f"buffer_{op}_dwordx2 {v(regs+8,2)}, {v(LV)}, {S4(SWS)}, s60 offen {fl}"]
def io_rm(op, regs, S):
    return [f"buffer_{op}_dwordx4 {v(regs,4)}, {v(SK_RM)}, {S4(S)}, s51 offen", f"buffer_{op}_dwordx4 {v(regs+4,4)}, {v(SK_RM)}, {S4(S)}, s51 offen offset:64",
            f"buffer_{op}_dwordx2 {v(regs+8,2)}, {v(SK_RM)}, {S4(S)}, s61 offen"]
def unpack(A, dst, src, n):
    for i in range(n): A(f"v_lshlrev_b32 {v(dst+2*i)}, 16, {v(src+i)}"); A(f"v_and_b32 {v(dst+2*i+1)}, 0xffff0000, {v(src+i)}")
def reduce_tail(A, ACC, rd):
    A("s_waitcnt lgkmcnt(0)"); A("s_barrier")
    for sl in range(3):
        for u in range(5): A(f"ds_read_b128 {v(ACC+20+20*sl+4*u,4)}, {v(rd)} offset:{5120*sl+1024*u}")
    for sl in range(3):
        A(f"s_waitcnt lgkmcnt({10-5*sl})")
        for i in range(0, 20, 2): A(f"v_pk_add_f32 {v(ACC+i,2)}, {v(ACC+i,2)}, {v(ACC+20+20*sl+i,2)}")
def quad_sum(A, regs, tmps):
    for swap in ("v_permlane32_swap_b32", "v_permlane16_swap_b32"):
        for x, t in zip(regs, tmps): A(f"v_mov_b32 {v(t)}, {v(x)}")
        A("s_nop 1")
        for x, t in zip(regs, tmps): A(f"{swap} {v(x)}, {v(t)}")
        A("s_nop 1")
        for x, t in zip(regs, tmps): A(f"v_add_f32 {v(x)}, {v(x)}, {v(t)}")

class TL:
    def __init__(self, A, Q, mf):
        self.A, self.Q, self.mf = A, Q, mf
        self.pre = [[] for _ in mf]; self.post = [[] for _ in mf]; self.valu = [[] for _ in mf]
    def spread(self, items, k0, step):
        k = float(k0); last = 0; hold = []
        for t, x in items:
            if is_salu(x): hold.append(x); continue
            kk = min(int(k), len(self.mf)-1)
            for j, h in enumerate(hold): self.post[max(last, kk-len(hold)+j)].append((None, h))
            hold = []; self.post[kk].append((t, x)); last = kk; k += step
        for j, h in enumerate(hold): self.post[min(last+1+j, len(self.mf)-1)].append((None, h))
        return k
    def vspread(self, ops, k0, k1, cap=2):
        ops = list(ops); k = k0
        while ops:
            assert k < len(self.mf), "no room"
            room = cap - len(self.valu[k]) - sum(1 for t, x in self.post[k] if not (isinstance(x, str) and is_salu(x)))
            want = -(-len(ops)//max(k1-k, 1))
            for _ in range(min(len(ops), max(room, 0) if k < k1-1 else len(ops), want if k < k1-1 else len(ops))): self.valu[k].append(ops.pop(0))
            k += 1
        return k
    def emit(self):
        A, Q = self.A, self.Q
        def one(t, x):
            if callable(x): x()
            elif isinstance(x, tuple): A.ext(Q.wait(*x[1:]))
            else:
                if t is not None: Q.add(t, [x])
                A(x)
        for k, m in enumerate(self.mf):
            for x in self.pre[k]: one(None, x)
            A(m)
            for t, x in self.post[k]: one(t, x)
            A.ext(self.valu[k])

W5X = 208
def w5reg(f): return 256+4*f if f < 24 else 256+176+4*(f-24) if f < 28 else 256+96+4*(f-28) if f < 48 else 256+4*f if f < 64 else W5X + 4*(f-64)
def w5load(f):
    ks, u = divmod(f, 5)
    L = [f"buffer_load_dwordx4 {r(w5reg(f),4)}, {v(WV if u < 4 else WV+1)}, {S4(SWS)}, s100 offen offset:{1024*(u&3)} sc1"]
    if u == 4: L.append("s_add_u32 s100, s100, 40960" if ks != 12 else "s_add_u32 s100, s100, s94")
    return L
S_F2P, S_STW, S_F3W, S_F3P, S_STR, S_F4W, S_F4P, S_F3A, S_OH, S_OHH, S_OH1, S_A5 = 64, 65, 66, 67, 68, 69, 70, 71, 28, 29, 30, 72
P4_LA, P4_LB, P4_HV, P4_SV, P4_CA, P4_CB, P4_F3V, L4V, ONEV = 4, 7, 11, 12, 13, 14, 15, 241, 10
def w5_setup(A):
    A(f"s_mul_i32 s36, s{W}, 14"); A(f"s_sub_i32 s37, s{W}, 2"); A("s_max_i32 s37, s37, 0"); A("s_sub_u32 s31, s36, s37")
    A(f"s_lshr_b32 s36, s{GI}, 2"); A("s_mul_i32 s36, s36, 5120"); A("s_mul_i32 s100, s31, 40960"); A("s_add_u32 s100, s100, s36"); A(f"s_add_u32 s100, s100, {WD_OFF}")
    A(f"s_cmp_ge_u32 s{W}, 2"); A(f"s_cselect_b32 s92, {OOB}, 0"); A("s_add_u32 s94, s92, 40960")
def late_setup(A):
    A(f"s_and_b32 s56, s{GI}, 3"); A(f"s_lshl_b32 s37, s{W}, 12"); A(f"s_add_u32 s37, s37, s{GB}")
    A("s_lshl_b32 s39, s56, 14"); A("s_add_u32 s39, s39, s37"); A(f"s_add_u32 s39, s39, {OX_OFF}")
    A("s_lshl_b32 s56, s56, 16"); A("s_add_u32 s56, s56, s37"); A(f"s_add_u32 s56, s56, {O_OFF}")
    A("s_and_b32 s57, s49, 12"); A("s_mul_i32 s57, s57, 55296"); A("s_lshl_b32 s37, s31, 10"); A("s_add_u32 s57, s57, s37"); A(f"s_add_u32 s57, s57, s{GB}"); A(f"s_add_u32 s57, s57, {HH_OFF()}")
    for i in range(4):
        A(f"s_add_u32 s36, s{W}, {i}"); A("s_and_b32 s36, s36, 3"); A("s_lshl_b32 s37, s36, 14"); A(f"s_add_u32 s{40+i}, s56, s37")
        A("s_mul_i32 s37, s36, 55296"); A(f"s_add_u32 s{S_A5+i}, s57, s37")
        A("s_and_b32 s37, s36, 1"); A("s_lshl_b32 s37, s37, 8"); A("s_lshr_b32 s36, s36, 1"); A("s_lshl_b32 s36, s36, 3"); A("s_add_u32 s36, s36, s37"); A(f"s_add_u32 s{52+i}, s39, s36")
    A(f"v_lshrrev_b32 v2, 4, {v(LANE)}"); A(f"v_and_b32 v3, 15, {v(LANE)}"); A(f"v_mul_u32_u24 v252, 768, v2"); A(f"v_add_u32 v252, v252, {v(LV)}")
    A(f"s_lshl_b32 s{S_F2P}, s49, 7"); A(f"s_add_u32 s{S_F2P}, s{S_F2P}, {F2_OFF}")
    A(f"s_lshr_b32 s37, s{GI}, 2"); A("s_lshl_b32 s36, s49, 3"); A("s_add_u32 s36, s36, s37"); A("s_lshl_b32 s36, s36, 7"); A(f"s_add_u32 s{S_STW}, s36, {STAT_OFF}")
    A("s_lshr_b32 s36, s49, 1"); A("s_lshl_b32 s36, s36, 5"); A("s_lshl_b32 s37, s37, 1"); A("s_add_u32 s36, s36, s37"); A("s_and_b32 s37, s49, 1"); A("s_add_u32 s36, s36, s37")
    A("s_lshl_b32 s36, s36, 2"); A(f"s_add_u32 s{S_F3W}, s36, {F3_OFF}")
    A("s_lshr_b32 s36, s49, 2"); A("s_lshl_b32 s36, s36, 8"); A(f"s_add_u32 s{S_F4P}, s36, {F4_OFF}")
    A(f"s_and_b32 s36, s{GI}, 1"); A(f"s_lshl_b32 s37, s{GX}, 1"); A("s_add_u32 s36, s36, s37"); A("s_lshl_b32 s36, s36, 2"); A(f"s_add_u32 s36, s36, s{W}")
    A("s_and_b32 s56, s36, 7"); A(f"s_mul_i32 s{S_OH}, s56, 40960"); A(f"s_add_u32 s{S_OH}, s{S_OH}, s{GB}"); A(f"s_add_u32 s{S_OH}, s{S_OH}, {H_OFF()}")
    A(f"s_lshl_b32 s37, s36, 7"); A(f"s_add_u32 s{S_F3P}, s37, {F3_OFF}")
    A(f"s_lshr_b32 s39, s{GI}, 1"); A("s_lshl_b32 s39, s39, 2"); A("s_add_u32 s37, s37, s39"); A(f"s_add_u32 s{S_F4W}, s37, {F4_OFF}")
    A("s_lshl_b32 s37, s36, 11"); A(f"s_add_u32 s{S_STR}, s37, {STAT_OFF}")
    A(f"s_lshl_b32 s37, s{GX}, 10"); A(f"s_add_u32 s{S_F3A}, s37, {F3_OFF}")
    A(f"s_and_b32 s57, s{P4_ST}, 1")
    A(f"s_mul_i32 s{S_OHH}, s56, 110592"); A(f"s_add_u32 s{S_OHH}, s{S_OHH}, s{GB}"); A(f"s_add_u32 s{S_OHH}, s{S_OHH}, {HH_OFF()}")
    A(f"s_lshr_b32 s37, s{P4_ST}, 1"); A("s_lshl_b32 s37, s37, 10"); A(f"s_add_u32 s{S_OHH}, s{S_OHH}, s37")
    A("s_cmp_eq_u32 s57, 0"); A("s_cselect_b32 s37, 3072, 8"); A(f"s_cselect_b32 s39, {6*2048}, 0"); A(f"s_cselect_b32 s56, {6*128}, 0"); A(f"s_add_u32 s{S_OH1}, s{S_OHH}, s37")
    A("s_lshl_b32 s37, s57, 10"); A(f"s_add_u32 s{S_OHH}, s{S_OHH}, s37"); A("s_lshl_b32 s36, s57, 11")
    A(f"s_cmp_ge_u32 s{GI}, 28"); A(f"s_cselect_b32 s{S_OH1}, {OOB}, s{S_OH1}"); A(f"s_cmp_ge_u32 s{GI}, 30"); A(f"s_cselect_b32 s33, {OOB}, s{S_OHH}")
    for i in range(3):
        A(f"v_add_u32 {v(P4_LA+i)}, s36, {v(LV)}"); A(f"v_add_u32 {v(P4_LB+i)}, s39, {v(LV)}"); A("s_add_u32 s36, s36, 57344"); A("s_add_u32 s39, s39, 57344")
    A(f"v_add_u32 {v(P4_HV)}, 20480, {v(LV)}")
    A(f"v_lshlrev_b32 {v(P4_SV)}, 8, v2"); A(f"v_lshl_add_u32 {v(P4_SV)}, v3, 3, {v(P4_SV)}")
    A("s_lshl_b32 s36, s57, 7"); A(f"s_add_u32 s36, s36, {CSL}"); A(f"v_lshl_add_u32 {v(P4_CA)}, v2, 4, s36")
    A(f"s_add_u32 s56, s56, {CSL}"); A(f"v_lshl_add_u32 {v(P4_CB)}, v2, 4, s56")
    A(f"v_lshrrev_b32 v2, 3, {v(LANE)}"); A(f"v_and_b32 v3, 7, {v(LANE)}"); A("v_lshlrev_b32 v2, 7, v2"); A(f"v_lshl_add_u32 {v(P4_F3V)}, v3, 3, v2")
    srd(A, SA, 86, 2621440)

COLD = []
def mode_store(A, ins):
    alt, back = A.label("wt"), A.label("wb")
    COLD.append([f"{alt}:"] + [x + " sc1" for x in ins] + [f"s_branch {back}"])
    return [f"s_cbranch_vccz {alt}"] + ins + [f"{back}:"]
def set_mode(A): A(f"s_mov_b32 vcc_lo, s{MODE}"); A("s_mov_b32 vcc_hi, 0")
def red_write(ACC, i, u): return f"ds_write_b128 {v(SK_WR+i-1)}, {v(ACC+20*i+4*u,4)} offset:{1024*u}"
def red_read(ACC, sl): return [f"ds_read_b128 {v(ACC+20+20*sl+4*u,4)}, {v(SK_RD)} offset:{5120*sl+1024*u}" for u in range(5)]

def phase3(A, ST):
    ACC, RES, CSP, AF = 16, P3RES, P3CS, 256+96
    A("s_barrier")
    unpack(A, ACC, RES, 10)
    A(f"v_add_f32 {v(CSP)}, {v(CSP)}, {v(CSP+1)}"); A(f"v_add_f32 {v(CSP+2)}, {v(CSP+2)}, {v(CSP+3)}"); A(f"v_add_f32 {v(CSP)}, {v(CSP)}, {v(CSP+2)}")
    A(f"v_add_u32 v146, {CSL}, v146"); A(f"ds_write_b32 v146, {v(CSP)}")
    A("s_mov_b64 exec, 0xff")
    poll(A, [f"buffer_load_dword v2, {v(L4V)}, {S4(SWS)}, s{S_F2P} offen sc1"], [2])
    A("s_mov_b64 exec, -1")
    ST.mark()
    Q = VQ()
    order = (1, 2, 3, 0)
    al = lambda i: ([f"buffer_load_dwordx4 {r(AF+20*((i-1)%4)+4*ks,4)}, {v(LV)}, {S4(SWS)}, s{40+i} offen offset:{1024*ks} sc1" for ks in range(4)] +
                    [f"buffer_load_dwordx2 {r(AF+20*((i-1)%4)+16+2*j,2)}, v252, {S4(SWS)}, s{52+i} offen offset:{512*j} sc1" for j in range(2)])
    UP = CFG.get("p3up", 2)
    for i in order[:UP]: A.ext(Q.add(("a", i), al(i)))
    set_mode(A)
    T = TL(A, Q, [mf16(ACC+20*i+4*u, w3reg(5*ks+u), AF+20*((i-1)%4)+4*ks, "0" if (ks == 0 and i) else None) for i in order for u in range(5) for ks in range(5)])
    for n, i in enumerate(order): T.pre[25*n].append(("wait", ("a", i)))
    T.pre[0].append(ST.mark)
    k = T.spread([(("a", i), x) for i in order[UP:] for x in al(i)], 0, CFG.get("p3as", 2))
    k = T.spread([("w5", x) for f in range(CFG["w5a"], min(CFG["w5b"], 28)) for x in w5load(f)], k+1, 4)
    assert CFG["w5b"] <= 38
    AFR = lambda f: 25*((f-28)//5 + 1)
    for f in range(28, CFG["w5b"]): k = T.spread([("w5", x) for x in w5load(f)], max(k, AFR(f)), 4)
    for n in range(3):
        for u in range(5): T.post[25*n+5*u+13].append((None, red_write(ACC, order[n], u)))
    T.pre[66] += ["s_waitcnt lgkmcnt(1)", "s_barrier"]
    T.spread([(None, x) for x in red_read(ACC, 0) + red_read(ACC, 1)], 66, 2)
    T.pre[88] += ["s_waitcnt lgkmcnt(0)", "s_barrier"]
    T.spread([(None, x) for x in red_read(ACC, 2)], 88, 1)
    T.vspread([f"v_add_f32 {v(ACC+20+i)}, {v(ACC+20+i)}, {v(ACC+40+i)}" for i in range(20)], 88, 100)
    T.emit()
    ST.mark()
    A("s_waitcnt lgkmcnt(0)")
    for i in range(0, 20, 2): A(f"v_pk_add_f32 {v(ACC+20+i,2)}, {v(ACC+20+i,2)}, {v(ACC+60+i,2)}")
    for i in range(0, 20, 2): A(f"v_pk_add_f32 {v(ACC+i,2)}, {v(ACC+i,2)}, {v(ACC+20+i,2)}")
    for i in range(10): A(f"v_cvt_pk_bf16_f32 {v(RES+i)}, {v(ACC+2*i)}, {v(ACC+2*i+1)}")
    A.ext(mode_store(A, io_frag("store", RES, "")))
    sm, sq = 112, 114
    A(f"v_pk_mul_f32 {v(sq,2)}, {v(ACC,2)}, {v(ACC,2)}"); A(f"v_pk_add_f32 {v(sm,2)}, {v(ACC,2)}, {v(ACC+2,2)}")
    for i in range(2, 20, 2):
        A(f"v_pk_fma_f32 {v(sq,2)}, {v(ACC+i,2)}, {v(ACC+i,2)}, {v(sq,2)}")
        if i > 2: A(f"v_pk_add_f32 {v(sm,2)}, {v(sm,2)}, {v(ACC+i,2)}")
    A(f"v_add_f32 {v(sm)}, {v(sm)}, {v(sm+1)}"); A(f"v_add_f32 {v(sm+1)}, {v(sq)}, {v(sq+1)}")
    quad_sum(A, [sm, sm+1], [sq, sq+1])
    A("s_mov_b64 exec, 0xffff"); A.ext(mode_store(A, [f"buffer_store_dwordx2 {v(sm,2)}, {v(P4_SV)}, {S4(SWS)}, s{S_STW} offen"])); A("s_mov_b64 exec, -1")

def phase4(A, ST):
    la, lb, hv, sv, ca, cb = P4_LA, P4_LB, P4_HV, P4_SV, P4_CA, P4_CB
    STT, HR, ACC, WB, CR = 232, 16, 96, 208, 224
    NW, HD = 3, 4
    WR = lambda n: (80 + 8*(n % 4)) if n % 4 < 2 else (WB + 8*(n % 4 - 2))
    U = [(s_, m) for s_ in range(8) for m in range(14)] + ([(s_, m) for m in range(14) for s_ in (8, 9)] if CFG.get("p4tail", 1) else [(s_, m) for s_ in (8, 9) for m in range(14)])
    def reads(n):
        s_, m = U[n]; slot = s_ % 5; j, mat = divmod(m, 2)
        base, off = (la, j*2048) if j < 6 else (lb, 0)
        return [f"ds_read_b128 {v(WR(n)+4*ks,4)}, {v(base+slot//2)} offset:{(slot%2)*28672+off+mat*1024+ks*14336}" for ks in range(2)]
    for n in range(NW): A.ext(reads(n))
    A("s_barrier")
    A("s_waitcnt vmcnt(0)")
    A.ext(mode_store(A, [f"buffer_store_dword {v(ONEV)}, off, {S4(SWS)}, s{S_F3W}"]))
    ST.mark()
    A("s_mov_b64 exec, 0xffff")
    poll(A, [f"buffer_load_dword v2, {v(L4V)}, {S4(SWS)}, s{S_F3P} offen sc1"], [2])
    A("s_mov_b64 exec, -1")
    ST.mark()
    Q = VQ()
    def hl(s_): return [f"buffer_load_dwordx4 {v(HR+16*(s_%HD)+8*n+4*ks,4)}, {v(hv if n else LV)}, {S4(SWS)}, s{S_OH} offen offset:{1024*ks} sc1" for n in range(2) for ks in range(2)] + [f"s_add_u32 s{S_OH}, s{S_OH}, 2048"]
    UP = CFG.get("p4up", 2)
    for s_ in range(UP): A.ext(Q.add(("h", s_), hl(s_)))
    f3l = [f"buffer_load_dwordx2 v[2:3], {v(P4_F3V)}, {S4(SWS)}, s{S_F3A} offen sc1"]
    stl = [f"buffer_load_dwordx2 {v(STT+4*n+2*c,2)}, {v(sv)}, {S4(SWS)}, s{S_STR} offen offset:{1024*n+128*c} sc1" for n in range(2) for c in range(2)]
    T = TL(A, Q, [mf16(ACC+8*m+4*nn, WR(n)+4*ks, HR+16*(s_ % HD)+8*nn+4*ks, "0" if (s_ == 0 and ks == 0) else None)
                  for n, (s_, m) in enumerate(U) for nn in ((1, 0) if (s_ == 9 and CFG.get("p4tail", 1)) else (0, 1)) for ks in range(2)])
    MS = 6
    lq = [0, 0, 1, 1, 2, 2]
    for n in range(140):
        s_, m = U[n]
        need = [i for i, x in enumerate(lq) if x == n or x == ("c", n)]
        T.pre[4*n].append(f"s_waitcnt lgkmcnt({len(lq)-1-max(need)})")
        if m == 0: T.pre[4*n].append(("wait", ("h", s_)))
        if m == 11 and s_ < (8 if CFG.get("p4tail", 1) else 9):
            if s_+1 >= 3: T.pre[4*n].append(("wait", ("w", s_+1 + (s_ == 7 and CFG.get("p4tail", 1)))))
            T.pre[4*n].append("s_barrier")
        e2 = n + 2 - 14*MS
        if 0 <= e2 < 28 and e2 % 2 == 0:
            e = e2//2; mu = (2*e + 6 + (e >= 7)) % 14; j, mat = divmod(mu, 2)
            T.post[4*n].append((None, f"ds_read_b128 {v(CR+4*(e&1),4)}, {v(ca if j < 6 else cb)} offset:{(128*j if j < 6 else 0)+64*mat}")); lq.append(("c", n+2))
            for i in range(8): T.valu[4*(n+2)+i].append(f"v_fmac_f32 {v(ACC+8*mu+i)}, {v(CR+4*(e&1)+i%4)}, {v(STT+4*(i//4))}")
        if n+NW < 140:
            for j, x in enumerate(reads(n+NW)): T.post[4*n+j+1].append((None, x))
            lq += [n+NW, n+NW]
    T.pre[0].append(ST.mark)
    w5 = list(range(CFG["w5b"], 64)); LAST = CFG.get("p4last", 9.0)
    base = {s_: [] for s_ in range(10)}
    for s_ in range(UP, 10): base[max(0, s_-HD+1)] += [(("h", s_), x) for x in hl(s_)]
    for s_ in range(3, 10): base[s_-3] += [(("w", s_), x) for x in p4_dma(s_)]
    base[1] += [("st", x) for x in stl]; base[4] += [("f3", x) for x in f3l]
    cnt = lambda L: sum(1 for t, x in L if not is_salu(x))
    for s_ in range(10):
        span = min(1.0, LAST - s_)
        if span > 0:
            later = sum(cnt(base[j]) for j in range(s_, 10)) + len(w5)
            for _ in range(min(len(w5), max(0, math.ceil(later*span/(LAST-s_)) - cnt(base[s_])))): base[s_] += [("w5", x) for x in w5load(w5.pop(0))]
        if base[s_]: T.spread(base[s_], 56*s_+3, (56*span-4)/cnt(base[s_]))
    assert not w5
    B = Asm()
    for n in range(2):
        for i in range(2): B(f"v_add_f32 {v(STT+4*n+i)}, {v(STT+4*n+i)}, {v(STT+4*n+2+i)}")
    quad_sum(B, [STT, STT+1, STT+4, STT+5], [STT+2, STT+3, STT+6, STT+7])
    for n in range(2):
        nm, r2 = STT+4*n, STT+4*n+2
        B(f"v_mul_f32 {v(nm)}, {hex(f2u(-1/640))}, {v(nm)}"); B(f"v_mul_f32 {v(r2)}, {hex(f2u(1/640))}, {v(nm+1)}")
        B(f"v_fma_f32 {v(r2)}, -{v(nm)}, {v(nm)}, {v(r2)}"); B(f"v_max_f32 {v(r2)}, 0, {v(r2)}"); B(f"v_add_f32 {v(r2)}, {hex(f2u(1e-5))}, {v(r2)}"); B(f"v_rcp_f32 {v(r2)}, {v(r2)}")
    T.pre[56*4].append(("wait", "st"))
    for j, x in enumerate(x.strip() for x in B.L if "s_nop" not in x): T.valu[56*4+2*j].append(x)
    T.pre[56*8] += [("wait", "f3"), "v_min_u32 v2, v2, v3", "v_cmp_eq_u32 vcc, 0, v2", "s_nop 1", f"s_cbranch_vccnz {K}_f3spin", f"{K}_f3ok:", lambda: set_mode(A)]
    T.valu[56*8+2].append(f"v_add_u32 {v(hv)}, 55296, {v(LV)}")
    COLD.append(lambda: (A(f"{K}_f3spin:"), poll(A, f3l, [2, 3], sleep=4), A(f"s_branch {K}_f3ok")))
    OB = 48
    def strip(j, n, pk):
        r2 = STT+4*n+2; o = OB + 8*((j >> 1) % 2) + 4*n + 2*(j & 1); g, u = ACC+16*j+4*n, ACC+16*j+8+4*n
        if pk: L = [f"v_pk_mul_f32 {v(g+i,2)}, {v(g+i,2)}, {v(r2,2)} op_sel_hi:[1,0]" for i in (0, 2)] + [f"v_pk_mul_f32 {v(g+i,2)}, {v(g+i,2)}, {v(u+i,2)}" for i in (0, 2)]
        else: L = [f"v_mul_f32 {v(g+i)}, {v(g+i)}, {v(r2)}" for i in range(4)] + [f"v_mul_f32 {v(g+i)}, {v(g+i)}, {v(u+i)}" for i in range(4)]
        return L + [f"v_cvt_pk_bf16_f32 {v(o+i)}, {v(g+2*i)}, {v(g+2*i+1)}" for i in range(2)]
    def hst(a_): return [f"buffer_store_dwordx{4 if a_ < 3 else 2} {v(OB+8*(a_%2)+4*n, 4 if a_ < 3 else 2)}, {v(hv if n else LV)}, {S4(SWS)}, s{33 if a_ == 0 else S_OHH if a_ < 3 else S_OH1} offen" + (f" offset:{1024*a_}" if a_ < 3 else "") for n in range(2)]
    NI = CFG.get("p4ni", 6 if CFG.get("p4tail", 1) else 4); k = 0
    for j in range(NI):
        k0 = max(k, (56*8 + 16*(j+1) + 3) if CFG.get("p4tail", 1) else (56*9 + 8*(j+1) + 5))
        a0, a1 = strip(j, 1, False), strip(j, 0, False)
        k = T.vspread(a0[:4] + a1[:4] + a0[4:] + a1[4:], k0, min(k0+12, 560), cap=CFG.get("p4cap", 2))
        if j & 1 and k < 560:
            st_ = hst(j >> 1); T.post[k].append((None, (lambda st_=st_: (A.ext(mode_store(A, st_)), Q.add("hh", st_)))))
    stored = [j >> 1 for j in range(NI) if j & 1]
    if NI and NI % 2 == 0 and k >= 560: stored.pop()
    T.emit()
    ST.mark()
    for a_ in range(4):
        for j in ([2*a_, 2*a_+1] if a_ < 3 else [6]):
            if j >= NI:
                a0, a1 = strip(j, 1, True), strip(j, 0, True)
                A.ext(a0[:2] + a1[:2] + (["s_nop 1"] if j == NI else []) + a0[2:] + a1[2:])
        if a_ not in stored: A.ext(mode_store(A, hst(a_))); Q.add("hh", hst(a_))
    for f in range(64, 70): A.ext(Q.add("w5", w5load(f)))
    return Q

def phase5(A, ST, Q):
    ACC, AF, RES = 16, 96, 232
    A.ext(Q.add("res", io_frag("load", 4, "sc1")))
    A(f"v_add_u32 v14, s92, {v(LV)}")
    A(f"v_lshrrev_b32 v15, 4, {v(LANE)}"); A(f"v_mul_u32_u24 v15, 64, v15"); A(f"v_add_u32 v15, v15, {v(L4V)}")
    A("s_barrier")
    A.ext(Q.wait("hh"))
    A.ext(mode_store(A, [f"buffer_store_dword v240, off, {S4(SWS)}, s{S_F4W}"]))
    ST.mark()
    A("s_waitcnt vmcnt(1)"); unpack(A, ACC, 4, 10)
    A("s_mov_b32 exec_hi, 0")
    poll(A, [f"buffer_load_dword v2, v15, {S4(SWS)}, s{S_F4P} offen sc1"], [2])
    A("s_mov_b64 exec, -1")
    ST.mark()
    Q = VQ()
    order = (1, 2, 3, 0)
    def al(n, ks):
        i = order[n]
        L = [f"buffer_load_dwordx4 {v(AF+56*(n&1)+4*ks,4)}, {v(14 if ks == 13 else LV)}, {S4(SWS)}, s{S_A5+i} offen offset:{1024*(ks&3)} sc1"]
        if ks & 3 == 3: L.append(f"s_add_u32 s{S_A5+i}, s{S_A5+i}, 4096")
        return L
    UP = CFG.get("p5up", 8); STEP = CFG.get("p5st", 4)
    for ks in range(UP): A.ext(Q.add((0, ks), al(0, ks)))
    T = TL(A, Q, [mf16(ACC+20*i+4*u, w5reg(5*ks+u), AF+56*(n&1)+4*ks, "0" if (ks == 0 and i) else None)
                  for n, i in enumerate(order) for kp in range(7) for u in range(5) for ks in (2*kp, 2*kp+1)])
    k = 0
    for g in range(UP, 56):
        n, ks = divmod(g, 14)
        if n >= 2: k = max(k, 70*(n-2) + 10*(ks//2+1) - 1)
        assert k < 70*n + 10*(ks//2)
        k = T.spread([((n, ks), x) for x in al(n, ks)], k, STEP)
    for n in range(4):
        for kp in range(7): T.pre[70*n+10*kp].append(("wait", (n, 2*kp+1)))
    T.pre[0].append(ST.mark)
    for n in range(3):
        for u in range(5): T.post[70*(n+1)+2+5*u].append((None, red_write(ACC, order[n], u)))
    if "wb" in CFG:
        def wb():
            lab = A.label("nowb"); A(f"s_or_b32 s36, s{W}, s{GI}"); A(f"s_cbranch_scc1 {lab}"); A("buffer_wbl2 sc1"); A(f"{lab}:")
        T.pre[CFG["wb"]].append(wb)
    T.pre[237] += ["s_waitcnt lgkmcnt(0)", "s_barrier"]
    T.spread([(None, x) for sl in range(3) for x in red_read(ACC, sl)], 237, 1)
    T.pre[254].append("s_waitcnt lgkmcnt(5)"); T.vspread([f"v_add_f32 {v(ACC+20+i)}, {v(ACC+20+i)}, {v(ACC+40+i)}" for i in range(20)], 254, 266)
    T.pre[266].append("s_waitcnt lgkmcnt(0)"); T.vspread([f"v_add_f32 {v(ACC+20+i)}, {v(ACC+20+i)}, {v(ACC+60+i)}" for i in range(20)], 266, 280)
    T.emit()
    ST.mark()
    A("s_nop 1")
    for i in range(0, 20, 2): A(f"v_pk_add_f32 {v(ACC+i,2)}, {v(ACC+i,2)}, {v(ACC+20+i,2)}")
    for i in range(10): A(f"v_cvt_pk_bf16_f32 {v(RES+i)}, {v(ACC+2*i)}, {v(ACC+2*i+1)}")
    A.ext([x + " " + CFG.get("ost", "") for x in io_rm("store", RES, SA)])

def build(**cfg):
    CFG.update(cfg)
    A = Asm(); ST = Stamps(A)
    kstart(A, K)
    if CFG.get("empty"): A("s_endpgm")
    ST.mark()
    if CFG.get("probe"):
        off, base = {"bx": (24, 0), "ws": (72, 40 << 20), "out": (56, 0), "wd": (48, 0)}[CFG["probe"]]
        A(f"s_load_dwordx2 s[4:5], s[0:1], {off}"); A("s_waitcnt lgkmcnt(0)"); A(f"s_mov_b32 s6, {base + (2<<20)}"); A("s_mov_b32 s7, 0x20000")
        A("s_and_b32 s8, s2, 255"); A("s_lshl_b32 s8, s8, 9"); A(f"s_add_u32 s8, s8, {base}"); A("v_lshrrev_b32 v2, 6, v0"); A("v_lshlrev_b32 v2, 7, v2")
        for i in range(16):
            A("buffer_load_dword v3, v2, s[4:7], s8 offen"); A("s_waitcnt vmcnt(0)"); A("s_add_u32 s8, s8, 131072")
    COLD.clear(); phase1(A, ST)
    cold = phase2(A, ST)
    phase3(A, ST); phase5(A, ST, phase4(A, ST))
    ST.flush()
    A("s_endpgm")
    cold()
    for c in COLD: c() if callable(c) else A.ext(c)
    A(f"{K}_end:")
    A("s_endpgm")
    kdesc(A, K, 512, acc=256)
    head = open(f"cdna_kernels/{NAME}.s.ref").read().split("; Override launch")[0]
    head += "; @launch grid=(256,1,1) block=(256,1,1) lds=163840\n"
    return head + '.amdgcn_target "amdgcn-amd-amdhsa--gfx950"\n' + A.text()

if __name__ == "__main__":
    out = sys.argv[1] if len(sys.argv) > 1 else f"cdna_kernels/{NAME}.s"
    cfg = {}
    for x in sys.argv[2:]:
        k, val = x.split("=")
        cfg[k] = int(val) if val.lstrip("-").isdigit() else float(val) if val.replace(".", "", 1).isdigit() else val
    txt = build(**cfg)
    names = STAMP_NAMES[:3] + [f"p1 kstep {g}" for g in P1ST()] + STAMP_NAMES[3:8] + [f"att body {b}" for b in ASTAMPS()] + STAMP_NAMES[8:]
    if CFG["stamps"]: txt = txt.replace(".amdgcn_target", "; STAMPS " + "|".join(names) + "\n.amdgcn_target", 1)
    open(out, "w").write(txt)
```

```python
import sys, math, struct, re as _re
from dsl import *

NAME = "sequential_preLN__softmax_full_mha__glu_gated_bilinear__prompt"
K = NAME + "_kernel"
GS = 1310720
K_OFF, V_OFF, O_OFF = 327680, 655360, 983040
OX_OFF = O_OFF + 262144
def H_OFF(): return 8*GS if CFG.get("sep") else 0
def HH_OFF(): return H_OFF() + 327680
WGU_OFF = 20971520
WD_OFF = WGU_OFF + 4423680
WO_OFF = WD_OFF + 2211840
CS_OFF = WO_OFF + 819200
STAT_OFF = CS_OFF + 65536
RS_OFF = STAT_OFF + 131072
C1_OFF = RS_OFF + 16384
F2_OFF = C1_OFF + 8192
F3_OFF = F2_OFF + 128*128
F4_OFF = F3_OFF + 64*128
FR_OFF = F4_OFF + 64*128
F1_OFF = FR_OFF + 256*128
ONES_OFF = F1_OFF + 384*128
STAMP_OFF = 29360128
WS_SIZE = 33554432
OOB = 0x40000000
SPIN = 200000
assert ONES_OFF + 128*2560 < STAMP_OFF and STAT_OFF % 128 == 0
def f2u(x): return struct.unpack("<I", struct.pack("<f", x))[0]
QSCALE = f2u(20**-0.5 * math.log2(math.e))
assert all((u*(65536//54+1)) >> 16 == u//54 for u in range(162)) and all((u*6554) >> 16 == u//10 for u in range(100))
assert all((f*3277) >> 16 == f//20 for f in range(640))
assert all((e*3277) >> 16 == e//20 for e in range(320))
CFG = dict(stamps=False, w5z=16, w5a=16, w5b=36, p4last=9.6, ht=0, ht1=0, b0=4, rsp=2, b1=14, rss=4, pfe=60, touch="52:s,54:h", p4t="", at1=0, f1b=1, fpos=1)
STAMP_NAMES = ["start", "p1 first dma issued", "p1 stage0 landed", "p1 loop end", "p1 stores issued", "p1 flag set", "F1 seen", "att loop start", "att loop end",
               "O published", "F2 seen", "p3 first act", "p3 mfma end", "H published", "F3 seen", "p4 first h", "p4 loop end", "HH published", "F4 seen", "p5 first act", "p5 mfma end", "end"]

W, SWS, SX, SA, SR = 3, 4, 8, 12, 16
GX, GI, MODE, MYF, GB = 24, 25, 26, 27, 23
LANE, LV = 1, 253
PCV = 247
CODE_TOUCH = f"global_load_dword v248, v{PCV}, s[20:21] sc1"
def S4(b): return f"s[{b}:{b+3}]"

def ASTAMPS(): return [int(x) for x in str(CFG.get("astamp", "")).split(",") if x]
def P1ST(): return [int(x) for x in str(CFG.get("p1st", "")).split(",") if x]
def P4ST(): return [int(x) for x in str(CFG.get("p4st", "")).split(",") if x]
class Stamps:
    def __init__(self, A): self.A, self.n = A, 0
    def mark(self, at=None):
        A = self.A; i = self.n if at is None else at
        if CFG.get("pad"):
            pi, pt = map(int, CFG["pad"].split(":"))
            if i == 0: A("s_memrealtime s[96:97]")
            if i == pi:
                lab = A.label("pad")
                if "padwg" in CFG: A(f"s_cmp_lg_u32 s2, {CFG['padwg']}"); A(f"s_cbranch_scc1 {lab}x")
                A("s_waitcnt lgkmcnt(0)"); A(f"s_add_u32 s95, s96, {pt*100}"); A(f"{lab}:"); A("s_memrealtime s[98:99]"); A("s_waitcnt lgkmcnt(0)")
                A("s_sub_u32 s98, s98, s95"); A("s_cmp_lt_i32 s98, 0"); A(f"s_cbranch_scc1 {lab}"); A(f"{lab}x:")
            if at is None: self.n += 1
            return
        if not CFG["stamps"]: return
        if i:
            A("s_waitcnt lgkmcnt(0)"); A(f"v_writelane_b32 v254, s96, {i-1}"); A(f"v_writelane_b32 v255, s98, {i-1}")
        A("s_memrealtime s[96:97]"); A("s_memtime s[98:99]")
        if at is None: self.n += 1
    def flush(self):
        if CFG.get("pad"): self.A("s_waitcnt vmcnt(0)"); self.mark(); return
        if not CFG["stamps"]: return
        A = self.A
        A("s_waitcnt vmcnt(0)"); self.mark(); self.mark(); n = self.n - 1
        A(f"v_writelane_b32 v254, s{MODE}, 30"); A(f"v_writelane_b32 v254, s{MYF}, 31")
        A(f"s_lshl_b32 s95, s2, 2"); A(f"s_add_u32 s95, s95, s{W}"); A("s_lshl_b32 s95, s95, 8"); A(f"s_add_u32 s95, s95, {STAMP_OFF}")
        A("s_mov_b64 exec, -1"); A(f"v_lshlrev_b32 v0, 2, {v(LANE)}"); A(f"s_mov_b32 exec_lo, {(1 << n) - 1 + (3 << 30)}"); A("s_mov_b32 exec_hi, 0")
        A(f"buffer_store_dword v254, v0, {S4(SWS)}, s95 offen"); A(f"buffer_store_dword v255, v0, {S4(SWS)}, s95 offen offset:128")

def swap01(A, dst, src, t):
    A(f"v_and_b32 {v(t)}, 1, {v(src)}"); A(f"v_lshlrev_b32 {v(t)}, 1, {v(t)}")
    A(f"v_bfe_u32 {v(dst)}, {v(src)}, 1, 1"); A(f"v_or_b32 {v(t)}, {v(t)}, {v(dst)}")
    A(f"v_and_b32 {v(dst)}, 4, {v(src)}"); A(f"v_or_b32 {v(dst)}, {v(dst)}, {v(t)}")

def make_sel(A, sel, t):
    A(f"v_lshrrev_b32 {v(t)}, 2, {v(LANE)}"); A(f"v_lshrrev_b32 {v(sel)}, 4, {v(LANE)}")
    A(f"v_xor_b32 {v(t)}, {v(t)}, {v(sel)}"); A(f"v_and_b32 {v(t)}, 1, {v(t)}")
    A(f"v_add_u32 {v(t)}, -1, {v(t)}")
    A(f"v_and_b32 {v(sel)}, 0x3f803f80, {v(t)}")
    for i in range(1, 4): A(f"v_mov_b32 {v(sel+i)}, {v(sel)}")

def poll(A, loads, regs, sleep=0, cnt=58, post=()):
    top, out = A.label("poll"), A.label("pollout")
    A(f"s_mov_b32 s{cnt}, {SPIN}")
    A(f"{top}:")
    A.ext(loads); A("s_waitcnt vmcnt(0)"); A.ext(post)
    for x in regs[1:]: A(f"v_min_u32 {v(regs[0])}, {v(regs[0])}, {v(x)}")
    A(f"v_cmp_eq_u32 vcc, 0, {v(regs[0])}")
    A(f"s_sub_u32 s{cnt}, s{cnt}, 1"); A(f"s_cbranch_scc1 {out}")
    if sleep:
        A(f"s_cbranch_vccz {out}"); A(f"s_sleep {sleep}"); A(f"s_branch {top}")
    else: A(f"s_cbranch_vccnz {top}")
    A(f"{out}:")

def apoll(d, va, so, atomic):
    if atomic: return [f"v_mov_b32 {v(d)}, 0", f"buffer_atomic_or {v(d)}, {v(va)}, {S4(SWS)}, s{so} offen sc0 sc1"]
    return [f"buffer_load_dword {v(d)}, {v(va)}, {S4(SWS)}, s{so} offen sc1"]
def publish(A, stores, mid, flag, local=True):
    if not local:
        A.ext(stores("sc1")); A.ext(mid); A.ext(flag("sc1")); return
    slow, done = A.label("st_slow"), A.label("st_done")
    A(f"s_cmp_eq_u32 s{MODE}, 0"); A(f"s_cbranch_scc1 {slow}")
    A.ext(stores("")); A.ext(mid); A.ext(flag("")); A(f"s_branch {done}")
    A(f"{slow}:")
    A.ext(stores("sc1")); A.ext(mid); A.ext(flag("sc1"))
    A(f"{done}:")

RSO, RA, RBA, RDS, RDH, RDAH, RCS, RLDS = 64, 65, 66, 67, 68, 69, 70, 71
RLV, RLT, RLC, RLO, RLF = 201, 202, 204, 212, 216
STG = 86016
def relayout_setup(A):
    t0, t1 = 2, 3
    two, none, done = A.label("rl2"), A.label("rl0"), A.label("rl_set")
    A(f"s_mul_i32 s{RLDS}, s{W}, 10240"); A(f"s_add_u32 s{RLDS}, s{RLDS}, {STG}")
    A(f"v_lshrrev_b32 {v(t0)}, 4, {v(LANE)}"); A(f"v_bfe_u32 {v(t1)}, {v(LANE)}, 2, 2"); A(f"v_lshl_add_u32 {v(t0)}, {v(t0)}, 3, {v(t1)}")
    A(f"v_and_b32 {v(t1)}, 3, {v(LANE)}"); A(f"v_lshlrev_b32 {v(t1)}, 4, {v(t1)}")
    A(f"v_lshl_add_u32 {v(t0)}, {v(t0)}, 6, {v(t1)}"); A(f"v_add_u32 {v(RLT)}, s{RLDS}, {v(t0)}")
    A(f"v_and_b32 {v(RLT+1)}, 15, {v(LANE)}"); A(f"v_lshlrev_b32 {v(RLT+1)}, 2, {v(RLT+1)}")
    for i in range(4): A(f"v_mov_b32 {v(RLO+i)}, 0x3f803f80")
    A(f"v_lshrrev_b32 {v(t0)}, 2, {v(LANE)}")
    A(f"s_mov_b32 s{RCS}, {OOB}"); A(f"s_mov_b32 s{SR+3}, 0x20000")
    A("s_cmp_ge_u32 s2, 108"); A(f"s_cbranch_scc1 {two}")
    A(f"s_bitcmp1_b32 s{W}, 0"); A(f"s_cselect_b64 s[{SR}:{SR+1}], s[82:83], s[80:81]"); A(f"s_mov_b32 s{SR+2}, 2211840")
    A(f"s_mul_i32 s37, s2, {(65536+26)//27}"); A("s_lshr_b32 s37, s37, 16")
    A("s_mul_i32 s38, s37, 27"); A("s_sub_u32 s38, s2, s38"); A("s_lshl_b32 s38, s38, 1"); A(f"s_lshr_b32 s39, s{W}, 1"); A("s_add_u32 s38, s38, s39")
    A(f"s_mul_i32 s{RSO}, s37, {160*3456}"); A("s_lshl_b32 s39, s38, 6"); A(f"s_add_u32 s{RSO}, s{RSO}, s39")
    A(f"s_mov_b32 s{RA}, {16*3456}"); A(f"s_mov_b32 s{RBA}, {16*3456}"); A(f"s_mov_b32 s{RDH}, 2048"); A(f"s_mov_b32 s{RDAH}, {221184-2048}")
    A(f"s_and_b32 s39, s{W}, 1"); A("s_lshl_b32 s38, s38, 2"); A("s_add_u32 s38, s38, s39")
    A(f"s_mul_i32 s{RDS}, s37, {5*221184}"); A("s_lshl_b32 s39, s38, 10"); A(f"s_add_u32 s{RDS}, s{RDS}, s39"); A(f"s_add_u32 s{RDS}, s{RDS}, {WGU_OFF}")
    A(f"s_mul_i32 s{RCS}, s37, {108*128}"); A("s_lshl_b32 s39, s38, 6"); A(f"s_add_u32 s{RCS}, s{RCS}, s39"); A(f"s_add_u32 s{RCS}, s{RCS}, {CS_OFF}")
    A(f"v_mul_u32_u24 {v(t0)}, 3456, {v(t0)}")
    A(f"s_branch {done}")
    A(f"{two}:")
    A("s_sub_u32 s37, s2, 108"); A(f"s_mov_b32 s{RDH}, 1024"); A(f"s_mov_b32 s{RDAH}, 1024")
    A(f"s_mul_i32 s{RDS}, s37, 40960"); A(f"s_mul_i32 s39, s{W}, 10240"); A(f"s_add_u32 s{RDS}, s{RDS}, s39"); A(f"s_add_u32 s{RDS}, s{RDS}, {WD_OFF}")
    A(f"s_mov_b64 s[{SR}:{SR+1}], s[84:85]"); A(f"s_mov_b32 s{SR+2}, 2211840"); A(f"s_lshl_b32 s{RSO}, s37, 5"); A(f"s_mov_b32 s{RA}, 16")
    A("s_cmp_lt_u32 s37, 54"); A(f"s_cbranch_scc1 {none}")
    A(f"s_mov_b64 s[{SR}:{SR+1}], s[88:89]"); A("s_cmp_lt_u32 s37, 74"); A(f"s_cselect_b32 s{RDS}, s{RDS}, {OOB}"); A(f"s_cselect_b32 s{SR+2}, 819200, 0")
    A("s_sub_u32 s37, s37, 54"); A(f"s_mul_i32 s{RSO}, s37, 40"); A("s_mul_i32 s39, s37, 160"); A(f"s_sub_u32 s39, s39, {16*160-16}")
    A("s_cmp_ge_u32 s37, 16"); A(f"s_cselect_b32 s{RSO}, s39, s{RSO}"); A(f"s_cselect_b32 s{RA}, 80, 20"); A("s_cselect_b32 s38, 16, 0")
    A(f"v_lshrrev_b32 v4, 4, {v(LANE)}"); A(f"v_mad_u32_u24 {v(t0)}, v4, s38, {v(t0)}")
    A(f"{none}:")
    A(f"s_mul_i32 s{RSO}, s{RSO}, 1280"); A(f"s_mul_i32 s39, s{W}, 320"); A(f"s_add_u32 s{RSO}, s{RSO}, s39"); A(f"s_mul_i32 s{RA}, s{RA}, 1280"); A(f"s_sub_u32 s{RBA}, 64, s{RA}")
    A(f"v_mul_u32_u24 {v(t0)}, 1280, {v(t0)}")
    A(f"{done}:")
    A(f"v_add_u32 {v(RLV)}, {v(t0)}, {v(t1)}")
def rl_dma(i):
    return [f"s_add_u32 m0, s{RLDS}, {i*1024}", f"s_add_u32 s{RSO}, s{RSO}, {'0' if i == 0 else 's%d' % (RA if i & 1 else RBA)}",
            f"buffer_load_dwordx4 {v(RLV)}, {S4(SR)}, s{RSO} offen lds"]
def rl_read(a_, hf): return [f"ds_read_b64_tr_b16 {v(RLF+8*(a_&1)+4*hf+2*q,2)}, {v(RLT)} offset:{2048*a_+256*q+8*hf}" for q in range(2)]
def rl_sum(a_, hf): return mf16(RLC+4*hf, RLO, RLF+8*(a_&1)+4*hf, "0" if a_ == 0 else None)
def rl_store(a_, hf): return [f"buffer_store_dwordx4 {v(RLF+8*(a_&1)+4*hf,4)}, {v(LV)}, {S4(SWS)}, s{RDS} offen sc1", f"s_add_u32 s{RDS}, s{RDS}, s{RDAH if hf else RDH}"]
def rl_cs(hf): return [f"buffer_store_dword {v(RLC+4*hf)}, {v(RLT+1)}, {S4(SWS)}, s{RCS} offen offset:{128*hf} sc1"]


TV = 249
SD = 52
def phase1(A, ST):
    rt, ct, wm, wn = 28, 30, 56, 57
    sox, sow, m0x, m0w, sst, srs = 29, 91, 32, 35, 80, 84
    srr, sqs, sc1_ = 85, 88, 89
    t0, t1, t2, t3, nn, qq = 2, 3, 4, 5, 6, 7
    dmx, dmw, xa, wa, sa, rv, cv = 12, 16, 22, 24, 26, 30, 31
    CS, ACC, RS, OB = 32, 56, 148, 180
    FR = 256
    SL = 36864
    A("s_cmp_ge_u32 s2, 256"); A(f"s_cbranch_scc1 {K}_end")
    A("s_load_dwordx4 s[36:39], s[0:1], 0"); A("s_load_dwordx4 s[52:55], s[0:1], 64"); A("s_load_dwordx8 s[80:87], s[0:1], 32"); A("s_load_dwordx2 s[88:89], s[0:1], 16")
    A(f"v_lshrrev_b32 {v(t0)}, 6, v0"); A(f"v_and_b32 {v(LANE)}, 63, v0")
    A(f"v_readfirstlane_b32 s{W}, {v(t0)}")
    A(f"s_and_b32 s{GX}, s2, 7"); A(f"s_lshr_b32 s{GI}, s2, 3")
    A("s_getpc_b64 s[20:21]"); A(f"{K}_pc:")
    A(f"s_lshl_b32 s58, s{GI}, 2"); A(f"s_add_u32 s58, s58, s{W}"); A("s_lshl_b32 s58, s58, 7")
    A(f"v_and_b32 {v(PCV)}, 7, {v(LANE)}"); A(f"v_lshlrev_b32 {v(PCV)}, 14, {v(PCV)}"); A(f"v_add_u32 {v(PCV)}, s58, {v(PCV)}")
    A(f"v_min_u32 {v(PCV)}, {K}_end-{K}_pc, {v(PCV)}")
    A(CODE_TOUCH)
    A(f"v_lshrrev_b32 {v(qq)}, 4, {v(LANE)}"); A(f"v_and_b32 {v(nn)}, 15, {v(LANE)}")
    A("s_cmp_ge_u32 s2, 192"); A(f"s_cbranch_scc1 {K}_help")
    def tile_ids():
        A(f"s_lshr_b32 s56, s{GX}, 2"); A(f"s_mul_i32 s{ct}, s56, 6"); A(f"s_lshr_b32 s57, s{GI}, 2"); A(f"s_add_u32 s{ct}, s{ct}, s57")
        A(f"s_and_b32 s57, s{GI}, 3"); A(f"s_and_b32 s56, s{GX}, 3"); A("s_lshl_b32 s56, s56, 2"); A(f"s_add_u32 s{rt}, s56, s57")
    tile_ids()
    A(f"v_and_b32 {v(t1)}, 7, {v(LANE)}"); A(f"v_xor_b32 {v(t1)}, {v(t1)}, {v(qq)}"); A(f"v_lshlrev_b32 {v(t1)}, 4, {v(t1)}")
    A(f"v_lshrrev_b32 {v(t2)}, 3, {v(LANE)}"); A(f"v_mul_u32_u24 {v(t2)}, 1280, {v(t2)}")
    A(f"v_add_u32 {v(dmx)}, {v(t1)}, {v(t2)}")
    A(f"v_xor_b32 {v(t1)}, 64, {v(t1)}"); A(f"v_add_u32 {v(t1)}, {v(t1)}, {v(t2)}"); A(f"v_add_u32 {v(dmx+1)}, 9216, {v(t1)}")
    A(f"v_add_u32 {v(dmx+2)}, {2*9216}, {v(dmx)}"); A(f"v_add_u32 {v(dmx+3)}, {2*9216}, {v(dmx+1)}")
    for i in range(5):
        A(f"v_add_u32 {v(t0)}, {64*i}, {v(LANE)}"); A(f"v_mul_u32_u24 {v(t1)}, 3277, {v(t0)}"); A(f"v_lshrrev_b32 {v(t1)}, 16, {v(t1)}")
        A(f"v_mul_u32_u24 {v(t2)}, 20, {v(t1)}"); A(f"v_sub_u32 {v(t0)}, {v(t0)}, {v(t2)}")
        if i == 2: A(f"v_lshrrev_b32 {v(t2)}, 2, {v(t1)}"); A(f"v_and_b32 {v(t2)}, 2, {v(t2)}"); A(f"v_xor_b32 {v(t0)}, {v(t0)}, {v(t2)}")
        elif i > 2: A(f"v_xor_b32 {v(t0)}, 2, {v(t0)}")
        A(f"v_mul_u32_u24 {v(t1)}, 3840, {v(t1)}"); A(f"v_lshl_add_u32 {v(dmw+i)}, {v(t0)}, 4, {v(t1)}")
        if i & 3: A(f"v_subrev_u32 {v(dmw+i)}, {1024*i}, {v(dmw+i)}")
    A(f"s_lshl_b32 s56, s{rt}, 2"); A(f"s_add_u32 s56, s56, s{W}"); A(f"s_mul_i32 s{sox}, s56, {32*1280}")
    A(f"s_mul_i32 s{sow}, s{W}, {16*3840}"); A(f"s_mul_i32 s57, s{ct}, 320"); A(f"s_add_u32 s{sow}, s{sow}, s57")
    A(f"s_lshl_b32 s{m0x}, s{W}, 12"); A(f"s_mul_i32 s{m0w}, s{W}, 5120")
    A("s_waitcnt lgkmcnt(0)")
    srd(A, SX, 36, 2621440); srd(A, SA, 38, 2457600)
    def dma(stage):
        o = (stage % 4)*SL
        dx = lambda b: f"buffer_load_dwordx4 {v(dmx+b)}, {S4(SX)}, s{sox} offen offset:{b*1024} lds"
        dw = lambda b: f"buffer_load_dwordx4 {v(dmw+b)}, {S4(SA)}, s{sow} offen offset:{(b&3)*1024} lds"
        return ([f"s_add_u32 m0, s{m0x}, {o}", f"s_add_u32 s{sow}, s{sow}, {64*3840 if stage else 0}"] + [dx(b) for b in range(4)] +
                [f"s_add_u32 m0, s{m0w}, {o+16384}", f"s_add_u32 s{sox}, s{sox}, 128"] + [dw(b) for b in range(4)] + [f"s_add_u32 m0, s{m0w}, {o+20480}", "s_nop 0", dw(4)])
    A.ext(dma(0))
    def common():
        srd(A, SWS, 54, WS_SIZE)
        A(f"s_mov_b32 s{SD+2}, 256"); A(f"s_mov_b32 s{SD+3}, 0x20000")
        A(f"v_lshlrev_b32 {v(TV)}, 7, {v(LANE)}"); A(f"v_lshlrev_b32 {v(LV)}, 4, {v(LANE)}"); A(f"v_lshlrev_b32 {v(L4V)}, 2, {v(LANE)}")
        A(f"s_mul_i32 s{GB}, s{GX}, {GS}"); A(f"s_cmp_eq_u32 s{W}, 0"); A(f"s_cselect_b32 s22, 0, {OOB}")
        A(f"s_getreg_b32 s{MYF}, hwreg(HW_REG_XCC_ID, 0, 4)"); A(f"s_add_u32 s{MYF}, s{MYF}, 1")
    common()
    ST.mark()
    ES = CFG.get("es", 0)
    if ES: att_setup(A); tile_ids()
    else: sst, srs, srr, sqs, sc1_ = 46, 59, 43, 42, 44
    A(f"s_and_b32 s{wm}, s{W}, 1"); A(f"s_lshr_b32 s{wn}, s{W}, 1")
    nn, qq = 52, 53
    A(f"v_lshrrev_b32 {v(qq)}, 4, {v(LANE)}"); A(f"v_and_b32 {v(nn)}, 15, {v(LANE)}")
    A(f"v_lshrrev_b32 {v(t0)}, 1, {v(nn)}"); A(f"v_xor_b32 {v(t0)}, {v(t0)}, {v(qq)}"); A(f"v_lshlrev_b32 {v(t0)}, 4, {v(t0)}")
    A(f"v_lshl_add_u32 {v(t0)}, {v(nn)}, 7, {v(t0)}"); A(f"s_lshl_b32 s58, s{wm}, 13"); A(f"v_add_u32 {v(xa)}, s58, {v(t0)}"); A(f"v_xor_b32 {v(xa+1)}, 64, {v(xa)}")
    A(f"v_lshrrev_b32 {v(t0)}, 2, {v(nn)}"); A(f"v_lshl_add_u32 {v(t1)}, {v(qq)}, 3, {v(t0)}"); A(f"v_mul_u32_u24 {v(t1)}, 320, {v(t1)}")
    A(f"v_and_b32 {v(t0)}, 3, {v(nn)}"); A(f"v_lshl_add_u32 {v(t1)}, {v(t0)}, 3, {v(t1)}"); A(f"s_mul_i32 s58, s{wn}, 160"); A("s_add_u32 s58, s58, 16384"); A(f"v_add_u32 {v(t1)}, s58, {v(t1)}")
    A(f"v_and_b32 {v(t0)}, 1, {v(qq)}"); A(f"s_lshl_b32 s58, s{wn}, 6"); A("s_sub_u32 s58, 32, s58"); A(f"v_mul_i32_i24 {v(t0)}, s58, {v(t0)}")
    A(f"v_add_u32 {v(wa)}, {v(t1)}, {v(t0)}"); A(f"v_sub_u32 {v(wa+1)}, {v(t1)}, {v(t0)}")
    A(f"s_lshl_b32 s37, s{rt}, 1"); A(f"s_add_u32 s37, s37, s{wm}")
    A(f"s_lshl_b32 s36, s{ct}, 1"); A(f"s_add_u32 s36, s36, s{wn}")
    STL = 147456
    A(f"s_lshl_b32 s{srs}, s{rt}, 9"); A(f"s_lshl_b32 s58, s{W}, 13"); A(f"s_add_u32 s{srs}, s{srs}, s58"); A(f"s_add_u32 s{srs}, s{srs}, {RS_OFF}")
    A(f"s_mul_i32 s58, s{ct}, 640"); A(f"s_add_u32 s58, s58, {C1_OFF}"); A(f"s_cmp_eq_u32 s{W}, 2"); A(f"s_cselect_b32 s{srs}, s58, s{srs}"); A(f"s_cmp_eq_u32 s{W}, 3"); A(f"s_cselect_b32 s{srs}, {OOB}, s{srs}")
    A(f"s_lshl_b32 s{srr}, s{W}, 10"); A(f"s_add_u32 s{srr}, s{srr}, {STL}")
    A(f"s_lshl_b32 s58, s{wm}, 8"); A(f"s_add_u32 s58, s58, {STL}"); A(f"v_mov_b32 {v(rv)}, s58"); A(f"s_mul_i32 s58, s{wn}, 320"); A(f"s_add_u32 s58, s58, {STL+2048}"); A(f"v_mov_b32 {v(cv)}, s58")
    A(f"s_cmp_lt_u32 s{ct}, 4"); A(f"s_cselect_b32 s{sqs}, {hex(QSCALE)}, 1.0")
    A("s_and_b32 s56, s36, 7"); A("s_lshr_b32 s57, s36, 3"); A(f"s_mul_i32 s{sst}, s56, {GS}"); A(f"s_mul_i32 s58, s57, {K_OFF}"); A(f"s_add_u32 s{sst}, s{sst}, s58")
    A("s_mul_i32 s56, s56, 3"); A("s_add_u32 s56, s56, s57"); A("s_lshl_b32 s56, s56, 2"); A("s_lshr_b32 s57, s37, 3"); A("s_add_u32 s56, s56, s57"); A("s_lshl_b32 s56, s56, 5")
    A("s_and_b32 s57, s37, 7"); A("s_add_u32 s56, s56, s57"); A("s_lshl_b32 s56, s56, 2"); A(f"s_add_u32 s62, s56, {F1_OFF}")
    A(f"s_cmp_ge_u32 s{ct}, 8"); A(f"s_cbranch_scc1 {K}_v")

    Xr = lambda st, xi, ks: (FR+144 if st == 9 else FR+72*(st & 1)) + 8*xi+4*ks
    Wr = lambda st, wi, ks: FR+72*(st & 1) + 32 + 8*wi+4*ks
    rdx = lambda st: [f"ds_read_b128 {r(Xr(st,xi,ks),4)}, {v(xa+ks)} offset:{(st&1)*SL+2048*xi}" for xi in range(4) for ks in range(2)]
    rdw = lambda st, wi: [f"ds_read_b64_tr_b16 {r(Wr(st,wi,ks)+2*h,2)}, {v(wa+(wi&1))} offset:{(st&1)*SL+(32*ks+4*h)*320+32*wi}" for ks in range(2) for h in range(2)]
    def reads(st): return rdw(st, 0) + rdx(st) + rdw(st, 1) + rdw(st, 2) + rdw(st, 3) + rdw(st, 4)
    flag = f"buffer_load_dword {v(t0)}, {v(L4V)}, {S4(SD)}, s22 offen sc1"
    def mainloop(isv):
        tag = "v" if isv else "q"
        if not isv:
            A("s_mul_i32 s56, s37, 5120"); A(f"s_add_u32 s{sst}, s{sst}, s56"); A(f"s_add_u32 s{sst+1}, s{sst}, 2560")
            A(f"s_add_u32 s{sst+2}, s{sst}, {163840+512}"); A(f"s_add_u32 s{sst+3}, s{sst+1}, {163840+512}")
            A(f"v_lshrrev_b32 {v(t0)}, 5, {v(LANE)}"); A(f"v_mul_u32_u24 {v(t0)}, {163840-2560}, {v(t0)}"); A(f"v_add_u32 {v(sa)}, {v(t0)}, {v(LV)}")
            A(f"v_lshl_add_u32 {v(rv)}, {v(nn)}, 2, {v(rv)}"); A(f"v_lshl_add_u32 {v(cv)}, {v(qq)}, 4, {v(cv)}")
        else:
            A("s_mul_i32 s56, s37, 10240"); A(f"s_add_u32 s{sst}, s{sst}, s56"); A(f"s_add_u32 s{sst+1}, s{sst}, 5120")
            A(f"v_mul_u32_u24 {v(t3)}, 1280, {v(qq)}"); A(f"v_lshl_add_u32 {v(sa)}, {v(nn)}, 4, {v(t3)}")
            A(f"v_lshl_add_u32 {v(rv)}, {v(qq)}, 4, {v(rv)}"); A(f"v_lshl_add_u32 {v(cv)}, {v(nn)}, 2, {v(cv)}")
        Q = VQ(); Q.add(0, dma(0)); A.ext(Q.add(1, dma(1)))
        A.ext(Q.wait(0)); A("s_barrier"); ST.mark(2)
        A.ext(reads(0))
        BP = 8; FS = CFG.get("p1fs", 5); EARLY = CFG.get("p1e", 1)
        rrd = lambda k_: [f"ds_read_b{128 if isv else 32} {v(RS+16*k_+4*xi, 4 if isv else 1)}, {v(rv)} offset:{1024*k_+64*xi}" for xi in range(4)]
        crd = [f"ds_read_b{32 if isv else 128} {v(CS+4*wi, 1 if isv else 4)}, {v(cv)} offset:{64*wi}" for wi in range(5)]
        sdma = [f"s_mov_b32 m0, s{srr}", f"buffer_load_dwordx4 {v(LV)}, {S4(SWS)}, s{srs} offen sc1 lds"]
        steps = [(st, wi, xi, ks) for st in range(8) for wi in range(5) for xi in range(4) for ks in range(2)]
        steps += [(st, wi, xi, ks) for wi in range(5) for xi in range(4) for st in (8, 9) for ks in range(2)]
        mm = lambda st, wi, xi, ks: mf16(ACC+16*wi+4*xi, *((Xr(st, xi, ks), Wr(st, wi, ks)) if isv else (Wr(st, wi, ks), Xr(st, xi, ks))), "0" if (st == 0 and ks == 0) else None)
        T = TL(A, Q, [mm(*x) for x in steps])
        tagged = lambda st: [(("x", st) if i < 12 else None, x) for i, x in enumerate(reads(st))]
        T.lq = [t for t, x in tagged(0)]
        nonop = lambda L: [x for x in L if x != "s_nop 0"]
        for st in range(8):
            k0 = 40*st
            if 4*st in P1ST(): T.pre[k0].append(lambda i=3+P1ST().index(4*st): ST.mark(i))
            T.pre[k0].append(("lwait", ("x", st))); T.pre[k0+BP].append("s_waitcnt lgkmcnt(0)")
            if st == 0:
                T.spread([(2, x) for x in dma(2)], 0, 0.8); T.spread([(3, x) for x in nonop(dma(3))], BP+2, 3.3)
            elif st+3 < 10:
                dm = [(st+3, x) for x in nonop(dma(st+3))]
                if st == FS+1: dm = dm[:6] + [("rs", x) for x in sdma] + dm[6:]
                T.spread(dm, k0+2, 4.3 if st != FS+1 else 3.9)
            if st == FS: T.post[k0+1].append(("f", flag))
            if st == FS+2: T.pre[k0+BP].append(("wait", "rs"))
            T.pre[k0+BP].append(("wait", st+1))
            if st == FS+1:
                T.pre[k0+BP] += [("wait", "f"), f"v_or_b32 {v(t0)}, s{W}, {v(t0)}", f"v_cmp_eq_u32 vcc, 0, {v(t0)}", "s_nop 1", f"s_cbranch_vccnz {K}_rsspin{tag}", f"{K}_rsok{tag}:"]
            T.pre[k0+BP].append("s_barrier")
        for st in range(8):
            k0 = 40*st
            if st < 7: assert T.spread(tagged(st+1), k0+BP, 1, slack=CFG.get('p1sl', 0)) <= k0+44
            else:
                k = T.spread([("s", x) for x in rrd(0) + crd + rrd(1)], k0+BP, 0.7)
                T.spread([(None, x) for x in rdw(8, 0) + rdx(8)], k, 0.75)
                T.pre[k0+27] += [("wait", 9), "s_barrier"]
                T.spread([(None, x) for x in rdw(9, 0) + rdx(9)], k0+27, 0.9)
            if st & 1:
                d = (2*SL if (st & 2) == 0 else -2*SL) & 0xffffffff
                T.vspread([f"v_add_u32 {v(x)}, {d}, {v(x)}" for x in range(xa, xa+4)], k0+4, k0+8)
        for wi in range(5):
            k0 = 320 + 16*wi
            T.pre[k0].append("s_waitcnt lgkmcnt(0)")
            if wi < 4: T.spread([(None, x) for x in rdw(8, wi+1) + rdw(9, wi+1)], k0, 1)
        def corr(wi, xi): return [f"v_fmac_f32 {v(ACC+16*wi+4*xi+i)}, {v(RS+4*xi+(i if isv else 0))}, {v(CS+4*wi+(0 if isv else i))}" for i in range(4)]
        def group(wi, xp, pk, o):
            L = []
            for xi in (2*xp, 2*xp+1):
                ac = ACC+16*wi+4*xi
                if not EARLY: L += corr(wi, xi)
                if pk: L += [f"v_pk_mul_f32 {v(ac+i,2)}, {v(ac+i,2)}, {v(RS+16+4*xi+(i if isv else 0),2)}" + ("" if isv else " op_sel_hi:[1,0]") for i in (0, 2)]
                else: L += [f"v_mul_f32 {v(ac+i)}, {v(ac+i)}, {v(RS+16+4*xi+(i if isv else 0))}" for i in range(4)]
            L += [f"v_cvt_pk_bf16_f32 {v(o+2*j+i)}, {v(ACC+16*wi+8*xp+4*j+2*i)}, {v(ACC+16*wi+8*xp+4*j+2*i+1)}" for i in range(2) for j in range(2)]
            sw = "v_permlane32_swap_b32" if isv else "v_permlane16_swap_b32"
            L += [f"{sw} {v(o)}, {v(o+2)}", "v_nop", f"{sw} {v(o+1)}, {v(o+3)}"]
            if isv: st_ = f"buffer_store_dwordx4 {v(o,4)}, {v(sa)}, {S4(SWS)}, s{sst+xp} offen offset:{256*wi} sc1"
            else: st_ = f"buffer_store_dwordx4 {v(o,4)}, {v(sa if wi == 2 else LV)}, {S4(SWS)}, s{sst+xp+2*(wi > 2)} offen offset:{1024*(wi if wi < 3 else wi-3)} sc1"
            return L, st_
        qs = [] if isv else [f"v_mul_f32 {v(RS+16+4*xi)}, s{sqs}, {v(RS+16+4*xi)}" for xi in range(4)]
        if EARLY:
            T.pre[301].append(("lwait", "s"))
            for wi, (ka, kb) in {0: (301, 317), 1: (317, 329), 2: (329, 338), 3: (338, 364), 4: (364, 381)}.items():
                T.vspread([x for xi in range(4) for x in corr(wi, xi)] + (qs if wi == 1 else []), ka, kb)
        else: T.vspread(qs, 330, 334)
        for wi in range(4):
            for xp in range(2):
                L, st_ = group(wi, xp, False, OB + 4*((2*wi+xp) % 4))
                ka = 320 + 16*wi + 8*xp + 16 + (2 if wi == 0 and xp == 0 else 0)
                k = T.vspread(L, ka, 320 + 16*wi + 8*xp + 24, cap=2)
                if k < 400: T.post[k].append(("o", st_))
                else: late = st_
        T.emit()
        ST.mark(3 + len(P1ST()))
        A(late)
        for xp in range(2):
            L, st_ = group(4, xp, True, OB + 4*xp); A.ext(L); A(st_)
        COLD.append(lambda: (A(f"{K}_rsspin{tag}:"), poll(A, [flag], [t0], sleep=10), A(f"s_branch {K}_rsok{tag}")))
    mainloop(False)
    A(f"s_branch {K}_p1out")
    helper(A, ST, common, flag)
    A(f"{K}_v:")
    mainloop(True)
    A(f"{K}_p1out:")
    ST.n = 4 + len(P1ST())
    ST.mark()
    def setflag(pos):
        if pos != (2 if ES else CFG.get("fpos", 0)): return
        A(f"v_mul_u32_u24 v2, {96*128}, {v(LANE)}"); A("s_mov_b64 exec, 15")
        A("s_waitcnt vmcnt(0)"); A(f"buffer_{'atomic_or' if CFG.get('at1', 1) else 'store_dword'} v10, v2, {S4(SWS)}, s62 offen sc1"); A("s_mov_b64 exec, -1"); ST.mark()
    if not ES: att_setup(A, setflag)
    setflag(2)
    A(f"{K}_p1done:")

def helper(A, ST, common, flag):
    hid, so, stp = 28, 32, 33
    nn, qq, sv = 6, 7, 12
    XB, SM, ONE = 64, 40, 32
    KS = CFG.get("hk", 1)
    A(f"{K}_help:")
    A(f"s_sub_u32 s{hid}, s2, 192")
    A(f"s_cmp_lt_u32 s{hid}, 32"); A("s_cselect_b32 s56, 1280, s56"); A("s_cselect_b32 s29, 1, 0")
    A("s_cmp_eq_u32 s29, 0"); A("s_cselect_b32 s56, 3840, s56")
    A(f"v_lshrrev_b32 v2, 3, {v(LANE)}"); A(f"v_and_b32 v3, 7, {v(LANE)}"); A("v_mul_u32_u24 v4, s56, v2"); A(f"v_lshl_add_u32 {v(sv)}, v3, 4, v4")
    A("s_lshl_b32 s57, s56, 3"); A(f"v_add_u32 {v(sv+1)}, s57, {v(sv)}")
    A(f"s_lshl_b32 s57, s56, 4"); A(f"s_mul_i32 s{so}, s57, s{W}")
    A(f"s_and_b32 s30, s{GX}, 3"); A("s_lshl_b32 s30, s30, 3"); A(f"s_lshr_b32 s57, s{hid}, 2"); A("s_and_b32 s57, s57, 7"); A("s_add_u32 s30, s30, s57")
    A(f"s_sub_u32 s31, s{hid}, 32"); A(f"s_mul_i32 s57, s30, {64*1280}"); A("s_lshl_b32 s58, s31, 7")
    A("s_cmp_eq_u32 s29, 0"); A("s_cselect_b32 s57, s58, s57"); A(f"s_cselect_b32 s{stp}, {64*3840}, s56"); A(f"s_add_u32 s{so}, s{so}, s57")
    A("s_cmp_eq_u32 s29, 1"); A(f"s_cselect_b32 s{stp}, 128, s{stp}")
    A(f"s_mul_i32 s57, s{stp}, {KS}"); A(f"s_add_u32 s{so}, s{so}, s57"); A(f"s_mul_i32 s34, s{stp}, -9")
    A("s_waitcnt lgkmcnt(0)")
    srd(A, SX, 36, 2621440)
    A("s_cmp_eq_u32 s29, 1"); A(f"s_cselect_b64 s[{SA}:{SA+1}], s[36:37], s[38:39]"); A(f"s_cselect_b32 s{SA+2}, s{SX+2}, 2457600"); A(f"s_mov_b32 s{SA+3}, 0x20000")
    A(f"s_cmp_lt_u32 s{hid}, 62"); A(f"s_cselect_b32 s{SA+2}, s{SA+2}, 0")
    Q = VQ()
    def xl(i):
        L = [f"buffer_load_dwordx4 {v(XB+4*i,4)}, {v(sv+(i&1))}, {S4(SA)}, s{so} offen"]
        if i & 1: L.append(f"s_add_u32 s{so}, s{so}, s{stp if i//2+KS != 9 else 34}")
        return L
    for i in range(10): A.ext(Q.add(("x", i), xl(i)))
    common()
    marks = list(range(1, 6 + len(P1ST())))
    def mk():
        if marks: ST.mark(marks.pop(0))
    mk()
    for i in range(4): A(f"v_mov_b32 {v(8+i)}, 0"); A(f"v_mov_b32 {v(ONE+i)}, 0x3f803f80")
    for i in range(8): A(f"v_mov_b32 {v(SM+i)}, 0")
    col, both = A.label("hcol"), A.label("hboth")
    def stats(proc, fin):
        Q2 = VQ(); Q2.q = list(Q.q)
        for i in range(10, 20): A.ext(Q2.add(("x", i), xl(i))); A.ext(Q2.wait(("x", i-10))); proc(i-10)
        for i in range(10, 20): A.ext(Q2.wait(("x", i))); proc(i)
        fin(Q2); return Q2
    A("s_cmp_eq_u32 s29, 0"); A(f"s_cbranch_scc1 {col}")
    def rproc(i):
        for j in range(4): A(f"v_dot2c_f32_bf16 {v(SM+2*(i&1))}, {v(ONE)}, {v(XB+4*i+j)}"); A(f"v_dot2c_f32_bf16 {v(SM+2*(i&1)+1)}, {v(XB+4*i+j)}, {v(XB+4*i+j)}")
    def rfin(Q2):
        A("s_nop 2")
        for mod in ("quad_perm:[1,0,3,2]", "quad_perm:[2,3,0,1]", "row_half_mirror"):
            for i in range(4): A(f"v_add_f32_dpp {v(SM+i)}, {v(SM+i)}, {v(SM+i)} {mod} row_mask:0xf bank_mask:0xf")
        A("v_cmp_eq_u32 vcc, 1, v3"); A(f"v_lshrrev_b32 v4, 3, {v(LANE)}"); A("v_lshl_add_u32 v4, v3, 3, v4")
        A(f"v_cndmask_b32 {v(SM)}, {v(SM)}, {v(SM+2)}, vcc"); A(f"v_cndmask_b32 {v(SM+1)}, {v(SM+1)}, {v(SM+3)}, vcc")
        A(f"v_mul_f32 {v(SM)}, {hex(f2u(-1/640))}, {v(SM)}"); A(f"v_mul_f32 {v(SM+1)}, {hex(f2u(1/640))}, {v(SM+1)}")
        A(f"v_fma_f32 {v(SM+1)}, -{v(SM)}, {v(SM)}, {v(SM+1)}"); A(f"v_max_f32 {v(SM+1)}, 0, {v(SM+1)}")
        A(f"v_add_f32 {v(SM+1)}, {hex(f2u(1e-5))}, {v(SM+1)}"); A(f"v_rsq_f32 {v(SM+1)}, {v(SM+1)}")
        A("v_lshlrev_b32 v4, 2, v4"); A(f"v_mov_b32 v5, {OOB}"); A("v_cmp_gt_u32 vcc, 2, v3"); A("s_lshl_b32 s57, s30, 2"); A(f"s_add_u32 s57, s57, s{W}"); A("v_cndmask_b32 v4, v5, v4, vcc")
        A("s_lshl_b32 s57, s57, 6"); A(f"s_add_u32 s57, s57, {RS_OFF}"); A("s_add_u32 s58, s57, 8192")
        A.ext(Q2.add("s", [f"buffer_store_dword {v(SM)}, v4, {S4(SWS)}, s57 offen sc1", f"buffer_store_dword {v(SM+1)}, v4, {S4(SWS)}, s58 offen sc1"]))
    stats(rproc, rfin)
    A(f"s_branch {both}")
    A(f"{col}:")
    def cproc(i):
        for j in range(4):
            A(f"v_lshlrev_b32 v16, 16, {v(XB+4*i+j)}"); A(f"v_and_b32 v17, 0xffff0000, {v(XB+4*i+j)}"); A(f"v_pk_add_f32 {v(SM+2*j,2)}, {v(SM+2*j,2)}, v[16:17]")
    def cfin(Q2):
        A("s_nop 1")
        for i in range(8): A(f"v_add_f32_dpp {v(SM+i)}, {v(SM+i)}, {v(SM+i)} row_ror:8 row_mask:0xf bank_mask:0xf")
        quad_sum(A, list(range(SM, SM+8)), list(range(16, 24)))
        EX = 147456
        A(f"s_lshl_b32 s57, s{W}, 8"); A(f"s_add_u32 s57, s57, {EX}"); A("v_lshl_add_u32 v4, v3, 5, s57")
        A(f"ds_write_b128 v4, {v(SM,4)}"); A(f"ds_write_b128 v4, {v(SM+4,4)} offset:16"); A(f"v_add_u32 v4, {EX}, {v(L4V)}")
        A("s_waitcnt lgkmcnt(0)"); A("s_barrier")
        for i in range(4): A(f"ds_read_b32 {v(16+i)}, v4 offset:{256*i}")
        A("s_lshl_b32 s57, s31, 8"); A(f"s_add_u32 s57, s57, {C1_OFF}"); A("s_add_u32 s57, s57, s22"); A(f"s_mov_b32 s58, {OOB}")
        A("s_waitcnt lgkmcnt(0)"); A("v_add_f32 v16, v16, v17"); A("v_add_f32 v18, v18, v19"); A("v_add_f32 v16, v16, v18")
        A.ext(Q2.add("s", [f"buffer_store_dword v16, {v(L4V)}, {S4(SWS)}, s57 offen sc1", f"buffer_store_dword v16, {v(L4V)}, {S4(SWS)}, s58 offen sc1"]))
    Q = stats(cproc, cfin)
    A(f"{both}:"); mk()
    A(f"s_lshr_b32 s57, s{W}, 1"); A(f"s_lshl_b32 s56, s{hid}, 1"); A("s_add_u32 s56, s56, s57"); A("s_mul_i32 s56, s56, 896"); A(f"s_add_u32 s56, s56, {F2_OFF}")
    A(f"s_bitcmp1_b32 s{W}, 0"); A(f"s_cselect_b32 s56, s56, {OOB}"); A(f"v_min_u32 v4, {55*16}, {v(LV)}")
    A(f"s_mul_i32 s57, s{hid}, 5120"); A(f"s_add_u32 s57, s57, {ONES_OFF}"); A(f"s_cmp_eq_u32 s{W}, 2"); A(f"s_cselect_b32 s57, s57, {OOB}"); A(f"v_and_b32 v5, 1, {v(LANE)}"); A("v_mul_u32_u24 v5, 2560, v5")
    A.ext(Q.add("s", [f"buffer_store_dwordx4 v[8:11], v4, {S4(SWS)}, s56 offen sc1", f"buffer_store_dwordx4 {v(ONE,4)}, v5, {S4(SWS)}, s57 offen sc1"]))
    A(f"s_lshl_b32 s35, s{hid}, 2"); A("s_add_u32 s35, s35, s22"); A("v_mov_b32 v16, 1")
    A.ext(Q.wait("s")); A("s_barrier")
    A.ext(Q.add("f", [f"buffer_store_dword v16, off, {S4(SD)}, s35 sc1"]))
    mk()
    while marks: mk()
    att_setup(A)
    poll(A, ["s_sleep 24", flag], [2], post=[f"v_or_b32 v2, s{W}, v2"]); A("s_barrier")
    A("s_mov_b64 exec, 1"); poll(A, apoll(4, 145, 59, CFG.get("at1", 1)), [4], sleep=8); A("s_mov_b64 exec, -1")
    A(f"s_branch {K}_p1done")

def w3reg(f): return 256 + 192 + 4*f if f < 16 else 148 + 4*(f-16)
WV = 250
P3RES, P3CS = 184, 194
SK_WR, SK_RD, SK_RM = 242, 245, 246
def p3_wload(f):
    ks, u = divmod(f, 5)
    L = [f"buffer_load_dwordx4 {r(w3reg(f),4)}, {v(WV if u < 4 else WV+1)}, {S4(SWS)}, s44 offen offset:{1024*(u&3)} sc1"]
    if u == 4: L.append("s_add_u32 s44, s44, 40960" if ks != 3 else "s_mov_b32 s44, s78")
    return L
CMB = 86016

def TOUCHES(key="touch", dflt=""): return [(int(x.split(":")[0]), x.split(":")[1]) for x in str(CFG.get(key, dflt)).split(",") if x]
def gtouch(what):
    c, k_ = what[0], int(what[1:] or 0)
    if c == "u": return [f"s_mov_b64 s[{SR}:{SR+1}], s[86:87]", f"s_mov_b32 s{SR+2}, 2621440", f"buffer_load_dword v248, v147, {S4(SR)}, s90 offen offset:{1280*k_} sc1"]
    reg, vr, base = {"N": (76, TV, HH_OFF() + 3456*k_), "h": (90, 147, H_OFF()),
                     "s": (93, None, STAT_OFF), "g": (79, TV, WGU_OFF + 442368*k_), "d": (79, TV, WD_OFF + 442368*k_)}[c]
    return [f"s_add_u32 s91, s{reg}, {base}", f"buffer_load_dword v248, {v(vr) if vr else 'off'}, {S4(SWS)}, s91 {'offen' if vr else ''} sc1"]
def att_setup(A, hook=lambda pos: None):
    odd, sok, sov, sox, redo, sob, sfr, stch = 28, 72, 73, 74, 32, 33, 34, 35
    S0, S1, P, E, O0 = 16, 48, 80, 96, 104
    kv, kxv, vv, ov, oxv, cw, cr, tv = 136, 137, 138, 139, 140, 141, 144, 145
    OA, QM, QX, KR, VR, XR = 256, 256+96, 256+128, 256+136, 256+152, 256+184
    Oreg = lambda lp: O0 if lp == 0 else OA + 32*(lp-1)
    t0, t1, t2, t3, t4 = 2, 3, 4, 5, 6
    LD = CFG.get("ld", "sc1")
    head, qb = 30, 31
    A(f"s_lshl_b32 s{head}, s{GX}, 2"); A(f"s_and_b32 s36, s{GI}, 3"); A(f"s_add_u32 s{head}, s{head}, s36"); A(f"s_lshr_b32 s{qb}, s{GI}, 2")
    A(f"s_and_b32 s{odd}, s{head}, 1")
    A(f"s_bfe_u32 s36, s{head}, 0x10001"); A("s_mul_i32 s37, s36, 163840"); A(f"s_add_u32 s37, s37, s{GB}")
    A(f"s_add_u32 s{MODE}, s37, {K_OFF}")
    A(f"s_mul_i32 s{sob}, s{qb}, {GS}"); A(f"s_lshl_b32 s36, s{head}, 9"); A(f"s_add_u32 s{sob}, s{sob}, s36")
    A(f"s_lshl_b32 s36, s{W}, 14"); A(f"s_add_u32 s63, s{sob}, s36"); A(f"s_add_u32 s63, s63, {OX_OFF}")
    A(f"s_lshl_b32 s36, s{W}, 16"); A(f"s_add_u32 s{sob}, s{sob}, s36"); A(f"s_add_u32 s{sob}, s{sob}, {O_OFF}")
    A(f"s_lshl_b32 s38, s{qb}, 2")
    for i in range(4):
        A(f"s_add_u32 s36, s{W}, {i}"); A("s_and_b32 s36, s36, 3")
        if i: A("s_mul_i32 s39, s36, 18432"); A(f"s_add_u32 s39, s39, {CMB+(i-1)*6144}"); A(f"v_add_u32 {v(cw+i-1)}, s39, {v(LV)}")
        else: A("s_mul_i32 s39, s36, 18432"); A(f"s_add_u32 s39, s39, {CMB}"); A(f"v_add_u32 {v(cr)}, s39, {v(LV)}")
        A("s_add_u32 s36, s36, s38"); A("s_mul_i32 s36, s36, 5120"); A(f"s_add_u32 s{40+i}, s36, s37")
    A(f"s_mul_i32 s36, s{odd}, 1536"); A(f"v_add_u32 {v(kv)}, s36, {v(LV)}")
    A(f"v_and_b32 {v(t0)}, 31, {v(LANE)}"); A(f"v_lshrrev_b32 {v(t1)}, 5, {v(LANE)}")
    A(f"s_lshl_b32 s36, s{odd}, 3"); A("s_add_u32 s37, s36, 1024")
    A(f"v_lshl_add_u32 {v(t4)}, {v(t0)}, 4, s37")
    A(f"v_mul_u32_u24 {v(t2)}, 2560, {v(t1)}"); A(f"v_add_u32 {v(kxv)}, {v(t4)}, {v(t2)}")
    A(f"v_bfe_u32 {v(t2)}, {v(LANE)}, 4, 1"); A(f"v_lshlrev_b32 {v(t2)}, 14, {v(t2)}"); A(f"v_and_b32 {v(t3)}, 15, {v(LANE)}"); A(f"v_lshl_add_u32 {v(t2)}, {v(t3)}, 4, {v(t2)}")
    A(f"v_lshl_add_u32 {v(ov)}, {v(t1)}, 8, {v(t2)}")
    A(f"v_lshrrev_b32 {v(t2)}, 2, {v(t0)}"); swap01(A, t3, t2, 7)
    A(f"v_and_b32 {v(t2)}, 3, {v(t0)}"); A(f"v_lshl_add_u32 {v(t2)}, {v(t3)}, 2, {v(t2)}")
    A(f"v_mul_u32_u24 {v(t3)}, 1280, {v(t1)}"); A(f"v_lshl_add_u32 {v(t2)}, {v(t2)}, 4, {v(t3)}")
    A(f"s_and_b32 s36, s{head}, 3"); A("s_mul_i32 s36, s36, 320"); A(f"v_add_u32 {v(t2)}, s36, {v(t2)}")
    A(f"v_mov_b32 {v(t3)}, {OOB}"); A(f"v_cmp_gt_u32 vcc, 20, {v(t0)}"); A("s_nop 1"); A(f"v_cndmask_b32 {v(t2)}, {v(t3)}, {v(t2)}, vcc")
    A(f"s_sub_u32 s36, {ONES_OFF-V_OFF}, s{GB}"); A(f"v_mov_b32 {v(t3)}, s36")
    A(f"v_cmp_eq_u32 vcc, 20, {v(t0)}"); A("s_nop 1"); A(f"v_cndmask_b32 {v(vv)}, {v(t2)}, {v(t3)}, vcc")
    A(f"s_mul_i32 s{sok}, s{W}, {16*2560}"); A(f"s_mov_b32 s{sox}, s{sok}")
    A(f"s_mul_i32 s36, s{W}, {16*5120}"); A(f"s_add_u32 s{sov}, s{GB}, s36"); A(f"s_add_u32 s{sov}, s{sov}, {V_OFF}")
    A("v_mov_b32 v10, 1")
    hook(0)
    A(f"s_bfe_u32 s36, s{GI}, 0x10002"); A("s_lshl_b32 s37, s36, 10"); A(f"v_add_u32 {v(WV)}, s37, {v(LV)}")
    A("s_xor_b32 s36, s36, 1"); A("s_lshl_b32 s37, s36, 12"); A(f"v_add_u32 {v(WV+1)}, s37, {v(LV)}")
    A(f"s_lshr_b32 s36, s{GI}, 2"); A("s_mul_i32 s36, s36, 5120"); A(f"s_mul_i32 s44, s{W}, {4*40960}"); A("s_add_u32 s44, s44, s36"); A(f"s_add_u32 s44, s44, {WO_OFF}")
    A(f"s_mul_i32 s78, s{W}, 40960"); A("s_add_u32 s78, s78, s36"); A(f"s_add_u32 s78, s78, {WO_OFF+16*40960}")
    skinny_addr(A); p4_setup(A)
    A(f"s_lshl_b32 s75, s{P4_ST}, 7"); A(f"s_add_u32 s75, s75, {CS_OFF}"); A("v_lshlrev_b32 v146, 2, v0")
    hook(1)
    relayout_setup(A)
    A(f"s_lshl_b32 s36, s{GX}, 5"); A(f"s_add_u32 s36, s36, s{GI}"); A("s_lshl_b32 s36, s36, 2"); A(f"s_add_u32 s36, s36, s{W}")
    A(f"s_lshl_b32 s{sfr}, s2, 5"); A(f"s_add_u32 s{sfr}, s{sfr}, s{W}"); A(f"s_lshl_b32 s{sfr}, s{sfr}, 2"); A(f"s_add_u32 s{sfr}, s{sfr}, {FR_OFF}")
    A(f"s_lshl_b32 s77, s{GX}, 7"); A(f"s_add_u32 s77, s77, {FR_OFF}"); A(f"s_lshl_b32 s101, s{W}, 13"); A(f"s_add_u32 s101, s101, {FR_OFF}")
    A(f"v_mov_b32 v11, {v(TV)}"); A(f"v_and_b32 v8, 31, {v(LANE)}"); A("v_lshlrev_b32 v8, 10, v8")
    A("s_lshl_b32 s93, s36, 7"); A("s_and_b32 s36, s36, 127"); A("s_mul_i32 s79, s36, 3456")
    A("s_mul_i32 s76, s36, 6912"); A(f"s_add_u32 s76, s76, s{GB}"); A("s_mul_i32 s90, s36, 2560"); A(f"s_add_u32 s90, s90, s{GB}")
    A(f"v_min_u32 v147, {19*128}, {v(TV)}"); A(f"v_min_u32 {v(TV)}, {26*128}, {v(TV)}"); A(f"v_mov_b32 v7, s{MYF}")
    A(f"s_lshl_b32 s38, s{qb}, 2"); A(f"s_add_u32 s38, s38, s{W}"); A("s_lshl_b32 s38, s38, 2"); A(f"s_lshr_b32 s39, s{head}, 3"); A("s_add_u32 s38, s38, s39"); A("s_lshl_b32 s38, s38, 5")
    A(f"s_and_b32 s39, s{head}, 7"); A("s_add_u32 s38, s38, s39"); A("s_lshl_b32 s38, s38, 2"); A(f"s_add_u32 s38, s38, {F2_OFF}")
    A(f"s_add_u32 s39, s{sob}, 32768")
    A(f"v_min_u32 v2, 23, {v(LANE)}"); A("v_lshrrev_b32 v3, 3, v2"); A("v_and_b32 v4, 7, v2"); A("v_lshlrev_b32 v3, 9, v3"); A("v_lshl_add_u32 v3, v4, 2, v3"); A(f"s_lshl_b32 s36, s{W}, 7"); A(f"s_lshr_b32 s37, s{GI}, 3"); A(f"s_mul_i32 s37, s37, {96*128}"); A("s_add_u32 s36, s36, s37"); A("v_add_u32 v3, s36, v3")
    A(f"s_lshr_b32 s36, s{qb}, 1"); A("s_lshl_b32 s36, s36, 7"); A(f"s_and_b32 s37, s{qb}, 1"); A("s_lshl_b32 s37, s37, 4"); A("s_add_u32 s36, s36, s37"); A(f"s_mul_i32 s37, s{W}, {96*128}"); A("s_add_u32 s36, s36, s37")
    A("v_and_b32 v4, 3, v2"); A("v_cmp_gt_u32 vcc, 8, v2"); A("v_lshl_add_u32 v4, v4, 2, s36"); A(f"s_mul_i32 s59, s{GX}, 1536"); A(f"v_cndmask_b32 {v(tv)}, v3, v4, vcc"); A(f"s_add_u32 s59, s59, {F1_OFF}")
    w5_setup(A)

def phase2(A, ST):
    odd, sok, sov, sox, redo, sob, sfr, stch = 28, 72, 73, 74, 32, 33, 34, 35
    S0, S1, P, E, O0 = 16, 48, 80, 96, 104
    kv, kxv, vv, ov, oxv, cw, cr, tv = 136, 137, 138, 139, 140, 141, 144, 145
    OA, QM, QX, KR, VR, XR = 256, 256+96, 256+128, 256+136, 256+152, 256+184
    Oreg = lambda lp: O0 if lp == 0 else OA + 32*(lp-1)
    t0, t1, t2, t3, t4 = 2, 3, 4, 5, 6
    LD = CFG.get("ld", "sc1")
    head, qb = 30, 31
    A(f"s_mov_b32 s{redo}, 0"); A(f"s_add_u32 s{SA}, s{SWS}, s{MODE}"); A(f"s_addc_u32 s{SA+1}, s{SWS+1}, 0"); A(f"s_mov_b32 s{SA+2}, 163840")
    if CFG.get("f1b", 0) == 0: A("s_barrier")
    A("s_mov_b64 exec, 0xffff0f")
    poll(A, apoll(4, tv, 59, CFG.get("at1", 1)), [4], sleep=CFG.get("f1s", 1))
    A("s_mov_b64 exec, -1")
    if CFG.get("f1b", 0) == 1: A("s_barrier")
    ST.mark()
    Kr = lambda t: KR + 4*(t % 4)
    Vr = lambda t, sx: VR + 8*(t % 4) + 4*sx
    Xr = lambda j: XR + 2*(j % 2)
    def ldk(t): return [f"buffer_load_dwordx4 {r(Kr(t),4)}, {v(kv)}, {S4(SA)}, s{sok} offen offset:{2560*(t&1)} {LD}"] + ([f"s_add_u32 s{sok}, s{sok}, 5120"] if t & 1 else [])
    def ldx(j): return [f"buffer_load_dwordx2 {r(Xr(j),2)}, {v(kxv)}, {S4(SA)}, s{sox} offen sc1", f"s_add_u32 s{sox}, s{sox}, 5120"]
    def ldv(t, sx): return [f"buffer_load_dwordx4 {r(Vr(t,sx),4)}, {v(vv)}, {S4(SWS)}, s{sov} offen offset:{2560*sx} {LD}"] + ([f"s_add_u32 s{sov}, s{sov}, 5120"] if sx else [])
    def ldq(lp): return ([f"buffer_load_dwordx2 {r(QX+2*lp,2)}, {v(kxv)}, {S4(SWS)}, s{40+lp} offen sc1"] +
                         [f"buffer_load_dwordx4 {r(QM+8*lp+4*j,4)}, {v(kv)}, {S4(SWS)}, s{40+lp} offen offset:{2560*j} sc1" for j in range(2)])
    Q = VQ()
    order = (1, 2, 3, 0)
    NT = CFG.get("tail", 3)
    seq = [(t, lp) for t in range(16-NT) for lp in order] + [(t, lp) for lp in order for t in range(16-NT, 16)]
    first = [(("x", 0), ldx(0)), (("k", 0), ldk(0)), (("q", 1), ldq(1)), (("q", 2), ldq(2)), (("v", 0, 0), ldv(0, 0)), (("v", 0, 1), ldv(0, 1)), (("q", 3), ldq(3)), (("q", 0), ldq(0))]
    U0 = CFG.get("au", 6)
    for tag, ops in first[:U0]: A.ext(Q.add(tag, ops))
    side = {b: [] for b in range(64)}
    fix = {(b, k): [] for b in range(64) for k in range(8)}
    def put(b, tag, ops): side[b] += [(tag, x) for x in ops]
    put(0, ("k", 1), ldk(1)); put(0, ("v", 1, 0), ldv(1, 0)); put(1, ("v", 1, 1), ldv(1, 1)); put(1, ("x", 1), ldx(1)); put(2, ("k", 2), ldk(2))
    put(2, ("v", 2, 0), ldv(2, 0)); put(3, ("v", 2, 1), ldv(2, 1)); put(3, ("k", 3), ldk(3)); put(4, ("v", 3, 0), ldv(3, 0)); put(4, ("v", 3, 1), ldv(3, 1))
    for t in range(12):
        d = 2*(t == 0)
        put(4*t+3+d, ("k", t+4), ldk(t+4)); put(4*t+4+d, ("v", t+4, 0), ldv(t+4, 0)); put(4*t+5+d, ("v", t+4, 1), ldv(t+4, 1))
    for j in range(6): put(8*j+6, ("x", j+2), ldx(j+2))
    for b in (10, 26, 42, 54): put(b, "pc", [CODE_TOUCH])
    mid = {b: [] for b in range(64)}
    B0, SP, B1, SS = CFG.get("b0", 3), CFG.get("rsp", 1), CFG.get("b1", 10), CFG.get("rss", 3)
    for i in range(10): put(B0+SP*i, ("rd", i), rl_dma(i))
    for a_ in range(5):
        b_ = B1 + SS*a_
        assert b_ > B0+SP*(2*a_+1)
        put(b_, None, [("wait", ("rd", 2*a_+1))] + rl_read(a_, 0) + rl_read(a_, 1))
        put(b_+1, "rs", ["s_waitcnt lgkmcnt(0)"] + rl_store(a_, 0)); put(b_+2, "rs", rl_store(a_, 1)); mid[b_+1] += [rl_sum(a_, 0), rl_sum(a_, 1)]
    put(b_+2, "rs", rl_cs(0) + rl_cs(1))
    B2 = b_ + 2 + CFG.get("b2", 3)
    put(B2, "fr", [("wait", "rs"), f"buffer_store_dword v7, off, {S4(SWS)}, s{sfr} sc1"])
    BR = B2 + CFG.get("b3", 5); BQ = BR + 4
    frl = [f"buffer_load_dwordx4 {v(RLF,4)}, v11, {S4(SWS)}, s101 offen sc1"]
    put(BR, "frl", frl)
    chk = [f"v_min3_u32 {v(RLF)}, {v(RLF)}, {v(RLF+1)}, {v(RLF+2)}", f"v_min_u32 {v(RLF)}, {v(RLF)}, {v(RLF+3)}", f"v_cmp_eq_u32 vcc, 0, {v(RLF)}"]
    put(BR+3, None, [("wait", "frl")] + chk + ["s_nop 0", f"s_cbranch_vccnz {K}_frspin", f"{K}_frok:", "s_barrier"])
    put(BQ, "grp", [f"buffer_load_dword v9, v8, {S4(SWS)}, s77 offen sc1"])
    put(BQ+4, None, [("wait", "grp"), "v_cmp_ne_u32 vcc, v7, v9", "s_nop 0", "s_cmp_eq_u64 vcc, 0", f"s_cselect_b32 s{MODE}, {0 if CFG.get('safe') else 1}, 0"])
    put(BQ+5, None, [f"s_cmp_eq_u32 s{MODE}, 0", f"s_cselect_b32 s{stch}, {OOB}, 0", f"s_add_u32 s76, s76, s{stch}", f"s_add_u32 s90, s90, s{stch}", f"s_add_u32 s93, s93, s{stch}"])
    pf = [x for st_ in range(3) for x in p4_dma(st_)]
    pf += [x for kq in range(4) for x in (f"buffer_load_dword {v(P3CS+kq)}, v146, {S4(SWS)}, s75 offen sc1", f"s_add_u32 s75, s75, {108*128}")]
    pf += io_rm("load", P3RES, SX)
    pf += [x for f in range(25) for x in p3_wload(f)]
    for b_, what in TOUCHES():
        assert b_ > BQ+5; put(b_, "t", gtouch(what))
    PE = CFG.get("pfe", 57); nreal = sum(not is_salu(x) for x in pf)
    bl = [b for b in range(BR+4, PE) if b not in (BQ+4, BQ+5)]
    for i, b in enumerate(bl):
        take = -(-nreal//(len(bl)-i))
        while pf and take > 0:
            x = pf.pop(0); put(b, "pf", [x])
            if not is_salu(x): take -= 1; nreal -= 1
    cwr = lambda lp: [f"ds_write_b128 {v(cw+lp-1)}, {r(Oreg(lp)+16*j+4*g,4)} offset:{3072*j+1024*g}" for j in range(2) for g in range(3)]
    E0 = 64 - 3*NT
    for n in range(3):
        b0 = E0 + NT*n
        for x, pos in zip(cwr(order[n]), [(b0, 3), (b0, 5), (b0, 7), (b0+1, 3), (b0+1, 5), (b0+1, 7)]): fix[pos].append(x)
    for f in range(CFG["w5z"]):
        b_ = E0 + NT*(f//8) + 2 + ((f % 8)*3)//8
        if f % 8 == 0: fix[(b_, 2)].append("s_waitcnt lgkmcnt(0)")
        put(b_, "w5", w5load(f))
    nxt63 = S0
    CB = [[204+4*i for i in range(6)], [nxt63+4*i for i in range(6)], [228, 232, 236, 200, nxt63+24, nxt63+28]]
    crd = lambda sl: [f"ds_read_b128 {v(CB[sl][3*j+g],4)}, {v(cr)} offset:{6144*sl+3072*j+1024*g}" for j in range(2) for g in range(3)]
    fix[(63, 2)] += ["s_waitcnt lgkmcnt(0)", "s_barrier"] + crd(0)
    fix[(63, 3)] += crd(1); fix[(63, 6)] += crd(2)
    A.ext(Q.wait(("q", 1)))
    A(mf2b(S0, Xr(0), QX+2, "0", 0))
    n0 = len(A.L)
    for tag, ops in first[U0:]: A.ext(Q.add(tag, ops))
    n0 = 18 - (len(A.L) - n0)
    if n0 > 16: A("s_nop 1"); n0 -= 2
    A(f"s_nop {n0-1}")
    A(mf32(S0, Kr(0), QM+8)); A(mf32(S0+16, Kr(0), QM+12))
    A.ext(Q.wait(("q", 2)))
    ST.mark()
    A("s_nop 9"); A(".p2align 3")
    def needs(b, k):
        if b > 63: return []
        t = seq[b][0]; t1_, lp1 = seq[min(b+1, 63)]
        if k == 0: return [("x", t1_ >> 1), ("q", lp1)] if b < 63 else []
        if k == 4: return [("k", t1_)] if b < 63 else []
        if k == 3: return [("v", t, 0)]
        if k == 6: return [("v", t, 1)]
        return []
    ismem = lambda x: not (isinstance(x, tuple) or is_salu(x) or x.startswith("v_") or x.endswith(":"))
    for b in range(64):
        t, lp = seq[b]
        cur, nxt = (S0, S1) if b % 2 == 0 else (S1, S0)
        c0 = "0" if t == 0 else None
        mf = {3: mf32(Oreg(lp), Vr(t, 0), P, c0), 6: mf32(Oreg(lp), Vr(t, 1), P+4), 7: mf32(Oreg(lp)+16, Vr(t, 0), P+8, c0)}
        if b: mf[2] = mf32(Oreg(seq[b-1][1])+16, Vr(seq[b-1][0], 1), P+12)
        if b < 63:
            t1_, lp1 = seq[b+1]
            mf[0] = mf2b(nxt, Xr(t1_ >> 1), QX+2*lp1, "0", t1_ & 1); mf[4] = mf32(nxt, Kr(t1_), QM+8*lp1); mf[5] = mf32(nxt+16, Kr(t1_), QM+8*lp1+4)
        q = side[b]; mq = list(mid[b])
        if b in ASTAMPS(): ST.mark()
        for k in range(8):
            if k in mf: A(mf[k])
            n0 = len(A.L)
            if k >= 2:
                tags = needs(b, k+1) if k < 7 else needs(b+1, 0)
                w_ = Q.wait(*tags) if tags else []
                A.ext(w_); A.ext(fix[(b, k)])
                free = not w_ and not fix[(b, k)]; nmem = 0
                left = sum(1 for tg, x in q if ismem(x))
                even = len([j for j in range(k, 8) if j % 2 == 0])
                want = (1 if k % 2 == 0 else 0) if left <= even else -(-left//(8-k))
                while q:
                    tg, x = q[0]
                    if isinstance(x, tuple):
                        if not free and k < 7: break
                        q.pop(0); w_ = Q.wait(x[1]); A.ext(w_); free = free and not w_
                    elif x.endswith(":") or x.startswith("v_"): q.pop(0); A(x); free = False; nmem = 99 if k < 7 else nmem
                    elif is_salu(x):
                        if not free and k < 7 and len(q) <= 2*(7-k): break
                        q.pop(0); A(x); free = False
                    else:
                        if nmem >= want and k < 7: break
                        q.pop(0); A.ext(Q.add(tg, [x])); nmem += 1; free = False
            four = sum(1 for x in A.L[n0:] if isize(x) == 4)
            pk = (k-1) % 8; eb = E + 4*(pk & 1)
            if b or k:
                for j in range(2): A(f"v_cvt_pk_bf16_f32 {v(P+2*pk+j)}, {v(eb+2*j)}, {v(eb+2*j+1)}")
            for j in range(4):
                wide = j == 0 and four % 2 == 1
                A(f"v_exp_f32{'_e64' if wide else ''} {v(E+4*(k&1)+j)}, {v(cur+4*k+j)}")
                if j == 1 and k >= 3 and mq and not any(x == "s_waitcnt lgkmcnt(0)" for _, x in q): A(mq.pop(0))
        assert not q and not mq, (b, q)
    for j in range(2): A(f"v_cvt_pk_bf16_f32 {v(P+14+j)}, {v(E+4+2*j)}, {v(E+5+2*j)}")
    A("s_waitcnt lgkmcnt(0)"); A("s_nop 0")
    A(mf32(O0+16, Vr(15, 1), P+12))
    ST.mark()
    for j in range(2):
        for g in range(3):
            for i in range(4): A(f"v_add_f32 {v(CB[0][3*j+g]+i)}, {v(CB[0][3*j+g]+i)}, {v(CB[1][3*j+g]+i)}") if (j == 0 and g < 2) else None
            if not (j == 0 and g < 2):
                for i in (0, 2): A(f"v_pk_add_f32 {v(CB[0][3*j+g]+i,2)}, {v(CB[0][3*j+g]+i,2)}, {v(CB[1][3*j+g]+i,2)}")
    for sl in (0, 2):
        for j in range(2):
            for g in range(3):
                for i in (0, 2): A(f"v_pk_add_f32 {v(O0+16*j+4*g+i,2)}, {v(O0+16*j+4*g+i,2)}, {v(CB[sl][3*j+g]+i,2)}")
    A(f"{K}_anorm:")
    A(f"v_mov_b32 v12, {v(O0+8)}"); A(f"v_mov_b32 v13, {v(O0+8)}"); A(f"v_mov_b32 v14, {v(O0+24)}"); A(f"v_mov_b32 v15, {v(O0+24)}")
    A(f"s_mov_b32 s36, {hex(f2u(2.0**60))}"); A(f"s_mov_b32 s37, {hex(f2u(2.0**-60))}")
    A("v_permlane32_swap_b32 v12, v13"); A("v_permlane32_swap_b32 v14, v15"); A("s_nop 1")
    A("v_rcp_f32 v12, v13"); A("v_rcp_f32 v14, v15")
    A("v_cmp_nlt_f32_e64 vcc, v13, s36"); A("v_cmp_nlt_f32_e64 s[40:41], v15, s36"); A("v_cmp_ngt_f32_e64 s[42:43], v13, s37"); A("v_cmp_ngt_f32_e64 s[56:57], v15, s37")
    A("s_or_b64 vcc, vcc, s[40:41]"); A("s_or_b64 vcc, vcc, s[42:43]"); A("s_or_b64 vcc, vcc, s[56:57]"); A(f"s_cbranch_scc1 {K}_aslow")
    A(f"{K}_afin:")
    for j in range(2):
        for i in range(0, 12, 2): A(f"v_pk_mul_f32 {v(O0+16*j+i,2)}, {v(O0+16*j+i,2)}, {v(12+2*j,2)} op_sel_hi:[1,0]")
        for i in range(6): A(f"v_cvt_pk_bf16_f32 {v(S0+4*j+i if i < 4 else S0+8+2*j+i-4)}, {v(O0+16*j+2*i)}, {v(O0+16*j+2*i+1)}")
    def stores(fl):
        return ([f"buffer_store_dwordx4 {v(S0+4*j,4)}, {v(ov)}, {S4(SWS)}, s{sob if j == 0 else 39} offen {fl}" for j in range(2)] +
                ["s_mov_b32 exec_hi, 0", f"buffer_store_dwordx4 {v(S0+8,4)}, {v(LV)}, {S4(SWS)}, s63 offen {fl}"])
    A.ext(stores("sc1")); A("s_mov_b64 exec, -1")
    for f in range(CFG["w5z"], CFG["w5a"]): A.ext(w5load(f))
    late_setup(A); A("v_mov_b32 v240, 1")
    A(f"s_waitcnt vmcnt({CFG['w5a']-CFG['w5z']})"); A("s_mov_b64 exec, 1"); A(f"buffer_{'atomic_or' if CFG.get('at2', 1) else 'store_dword'} v10, off, {S4(SWS)}, s38 sc1"); A("s_mov_b64 exec, -1")
    ST.mark()
    def cold():
        A(f"{K}_frspin:"); poll(A, frl, list(range(RLF, RLF+4)), sleep=8); A(f"s_branch {K}_frok")
        NM = S1
        A(f"{K}_aslow:")
        A(f"s_cmp_lg_u32 s{redo}, 0"); A(f"s_cbranch_scc1 {K}_afin")
        A(f"s_mov_b32 s{redo}, 1"); A(f"s_mov_b32 s{sok}, 0"); A(f"s_mov_b32 s{sox}, 0")
        A("v_mov_b32 v12, 0xff800000"); A("v_mov_b32 v13, 0xff800000")
        def scores(e, c):
            A(mf2b(S0, Xr(0), QX, c, e)); A("s_nop 15"); A("s_nop 1")
            A(mf32(S0, Kr(e), QM)); A(mf32(S0+16, Kr(e), QM+4)); A("s_nop 11")
        A(f"{K}_mloop:")
        A.ext(ldx(0) + ldk(0) + ldk(1)); A("s_waitcnt vmcnt(0)")
        for e in range(2):
            scores(e, "0")
            for j in range(2):
                for i in range(0, 16, 2): A(f"v_max3_f32 {v(12+j)}, {v(12+j)}, {v(S0+16*j+i)}, {v(S0+16*j+i+1)}")
        A(f"s_cmp_lt_u32 s{sok}, 163840"); A(f"s_cbranch_scc1 {K}_mloop")
        A("v_mov_b32 v14, v12"); A("v_mov_b32 v15, v13"); A("s_nop 1")
        A("v_permlane32_swap_b32 v12, v14"); A("v_permlane32_swap_b32 v13, v15"); A("s_nop 1")
        A("v_max_f32 v12, v12, v14"); A("v_max_f32 v13, v13, v15")
        for i in range(32): A(f"v_sub_f32 {v(NM+i)}, 0, {v(12+i//16)}"); A(f"v_mov_b32 {v(O0+i)}, 0")
        A(f"s_mov_b32 s{sok}, 0"); A(f"s_mov_b32 s{sox}, 0"); A(f"s_add_u32 s{sov}, s{GB}, {V_OFF}")
        A(f"{K}_sloop:")
        A.ext(ldx(0) + ldk(0) + ldk(1) + ldv(0, 0) + ldv(0, 1) + ldv(1, 0) + ldv(1, 1)); A("s_waitcnt vmcnt(0)")
        for e in range(2):
            scores(e, NM)
            for i in range(32): A(f"v_exp_f32 {v(S0+i)}, {v(S0+i)}")
            A("s_nop 0")
            for i in range(16): A(f"v_cvt_pk_bf16_f32 {v(P+i)}, {v(S0+2*i)}, {v(S0+2*i+1)}")
            A("s_nop 1")
            for j in range(2):
                for sx in range(2): A(mf32(O0+16*j, Vr(e, sx), P+8*j+4*sx))
        A(f"s_cmp_lt_u32 s{sok}, 163840"); A(f"s_cbranch_scc1 {K}_sloop")
        A("s_nop 15")
        A(f"s_branch {K}_anorm")
    return cold

RED = 86016
CSL = 147456
P4_SOW, P4_SOW2, P4_M0, P4_ST = 45, 46, 47, 48
class VQ:
    def __init__(self): self.q = []; self.done = 0
    def add(self, tag, ops):
        self.q += [tag for x in ops if x.startswith(("buffer", "global"))]
        assert len(self.q) - self.done <= 63, "too many outstanding"
        return ops
    def wait(self, *tags):
        idx = [i for i, x in enumerate(self.q) if x in tags]
        last = max(idx) + 1
        if last <= self.done: return []
        self.done = last
        return [f"s_waitcnt vmcnt({len(self.q) - last})"]

def p4_setup(A):
    A(f"s_lshr_b32 s36, s{GI}, 1"); A("s_mul_i32 s36, s36, 7"); A(f"s_min_u32 s{P4_ST}, s36, 101")
    A(f"s_mul_i32 s{P4_M0}, s{W}, 7168"); A(f"s_lshl_b32 s36, s{P4_ST}, 11"); A(f"s_add_u32 s36, s36, s{P4_M0}")
    A(f"s_lshr_b32 s37, s{W}, 1"); A(f"s_mul_i32 s37, s37, {221184-14336}"); A("s_add_u32 s36, s36, s37")
    A(f"s_add_u32 s{P4_SOW}, s36, {WGU_OFF}")
def p4_dma(stage):
    slot = stage % 5
    dw = lambda j: f"buffer_load_dwordx4 {v(LV)}, {S4(SWS)}, s{P4_SOW if j < 4 else P4_SOW2} offen offset:{(j&3)*1024} sc1 lds"
    return ([f"s_add_u32 m0, s{P4_M0}, {slot*28672}", f"s_add_u32 s{P4_SOW2}, s{P4_SOW}, 4096"] + [dw(j) for j in range(4)] +
            [f"s_add_u32 m0, s{P4_M0}, {slot*28672+4096}", f"s_add_u32 s{P4_SOW}, s{P4_SOW}, {2*221184}"] + [dw(j) for j in range(4, 7)])

def skinny_addr(A):
    for i in range(1, 4):
        A(f"s_add_u32 s36, s{W}, {i}"); A("s_and_b32 s36, s36, 3"); A("s_mul_i32 s36, s36, 15360"); A(f"s_add_u32 s36, s36, {RED+(i-1)*5120}"); A(f"v_add_u32 {v(SK_WR+i-1)}, s36, {v(LV)}")
    A(f"s_mul_i32 s36, s{W}, 15360"); A(f"s_add_u32 s36, s36, {RED}"); A(f"v_add_u32 {v(SK_RD)}, s36, {v(LV)}")
    A(f"v_and_b32 v2, 15, {v(LANE)}"); A(f"v_lshrrev_b32 v3, 4, {v(LANE)}")
    A("v_mul_u32_u24 v2, 1280, v2"); A(f"v_lshl_add_u32 {v(SK_RM)}, v3, 4, v2")
    A(f"s_lshl_b32 s49, s{GX}, 2"); A(f"s_and_b32 s36, s{GI}, 3"); A("s_add_u32 s49, s49, s36"); A("s_lshl_b32 s49, s49, 2"); A(f"s_add_u32 s49, s49, s{W}")
    A("s_mul_i32 s50, s49, 20480"); A(f"s_lshr_b32 s36, s{GI}, 3"); A("s_mul_i32 s37, s36, 320"); A("s_add_u32 s51, s50, s37")
    A("s_mul_i32 s37, s36, 5120"); A("s_add_u32 s50, s50, s37"); A(f"s_mul_i32 s37, s{GX}, {GS-327680}"); A("s_add_u32 s50, s50, s37"); A(f"s_add_u32 s50, s50, {H_OFF()}")
    A(f"s_bfe_u32 s36, s{GI}, 0x10002"); A("s_lshl_b32 s37, s36, 3")
    A("s_add_u32 s60, s50, s37"); A("s_add_u32 s60, s60, 2048"); A("s_add_u32 s61, s51, s37"); A("s_add_u32 s61, s61, 128")
    A("s_mul_i32 s37, s36, 3072"); A("s_add_u32 s50, s50, s37"); A("s_mul_i32 s37, s36, 192"); A("s_add_u32 s51, s51, s37")
def io_frag(op, regs, fl):
    return [f"buffer_{op}_dwordx4 {v(regs,4)}, {v(LV)}, {S4(SWS)}, s50 offen {fl}", f"buffer_{op}_dwordx4 {v(regs+4,4)}, {v(LV)}, {S4(SWS)}, s50 offen offset:1024 {fl}",
            f"buffer_{op}_dwordx2 {v(regs+8,2)}, {v(LV)}, {S4(SWS)}, s60 offen {fl}"]
def io_rm(op, regs, S):
    return [f"buffer_{op}_dwordx4 {v(regs,4)}, {v(SK_RM)}, {S4(S)}, s51 offen", f"buffer_{op}_dwordx4 {v(regs+4,4)}, {v(SK_RM)}, {S4(S)}, s51 offen offset:64",
            f"buffer_{op}_dwordx2 {v(regs+8,2)}, {v(SK_RM)}, {S4(S)}, s61 offen"]
def unpack(A, dst, src, n):
    for i in range(n): A(f"v_lshlrev_b32 {v(dst+2*i)}, 16, {v(src+i)}"); A(f"v_and_b32 {v(dst+2*i+1)}, 0xffff0000, {v(src+i)}")
def reduce_tail(A, ACC, rd):
    A("s_waitcnt lgkmcnt(0)"); A("s_barrier")
    for sl in range(3):
        for u in range(5): A(f"ds_read_b128 {v(ACC+20+20*sl+4*u,4)}, {v(rd)} offset:{5120*sl+1024*u}")
    for sl in range(3):
        A(f"s_waitcnt lgkmcnt({10-5*sl})")
        for i in range(0, 20, 2): A(f"v_pk_add_f32 {v(ACC+i,2)}, {v(ACC+i,2)}, {v(ACC+20+20*sl+i,2)}")
def quad_sum(A, regs, tmps):
    for swap in ("v_permlane32_swap_b32", "v_permlane16_swap_b32"):
        for x, t in zip(regs, tmps): A(f"v_mov_b32 {v(t)}, {v(x)}")
        A("s_nop 1")
        for x, t in zip(regs, tmps): A(f"{swap} {v(x)}, {v(t)}")
        A("s_nop 1")
        for x, t in zip(regs, tmps): A(f"v_add_f32 {v(x)}, {v(x)}, {v(t)}")

class TL:
    def __init__(self, A, Q, mf):
        self.A, self.Q, self.mf = A, Q, mf
        self.pre = [[] for _ in mf]; self.post = [[] for _ in mf]; self.valu = [[] for _ in mf]; self.lq = []
    @staticmethod
    def kind(x): return "v" if callable(x) or x.startswith(("buffer", "global")) else "s" if is_salu(x) else "d"
    def cost(self, k): return sum({"v": 8, "d": 4, "s": 0}[self.kind(x)] for t, x in self.post[k]) + 4*len(self.valu[k])
    def has(self, k, c): return any(self.kind(x) == c for t, x in self.post[k])
    def tied(self, k): return k+1 < len(self.mf) and bool(self.pre[k+1])
    def spread(self, items, k0, step, slack=3):
        k = float(k0); last = int(k0)-3; hold = []; n = len(self.mf)
        def salu(h, lo, hi):
            c = [j for j in range(max(lo, 0), hi+1) if not (self.has(j, "s") or self.has(j, "v") or self.tied(j))] or [j for j in range(max(lo, 0), hi+1) if not self.has(j, "v") and self.cost(j) <= 4]
            if c and not self.has(c[0], "s"): self.post[c[0]].insert(0, (None, h)); return c[0]
            j = c[0] if c else max(lo-1, 0)
            self.post[j].append((None, h)); return j
        for t, x in items:
            if is_salu(x): hold.append(x); continue
            kk = min(max(int(k), last), n-1)
            ok = (lambda j: self.cost(j) == 0 and not self.has(j, "s")) if self.kind(x) == "v" else (lambda j: self.cost(j) <= 4 and not self.has(j, "d"))
            if step >= 1:
                lo = max(kk, last+1+len(hold))
                c = [j for j in range(lo, min(lo+slack, n-1)+1) if ok(j)]
                kk = c[0] if c else min(lo, n-1)
                p = last
                for j, h in enumerate(hold): p = max(p, salu(h, p+1, kk-len(hold)+j))
            else:
                for h in hold: self.post[kk].append((None, h))
            hold = []; self.post[kk].append((t, x)); last = kk; k += step
        p = last
        for h in hold: p = max(p, salu(h, min(p+1, n-1), min(p+2, n-1)) if p+1 < n else (self.post[n-1].append((None, h)) or n-1))
        return max(k, p+1)
    def vspread(self, ops, k0, k1, cap=2):
        ops = list(ops); k1 = min(k1, len(self.mf))
        room = [max(0, (4*cap - self.cost(k))//4) for k in range(k0, k1)]
        while sum(room) < len(ops):
            j = min(range(len(room)), key=lambda j: self.cost(k0+j) + 4*room[j]); room[j] += 1
        extra = sum(room) - len(ops)
        while extra:
            j = max(range(len(room)), key=lambda j: (room[j] > 0, self.cost(k0+j) + 4*room[j], j)); room[j] -= 1; extra -= 1
        last = k0
        for j, c in enumerate(room):
            for _ in range(c): self.valu[k0+j].append(ops.pop(0)); last = k0+j
        return last+1
    def emit(self):
        A, Q = self.A, self.Q
        def one(t, x):
            if callable(x): x()
            elif isinstance(x, tuple) and x[0] == "lwait": A(f"s_waitcnt lgkmcnt({min(15, len(self.lq)-1-max(i for i, y in enumerate(self.lq) if y == x[1]))})")
            elif isinstance(x, tuple): A.ext(Q.wait(*x[1:]))
            else:
                if x.startswith("ds_"): self.lq.append(t)
                elif t is not None: Q.add(t, [x])
                A(x)
        for k, m in enumerate(self.mf):
            for x in self.pre[k]: one(None, x)
            A(m)
            if k+1 < len(self.mf):
                nx = self.pre[k+1]
                while nx and ((isinstance(nx[0], str) and nx[0].startswith("s_waitcnt lgkmcnt") and not self.has(k, "d")) or
                              (isinstance(nx[0], tuple) and not any(t in nx[0][1:] for t, x in self.post[k]))):
                    one(None, nx.pop(0))
            for t, x in self.post[k]: one(t, x)
            A.ext(self.valu[k])

W5X = 208
def w5reg(f): return 256+4*f if f < 24 else 256+176+4*(f-24) if f < 28 else 256+96+4*(f-28) if f < 48 else 256+4*f if f < 64 else W5X + 4*(f-64)
def w5load(f):
    ks, u = divmod(f, 5)
    L = [f"buffer_load_dwordx4 {r(w5reg(f),4)}, {v(WV if u < 4 else WV+1)}, {S4(SWS)}, s100 offen offset:{1024*(u&3)} sc1"]
    if u == 4: L.append("s_add_u32 s100, s100, 40960" if ks != 12 else "s_add_u32 s100, s100, s94")
    return L
S_F2P, S_STW, S_F3W, S_F3P, S_STR, S_F4W, S_F4P, S_F3A, S_OH, S_OHH, S_OH1, S_A5 = 64, 65, 66, 67, 68, 69, 70, 71, 28, 29, 30, 72
P4_LA, P4_LB, P4_HV, P4_SV, P4_CA, P4_CB, P4_F3V, L4V, ONEV = 4, 7, 11, 12, 13, 14, 15, 241, 10
def w5_setup(A):
    A(f"s_mul_i32 s36, s{W}, 14"); A(f"s_sub_i32 s37, s{W}, 2"); A("s_max_i32 s37, s37, 0"); A("s_sub_u32 s31, s36, s37")
    A(f"s_lshr_b32 s36, s{GI}, 2"); A("s_mul_i32 s36, s36, 5120"); A("s_mul_i32 s100, s31, 40960"); A("s_add_u32 s100, s100, s36"); A(f"s_add_u32 s100, s100, {WD_OFF}")
    A(f"s_cmp_ge_u32 s{W}, 2"); A(f"s_cselect_b32 s92, {OOB}, 0"); A("s_add_u32 s94, s92, 40960")
def late_setup(A):
    A(f"s_and_b32 s56, s{GI}, 3"); A(f"s_lshl_b32 s37, s{W}, 12"); A(f"s_add_u32 s37, s37, s{GB}")
    A("s_lshl_b32 s39, s56, 14"); A("s_add_u32 s39, s39, s37"); A(f"s_add_u32 s39, s39, {OX_OFF}")
    A("s_lshl_b32 s56, s56, 16"); A("s_add_u32 s56, s56, s37"); A(f"s_add_u32 s56, s56, {O_OFF}")
    A("s_and_b32 s57, s49, 12"); A("s_mul_i32 s57, s57, 55296"); A("s_lshl_b32 s37, s31, 10"); A("s_add_u32 s57, s57, s37"); A(f"s_add_u32 s57, s57, s{GB}"); A(f"s_add_u32 s57, s57, {HH_OFF()}")
    for i in range(4):
        A(f"s_add_u32 s36, s{W}, {i}"); A("s_and_b32 s36, s36, 3"); A("s_lshl_b32 s37, s36, 14"); A(f"s_add_u32 s{40+i}, s56, s37")
        A("s_mul_i32 s37, s36, 55296"); A(f"s_add_u32 s{S_A5+i}, s57, s37")
        A("s_and_b32 s37, s36, 1"); A("s_lshl_b32 s37, s37, 8"); A("s_lshr_b32 s36, s36, 1"); A("s_lshl_b32 s36, s36, 3"); A("s_add_u32 s36, s36, s37"); A(f"s_add_u32 s{52+i}, s39, s36")
    A(f"v_lshrrev_b32 v2, 4, {v(LANE)}"); A(f"v_and_b32 v3, 15, {v(LANE)}"); A(f"v_mul_u32_u24 v252, 768, v2"); A(f"v_add_u32 v252, v252, {v(LV)}")
    A(f"s_lshl_b32 s{S_F2P}, s49, 7"); A(f"s_add_u32 s{S_F2P}, s{S_F2P}, {F2_OFF}")
    A(f"s_lshr_b32 s37, s{GI}, 2"); A("s_lshl_b32 s36, s49, 3"); A("s_add_u32 s36, s36, s37"); A("s_lshl_b32 s36, s36, 7"); A(f"s_add_u32 s{S_STW}, s36, {STAT_OFF}")
    A("s_lshr_b32 s36, s49, 1"); A("s_lshl_b32 s36, s36, 5"); A("s_lshl_b32 s37, s37, 1"); A("s_add_u32 s36, s36, s37"); A("s_and_b32 s37, s49, 1"); A("s_add_u32 s36, s36, s37")
    A("s_lshl_b32 s36, s36, 2"); A(f"s_add_u32 s{S_F3W}, s36, {F3_OFF}")
    A("s_lshr_b32 s36, s49, 2"); A("s_lshl_b32 s36, s36, 8"); A(f"s_add_u32 s{S_F4P}, s36, {F4_OFF}")
    A(f"s_and_b32 s36, s{GI}, 1"); A(f"s_lshl_b32 s37, s{GX}, 1"); A("s_add_u32 s36, s36, s37"); A("s_lshl_b32 s36, s36, 2"); A(f"s_add_u32 s36, s36, s{W}")
    A("s_and_b32 s56, s36, 7"); A(f"s_mul_i32 s{S_OH}, s56, 40960"); A(f"s_add_u32 s{S_OH}, s{S_OH}, s{GB}"); A(f"s_add_u32 s{S_OH}, s{S_OH}, {H_OFF()}")
    A(f"s_lshl_b32 s37, s36, 7"); A(f"s_add_u32 s{S_F3P}, s37, {F3_OFF}")
    A(f"s_lshr_b32 s39, s{GI}, 1"); A("s_lshl_b32 s39, s39, 2"); A("s_add_u32 s37, s37, s39"); A(f"s_add_u32 s{S_F4W}, s37, {F4_OFF}")
    A("s_lshl_b32 s37, s36, 11"); A(f"s_add_u32 s{S_STR}, s37, {STAT_OFF}")
    A(f"s_lshl_b32 s37, s{GX}, 10"); A(f"s_add_u32 s{S_F3A}, s37, {F3_OFF}")
    A(f"s_and_b32 s57, s{P4_ST}, 1")
    A(f"s_mul_i32 s{S_OHH}, s56, 110592"); A(f"s_add_u32 s{S_OHH}, s{S_OHH}, s{GB}"); A(f"s_add_u32 s{S_OHH}, s{S_OHH}, {HH_OFF()}")
    A(f"s_lshr_b32 s37, s{P4_ST}, 1"); A("s_lshl_b32 s37, s37, 10"); A(f"s_add_u32 s{S_OHH}, s{S_OHH}, s37")
    A("s_cmp_eq_u32 s57, 0"); A("s_cselect_b32 s37, 3072, 8"); A(f"s_cselect_b32 s39, {6*2048}, 0"); A(f"s_cselect_b32 s56, {6*128}, 0"); A(f"s_add_u32 s{S_OH1}, s{S_OHH}, s37")
    A("s_lshl_b32 s37, s57, 10"); A(f"s_add_u32 s{S_OHH}, s{S_OHH}, s37"); A("s_lshl_b32 s36, s57, 11")
    A(f"s_cmp_ge_u32 s{GI}, 28"); A(f"s_cselect_b32 s{S_OH1}, {OOB}, s{S_OH1}"); A(f"s_cmp_ge_u32 s{GI}, 30"); A(f"s_cselect_b32 s33, {OOB}, s{S_OHH}")
    for i in range(3):
        A(f"v_add_u32 {v(P4_LA+i)}, s36, {v(LV)}"); A(f"v_add_u32 {v(P4_LB+i)}, s39, {v(LV)}"); A("s_add_u32 s36, s36, 57344"); A("s_add_u32 s39, s39, 57344")
    A(f"v_add_u32 {v(P4_HV)}, 20480, {v(LV)}")
    A(f"v_lshlrev_b32 {v(P4_SV)}, 8, v2"); A(f"v_lshl_add_u32 {v(P4_SV)}, v3, 3, {v(P4_SV)}")
    A("s_lshl_b32 s36, s57, 7"); A(f"s_add_u32 s36, s36, {CSL}"); A(f"v_lshl_add_u32 {v(P4_CA)}, v2, 4, s36")
    A(f"s_add_u32 s56, s56, {CSL}"); A(f"v_lshl_add_u32 {v(P4_CB)}, v2, 4, s56")
    A(f"v_lshrrev_b32 v2, 3, {v(LANE)}"); A(f"v_and_b32 v3, 7, {v(LANE)}"); A("v_lshlrev_b32 v2, 7, v2"); A(f"v_lshl_add_u32 {v(P4_F3V)}, v3, 3, v2")
    srd(A, SA, 86, 2621440)

COLD = []
def mode_store(A, ins):
    alt, back = A.label("wt"), A.label("wb")
    COLD.append([f"{alt}:"] + [x + " sc1" for x in ins] + [f"s_branch {back}"])
    return [f"s_cbranch_vccz {alt}"] + ins + [f"{back}:"]
def set_mode(A): A(f"s_mov_b32 vcc_lo, s{MODE}"); A("s_mov_b32 vcc_hi, 0")
def red_write(ACC, i, u): return f"ds_write_b128 {v(SK_WR+i-1)}, {v(ACC+20*i+4*u,4)} offset:{1024*u}"
def red_read(ACC, sl): return [f"ds_read_b128 {v(ACC+20+20*sl+4*u,4)}, {v(SK_RD)} offset:{5120*sl+1024*u}" for u in range(5)]

def phase3(A, ST):
    ACC, RES, CSP, AF = 16, P3RES, P3CS, 256+96
    A("s_barrier")
    unpack(A, ACC, RES, 10)
    A(f"v_add_f32 {v(CSP)}, {v(CSP)}, {v(CSP+1)}"); A(f"v_add_f32 {v(CSP+2)}, {v(CSP+2)}, {v(CSP+3)}"); A(f"v_add_f32 {v(CSP)}, {v(CSP)}, {v(CSP+2)}")
    A(f"v_add_u32 v146, {CSL}, v146"); A(f"ds_write_b32 v146, {v(CSP)}")
    A("s_mov_b64 exec, 0xff")
    poll(A, apoll(2, L4V, S_F2P, CFG.get("at2", 1)), [2])
    A("s_mov_b64 exec, -1")
    ST.mark()
    Q = VQ()
    order = (1, 2, 3, 0)
    al = lambda i: ([f"buffer_load_dwordx4 {r(AF+20*((i-1)%4)+4*ks,4)}, {v(LV)}, {S4(SWS)}, s{40+i} offen offset:{1024*ks} sc1" for ks in range(4)] +
                    [f"buffer_load_dwordx2 {r(AF+20*((i-1)%4)+16+2*j,2)}, v252, {S4(SWS)}, s{52+i} offen offset:{512*j} sc1" for j in range(2)])
    UP = CFG.get("p3up", 2)
    for i in order[:UP]: A.ext(Q.add(("a", i), al(i)))
    set_mode(A)
    T = TL(A, Q, [mf16(ACC+20*i+4*u, w3reg(5*ks+u), AF+20*((i-1)%4)+4*ks, "0" if (ks == 0 and i) else None) for i in order for u in range(5) for ks in range(5)])
    for n, i in enumerate(order): T.pre[25*n].append(("wait", ("a", i)))
    T.pre[0].append(ST.mark)
    k = T.spread([(("a", i), x) for i in order[UP:] for x in al(i)], 0, CFG.get("p3as", 2))
    k = T.spread([("w5", x) for f in range(CFG["w5a"], min(CFG["w5b"], 28)) for x in w5load(f)], k+1, 4)
    assert CFG["w5b"] <= 38
    AFR = lambda f: 25*((f-28)//5 + 1)
    for f in range(28, CFG["w5b"]): k = T.spread([("w5", x) for x in w5load(f)], max(k, AFR(f)), 4)
    for n in range(3):
        for u in range(5): T.post[25*n+5*u+13].append((None, red_write(ACC, order[n], u)))
    T.pre[66] += ["s_waitcnt lgkmcnt(1)", "s_barrier"]
    T.spread([(None, x) for x in red_read(ACC, 0) + red_read(ACC, 1)], 66, 2)
    T.pre[88] += ["s_waitcnt lgkmcnt(0)", "s_barrier"]
    T.spread([(None, x) for x in red_read(ACC, 2)], 88, 1)
    T.vspread([f"v_add_f32 {v(ACC+20+i)}, {v(ACC+20+i)}, {v(ACC+40+i)}" for i in range(20)], 88, 100)
    T.emit()
    ST.mark()
    A("s_waitcnt lgkmcnt(0)")
    for i in range(0, 20, 2): A(f"v_pk_add_f32 {v(ACC+20+i,2)}, {v(ACC+20+i,2)}, {v(ACC+60+i,2)}")
    for i in range(0, 20, 2): A(f"v_pk_add_f32 {v(ACC+i,2)}, {v(ACC+i,2)}, {v(ACC+20+i,2)}")
    for i in range(10): A(f"v_cvt_pk_bf16_f32 {v(RES+i)}, {v(ACC+2*i)}, {v(ACC+2*i+1)}")
    A.ext(mode_store(A, io_frag("store", RES, "")))
    sm, sq = 112, 114
    A(f"v_pk_mul_f32 {v(sq,2)}, {v(ACC,2)}, {v(ACC,2)}"); A(f"v_pk_add_f32 {v(sm,2)}, {v(ACC,2)}, {v(ACC+2,2)}")
    for i in range(2, 20, 2):
        A(f"v_pk_fma_f32 {v(sq,2)}, {v(ACC+i,2)}, {v(ACC+i,2)}, {v(sq,2)}")
        if i > 2: A(f"v_pk_add_f32 {v(sm,2)}, {v(sm,2)}, {v(ACC+i,2)}")
    A(f"v_add_f32 {v(sm)}, {v(sm)}, {v(sm+1)}"); A(f"v_add_f32 {v(sm+1)}, {v(sq)}, {v(sq+1)}")
    quad_sum(A, [sm, sm+1], [sq, sq+1])
    A("s_mov_b64 exec, 0xffff"); A.ext(mode_store(A, [f"buffer_store_dwordx2 {v(sm,2)}, {v(P4_SV)}, {S4(SWS)}, s{S_STW} offen"])); A("s_mov_b64 exec, -1")

def phase4(A, ST):
    la, lb, hv, sv, ca, cb = P4_LA, P4_LB, P4_HV, P4_SV, P4_CA, P4_CB
    STT, HR, ACC, WB, CR = 232, 16, 96, 208, 224
    NW, HD = 3, 4
    WR = lambda n: (80 + 8*(n % 4)) if n % 4 < 2 else (WB + 8*(n % 4 - 2))
    U = [(s_, m) for s_ in range(8) for m in range(14)] + ([(s_, m) for m in range(14) for s_ in (8, 9)] if CFG.get("p4tail", 1) else [(s_, m) for s_ in (8, 9) for m in range(14)])
    def reads(n):
        s_, m = U[n]; slot = s_ % 5; j, mat = divmod(m, 2)
        base, off = (la, j*2048) if j < 6 else (lb, 0)
        return [f"ds_read_b128 {v(WR(n)+4*ks,4)}, {v(base+slot//2)} offset:{(slot%2)*28672+off+mat*1024+ks*14336}" for ks in range(2)]
    for n in range(NW): A.ext(reads(n))
    A("s_barrier")
    A("s_waitcnt vmcnt(0)")
    A.ext(mode_store(A, [f"buffer_store_dword {v(ONEV)}, off, {S4(SWS)}, s{S_F3W}"]))
    ST.mark()
    A("s_mov_b64 exec, 0xffff")
    poll(A, [f"buffer_load_dword v2, {v(L4V)}, {S4(SWS)}, s{S_F3P} offen sc1"], [2])
    A("s_mov_b64 exec, -1")
    ST.mark()
    Q = VQ()
    def hl(s_): return [f"buffer_load_dwordx4 {v(HR+16*(s_%HD)+8*n+4*ks,4)}, {v(hv if n else LV)}, {S4(SWS)}, s{S_OH} offen offset:{1024*ks} sc1" for n in range(2) for ks in range(2)] + [f"s_add_u32 s{S_OH}, s{S_OH}, 2048"]
    if CFG.get("p4x"): A(f"s_mov_b32 s95, {OOB}")
    UP = CFG.get("p4up", 2)
    for s_ in range(UP): A.ext(Q.add(("h", s_), hl(s_)))
    f3l = [f"buffer_load_dwordx2 v[2:3], {v(P4_F3V)}, {S4(SWS)}, s{S_F3A} offen sc1"]
    stl = [f"buffer_load_dwordx2 {v(STT+4*n+2*c,2)}, {v(sv)}, {S4(SWS)}, s{S_STR} offen offset:{1024*n+128*c} sc1" for n in range(2) for c in range(2)]
    T = TL(A, Q, [mf16(ACC+8*m+4*nn, WR(n)+4*ks, HR+16*(s_ % HD)+8*nn+4*ks, "0" if (s_ == 0 and ks == 0) else None)
                  for n, (s_, m) in enumerate(U) for nn in ((1, 0) if (s_ == 9 and CFG.get("p4tail", 1)) else (0, 1)) for ks in range(2)])
    MS = 6
    lq = [0, 0, 1, 1, 2, 2]; fm = []
    for n in range(140):
        s_, m = U[n]
        need = [i for i, x in enumerate(lq) if x == n or x == ("c", n)]
        T.pre[4*n].append(f"s_waitcnt lgkmcnt({len(lq)-1-max(need)})")
        if m == 0: T.pre[4*n].append(("wait", ("h", s_)))
        if m == 11 and s_ < (8 if CFG.get("p4tail", 1) else 9):
            if s_+1 >= 3: T.pre[4*n].append(("wait", ("w", s_+1 + (s_ == 7 and CFG.get("p4tail", 1)))))
            T.pre[4*n].append("s_barrier")
        e2 = n + 2 - 14*MS
        if 0 <= e2 < 28 and e2 % 2 == 0:
            e = e2//2; mu = (2*e + 6 + (e >= 7)) % 14; j, mat = divmod(mu, 2)
            T.post[4*n].append((None, f"ds_read_b128 {v(CR+4*(e&1),4)}, {v(ca if j < 6 else cb)} offset:{(128*j if j < 6 else 0)+64*mat}")); lq.append(("c", n+2))
            fm.append((4*(n+2), [f"v_fmac_f32 {v(ACC+8*mu+i)}, {v(CR+4*(e&1)+i%4)}, {v(STT+4*(i//4))}" for i in range(8)]))
        if n+NW < 140:
            for j, x in enumerate(reads(n+NW)): T.post[4*n+j+1].append((None, x))
            lq += [n+NW, n+NW]
    T.pre[0].append(ST.mark)
    for s_ in P4ST(): T.pre[56*s_].insert(0, ST.mark)
    w5 = list(range(CFG["w5b"], 64)); LAST = CFG.get("p4last", 9.0)
    base = {s_: [] for s_ in range(10)}
    for s_ in range(UP, 10): base[max(0, s_-HD+1)] += [(("h", s_), x) for x in hl(s_)]
    for s_ in range(3, 10): base[s_-3] += [(("w", s_), x) for x in p4_dma(s_)]
    base[1] += [("st", x) for x in stl]; base[4] += [("f3", x) for x in f3l]
    cnt = lambda L: sum(1 for t, x in L if not is_salu(x)); kk = 0
    for s_ in range(10):
        span = min(1.0, LAST - s_)
        if span > 0:
            later = sum(cnt(base[j]) for j in range(s_, 10)) + len(w5)
            for _ in range(min(len(w5), max(0, math.ceil(later*span/(LAST-s_)) - cnt(base[s_])))): base[s_] += [("w5", x) for x in w5load(w5.pop(0))]
        px = CFG.get("p4x", "")
        if "oob" in px: base[s_] = [(t, _re.sub(r"s\d+ offen", "s95 offen", x) if (t == "w5" or t[0] == "w") else x) for t, x in base[s_]]
        if "drop" in px: base[s_] = [(t, x) for t, x in base[s_] if t != "w5"]
        if base[s_]: kk = T.spread(base[s_], max(56*s_+3, kk+2), (56*span-5)/cnt(base[s_]))
    assert not w5
    for k0, ops in fm: T.vspread(ops, k0, k0+8)
    B = Asm()
    for n in range(2):
        for i in range(2): B(f"v_add_f32 {v(STT+4*n+i)}, {v(STT+4*n+i)}, {v(STT+4*n+2+i)}")
    quad_sum(B, [STT, STT+1, STT+4, STT+5], [STT+2, STT+3, STT+6, STT+7])
    for n in range(2):
        nm, r2 = STT+4*n, STT+4*n+2
        B(f"v_mul_f32 {v(nm)}, {hex(f2u(-1/640))}, {v(nm)}"); B(f"v_mul_f32 {v(r2)}, {hex(f2u(1/640))}, {v(nm+1)}")
        B(f"v_fma_f32 {v(r2)}, -{v(nm)}, {v(nm)}, {v(r2)}"); B(f"v_max_f32 {v(r2)}, 0, {v(r2)}"); B(f"v_add_f32 {v(r2)}, {hex(f2u(1e-5))}, {v(r2)}"); B(f"v_rcp_f32 {v(r2)}, {v(r2)}")
    T.pre[56*4].append(("wait", "st"))
    k = 56*4
    for x in (x.strip() for x in B.L if "s_nop" not in x):
        while T.cost(k) > 4: k += 1
        T.valu[k].append(x); k += 2
    assert k <= 56*6
    T.pre[56*8] += [("wait", "f3"), "v_min_u32 v2, v2, v3", "v_cmp_eq_u32 vcc, 0, v2", "s_nop 1", f"s_cbranch_vccnz {K}_f3spin", f"{K}_f3ok:", lambda: set_mode(A)]
    T.vspread([f"v_add_u32 {v(hv)}, 55296, {v(LV)}"], 56*8+1, 56*8+5)
    COLD.append(lambda: (A(f"{K}_f3spin:"), poll(A, f3l, [2, 3], sleep=4), A(f"s_branch {K}_f3ok")))
    OB = 48
    def strip(j, n, pk):
        r2 = STT+4*n+2; o = OB + 8*((j >> 1) % 2) + 4*n + 2*(j & 1); g, u = ACC+16*j+4*n, ACC+16*j+8+4*n
        if pk: L = [f"v_pk_mul_f32 {v(g+i,2)}, {v(g+i,2)}, {v(r2,2)} op_sel_hi:[1,0]" for i in (0, 2)] + [f"v_pk_mul_f32 {v(g+i,2)}, {v(g+i,2)}, {v(u+i,2)}" for i in (0, 2)]
        else: L = [f"v_mul_f32 {v(g+i)}, {v(g+i)}, {v(r2)}" for i in range(4)] + [f"v_mul_f32 {v(g+i)}, {v(g+i)}, {v(u+i)}" for i in range(4)]
        return L + [f"v_cvt_pk_bf16_f32 {v(o+i)}, {v(g+2*i)}, {v(g+2*i+1)}" for i in range(2)]
    def hst(a_): return [f"buffer_store_dwordx{4 if a_ < 3 else 2} {v(OB+8*(a_%2)+4*n, 4 if a_ < 3 else 2)}, {v(hv if n else LV)}, {S4(SWS)}, s{33 if a_ == 0 else S_OHH if a_ < 3 else S_OH1} offen" + (f" offset:{1024*a_}" if a_ < 3 else "") for n in range(2)]
    NI = CFG.get("p4ni", 6 if CFG.get("p4tail", 1) else 4); k = 0
    for j in range(NI):
        k0 = max(k, (56*8 + 16*(j+1) + 3) if CFG.get("p4tail", 1) else (56*9 + 8*(j+1) + 5))
        a0, a1 = strip(j, 1, False), strip(j, 0, False)
        k = T.vspread(a0[:4] + a1[:4] + a0[4:] + a1[4:], k0, min(k0+12, 560), cap=CFG.get("p4cap", 2))
        if j & 1 and k < 560:
            st_ = hst(j >> 1); T.post[k].append((None, (lambda st_=st_: (A.ext(mode_store(A, st_)), Q.add("hh", st_)))))
    stored = [j >> 1 for j in range(NI) if j & 1]
    if NI and NI % 2 == 0 and k >= 560: stored.pop()
    T.emit()
    ST.mark()
    for a_ in range(4):
        for j in ([2*a_, 2*a_+1] if a_ < 3 else [6]):
            if j >= NI:
                a0, a1 = strip(j, 1, True), strip(j, 0, True)
                A.ext(a0[:2] + a1[:2] + (["s_nop 1"] if j == NI else []) + a0[2:] + a1[2:])
        if a_ not in stored: A.ext(mode_store(A, hst(a_))); Q.add("hh", hst(a_))
    for f in range(64, 70): A.ext(Q.add("w5", w5load(f)))
    return Q

def phase5(A, ST, Q):
    ACC, AF, RES = 16, 96, 232
    A.ext(Q.add("res", io_frag("load", 4, "sc1")))
    A(f"v_add_u32 v14, s92, {v(LV)}")
    A(f"v_lshrrev_b32 v15, 4, {v(LANE)}"); A(f"v_mul_u32_u24 v15, 64, v15"); A(f"v_add_u32 v15, v15, {v(L4V)}")
    A("s_barrier")
    A.ext(Q.wait("hh"))
    A.ext(mode_store(A, [f"buffer_store_dword v240, off, {S4(SWS)}, s{S_F4W}"]))
    ST.mark()
    A("s_waitcnt vmcnt(1)"); unpack(A, ACC, 4, 10)
    A("s_mov_b32 exec_hi, 0")
    poll(A, [f"buffer_load_dword v2, v15, {S4(SWS)}, s{S_F4P} offen sc1"], [2])
    A("s_mov_b64 exec, -1")
    ST.mark()
    Q = VQ()
    order = (1, 2, 3, 0)
    def al(n, ks):
        i = order[n]
        L = [f"buffer_load_dwordx4 {v(AF+56*(n&1)+4*ks,4)}, {v(14 if ks == 13 else LV)}, {S4(SWS)}, s{S_A5+i} offen offset:{1024*(ks&3)} sc1"]
        if ks & 3 == 3: L.append(f"s_add_u32 s{S_A5+i}, s{S_A5+i}, 4096")
        return L
    UP = CFG.get("p5up", 8); STEP = CFG.get("p5st", 4)
    for ks in range(UP): A.ext(Q.add((0, ks), al(0, ks)))
    T = TL(A, Q, [mf16(ACC+20*i+4*u, w5reg(5*ks+u), AF+56*(n&1)+4*ks, "0" if (ks == 0 and i) else None)
                  for n, i in enumerate(order) for kp in range(7) for u in range(5) for ks in (2*kp, 2*kp+1)])
    k = 0
    for g in range(UP, 56):
        n, ks = divmod(g, 14)
        if n >= 2: k = max(k, 70*(n-2) + 10*(ks//2+1) - 1)
        assert k < 70*n + 10*(ks//2)
        k = T.spread([((n, ks), x) for x in al(n, ks)], k, STEP)
    for n in range(4):
        for kp in range(7): T.pre[70*n+10*kp].append(("wait", (n, 2*kp+1)))
    T.pre[0].append(ST.mark)
    for n in range(3):
        for u in range(5): T.post[70*(n+1)+2+5*u].append((None, red_write(ACC, order[n], u)))
    if "wb" in CFG:
        def wb():
            lab = A.label("nowb"); A(f"s_or_b32 s36, s{W}, s{GI}"); A(f"s_cbranch_scc1 {lab}"); A("buffer_wbl2 sc1"); A(f"{lab}:")
        T.pre[CFG["wb"]].append(wb)
    T.pre[237] += ["s_waitcnt lgkmcnt(0)", "s_barrier"]
    T.spread([(None, x) for sl in range(3) for x in red_read(ACC, sl)], 237, 1)
    T.pre[254].append("s_waitcnt lgkmcnt(5)"); T.vspread([f"v_add_f32 {v(ACC+20+i)}, {v(ACC+20+i)}, {v(ACC+40+i)}" for i in range(20)], 254, 266)
    T.pre[266].append("s_waitcnt lgkmcnt(0)"); T.vspread([f"v_add_f32 {v(ACC+20+i)}, {v(ACC+20+i)}, {v(ACC+60+i)}" for i in range(20)], 266, 280)
    T.emit()
    ST.mark()
    A("s_nop 1")
    for i in range(0, 20, 2): A(f"v_pk_add_f32 {v(ACC+i,2)}, {v(ACC+i,2)}, {v(ACC+20+i,2)}")
    for i in range(10): A(f"v_cvt_pk_bf16_f32 {v(RES+i)}, {v(ACC+2*i)}, {v(ACC+2*i+1)}")
    A.ext([x + " " + CFG.get("ost", "") for x in io_rm("store", RES, SA)])

def build(**cfg):
    CFG.update(cfg)
    A = Asm(); ST = Stamps(A)
    kstart(A, K)
    if CFG.get("empty"): A("s_endpgm")
    ST.mark()
    if CFG.get("probe"):
        off, base = {"bx": (24, 0), "ws": (72, 40 << 20), "out": (56, 0), "wd": (48, 0)}[CFG["probe"]]
        A(f"s_load_dwordx2 s[4:5], s[0:1], {off}"); A("s_waitcnt lgkmcnt(0)"); A(f"s_mov_b32 s6, {base + (2<<20)}"); A("s_mov_b32 s7, 0x20000")
        A("s_and_b32 s8, s2, 255"); A("s_lshl_b32 s8, s8, 9"); A(f"s_add_u32 s8, s8, {base}"); A("v_lshrrev_b32 v2, 6, v0"); A("v_lshlrev_b32 v2, 7, v2")
        for i in range(16):
            A("buffer_load_dword v3, v2, s[4:7], s8 offen"); A("s_waitcnt vmcnt(0)"); A("s_add_u32 s8, s8, 131072")
    COLD.clear(); phase1(A, ST)
    cold = phase2(A, ST)
    phase3(A, ST); phase5(A, ST, phase4(A, ST))
    ST.flush()
    A("s_endpgm")
    cold()
    for c in COLD: c() if callable(c) else A.ext(c)
    A(f"{K}_end:")
    A("s_endpgm")
    kdesc(A, K, 512, acc=256)
    head = open(f"cdna_kernels/{NAME}.s.ref").read().split("; Override launch")[0]
    head += "; @launch grid=(256,1,1) block=(256,1,1) lds=163840\n"
    return head + '.amdgcn_target "amdgcn-amd-amdhsa--gfx950"\n' + A.text()

if __name__ == "__main__":
    out = sys.argv[1] if len(sys.argv) > 1 else f"cdna_kernels/{NAME}.s"
    cfg = {}
    for x in sys.argv[2:]:
        k, val = x.split("=")
        cfg[k] = int(val) if val.lstrip("-").isdigit() else float(val) if val.replace(".", "", 1).isdigit() else val
    txt = build(**cfg)
    names = STAMP_NAMES[:3] + [f"p1 kstep {g}" for g in P1ST()] + STAMP_NAMES[3:8] + [f"att body {b}" for b in ASTAMPS()] + STAMP_NAMES[8:16] + [f"p4 stage {b}" for b in P4ST()] + STAMP_NAMES[16:]
    if CFG["stamps"]: txt = txt.replace(".amdgcn_target", "; STAMPS " + "|".join(names) + "\n.amdgcn_target", 1)
    open(out, "w").write(txt)
```

```python
import sys, math, struct, re as _re
from dsl import *

NAME = "sequential_preLN__softmax_full_mha__glu_gated_bilinear__prompt"
K = NAME + "_kernel"
GS = 1310720
K_OFF, V_OFF, O_OFF = 327680, 655360, 983040
OX_OFF = O_OFF + 262144
def H_OFF(): return 8*GS if CFG.get("sep") else 0
def HH_OFF(): return H_OFF() + 327680
WGU_OFF = 20971520
WD_OFF = WGU_OFF + 4423680
WO_OFF = WD_OFF + 2211840
CS_OFF = WO_OFF + 819200
STAT_OFF = CS_OFF + 65536
RS_OFF = STAT_OFF + 131072
C1_OFF = RS_OFF + 16384
F2_OFF = C1_OFF + 8192
F3_OFF = F2_OFF + 128*128
F4_OFF = F3_OFF + 64*128
FR_OFF = F4_OFF + 64*128
F1_OFF = FR_OFF + 256*128
HF_OFF = F1_OFF + 384*128
ONES_OFF = HF_OFF + 64*128
STAMP_OFF = 29360128
WS_SIZE = 33554432
OOB = 0x40000000
SPIN = 200000
assert ONES_OFF + 128*2560 < STAMP_OFF and STAT_OFF % 128 == 0
def f2u(x): return struct.unpack("<I", struct.pack("<f", x))[0]
QSCALE = f2u(20**-0.5 * math.log2(math.e))
assert all((u*(65536//54+1)) >> 16 == u//54 for u in range(162)) and all((u*6554) >> 16 == u//10 for u in range(100))
assert all((f*3277) >> 16 == f//20 for f in range(640))
assert all((e*3277) >> 16 == e//20 for e in range(320))
CFG = dict(stamps=False, w5z=16, w5a=16, w5b=36, p4last=9.6, ht=0, ht1=0, b0=3, rsp=1, b1=12, rss=3, pfe=57, wb=200, touch="48:s,52:h", p4t="", at1=0, f1b=1, fpos=1)
STAMP_NAMES = ["start", "p1 first dma issued", "p1 stage0 landed", "p1 loop end", "p1 stores issued", "p1 flag set", "F1 seen", "att loop start", "att loop end",
               "O published", "F2 seen", "p3 first act", "p3 mfma end", "H published", "F3 seen", "p4 first h", "p4 loop end", "HH published", "F4 seen", "p5 first act", "p5 mfma end", "end"]

W, SWS, SX, SA, SR = 3, 4, 8, 12, 16
GX, GI, MODE, MYF, GB = 24, 25, 26, 27, 23
LANE, LV = 1, 253
PCV = 247
CODE_TOUCH = f"global_load_dword v248, v{PCV}, s[20:21] sc1"
def S4(b): return f"s[{b}:{b+3}]"

def ASTAMPS(): return [int(x) for x in str(CFG.get("astamp", "")).split(",") if x]
def P1ST(): return [int(x) for x in str(CFG.get("p1st", "")).split(",") if x]
def P4ST(): return [int(x) for x in str(CFG.get("p4st", "")).split(",") if x]
class Stamps:
    def __init__(self, A): self.A, self.n = A, 0
    def mark(self, at=None):
        A = self.A; i = self.n if at is None else at
        if CFG.get("pad"):
            pi, pt = map(int, CFG["pad"].split(":"))
            if i == 0: A("s_memrealtime s[96:97]")
            if i == pi:
                lab = A.label("pad")
                if "padwg" in CFG: A(f"s_cmp_lg_u32 s2, {CFG['padwg']}"); A(f"s_cbranch_scc1 {lab}x")
                A("s_waitcnt lgkmcnt(0)"); A(f"s_add_u32 s95, s96, {pt*100}"); A(f"{lab}:"); A("s_memrealtime s[98:99]"); A("s_waitcnt lgkmcnt(0)")
                A("s_sub_u32 s98, s98, s95"); A("s_cmp_lt_i32 s98, 0"); A(f"s_cbranch_scc1 {lab}"); A(f"{lab}x:")
            if at is None: self.n += 1
            return
        if not CFG["stamps"]: return
        if i:
            A("s_waitcnt lgkmcnt(0)"); A(f"v_writelane_b32 v254, s96, {i-1}"); A(f"v_writelane_b32 v255, s98, {i-1}")
        A("s_memrealtime s[96:97]"); A("s_memtime s[98:99]")
        if at is None: self.n += 1
    def flush(self):
        if CFG.get("pad"): self.A("s_waitcnt vmcnt(0)"); self.mark(); return
        if not CFG["stamps"]: return
        A = self.A
        A("s_waitcnt vmcnt(0)"); self.mark(); self.mark(); n = self.n - 1
        A(f"v_writelane_b32 v254, s{MODE}, 30"); A(f"v_writelane_b32 v254, s{MYF}, 31")
        A(f"s_lshl_b32 s95, s2, 2"); A(f"s_add_u32 s95, s95, s{W}"); A("s_lshl_b32 s95, s95, 8"); A(f"s_add_u32 s95, s95, {STAMP_OFF}")
        A("s_mov_b64 exec, -1"); A(f"v_lshlrev_b32 v0, 2, {v(LANE)}"); A(f"s_mov_b32 exec_lo, {(1 << n) - 1 + (3 << 30)}"); A("s_mov_b32 exec_hi, 0")
        A(f"buffer_store_dword v254, v0, {S4(SWS)}, s95 offen"); A(f"buffer_store_dword v255, v0, {S4(SWS)}, s95 offen offset:128")

def swap01(A, dst, src, t):
    A(f"v_and_b32 {v(t)}, 1, {v(src)}"); A(f"v_lshlrev_b32 {v(t)}, 1, {v(t)}")
    A(f"v_bfe_u32 {v(dst)}, {v(src)}, 1, 1"); A(f"v_or_b32 {v(t)}, {v(t)}, {v(dst)}")
    A(f"v_and_b32 {v(dst)}, 4, {v(src)}"); A(f"v_or_b32 {v(dst)}, {v(dst)}, {v(t)}")

def make_sel(A, sel, t):
    A(f"v_lshrrev_b32 {v(t)}, 2, {v(LANE)}"); A(f"v_lshrrev_b32 {v(sel)}, 4, {v(LANE)}")
    A(f"v_xor_b32 {v(t)}, {v(t)}, {v(sel)}"); A(f"v_and_b32 {v(t)}, 1, {v(t)}")
    A(f"v_add_u32 {v(t)}, -1, {v(t)}")
    A(f"v_and_b32 {v(sel)}, 0x3f803f80, {v(t)}")
    for i in range(1, 4): A(f"v_mov_b32 {v(sel+i)}, {v(sel)}")

def poll(A, loads, regs, sleep=0, cnt=58, post=()):
    top, out = A.label("poll"), A.label("pollout")
    A(f"s_mov_b32 s{cnt}, {SPIN}")
    A(f"{top}:")
    A.ext(loads); A("s_waitcnt vmcnt(0)"); A.ext(post)
    for x in regs[1:]: A(f"v_min_u32 {v(regs[0])}, {v(regs[0])}, {v(x)}")
    A(f"v_cmp_eq_u32 vcc, 0, {v(regs[0])}")
    A(f"s_sub_u32 s{cnt}, s{cnt}, 1"); A(f"s_cbranch_scc1 {out}")
    if sleep:
        A(f"s_cbranch_vccz {out}"); A(f"s_sleep {sleep}"); A(f"s_branch {top}")
    else: A(f"s_cbranch_vccnz {top}")
    A(f"{out}:")

def apoll(d, va, so, atomic):
    if atomic: return [f"v_mov_b32 {v(d)}, 0", f"buffer_atomic_or {v(d)}, {v(va)}, {S4(SWS)}, s{so} offen sc0 sc1"]
    return [f"buffer_load_dword {v(d)}, {v(va)}, {S4(SWS)}, s{so} offen sc1"]
def publish(A, stores, mid, flag, local=True):
    if not local:
        A.ext(stores("sc1")); A.ext(mid); A.ext(flag("sc1")); return
    slow, done = A.label("st_slow"), A.label("st_done")
    A(f"s_cmp_eq_u32 s{MODE}, 0"); A(f"s_cbranch_scc1 {slow}")
    A.ext(stores("")); A.ext(mid); A.ext(flag("")); A(f"s_branch {done}")
    A(f"{slow}:")
    A.ext(stores("sc1")); A.ext(mid); A.ext(flag("sc1"))
    A(f"{done}:")

RSO, RA, RBA, RDS, RDH, RDAH, RCS, RLDS = 64, 65, 66, 67, 68, 69, 70, 71
RLV, RLT, RLC, RLO, RLF = 201, 202, 204, 212, 216
STG = 86016
def relayout_setup(A):
    t0, t1 = 2, 3
    two, none, done = A.label("rl2"), A.label("rl0"), A.label("rl_set")
    A(f"s_mul_i32 s{RLDS}, s{W}, 10240"); A(f"s_add_u32 s{RLDS}, s{RLDS}, {STG}")
    A(f"v_lshrrev_b32 {v(t0)}, 4, {v(LANE)}"); A(f"v_bfe_u32 {v(t1)}, {v(LANE)}, 2, 2"); A(f"v_lshl_add_u32 {v(t0)}, {v(t0)}, 3, {v(t1)}")
    A(f"v_and_b32 {v(t1)}, 3, {v(LANE)}"); A(f"v_lshlrev_b32 {v(t1)}, 4, {v(t1)}")
    A(f"v_lshl_add_u32 {v(t0)}, {v(t0)}, 6, {v(t1)}"); A(f"v_add_u32 {v(RLT)}, s{RLDS}, {v(t0)}")
    A(f"v_and_b32 {v(RLT+1)}, 15, {v(LANE)}"); A(f"v_lshlrev_b32 {v(RLT+1)}, 2, {v(RLT+1)}")
    for i in range(4): A(f"v_mov_b32 {v(RLO+i)}, 0x3f803f80")
    A(f"v_lshrrev_b32 {v(t0)}, 2, {v(LANE)}")
    A(f"s_mov_b32 s{RCS}, {OOB}"); A(f"s_mov_b32 s{SR+3}, 0x20000")
    A("s_cmp_ge_u32 s2, 108"); A(f"s_cbranch_scc1 {two}")
    A(f"s_bitcmp1_b32 s{W}, 0"); A(f"s_cselect_b64 s[{SR}:{SR+1}], s[82:83], s[80:81]"); A(f"s_mov_b32 s{SR+2}, 2211840")
    A(f"s_mul_i32 s37, s2, {(65536+26)//27}"); A("s_lshr_b32 s37, s37, 16")
    A("s_mul_i32 s38, s37, 27"); A("s_sub_u32 s38, s2, s38"); A("s_lshl_b32 s38, s38, 1"); A(f"s_lshr_b32 s39, s{W}, 1"); A("s_add_u32 s38, s38, s39")
    A(f"s_mul_i32 s{RSO}, s37, {160*3456}"); A("s_lshl_b32 s39, s38, 6"); A(f"s_add_u32 s{RSO}, s{RSO}, s39")
    A(f"s_mov_b32 s{RA}, {16*3456}"); A(f"s_mov_b32 s{RBA}, {16*3456}"); A(f"s_mov_b32 s{RDH}, 2048"); A(f"s_mov_b32 s{RDAH}, {221184-2048}")
    A(f"s_and_b32 s39, s{W}, 1"); A("s_lshl_b32 s38, s38, 2"); A("s_add_u32 s38, s38, s39")
    A(f"s_mul_i32 s{RDS}, s37, {5*221184}"); A("s_lshl_b32 s39, s38, 10"); A(f"s_add_u32 s{RDS}, s{RDS}, s39"); A(f"s_add_u32 s{RDS}, s{RDS}, {WGU_OFF}")
    A(f"s_mul_i32 s{RCS}, s37, {108*128}"); A("s_lshl_b32 s39, s38, 6"); A(f"s_add_u32 s{RCS}, s{RCS}, s39"); A(f"s_add_u32 s{RCS}, s{RCS}, {CS_OFF}")
    A(f"v_mul_u32_u24 {v(t0)}, 3456, {v(t0)}")
    A(f"s_branch {done}")
    A(f"{two}:")
    A("s_sub_u32 s37, s2, 108"); A(f"s_mov_b32 s{RDH}, 1024"); A(f"s_mov_b32 s{RDAH}, 1024")
    A(f"s_mul_i32 s{RDS}, s37, 40960"); A(f"s_mul_i32 s39, s{W}, 10240"); A(f"s_add_u32 s{RDS}, s{RDS}, s39"); A(f"s_add_u32 s{RDS}, s{RDS}, {WD_OFF}")
    A(f"s_mov_b64 s[{SR}:{SR+1}], s[84:85]"); A(f"s_mov_b32 s{SR+2}, 2211840"); A(f"s_lshl_b32 s{RSO}, s37, 5"); A(f"s_mov_b32 s{RA}, 16")
    A("s_cmp_lt_u32 s37, 54"); A(f"s_cbranch_scc1 {none}")
    A(f"s_mov_b64 s[{SR}:{SR+1}], s[88:89]"); A("s_cmp_lt_u32 s37, 74"); A(f"s_cselect_b32 s{RDS}, s{RDS}, {OOB}"); A(f"s_cselect_b32 s{SR+2}, 819200, 0")
    A("s_sub_u32 s37, s37, 54"); A(f"s_mul_i32 s{RSO}, s37, 40"); A("s_mul_i32 s39, s37, 160"); A(f"s_sub_u32 s39, s39, {16*160-16}")
    A("s_cmp_ge_u32 s37, 16"); A(f"s_cselect_b32 s{RSO}, s39, s{RSO}"); A(f"s_cselect_b32 s{RA}, 80, 20"); A("s_cselect_b32 s38, 16, 0")
    A(f"v_lshrrev_b32 v4, 4, {v(LANE)}"); A(f"v_mad_u32_u24 {v(t0)}, v4, s38, {v(t0)}")
    A(f"{none}:")
    A(f"s_mul_i32 s{RSO}, s{RSO}, 1280"); A(f"s_mul_i32 s39, s{W}, 320"); A(f"s_add_u32 s{RSO}, s{RSO}, s39"); A(f"s_mul_i32 s{RA}, s{RA}, 1280"); A(f"s_sub_u32 s{RBA}, 64, s{RA}")
    A(f"v_mul_u32_u24 {v(t0)}, 1280, {v(t0)}")
    A(f"{done}:")
    A(f"v_add_u32 {v(RLV)}, {v(t0)}, {v(t1)}")
def rl_dma(i):
    return [f"s_add_u32 m0, s{RLDS}, {i*1024}", f"s_add_u32 s{RSO}, s{RSO}, {'0' if i == 0 else 's%d' % (RA if i & 1 else RBA)}",
            f"buffer_load_dwordx4 {v(RLV)}, {S4(SR)}, s{RSO} offen lds"]
def rl_read(a_, hf): return [f"ds_read_b64_tr_b16 {v(RLF+8*(a_&1)+4*hf+2*q,2)}, {v(RLT)} offset:{2048*a_+256*q+8*hf}" for q in range(2)]
def rl_sum(a_, hf): return mf16(RLC+4*hf, RLO, RLF+8*(a_&1)+4*hf, "0" if a_ == 0 else None)
def rl_store(a_, hf): return [f"buffer_store_dwordx4 {v(RLF+8*(a_&1)+4*hf,4)}, {v(LV)}, {S4(SWS)}, s{RDS} offen sc1", f"s_add_u32 s{RDS}, s{RDS}, s{RDAH if hf else RDH}"]
def rl_cs(hf): return [f"buffer_store_dword {v(RLC+4*hf)}, {v(RLT+1)}, {S4(SWS)}, s{RCS} offen offset:{128*hf} sc1"]


TV = 249
SD = 52
def phase1(A, ST):
    rt, ct, wm, wn = 28, 30, 56, 57
    sox, sow, m0x, m0w, sst, srs = 29, 91, 32, 35, 80, 84
    srr, sqs, sc1_ = 85, 88, 89
    t0, t1, t2, t3, nn, qq = 2, 3, 4, 5, 6, 7
    dmx, dmw, xa, wa, sa, rv, cv = 12, 16, 22, 24, 26, 30, 31
    CS, ACC, RS, OB = 32, 56, 148, 180
    FR = 256
    SL = 36864
    A("s_cmp_ge_u32 s2, 256"); A(f"s_cbranch_scc1 {K}_end")
    A("s_load_dwordx4 s[36:39], s[0:1], 0"); A("s_load_dwordx4 s[52:55], s[0:1], 64"); A("s_load_dwordx8 s[80:87], s[0:1], 32"); A("s_load_dwordx2 s[88:89], s[0:1], 16")
    A(f"v_lshrrev_b32 {v(t0)}, 6, v0"); A(f"v_and_b32 {v(LANE)}, 63, v0")
    A(f"v_readfirstlane_b32 s{W}, {v(t0)}")
    A(f"s_and_b32 s{GX}, s2, 7"); A(f"s_lshr_b32 s{GI}, s2, 3")
    A("s_getpc_b64 s[20:21]"); A(f"{K}_pc:")
    A(f"s_lshl_b32 s58, s{GI}, 2"); A(f"s_add_u32 s58, s58, s{W}"); A("s_lshl_b32 s58, s58, 7")
    A(f"v_and_b32 {v(PCV)}, 7, {v(LANE)}"); A(f"v_lshlrev_b32 {v(PCV)}, 14, {v(PCV)}"); A(f"v_add_u32 {v(PCV)}, s58, {v(PCV)}")
    A(f"v_min_u32 {v(PCV)}, {K}_end-{K}_pc, {v(PCV)}")
    A(CODE_TOUCH)
    A(f"v_lshrrev_b32 {v(qq)}, 4, {v(LANE)}"); A(f"v_and_b32 {v(nn)}, 15, {v(LANE)}")
    A("s_cmp_ge_u32 s2, 192"); A(f"s_cbranch_scc1 {K}_help")
    def tile_ids():
        A(f"s_lshr_b32 s56, s{GX}, 2"); A(f"s_mul_i32 s{ct}, s56, 6"); A(f"s_lshr_b32 s57, s{GI}, 2"); A(f"s_add_u32 s{ct}, s{ct}, s57")
        A(f"s_and_b32 s57, s{GI}, 3"); A(f"s_and_b32 s56, s{GX}, 3"); A("s_lshl_b32 s56, s56, 2"); A(f"s_add_u32 s{rt}, s56, s57")
    tile_ids()
    A(f"v_and_b32 {v(t1)}, 7, {v(LANE)}"); A(f"v_xor_b32 {v(t1)}, {v(t1)}, {v(qq)}"); A(f"v_lshlrev_b32 {v(t1)}, 4, {v(t1)}")
    A(f"v_lshrrev_b32 {v(t2)}, 3, {v(LANE)}"); A(f"v_mul_u32_u24 {v(t2)}, 1280, {v(t2)}")
    A(f"v_add_u32 {v(dmx)}, {v(t1)}, {v(t2)}")
    A(f"v_xor_b32 {v(t1)}, 64, {v(t1)}"); A(f"v_add_u32 {v(t1)}, {v(t1)}, {v(t2)}"); A(f"v_add_u32 {v(dmx+1)}, 9216, {v(t1)}")
    A(f"v_add_u32 {v(dmx+2)}, {2*9216}, {v(dmx)}"); A(f"v_add_u32 {v(dmx+3)}, {2*9216}, {v(dmx+1)}")
    for i in range(5):
        A(f"v_add_u32 {v(t0)}, {64*i}, {v(LANE)}"); A(f"v_mul_u32_u24 {v(t1)}, 3277, {v(t0)}"); A(f"v_lshrrev_b32 {v(t1)}, 16, {v(t1)}")
        A(f"v_mul_u32_u24 {v(t2)}, 20, {v(t1)}"); A(f"v_sub_u32 {v(t0)}, {v(t0)}, {v(t2)}")
        if i == 2: A(f"v_lshrrev_b32 {v(t2)}, 2, {v(t1)}"); A(f"v_and_b32 {v(t2)}, 2, {v(t2)}"); A(f"v_xor_b32 {v(t0)}, {v(t0)}, {v(t2)}")
        elif i > 2: A(f"v_xor_b32 {v(t0)}, 2, {v(t0)}")
        A(f"v_mul_u32_u24 {v(t1)}, 3840, {v(t1)}"); A(f"v_lshl_add_u32 {v(dmw+i)}, {v(t0)}, 4, {v(t1)}")
        if i & 3: A(f"v_subrev_u32 {v(dmw+i)}, {1024*i}, {v(dmw+i)}")
    A(f"s_lshl_b32 s56, s{rt}, 2"); A(f"s_add_u32 s56, s56, s{W}"); A(f"s_mul_i32 s{sox}, s56, {32*1280}")
    A(f"s_mul_i32 s{sow}, s{W}, {16*3840}"); A(f"s_mul_i32 s57, s{ct}, 320"); A(f"s_add_u32 s{sow}, s{sow}, s57")
    A(f"s_lshl_b32 s{m0x}, s{W}, 12"); A(f"s_mul_i32 s{m0w}, s{W}, 5120")
    A("s_waitcnt lgkmcnt(0)")
    srd(A, SX, 36, 2621440); srd(A, SA, 38, 2457600)
    def dma(stage):
        o = (stage % 4)*SL
        dx = lambda b: f"buffer_load_dwordx4 {v(dmx+b)}, {S4(SX)}, s{sox} offen offset:{b*1024} lds"
        dw = lambda b: f"buffer_load_dwordx4 {v(dmw+b)}, {S4(SA)}, s{sow} offen offset:{(b&3)*1024} lds"
        return ([f"s_add_u32 m0, s{m0x}, {o}", f"s_add_u32 s{sow}, s{sow}, {64*3840 if stage else 0}"] + [dx(b) for b in range(4)] +
                [f"s_add_u32 m0, s{m0w}, {o+16384}", f"s_add_u32 s{sox}, s{sox}, 128"] + [dw(b) for b in range(4)] + [f"s_add_u32 m0, s{m0w}, {o+20480}", "s_nop 0", dw(4)])
    A.ext(dma(0))
    def common():
        srd(A, SWS, 54, WS_SIZE)
        A(f"s_mov_b32 s{SD+2}, 256"); A(f"s_mov_b32 s{SD+3}, 0x20000")
        A(f"v_lshlrev_b32 {v(TV)}, 7, {v(LANE)}"); A(f"v_lshlrev_b32 {v(LV)}, 4, {v(LANE)}"); A(f"v_lshlrev_b32 {v(L4V)}, 2, {v(LANE)}")
        A(f"v_add_u32 v54, {HF_OFF}, {v(TV)}")
        A(f"s_mul_i32 s{GB}, s{GX}, {GS}"); A(f"s_cmp_eq_u32 s{W}, 0"); A(f"s_cselect_b32 s22, 0, {OOB}")
        A(f"s_getreg_b32 s{MYF}, hwreg(HW_REG_XCC_ID, 0, 4)"); A(f"s_add_u32 s{MYF}, s{MYF}, 1")
    common()
    ST.mark()
    ES = CFG.get("es", 0)
    if ES: att_setup(A); tile_ids()
    else: sst, srs, srr, sqs, sc1_ = 46, 59, 43, 42, 44
    A(f"s_and_b32 s{wm}, s{W}, 1"); A(f"s_lshr_b32 s{wn}, s{W}, 1")
    nn, qq = 52, 53
    A(f"v_lshrrev_b32 {v(qq)}, 4, {v(LANE)}"); A(f"v_and_b32 {v(nn)}, 15, {v(LANE)}")
    A(f"v_lshrrev_b32 {v(t0)}, 1, {v(nn)}"); A(f"v_xor_b32 {v(t0)}, {v(t0)}, {v(qq)}"); A(f"v_lshlrev_b32 {v(t0)}, 4, {v(t0)}")
    A(f"v_lshl_add_u32 {v(t0)}, {v(nn)}, 7, {v(t0)}"); A(f"s_lshl_b32 s58, s{wm}, 13"); A(f"v_add_u32 {v(xa)}, s58, {v(t0)}"); A(f"v_xor_b32 {v(xa+1)}, 64, {v(xa)}")
    A(f"v_lshrrev_b32 {v(t0)}, 2, {v(nn)}"); A(f"v_lshl_add_u32 {v(t1)}, {v(qq)}, 3, {v(t0)}"); A(f"v_mul_u32_u24 {v(t1)}, 320, {v(t1)}")
    A(f"v_and_b32 {v(t0)}, 3, {v(nn)}"); A(f"v_lshl_add_u32 {v(t1)}, {v(t0)}, 3, {v(t1)}"); A(f"s_mul_i32 s58, s{wn}, 160"); A("s_add_u32 s58, s58, 16384"); A(f"v_add_u32 {v(t1)}, s58, {v(t1)}")
    A(f"v_and_b32 {v(t0)}, 1, {v(qq)}"); A(f"s_lshl_b32 s58, s{wn}, 6"); A("s_sub_u32 s58, 32, s58"); A(f"v_mul_i32_i24 {v(t0)}, s58, {v(t0)}")
    A(f"v_add_u32 {v(wa)}, {v(t1)}, {v(t0)}"); A(f"v_sub_u32 {v(wa+1)}, {v(t1)}, {v(t0)}")
    A(f"s_lshl_b32 s37, s{rt}, 1"); A(f"s_add_u32 s37, s37, s{wm}")
    A(f"s_lshl_b32 s36, s{ct}, 1"); A(f"s_add_u32 s36, s36, s{wn}")
    STL = 147456
    A(f"s_lshl_b32 s{srs}, s{rt}, 9"); A(f"s_lshl_b32 s58, s{W}, 13"); A(f"s_add_u32 s{srs}, s{srs}, s58"); A(f"s_add_u32 s{srs}, s{srs}, {RS_OFF}")
    A(f"s_mul_i32 s58, s{ct}, 640"); A(f"s_add_u32 s58, s58, {C1_OFF}"); A(f"s_cmp_eq_u32 s{W}, 2"); A(f"s_cselect_b32 s{srs}, s58, s{srs}"); A(f"s_cmp_eq_u32 s{W}, 3"); A(f"s_cselect_b32 s{srs}, {OOB}, s{srs}")
    A(f"s_lshl_b32 s{srr}, s{W}, 10"); A(f"s_add_u32 s{srr}, s{srr}, {STL}")
    A(f"s_lshl_b32 s58, s{wm}, 8"); A(f"s_add_u32 s58, s58, {STL}"); A(f"v_mov_b32 {v(rv)}, s58"); A(f"s_mul_i32 s58, s{wn}, 320"); A(f"s_add_u32 s58, s58, {STL+2048}"); A(f"v_mov_b32 {v(cv)}, s58")
    A(f"s_cmp_lt_u32 s{ct}, 4"); A(f"s_cselect_b32 s{sqs}, {hex(QSCALE)}, 1.0")
    A("s_and_b32 s56, s36, 7"); A("s_lshr_b32 s57, s36, 3"); A(f"s_mul_i32 s{sst}, s56, {GS}"); A(f"s_mul_i32 s58, s57, {K_OFF}"); A(f"s_add_u32 s{sst}, s{sst}, s58")
    A("s_mul_i32 s56, s56, 3"); A("s_add_u32 s56, s56, s57"); A("s_lshl_b32 s56, s56, 2"); A("s_lshr_b32 s57, s37, 3"); A("s_add_u32 s56, s56, s57"); A("s_lshl_b32 s56, s56, 5")
    A("s_and_b32 s57, s37, 7"); A("s_add_u32 s56, s56, s57"); A("s_lshl_b32 s56, s56, 2"); A(f"s_add_u32 s62, s56, {F1_OFF}")
    A(f"s_cmp_ge_u32 s{ct}, 8"); A(f"s_cbranch_scc1 {K}_v")

    Xr = lambda st, xi, ks: (FR+144 if st == 9 else FR+72*(st & 1)) + 8*xi+4*ks
    Wr = lambda st, wi, ks: FR+72*(st & 1) + 32 + 8*wi+4*ks
    rdx = lambda st: [f"ds_read_b128 {r(Xr(st,xi,ks),4)}, {v(xa+ks)} offset:{(st&1)*SL+2048*xi}" for xi in range(4) for ks in range(2)]
    rdw = lambda st, wi: [f"ds_read_b64_tr_b16 {r(Wr(st,wi,ks)+2*h,2)}, {v(wa+(wi&1))} offset:{(st&1)*SL+(32*ks+4*h)*320+32*wi}" for ks in range(2) for h in range(2)]
    def reads(st): return rdw(st, 0) + rdx(st) + rdw(st, 1) + rdw(st, 2) + rdw(st, 3) + rdw(st, 4)
    flag0 = f"buffer_load_dword v55, off, {S4(SD)}, s22 sc1"
    flag = f"buffer_load_dword {v(t0)}, v54, {S4(SWS)}, s22 offen sc1"
    def mainloop(isv):
        tag = "v" if isv else "q"
        if not isv:
            A("s_mul_i32 s56, s37, 5120"); A(f"s_add_u32 s{sst}, s{sst}, s56"); A(f"s_add_u32 s{sst+1}, s{sst}, 2560")
            A(f"s_add_u32 s{sst+2}, s{sst}, {163840+512}"); A(f"s_add_u32 s{sst+3}, s{sst+1}, {163840+512}")
            A(f"v_lshrrev_b32 {v(t0)}, 5, {v(LANE)}"); A(f"v_mul_u32_u24 {v(t0)}, {163840-2560}, {v(t0)}"); A(f"v_add_u32 {v(sa)}, {v(t0)}, {v(LV)}")
            A(f"v_lshl_add_u32 {v(rv)}, {v(nn)}, 2, {v(rv)}"); A(f"v_lshl_add_u32 {v(cv)}, {v(qq)}, 4, {v(cv)}")
        else:
            A("s_mul_i32 s56, s37, 10240"); A(f"s_add_u32 s{sst}, s{sst}, s56"); A(f"s_add_u32 s{sst+1}, s{sst}, 5120")
            A(f"v_mul_u32_u24 {v(t3)}, 1280, {v(qq)}"); A(f"v_lshl_add_u32 {v(sa)}, {v(nn)}, 4, {v(t3)}")
            A(f"v_lshl_add_u32 {v(rv)}, {v(qq)}, 4, {v(rv)}"); A(f"v_lshl_add_u32 {v(cv)}, {v(nn)}, 2, {v(cv)}")
        Q = VQ(); Q.add(0, dma(0)); A.ext(Q.add(1, dma(1)))
        A.ext(Q.wait(0)); A("s_barrier"); ST.mark(2)
        A.ext(reads(0))
        BP = 8; FS = CFG.get("p1fs", 5); EARLY = CFG.get("p1e", 1)
        rrd = lambda k_: [f"ds_read_b{128 if isv else 32} {v(RS+16*k_+4*xi, 4 if isv else 1)}, {v(rv)} offset:{1024*k_+64*xi}" for xi in range(4)]
        crd = [f"ds_read_b{32 if isv else 128} {v(CS+4*wi, 1 if isv else 4)}, {v(cv)} offset:{64*wi}" for wi in range(5)]
        sdma = [f"s_mov_b32 m0, s{srr}", f"buffer_load_dwordx4 {v(LV)}, {S4(SWS)}, s{srs} offen sc1 lds"]
        steps = [(st, wi, xi, ks) for st in range(8) for wi in range(5) for xi in range(4) for ks in range(2)]
        steps += [(st, wi, xi, ks) for wi in range(5) for xi in range(4) for st in (8, 9) for ks in range(2)]
        mm = lambda st, wi, xi, ks: mf16(ACC+16*wi+4*xi, *((Xr(st, xi, ks), Wr(st, wi, ks)) if isv else (Wr(st, wi, ks), Xr(st, xi, ks))), "0" if (st == 0 and ks == 0) else None)
        T = TL(A, Q, [mm(*x) for x in steps])
        tagged = lambda st: [(("x", st) if i < 12 else None, x) for i, x in enumerate(reads(st))]
        T.lq = [t for t, x in tagged(0)]
        nonop = lambda L: [x for x in L if x != "s_nop 0"]
        for st in range(8):
            k0 = 40*st
            if 4*st in P1ST(): T.pre[k0].append(lambda i=3+P1ST().index(4*st): ST.mark(i))
            T.pre[k0].append(("lwait", ("x", st))); T.pre[k0+BP].append("s_waitcnt lgkmcnt(0)")
            if st == 0:
                T.spread([(2, x) for x in dma(2)], 0, 0.8); T.spread([(3, x) for x in nonop(dma(3))], BP+2, 3.3)
            elif st+3 < 10:
                dm = [(st+3, x) for x in nonop(dma(st+3))]
                if st == FS+1: dm = dm[:6] + [("rs", x) for x in sdma] + dm[6:]
                T.spread(dm, k0+2, 4.3 if st != FS+1 else 3.9)
            if st == FS-2: T.spread([("f0", flag0)], k0+1, 0.9)
            if st == FS-1: T.pre[k0+BP].append(("wait", "f0"))
            if st == FS: T.spread([("f", flag)], k0+1, 0.9)
            if st == FS+2: T.pre[k0+BP].append(("wait", "rs"))
            T.pre[k0+BP].append(("wait", st+1))
            if st == FS+1:
                T.pre[k0+BP] += [("wait", "f"), f"v_min_u32 {v(t0)}, v55, {v(t0)}", f"v_or_b32 {v(t0)}, s{W}, {v(t0)}", f"v_cmp_eq_u32 vcc, 0, {v(t0)}", "s_nop 1", f"s_cbranch_vccnz {K}_rsspin{tag}", f"{K}_rsok{tag}:"]
            T.pre[k0+BP].append("s_barrier")
        for st in range(8):
            k0 = 40*st
            if st < 7: assert T.spread(tagged(st+1), k0+BP, 1, slack=CFG.get('p1sl', 0)) <= k0+44
            else:
                k = T.spread([("s", x) for x in rrd(0) + crd + rrd(1)], k0+BP, 0.7)
                T.spread([(None, x) for x in rdw(8, 0) + rdx(8)], k, 0.75)
                T.pre[k0+27] += [("wait", 9), "s_barrier"]
                T.spread([(None, x) for x in rdw(9, 0) + rdx(9)], k0+27, 0.9)
            if st & 1:
                d = (2*SL if (st & 2) == 0 else -2*SL) & 0xffffffff
                T.vspread([f"v_add_u32 {v(x)}, {d}, {v(x)}" for x in range(xa, xa+4)], k0+4, k0+8)
        for wi in range(5):
            k0 = 320 + 16*wi
            T.pre[k0].append("s_waitcnt lgkmcnt(0)")
            if wi < 4: T.spread([(None, x) for x in rdw(8, wi+1) + rdw(9, wi+1)], k0, 1)
        def corr(wi, xi): return [f"v_fmac_f32 {v(ACC+16*wi+4*xi+i)}, {v(RS+4*xi+(i if isv else 0))}, {v(CS+4*wi+(0 if isv else i))}" for i in range(4)]
        def group(wi, xp, pk, o):
            L = []
            for xi in (2*xp, 2*xp+1):
                ac = ACC+16*wi+4*xi
                if not EARLY: L += corr(wi, xi)
                if pk: L += [f"v_pk_mul_f32 {v(ac+i,2)}, {v(ac+i,2)}, {v(RS+16+4*xi+(i if isv else 0),2)}" + ("" if isv else " op_sel_hi:[1,0]") for i in (0, 2)]
                else: L += [f"v_mul_f32 {v(ac+i)}, {v(ac+i)}, {v(RS+16+4*xi+(i if isv else 0))}" for i in range(4)]
            L += [f"v_cvt_pk_bf16_f32 {v(o+2*j+i)}, {v(ACC+16*wi+8*xp+4*j+2*i)}, {v(ACC+16*wi+8*xp+4*j+2*i+1)}" for i in range(2) for j in range(2)]
            sw = "v_permlane32_swap_b32" if isv else "v_permlane16_swap_b32"
            L += [f"{sw} {v(o)}, {v(o+2)}", "v_nop", f"{sw} {v(o+1)}, {v(o+3)}"]
            if isv: st_ = f"buffer_store_dwordx4 {v(o,4)}, {v(sa)}, {S4(SWS)}, s{sst+xp} offen offset:{256*wi} sc1"
            else: st_ = f"buffer_store_dwordx4 {v(o,4)}, {v(sa if wi == 2 else LV)}, {S4(SWS)}, s{sst+xp+2*(wi > 2)} offen offset:{1024*(wi if wi < 3 else wi-3)} sc1"
            return L, st_
        qs = [] if isv else [f"v_mul_f32 {v(RS+16+4*xi)}, s{sqs}, {v(RS+16+4*xi)}" for xi in range(4)]
        if EARLY:
            T.pre[301].append(("lwait", "s"))
            for wi, (ka, kb) in {0: (301, 317), 1: (317, 329), 2: (329, 338), 3: (338, 364), 4: (364, 381)}.items():
                T.vspread([x for xi in range(4) for x in corr(wi, xi)] + (qs if wi == 1 else []), ka, kb)
        else: T.vspread(qs, 330, 334)
        for wi in range(4):
            for xp in range(2):
                L, st_ = group(wi, xp, False, OB + 4*((2*wi+xp) % 4))
                ka = 320 + 16*wi + 8*xp + 16 + (2 if wi == 0 and xp == 0 else 0)
                k = T.vspread(L, ka, 320 + 16*wi + 8*xp + 24, cap=2)
                if k < 400: T.post[k].append(("o", st_))
                else: late = st_
        T.emit()
        ST.mark(3 + len(P1ST()))
        A(late)
        for xp in range(2):
            L, st_ = group(4, xp, True, OB + 4*xp); A.ext(L); A(st_)
        COLD.append(lambda: (A(f"{K}_rsspin{tag}:"), poll(A, [flag0], [55], sleep=4), poll(A, [flag], [t0], sleep=2), A(f"s_branch {K}_rsok{tag}")))
    mainloop(False)
    A(f"s_branch {K}_p1out")
    helper(A, ST, common, flag0, flag)
    A(f"{K}_v:")
    mainloop(True)
    A(f"{K}_p1out:")
    ST.n = 4 + len(P1ST())
    ST.mark()
    def setflag(pos):
        if pos != (2 if ES else CFG.get("fpos", 0)): return
        A(f"v_mul_u32_u24 v2, {96*128}, {v(LANE)}"); A("s_mov_b64 exec, 15")
        A("s_waitcnt vmcnt(0)"); A(f"buffer_{'atomic_or' if CFG.get('at1', 1) else 'store_dword'} v10, v2, {S4(SWS)}, s62 offen sc1"); A("s_mov_b64 exec, -1"); ST.mark()
    if not ES: att_setup(A, setflag)
    setflag(2)
    A(f"{K}_p1done:")

def helper(A, ST, common, flag0, flag):
    hid, so, stp = 28, 32, 33
    nn, qq, sv = 6, 7, 12
    XB, SM, ONE = 64, 40, 32
    KS = CFG.get("hk", 1)
    A(f"{K}_help:")
    A(f"s_sub_u32 s{hid}, s2, 192")
    A(f"s_cmp_lt_u32 s{hid}, 32"); A("s_cselect_b32 s56, 1280, s56"); A("s_cselect_b32 s29, 1, 0")
    A("s_cmp_eq_u32 s29, 0"); A("s_cselect_b32 s56, 3840, s56")
    A(f"v_lshrrev_b32 v2, 3, {v(LANE)}"); A(f"v_and_b32 v3, 7, {v(LANE)}"); A("v_mul_u32_u24 v4, s56, v2"); A(f"v_lshl_add_u32 {v(sv)}, v3, 4, v4")
    A("s_lshl_b32 s57, s56, 3"); A(f"v_add_u32 {v(sv+1)}, s57, {v(sv)}")
    A(f"s_lshl_b32 s57, s56, 4"); A(f"s_mul_i32 s{so}, s57, s{W}")
    A(f"s_and_b32 s30, s{GX}, 3"); A("s_lshl_b32 s30, s30, 3"); A(f"s_lshr_b32 s57, s{hid}, 2"); A("s_and_b32 s57, s57, 7"); A("s_add_u32 s30, s30, s57")
    A(f"s_sub_u32 s31, s{hid}, 32"); A(f"s_mul_i32 s57, s30, {64*1280}"); A("s_lshl_b32 s58, s31, 7")
    A("s_cmp_eq_u32 s29, 0"); A("s_cselect_b32 s57, s58, s57"); A(f"s_cselect_b32 s{stp}, {64*3840}, s56"); A(f"s_add_u32 s{so}, s{so}, s57")
    A("s_cmp_eq_u32 s29, 1"); A(f"s_cselect_b32 s{stp}, 128, s{stp}")
    A(f"s_mul_i32 s57, s{stp}, {KS}"); A(f"s_add_u32 s{so}, s{so}, s57"); A(f"s_mul_i32 s34, s{stp}, -9")
    A("s_waitcnt lgkmcnt(0)")
    srd(A, SX, 36, 2621440)
    A("s_cmp_eq_u32 s29, 1"); A(f"s_cselect_b64 s[{SA}:{SA+1}], s[36:37], s[38:39]"); A(f"s_cselect_b32 s{SA+2}, s{SX+2}, 2457600"); A(f"s_mov_b32 s{SA+3}, 0x20000")
    A(f"s_cmp_lt_u32 s{hid}, 62"); A(f"s_cselect_b32 s{SA+2}, s{SA+2}, 0")
    Q = VQ()
    def xl(i):
        L = [f"buffer_load_dwordx4 {v(XB+4*i,4)}, {v(sv+(i&1))}, {S4(SA)}, s{so} offen"]
        if i & 1: L.append(f"s_add_u32 s{so}, s{so}, s{stp if i//2+KS != 9 else 34}")
        return L
    for i in range(10): A.ext(Q.add(("x", i), xl(i)))
    common()
    marks = list(range(1, 6 + len(P1ST())))
    def mk():
        if marks: ST.mark(marks.pop(0))
    mk()
    for i in range(4): A(f"v_mov_b32 {v(8+i)}, 0"); A(f"v_mov_b32 {v(ONE+i)}, 0x3f803f80")
    for i in range(8): A(f"v_mov_b32 {v(SM+i)}, 0")
    lab = A.label("notlast"); A(f"s_cmp_lg_u32 s{hid}, 63"); A(f"s_cbranch_scc1 {lab}")
    A(f"s_lshl_b32 s56, s{W}, 11"); A(f"s_add_u32 s56, s56, {HF_OFF}")
    for i in range(2): A(f"buffer_store_dwordx4 v[8:11], {v(LV)}, {S4(SWS)}, s56 offen offset:{1024*i} sc1")
    A("s_waitcnt vmcnt(0)"); A("s_barrier"); A("s_mov_b64 exec, 1"); A(f"buffer_store_dword {v(ONE)}, off, {S4(SD)}, s22 sc1"); A("s_mov_b64 exec, -1"); A("s_waitcnt vmcnt(0)")
    A(f"{lab}:")
    col, both = A.label("hcol"), A.label("hboth")
    def stats(proc, fin):
        Q2 = VQ(); Q2.q = list(Q.q)
        for i in range(10, 20): A.ext(Q2.add(("x", i), xl(i))); A.ext(Q2.wait(("x", i-10))); proc(i-10)
        for i in range(10, 20): A.ext(Q2.wait(("x", i))); proc(i)
        fin(Q2); return Q2
    A("s_cmp_eq_u32 s29, 0"); A(f"s_cbranch_scc1 {col}")
    def rproc(i):
        for j in range(4): A(f"v_dot2c_f32_bf16 {v(SM+2*(i&1))}, {v(ONE)}, {v(XB+4*i+j)}"); A(f"v_dot2c_f32_bf16 {v(SM+2*(i&1)+1)}, {v(XB+4*i+j)}, {v(XB+4*i+j)}")
    def rfin(Q2):
        A("s_nop 2")
        for mod in ("quad_perm:[1,0,3,2]", "quad_perm:[2,3,0,1]", "row_half_mirror"):
            for i in range(4): A(f"v_add_f32_dpp {v(SM+i)}, {v(SM+i)}, {v(SM+i)} {mod} row_mask:0xf bank_mask:0xf")
        A("v_cmp_eq_u32 vcc, 1, v3"); A(f"v_lshrrev_b32 v4, 3, {v(LANE)}"); A("v_lshl_add_u32 v4, v3, 3, v4")
        A(f"v_cndmask_b32 {v(SM)}, {v(SM)}, {v(SM+2)}, vcc"); A(f"v_cndmask_b32 {v(SM+1)}, {v(SM+1)}, {v(SM+3)}, vcc")
        A(f"v_mul_f32 {v(SM)}, {hex(f2u(-1/640))}, {v(SM)}"); A(f"v_mul_f32 {v(SM+1)}, {hex(f2u(1/640))}, {v(SM+1)}")
        A(f"v_fma_f32 {v(SM+1)}, -{v(SM)}, {v(SM)}, {v(SM+1)}"); A(f"v_max_f32 {v(SM+1)}, 0, {v(SM+1)}")
        A(f"v_add_f32 {v(SM+1)}, {hex(f2u(1e-5))}, {v(SM+1)}"); A(f"v_rsq_f32 {v(SM+1)}, {v(SM+1)}")
        A("v_lshlrev_b32 v4, 2, v4"); A(f"v_mov_b32 v5, {OOB}"); A("v_cmp_gt_u32 vcc, 2, v3"); A("s_lshl_b32 s57, s30, 2"); A(f"s_add_u32 s57, s57, s{W}"); A("v_cndmask_b32 v4, v5, v4, vcc")
        A("s_lshl_b32 s57, s57, 6"); A(f"s_add_u32 s57, s57, {RS_OFF}"); A("s_add_u32 s58, s57, 8192")
        A.ext(Q2.add("s", [f"buffer_store_dword {v(SM)}, v4, {S4(SWS)}, s57 offen sc1", f"buffer_store_dword {v(SM+1)}, v4, {S4(SWS)}, s58 offen sc1"]))
    stats(rproc, rfin)
    A(f"s_branch {both}")
    A(f"{col}:")
    def cproc(i):
        for j in range(4):
            A(f"v_lshlrev_b32 v16, 16, {v(XB+4*i+j)}"); A(f"v_and_b32 v17, 0xffff0000, {v(XB+4*i+j)}"); A(f"v_pk_add_f32 {v(SM+2*j,2)}, {v(SM+2*j,2)}, v[16:17]")
    def cfin(Q2):
        A("s_nop 1")
        for i in range(8): A(f"v_add_f32_dpp {v(SM+i)}, {v(SM+i)}, {v(SM+i)} row_ror:8 row_mask:0xf bank_mask:0xf")
        quad_sum(A, list(range(SM, SM+8)), list(range(16, 24)))
        EX = 147456
        A(f"s_lshl_b32 s57, s{W}, 8"); A(f"s_add_u32 s57, s57, {EX}"); A("v_lshl_add_u32 v4, v3, 5, s57")
        A(f"ds_write_b128 v4, {v(SM,4)}"); A(f"ds_write_b128 v4, {v(SM+4,4)} offset:16"); A(f"v_add_u32 v4, {EX}, {v(L4V)}")
        A("s_waitcnt lgkmcnt(0)"); A("s_barrier")
        for i in range(4): A(f"ds_read_b32 {v(16+i)}, v4 offset:{256*i}")
        A("s_lshl_b32 s57, s31, 8"); A(f"s_add_u32 s57, s57, {C1_OFF}"); A("s_add_u32 s57, s57, s22"); A(f"s_mov_b32 s58, {OOB}")
        A("s_waitcnt lgkmcnt(0)"); A("v_add_f32 v16, v16, v17"); A("v_add_f32 v18, v18, v19"); A("v_add_f32 v16, v16, v18")
        A.ext(Q2.add("s", [f"buffer_store_dword v16, {v(L4V)}, {S4(SWS)}, s57 offen sc1", f"buffer_store_dword v16, {v(L4V)}, {S4(SWS)}, s58 offen sc1"]))
    Q = stats(cproc, cfin)
    A(f"{both}:"); mk()
    A(f"s_lshr_b32 s57, s{W}, 1"); A(f"s_lshl_b32 s56, s{hid}, 1"); A("s_add_u32 s56, s56, s57"); A("s_mul_i32 s56, s56, 896"); A(f"s_add_u32 s56, s56, {F2_OFF}")
    A(f"s_bitcmp1_b32 s{W}, 0"); A(f"s_cselect_b32 s56, s56, {OOB}"); A(f"v_min_u32 v4, {55*16}, {v(LV)}")
    A(f"s_mul_i32 s57, s{hid}, 5120"); A(f"s_add_u32 s57, s57, {ONES_OFF}"); A(f"s_cmp_eq_u32 s{W}, 2"); A(f"s_cselect_b32 s57, s57, {OOB}"); A(f"v_and_b32 v5, 1, {v(LANE)}"); A("v_mul_u32_u24 v5, 2560, v5")
    A.ext(Q.add("s", [f"buffer_store_dwordx4 v[8:11], v4, {S4(SWS)}, s56 offen sc1", f"buffer_store_dwordx4 {v(ONE,4)}, v5, {S4(SWS)}, s57 offen sc1"]))
    A(f"s_lshl_b32 s35, s{hid}, 7"); A("s_add_u32 s35, s35, s22"); A(f"s_add_u32 s35, s35, {HF_OFF}")
    poll(A, [flag0], [55], sleep=4, post=[f"v_or_b32 v55, s{W}, v55"]); A("s_barrier")
    A(f"buffer_store_dword {v(ONE)}, off, {S4(SWS)}, s35 sc1")
    mk()
    while marks: mk()
    att_setup(A)
    poll(A, [flag], [2], sleep=8, post=[f"v_or_b32 v2, s{W}, v2"]); A("s_barrier")
    A("s_mov_b64 exec, 1"); poll(A, apoll(4, 145, 59, CFG.get("at1", 1)), [4], sleep=8); A("s_mov_b64 exec, -1")
    A(f"s_branch {K}_p1done")

def w3reg(f): return 256 + 192 + 4*f if f < 16 else 148 + 4*(f-16)
WV = 250
P3RES, P3CS = 184, 194
SK_WR, SK_RD, SK_RM = 242, 245, 246
def p3_wload(f):
    ks, u = divmod(f, 5)
    L = [f"buffer_load_dwordx4 {r(w3reg(f),4)}, {v(WV if u < 4 else WV+1)}, {S4(SWS)}, s44 offen offset:{1024*(u&3)} sc1"]
    if u == 4: L.append("s_add_u32 s44, s44, 40960" if ks != 3 else "s_mov_b32 s44, s78")
    return L
CMB = 86016

def TOUCHES(key="touch", dflt=""): return [(int(x.split(":")[0]), x.split(":")[1]) for x in str(CFG.get(key, dflt)).split(",") if x]
def gtouch(what):
    c, k_ = what[0], int(what[1:] or 0)
    if c == "u": return [f"s_mov_b64 s[{SR}:{SR+1}], s[86:87]", f"s_mov_b32 s{SR+2}, 2621440", f"buffer_load_dword v248, v147, {S4(SR)}, s90 offen offset:{1280*k_} sc1"]
    reg, vr, base = {"N": (76, TV, HH_OFF() + 3456*k_), "h": (90, 147, H_OFF()),
                     "s": (93, None, STAT_OFF), "g": (79, TV, WGU_OFF + 442368*k_), "d": (79, TV, WD_OFF + 442368*k_)}[c]
    return [f"s_add_u32 s91, s{reg}, {base}", f"buffer_load_dword v248, {v(vr) if vr else 'off'}, {S4(SWS)}, s91 {'offen' if vr else ''} sc1"]
def att_setup(A, hook=lambda pos: None):
    odd, sok, sov, sox, redo, sob, sfr, stch = 28, 72, 73, 74, 32, 33, 34, 35
    S0, S1, P, E, O0 = 16, 48, 80, 96, 104
    kv, kxv, vv, ov, oxv, cw, cr, tv = 136, 137, 138, 139, 140, 141, 144, 145
    OA, QM, QX, KR, VR, XR = 256, 256+96, 256+128, 256+136, 256+152, 256+184
    Oreg = lambda lp: O0 if lp == 0 else OA + 32*(lp-1)
    t0, t1, t2, t3, t4 = 2, 3, 4, 5, 6
    LD = CFG.get("ld", "sc1")
    head, qb = 30, 31
    A(f"s_lshl_b32 s{head}, s{GX}, 2"); A(f"s_and_b32 s36, s{GI}, 3"); A(f"s_add_u32 s{head}, s{head}, s36"); A(f"s_lshr_b32 s{qb}, s{GI}, 2")
    A(f"s_and_b32 s{odd}, s{head}, 1")
    A(f"s_bfe_u32 s36, s{head}, 0x10001"); A("s_mul_i32 s37, s36, 163840"); A(f"s_add_u32 s37, s37, s{GB}")
    A(f"s_add_u32 s{MODE}, s37, {K_OFF}")
    A(f"s_mul_i32 s{sob}, s{qb}, {GS}"); A(f"s_lshl_b32 s36, s{head}, 9"); A(f"s_add_u32 s{sob}, s{sob}, s36")
    A(f"s_lshl_b32 s36, s{W}, 14"); A(f"s_add_u32 s63, s{sob}, s36"); A(f"s_add_u32 s63, s63, {OX_OFF}")
    A(f"s_lshl_b32 s36, s{W}, 16"); A(f"s_add_u32 s{sob}, s{sob}, s36"); A(f"s_add_u32 s{sob}, s{sob}, {O_OFF}")
    A(f"s_lshl_b32 s38, s{qb}, 2")
    for i in range(4):
        A(f"s_add_u32 s36, s{W}, {i}"); A("s_and_b32 s36, s36, 3")
        if i: A("s_mul_i32 s39, s36, 18432"); A(f"s_add_u32 s39, s39, {CMB+(i-1)*6144}"); A(f"v_add_u32 {v(cw+i-1)}, s39, {v(LV)}")
        else: A("s_mul_i32 s39, s36, 18432"); A(f"s_add_u32 s39, s39, {CMB}"); A(f"v_add_u32 {v(cr)}, s39, {v(LV)}")
        A("s_add_u32 s36, s36, s38"); A("s_mul_i32 s36, s36, 5120"); A(f"s_add_u32 s{40+i}, s36, s37")
    A(f"s_mul_i32 s36, s{odd}, 1536"); A(f"v_add_u32 {v(kv)}, s36, {v(LV)}")
    A(f"v_and_b32 {v(t0)}, 31, {v(LANE)}"); A(f"v_lshrrev_b32 {v(t1)}, 5, {v(LANE)}")
    A(f"s_lshl_b32 s36, s{odd}, 3"); A("s_add_u32 s37, s36, 1024")
    A(f"v_lshl_add_u32 {v(t4)}, {v(t0)}, 4, s37")
    A(f"v_mul_u32_u24 {v(t2)}, 2560, {v(t1)}"); A(f"v_add_u32 {v(kxv)}, {v(t4)}, {v(t2)}")
    A(f"v_bfe_u32 {v(t2)}, {v(LANE)}, 4, 1"); A(f"v_lshlrev_b32 {v(t2)}, 14, {v(t2)}"); A(f"v_and_b32 {v(t3)}, 15, {v(LANE)}"); A(f"v_lshl_add_u32 {v(t2)}, {v(t3)}, 4, {v(t2)}")
    A(f"v_lshl_add_u32 {v(ov)}, {v(t1)}, 8, {v(t2)}")
    A(f"v_lshrrev_b32 {v(t2)}, 2, {v(t0)}"); swap01(A, t3, t2, 7)
    A(f"v_and_b32 {v(t2)}, 3, {v(t0)}"); A(f"v_lshl_add_u32 {v(t2)}, {v(t3)}, 2, {v(t2)}")
    A(f"v_mul_u32_u24 {v(t3)}, 1280, {v(t1)}"); A(f"v_lshl_add_u32 {v(t2)}, {v(t2)}, 4, {v(t3)}")
    A(f"s_and_b32 s36, s{head}, 3"); A("s_mul_i32 s36, s36, 320"); A(f"v_add_u32 {v(t2)}, s36, {v(t2)}")
    A(f"v_mov_b32 {v(t3)}, {OOB}"); A(f"v_cmp_gt_u32 vcc, 20, {v(t0)}"); A("s_nop 1"); A(f"v_cndmask_b32 {v(t2)}, {v(t3)}, {v(t2)}, vcc")
    A(f"s_sub_u32 s36, {ONES_OFF-V_OFF}, s{GB}"); A(f"v_mov_b32 {v(t3)}, s36")
    A(f"v_cmp_eq_u32 vcc, 20, {v(t0)}"); A("s_nop 1"); A(f"v_cndmask_b32 {v(vv)}, {v(t2)}, {v(t3)}, vcc")
    A(f"s_mul_i32 s{sok}, s{W}, {16*2560}"); A(f"s_mov_b32 s{sox}, s{sok}")
    A(f"s_mul_i32 s36, s{W}, {16*5120}"); A(f"s_add_u32 s{sov}, s{GB}, s36"); A(f"s_add_u32 s{sov}, s{sov}, {V_OFF}")
    A("v_mov_b32 v10, 1")
    hook(0)
    A(f"s_bfe_u32 s36, s{GI}, 0x10002"); A("s_lshl_b32 s37, s36, 10"); A(f"v_add_u32 {v(WV)}, s37, {v(LV)}")
    A("s_xor_b32 s36, s36, 1"); A("s_lshl_b32 s37, s36, 12"); A(f"v_add_u32 {v(WV+1)}, s37, {v(LV)}")
    A(f"s_lshr_b32 s36, s{GI}, 2"); A("s_mul_i32 s36, s36, 5120"); A(f"s_mul_i32 s44, s{W}, {4*40960}"); A("s_add_u32 s44, s44, s36"); A(f"s_add_u32 s44, s44, {WO_OFF}")
    A(f"s_mul_i32 s78, s{W}, 40960"); A("s_add_u32 s78, s78, s36"); A(f"s_add_u32 s78, s78, {WO_OFF+16*40960}")
    skinny_addr(A); p4_setup(A)
    A(f"s_lshl_b32 s75, s{P4_ST}, 7"); A(f"s_add_u32 s75, s75, {CS_OFF}"); A("v_lshlrev_b32 v146, 2, v0")
    hook(1)
    relayout_setup(A)
    A(f"s_lshl_b32 s36, s{GX}, 5"); A(f"s_add_u32 s36, s36, s{GI}"); A("s_lshl_b32 s36, s36, 2"); A(f"s_add_u32 s36, s36, s{W}")
    A(f"s_lshl_b32 s{sfr}, s2, 5"); A(f"s_add_u32 s{sfr}, s{sfr}, s{W}"); A(f"s_lshl_b32 s{sfr}, s{sfr}, 2"); A(f"s_add_u32 s{sfr}, s{sfr}, {FR_OFF}")
    A(f"s_lshl_b32 s77, s{GX}, 7"); A(f"s_add_u32 s77, s77, {FR_OFF}"); A(f"s_lshl_b32 s101, s{W}, 13"); A(f"s_add_u32 s101, s101, {FR_OFF}")
    A(f"v_mov_b32 v11, {v(TV)}"); A(f"v_and_b32 v8, 31, {v(LANE)}"); A("v_lshlrev_b32 v8, 10, v8")
    A("s_lshl_b32 s93, s36, 7"); A("s_and_b32 s36, s36, 127"); A("s_mul_i32 s79, s36, 3456")
    A("s_mul_i32 s76, s36, 6912"); A(f"s_add_u32 s76, s76, s{GB}"); A("s_mul_i32 s90, s36, 2560"); A(f"s_add_u32 s90, s90, s{GB}")
    A(f"v_min_u32 v147, {19*128}, {v(TV)}"); A(f"v_min_u32 {v(TV)}, {26*128}, {v(TV)}"); A(f"v_mov_b32 v7, s{MYF}")
    A(f"s_lshl_b32 s38, s{qb}, 2"); A(f"s_add_u32 s38, s38, s{W}"); A("s_lshl_b32 s38, s38, 2"); A(f"s_lshr_b32 s39, s{head}, 3"); A("s_add_u32 s38, s38, s39"); A("s_lshl_b32 s38, s38, 5")
    A(f"s_and_b32 s39, s{head}, 7"); A("s_add_u32 s38, s38, s39"); A("s_lshl_b32 s38, s38, 2"); A(f"s_add_u32 s38, s38, {F2_OFF}")
    A(f"s_add_u32 s39, s{sob}, 32768")
    A(f"v_min_u32 v2, 23, {v(LANE)}"); A("v_lshrrev_b32 v3, 3, v2"); A("v_and_b32 v4, 7, v2"); A("v_lshlrev_b32 v3, 9, v3"); A("v_lshl_add_u32 v3, v4, 2, v3"); A(f"s_lshl_b32 s36, s{W}, 7"); A(f"s_lshr_b32 s37, s{GI}, 3"); A(f"s_mul_i32 s37, s37, {96*128}"); A("s_add_u32 s36, s36, s37"); A("v_add_u32 v3, s36, v3")
    A(f"s_lshr_b32 s36, s{qb}, 1"); A("s_lshl_b32 s36, s36, 7"); A(f"s_and_b32 s37, s{qb}, 1"); A("s_lshl_b32 s37, s37, 4"); A("s_add_u32 s36, s36, s37"); A(f"s_mul_i32 s37, s{W}, {96*128}"); A("s_add_u32 s36, s36, s37")
    A("v_and_b32 v4, 3, v2"); A("v_cmp_gt_u32 vcc, 8, v2"); A("v_lshl_add_u32 v4, v4, 2, s36"); A(f"s_mul_i32 s59, s{GX}, 1536"); A(f"v_cndmask_b32 {v(tv)}, v3, v4, vcc"); A(f"s_add_u32 s59, s59, {F1_OFF}")
    w5_setup(A)

def phase2(A, ST):
    odd, sok, sov, sox, redo, sob, sfr, stch = 28, 72, 73, 74, 32, 33, 34, 35
    S0, S1, P, E, O0 = 16, 48, 80, 96, 104
    kv, kxv, vv, ov, oxv, cw, cr, tv = 136, 137, 138, 139, 140, 141, 144, 145
    OA, QM, QX, KR, VR, XR = 256, 256+96, 256+128, 256+136, 256+152, 256+184
    Oreg = lambda lp: O0 if lp == 0 else OA + 32*(lp-1)
    t0, t1, t2, t3, t4 = 2, 3, 4, 5, 6
    LD = CFG.get("ld", "sc1")
    head, qb = 30, 31
    A(f"s_mov_b32 s{redo}, 0"); A(f"s_add_u32 s{SA}, s{SWS}, s{MODE}"); A(f"s_addc_u32 s{SA+1}, s{SWS+1}, 0"); A(f"s_mov_b32 s{SA+2}, 163840")
    if CFG.get("f1b", 0) == 0: A("s_barrier")
    A("s_mov_b64 exec, 0xffff0f")
    poll(A, apoll(4, tv, 59, CFG.get("at1", 1)), [4], sleep=CFG.get("f1s", 1))
    A("s_mov_b64 exec, -1")
    if CFG.get("f1b", 0) == 1: A("s_barrier")
    ST.mark()
    Kr = lambda t: KR + 4*(t % 4)
    Vr = lambda t, sx: VR + 8*(t % 4) + 4*sx
    Xr = lambda j: XR + 2*(j % 2)
    def ldk(t): return [f"buffer_load_dwordx4 {r(Kr(t),4)}, {v(kv)}, {S4(SA)}, s{sok} offen offset:{2560*(t&1)} {LD}"] + ([f"s_add_u32 s{sok}, s{sok}, 5120"] if t & 1 else [])
    def ldx(j): return [f"buffer_load_dwordx2 {r(Xr(j),2)}, {v(kxv)}, {S4(SA)}, s{sox} offen sc1", f"s_add_u32 s{sox}, s{sox}, 5120"]
    def ldv(t, sx): return [f"buffer_load_dwordx4 {r(Vr(t,sx),4)}, {v(vv)}, {S4(SWS)}, s{sov} offen offset:{2560*sx} {LD}"] + ([f"s_add_u32 s{sov}, s{sov}, 5120"] if sx else [])
    def ldq(lp): return ([f"buffer_load_dwordx2 {r(QX+2*lp,2)}, {v(kxv)}, {S4(SWS)}, s{40+lp} offen sc1"] +
                         [f"buffer_load_dwordx4 {r(QM+8*lp+4*j,4)}, {v(kv)}, {S4(SWS)}, s{40+lp} offen offset:{2560*j} sc1" for j in range(2)])
    Q = VQ()
    order = (1, 2, 3, 0)
    NT = CFG.get("tail", 3)
    seq = [(t, lp) for t in range(16-NT) for lp in order] + [(t, lp) for lp in order for t in range(16-NT, 16)]
    first = [(("x", 0), ldx(0)), (("k", 0), ldk(0)), (("q", 1), ldq(1)), (("q", 2), ldq(2)), (("v", 0, 0), ldv(0, 0)), (("v", 0, 1), ldv(0, 1)), (("q", 3), ldq(3)), (("q", 0), ldq(0))]
    U0 = CFG.get("au", 6)
    for tag, ops in first[:U0]: A.ext(Q.add(tag, ops))
    side = {b: [] for b in range(64)}
    fix = {(b, k): [] for b in range(64) for k in range(8)}
    def put(b, tag, ops): side[b] += [(tag, x) for x in ops]
    put(0, ("k", 1), ldk(1)); put(0, ("v", 1, 0), ldv(1, 0)); put(1, ("v", 1, 1), ldv(1, 1)); put(1, ("x", 1), ldx(1)); put(2, ("k", 2), ldk(2))
    put(2, ("v", 2, 0), ldv(2, 0)); put(3, ("v", 2, 1), ldv(2, 1)); put(3, ("k", 3), ldk(3)); put(4, ("v", 3, 0), ldv(3, 0)); put(4, ("v", 3, 1), ldv(3, 1))
    for t in range(12):
        d = 2*(t == 0)
        put(4*t+3+d, ("k", t+4), ldk(t+4)); put(4*t+4+d, ("v", t+4, 0), ldv(t+4, 0)); put(4*t+5+d, ("v", t+4, 1), ldv(t+4, 1))
    for j in range(6): put(8*j+6, ("x", j+2), ldx(j+2))
    for b in (10, 26, 42, 54): put(b, "pc", [CODE_TOUCH])
    mid = {b: [] for b in range(64)}
    B0, SP, B1, SS = CFG.get("b0", 3), CFG.get("rsp", 1), CFG.get("b1", 10), CFG.get("rss", 3)
    for i in range(10): put(B0+SP*i, ("rd", i), rl_dma(i))
    for a_ in range(5):
        b_ = B1 + SS*a_
        assert b_ > B0+SP*(2*a_+1)
        put(b_, None, [("wait", ("rd", 2*a_+1))] + rl_read(a_, 0) + rl_read(a_, 1))
        put(b_+1, "rs", ["s_waitcnt lgkmcnt(0)"] + rl_store(a_, 0)); put(b_+2, "rs", rl_store(a_, 1)); mid[b_+1] += [rl_sum(a_, 0), rl_sum(a_, 1)]
    put(b_+2, "rs", rl_cs(0) + rl_cs(1))
    B2 = b_ + 2 + CFG.get("b2", 3)
    put(B2, "fr", [("wait", "rs"), f"buffer_store_dword v7, off, {S4(SWS)}, s{sfr} sc1"])
    BR = B2 + CFG.get("b3", 5); BQ = BR + 4
    frl = [f"buffer_load_dwordx4 {v(RLF,4)}, v11, {S4(SWS)}, s101 offen sc1"]
    put(BR, "frl", frl)
    chk = [f"v_min3_u32 {v(RLF)}, {v(RLF)}, {v(RLF+1)}, {v(RLF+2)}", f"v_min_u32 {v(RLF)}, {v(RLF)}, {v(RLF+3)}", f"v_cmp_eq_u32 vcc, 0, {v(RLF)}"]
    put(BR+3, None, [("wait", "frl")] + chk + ["s_nop 0", f"s_cbranch_vccnz {K}_frspin", f"{K}_frok:", "s_barrier"])
    put(BQ, "grp", [f"buffer_load_dword v9, v8, {S4(SWS)}, s77 offen sc1"])
    put(BQ+4, None, [("wait", "grp"), "v_cmp_ne_u32 vcc, v7, v9", "s_nop 0", "s_cmp_eq_u64 vcc, 0", f"s_cselect_b32 s{MODE}, {0 if CFG.get('safe') else 1}, 0"])
    put(BQ+5, None, [f"s_cmp_eq_u32 s{MODE}, 0", f"s_cselect_b32 s{stch}, {OOB}, 0", f"s_add_u32 s76, s76, s{stch}", f"s_add_u32 s90, s90, s{stch}", f"s_add_u32 s93, s93, s{stch}"])
    pf = [x for st_ in range(3) for x in p4_dma(st_)]
    pf += [x for kq in range(4) for x in (f"buffer_load_dword {v(P3CS+kq)}, v146, {S4(SWS)}, s75 offen sc1", f"s_add_u32 s75, s75, {108*128}")]
    pf += io_rm("load", P3RES, SX)
    pf += [x for f in range(25) for x in p3_wload(f)]
    for b_, what in TOUCHES():
        assert b_ > BQ+5; put(b_, "t", gtouch(what))
    PE = CFG.get("pfe", 57); nreal = sum(not is_salu(x) for x in pf)
    bl = [b for b in range(BR+4, PE) if b not in (BQ+4, BQ+5)]
    for i, b in enumerate(bl):
        take = -(-nreal//(len(bl)-i))
        while pf and take > 0:
            x = pf.pop(0); put(b, "pf", [x])
            if not is_salu(x): take -= 1; nreal -= 1
    cwr = lambda lp: [f"ds_write_b128 {v(cw+lp-1)}, {r(Oreg(lp)+16*j+4*g,4)} offset:{3072*j+1024*g}" for j in range(2) for g in range(3)]
    E0 = 64 - 3*NT
    for n in range(3):
        b0 = E0 + NT*n
        for x, pos in zip(cwr(order[n]), [(b0, 3), (b0, 5), (b0, 7), (b0+1, 3), (b0+1, 5), (b0+1, 7)]): fix[pos].append(x)
    for f in range(CFG["w5z"]):
        b_ = E0 + NT*(f//8) + 2 + ((f % 8)*3)//8
        if f % 8 == 0: fix[(b_, 2)].append("s_waitcnt lgkmcnt(0)")
        put(b_, "w5", w5load(f))
    nxt63 = S0
    CB = [[204+4*i for i in range(6)], [nxt63+4*i for i in range(6)], [228, 232, 236, 200, nxt63+24, nxt63+28]]
    crd = lambda sl: [f"ds_read_b128 {v(CB[sl][3*j+g],4)}, {v(cr)} offset:{6144*sl+3072*j+1024*g}" for j in range(2) for g in range(3)]
    fix[(63, 2)] += ["s_waitcnt lgkmcnt(0)", "s_barrier"] + crd(0)
    fix[(63, 3)] += crd(1); fix[(63, 6)] += crd(2)
    A.ext(Q.wait(("q", 1)))
    A(mf2b(S0, Xr(0), QX+2, "0", 0))
    n0 = len(A.L)
    for tag, ops in first[U0:]: A.ext(Q.add(tag, ops))
    n0 = 18 - (len(A.L) - n0)
    if n0 > 16: A("s_nop 1"); n0 -= 2
    A(f"s_nop {n0-1}")
    A(mf32(S0, Kr(0), QM+8)); A(mf32(S0+16, Kr(0), QM+12))
    A.ext(Q.wait(("q", 2)))
    ST.mark()
    A("s_nop 9"); A(".p2align 3")
    def needs(b, k):
        if b > 63: return []
        t = seq[b][0]; t1_, lp1 = seq[min(b+1, 63)]
        if k == 0: return [("x", t1_ >> 1), ("q", lp1)] if b < 63 else []
        if k == 4: return [("k", t1_)] if b < 63 else []
        if k == 3: return [("v", t, 0)]
        if k == 6: return [("v", t, 1)]
        return []
    ismem = lambda x: not (isinstance(x, tuple) or is_salu(x) or x.startswith("v_") or x.endswith(":"))
    for b in range(64):
        t, lp = seq[b]
        cur, nxt = (S0, S1) if b % 2 == 0 else (S1, S0)
        c0 = "0" if t == 0 else None
        mf = {3: mf32(Oreg(lp), Vr(t, 0), P, c0), 6: mf32(Oreg(lp), Vr(t, 1), P+4), 7: mf32(Oreg(lp)+16, Vr(t, 0), P+8, c0)}
        if b: mf[2] = mf32(Oreg(seq[b-1][1])+16, Vr(seq[b-1][0], 1), P+12)
        if b < 63:
            t1_, lp1 = seq[b+1]
            mf[0] = mf2b(nxt, Xr(t1_ >> 1), QX+2*lp1, "0", t1_ & 1); mf[4] = mf32(nxt, Kr(t1_), QM+8*lp1); mf[5] = mf32(nxt+16, Kr(t1_), QM+8*lp1+4)
        q = side[b]; mq = list(mid[b])
        if b in ASTAMPS(): ST.mark()
        for k in range(8):
            if k in mf: A(mf[k])
            n0 = len(A.L)
            if k >= 2:
                tags = needs(b, k+1) if k < 7 else needs(b+1, 0)
                w_ = Q.wait(*tags) if tags else []
                A.ext(w_); A.ext(fix[(b, k)])
                free = not w_ and not fix[(b, k)]; nmem = 0
                left = sum(1 for tg, x in q if ismem(x))
                even = len([j for j in range(k, 8) if j % 2 == 0])
                want = (1 if k % 2 == 0 else 0) if left <= even else -(-left//(8-k))
                while q:
                    tg, x = q[0]
                    if isinstance(x, tuple):
                        if not free and k < 7: break
                        q.pop(0); w_ = Q.wait(x[1]); A.ext(w_); free = free and not w_
                    elif x.endswith(":") or x.startswith("v_"): q.pop(0); A(x); free = False; nmem = 99 if k < 7 else nmem
                    elif is_salu(x):
                        if not free and k < 7 and len(q) <= 2*(7-k): break
                        q.pop(0); A(x); free = False
                    else:
                        if nmem >= want and k < 7: break
                        q.pop(0); A.ext(Q.add(tg, [x])); nmem += 1; free = False
            four = sum(1 for x in A.L[n0:] if isize(x) == 4)
            pk = (k-1) % 8; eb = E + 4*(pk & 1)
            if b or k:
                for j in range(2): A(f"v_cvt_pk_bf16_f32 {v(P+2*pk+j)}, {v(eb+2*j)}, {v(eb+2*j+1)}")
            for j in range(4):
                wide = j == 0 and four % 2 == 1
                A(f"v_exp_f32{'_e64' if wide else ''} {v(E+4*(k&1)+j)}, {v(cur+4*k+j)}")
                if j == 1 and k >= 3 and mq and not any(x == "s_waitcnt lgkmcnt(0)" for _, x in q): A(mq.pop(0))
        assert not q and not mq, (b, q)
    for j in range(2): A(f"v_cvt_pk_bf16_f32 {v(P+14+j)}, {v(E+4+2*j)}, {v(E+5+2*j)}")
    A("s_waitcnt lgkmcnt(0)"); A("s_nop 0")
    A(mf32(O0+16, Vr(15, 1), P+12))
    ST.mark()
    for j in range(2):
        for g in range(3):
            for i in range(4): A(f"v_add_f32 {v(CB[0][3*j+g]+i)}, {v(CB[0][3*j+g]+i)}, {v(CB[1][3*j+g]+i)}") if (j == 0 and g < 2) else None
            if not (j == 0 and g < 2):
                for i in (0, 2): A(f"v_pk_add_f32 {v(CB[0][3*j+g]+i,2)}, {v(CB[0][3*j+g]+i,2)}, {v(CB[1][3*j+g]+i,2)}")
    for sl in (0, 2):
        for j in range(2):
            for g in range(3):
                for i in (0, 2): A(f"v_pk_add_f32 {v(O0+16*j+4*g+i,2)}, {v(O0+16*j+4*g+i,2)}, {v(CB[sl][3*j+g]+i,2)}")
    A(f"{K}_anorm:")
    A(f"v_mov_b32 v12, {v(O0+8)}"); A(f"v_mov_b32 v13, {v(O0+8)}"); A(f"v_mov_b32 v14, {v(O0+24)}"); A(f"v_mov_b32 v15, {v(O0+24)}")
    A(f"s_mov_b32 s36, {hex(f2u(2.0**60))}"); A(f"s_mov_b32 s37, {hex(f2u(2.0**-60))}")
    A("v_permlane32_swap_b32 v12, v13"); A("v_permlane32_swap_b32 v14, v15"); A("s_nop 1")
    A("v_rcp_f32 v12, v13"); A("v_rcp_f32 v14, v15")
    A("v_cmp_nlt_f32_e64 vcc, v13, s36"); A("v_cmp_nlt_f32_e64 s[40:41], v15, s36"); A("v_cmp_ngt_f32_e64 s[42:43], v13, s37"); A("v_cmp_ngt_f32_e64 s[56:57], v15, s37")
    A("s_or_b64 vcc, vcc, s[40:41]"); A("s_or_b64 vcc, vcc, s[42:43]"); A("s_or_b64 vcc, vcc, s[56:57]"); A(f"s_cbranch_scc1 {K}_aslow")
    A(f"{K}_afin:")
    for j in range(2):
        for i in range(0, 12, 2): A(f"v_pk_mul_f32 {v(O0+16*j+i,2)}, {v(O0+16*j+i,2)}, {v(12+2*j,2)} op_sel_hi:[1,0]")
        for i in range(6): A(f"v_cvt_pk_bf16_f32 {v(S0+4*j+i if i < 4 else S0+8+2*j+i-4)}, {v(O0+16*j+2*i)}, {v(O0+16*j+2*i+1)}")
    def stores(fl):
        return ([f"buffer_store_dwordx4 {v(S0+4*j,4)}, {v(ov)}, {S4(SWS)}, s{sob if j == 0 else 39} offen {fl}" for j in range(2)] +
                ["s_mov_b32 exec_hi, 0", f"buffer_store_dwordx4 {v(S0+8,4)}, {v(LV)}, {S4(SWS)}, s63 offen {fl}"])
    A.ext(stores("sc1")); A("s_mov_b64 exec, -1")
    for f in range(CFG["w5z"], CFG["w5a"]): A.ext(w5load(f))
    late_setup(A); A("v_mov_b32 v240, 1")
    A(f"s_waitcnt vmcnt({CFG['w5a']-CFG['w5z']})"); A("s_mov_b64 exec, 1"); A(f"buffer_{'atomic_or' if CFG.get('at2', 1) else 'store_dword'} v10, off, {S4(SWS)}, s38 sc1"); A("s_mov_b64 exec, -1")
    ST.mark()
    def cold():
        A(f"{K}_frspin:"); poll(A, frl, list(range(RLF, RLF+4)), sleep=8); A(f"s_branch {K}_frok")
        NM = S1
        A(f"{K}_aslow:")
        A(f"s_cmp_lg_u32 s{redo}, 0"); A(f"s_cbranch_scc1 {K}_afin")
        A(f"s_mov_b32 s{redo}, 1"); A(f"s_mov_b32 s{sok}, 0"); A(f"s_mov_b32 s{sox}, 0")
        A("v_mov_b32 v12, 0xff800000"); A("v_mov_b32 v13, 0xff800000")
        def scores(e, c):
            A(mf2b(S0, Xr(0), QX, c, e)); A("s_nop 15"); A("s_nop 1")
            A(mf32(S0, Kr(e), QM)); A(mf32(S0+16, Kr(e), QM+4)); A("s_nop 11")
        A(f"{K}_mloop:")
        A.ext(ldx(0) + ldk(0) + ldk(1)); A("s_waitcnt vmcnt(0)")
        for e in range(2):
            scores(e, "0")
            for j in range(2):
                for i in range(0, 16, 2): A(f"v_max3_f32 {v(12+j)}, {v(12+j)}, {v(S0+16*j+i)}, {v(S0+16*j+i+1)}")
        A(f"s_cmp_lt_u32 s{sok}, 163840"); A(f"s_cbranch_scc1 {K}_mloop")
        A("v_mov_b32 v14, v12"); A("v_mov_b32 v15, v13"); A("s_nop 1")
        A("v_permlane32_swap_b32 v12, v14"); A("v_permlane32_swap_b32 v13, v15"); A("s_nop 1")
        A("v_max_f32 v12, v12, v14"); A("v_max_f32 v13, v13, v15")
        for i in range(32): A(f"v_sub_f32 {v(NM+i)}, 0, {v(12+i//16)}"); A(f"v_mov_b32 {v(O0+i)}, 0")
        A(f"s_mov_b32 s{sok}, 0"); A(f"s_mov_b32 s{sox}, 0"); A(f"s_add_u32 s{sov}, s{GB}, {V_OFF}")
        A(f"{K}_sloop:")
        A.ext(ldx(0) + ldk(0) + ldk(1) + ldv(0, 0) + ldv(0, 1) + ldv(1, 0) + ldv(1, 1)); A("s_waitcnt vmcnt(0)")
        for e in range(2):
            scores(e, NM)
            for i in range(32): A(f"v_exp_f32 {v(S0+i)}, {v(S0+i)}")
            A("s_nop 0")
            for i in range(16): A(f"v_cvt_pk_bf16_f32 {v(P+i)}, {v(S0+2*i)}, {v(S0+2*i+1)}")
            A("s_nop 1")
            for j in range(2):
                for sx in range(2): A(mf32(O0+16*j, Vr(e, sx), P+8*j+4*sx))
        A(f"s_cmp_lt_u32 s{sok}, 163840"); A(f"s_cbranch_scc1 {K}_sloop")
        A("s_nop 15")
        A(f"s_branch {K}_anorm")
    return cold

RED = 86016
CSL = 147456
P4_SOW, P4_SOW2, P4_M0, P4_ST = 45, 46, 47, 48
class VQ:
    def __init__(self): self.q = []; self.done = 0
    def add(self, tag, ops):
        self.q += [tag for x in ops if x.startswith(("buffer", "global"))]
        assert len(self.q) - self.done <= 63, "too many outstanding"
        return ops
    def wait(self, *tags):
        idx = [i for i, x in enumerate(self.q) if x in tags]
        last = max(idx) + 1
        if last <= self.done: return []
        self.done = last
        return [f"s_waitcnt vmcnt({len(self.q) - last})"]

def p4_setup(A):
    A(f"s_lshr_b32 s36, s{GI}, 1"); A("s_mul_i32 s36, s36, 7"); A(f"s_min_u32 s{P4_ST}, s36, 101")
    A(f"s_mul_i32 s{P4_M0}, s{W}, 7168"); A(f"s_lshl_b32 s36, s{P4_ST}, 11"); A(f"s_add_u32 s36, s36, s{P4_M0}")
    A(f"s_lshr_b32 s37, s{W}, 1"); A(f"s_mul_i32 s37, s37, {221184-14336}"); A("s_add_u32 s36, s36, s37")
    A(f"s_add_u32 s{P4_SOW}, s36, {WGU_OFF}")
def p4_dma(stage):
    slot = stage % 5
    dw = lambda j: f"buffer_load_dwordx4 {v(LV)}, {S4(SWS)}, s{P4_SOW if j < 4 else P4_SOW2} offen offset:{(j&3)*1024} sc1 lds"
    return ([f"s_add_u32 m0, s{P4_M0}, {slot*28672}", f"s_add_u32 s{P4_SOW2}, s{P4_SOW}, 4096"] + [dw(j) for j in range(4)] +
            [f"s_add_u32 m0, s{P4_M0}, {slot*28672+4096}", f"s_add_u32 s{P4_SOW}, s{P4_SOW}, {2*221184}"] + [dw(j) for j in range(4, 7)])

def skinny_addr(A):
    for i in range(1, 4):
        A(f"s_add_u32 s36, s{W}, {i}"); A("s_and_b32 s36, s36, 3"); A("s_mul_i32 s36, s36, 15360"); A(f"s_add_u32 s36, s36, {RED+(i-1)*5120}"); A(f"v_add_u32 {v(SK_WR+i-1)}, s36, {v(LV)}")
    A(f"s_mul_i32 s36, s{W}, 15360"); A(f"s_add_u32 s36, s36, {RED}"); A(f"v_add_u32 {v(SK_RD)}, s36, {v(LV)}")
    A(f"v_and_b32 v2, 15, {v(LANE)}"); A(f"v_lshrrev_b32 v3, 4, {v(LANE)}")
    A("v_mul_u32_u24 v2, 1280, v2"); A(f"v_lshl_add_u32 {v(SK_RM)}, v3, 4, v2")
    A(f"s_lshl_b32 s49, s{GX}, 2"); A(f"s_and_b32 s36, s{GI}, 3"); A("s_add_u32 s49, s49, s36"); A("s_lshl_b32 s49, s49, 2"); A(f"s_add_u32 s49, s49, s{W}")
    A("s_mul_i32 s50, s49, 20480"); A(f"s_lshr_b32 s36, s{GI}, 3"); A("s_mul_i32 s37, s36, 320"); A("s_add_u32 s51, s50, s37")
    A("s_mul_i32 s37, s36, 5120"); A("s_add_u32 s50, s50, s37"); A(f"s_mul_i32 s37, s{GX}, {GS-327680}"); A("s_add_u32 s50, s50, s37"); A(f"s_add_u32 s50, s50, {H_OFF()}")
    A(f"s_bfe_u32 s36, s{GI}, 0x10002"); A("s_lshl_b32 s37, s36, 3")
    A("s_add_u32 s60, s50, s37"); A("s_add_u32 s60, s60, 2048"); A("s_add_u32 s61, s51, s37"); A("s_add_u32 s61, s61, 128")
    A("s_mul_i32 s37, s36, 3072"); A("s_add_u32 s50, s50, s37"); A("s_mul_i32 s37, s36, 192"); A("s_add_u32 s51, s51, s37")
def io_frag(op, regs, fl):
    return [f"buffer_{op}_dwordx4 {v(regs,4)}, {v(LV)}, {S4(SWS)}, s50 offen {fl}", f"buffer_{op}_dwordx4 {v(regs+4,4)}, {v(LV)}, {S4(SWS)}, s50 offen offset:1024 {fl}",
            f"buffer_{op}_dwordx2 {v(regs+8,2)}, {v(LV)}, {S4(SWS)}, s60 offen {fl}"]
def io_rm(op, regs, S):
    return [f"buffer_{op}_dwordx4 {v(regs,4)}, {v(SK_RM)}, {S4(S)}, s51 offen", f"buffer_{op}_dwordx4 {v(regs+4,4)}, {v(SK_RM)}, {S4(S)}, s51 offen offset:64",
            f"buffer_{op}_dwordx2 {v(regs+8,2)}, {v(SK_RM)}, {S4(S)}, s61 offen"]
def unpack(A, dst, src, n):
    for i in range(n): A(f"v_lshlrev_b32 {v(dst+2*i)}, 16, {v(src+i)}"); A(f"v_and_b32 {v(dst+2*i+1)}, 0xffff0000, {v(src+i)}")
def reduce_tail(A, ACC, rd):
    A("s_waitcnt lgkmcnt(0)"); A("s_barrier")
    for sl in range(3):
        for u in range(5): A(f"ds_read_b128 {v(ACC+20+20*sl+4*u,4)}, {v(rd)} offset:{5120*sl+1024*u}")
    for sl in range(3):
        A(f"s_waitcnt lgkmcnt({10-5*sl})")
        for i in range(0, 20, 2): A(f"v_pk_add_f32 {v(ACC+i,2)}, {v(ACC+i,2)}, {v(ACC+20+20*sl+i,2)}")
def quad_sum(A, regs, tmps):
    for swap in ("v_permlane32_swap_b32", "v_permlane16_swap_b32"):
        for x, t in zip(regs, tmps): A(f"v_mov_b32 {v(t)}, {v(x)}")
        A("s_nop 1")
        for x, t in zip(regs, tmps): A(f"{swap} {v(x)}, {v(t)}")
        A("s_nop 1")
        for x, t in zip(regs, tmps): A(f"v_add_f32 {v(x)}, {v(x)}, {v(t)}")

class TL:
    def __init__(self, A, Q, mf):
        self.A, self.Q, self.mf = A, Q, mf
        self.pre = [[] for _ in mf]; self.post = [[] for _ in mf]; self.valu = [[] for _ in mf]; self.lq = []
    @staticmethod
    def kind(x): return "v" if callable(x) or x.startswith(("buffer", "global")) else "s" if is_salu(x) else "d"
    def cost(self, k): return sum({"v": 8, "d": 4, "s": 0}[self.kind(x)] for t, x in self.post[k]) + 4*len(self.valu[k])
    def has(self, k, c): return any(self.kind(x) == c for t, x in self.post[k])
    def tied(self, k): return k+1 < len(self.mf) and bool(self.pre[k+1])
    def spread(self, items, k0, step, slack=3):
        k = float(k0); last = int(k0)-3; hold = []; n = len(self.mf)
        def salu(h, lo, hi):
            c = [j for j in range(max(lo, 0), hi+1) if not (self.has(j, "s") or self.has(j, "v") or self.tied(j))] or [j for j in range(max(lo, 0), hi+1) if not self.has(j, "v") and self.cost(j) <= 4]
            if c and not self.has(c[0], "s"): self.post[c[0]].insert(0, (None, h)); return c[0]
            j = c[0] if c else max(lo-1, 0)
            self.post[j].append((None, h)); return j
        for t, x in items:
            if is_salu(x): hold.append(x); continue
            kk = min(max(int(k), last), n-1)
            ok = (lambda j: self.cost(j) == 0 and not self.has(j, "s")) if self.kind(x) == "v" else (lambda j: self.cost(j) <= 4 and not self.has(j, "d"))
            if step >= 1:
                lo = max(kk, last+1+len(hold))
                c = [j for j in range(lo, min(lo+slack, n-1)+1) if ok(j)]
                kk = c[0] if c else min(lo, n-1)
                p = last
                for j, h in enumerate(hold): p = max(p, salu(h, p+1, kk-len(hold)+j))
            else:
                for h in hold: self.post[kk].append((None, h))
            hold = []; self.post[kk].append((t, x)); last = kk; k += step
        p = last
        for h in hold: p = max(p, salu(h, min(p+1, n-1), min(p+2, n-1)) if p+1 < n else (self.post[n-1].append((None, h)) or n-1))
        return max(k, p+1)
    def vspread(self, ops, k0, k1, cap=2):
        ops = list(ops); k1 = min(k1, len(self.mf))
        room = [max(0, (4*cap - self.cost(k))//4) for k in range(k0, k1)]
        while sum(room) < len(ops):
            j = min(range(len(room)), key=lambda j: self.cost(k0+j) + 4*room[j]); room[j] += 1
        extra = sum(room) - len(ops)
        while extra:
            j = max(range(len(room)), key=lambda j: (room[j] > 0, self.cost(k0+j) + 4*room[j], j)); room[j] -= 1; extra -= 1
        last = k0
        for j, c in enumerate(room):
            for _ in range(c): self.valu[k0+j].append(ops.pop(0)); last = k0+j
        return last+1
    def emit(self):
        A, Q = self.A, self.Q
        def one(t, x):
            if callable(x): x()
            elif isinstance(x, tuple) and x[0] == "lwait": A(f"s_waitcnt lgkmcnt({min(15, len(self.lq)-1-max(i for i, y in enumerate(self.lq) if y == x[1]))})")
            elif isinstance(x, tuple): A.ext(Q.wait(*x[1:]))
            else:
                if x.startswith("ds_"): self.lq.append(t)
                elif t is not None: Q.add(t, [x])
                A(x)
        for k, m in enumerate(self.mf):
            for x in self.pre[k]: one(None, x)
            A(m)
            if k+1 < len(self.mf):
                nx = self.pre[k+1]
                while nx and ((isinstance(nx[0], str) and nx[0].startswith("s_waitcnt lgkmcnt") and not self.has(k, "d")) or
                              (isinstance(nx[0], tuple) and not any(t in nx[0][1:] for t, x in self.post[k]))):
                    one(None, nx.pop(0))
            for t, x in self.post[k]: one(t, x)
            A.ext(self.valu[k])

W5X = 208
def w5reg(f): return 256+4*f if f < 24 else 256+176+4*(f-24) if f < 28 else 256+96+4*(f-28) if f < 48 else 256+4*f if f < 64 else W5X + 4*(f-64)
def w5load(f):
    ks, u = divmod(f, 5)
    L = [f"buffer_load_dwordx4 {r(w5reg(f),4)}, {v(WV if u < 4 else WV+1)}, {S4(SWS)}, s100 offen offset:{1024*(u&3)} sc1"]
    if u == 4: L.append("s_add_u32 s100, s100, 40960" if ks != 12 else "s_add_u32 s100, s100, s94")
    return L
S_F2P, S_STW, S_F3W, S_F3P, S_STR, S_F4W, S_F4P, S_F3A, S_OH, S_OHH, S_OH1, S_A5 = 64, 65, 66, 67, 68, 69, 70, 71, 28, 29, 30, 72
P4_LA, P4_LB, P4_HV, P4_SV, P4_CA, P4_CB, P4_F3V, L4V, ONEV = 4, 7, 11, 12, 13, 14, 15, 241, 10
def w5_setup(A):
    A(f"s_mul_i32 s36, s{W}, 14"); A(f"s_sub_i32 s37, s{W}, 2"); A("s_max_i32 s37, s37, 0"); A("s_sub_u32 s31, s36, s37")
    A(f"s_lshr_b32 s36, s{GI}, 2"); A("s_mul_i32 s36, s36, 5120"); A("s_mul_i32 s100, s31, 40960"); A("s_add_u32 s100, s100, s36"); A(f"s_add_u32 s100, s100, {WD_OFF}")
    A(f"s_cmp_ge_u32 s{W}, 2"); A(f"s_cselect_b32 s92, {OOB}, 0"); A("s_add_u32 s94, s92, 40960")
def late_setup(A):
    A(f"s_and_b32 s56, s{GI}, 3"); A(f"s_lshl_b32 s37, s{W}, 12"); A(f"s_add_u32 s37, s37, s{GB}")
    A("s_lshl_b32 s39, s56, 14"); A("s_add_u32 s39, s39, s37"); A(f"s_add_u32 s39, s39, {OX_OFF}")
    A("s_lshl_b32 s56, s56, 16"); A("s_add_u32 s56, s56, s37"); A(f"s_add_u32 s56, s56, {O_OFF}")
    A("s_and_b32 s57, s49, 12"); A("s_mul_i32 s57, s57, 55296"); A("s_lshl_b32 s37, s31, 10"); A("s_add_u32 s57, s57, s37"); A(f"s_add_u32 s57, s57, s{GB}"); A(f"s_add_u32 s57, s57, {HH_OFF()}")
    for i in range(4):
        A(f"s_add_u32 s36, s{W}, {i}"); A("s_and_b32 s36, s36, 3"); A("s_lshl_b32 s37, s36, 14"); A(f"s_add_u32 s{40+i}, s56, s37")
        A("s_mul_i32 s37, s36, 55296"); A(f"s_add_u32 s{S_A5+i}, s57, s37")
        A("s_and_b32 s37, s36, 1"); A("s_lshl_b32 s37, s37, 8"); A("s_lshr_b32 s36, s36, 1"); A("s_lshl_b32 s36, s36, 3"); A("s_add_u32 s36, s36, s37"); A(f"s_add_u32 s{52+i}, s39, s36")
    A(f"v_lshrrev_b32 v2, 4, {v(LANE)}"); A(f"v_and_b32 v3, 15, {v(LANE)}"); A(f"v_mul_u32_u24 v252, 768, v2"); A(f"v_add_u32 v252, v252, {v(LV)}")
    A(f"s_lshl_b32 s{S_F2P}, s49, 7"); A(f"s_add_u32 s{S_F2P}, s{S_F2P}, {F2_OFF}")
    A(f"s_lshr_b32 s37, s{GI}, 2"); A("s_lshl_b32 s36, s49, 3"); A("s_add_u32 s36, s36, s37"); A("s_lshl_b32 s36, s36, 7"); A(f"s_add_u32 s{S_STW}, s36, {STAT_OFF}")
    A("s_lshr_b32 s36, s49, 1"); A("s_lshl_b32 s36, s36, 5"); A("s_lshl_b32 s37, s37, 1"); A("s_add_u32 s36, s36, s37"); A("s_and_b32 s37, s49, 1"); A("s_add_u32 s36, s36, s37")
    A("s_lshl_b32 s36, s36, 2"); A(f"s_add_u32 s{S_F3W}, s36, {F3_OFF}")
    A("s_lshr_b32 s36, s49, 2"); A("s_lshl_b32 s36, s36, 8"); A(f"s_add_u32 s{S_F4P}, s36, {F4_OFF}")
    A(f"s_and_b32 s36, s{GI}, 1"); A(f"s_lshl_b32 s37, s{GX}, 1"); A("s_add_u32 s36, s36, s37"); A("s_lshl_b32 s36, s36, 2"); A(f"s_add_u32 s36, s36, s{W}")
    A("s_and_b32 s56, s36, 7"); A(f"s_mul_i32 s{S_OH}, s56, 40960"); A(f"s_add_u32 s{S_OH}, s{S_OH}, s{GB}"); A(f"s_add_u32 s{S_OH}, s{S_OH}, {H_OFF()}")
    A(f"s_lshl_b32 s37, s36, 7"); A(f"s_add_u32 s{S_F3P}, s37, {F3_OFF}")
    A(f"s_lshr_b32 s39, s{GI}, 1"); A("s_lshl_b32 s39, s39, 2"); A("s_add_u32 s37, s37, s39"); A(f"s_add_u32 s{S_F4W}, s37, {F4_OFF}")
    A("s_lshl_b32 s37, s36, 11"); A(f"s_add_u32 s{S_STR}, s37, {STAT_OFF}")
    A(f"s_lshl_b32 s37, s{GX}, 10"); A(f"s_add_u32 s{S_F3A}, s37, {F3_OFF}")
    A(f"s_and_b32 s57, s{P4_ST}, 1")
    A(f"s_mul_i32 s{S_OHH}, s56, 110592"); A(f"s_add_u32 s{S_OHH}, s{S_OHH}, s{GB}"); A(f"s_add_u32 s{S_OHH}, s{S_OHH}, {HH_OFF()}")
    A(f"s_lshr_b32 s37, s{P4_ST}, 1"); A("s_lshl_b32 s37, s37, 10"); A(f"s_add_u32 s{S_OHH}, s{S_OHH}, s37")
    A("s_cmp_eq_u32 s57, 0"); A("s_cselect_b32 s37, 3072, 8"); A(f"s_cselect_b32 s39, {6*2048}, 0"); A(f"s_cselect_b32 s56, {6*128}, 0"); A(f"s_add_u32 s{S_OH1}, s{S_OHH}, s37")
    A("s_lshl_b32 s37, s57, 10"); A(f"s_add_u32 s{S_OHH}, s{S_OHH}, s37"); A("s_lshl_b32 s36, s57, 11")
    A(f"s_cmp_ge_u32 s{GI}, 28"); A(f"s_cselect_b32 s{S_OH1}, {OOB}, s{S_OH1}"); A(f"s_cmp_ge_u32 s{GI}, 30"); A(f"s_cselect_b32 s33, {OOB}, s{S_OHH}")
    for i in range(3):
        A(f"v_add_u32 {v(P4_LA+i)}, s36, {v(LV)}"); A(f"v_add_u32 {v(P4_LB+i)}, s39, {v(LV)}"); A("s_add_u32 s36, s36, 57344"); A("s_add_u32 s39, s39, 57344")
    A(f"v_add_u32 {v(P4_HV)}, 20480, {v(LV)}")
    A(f"v_lshlrev_b32 {v(P4_SV)}, 8, v2"); A(f"v_lshl_add_u32 {v(P4_SV)}, v3, 3, {v(P4_SV)}")
    A("s_lshl_b32 s36, s57, 7"); A(f"s_add_u32 s36, s36, {CSL}"); A(f"v_lshl_add_u32 {v(P4_CA)}, v2, 4, s36")
    A(f"s_add_u32 s56, s56, {CSL}"); A(f"v_lshl_add_u32 {v(P4_CB)}, v2, 4, s56")
    A(f"v_lshrrev_b32 v2, 3, {v(LANE)}"); A(f"v_and_b32 v3, 7, {v(LANE)}"); A("v_lshlrev_b32 v2, 7, v2"); A(f"v_lshl_add_u32 {v(P4_F3V)}, v3, 3, v2")
    srd(A, SA, 86, 2621440)

COLD = []
def mode_store(A, ins):
    alt, back = A.label("wt"), A.label("wb")
    COLD.append([f"{alt}:"] + [x + " sc1" for x in ins] + [f"s_branch {back}"])
    return [f"s_cbranch_vccz {alt}"] + ins + [f"{back}:"]
def set_mode(A): A(f"s_mov_b32 vcc_lo, s{MODE}"); A("s_mov_b32 vcc_hi, 0")
def red_write(ACC, i, u): return f"ds_write_b128 {v(SK_WR+i-1)}, {v(ACC+20*i+4*u,4)} offset:{1024*u}"
def red_read(ACC, sl): return [f"ds_read_b128 {v(ACC+20+20*sl+4*u,4)}, {v(SK_RD)} offset:{5120*sl+1024*u}" for u in range(5)]

def phase3(A, ST):
    ACC, RES, CSP, AF = 16, P3RES, P3CS, 256+96
    A("s_barrier")
    unpack(A, ACC, RES, 10)
    A(f"v_add_f32 {v(CSP)}, {v(CSP)}, {v(CSP+1)}"); A(f"v_add_f32 {v(CSP+2)}, {v(CSP+2)}, {v(CSP+3)}"); A(f"v_add_f32 {v(CSP)}, {v(CSP)}, {v(CSP+2)}")
    A(f"v_add_u32 v146, {CSL}, v146"); A(f"ds_write_b32 v146, {v(CSP)}")
    A("s_mov_b64 exec, 0xff")
    poll(A, apoll(2, L4V, S_F2P, CFG.get("at2", 1)), [2])
    A("s_mov_b64 exec, -1")
    ST.mark()
    Q = VQ()
    order = (1, 2, 3, 0)
    al = lambda i: ([f"buffer_load_dwordx4 {r(AF+20*((i-1)%4)+4*ks,4)}, {v(LV)}, {S4(SWS)}, s{40+i} offen offset:{1024*ks} sc1" for ks in range(4)] +
                    [f"buffer_load_dwordx2 {r(AF+20*((i-1)%4)+16+2*j,2)}, v252, {S4(SWS)}, s{52+i} offen offset:{512*j} sc1" for j in range(2)])
    UP = CFG.get("p3up", 2)
    for i in order[:UP]: A.ext(Q.add(("a", i), al(i)))
    set_mode(A)
    T = TL(A, Q, [mf16(ACC+20*i+4*u, w3reg(5*ks+u), AF+20*((i-1)%4)+4*ks, "0" if (ks == 0 and i) else None) for i in order for u in range(5) for ks in range(5)])
    for n, i in enumerate(order): T.pre[25*n].append(("wait", ("a", i)))
    T.pre[0].append(ST.mark)
    k = T.spread([(("a", i), x) for i in order[UP:] for x in al(i)], 0, CFG.get("p3as", 2))
    k = T.spread([("w5", x) for f in range(CFG["w5a"], min(CFG["w5b"], 28)) for x in w5load(f)], k+1, 4)
    assert CFG["w5b"] <= 38
    AFR = lambda f: 25*((f-28)//5 + 1)
    for f in range(28, CFG["w5b"]): k = T.spread([("w5", x) for x in w5load(f)], max(k, AFR(f)), 4)
    for n in range(3):
        for u in range(5): T.post[25*n+5*u+13].append((None, red_write(ACC, order[n], u)))
    T.pre[66] += ["s_waitcnt lgkmcnt(1)", "s_barrier"]
    T.spread([(None, x) for x in red_read(ACC, 0) + red_read(ACC, 1)], 66, 2)
    T.pre[88] += ["s_waitcnt lgkmcnt(0)", "s_barrier"]
    T.spread([(None, x) for x in red_read(ACC, 2)], 88, 1)
    T.vspread([f"v_add_f32 {v(ACC+20+i)}, {v(ACC+20+i)}, {v(ACC+40+i)}" for i in range(20)], 88, 100)
    T.emit()
    ST.mark()
    A("s_waitcnt lgkmcnt(0)")
    for i in range(0, 20, 2): A(f"v_pk_add_f32 {v(ACC+20+i,2)}, {v(ACC+20+i,2)}, {v(ACC+60+i,2)}")
    for i in range(0, 20, 2): A(f"v_pk_add_f32 {v(ACC+i,2)}, {v(ACC+i,2)}, {v(ACC+20+i,2)}")
    for i in range(10): A(f"v_cvt_pk_bf16_f32 {v(RES+i)}, {v(ACC+2*i)}, {v(ACC+2*i+1)}")
    A.ext(mode_store(A, io_frag("store", RES, "")))
    sm, sq = 112, 114
    A(f"v_pk_mul_f32 {v(sq,2)}, {v(ACC,2)}, {v(ACC,2)}"); A(f"v_pk_add_f32 {v(sm,2)}, {v(ACC,2)}, {v(ACC+2,2)}")
    for i in range(2, 20, 2):
        A(f"v_pk_fma_f32 {v(sq,2)}, {v(ACC+i,2)}, {v(ACC+i,2)}, {v(sq,2)}")
        if i > 2: A(f"v_pk_add_f32 {v(sm,2)}, {v(sm,2)}, {v(ACC+i,2)}")
    A(f"v_add_f32 {v(sm)}, {v(sm)}, {v(sm+1)}"); A(f"v_add_f32 {v(sm+1)}, {v(sq)}, {v(sq+1)}")
    quad_sum(A, [sm, sm+1], [sq, sq+1])
    A("s_mov_b64 exec, 0xffff"); A.ext(mode_store(A, [f"buffer_store_dwordx2 {v(sm,2)}, {v(P4_SV)}, {S4(SWS)}, s{S_STW} offen"])); A("s_mov_b64 exec, -1")

def phase4(A, ST):
    la, lb, hv, sv, ca, cb = P4_LA, P4_LB, P4_HV, P4_SV, P4_CA, P4_CB
    STT, HR, ACC, WB, CR = 232, 16, 96, 208, 224
    NW, HD = 3, 4
    WR = lambda n: (80 + 8*(n % 4)) if n % 4 < 2 else (WB + 8*(n % 4 - 2))
    U = [(s_, m) for s_ in range(8) for m in range(14)] + ([(s_, m) for m in range(14) for s_ in (8, 9)] if CFG.get("p4tail", 1) else [(s_, m) for s_ in (8, 9) for m in range(14)])
    def reads(n):
        s_, m = U[n]; slot = s_ % 5; j, mat = divmod(m, 2)
        base, off = (la, j*2048) if j < 6 else (lb, 0)
        return [f"ds_read_b128 {v(WR(n)+4*ks,4)}, {v(base+slot//2)} offset:{(slot%2)*28672+off+mat*1024+ks*14336}" for ks in range(2)]
    for n in range(NW): A.ext(reads(n))
    A("s_barrier")
    A("s_waitcnt vmcnt(0)")
    A.ext(mode_store(A, [f"buffer_store_dword {v(ONEV)}, off, {S4(SWS)}, s{S_F3W}"]))
    ST.mark()
    A("s_mov_b64 exec, 0xffff")
    poll(A, [f"buffer_load_dword v2, {v(L4V)}, {S4(SWS)}, s{S_F3P} offen sc1"], [2])
    A("s_mov_b64 exec, -1")
    ST.mark()
    Q = VQ()
    def hl(s_): return [f"buffer_load_dwordx4 {v(HR+16*(s_%HD)+8*n+4*ks,4)}, {v(hv if n else LV)}, {S4(SWS)}, s{S_OH} offen offset:{1024*ks} sc1" for n in range(2) for ks in range(2)] + [f"s_add_u32 s{S_OH}, s{S_OH}, 2048"]
    if CFG.get("p4x"): A(f"s_mov_b32 s95, {OOB}")
    UP = CFG.get("p4up", 2)
    for s_ in range(UP): A.ext(Q.add(("h", s_), hl(s_)))
    f3l = [f"buffer_load_dwordx2 v[2:3], {v(P4_F3V)}, {S4(SWS)}, s{S_F3A} offen sc1"]
    stl = [f"buffer_load_dwordx2 {v(STT+4*n+2*c,2)}, {v(sv)}, {S4(SWS)}, s{S_STR} offen offset:{1024*n+128*c} sc1" for n in range(2) for c in range(2)]
    T = TL(A, Q, [mf16(ACC+8*m+4*nn, WR(n)+4*ks, HR+16*(s_ % HD)+8*nn+4*ks, "0" if (s_ == 0 and ks == 0) else None)
                  for n, (s_, m) in enumerate(U) for nn in ((1, 0) if (s_ == 9 and CFG.get("p4tail", 1)) else (0, 1)) for ks in range(2)])
    MS = 6
    lq = [0, 0, 1, 1, 2, 2]; fm = []
    for n in range(140):
        s_, m = U[n]
        need = [i for i, x in enumerate(lq) if x == n or x == ("c", n)]
        T.pre[4*n].append(f"s_waitcnt lgkmcnt({len(lq)-1-max(need)})")
        if m == 0: T.pre[4*n].append(("wait", ("h", s_)))
        if m == 11 and s_ < (8 if CFG.get("p4tail", 1) else 9):
            if s_+1 >= 3: T.pre[4*n].append(("wait", ("w", s_+1 + (s_ == 7 and CFG.get("p4tail", 1)))))
            T.pre[4*n].append("s_barrier")
        e2 = n + 2 - 14*MS
        if 0 <= e2 < 28 and e2 % 2 == 0:
            e = e2//2; mu = (2*e + 6 + (e >= 7)) % 14; j, mat = divmod(mu, 2)
            T.post[4*n].append((None, f"ds_read_b128 {v(CR+4*(e&1),4)}, {v(ca if j < 6 else cb)} offset:{(128*j if j < 6 else 0)+64*mat}")); lq.append(("c", n+2))
            fm.append((4*(n+2), [f"v_fmac_f32 {v(ACC+8*mu+i)}, {v(CR+4*(e&1)+i%4)}, {v(STT+4*(i//4))}" for i in range(8)]))
        if n+NW < 140:
            for j, x in enumerate(reads(n+NW)): T.post[4*n+j+1].append((None, x))
            lq += [n+NW, n+NW]
    T.pre[0].append(ST.mark)
    for s_ in P4ST(): T.pre[56*s_].insert(0, ST.mark)
    w5 = list(range(CFG["w5b"], 64)); LAST = CFG.get("p4last", 9.0)
    base = {s_: [] for s_ in range(10)}
    for s_ in range(UP, 10): base[max(0, s_-HD+1)] += [(("h", s_), x) for x in hl(s_)]
    for s_ in range(3, 10): base[s_-3] += [(("w", s_), x) for x in p4_dma(s_)]
    base[1] += [("st", x) for x in stl]; base[4] += [("f3", x) for x in f3l]
    cnt = lambda L: sum(1 for t, x in L if not is_salu(x)); kk = 0
    for s_ in range(10):
        span = min(1.0, LAST - s_)
        if span > 0:
            later = sum(cnt(base[j]) for j in range(s_, 10)) + len(w5)
            for _ in range(min(len(w5), max(0, math.ceil(later*span/(LAST-s_)) - cnt(base[s_])))): base[s_] += [("w5", x) for x in w5load(w5.pop(0))]
        px = CFG.get("p4x", "")
        if "oob" in px: base[s_] = [(t, _re.sub(r"s\d+ offen", "s95 offen", x) if (t == "w5" or t[0] == "w") else x) for t, x in base[s_]]
        if "drop" in px: base[s_] = [(t, x) for t, x in base[s_] if t != "w5"]
        if base[s_]: kk = T.spread(base[s_], max(56*s_+3, kk+2), (56*span-5)/cnt(base[s_]))
    assert not w5
    for k0, ops in fm: T.vspread(ops, k0, k0+8)
    B = Asm()
    for n in range(2):
        for i in range(2): B(f"v_add_f32 {v(STT+4*n+i)}, {v(STT+4*n+i)}, {v(STT+4*n+2+i)}")
    quad_sum(B, [STT, STT+1, STT+4, STT+5], [STT+2, STT+3, STT+6, STT+7])
    for n in range(2):
        nm, r2 = STT+4*n, STT+4*n+2
        B(f"v_mul_f32 {v(nm)}, {hex(f2u(-1/640))}, {v(nm)}"); B(f"v_mul_f32 {v(r2)}, {hex(f2u(1/640))}, {v(nm+1)}")
        B(f"v_fma_f32 {v(r2)}, -{v(nm)}, {v(nm)}, {v(r2)}"); B(f"v_max_f32 {v(r2)}, 0, {v(r2)}"); B(f"v_add_f32 {v(r2)}, {hex(f2u(1e-5))}, {v(r2)}"); B(f"v_rcp_f32 {v(r2)}, {v(r2)}")
    T.pre[56*4].append(("wait", "st"))
    k = 56*4
    for x in (x.strip() for x in B.L if "s_nop" not in x):
        while T.cost(k) > 4: k += 1
        T.valu[k].append(x); k += 2
    assert k <= 56*6
    T.pre[56*8] += [("wait", "f3"), "v_min_u32 v2, v2, v3", "v_cmp_eq_u32 vcc, 0, v2", "s_nop 1", f"s_cbranch_vccnz {K}_f3spin", f"{K}_f3ok:", lambda: set_mode(A)]
    T.vspread([f"v_add_u32 {v(hv)}, 55296, {v(LV)}"], 56*8+1, 56*8+5)
    COLD.append(lambda: (A(f"{K}_f3spin:"), poll(A, f3l, [2, 3], sleep=4), A(f"s_branch {K}_f3ok")))
    OB = 48
    def strip(j, n, pk):
        r2 = STT+4*n+2; o = OB + 8*((j >> 1) % 2) + 4*n + 2*(j & 1); g, u = ACC+16*j+4*n, ACC+16*j+8+4*n
        if pk: L = [f"v_pk_mul_f32 {v(g+i,2)}, {v(g+i,2)}, {v(r2,2)} op_sel_hi:[1,0]" for i in (0, 2)] + [f"v_pk_mul_f32 {v(g+i,2)}, {v(g+i,2)}, {v(u+i,2)}" for i in (0, 2)]
        else: L = [f"v_mul_f32 {v(g+i)}, {v(g+i)}, {v(r2)}" for i in range(4)] + [f"v_mul_f32 {v(g+i)}, {v(g+i)}, {v(u+i)}" for i in range(4)]
        return L + [f"v_cvt_pk_bf16_f32 {v(o+i)}, {v(g+2*i)}, {v(g+2*i+1)}" for i in range(2)]
    def hst(a_): return [f"buffer_store_dwordx{4 if a_ < 3 else 2} {v(OB+8*(a_%2)+4*n, 4 if a_ < 3 else 2)}, {v(hv if n else LV)}, {S4(SWS)}, s{33 if a_ == 0 else S_OHH if a_ < 3 else S_OH1} offen" + (f" offset:{1024*a_}" if a_ < 3 else "") for n in range(2)]
    NI = CFG.get("p4ni", 6 if CFG.get("p4tail", 1) else 4); k = 0
    for j in range(NI):
        k0 = max(k, (56*8 + 16*(j+1) + 3) if CFG.get("p4tail", 1) else (56*9 + 8*(j+1) + 5))
        a0, a1 = strip(j, 1, False), strip(j, 0, False)
        k = T.vspread(a0[:4] + a1[:4] + a0[4:] + a1[4:], k0, min(k0+12, 560), cap=CFG.get("p4cap", 2))
        if j & 1 and k < 560:
            st_ = hst(j >> 1); T.post[k].append((None, (lambda st_=st_: (A.ext(mode_store(A, st_)), Q.add("hh", st_)))))
    stored = [j >> 1 for j in range(NI) if j & 1]
    if NI and NI % 2 == 0 and k >= 560: stored.pop()
    T.emit()
    ST.mark()
    for a_ in range(4):
        for j in ([2*a_, 2*a_+1] if a_ < 3 else [6]):
            if j >= NI:
                a0, a1 = strip(j, 1, True), strip(j, 0, True)
                A.ext(a0[:2] + a1[:2] + (["s_nop 1"] if j == NI else []) + a0[2:] + a1[2:])
        if a_ not in stored: A.ext(mode_store(A, hst(a_))); Q.add("hh", hst(a_))
    for f in range(64, 70): A.ext(Q.add("w5", w5load(f)))
    return Q

def phase5(A, ST, Q):
    ACC, AF, RES = 16, 96, 232
    A.ext(Q.add("res", io_frag("load", 4, "sc1")))
    A(f"v_add_u32 v14, s92, {v(LV)}")
    A(f"v_lshrrev_b32 v15, 4, {v(LANE)}"); A(f"v_mul_u32_u24 v15, 64, v15"); A(f"v_add_u32 v15, v15, {v(L4V)}")
    A("s_barrier")
    A.ext(Q.wait("hh"))
    A.ext(mode_store(A, [f"buffer_store_dword v240, off, {S4(SWS)}, s{S_F4W}"]))
    ST.mark()
    A("s_waitcnt vmcnt(1)"); unpack(A, ACC, 4, 10)
    A("s_mov_b32 exec_hi, 0")
    poll(A, [f"buffer_load_dword v2, v15, {S4(SWS)}, s{S_F4P} offen sc1"], [2])
    A("s_mov_b64 exec, -1")
    ST.mark()
    Q = VQ()
    order = (1, 2, 3, 0)
    def al(n, ks):
        i = order[n]
        L = [f"buffer_load_dwordx4 {v(AF+56*(n&1)+4*ks,4)}, {v(14 if ks == 13 else LV)}, {S4(SWS)}, s{S_A5+i} offen offset:{1024*(ks&3)} sc1"]
        if ks & 3 == 3: L.append(f"s_add_u32 s{S_A5+i}, s{S_A5+i}, 4096")
        return L
    UP = CFG.get("p5up", 8); STEP = CFG.get("p5st", 4)
    for ks in range(UP): A.ext(Q.add((0, ks), al(0, ks)))
    T = TL(A, Q, [mf16(ACC+20*i+4*u, w5reg(5*ks+u), AF+56*(n&1)+4*ks, "0" if (ks == 0 and i) else None)
                  for n, i in enumerate(order) for kp in range(7) for u in range(5) for ks in (2*kp, 2*kp+1)])
    k = 0
    for g in range(UP, 56):
        n, ks = divmod(g, 14)
        if n >= 2: k = max(k, 70*(n-2) + 10*(ks//2+1) - 1)
        assert k < 70*n + 10*(ks//2)
        k = T.spread([((n, ks), x) for x in al(n, ks)], k, STEP)
    for n in range(4):
        for kp in range(7): T.pre[70*n+10*kp].append(("wait", (n, 2*kp+1)))
    T.pre[0].append(ST.mark)
    for n in range(3):
        for u in range(5): T.post[70*(n+1)+2+5*u].append((None, red_write(ACC, order[n], u)))
    if CFG.get("wb"):
        def wb():
            lab = A.label("nowb"); A(f"s_or_b32 s36, s{W}, s{GI}"); A(f"s_cbranch_scc1 {lab}"); A("buffer_wbl2 sc1"); A(f"{lab}:")
        T.pre[CFG["wb"]].append(wb)
    T.pre[237] += ["s_waitcnt lgkmcnt(0)", "s_barrier"]
    T.spread([(None, x) for sl in range(3) for x in red_read(ACC, sl)], 237, 1)
    T.pre[254].append("s_waitcnt lgkmcnt(5)"); T.vspread([f"v_add_f32 {v(ACC+20+i)}, {v(ACC+20+i)}, {v(ACC+40+i)}" for i in range(20)], 254, 266)
    T.pre[266].append("s_waitcnt lgkmcnt(0)"); T.vspread([f"v_add_f32 {v(ACC+20+i)}, {v(ACC+20+i)}, {v(ACC+60+i)}" for i in range(20)], 266, 280)
    T.emit()
    ST.mark()
    A("s_nop 1")
    for i in range(0, 20, 2): A(f"v_pk_add_f32 {v(ACC+i,2)}, {v(ACC+i,2)}, {v(ACC+20+i,2)}")
    for i in range(10): A(f"v_cvt_pk_bf16_f32 {v(RES+i)}, {v(ACC+2*i)}, {v(ACC+2*i+1)}")
    A.ext([x + " " + CFG.get("ost", "") for x in io_rm("store", RES, SA)])

def build(**cfg):
    CFG.update(cfg)
    A = Asm(); ST = Stamps(A)
    kstart(A, K)
    if CFG.get("empty"): A("s_endpgm")
    ST.mark()
    if CFG.get("probe"):
        off, base = {"bx": (24, 0), "ws": (72, 40 << 20), "out": (56, 0), "wd": (48, 0)}[CFG["probe"]]
        A(f"s_load_dwordx2 s[4:5], s[0:1], {off}"); A("s_waitcnt lgkmcnt(0)"); A(f"s_mov_b32 s6, {base + (2<<20)}"); A("s_mov_b32 s7, 0x20000")
        A("s_and_b32 s8, s2, 255"); A("s_lshl_b32 s8, s8, 9"); A(f"s_add_u32 s8, s8, {base}"); A("v_lshrrev_b32 v2, 6, v0"); A("v_lshlrev_b32 v2, 7, v2")
        for i in range(16):
            A("buffer_load_dword v3, v2, s[4:7], s8 offen"); A("s_waitcnt vmcnt(0)"); A("s_add_u32 s8, s8, 131072")
    COLD.clear(); phase1(A, ST)
    cold = phase2(A, ST)
    phase3(A, ST); phase5(A, ST, phase4(A, ST))
    ST.flush()
    A("s_endpgm")
    cold()
    for c in COLD: c() if callable(c) else A.ext(c)
    A(f"{K}_end:")
    A("s_endpgm")
    kdesc(A, K, 512, acc=256)
    head = open(f"cdna_kernels/{NAME}.s.ref").read().split("; Override launch")[0]
    head += "; @launch grid=(256,1,1) block=(256,1,1) lds=163840\n"
    return head + '.amdgcn_target "amdgcn-amd-amdhsa--gfx950"\n' + A.text()

if __name__ == "__main__":
    out = sys.argv[1] if len(sys.argv) > 1 else f"cdna_kernels/{NAME}.s"
    cfg = {}
    for x in sys.argv[2:]:
        k, val = x.split("=")
        cfg[k] = int(val) if val.lstrip("-").isdigit() else float(val) if val.replace(".", "", 1).isdigit() else val
    txt = build(**cfg)
    names = STAMP_NAMES[:3] + [f"p1 kstep {g}" for g in P1ST()] + STAMP_NAMES[3:8] + [f"att body {b}" for b in ASTAMPS()] + STAMP_NAMES[8:16] + [f"p4 stage {b}" for b in P4ST()] + STAMP_NAMES[16:]
    if CFG["stamps"]: txt = txt.replace(".amdgcn_target", "; STAMPS " + "|".join(names) + "\n.amdgcn_target", 1)
    open(out, "w").write(txt)
```

```python
import sys, math, struct, re as _re
from dsl import *

NAME = "sequential_preLN__softmax_full_mha__glu_gated_bilinear__prompt"
K = NAME + "_kernel"
GS = 1310720
K_OFF, V_OFF, O_OFF = 327680, 655360, 983040
OX_OFF = O_OFF + 262144
def H_OFF(): return 8*GS if CFG.get("sep") else 0
def HH_OFF(): return H_OFF() + 327680
WGU_OFF = 20971520
WD_OFF = WGU_OFF + 4423680
WO_OFF = WD_OFF + 2211840
CS_OFF = WO_OFF + 819200
STAT_OFF = CS_OFF + 65536
RS_OFF = STAT_OFF + 131072
C1_OFF = RS_OFF + 16384
F2_OFF = C1_OFF + 8192
F3_OFF = F2_OFF + 128*128
F4_OFF = F3_OFF + 64*128
FR_OFF = F4_OFF + 64*128
F1_OFF = FR_OFF + 256*128
HF_OFF = F1_OFF + 384*128
ONES_OFF = HF_OFF + 64*128
STAMP_OFF = 29360128
WS_SIZE = 33554432
OOB = 0x40000000
SPIN = 200000
assert ONES_OFF + 128*2560 < STAMP_OFF and STAT_OFF % 128 == 0
def f2u(x): return struct.unpack("<I", struct.pack("<f", x))[0]
QSCALE = f2u(20**-0.5 * math.log2(math.e))
assert all((u*(65536//54+1)) >> 16 == u//54 for u in range(162)) and all((u*6554) >> 16 == u//10 for u in range(100))
assert all((f*3277) >> 16 == f//20 for f in range(640))
assert all((e*3277) >> 16 == e//20 for e in range(320))
CFG = dict(stamps=False, w5z=16, w5a=16, w5b=36, p4last=9.6, ht=0, ht1=0, b0=3, rsp=1, b1=12, rss=3, pfe=57, wb=206, touch="48:s,52:h", p4t="", at1=0, f1b=1, fpos=1)
STAMP_NAMES = ["start", "p1 first dma issued", "p1 stage0 landed", "p1 loop end", "p1 stores issued", "p1 flag set", "F1 seen", "att loop start", "att loop end",
               "O published", "F2 seen", "p3 first act", "p3 mfma end", "H published", "F3 seen", "p4 first h", "p4 loop end", "HH published", "F4 seen", "p5 first act", "p5 mfma end", "end"]

W, SWS, SX, SA, SR = 3, 4, 8, 12, 16
GX, GI, MODE, MYF, GB = 24, 25, 26, 27, 23
LANE, LV = 1, 253
PCV = 247
CODE_TOUCH = f"global_load_dword v248, v{PCV}, s[20:21] sc1"
def S4(b): return f"s[{b}:{b+3}]"

def ASTAMPS(): return [int(x) for x in str(CFG.get("astamp", "")).split(",") if x]
def P1ST(): return [int(x) for x in str(CFG.get("p1st", "")).split(",") if x]
def P4ST(): return [int(x) for x in str(CFG.get("p4st", "")).split(",") if x]
class Stamps:
    def __init__(self, A): self.A, self.n = A, 0
    def mark(self, at=None):
        A = self.A; i = self.n if at is None else at
        if CFG.get("pad"):
            pi, pt = map(int, CFG["pad"].split(":"))
            if i == 0: A("s_memrealtime s[96:97]")
            if i == pi:
                lab = A.label("pad")
                if "padwg" in CFG: A(f"s_cmp_lg_u32 s2, {CFG['padwg']}"); A(f"s_cbranch_scc1 {lab}x")
                A("s_waitcnt lgkmcnt(0)"); A(f"s_add_u32 s95, s96, {pt*100}"); A(f"{lab}:"); A("s_memrealtime s[98:99]"); A("s_waitcnt lgkmcnt(0)")
                A("s_sub_u32 s98, s98, s95"); A("s_cmp_lt_i32 s98, 0"); A(f"s_cbranch_scc1 {lab}"); A(f"{lab}x:")
            if at is None: self.n += 1
            return
        if not CFG["stamps"]: return
        if i:
            A("s_waitcnt lgkmcnt(0)"); A(f"v_writelane_b32 v254, s96, {i-1}"); A(f"v_writelane_b32 v255, s98, {i-1}")
        A("s_memrealtime s[96:97]"); A("s_memtime s[98:99]")
        if at is None: self.n += 1
    def flush(self):
        if CFG.get("pad"): self.A("s_waitcnt vmcnt(0)"); self.mark(); return
        if not CFG["stamps"]: return
        A = self.A
        A("s_waitcnt vmcnt(0)"); self.mark(); self.mark(); n = self.n - 1
        A(f"v_writelane_b32 v254, s{MODE}, 30"); A(f"v_writelane_b32 v254, s{MYF}, 31")
        A(f"s_lshl_b32 s95, s2, 2"); A(f"s_add_u32 s95, s95, s{W}"); A("s_lshl_b32 s95, s95, 8"); A(f"s_add_u32 s95, s95, {STAMP_OFF}")
        A("s_mov_b64 exec, -1"); A(f"v_lshlrev_b32 v0, 2, {v(LANE)}"); A(f"s_mov_b32 exec_lo, {(1 << n) - 1 + (3 << 30)}"); A("s_mov_b32 exec_hi, 0")
        A(f"buffer_store_dword v254, v0, {S4(SWS)}, s95 offen"); A(f"buffer_store_dword v255, v0, {S4(SWS)}, s95 offen offset:128")

def swap01(A, dst, src, t):
    A(f"v_and_b32 {v(t)}, 1, {v(src)}"); A(f"v_lshlrev_b32 {v(t)}, 1, {v(t)}")
    A(f"v_bfe_u32 {v(dst)}, {v(src)}, 1, 1"); A(f"v_or_b32 {v(t)}, {v(t)}, {v(dst)}")
    A(f"v_and_b32 {v(dst)}, 4, {v(src)}"); A(f"v_or_b32 {v(dst)}, {v(dst)}, {v(t)}")

def make_sel(A, sel, t):
    A(f"v_lshrrev_b32 {v(t)}, 2, {v(LANE)}"); A(f"v_lshrrev_b32 {v(sel)}, 4, {v(LANE)}")
    A(f"v_xor_b32 {v(t)}, {v(t)}, {v(sel)}"); A(f"v_and_b32 {v(t)}, 1, {v(t)}")
    A(f"v_add_u32 {v(t)}, -1, {v(t)}")
    A(f"v_and_b32 {v(sel)}, 0x3f803f80, {v(t)}")
    for i in range(1, 4): A(f"v_mov_b32 {v(sel+i)}, {v(sel)}")

def poll(A, loads, regs, sleep=0, cnt=58, post=()):
    top, out = A.label("poll"), A.label("pollout")
    A(f"s_mov_b32 s{cnt}, {SPIN}")
    A(f"{top}:")
    A.ext(loads); A("s_waitcnt vmcnt(0)"); A.ext(post)
    for x in regs[1:]: A(f"v_min_u32 {v(regs[0])}, {v(regs[0])}, {v(x)}")
    A(f"v_cmp_eq_u32 vcc, 0, {v(regs[0])}")
    A(f"s_sub_u32 s{cnt}, s{cnt}, 1"); A(f"s_cbranch_scc1 {out}")
    if sleep:
        A(f"s_cbranch_vccz {out}"); A(f"s_sleep {sleep}"); A(f"s_branch {top}")
    else: A(f"s_cbranch_vccnz {top}")
    A(f"{out}:")

def apoll(d, va, so, atomic):
    if atomic: return [f"v_mov_b32 {v(d)}, 0", f"buffer_atomic_or {v(d)}, {v(va)}, {S4(SWS)}, s{so} offen sc0 sc1"]
    return [f"buffer_load_dword {v(d)}, {v(va)}, {S4(SWS)}, s{so} offen sc1"]
def publish(A, stores, mid, flag, local=True):
    if not local:
        A.ext(stores("sc1")); A.ext(mid); A.ext(flag("sc1")); return
    slow, done = A.label("st_slow"), A.label("st_done")
    A(f"s_cmp_eq_u32 s{MODE}, 0"); A(f"s_cbranch_scc1 {slow}")
    A.ext(stores("")); A.ext(mid); A.ext(flag("")); A(f"s_branch {done}")
    A(f"{slow}:")
    A.ext(stores("sc1")); A.ext(mid); A.ext(flag("sc1"))
    A(f"{done}:")

RSO, RA, RBA, RDS, RDH, RDAH, RCS, RLDS = 64, 65, 66, 67, 68, 69, 70, 71
RLV, RLT, RLC, RLO, RLF = 201, 202, 204, 212, 216
STG = 86016
def relayout_setup(A):
    t0, t1 = 2, 3
    two, none, done = A.label("rl2"), A.label("rl0"), A.label("rl_set")
    A(f"s_mul_i32 s{RLDS}, s{W}, 10240"); A(f"s_add_u32 s{RLDS}, s{RLDS}, {STG}")
    A(f"v_lshrrev_b32 {v(t0)}, 4, {v(LANE)}"); A(f"v_bfe_u32 {v(t1)}, {v(LANE)}, 2, 2"); A(f"v_lshl_add_u32 {v(t0)}, {v(t0)}, 3, {v(t1)}")
    A(f"v_and_b32 {v(t1)}, 3, {v(LANE)}"); A(f"v_lshlrev_b32 {v(t1)}, 4, {v(t1)}")
    A(f"v_lshl_add_u32 {v(t0)}, {v(t0)}, 6, {v(t1)}"); A(f"v_add_u32 {v(RLT)}, s{RLDS}, {v(t0)}")
    A(f"v_and_b32 {v(RLT+1)}, 15, {v(LANE)}"); A(f"v_lshlrev_b32 {v(RLT+1)}, 2, {v(RLT+1)}")
    for i in range(4): A(f"v_mov_b32 {v(RLO+i)}, 0x3f803f80")
    A(f"v_lshrrev_b32 {v(t0)}, 2, {v(LANE)}")
    A(f"s_mov_b32 s{RCS}, {OOB}"); A(f"s_mov_b32 s{SR+3}, 0x20000")
    A("s_cmp_ge_u32 s2, 108"); A(f"s_cbranch_scc1 {two}")
    A(f"s_bitcmp1_b32 s{W}, 0"); A(f"s_cselect_b64 s[{SR}:{SR+1}], s[82:83], s[80:81]"); A(f"s_mov_b32 s{SR+2}, 2211840")
    A(f"s_mul_i32 s37, s2, {(65536+26)//27}"); A("s_lshr_b32 s37, s37, 16")
    A("s_mul_i32 s38, s37, 27"); A("s_sub_u32 s38, s2, s38"); A("s_lshl_b32 s38, s38, 1"); A(f"s_lshr_b32 s39, s{W}, 1"); A("s_add_u32 s38, s38, s39")
    A(f"s_mul_i32 s{RSO}, s37, {160*3456}"); A("s_lshl_b32 s39, s38, 6"); A(f"s_add_u32 s{RSO}, s{RSO}, s39")
    A(f"s_mov_b32 s{RA}, {16*3456}"); A(f"s_mov_b32 s{RBA}, {16*3456}"); A(f"s_mov_b32 s{RDH}, 2048"); A(f"s_mov_b32 s{RDAH}, {221184-2048}")
    A(f"s_and_b32 s39, s{W}, 1"); A("s_lshl_b32 s38, s38, 2"); A("s_add_u32 s38, s38, s39")
    A(f"s_mul_i32 s{RDS}, s37, {5*221184}"); A("s_lshl_b32 s39, s38, 10"); A(f"s_add_u32 s{RDS}, s{RDS}, s39"); A(f"s_add_u32 s{RDS}, s{RDS}, {WGU_OFF}")
    A(f"s_mul_i32 s{RCS}, s37, {108*128}"); A("s_lshl_b32 s39, s38, 6"); A(f"s_add_u32 s{RCS}, s{RCS}, s39"); A(f"s_add_u32 s{RCS}, s{RCS}, {CS_OFF}")
    A(f"v_mul_u32_u24 {v(t0)}, 3456, {v(t0)}")
    A(f"s_branch {done}")
    A(f"{two}:")
    A("s_sub_u32 s37, s2, 108"); A(f"s_mov_b32 s{RDH}, 1024"); A(f"s_mov_b32 s{RDAH}, 1024")
    A(f"s_mul_i32 s{RDS}, s37, 40960"); A(f"s_mul_i32 s39, s{W}, 10240"); A(f"s_add_u32 s{RDS}, s{RDS}, s39"); A(f"s_add_u32 s{RDS}, s{RDS}, {WD_OFF}")
    A(f"s_mov_b64 s[{SR}:{SR+1}], s[84:85]"); A(f"s_mov_b32 s{SR+2}, 2211840"); A(f"s_lshl_b32 s{RSO}, s37, 5"); A(f"s_mov_b32 s{RA}, 16")
    A("s_cmp_lt_u32 s37, 54"); A(f"s_cbranch_scc1 {none}")
    A(f"s_mov_b64 s[{SR}:{SR+1}], s[88:89]"); A("s_cmp_lt_u32 s37, 74"); A(f"s_cselect_b32 s{RDS}, s{RDS}, {OOB}"); A(f"s_cselect_b32 s{SR+2}, 819200, 0")
    A("s_sub_u32 s37, s37, 54"); A(f"s_mul_i32 s{RSO}, s37, 40"); A("s_mul_i32 s39, s37, 160"); A(f"s_sub_u32 s39, s39, {16*160-16}")
    A("s_cmp_ge_u32 s37, 16"); A(f"s_cselect_b32 s{RSO}, s39, s{RSO}"); A(f"s_cselect_b32 s{RA}, 80, 20"); A("s_cselect_b32 s38, 16, 0")
    A(f"v_lshrrev_b32 v4, 4, {v(LANE)}"); A(f"v_mad_u32_u24 {v(t0)}, v4, s38, {v(t0)}")
    A(f"{none}:")
    A(f"s_mul_i32 s{RSO}, s{RSO}, 1280"); A(f"s_mul_i32 s39, s{W}, 320"); A(f"s_add_u32 s{RSO}, s{RSO}, s39"); A(f"s_mul_i32 s{RA}, s{RA}, 1280"); A(f"s_sub_u32 s{RBA}, 64, s{RA}")
    A(f"v_mul_u32_u24 {v(t0)}, 1280, {v(t0)}")
    A(f"{done}:")
    A(f"v_add_u32 {v(RLV)}, {v(t0)}, {v(t1)}")
def rl_dma(i):
    return [f"s_add_u32 m0, s{RLDS}, {i*1024}", f"s_add_u32 s{RSO}, s{RSO}, {'0' if i == 0 else 's%d' % (RA if i & 1 else RBA)}",
            f"buffer_load_dwordx4 {v(RLV)}, {S4(SR)}, s{RSO} offen lds"]
def rl_read(a_, hf): return [f"ds_read_b64_tr_b16 {v(RLF+8*(a_&1)+4*hf+2*q,2)}, {v(RLT)} offset:{2048*a_+256*q+8*hf}" for q in range(2)]
def rl_sum(a_, hf): return mf16(RLC+4*hf, RLO, RLF+8*(a_&1)+4*hf, "0" if a_ == 0 else None)
def rl_store(a_, hf): return [f"buffer_store_dwordx4 {v(RLF+8*(a_&1)+4*hf,4)}, {v(LV)}, {S4(SWS)}, s{RDS} offen sc1", f"s_add_u32 s{RDS}, s{RDS}, s{RDAH if hf else RDH}"]
def rl_cs(hf): return [f"buffer_store_dword {v(RLC+4*hf)}, {v(RLT+1)}, {S4(SWS)}, s{RCS} offen offset:{128*hf} sc1"]


TV = 249
SD = 52
def phase1(A, ST):
    rt, ct, wm, wn = 28, 30, 56, 57
    sox, sow, m0x, m0w, sst, srs = 29, 91, 32, 35, 80, 84
    srr, sqs, sc1_ = 85, 88, 89
    t0, t1, t2, t3, nn, qq = 2, 3, 4, 5, 6, 7
    dmx, dmw, xa, wa, sa, rv, cv = 12, 16, 22, 24, 26, 30, 31
    CS, ACC, RS, OB = 32, 56, 148, 180
    FR = 256
    SL = 36864
    A("s_cmp_ge_u32 s2, 256"); A(f"s_cbranch_scc1 {K}_end")
    A("s_load_dwordx4 s[36:39], s[0:1], 0"); A("s_load_dwordx4 s[52:55], s[0:1], 64"); A("s_load_dwordx8 s[80:87], s[0:1], 32"); A("s_load_dwordx2 s[88:89], s[0:1], 16")
    A(f"v_lshrrev_b32 {v(t0)}, 6, v0"); A(f"v_and_b32 {v(LANE)}, 63, v0")
    A(f"v_readfirstlane_b32 s{W}, {v(t0)}")
    A(f"s_and_b32 s{GX}, s2, 7"); A(f"s_lshr_b32 s{GI}, s2, 3")
    A("s_getpc_b64 s[20:21]"); A(f"{K}_pc:")
    A(f"s_lshl_b32 s58, s{GI}, 2"); A(f"s_add_u32 s58, s58, s{W}"); A("s_lshl_b32 s58, s58, 7")
    A(f"v_and_b32 {v(PCV)}, 7, {v(LANE)}"); A(f"v_lshlrev_b32 {v(PCV)}, 14, {v(PCV)}"); A(f"v_add_u32 {v(PCV)}, s58, {v(PCV)}")
    A(f"v_min_u32 {v(PCV)}, {K}_end-{K}_pc, {v(PCV)}")
    A(CODE_TOUCH)
    A(f"v_lshrrev_b32 {v(qq)}, 4, {v(LANE)}"); A(f"v_and_b32 {v(nn)}, 15, {v(LANE)}")
    A("s_cmp_ge_u32 s2, 192"); A(f"s_cbranch_scc1 {K}_help")
    def tile_ids():
        A(f"s_lshr_b32 s56, s{GX}, 2"); A(f"s_mul_i32 s{ct}, s56, 6"); A(f"s_lshr_b32 s57, s{GI}, 2"); A(f"s_add_u32 s{ct}, s{ct}, s57")
        A(f"s_and_b32 s57, s{GI}, 3"); A(f"s_and_b32 s56, s{GX}, 3"); A("s_lshl_b32 s56, s56, 2"); A(f"s_add_u32 s{rt}, s56, s57")
    tile_ids()
    A(f"v_and_b32 {v(t1)}, 7, {v(LANE)}"); A(f"v_xor_b32 {v(t1)}, {v(t1)}, {v(qq)}"); A(f"v_lshlrev_b32 {v(t1)}, 4, {v(t1)}")
    A(f"v_lshrrev_b32 {v(t2)}, 3, {v(LANE)}"); A(f"v_mul_u32_u24 {v(t2)}, 1280, {v(t2)}")
    A(f"v_add_u32 {v(dmx)}, {v(t1)}, {v(t2)}")
    A(f"v_xor_b32 {v(t1)}, 64, {v(t1)}"); A(f"v_add_u32 {v(t1)}, {v(t1)}, {v(t2)}"); A(f"v_add_u32 {v(dmx+1)}, 9216, {v(t1)}")
    A(f"v_add_u32 {v(dmx+2)}, {2*9216}, {v(dmx)}"); A(f"v_add_u32 {v(dmx+3)}, {2*9216}, {v(dmx+1)}")
    for i in range(5):
        A(f"v_add_u32 {v(t0)}, {64*i}, {v(LANE)}"); A(f"v_mul_u32_u24 {v(t1)}, 3277, {v(t0)}"); A(f"v_lshrrev_b32 {v(t1)}, 16, {v(t1)}")
        A(f"v_mul_u32_u24 {v(t2)}, 20, {v(t1)}"); A(f"v_sub_u32 {v(t0)}, {v(t0)}, {v(t2)}")
        if i == 2: A(f"v_lshrrev_b32 {v(t2)}, 2, {v(t1)}"); A(f"v_and_b32 {v(t2)}, 2, {v(t2)}"); A(f"v_xor_b32 {v(t0)}, {v(t0)}, {v(t2)}")
        elif i > 2: A(f"v_xor_b32 {v(t0)}, 2, {v(t0)}")
        A(f"v_mul_u32_u24 {v(t1)}, 3840, {v(t1)}"); A(f"v_lshl_add_u32 {v(dmw+i)}, {v(t0)}, 4, {v(t1)}")
        if i & 3: A(f"v_subrev_u32 {v(dmw+i)}, {1024*i}, {v(dmw+i)}")
    A(f"s_lshl_b32 s56, s{rt}, 2"); A(f"s_add_u32 s56, s56, s{W}"); A(f"s_mul_i32 s{sox}, s56, {32*1280}")
    A(f"s_mul_i32 s{sow}, s{W}, {16*3840}"); A(f"s_mul_i32 s57, s{ct}, 320"); A(f"s_add_u32 s{sow}, s{sow}, s57")
    A(f"s_lshl_b32 s{m0x}, s{W}, 12"); A(f"s_mul_i32 s{m0w}, s{W}, 5120")
    A("s_waitcnt lgkmcnt(0)")
    srd(A, SX, 36, 2621440); srd(A, SA, 38, 2457600)
    def dma(stage):
        o = (stage % 4)*SL
        dx = lambda b: f"buffer_load_dwordx4 {v(dmx+b)}, {S4(SX)}, s{sox} offen offset:{b*1024} lds"
        dw = lambda b: f"buffer_load_dwordx4 {v(dmw+b)}, {S4(SA)}, s{sow} offen offset:{(b&3)*1024} lds"
        return ([f"s_add_u32 m0, s{m0x}, {o}", f"s_add_u32 s{sow}, s{sow}, {64*3840 if stage else 0}"] + [dx(b) for b in range(4)] +
                [f"s_add_u32 m0, s{m0w}, {o+16384}", f"s_add_u32 s{sox}, s{sox}, 128"] + [dw(b) for b in range(4)] + [f"s_add_u32 m0, s{m0w}, {o+20480}", "s_nop 0", dw(4)])
    A.ext(dma(0))
    def common():
        srd(A, SWS, 54, WS_SIZE)
        A(f"s_mov_b32 s{SD+2}, 256"); A(f"s_mov_b32 s{SD+3}, 0x20000")
        A(f"v_lshlrev_b32 {v(TV)}, 7, {v(LANE)}"); A(f"v_lshlrev_b32 {v(LV)}, 4, {v(LANE)}"); A(f"v_lshlrev_b32 {v(L4V)}, 2, {v(LANE)}")
        A(f"v_add_u32 v54, {HF_OFF}, {v(TV)}")
        A(f"s_mul_i32 s{GB}, s{GX}, {GS}"); A(f"s_cmp_eq_u32 s{W}, 0"); A(f"s_cselect_b32 s22, 0, {OOB}")
        A(f"s_getreg_b32 s{MYF}, hwreg(HW_REG_XCC_ID, 0, 4)"); A(f"s_add_u32 s{MYF}, s{MYF}, 1")
    common()
    ST.mark()
    ES = CFG.get("es", 0)
    if ES: att_setup(A); tile_ids()
    else: sst, srs, srr, sqs, sc1_ = 46, 59, 43, 42, 44
    A(f"s_and_b32 s{wm}, s{W}, 1"); A(f"s_lshr_b32 s{wn}, s{W}, 1")
    nn, qq = 52, 53
    A(f"v_lshrrev_b32 {v(qq)}, 4, {v(LANE)}"); A(f"v_and_b32 {v(nn)}, 15, {v(LANE)}")
    A(f"v_lshrrev_b32 {v(t0)}, 1, {v(nn)}"); A(f"v_xor_b32 {v(t0)}, {v(t0)}, {v(qq)}"); A(f"v_lshlrev_b32 {v(t0)}, 4, {v(t0)}")
    A(f"v_lshl_add_u32 {v(t0)}, {v(nn)}, 7, {v(t0)}"); A(f"s_lshl_b32 s58, s{wm}, 13"); A(f"v_add_u32 {v(xa)}, s58, {v(t0)}"); A(f"v_xor_b32 {v(xa+1)}, 64, {v(xa)}")
    A(f"v_lshrrev_b32 {v(t0)}, 2, {v(nn)}"); A(f"v_lshl_add_u32 {v(t1)}, {v(qq)}, 3, {v(t0)}"); A(f"v_mul_u32_u24 {v(t1)}, 320, {v(t1)}")
    A(f"v_and_b32 {v(t0)}, 3, {v(nn)}"); A(f"v_lshl_add_u32 {v(t1)}, {v(t0)}, 3, {v(t1)}"); A(f"s_mul_i32 s58, s{wn}, 160"); A("s_add_u32 s58, s58, 16384"); A(f"v_add_u32 {v(t1)}, s58, {v(t1)}")
    A(f"v_and_b32 {v(t0)}, 1, {v(qq)}"); A(f"s_lshl_b32 s58, s{wn}, 6"); A("s_sub_u32 s58, 32, s58"); A(f"v_mul_i32_i24 {v(t0)}, s58, {v(t0)}")
    A(f"v_add_u32 {v(wa)}, {v(t1)}, {v(t0)}"); A(f"v_sub_u32 {v(wa+1)}, {v(t1)}, {v(t0)}")
    A(f"s_lshl_b32 s37, s{rt}, 1"); A(f"s_add_u32 s37, s37, s{wm}")
    A(f"s_lshl_b32 s36, s{ct}, 1"); A(f"s_add_u32 s36, s36, s{wn}")
    STL = 147456
    A(f"s_lshl_b32 s{srs}, s{rt}, 9"); A(f"s_lshl_b32 s58, s{W}, 13"); A(f"s_add_u32 s{srs}, s{srs}, s58"); A(f"s_add_u32 s{srs}, s{srs}, {RS_OFF}")
    A(f"s_mul_i32 s58, s{ct}, 640"); A(f"s_add_u32 s58, s58, {C1_OFF}"); A(f"s_cmp_eq_u32 s{W}, 2"); A(f"s_cselect_b32 s{srs}, s58, s{srs}"); A(f"s_cmp_eq_u32 s{W}, 3"); A(f"s_cselect_b32 s{srs}, {OOB}, s{srs}")
    A(f"s_lshl_b32 s{srr}, s{W}, 10"); A(f"s_add_u32 s{srr}, s{srr}, {STL}")
    A(f"s_lshl_b32 s58, s{wm}, 8"); A(f"s_add_u32 s58, s58, {STL}"); A(f"v_mov_b32 {v(rv)}, s58"); A(f"s_mul_i32 s58, s{wn}, 320"); A(f"s_add_u32 s58, s58, {STL+2048}"); A(f"v_mov_b32 {v(cv)}, s58")
    A(f"s_cmp_lt_u32 s{ct}, 4"); A(f"s_cselect_b32 s{sqs}, {hex(QSCALE)}, 1.0")
    A("s_and_b32 s56, s36, 7"); A("s_lshr_b32 s57, s36, 3"); A(f"s_mul_i32 s{sst}, s56, {GS}"); A(f"s_mul_i32 s58, s57, {K_OFF}"); A(f"s_add_u32 s{sst}, s{sst}, s58")
    A("s_mul_i32 s56, s56, 3"); A("s_add_u32 s56, s56, s57"); A("s_lshl_b32 s56, s56, 2"); A("s_lshr_b32 s57, s37, 3"); A("s_add_u32 s56, s56, s57"); A("s_lshl_b32 s56, s56, 5")
    A("s_and_b32 s57, s37, 7"); A("s_add_u32 s56, s56, s57"); A("s_lshl_b32 s56, s56, 2"); A(f"s_add_u32 s62, s56, {F1_OFF}")
    A(f"s_cmp_ge_u32 s{ct}, 8"); A(f"s_cbranch_scc1 {K}_v")

    Xr = lambda st, xi, ks: (FR+144 if st == 9 else FR+72*(st & 1)) + 8*xi+4*ks
    Wr = lambda st, wi, ks: FR+72*(st & 1) + 32 + 8*wi+4*ks
    rdx = lambda st: [f"ds_read_b128 {r(Xr(st,xi,ks),4)}, {v(xa+ks)} offset:{(st&1)*SL+2048*xi}" for xi in range(4) for ks in range(2)]
    rdw = lambda st, wi: [f"ds_read_b64_tr_b16 {r(Wr(st,wi,ks)+2*h,2)}, {v(wa+(wi&1))} offset:{(st&1)*SL+(32*ks+4*h)*320+32*wi}" for ks in range(2) for h in range(2)]
    def reads(st): return rdw(st, 0) + rdx(st) + rdw(st, 1) + rdw(st, 2) + rdw(st, 3) + rdw(st, 4)
    flag0 = f"buffer_load_dword v55, off, {S4(SD)}, s22 sc1"
    flag = f"buffer_load_dword {v(t0)}, v54, {S4(SWS)}, s22 offen sc1"
    def mainloop(isv):
        tag = "v" if isv else "q"
        if not isv:
            A("s_mul_i32 s56, s37, 5120"); A(f"s_add_u32 s{sst}, s{sst}, s56"); A(f"s_add_u32 s{sst+1}, s{sst}, 2560")
            A(f"s_add_u32 s{sst+2}, s{sst}, {163840+512}"); A(f"s_add_u32 s{sst+3}, s{sst+1}, {163840+512}")
            A(f"v_lshrrev_b32 {v(t0)}, 5, {v(LANE)}"); A(f"v_mul_u32_u24 {v(t0)}, {163840-2560}, {v(t0)}"); A(f"v_add_u32 {v(sa)}, {v(t0)}, {v(LV)}")
            A(f"v_lshl_add_u32 {v(rv)}, {v(nn)}, 2, {v(rv)}"); A(f"v_lshl_add_u32 {v(cv)}, {v(qq)}, 4, {v(cv)}")
        else:
            A("s_mul_i32 s56, s37, 10240"); A(f"s_add_u32 s{sst}, s{sst}, s56"); A(f"s_add_u32 s{sst+1}, s{sst}, 5120")
            A(f"v_mul_u32_u24 {v(t3)}, 1280, {v(qq)}"); A(f"v_lshl_add_u32 {v(sa)}, {v(nn)}, 4, {v(t3)}")
            A(f"v_lshl_add_u32 {v(rv)}, {v(qq)}, 4, {v(rv)}"); A(f"v_lshl_add_u32 {v(cv)}, {v(nn)}, 2, {v(cv)}")
        Q = VQ(); Q.add(0, dma(0)); A.ext(Q.add(1, dma(1)))
        A.ext(Q.wait(0)); A("s_barrier"); ST.mark(2)
        A.ext(reads(0))
        BP = 8; FS = CFG.get("p1fs", 5); EARLY = CFG.get("p1e", 1)
        rrd = lambda k_: [f"ds_read_b{128 if isv else 32} {v(RS+16*k_+4*xi, 4 if isv else 1)}, {v(rv)} offset:{1024*k_+64*xi}" for xi in range(4)]
        crd = [f"ds_read_b{32 if isv else 128} {v(CS+4*wi, 1 if isv else 4)}, {v(cv)} offset:{64*wi}" for wi in range(5)]
        sdma = [f"s_mov_b32 m0, s{srr}", f"buffer_load_dwordx4 {v(LV)}, {S4(SWS)}, s{srs} offen sc1 lds"]
        steps = [(st, wi, xi, ks) for st in range(8) for wi in range(5) for xi in range(4) for ks in range(2)]
        steps += [(st, wi, xi, ks) for wi in range(5) for xi in range(4) for st in (8, 9) for ks in range(2)]
        mm = lambda st, wi, xi, ks: mf16(ACC+16*wi+4*xi, *((Xr(st, xi, ks), Wr(st, wi, ks)) if isv else (Wr(st, wi, ks), Xr(st, xi, ks))), "0" if (st == 0 and ks == 0) else None)
        T = TL(A, Q, [mm(*x) for x in steps])
        tagged = lambda st: [(("x", st) if i < 12 else None, x) for i, x in enumerate(reads(st))]
        T.lq = [t for t, x in tagged(0)]
        nonop = lambda L: [x for x in L if x != "s_nop 0"]
        for st in range(8):
            k0 = 40*st
            if 4*st in P1ST(): T.pre[k0].append(lambda i=3+P1ST().index(4*st): ST.mark(i))
            T.pre[k0].append(("lwait", ("x", st))); T.pre[k0+BP].append("s_waitcnt lgkmcnt(0)")
            if st == 0:
                T.spread([(2, x) for x in dma(2)], 0, 0.8); T.spread([(3, x) for x in nonop(dma(3))], BP+2, 3.3)
            elif st+3 < 10:
                dm = [(st+3, x) for x in nonop(dma(st+3))]
                if st == FS+1: dm = dm[:6] + [("rs", x) for x in sdma] + dm[6:]
                T.spread(dm, k0+2, 4.3 if st != FS+1 else 3.9)
            if st == FS-2: T.spread([("f0", flag0)], k0+1, 0.9)
            if st == FS-1: T.pre[k0+BP].append(("wait", "f0"))
            if st == FS: T.spread([("f", flag)], k0+1, 0.9)
            if st == FS+2: T.pre[k0+BP].append(("wait", "rs"))
            T.pre[k0+BP].append(("wait", st+1))
            if st == FS+1:
                T.pre[k0+BP] += [("wait", "f"), f"v_min_u32 {v(t0)}, v55, {v(t0)}", f"v_or_b32 {v(t0)}, s{W}, {v(t0)}", f"v_cmp_eq_u32 vcc, 0, {v(t0)}", "s_nop 1", f"s_cbranch_vccnz {K}_rsspin{tag}", f"{K}_rsok{tag}:"]
            T.pre[k0+BP].append("s_barrier")
        for st in range(8):
            k0 = 40*st
            if st < 7: assert T.spread(tagged(st+1), k0+BP, 1, slack=CFG.get('p1sl', 0)) <= k0+44
            else:
                k = T.spread([("s", x) for x in rrd(0) + crd + rrd(1)], k0+BP, 0.7)
                T.spread([(None, x) for x in rdw(8, 0) + rdx(8)], k, 0.75)
                T.pre[k0+27] += [("wait", 9), "s_barrier"]
                T.spread([(None, x) for x in rdw(9, 0) + rdx(9)], k0+27, 0.9)
            if st & 1:
                d = (2*SL if (st & 2) == 0 else -2*SL) & 0xffffffff
                T.vspread([f"v_add_u32 {v(x)}, {d}, {v(x)}" for x in range(xa, xa+4)], k0+4, k0+8)
        for wi in range(5):
            k0 = 320 + 16*wi
            T.pre[k0].append("s_waitcnt lgkmcnt(0)")
            if wi < 4: T.spread([(None, x) for x in rdw(8, wi+1) + rdw(9, wi+1)], k0, 1)
        def corr(wi, xi): return [f"v_fmac_f32 {v(ACC+16*wi+4*xi+i)}, {v(RS+4*xi+(i if isv else 0))}, {v(CS+4*wi+(0 if isv else i))}" for i in range(4)]
        def group(wi, xp, pk, o):
            L = []
            for xi in (2*xp, 2*xp+1):
                ac = ACC+16*wi+4*xi
                if not EARLY: L += corr(wi, xi)
                if pk: L += [f"v_pk_mul_f32 {v(ac+i,2)}, {v(ac+i,2)}, {v(RS+16+4*xi+(i if isv else 0),2)}" + ("" if isv else " op_sel_hi:[1,0]") for i in (0, 2)]
                else: L += [f"v_mul_f32 {v(ac+i)}, {v(ac+i)}, {v(RS+16+4*xi+(i if isv else 0))}" for i in range(4)]
            L += [f"v_cvt_pk_bf16_f32 {v(o+2*j+i)}, {v(ACC+16*wi+8*xp+4*j+2*i)}, {v(ACC+16*wi+8*xp+4*j+2*i+1)}" for i in range(2) for j in range(2)]
            sw = "v_permlane32_swap_b32" if isv else "v_permlane16_swap_b32"
            L += [f"{sw} {v(o)}, {v(o+2)}", "v_nop", f"{sw} {v(o+1)}, {v(o+3)}"]
            if isv: st_ = f"buffer_store_dwordx4 {v(o,4)}, {v(sa)}, {S4(SWS)}, s{sst+xp} offen offset:{256*wi} sc1"
            else: st_ = f"buffer_store_dwordx4 {v(o,4)}, {v(sa if wi == 2 else LV)}, {S4(SWS)}, s{sst+xp+2*(wi > 2)} offen offset:{1024*(wi if wi < 3 else wi-3)} sc1"
            return L, st_
        qs = [] if isv else [f"v_mul_f32 {v(RS+16+4*xi)}, s{sqs}, {v(RS+16+4*xi)}" for xi in range(4)]
        if EARLY:
            T.pre[301].append(("lwait", "s"))
            for wi, (ka, kb) in {0: (301, 317), 1: (317, 329), 2: (329, 338), 3: (338, 364), 4: (364, 381)}.items():
                T.vspread([x for xi in range(4) for x in corr(wi, xi)] + (qs if wi == 1 else []), ka, kb)
        else: T.vspread(qs, 330, 334)
        for wi in range(4):
            for xp in range(2):
                L, st_ = group(wi, xp, False, OB + 4*((2*wi+xp) % 4))
                ka = 320 + 16*wi + 8*xp + 16 + (2 if wi == 0 and xp == 0 else 0)
                k = T.vspread(L, ka, 320 + 16*wi + 8*xp + 24, cap=2)
                if k < 400: T.post[k].append(("o", st_))
                else: late = st_
        T.emit()
        ST.mark(3 + len(P1ST()))
        A(late)
        for xp in range(2):
            L, st_ = group(4, xp, True, OB + 4*xp); A.ext(L); A(st_)
        COLD.append(lambda: (A(f"{K}_rsspin{tag}:"), poll(A, [flag0], [55], sleep=4), poll(A, [flag], [t0], sleep=2), A(f"s_branch {K}_rsok{tag}")))
    mainloop(False)
    A(f"s_branch {K}_p1out")
    helper(A, ST, common, flag0, flag)
    A(f"{K}_v:")
    mainloop(True)
    A(f"{K}_p1out:")
    ST.n = 4 + len(P1ST())
    ST.mark()
    def setflag(pos):
        if pos != (2 if ES else CFG.get("fpos", 0)): return
        A(f"v_mul_u32_u24 v2, {96*128}, {v(LANE)}"); A("s_mov_b64 exec, 15")
        A("s_waitcnt vmcnt(0)"); A(f"buffer_{'atomic_or' if CFG.get('at1', 1) else 'store_dword'} v10, v2, {S4(SWS)}, s62 offen sc1"); A("s_mov_b64 exec, -1"); ST.mark()
    if not ES: att_setup(A, setflag)
    setflag(2)
    A(f"{K}_p1done:")

def helper(A, ST, common, flag0, flag):
    hid, so, stp = 28, 32, 33
    nn, qq, sv = 6, 7, 12
    XB, SM, ONE = 64, 40, 32
    KS = CFG.get("hk", 1)
    A(f"{K}_help:")
    A(f"s_sub_u32 s{hid}, s2, 192")
    A(f"s_cmp_lt_u32 s{hid}, 32"); A("s_cselect_b32 s56, 1280, s56"); A("s_cselect_b32 s29, 1, 0")
    A("s_cmp_eq_u32 s29, 0"); A("s_cselect_b32 s56, 3840, s56")
    A(f"v_lshrrev_b32 v2, 3, {v(LANE)}"); A(f"v_and_b32 v3, 7, {v(LANE)}"); A("v_mul_u32_u24 v4, s56, v2"); A(f"v_lshl_add_u32 {v(sv)}, v3, 4, v4")
    A("s_lshl_b32 s57, s56, 3"); A(f"v_add_u32 {v(sv+1)}, s57, {v(sv)}")
    A(f"s_lshl_b32 s57, s56, 4"); A(f"s_mul_i32 s{so}, s57, s{W}")
    A(f"s_and_b32 s30, s{GX}, 3"); A("s_lshl_b32 s30, s30, 3"); A(f"s_lshr_b32 s57, s{hid}, 2"); A("s_and_b32 s57, s57, 7"); A("s_add_u32 s30, s30, s57")
    A(f"s_sub_u32 s31, s{hid}, 32"); A(f"s_mul_i32 s57, s30, {64*1280}"); A("s_lshl_b32 s58, s31, 7")
    A("s_cmp_eq_u32 s29, 0"); A("s_cselect_b32 s57, s58, s57"); A(f"s_cselect_b32 s{stp}, {64*3840}, s56"); A(f"s_add_u32 s{so}, s{so}, s57")
    A("s_cmp_eq_u32 s29, 1"); A(f"s_cselect_b32 s{stp}, 128, s{stp}")
    A(f"s_mul_i32 s57, s{stp}, {KS}"); A(f"s_add_u32 s{so}, s{so}, s57"); A(f"s_mul_i32 s34, s{stp}, -9")
    A("s_waitcnt lgkmcnt(0)")
    srd(A, SX, 36, 2621440)
    A("s_cmp_eq_u32 s29, 1"); A(f"s_cselect_b64 s[{SA}:{SA+1}], s[36:37], s[38:39]"); A(f"s_cselect_b32 s{SA+2}, s{SX+2}, 2457600"); A(f"s_mov_b32 s{SA+3}, 0x20000")
    A(f"s_cmp_lt_u32 s{hid}, 62"); A(f"s_cselect_b32 s{SA+2}, s{SA+2}, 0")
    Q = VQ()
    def xl(i):
        L = [f"buffer_load_dwordx4 {v(XB+4*i,4)}, {v(sv+(i&1))}, {S4(SA)}, s{so} offen"]
        if i & 1: L.append(f"s_add_u32 s{so}, s{so}, s{stp if i//2+KS != 9 else 34}")
        return L
    for i in range(10): A.ext(Q.add(("x", i), xl(i)))
    common()
    marks = list(range(1, 6 + len(P1ST())))
    def mk():
        if marks: ST.mark(marks.pop(0))
    mk()
    for i in range(4): A(f"v_mov_b32 {v(8+i)}, 0"); A(f"v_mov_b32 {v(ONE+i)}, 0x3f803f80")
    for i in range(8): A(f"v_mov_b32 {v(SM+i)}, 0")
    lab = A.label("notlast"); A(f"s_cmp_lg_u32 s{hid}, 63"); A(f"s_cbranch_scc1 {lab}")
    A(f"s_lshl_b32 s56, s{W}, 11"); A(f"s_add_u32 s56, s56, {HF_OFF}")
    for i in range(2): A(f"buffer_store_dwordx4 v[8:11], {v(LV)}, {S4(SWS)}, s56 offen offset:{1024*i} sc1")
    A("s_waitcnt vmcnt(0)"); A("s_barrier"); A("s_mov_b64 exec, 1"); A(f"buffer_store_dword {v(ONE)}, off, {S4(SD)}, s22 sc1"); A("s_mov_b64 exec, -1"); A("s_waitcnt vmcnt(0)")
    A(f"{lab}:")
    col, both = A.label("hcol"), A.label("hboth")
    def stats(proc, fin):
        Q2 = VQ(); Q2.q = list(Q.q)
        for i in range(10, 20): A.ext(Q2.add(("x", i), xl(i))); A.ext(Q2.wait(("x", i-10))); proc(i-10)
        for i in range(10, 20): A.ext(Q2.wait(("x", i))); proc(i)
        fin(Q2); return Q2
    A("s_cmp_eq_u32 s29, 0"); A(f"s_cbranch_scc1 {col}")
    def rproc(i):
        for j in range(4): A(f"v_dot2c_f32_bf16 {v(SM+2*(i&1))}, {v(ONE)}, {v(XB+4*i+j)}"); A(f"v_dot2c_f32_bf16 {v(SM+2*(i&1)+1)}, {v(XB+4*i+j)}, {v(XB+4*i+j)}")
    def rfin(Q2):
        A("s_nop 2")
        for mod in ("quad_perm:[1,0,3,2]", "quad_perm:[2,3,0,1]", "row_half_mirror"):
            for i in range(4): A(f"v_add_f32_dpp {v(SM+i)}, {v(SM+i)}, {v(SM+i)} {mod} row_mask:0xf bank_mask:0xf")
        A("v_cmp_eq_u32 vcc, 1, v3"); A(f"v_lshrrev_b32 v4, 3, {v(LANE)}"); A("v_lshl_add_u32 v4, v3, 3, v4")
        A(f"v_cndmask_b32 {v(SM)}, {v(SM)}, {v(SM+2)}, vcc"); A(f"v_cndmask_b32 {v(SM+1)}, {v(SM+1)}, {v(SM+3)}, vcc")
        A(f"v_mul_f32 {v(SM)}, {hex(f2u(-1/640))}, {v(SM)}"); A(f"v_mul_f32 {v(SM+1)}, {hex(f2u(1/640))}, {v(SM+1)}")
        A(f"v_fma_f32 {v(SM+1)}, -{v(SM)}, {v(SM)}, {v(SM+1)}"); A(f"v_max_f32 {v(SM+1)}, 0, {v(SM+1)}")
        A(f"v_add_f32 {v(SM+1)}, {hex(f2u(1e-5))}, {v(SM+1)}"); A(f"v_rsq_f32 {v(SM+1)}, {v(SM+1)}")
        A("v_lshlrev_b32 v4, 2, v4"); A(f"v_mov_b32 v5, {OOB}"); A("v_cmp_gt_u32 vcc, 2, v3"); A("s_lshl_b32 s57, s30, 2"); A(f"s_add_u32 s57, s57, s{W}"); A("v_cndmask_b32 v4, v5, v4, vcc")
        A("s_lshl_b32 s57, s57, 6"); A(f"s_add_u32 s57, s57, {RS_OFF}"); A("s_add_u32 s58, s57, 8192")
        A.ext(Q2.add("s", [f"buffer_store_dword {v(SM)}, v4, {S4(SWS)}, s57 offen sc1", f"buffer_store_dword {v(SM+1)}, v4, {S4(SWS)}, s58 offen sc1"]))
    stats(rproc, rfin)
    A(f"s_branch {both}")
    A(f"{col}:")
    def cproc(i):
        for j in range(4):
            A(f"v_lshlrev_b32 v16, 16, {v(XB+4*i+j)}"); A(f"v_and_b32 v17, 0xffff0000, {v(XB+4*i+j)}"); A(f"v_pk_add_f32 {v(SM+2*j,2)}, {v(SM+2*j,2)}, v[16:17]")
    def cfin(Q2):
        A("s_nop 1")
        for i in range(8): A(f"v_add_f32_dpp {v(SM+i)}, {v(SM+i)}, {v(SM+i)} row_ror:8 row_mask:0xf bank_mask:0xf")
        quad_sum(A, list(range(SM, SM+8)), list(range(16, 24)))
        EX = 147456
        A(f"s_lshl_b32 s57, s{W}, 8"); A(f"s_add_u32 s57, s57, {EX}"); A("v_lshl_add_u32 v4, v3, 5, s57")
        A(f"ds_write_b128 v4, {v(SM,4)}"); A(f"ds_write_b128 v4, {v(SM+4,4)} offset:16"); A(f"v_add_u32 v4, {EX}, {v(L4V)}")
        A("s_waitcnt lgkmcnt(0)"); A("s_barrier")
        for i in range(4): A(f"ds_read_b32 {v(16+i)}, v4 offset:{256*i}")
        A("s_lshl_b32 s57, s31, 8"); A(f"s_add_u32 s57, s57, {C1_OFF}"); A("s_add_u32 s57, s57, s22"); A(f"s_mov_b32 s58, {OOB}")
        A("s_waitcnt lgkmcnt(0)"); A("v_add_f32 v16, v16, v17"); A("v_add_f32 v18, v18, v19"); A("v_add_f32 v16, v16, v18")
        A.ext(Q2.add("s", [f"buffer_store_dword v16, {v(L4V)}, {S4(SWS)}, s57 offen sc1", f"buffer_store_dword v16, {v(L4V)}, {S4(SWS)}, s58 offen sc1"]))
    Q = stats(cproc, cfin)
    A(f"{both}:"); mk()
    A(f"s_lshr_b32 s57, s{W}, 1"); A(f"s_lshl_b32 s56, s{hid}, 1"); A("s_add_u32 s56, s56, s57"); A("s_mul_i32 s56, s56, 896"); A(f"s_add_u32 s56, s56, {F2_OFF}")
    A(f"s_bitcmp1_b32 s{W}, 0"); A(f"s_cselect_b32 s56, s56, {OOB}"); A(f"v_min_u32 v4, {55*16}, {v(LV)}")
    A(f"s_mul_i32 s57, s{hid}, 5120"); A(f"s_add_u32 s57, s57, {ONES_OFF}"); A(f"s_cmp_eq_u32 s{W}, 2"); A(f"s_cselect_b32 s57, s57, {OOB}"); A(f"v_and_b32 v5, 1, {v(LANE)}"); A("v_mul_u32_u24 v5, 2560, v5")
    A.ext(Q.add("s", [f"buffer_store_dwordx4 v[8:11], v4, {S4(SWS)}, s56 offen sc1", f"buffer_store_dwordx4 {v(ONE,4)}, v5, {S4(SWS)}, s57 offen sc1"]))
    A(f"s_lshl_b32 s35, s{hid}, 7"); A("s_add_u32 s35, s35, s22"); A(f"s_add_u32 s35, s35, {HF_OFF}")
    poll(A, [flag0], [55], sleep=4, post=[f"v_or_b32 v55, s{W}, v55"]); A("s_barrier")
    A(f"buffer_store_dword {v(ONE)}, off, {S4(SWS)}, s35 sc1")
    mk()
    for i in range(4): A(f"v_mov_b32 {v(16+i)}, -1")
    A(f"s_sub_u32 s56, s{GI}, 24"); A("s_lshl_b32 s56, s56, 2"); A(f"s_add_u32 s56, s56, s{W}"); A("s_mul_i32 s56, s56, 10240"); A(f"s_add_u32 s56, s56, s{GB}"); A(f"s_add_u32 s56, s56, {O_OFF}")
    for i in range(10):
        A(f"buffer_store_dwordx4 v[16:19], {v(LV)}, {S4(SWS)}, s56 offen offset:{1024*(i&3)} sc1")
        if i & 3 == 3: A("s_add_u32 s56, s56, 4096")
    while marks: mk()
    att_setup(A)
    poll(A, [flag], [2], sleep=8, post=[f"v_or_b32 v2, s{W}, v2"]); A("s_barrier")
    A("s_mov_b64 exec, 1"); poll(A, apoll(4, 145, 59, CFG.get("at1", 1)), [4], sleep=8); A("s_mov_b64 exec, -1")
    A(f"s_branch {K}_p1done")

def w3reg(f): return 256 + 192 + 4*f if f < 16 else 148 + 4*(f-16)
WV = 250
P3RES, P3CS = 184, 194
SK_WR, SK_RD, SK_RM = 242, 245, 246
def p3_wload(f):
    ks, u = divmod(f, 5)
    L = [f"buffer_load_dwordx4 {r(w3reg(f),4)}, {v(WV if u < 4 else WV+1)}, {S4(SWS)}, s44 offen offset:{1024*(u&3)} sc1"]
    if u == 4: L.append("s_add_u32 s44, s44, 40960" if ks != 3 else "s_mov_b32 s44, s78")
    return L
CMB = 86016

def TOUCHES(key="touch", dflt=""): return [(int(x.split(":")[0]), x.split(":")[1]) for x in str(CFG.get(key, dflt)).split(",") if x]
def gtouch(what):
    c, k_ = what[0], int(what[1:] or 0)
    if c == "u": return [f"s_mov_b64 s[{SR}:{SR+1}], s[86:87]", f"s_mov_b32 s{SR+2}, 2621440", f"buffer_load_dword v248, v147, {S4(SR)}, s90 offen offset:{1280*k_} sc1"]
    reg, vr, base = {"N": (76, TV, HH_OFF() + 3456*k_), "h": (90, 147, H_OFF()),
                     "s": (93, None, STAT_OFF), "g": (79, TV, WGU_OFF + 442368*k_), "d": (79, TV, WD_OFF + 442368*k_)}[c]
    return [f"s_add_u32 s91, s{reg}, {base}", f"buffer_load_dword v248, {v(vr) if vr else 'off'}, {S4(SWS)}, s91 {'offen' if vr else ''} sc1"]
def att_setup(A, hook=lambda pos: None):
    odd, sok, sov, sox, redo, sob, sfr, stch = 28, 72, 73, 74, 32, 33, 34, 35
    S0, S1, P, E, O0 = 16, 48, 80, 96, 104
    kv, kxv, vv, ov, oxv, cw, cr, tv = 136, 137, 138, 139, 140, 141, 144, 145
    OA, QM, QX, KR, VR, XR = 256, 256+96, 256+128, 256+136, 256+152, 256+184
    Oreg = lambda lp: O0 if lp == 0 else OA + 32*(lp-1)
    t0, t1, t2, t3, t4 = 2, 3, 4, 5, 6
    LD = CFG.get("ld", "sc1")
    head, qb = 30, 31
    A(f"s_lshl_b32 s{head}, s{GX}, 2"); A(f"s_and_b32 s36, s{GI}, 3"); A(f"s_add_u32 s{head}, s{head}, s36"); A(f"s_lshr_b32 s{qb}, s{GI}, 2")
    A(f"s_and_b32 s{odd}, s{head}, 1")
    A(f"s_bfe_u32 s36, s{head}, 0x10001"); A("s_mul_i32 s37, s36, 163840"); A(f"s_add_u32 s37, s37, s{GB}")
    A(f"s_add_u32 s{MODE}, s37, {K_OFF}")
    A(f"s_mul_i32 s{sob}, s{qb}, {GS}"); A(f"s_lshl_b32 s36, s{head}, 9"); A(f"s_add_u32 s{sob}, s{sob}, s36")
    A(f"s_lshl_b32 s36, s{W}, 14"); A(f"s_add_u32 s63, s{sob}, s36"); A(f"s_add_u32 s63, s63, {OX_OFF}")
    A(f"s_lshl_b32 s36, s{W}, 16"); A(f"s_add_u32 s{sob}, s{sob}, s36"); A(f"s_add_u32 s{sob}, s{sob}, {O_OFF}")
    A(f"s_lshl_b32 s38, s{qb}, 2")
    for i in range(4):
        A(f"s_add_u32 s36, s{W}, {i}"); A("s_and_b32 s36, s36, 3")
        if i: A("s_mul_i32 s39, s36, 18432"); A(f"s_add_u32 s39, s39, {CMB+(i-1)*6144}"); A(f"v_add_u32 {v(cw+i-1)}, s39, {v(LV)}")
        else: A("s_mul_i32 s39, s36, 18432"); A(f"s_add_u32 s39, s39, {CMB}"); A(f"v_add_u32 {v(cr)}, s39, {v(LV)}")
        A("s_add_u32 s36, s36, s38"); A("s_mul_i32 s36, s36, 5120"); A(f"s_add_u32 s{40+i}, s36, s37")
    A(f"s_mul_i32 s36, s{odd}, 1536"); A(f"v_add_u32 {v(kv)}, s36, {v(LV)}")
    A(f"v_and_b32 {v(t0)}, 31, {v(LANE)}"); A(f"v_lshrrev_b32 {v(t1)}, 5, {v(LANE)}")
    A(f"s_lshl_b32 s36, s{odd}, 3"); A("s_add_u32 s37, s36, 1024")
    A(f"v_lshl_add_u32 {v(t4)}, {v(t0)}, 4, s37")
    A(f"v_mul_u32_u24 {v(t2)}, 2560, {v(t1)}"); A(f"v_add_u32 {v(kxv)}, {v(t4)}, {v(t2)}")
    A(f"v_bfe_u32 {v(t2)}, {v(LANE)}, 4, 1"); A(f"v_lshlrev_b32 {v(t2)}, 14, {v(t2)}"); A(f"v_and_b32 {v(t3)}, 15, {v(LANE)}"); A(f"v_lshl_add_u32 {v(t2)}, {v(t3)}, 4, {v(t2)}")
    A(f"v_lshl_add_u32 {v(ov)}, {v(t1)}, 8, {v(t2)}")
    A(f"v_lshrrev_b32 {v(t2)}, 2, {v(t0)}"); swap01(A, t3, t2, 7)
    A(f"v_and_b32 {v(t2)}, 3, {v(t0)}"); A(f"v_lshl_add_u32 {v(t2)}, {v(t3)}, 2, {v(t2)}")
    A(f"v_mul_u32_u24 {v(t3)}, 1280, {v(t1)}"); A(f"v_lshl_add_u32 {v(t2)}, {v(t2)}, 4, {v(t3)}")
    A(f"s_and_b32 s36, s{head}, 3"); A("s_mul_i32 s36, s36, 320"); A(f"v_add_u32 {v(t2)}, s36, {v(t2)}")
    A(f"v_mov_b32 {v(t3)}, {OOB}"); A(f"v_cmp_gt_u32 vcc, 20, {v(t0)}"); A("s_nop 1"); A(f"v_cndmask_b32 {v(t2)}, {v(t3)}, {v(t2)}, vcc")
    A(f"s_sub_u32 s36, {ONES_OFF-V_OFF}, s{GB}"); A(f"v_mov_b32 {v(t3)}, s36")
    A(f"v_cmp_eq_u32 vcc, 20, {v(t0)}"); A("s_nop 1"); A(f"v_cndmask_b32 {v(vv)}, {v(t2)}, {v(t3)}, vcc")
    A(f"s_mul_i32 s{sok}, s{W}, {16*2560}"); A(f"s_mov_b32 s{sox}, s{sok}")
    A(f"s_mul_i32 s36, s{W}, {16*5120}"); A(f"s_add_u32 s{sov}, s{GB}, s36"); A(f"s_add_u32 s{sov}, s{sov}, {V_OFF}")
    A("v_mov_b32 v10, 1")
    hook(0)
    A(f"s_bfe_u32 s36, s{GI}, 0x10002"); A("s_lshl_b32 s37, s36, 10"); A(f"v_add_u32 {v(WV)}, s37, {v(LV)}")
    A("s_xor_b32 s36, s36, 1"); A("s_lshl_b32 s37, s36, 12"); A(f"v_add_u32 {v(WV+1)}, s37, {v(LV)}")
    A(f"s_lshr_b32 s36, s{GI}, 2"); A("s_mul_i32 s36, s36, 5120"); A(f"s_mul_i32 s44, s{W}, {4*40960}"); A("s_add_u32 s44, s44, s36"); A(f"s_add_u32 s44, s44, {WO_OFF}")
    A(f"s_mul_i32 s78, s{W}, 40960"); A("s_add_u32 s78, s78, s36"); A(f"s_add_u32 s78, s78, {WO_OFF+16*40960}")
    skinny_addr(A); p4_setup(A)
    A(f"s_lshl_b32 s75, s{P4_ST}, 7"); A(f"s_add_u32 s75, s75, {CS_OFF}"); A("v_lshlrev_b32 v146, 2, v0")
    hook(1)
    relayout_setup(A)
    A(f"s_lshl_b32 s36, s{GX}, 5"); A(f"s_add_u32 s36, s36, s{GI}"); A("s_lshl_b32 s36, s36, 2"); A(f"s_add_u32 s36, s36, s{W}")
    A(f"s_lshl_b32 s{sfr}, s2, 5"); A(f"s_add_u32 s{sfr}, s{sfr}, s{W}"); A(f"s_lshl_b32 s{sfr}, s{sfr}, 2"); A(f"s_add_u32 s{sfr}, s{sfr}, {FR_OFF}")
    A(f"s_lshl_b32 s77, s{GX}, 7"); A(f"s_add_u32 s77, s77, {FR_OFF}"); A(f"s_lshl_b32 s101, s{W}, 13"); A(f"s_add_u32 s101, s101, {FR_OFF}")
    A(f"v_mov_b32 v11, {v(TV)}"); A(f"v_and_b32 v8, 31, {v(LANE)}"); A("v_lshlrev_b32 v8, 10, v8")
    A("s_lshl_b32 s93, s36, 7"); A("s_and_b32 s36, s36, 127"); A("s_mul_i32 s79, s36, 3456")
    A("s_mul_i32 s76, s36, 6912"); A(f"s_add_u32 s76, s76, s{GB}"); A("s_mul_i32 s90, s36, 2560"); A(f"s_add_u32 s90, s90, s{GB}")
    A(f"v_min_u32 v147, {19*128}, {v(TV)}"); A(f"v_min_u32 {v(TV)}, {26*128}, {v(TV)}"); A(f"v_mov_b32 v7, s{MYF}")
    A(f"s_lshl_b32 s38, s{qb}, 2"); A(f"s_add_u32 s38, s38, s{W}"); A("s_lshl_b32 s38, s38, 2"); A(f"s_lshr_b32 s39, s{head}, 3"); A("s_add_u32 s38, s38, s39"); A("s_lshl_b32 s38, s38, 5")
    A(f"s_and_b32 s39, s{head}, 7"); A("s_add_u32 s38, s38, s39"); A("s_lshl_b32 s38, s38, 2"); A(f"s_add_u32 s38, s38, {F2_OFF}")
    A(f"s_add_u32 s39, s{sob}, 32768"); A("s_lshl_b32 s84, s49, 7"); A(f"s_add_u32 s84, s84, {F2_OFF}")
    A(f"v_min_u32 v2, 23, {v(LANE)}"); A("v_lshrrev_b32 v3, 3, v2"); A("v_and_b32 v4, 7, v2"); A("v_lshlrev_b32 v3, 9, v3"); A("v_lshl_add_u32 v3, v4, 2, v3"); A(f"s_lshl_b32 s36, s{W}, 7"); A(f"s_lshr_b32 s37, s{GI}, 3"); A(f"s_mul_i32 s37, s37, {96*128}"); A("s_add_u32 s36, s36, s37"); A("v_add_u32 v3, s36, v3")
    A(f"s_lshr_b32 s36, s{qb}, 1"); A("s_lshl_b32 s36, s36, 7"); A(f"s_and_b32 s37, s{qb}, 1"); A("s_lshl_b32 s37, s37, 4"); A("s_add_u32 s36, s36, s37"); A(f"s_mul_i32 s37, s{W}, {96*128}"); A("s_add_u32 s36, s36, s37")
    A("v_and_b32 v4, 3, v2"); A("v_cmp_gt_u32 vcc, 8, v2"); A("v_lshl_add_u32 v4, v4, 2, s36"); A(f"s_mul_i32 s59, s{GX}, 1536"); A(f"v_cndmask_b32 {v(tv)}, v3, v4, vcc"); A(f"s_add_u32 s59, s59, {F1_OFF}")
    w5_setup(A)
    A(f"s_and_b32 s56, s{GI}, 3"); A(f"s_lshl_b32 s37, s{W}, 12"); A(f"s_add_u32 s37, s37, s{GB}")
    A("s_lshl_b32 s57, s56, 14"); A("s_add_u32 s57, s57, s37"); A(f"s_add_u32 s57, s57, {OX_OFF}")
    A("s_lshl_b32 s56, s56, 16"); A("s_add_u32 s56, s56, s37"); A(f"s_add_u32 s56, s56, {O_OFF}")
    for i in range(4):
        A(f"s_add_u32 s36, s{W}, {i}"); A("s_and_b32 s36, s36, 3"); A("s_lshl_b32 s37, s36, 14"); A(f"s_add_u32 s{80+i}, s56, s37")
        A("s_and_b32 s37, s36, 1"); A("s_lshl_b32 s37, s37, 8"); A("s_lshr_b32 s36, s36, 1"); A("s_lshl_b32 s36, s36, 3"); A("s_add_u32 s36, s36, s37"); A(f"s_add_u32 s{52+i}, s57, s36")
    A(f"v_lshrrev_b32 v2, 4, {v(LANE)}"); A(f"v_mul_u32_u24 v252, 768, v2"); A(f"v_add_u32 v252, v252, {v(LV)}")

def phase2(A, ST):
    odd, sok, sov, sox, redo, sob, sfr, stch = 28, 72, 73, 74, 32, 33, 34, 35
    S0, S1, P, E, O0 = 16, 48, 80, 96, 104
    kv, kxv, vv, ov, oxv, cw, cr, tv = 136, 137, 138, 139, 140, 141, 144, 145
    OA, QM, QX, KR, VR, XR = 256, 256+96, 256+128, 256+136, 256+152, 256+184
    Oreg = lambda lp: O0 if lp == 0 else OA + 32*(lp-1)
    t0, t1, t2, t3, t4 = 2, 3, 4, 5, 6
    LD = CFG.get("ld", "sc1")
    head, qb = 30, 31
    A(f"s_mov_b32 s{redo}, 0"); A(f"s_add_u32 s{SA}, s{SWS}, s{MODE}"); A(f"s_addc_u32 s{SA+1}, s{SWS+1}, 0"); A(f"s_mov_b32 s{SA+2}, 163840")
    if CFG.get("f1b", 0) == 0: A("s_barrier")
    A("s_mov_b64 exec, 0xffff0f")
    poll(A, apoll(4, tv, 59, CFG.get("at1", 1)), [4], sleep=CFG.get("f1s", 1))
    A("s_mov_b64 exec, -1")
    if CFG.get("f1b", 0) == 1: A("s_barrier")
    ST.mark()
    Kr = lambda t: KR + 4*(t % 4)
    Vr = lambda t, sx: VR + 8*(t % 4) + 4*sx
    Xr = lambda j: XR + 2*(j % 2)
    def ldk(t): return [f"buffer_load_dwordx4 {r(Kr(t),4)}, {v(kv)}, {S4(SA)}, s{sok} offen offset:{2560*(t&1)} {LD}"] + ([f"s_add_u32 s{sok}, s{sok}, 5120"] if t & 1 else [])
    def ldx(j): return [f"buffer_load_dwordx2 {r(Xr(j),2)}, {v(kxv)}, {S4(SA)}, s{sox} offen sc1", f"s_add_u32 s{sox}, s{sox}, 5120"]
    def ldv(t, sx): return [f"buffer_load_dwordx4 {r(Vr(t,sx),4)}, {v(vv)}, {S4(SWS)}, s{sov} offen offset:{2560*sx} {LD}"] + ([f"s_add_u32 s{sov}, s{sov}, 5120"] if sx else [])
    def ldq(lp): return ([f"buffer_load_dwordx2 {r(QX+2*lp,2)}, {v(kxv)}, {S4(SWS)}, s{40+lp} offen sc1"] +
                         [f"buffer_load_dwordx4 {r(QM+8*lp+4*j,4)}, {v(kv)}, {S4(SWS)}, s{40+lp} offen offset:{2560*j} sc1" for j in range(2)])
    Q = VQ()
    order = (1, 2, 3, 0)
    NT = CFG.get("tail", 3)
    seq = [(t, lp) for t in range(16-NT) for lp in order] + [(t, lp) for lp in order for t in range(16-NT, 16)]
    first = [(("x", 0), ldx(0)), (("k", 0), ldk(0)), (("q", 1), ldq(1)), (("q", 2), ldq(2)), (("v", 0, 0), ldv(0, 0)), (("v", 0, 1), ldv(0, 1)), (("q", 3), ldq(3)), (("q", 0), ldq(0))]
    U0 = CFG.get("au", 6)
    for tag, ops in first[:U0]: A.ext(Q.add(tag, ops))
    side = {b: [] for b in range(64)}
    fix = {(b, k): [] for b in range(64) for k in range(8)}
    def put(b, tag, ops): side[b] += [(tag, x) for x in ops]
    put(0, ("k", 1), ldk(1)); put(0, ("v", 1, 0), ldv(1, 0)); put(1, ("v", 1, 1), ldv(1, 1)); put(1, ("x", 1), ldx(1)); put(2, ("k", 2), ldk(2))
    put(2, ("v", 2, 0), ldv(2, 0)); put(3, ("v", 2, 1), ldv(2, 1)); put(3, ("k", 3), ldk(3)); put(4, ("v", 3, 0), ldv(3, 0)); put(4, ("v", 3, 1), ldv(3, 1))
    for t in range(12):
        d = 2*(t == 0)
        put(4*t+3+d, ("k", t+4), ldk(t+4)); put(4*t+4+d, ("v", t+4, 0), ldv(t+4, 0)); put(4*t+5+d, ("v", t+4, 1), ldv(t+4, 1))
    for j in range(6): put(8*j+6, ("x", j+2), ldx(j+2))
    for b in (10, 26, 42, 54): put(b, "pc", [CODE_TOUCH])
    mid = {b: [] for b in range(64)}
    B0, SP, B1, SS = CFG.get("b0", 3), CFG.get("rsp", 1), CFG.get("b1", 10), CFG.get("rss", 3)
    for i in range(10): put(B0+SP*i, ("rd", i), rl_dma(i))
    for a_ in range(5):
        b_ = B1 + SS*a_
        assert b_ > B0+SP*(2*a_+1)
        put(b_, None, [("wait", ("rd", 2*a_+1))] + rl_read(a_, 0) + rl_read(a_, 1))
        put(b_+1, "rs", ["s_waitcnt lgkmcnt(0)"] + rl_store(a_, 0)); put(b_+2, "rs", rl_store(a_, 1)); mid[b_+1] += [rl_sum(a_, 0), rl_sum(a_, 1)]
    put(b_+2, "rs", rl_cs(0) + rl_cs(1))
    B2 = b_ + 2 + CFG.get("b2", 3)
    put(B2, "fr", [("wait", "rs"), f"buffer_store_dword v7, off, {S4(SWS)}, s{sfr} sc1"])
    BR = B2 + CFG.get("b3", 5); BQ = BR + 4
    frl = [f"buffer_load_dwordx4 {v(RLF,4)}, v11, {S4(SWS)}, s101 offen sc1"]
    put(BR, "frl", frl)
    chk = [f"v_min3_u32 {v(RLF)}, {v(RLF)}, {v(RLF+1)}, {v(RLF+2)}", f"v_min_u32 {v(RLF)}, {v(RLF)}, {v(RLF+3)}", f"v_cmp_eq_u32 vcc, 0, {v(RLF)}"]
    put(BR+3, None, [("wait", "frl")] + chk + ["s_nop 0", f"s_cbranch_vccnz {K}_frspin", f"{K}_frok:", "s_barrier"])
    put(BQ, "grp", [f"buffer_load_dword v9, v8, {S4(SWS)}, s77 offen sc1"])
    put(BQ+4, None, [("wait", "grp"), "v_cmp_ne_u32 vcc, v7, v9", "s_nop 0", "s_cmp_eq_u64 vcc, 0", f"s_cselect_b32 s{MODE}, {0 if CFG.get('safe') else 1}, 0"])
    put(BQ+5, None, [f"s_cmp_eq_u32 s{MODE}, 0", f"s_cselect_b32 s{stch}, {OOB}, 0", f"s_add_u32 s76, s76, s{stch}", f"s_add_u32 s90, s90, s{stch}", f"s_add_u32 s93, s93, s{stch}"])
    pf = [x for st_ in range(3) for x in p4_dma(st_)]
    pf += [x for kq in range(4) for x in (f"buffer_load_dword {v(P3CS+kq)}, v146, {S4(SWS)}, s75 offen sc1", f"s_add_u32 s75, s75, {108*128}")]
    pf += io_rm("load", P3RES, SX)
    pf += [x for f in range(25) for x in p3_wload(f)]
    for b_, what in TOUCHES():
        assert b_ > BQ+5; put(b_, "t", gtouch(what))
    PE = CFG.get("pfe", 57); nreal = sum(not is_salu(x) for x in pf)
    bl = [b for b in range(BR+4, PE) if b not in (BQ+4, BQ+5)]
    for i, b in enumerate(bl):
        take = -(-nreal//(len(bl)-i))
        while pf and take > 0:
            x = pf.pop(0); put(b, "pf", [x])
            if not is_salu(x): take -= 1; nreal -= 1
    cwr = lambda lp: [f"ds_write_b128 {v(cw+lp-1)}, {r(Oreg(lp)+16*j+4*g,4)} offset:{3072*j+1024*g}" for j in range(2) for g in range(3)]
    E0 = 64 - 3*NT
    for n in range(3):
        b0 = E0 + NT*n
        for x, pos in zip(cwr(order[n]), [(b0, 3), (b0, 5), (b0, 7), (b0+1, 3), (b0+1, 5), (b0+1, 7)]): fix[pos].append(x)
    for f in range(CFG["w5z"]):
        b_ = E0 + NT*(f//8) + 2 + ((f % 8)*3)//8
        if f % 8 == 0: fix[(b_, 2)].append("s_waitcnt lgkmcnt(0)")
        put(b_, "w5", w5load(f))
    nxt63 = S0
    CB = [[204+4*i for i in range(6)], [nxt63+4*i for i in range(6)], [228, 232, 236, 200, nxt63+24, nxt63+28]]
    crd = lambda sl: [f"ds_read_b128 {v(CB[sl][3*j+g],4)}, {v(cr)} offset:{6144*sl+3072*j+1024*g}" for j in range(2) for g in range(3)]
    fix[(63, 2)] += ["s_waitcnt lgkmcnt(0)", "s_barrier"] + crd(0)
    fix[(63, 3)] += crd(1); fix[(63, 6)] += crd(2)
    A.ext(Q.wait(("q", 1)))
    A(mf2b(S0, Xr(0), QX+2, "0", 0))
    n0 = len(A.L)
    for tag, ops in first[U0:]: A.ext(Q.add(tag, ops))
    n0 = 18 - (len(A.L) - n0)
    if n0 > 16: A("s_nop 1"); n0 -= 2
    A(f"s_nop {n0-1}")
    A(mf32(S0, Kr(0), QM+8)); A(mf32(S0+16, Kr(0), QM+12))
    A.ext(Q.wait(("q", 2)))
    ST.mark()
    A("s_nop 9"); A(".p2align 3")
    def needs(b, k):
        if b > 63: return []
        t = seq[b][0]; t1_, lp1 = seq[min(b+1, 63)]
        if k == 0: return [("x", t1_ >> 1), ("q", lp1)] if b < 63 else []
        if k == 4: return [("k", t1_)] if b < 63 else []
        if k == 3: return [("v", t, 0)]
        if k == 6: return [("v", t, 1)]
        return []
    ismem = lambda x: not (isinstance(x, tuple) or is_salu(x) or x.startswith("v_") or x.endswith(":"))
    for b in range(64):
        t, lp = seq[b]
        cur, nxt = (S0, S1) if b % 2 == 0 else (S1, S0)
        c0 = "0" if t == 0 else None
        mf = {3: mf32(Oreg(lp), Vr(t, 0), P, c0), 6: mf32(Oreg(lp), Vr(t, 1), P+4), 7: mf32(Oreg(lp)+16, Vr(t, 0), P+8, c0)}
        if b: mf[2] = mf32(Oreg(seq[b-1][1])+16, Vr(seq[b-1][0], 1), P+12)
        if b < 63:
            t1_, lp1 = seq[b+1]
            mf[0] = mf2b(nxt, Xr(t1_ >> 1), QX+2*lp1, "0", t1_ & 1); mf[4] = mf32(nxt, Kr(t1_), QM+8*lp1); mf[5] = mf32(nxt+16, Kr(t1_), QM+8*lp1+4)
        q = side[b]; mq = list(mid[b])
        if b in ASTAMPS(): ST.mark()
        for k in range(8):
            if k in mf: A(mf[k])
            n0 = len(A.L)
            if k >= 2:
                tags = needs(b, k+1) if k < 7 else needs(b+1, 0)
                w_ = Q.wait(*tags) if tags else []
                A.ext(w_); A.ext(fix[(b, k)])
                free = not w_ and not fix[(b, k)]; nmem = 0
                left = sum(1 for tg, x in q if ismem(x))
                even = len([j for j in range(k, 8) if j % 2 == 0])
                want = (1 if k % 2 == 0 else 0) if left <= even else -(-left//(8-k))
                while q:
                    tg, x = q[0]
                    if isinstance(x, tuple):
                        if not free and k < 7: break
                        q.pop(0); w_ = Q.wait(x[1]); A.ext(w_); free = free and not w_
                    elif x.endswith(":") or x.startswith("v_"): q.pop(0); A(x); free = False; nmem = 99 if k < 7 else nmem
                    elif is_salu(x):
                        if not free and k < 7 and len(q) <= 2*(7-k): break
                        q.pop(0); A(x); free = False
                    else:
                        if nmem >= want and k < 7: break
                        q.pop(0); A.ext(Q.add(tg, [x])); nmem += 1; free = False
            four = sum(1 for x in A.L[n0:] if isize(x) == 4)
            pk = (k-1) % 8; eb = E + 4*(pk & 1)
            if b or k:
                for j in range(2): A(f"v_cvt_pk_bf16_f32 {v(P+2*pk+j)}, {v(eb+2*j)}, {v(eb+2*j+1)}")
            for j in range(4):
                wide = j == 0 and four % 2 == 1
                A(f"v_exp_f32{'_e64' if wide else ''} {v(E+4*(k&1)+j)}, {v(cur+4*k+j)}")
                if j == 1 and k >= 3 and mq and not any(x == "s_waitcnt lgkmcnt(0)" for _, x in q): A(mq.pop(0))
        assert not q and not mq, (b, q)
    for j in range(2): A(f"v_cvt_pk_bf16_f32 {v(P+14+j)}, {v(E+4+2*j)}, {v(E+5+2*j)}")
    A("s_waitcnt lgkmcnt(0)"); A("s_nop 0")
    A(mf32(O0+16, Vr(15, 1), P+12))
    ST.mark()
    for j in range(2):
        for g in range(3):
            for i in range(4): A(f"v_add_f32 {v(CB[0][3*j+g]+i)}, {v(CB[0][3*j+g]+i)}, {v(CB[1][3*j+g]+i)}") if (j == 0 and g < 2) else None
            if not (j == 0 and g < 2):
                for i in (0, 2): A(f"v_pk_add_f32 {v(CB[0][3*j+g]+i,2)}, {v(CB[0][3*j+g]+i,2)}, {v(CB[1][3*j+g]+i,2)}")
    for sl in (0, 2):
        for j in range(2):
            for g in range(3):
                for i in (0, 2): A(f"v_pk_add_f32 {v(O0+16*j+4*g+i,2)}, {v(O0+16*j+4*g+i,2)}, {v(CB[sl][3*j+g]+i,2)}")
    A(f"{K}_anorm:")
    A(f"v_mov_b32 v12, {v(O0+8)}"); A(f"v_mov_b32 v13, {v(O0+8)}"); A(f"v_mov_b32 v14, {v(O0+24)}"); A(f"v_mov_b32 v15, {v(O0+24)}")
    A(f"s_mov_b32 s36, {hex(f2u(2.0**60))}"); A(f"s_mov_b32 s37, {hex(f2u(2.0**-60))}")
    A("v_permlane32_swap_b32 v12, v13"); A("v_permlane32_swap_b32 v14, v15"); A("s_nop 1")
    A("v_rcp_f32 v12, v13"); A("v_rcp_f32 v14, v15")
    A("v_cmp_nlt_f32_e64 vcc, v13, s36"); A("v_cmp_nlt_f32_e64 s[40:41], v15, s36"); A("v_cmp_ngt_f32_e64 s[42:43], v13, s37"); A("v_cmp_ngt_f32_e64 s[56:57], v15, s37")
    A("s_or_b64 vcc, vcc, s[40:41]"); A("s_or_b64 vcc, vcc, s[42:43]"); A("s_or_b64 vcc, vcc, s[56:57]"); A(f"s_cbranch_scc1 {K}_aslow")
    A(f"{K}_afin:")
    for j in range(2):
        for i in range(0, 12, 2): A(f"v_pk_mul_f32 {v(O0+16*j+i,2)}, {v(O0+16*j+i,2)}, {v(12+2*j,2)} op_sel_hi:[1,0]")
        for i in range(6): A(f"v_cvt_pk_bf16_f32 {v(S0+4*j+i if i < 4 else S0+8+2*j+i-4)}, {v(O0+16*j+2*i)}, {v(O0+16*j+2*i+1)}")
    def stores(fl):
        return ([f"buffer_store_dwordx4 {v(S0+4*j,4)}, {v(ov)}, {S4(SWS)}, s{sob if j == 0 else 39} offen {fl}" for j in range(2)] +
                ["s_mov_b32 exec_hi, 0", f"buffer_store_dwordx4 {v(S0+8,4)}, {v(LV)}, {S4(SWS)}, s63 offen {fl}"])
    A.ext(stores("sc1")); A("s_mov_b64 exec, -1")
    def cold():
        A(f"{K}_frspin:"); poll(A, frl, list(range(RLF, RLF+4)), sleep=8); A(f"s_branch {K}_frok")
        NM = S1
        A(f"{K}_aslow:")
        A(f"s_cmp_lg_u32 s{redo}, 0"); A(f"s_cbranch_scc1 {K}_afin")
        A(f"s_mov_b32 s{redo}, 1"); A(f"s_mov_b32 s{sok}, 0"); A(f"s_mov_b32 s{sox}, 0")
        A("v_mov_b32 v12, 0xff800000"); A("v_mov_b32 v13, 0xff800000")
        def scores(e, c):
            A(mf2b(S0, Xr(0), QX, c, e)); A("s_nop 15"); A("s_nop 1")
            A(mf32(S0, Kr(e), QM)); A(mf32(S0+16, Kr(e), QM+4)); A("s_nop 11")
        A(f"{K}_mloop:")
        A.ext(ldx(0) + ldk(0) + ldk(1)); A("s_waitcnt vmcnt(0)")
        for e in range(2):
            scores(e, "0")
            for j in range(2):
                for i in range(0, 16, 2): A(f"v_max3_f32 {v(12+j)}, {v(12+j)}, {v(S0+16*j+i)}, {v(S0+16*j+i+1)}")
        A(f"s_cmp_lt_u32 s{sok}, 163840"); A(f"s_cbranch_scc1 {K}_mloop")
        A("v_mov_b32 v14, v12"); A("v_mov_b32 v15, v13"); A("s_nop 1")
        A("v_permlane32_swap_b32 v12, v14"); A("v_permlane32_swap_b32 v13, v15"); A("s_nop 1")
        A("v_max_f32 v12, v12, v14"); A("v_max_f32 v13, v13, v15")
        for i in range(32): A(f"v_sub_f32 {v(NM+i)}, 0, {v(12+i//16)}"); A(f"v_mov_b32 {v(O0+i)}, 0")
        A(f"s_mov_b32 s{sok}, 0"); A(f"s_mov_b32 s{sox}, 0"); A(f"s_add_u32 s{sov}, s{GB}, {V_OFF}")
        A(f"{K}_sloop:")
        A.ext(ldx(0) + ldk(0) + ldk(1) + ldv(0, 0) + ldv(0, 1) + ldv(1, 0) + ldv(1, 1)); A("s_waitcnt vmcnt(0)")
        for e in range(2):
            scores(e, NM)
            for i in range(32): A(f"v_exp_f32 {v(S0+i)}, {v(S0+i)}")
            A("s_nop 0")
            for i in range(16): A(f"v_cvt_pk_bf16_f32 {v(P+i)}, {v(S0+2*i)}, {v(S0+2*i+1)}")
            A("s_nop 1")
            for j in range(2):
                for sx in range(2): A(mf32(O0+16*j, Vr(e, sx), P+8*j+4*sx))
        A(f"s_cmp_lt_u32 s{sok}, 163840"); A(f"s_cbranch_scc1 {K}_sloop")
        A("s_nop 15")
        A(f"s_branch {K}_anorm")
    return cold

RED = 86016
CSL = 147456
P4_SOW, P4_SOW2, P4_M0, P4_ST = 45, 46, 47, 48
class VQ:
    def __init__(self): self.q = []; self.done = 0
    def add(self, tag, ops):
        self.q += [tag for x in ops if x.startswith(("buffer", "global"))]
        assert len(self.q) - self.done <= 63, "too many outstanding"
        return ops
    def wait(self, *tags):
        idx = [i for i, x in enumerate(self.q) if x in tags]
        last = max(idx) + 1
        if last <= self.done: return []
        self.done = last
        return [f"s_waitcnt vmcnt({len(self.q) - last})"]

def p4_setup(A):
    A(f"s_lshr_b32 s36, s{GI}, 1"); A("s_mul_i32 s36, s36, 7"); A(f"s_min_u32 s{P4_ST}, s36, 101")
    A(f"s_mul_i32 s{P4_M0}, s{W}, 7168"); A(f"s_lshl_b32 s36, s{P4_ST}, 11"); A(f"s_add_u32 s36, s36, s{P4_M0}")
    A(f"s_lshr_b32 s37, s{W}, 1"); A(f"s_mul_i32 s37, s37, {221184-14336}"); A("s_add_u32 s36, s36, s37")
    A(f"s_add_u32 s{P4_SOW}, s36, {WGU_OFF}")
def p4_dma(stage):
    slot = stage % 5
    dw = lambda j: f"buffer_load_dwordx4 {v(LV)}, {S4(SWS)}, s{P4_SOW if j < 4 else P4_SOW2} offen offset:{(j&3)*1024} sc1 lds"
    return ([f"s_add_u32 m0, s{P4_M0}, {slot*28672}", f"s_add_u32 s{P4_SOW2}, s{P4_SOW}, 4096"] + [dw(j) for j in range(4)] +
            [f"s_add_u32 m0, s{P4_M0}, {slot*28672+4096}", f"s_add_u32 s{P4_SOW}, s{P4_SOW}, {2*221184}"] + [dw(j) for j in range(4, 7)])

def skinny_addr(A):
    for i in range(1, 4):
        A(f"s_add_u32 s36, s{W}, {i}"); A("s_and_b32 s36, s36, 3"); A("s_mul_i32 s36, s36, 15360"); A(f"s_add_u32 s36, s36, {RED+(i-1)*5120}"); A(f"v_add_u32 {v(SK_WR+i-1)}, s36, {v(LV)}")
    A(f"s_mul_i32 s36, s{W}, 15360"); A(f"s_add_u32 s36, s36, {RED}"); A(f"v_add_u32 {v(SK_RD)}, s36, {v(LV)}")
    A(f"v_and_b32 v2, 15, {v(LANE)}"); A(f"v_lshrrev_b32 v3, 4, {v(LANE)}")
    A("v_mul_u32_u24 v2, 1280, v2"); A(f"v_lshl_add_u32 {v(SK_RM)}, v3, 4, v2")
    A(f"s_lshl_b32 s49, s{GX}, 2"); A(f"s_and_b32 s36, s{GI}, 3"); A("s_add_u32 s49, s49, s36"); A("s_lshl_b32 s49, s49, 2"); A(f"s_add_u32 s49, s49, s{W}")
    A("s_mul_i32 s50, s49, 20480"); A(f"s_lshr_b32 s36, s{GI}, 3"); A("s_mul_i32 s37, s36, 320"); A("s_add_u32 s51, s50, s37")
    A("s_mul_i32 s37, s36, 5120"); A("s_add_u32 s50, s50, s37"); A(f"s_mul_i32 s37, s{GX}, {GS-327680}"); A("s_add_u32 s50, s50, s37"); A(f"s_add_u32 s50, s50, {H_OFF()}")
    A(f"s_bfe_u32 s36, s{GI}, 0x10002"); A("s_lshl_b32 s37, s36, 3")
    A("s_add_u32 s60, s50, s37"); A("s_add_u32 s60, s60, 2048"); A("s_add_u32 s61, s51, s37"); A("s_add_u32 s61, s61, 128")
    A("s_mul_i32 s37, s36, 3072"); A("s_add_u32 s50, s50, s37"); A("s_mul_i32 s37, s36, 192"); A("s_add_u32 s51, s51, s37")
def io_frag(op, regs, fl):
    return [f"buffer_{op}_dwordx4 {v(regs,4)}, {v(LV)}, {S4(SWS)}, s50 offen {fl}", f"buffer_{op}_dwordx4 {v(regs+4,4)}, {v(LV)}, {S4(SWS)}, s50 offen offset:1024 {fl}",
            f"buffer_{op}_dwordx2 {v(regs+8,2)}, {v(LV)}, {S4(SWS)}, s60 offen {fl}"]
def io_rm(op, regs, S):
    return [f"buffer_{op}_dwordx4 {v(regs,4)}, {v(SK_RM)}, {S4(S)}, s51 offen", f"buffer_{op}_dwordx4 {v(regs+4,4)}, {v(SK_RM)}, {S4(S)}, s51 offen offset:64",
            f"buffer_{op}_dwordx2 {v(regs+8,2)}, {v(SK_RM)}, {S4(S)}, s61 offen"]
def unpack(A, dst, src, n):
    for i in range(n): A(f"v_lshlrev_b32 {v(dst+2*i)}, 16, {v(src+i)}"); A(f"v_and_b32 {v(dst+2*i+1)}, 0xffff0000, {v(src+i)}")
def reduce_tail(A, ACC, rd):
    A("s_waitcnt lgkmcnt(0)"); A("s_barrier")
    for sl in range(3):
        for u in range(5): A(f"ds_read_b128 {v(ACC+20+20*sl+4*u,4)}, {v(rd)} offset:{5120*sl+1024*u}")
    for sl in range(3):
        A(f"s_waitcnt lgkmcnt({10-5*sl})")
        for i in range(0, 20, 2): A(f"v_pk_add_f32 {v(ACC+i,2)}, {v(ACC+i,2)}, {v(ACC+20+20*sl+i,2)}")
def quad_sum(A, regs, tmps):
    for swap in ("v_permlane32_swap_b32", "v_permlane16_swap_b32"):
        for x, t in zip(regs, tmps): A(f"v_mov_b32 {v(t)}, {v(x)}")
        A("s_nop 1")
        for x, t in zip(regs, tmps): A(f"{swap} {v(x)}, {v(t)}")
        A("s_nop 1")
        for x, t in zip(regs, tmps): A(f"v_add_f32 {v(x)}, {v(x)}, {v(t)}")

class TL:
    def __init__(self, A, Q, mf):
        self.A, self.Q, self.mf = A, Q, mf
        self.pre = [[] for _ in mf]; self.post = [[] for _ in mf]; self.valu = [[] for _ in mf]; self.lq = []
    @staticmethod
    def kind(x): return "v" if callable(x) or x.startswith(("buffer", "global")) else "s" if is_salu(x) else "d"
    def cost(self, k): return sum({"v": 8, "d": 4, "s": 0}[self.kind(x)] for t, x in self.post[k]) + 4*len(self.valu[k])
    def has(self, k, c): return any(self.kind(x) == c for t, x in self.post[k])
    def tied(self, k): return k+1 < len(self.mf) and bool(self.pre[k+1])
    def spread(self, items, k0, step, slack=3):
        k = float(k0); last = int(k0)-3; hold = []; n = len(self.mf)
        def salu(h, lo, hi):
            c = [j for j in range(max(lo, 0), hi+1) if not (self.has(j, "s") or self.has(j, "v") or self.tied(j))] or [j for j in range(max(lo, 0), hi+1) if not self.has(j, "v") and self.cost(j) <= 4]
            if c and not self.has(c[0], "s"): self.post[c[0]].insert(0, (None, h)); return c[0]
            j = c[0] if c else max(lo-1, 0)
            self.post[j].append((None, h)); return j
        for t, x in items:
            if is_salu(x): hold.append(x); continue
            kk = min(max(int(k), last), n-1)
            ok = (lambda j: self.cost(j) == 0 and not self.has(j, "s")) if self.kind(x) == "v" else (lambda j: self.cost(j) <= 4 and not self.has(j, "d"))
            if step >= 1:
                lo = max(kk, last+1+len(hold))
                c = [j for j in range(lo, min(lo+slack, n-1)+1) if ok(j)]
                kk = c[0] if c else min(lo, n-1)
                p = last
                for j, h in enumerate(hold): p = max(p, salu(h, p+1, kk-len(hold)+j))
            else:
                for h in hold: self.post[kk].append((None, h))
            hold = []; self.post[kk].append((t, x)); last = kk; k += step
        p = last
        for h in hold: p = max(p, salu(h, min(p+1, n-1), min(p+2, n-1)) if p+1 < n else (self.post[n-1].append((None, h)) or n-1))
        return max(k, p+1)
    def vspread(self, ops, k0, k1, cap=2):
        ops = list(ops); k1 = min(k1, len(self.mf))
        room = [max(0, (4*cap - self.cost(k))//4) for k in range(k0, k1)]
        while sum(room) < len(ops):
            j = min(range(len(room)), key=lambda j: self.cost(k0+j) + 4*room[j]); room[j] += 1
        extra = sum(room) - len(ops)
        while extra:
            j = max(range(len(room)), key=lambda j: (room[j] > 0, self.cost(k0+j) + 4*room[j], j)); room[j] -= 1; extra -= 1
        last = k0
        for j, c in enumerate(room):
            for _ in range(c): self.valu[k0+j].append(ops.pop(0)); last = k0+j
        return last+1
    def emit(self):
        A, Q = self.A, self.Q
        def one(t, x):
            if callable(x): x()
            elif isinstance(x, tuple) and x[0] == "lwait": A(f"s_waitcnt lgkmcnt({min(15, len(self.lq)-1-max(i for i, y in enumerate(self.lq) if y == x[1]))})")
            elif isinstance(x, tuple): A.ext(Q.wait(*x[1:]))
            else:
                if x.startswith("ds_"): self.lq.append(t)
                elif t is not None: Q.add(t, [x])
                A(x)
        for k, m in enumerate(self.mf):
            for x in self.pre[k]: one(None, x)
            A(m)
            if k+1 < len(self.mf):
                nx = self.pre[k+1]
                while nx and ((isinstance(nx[0], str) and nx[0].startswith("s_waitcnt lgkmcnt") and not self.has(k, "d")) or
                              (isinstance(nx[0], tuple) and not any(t in nx[0][1:] for t, x in self.post[k]))):
                    one(None, nx.pop(0))
            for t, x in self.post[k]: one(t, x)
            A.ext(self.valu[k])

W5X = 208
def w5reg(f): return 256+4*f if f < 64 else (64, 68, 72, 76, 224, 228)[f-64]
def w5load(f):
    ks, u = divmod(f, 5)
    L = [f"buffer_load_dwordx4 {r(w5reg(f),4)}, {v(WV if u < 4 else WV+1)}, {S4(SWS)}, s100 offen offset:{1024*(u&3)} sc1"]
    if u == 4: L.append("s_add_u32 s100, s100, 40960" if ks != 12 else "s_add_u32 s100, s100, s94")
    return L
S_F2P, S_STW, S_F3W, S_F3P, S_STR, S_F4W, S_F4P, S_F3A, S_OH, S_OHH, S_OH1, S_A5 = 64, 65, 66, 67, 68, 69, 70, 71, 28, 29, 30, 72
P4_LA, P4_LB, P4_HV, P4_SV, P4_CA, P4_CB, P4_F3V, L4V, ONEV = 4, 7, 11, 12, 13, 14, 15, 241, 10
def w5_setup(A):
    A(f"s_mul_i32 s36, s{W}, 14"); A(f"s_sub_i32 s37, s{W}, 2"); A("s_max_i32 s37, s37, 0"); A("s_sub_u32 s31, s36, s37")
    A(f"s_lshr_b32 s36, s{GI}, 2"); A("s_mul_i32 s36, s36, 5120"); A("s_mul_i32 s100, s31, 40960"); A("s_add_u32 s100, s100, s36"); A(f"s_add_u32 s100, s100, {WD_OFF}")
    A(f"s_cmp_ge_u32 s{W}, 2"); A(f"s_cselect_b32 s92, {OOB}, 0"); A("s_add_u32 s94, s92, 40960")
def late_setup(A):
    A("s_and_b32 s57, s49, 12"); A("s_mul_i32 s57, s57, 55296"); A("s_lshl_b32 s37, s31, 10"); A("s_add_u32 s57, s57, s37"); A(f"s_add_u32 s57, s57, s{GB}"); A(f"s_add_u32 s57, s57, {HH_OFF()}")
    for i in range(4):
        A(f"s_add_u32 s36, s{W}, {i}"); A("s_and_b32 s36, s36, 3"); A("s_mul_i32 s37, s36, 55296"); A(f"s_add_u32 s{S_A5+i}, s57, s37")
    A(f"s_lshr_b32 s37, s{GI}, 2"); A("s_lshl_b32 s36, s49, 3"); A("s_add_u32 s36, s36, s37"); A("s_lshl_b32 s36, s36, 7"); A(f"s_add_u32 s{S_STW}, s36, {STAT_OFF}")
    A("s_lshr_b32 s36, s49, 1"); A("s_lshl_b32 s36, s36, 5"); A("s_lshl_b32 s37, s37, 1"); A("s_add_u32 s36, s36, s37"); A("s_and_b32 s37, s49, 1"); A("s_add_u32 s36, s36, s37")
    A("s_lshl_b32 s36, s36, 2"); A(f"s_add_u32 s{S_F3W}, s36, {F3_OFF}")
    A("s_lshr_b32 s36, s49, 2"); A("s_lshl_b32 s36, s36, 8"); A(f"s_add_u32 s{S_F4P}, s36, {F4_OFF}")
    A(f"s_and_b32 s36, s{GI}, 1"); A(f"s_lshl_b32 s37, s{GX}, 1"); A("s_add_u32 s36, s36, s37"); A("s_lshl_b32 s36, s36, 2"); A(f"s_add_u32 s36, s36, s{W}")
    A("s_and_b32 s56, s36, 7"); A(f"s_mul_i32 s{S_OH}, s56, 40960"); A(f"s_add_u32 s{S_OH}, s{S_OH}, s{GB}"); A(f"s_add_u32 s{S_OH}, s{S_OH}, {H_OFF()}")
    A(f"s_lshl_b32 s37, s36, 7"); A(f"s_add_u32 s{S_F3P}, s37, {F3_OFF}")
    A(f"s_lshr_b32 s39, s{GI}, 1"); A("s_lshl_b32 s39, s39, 2"); A("s_add_u32 s37, s37, s39"); A(f"s_add_u32 s{S_F4W}, s37, {F4_OFF}")
    A("s_lshl_b32 s37, s36, 11"); A(f"s_add_u32 s{S_STR}, s37, {STAT_OFF}")
    A(f"s_lshl_b32 s37, s{GX}, 10"); A(f"s_add_u32 s{S_F3A}, s37, {F3_OFF}")
    A(f"s_and_b32 s57, s{P4_ST}, 1")
    A(f"s_mul_i32 s{S_OHH}, s56, 110592"); A(f"s_add_u32 s{S_OHH}, s{S_OHH}, s{GB}"); A(f"s_add_u32 s{S_OHH}, s{S_OHH}, {HH_OFF()}")
    A(f"s_lshr_b32 s37, s{P4_ST}, 1"); A("s_lshl_b32 s37, s37, 10"); A(f"s_add_u32 s{S_OHH}, s{S_OHH}, s37")
    A("s_cmp_eq_u32 s57, 0"); A("s_cselect_b32 s37, 3072, 8"); A(f"s_cselect_b32 s39, {6*2048}, 0"); A(f"s_cselect_b32 s56, {6*128}, 0"); A(f"s_add_u32 s{S_OH1}, s{S_OHH}, s37")
    A("s_lshl_b32 s37, s57, 10"); A(f"s_add_u32 s{S_OHH}, s{S_OHH}, s37"); A("s_lshl_b32 s36, s57, 11")
    A(f"s_cmp_ge_u32 s{GI}, 28"); A(f"s_cselect_b32 s{S_OH1}, {OOB}, s{S_OH1}"); A(f"s_cmp_ge_u32 s{GI}, 30"); A(f"s_cselect_b32 s33, {OOB}, s{S_OHH}")
    for i in range(3):
        A(f"v_add_u32 {v(P4_LA+i)}, s36, {v(LV)}"); A(f"v_add_u32 {v(P4_LB+i)}, s39, {v(LV)}"); A("s_add_u32 s36, s36, 57344"); A("s_add_u32 s39, s39, 57344")
    A(f"v_add_u32 {v(P4_HV)}, 20480, {v(LV)}"); A(f"v_lshrrev_b32 v2, 4, {v(LANE)}"); A(f"v_and_b32 v3, 15, {v(LANE)}")
    A(f"v_lshlrev_b32 {v(P4_SV)}, 8, v2"); A(f"v_lshl_add_u32 {v(P4_SV)}, v3, 3, {v(P4_SV)}")
    A("s_lshl_b32 s36, s57, 7"); A(f"s_add_u32 s36, s36, {CSL}"); A(f"v_lshl_add_u32 {v(P4_CA)}, v2, 4, s36")
    A(f"s_add_u32 s56, s56, {CSL}"); A(f"v_lshl_add_u32 {v(P4_CB)}, v2, 4, s56")
    A(f"v_lshrrev_b32 v2, 3, {v(LANE)}"); A(f"v_and_b32 v3, 7, {v(LANE)}"); A("v_lshlrev_b32 v2, 7, v2"); A(f"v_lshl_add_u32 {v(P4_F3V)}, v3, 3, v2")
    srd(A, SA, 86, 2621440)

COLD = []
def mode_store(A, ins):
    alt, back = A.label("wt"), A.label("wb")
    COLD.append([f"{alt}:"] + [x + " sc1" for x in ins] + [f"s_branch {back}"])
    return [f"s_cbranch_vccz {alt}"] + ins + [f"{back}:"]
def set_mode(A): A(f"s_mov_b32 vcc_lo, s{MODE}"); A("s_mov_b32 vcc_hi, 0")
def red_write(AC, i, u): return f"ds_write_b128 {v(SK_WR+i-1)}, {v(AC[i]+4*u,4)} offset:{1024*u}"
def red_read(AC, sl): return [f"ds_read_b128 {v(AC[sl+1]+4*u,4)}, {v(SK_RD)} offset:{5120*sl+1024*u}" for u in range(5)]

def phase3(A, ST):
    ACC, RES, CSP = 16, P3RES, P3CS
    AC = (16, 36, 56, 76); AF = (96, 116, 200, 220)
    order = (1, 2, 3, 0)
    al = lambda n: ([f"buffer_load_dwordx2 {v(AF[n]+16+2*j,2)}, v252, {S4(SWS)}, s{52+order[n]} offen offset:{512*j} sc1" for j in range(2)] +
                    [f"buffer_load_dwordx4 {v(AF[n]+4*ks,4)}, {v(LV)}, {S4(SWS)}, s{80+order[n]} offen offset:{1024*ks} sc1" for ks in range(4)])
    chk = lambda n: ([f"v_max3_u32 v2, {v(AF[n])}, {v(AF[n]+1)}, {v(AF[n]+2)}"] + [f"v_max3_u32 v2, v2, {v(AF[n]+i)}, {v(AF[n]+i+1)}" for i in range(3, 19, 2)] +
                     [f"v_max_u32 v2, v2, {v(AF[n]+19)}"])
    UP = CFG.get("p3up", 2)
    Q = VQ(); Q.q = ["old"] + ["o"]*(CFG["w5z"]+3)
    HINT = CFG.get("hint", 1)
    hint = ["s_mov_b64 exec, 1", f"buffer_atomic_or v10, off, {S4(SWS)}, s38 sc1", "s_mov_b64 exec, -1"]
    if HINT == 1: A.ext(Q.add("o", hint))
    for f in range(CFG["w5z"], CFG["w5a"]): A.ext(Q.add("o", w5load(f)))
    B = Asm(); late_setup(B); B("v_mov_b32 v240, 2"); LS = [x.strip() for x in B.L]; cut = LS.index(f"s_and_b32 s36, s{GI}, 1") if CFG.get("lsp", 0) == 1 else len(LS)*(CFG.get("lsp", 0) == 2)
    A.ext(LS[:cut])
    A.ext(Q.wait("old"))
    A("s_barrier")
    unpack(A, ACC, RES, 10)
    A(f"v_add_f32 {v(CSP)}, {v(CSP)}, {v(CSP+1)}"); A(f"v_add_f32 {v(CSP+2)}, {v(CSP+2)}, {v(CSP+3)}"); A(f"v_add_f32 {v(CSP)}, {v(CSP)}, {v(CSP+2)}")
    A(f"v_add_u32 v146, {CSL}, v146"); A(f"ds_write_b32 v146, {v(CSP)}")
    ST.mark()
    if HINT:
        A("s_mov_b64 exec, 0xff"); poll(A, apoll(2, L4V, 84, 1), [2]); A("s_mov_b64 exec, -1"); ST.mark()
        Q = VQ()
        for n in range(UP): A.ext(Q.add(("a", n), al(n)))
    A.ext(LS[cut:])
    def retry(n):
        A(f"{K}_ospin{n}:")
        if n == 0 and CFG.get("opx", 0):
            poll(A, al(0)[:2], [2], sleep=CFG.get("ops", 0), post=[f"v_max3_u32 v2, {v(AF[0]+16)}, {v(AF[0]+17)}, {v(AF[0]+18)}", f"v_max_u32 v2, v2, {v(AF[0]+19)}", "v_not_b32 v2, v2"])
        poll(A, [x for m in range(n, max(UP, n+1)) for x in al(m)], [2], sleep=CFG.get("ops", 0), post=chk(n) + ["v_not_b32 v2, v2"])
        A(f"s_branch {K}_ook{n}")
    for n in range(4): COLD.append(lambda n=n: retry(n))
    br = lambda n: ["v_cmp_eq_u32 vcc, -1, v2", "s_nop 0", f"s_cbranch_vccnz {K}_ospin{n}", f"{K}_ook{n}:"]
    A.ext(Q.wait(("a", 0))); A.ext(chk(0) + br(0))
    if not HINT: ST.mark()
    T = TL(A, Q, [mf16(ACC+20*i+4*u, w3reg(5*ks+u), AF[n]+4*ks, "0" if (ks == 0 and i) else None) for n, i in enumerate(order) for u in range(5) for ks in range(5)])
    T.pre[0].append(ST.mark)
    for n in range(1, 4): T.pre[25*n-8].append(("wait", ("a", n))); T.pre[25*n] += br(n)[2:] + ([lambda: set_mode(A)] if n == 3 else [])
    k = T.spread([(("a", n), x) for n in range(UP, 4) for x in al(n)], 0, CFG.get("p3as", 2))
    T.spread([("w5", x) for f in range(CFG["w5a"], CFG["w5b"]) for x in w5load(f)], k+1, CFG.get("p3ws", 3.5))
    for n in range(3):
        for u in range(5): T.post[25*n+5*u+13].append((None, red_write(AC, order[n], u)))
    T.pre[66] += ["s_waitcnt lgkmcnt(1)", "s_barrier"]
    T.spread([(None, x) for x in red_read(AC, 0) + red_read(AC, 1)], 66, 2)
    T.pre[88] += ["s_waitcnt lgkmcnt(0)", "s_barrier"]
    T.spread([(None, x) for x in red_read(AC, 2)], 88, 1)
    for n in range(1, 4): T.vspread(chk(n) + br(n)[:1], 25*n-8, 25*n-1)
    T.vspread([f"v_add_f32 {v(ACC+20+i)}, {v(ACC+20+i)}, {v(ACC+40+i)}" for i in range(20)], 88, 100)
    T.emit()
    ST.mark()
    A("s_waitcnt lgkmcnt(0)")
    for i in range(0, 20, 2): A(f"v_pk_add_f32 {v(ACC+20+i,2)}, {v(ACC+20+i,2)}, {v(ACC+60+i,2)}")
    for i in range(0, 20, 2): A(f"v_pk_add_f32 {v(ACC+i,2)}, {v(ACC+i,2)}, {v(ACC+20+i,2)}")
    for i in range(10): A(f"v_cvt_pk_bf16_f32 {v(RES+i)}, {v(ACC+2*i)}, {v(ACC+2*i+1)}")
    A.ext(mode_store(A, io_frag("store", RES, "")))
    sm, sq = 112, 114
    A(f"v_pk_mul_f32 {v(sq,2)}, {v(ACC,2)}, {v(ACC,2)}"); A(f"v_pk_add_f32 {v(sm,2)}, {v(ACC,2)}, {v(ACC+2,2)}")
    for i in range(2, 20, 2):
        A(f"v_pk_fma_f32 {v(sq,2)}, {v(ACC+i,2)}, {v(ACC+i,2)}, {v(sq,2)}")
        if i > 2: A(f"v_pk_add_f32 {v(sm,2)}, {v(sm,2)}, {v(ACC+i,2)}")
    A(f"v_add_f32 {v(sm)}, {v(sm)}, {v(sm+1)}"); A(f"v_add_f32 {v(sm+1)}, {v(sq)}, {v(sq+1)}")
    quad_sum(A, [sm, sm+1], [sq, sq+1])
    A("s_mov_b64 exec, 0xffff"); A.ext(mode_store(A, [f"buffer_store_dwordx2 {v(sm,2)}, {v(P4_SV)}, {S4(SWS)}, s{S_STW} offen"])); A("s_mov_b64 exec, -1")

def phase4(A, ST):
    la, lb, hv, sv, ca, cb = P4_LA, P4_LB, P4_HV, P4_SV, P4_CA, P4_CB
    STT, HR, ACC, WB, CR = 232, 16, 96, 208, 224
    NW, HD = 3, 4
    WR = lambda n: (80 + 8*(n % 4)) if n % 4 < 2 else (WB + 8*(n % 4 - 2))
    U = [(s_, m) for s_ in range(8) for m in range(14)] + ([(s_, m) for m in range(14) for s_ in (8, 9)] if CFG.get("p4tail", 1) else [(s_, m) for s_ in (8, 9) for m in range(14)])
    def reads(n):
        s_, m = U[n]; slot = s_ % 5; j, mat = divmod(m, 2)
        base, off = (la, j*2048) if j < 6 else (lb, 0)
        return [f"ds_read_b128 {v(WR(n)+4*ks,4)}, {v(base+slot//2)} offset:{(slot%2)*28672+off+mat*1024+ks*14336}" for ks in range(2)]
    for n in range(NW): A.ext(reads(n))
    A("s_barrier")
    A("s_waitcnt vmcnt(1)")
    A.ext(mode_store(A, [f"buffer_store_dword {v(ONEV)}, off, {S4(SWS)}, s{S_F3W}"]))
    ST.mark()
    A("s_mov_b64 exec, 0xffff")
    poll(A, [f"buffer_load_dword v2, {v(L4V)}, {S4(SWS)}, s{S_F3P} offen sc1"], [2])
    A("s_mov_b64 exec, -1")
    ST.mark()
    Q = VQ()
    def hl(s_): return [f"buffer_load_dwordx4 {v(HR+16*(s_%HD)+8*n+4*ks,4)}, {v(hv if n else LV)}, {S4(SWS)}, s{S_OH} offen offset:{1024*ks} sc1" for n in range(2) for ks in range(2)] + [f"s_add_u32 s{S_OH}, s{S_OH}, 2048"]
    if CFG.get("p4x"): A(f"s_mov_b32 s95, {OOB}")
    UP = CFG.get("p4up", 2)
    for s_ in range(UP): A.ext(Q.add(("h", s_), hl(s_)))
    set_mode(A); f2_ = [f"buffer_store_dword v240, off, {S4(SWS)}, s{S_F3W}"]; A.ext(mode_store(A, f2_)); Q.add("f", f2_)
    f3l = [f"buffer_load_dwordx2 v[2:3], {v(P4_F3V)}, {S4(SWS)}, s{S_F3A} offen sc1"]
    stl = [f"buffer_load_dwordx2 {v(STT+4*n+2*c,2)}, {v(sv)}, {S4(SWS)}, s{S_STR} offen offset:{1024*n+128*c} sc1" for n in range(2) for c in range(2)]
    T = TL(A, Q, [mf16(ACC+8*m+4*nn, WR(n)+4*ks, HR+16*(s_ % HD)+8*nn+4*ks, "0" if (s_ == 0 and ks == 0) else None)
                  for n, (s_, m) in enumerate(U) for nn in ((1, 0) if (s_ == 9 and CFG.get("p4tail", 1)) else (0, 1)) for ks in range(2)])
    MS = 6
    lq = [0, 0, 1, 1, 2, 2]; fm = []
    for n in range(140):
        s_, m = U[n]
        need = [i for i, x in enumerate(lq) if x == n or x == ("c", n)]
        T.pre[4*n].append(f"s_waitcnt lgkmcnt({len(lq)-1-max(need)})")
        if m == 0: T.pre[4*n].append(("wait", ("h", s_)))
        if m == 11 and s_ < (8 if CFG.get("p4tail", 1) else 9):
            if s_+1 >= 3: T.pre[4*n].append(("wait", ("w", s_+1 + (s_ == 7 and CFG.get("p4tail", 1)))))
            T.pre[4*n].append("s_barrier")
        e2 = n + 2 - 14*MS
        if 0 <= e2 < 28 and e2 % 2 == 0:
            e = e2//2; mu = (2*e + 6 + (e >= 7)) % 14; j, mat = divmod(mu, 2)
            T.post[4*n].append((None, f"ds_read_b128 {v(CR+4*(e&1),4)}, {v(ca if j < 6 else cb)} offset:{(128*j if j < 6 else 0)+64*mat}")); lq.append(("c", n+2))
            fm.append((4*(n+2), [f"v_fmac_f32 {v(ACC+8*mu+i)}, {v(CR+4*(e&1)+i%4)}, {v(STT+4*(i//4))}" for i in range(8)]))
        if n+NW < 140:
            for j, x in enumerate(reads(n+NW)): T.post[4*n+j+1].append((None, x))
            lq += [n+NW, n+NW]
    T.pre[0].append(ST.mark)
    for s_ in P4ST(): T.pre[56*s_].insert(0, ST.mark)
    w5 = list(range(CFG["w5b"], 70)); LAST = CFG.get("p4last", 9.0)
    base = {s_: [] for s_ in range(10)}
    for s_ in range(UP, 10): base[max(0, s_-HD+1)] += [(("h", s_), x) for x in hl(s_)]
    for s_ in range(3, 10): base[s_-3] += [(("w", s_), x) for x in p4_dma(s_)]
    base[1] += [("f3", x) for x in f3l]; base[3] = [("st", x) for x in stl] + base[3]
    cnt = lambda L: sum(1 for t, x in L if not is_salu(x)); kk = 0
    for s_ in range(10):
        span = min(1.0, LAST - s_)
        if span > 0:
            later = sum(cnt(base[j]) for j in range(s_, 10)) + len(w5)
            for _ in range(min(len(w5), max(0, math.ceil(later*span/(LAST-s_)) - cnt(base[s_])))):
                if w5[0] < 64 or s_ >= 8: base[s_] += [("w5", x) for x in w5load(w5.pop(0))]
        px = CFG.get("p4x", "")
        if "oob" in px: base[s_] = [(t, _re.sub(r"s\d+ offen", "s95 offen", x) if (t == "w5" or t[0] == "w") else x) for t, x in base[s_]]
        if "drop" in px: base[s_] = [(t, x) for t, x in base[s_] if t != "w5"]
        if base[s_]: kk = T.spread(base[s_], max(56*s_+3, kk+2), (56*span-5)/cnt(base[s_]))
    assert not w5
    for k0, ops in fm: T.vspread(ops, k0, k0+8)
    B = Asm()
    for n in range(2):
        for i in range(2): B(f"v_add_f32 {v(STT+4*n+i)}, {v(STT+4*n+i)}, {v(STT+4*n+2+i)}")
    quad_sum(B, [STT, STT+1, STT+4, STT+5], [STT+2, STT+3, STT+6, STT+7])
    for n in range(2):
        nm, r2 = STT+4*n, STT+4*n+2
        B(f"v_mul_f32 {v(nm)}, {hex(f2u(-1/640))}, {v(nm)}"); B(f"v_mul_f32 {v(r2)}, {hex(f2u(1/640))}, {v(nm+1)}")
        B(f"v_fma_f32 {v(r2)}, -{v(nm)}, {v(nm)}, {v(r2)}"); B(f"v_max_f32 {v(r2)}, 0, {v(r2)}"); B(f"v_add_f32 {v(r2)}, {hex(f2u(1e-5))}, {v(r2)}"); B(f"v_rcp_f32 {v(r2)}, {v(r2)}")
    T.pre[56*4+20].append(("wait", "st"))
    k = 56*4+20
    for x in (x.strip() for x in B.L if "s_nop" not in x):
        while T.cost(k) > 4: k += 1
        T.valu[k].append(x); k += 2 if ("permlane" in x or "v_mov" in x) else 1
    assert k <= 56*6
    T.pre[56*3] += [("wait", "f3"), "v_min_u32 v2, v2, v3", "v_cmp_gt_u32 vcc, 2, v2", "s_nop 1", f"s_cbranch_vccnz {K}_f3spin", f"{K}_f3ok:", lambda: set_mode(A)]
    if CFG.get("wb4"):
        def wb():
            lab = A.label("nowb"); A(f"s_or_b32 s36, s{W}, s{GI}"); A(f"s_cbranch_scc1 {lab}"); A("buffer_wbl2 sc1"); A(f"{lab}:")
        T.pre[CFG["wb4"]].append(wb)
    T.vspread([f"v_add_u32 {v(hv)}, 55296, {v(LV)}"], 56*8+1, 56*8+5)
    COLD.append(lambda: (A(f"{K}_f3spin:"), poll(A, f3l, [2], sleep=4, post=["v_min_u32 v2, v2, v3", "v_lshrrev_b32 v2, 1, v2"]), A(f"s_branch {K}_f3ok")))
    OB = 48
    def strip(j, n, pk):
        r2 = STT+4*n+2; o = OB + 8*((j >> 1) % 2) + 4*n + 2*(j & 1); g, u = ACC+16*j+4*n, ACC+16*j+8+4*n
        if pk: L = [f"v_pk_mul_f32 {v(g+i,2)}, {v(g+i,2)}, {v(r2,2)} op_sel_hi:[1,0]" for i in (0, 2)] + [f"v_pk_mul_f32 {v(g+i,2)}, {v(g+i,2)}, {v(u+i,2)}" for i in (0, 2)]
        else: L = [f"v_mul_f32 {v(g+i)}, {v(g+i)}, {v(r2)}" for i in range(4)] + [f"v_mul_f32 {v(g+i)}, {v(g+i)}, {v(u+i)}" for i in range(4)]
        return L + [f"v_cvt_pk_bf16_f32 {v(o+i)}, {v(g+2*i)}, {v(g+2*i+1)}" for i in range(2)]
    def hst(a_): return [f"buffer_store_dwordx{4 if a_ < 3 else 2} {v(OB+8*(a_%2)+4*n, 4 if a_ < 3 else 2)}, {v(hv if n else LV)}, {S4(SWS)}, s{33 if a_ == 0 else S_OHH if a_ < 3 else S_OH1} offen" + (f" offset:{1024*a_}" if a_ < 3 else "") for n in range(2)]
    NI = CFG.get("p4ni", 6 if CFG.get("p4tail", 1) else 4); k = 0
    for j in range(NI):
        k0 = max(k, (56*8 + 16*(j+1) + 3) if CFG.get("p4tail", 1) else (56*9 + 8*(j+1) + 5))
        a0, a1 = strip(j, 1, False), strip(j, 0, False)
        k = T.vspread(a0[:4] + a1[:4] + a0[4:] + a1[4:], k0, min(k0+12, 560), cap=CFG.get("p4cap", 2))
        if j & 1 and k < 560:
            st_ = hst(j >> 1); T.post[k].append((None, (lambda st_=st_: (A.ext(mode_store(A, st_)), Q.add("hh", st_)))))
    stored = [j >> 1 for j in range(NI) if j & 1]
    if NI and NI % 2 == 0 and k >= 560: stored.pop()
    T.emit()
    ST.mark()
    for a_ in range(4):
        for j in ([2*a_, 2*a_+1] if a_ < 3 else [6]):
            if j >= NI:
                a0, a1 = strip(j, 1, True), strip(j, 0, True)
                A.ext(a0[:2] + a1[:2] + (["s_nop 1"] if j == NI else []) + a0[2:] + a1[2:])
        if a_ not in stored: A.ext(mode_store(A, hst(a_))); Q.add("hh", hst(a_))
    return Q

def phase5(A, ST, Q):
    AC, RES = (16, 36, 80, 204), 232
    AFG = [100+4*i for i in range(26)] + [56, 60]
    AF = lambda n, ks: AFG[14*(n & 1)+ks]
    A(f"v_add_u32 v14, s92, {v(LV)}")
    A(f"v_lshrrev_b32 v15, 4, {v(LANE)}"); A(f"v_mul_u32_u24 v15, 64, v15"); A(f"v_add_u32 v15, v15, {v(L4V)}")
    A("s_waitcnt vmcnt(0)")
    A.ext(mode_store(A, [f"buffer_store_dword {v(ONEV)}, off, {S4(SWS)}, s{S_F4W}"]))
    ST.mark()
    A("s_mov_b32 exec_hi, 0")
    poll(A, [f"buffer_load_dword v2, v15, {S4(SWS)}, s{S_F4P} offen sc1"], [2])
    A("s_mov_b64 exec, -1")
    ST.mark()
    Q = VQ()
    order = (1, 2, 3, 0)
    def al(n, ks):
        i = order[n]
        L = [f"buffer_load_dwordx4 {v(AF(n,ks),4)}, {v(14 if ks == 13 else LV)}, {S4(SWS)}, s{S_A5+i} offen offset:{1024*(ks&3)} sc1"]
        if ks & 3 == 3: L.append(f"s_add_u32 s{S_A5+i}, s{S_A5+i}, 4096")
        return L
    UP = CFG.get("p5up", 8); STEP = CFG.get("p5st", 4)
    for ks in range(UP): A.ext(Q.add((0, ks), al(0, ks)))
    T = TL(A, Q, [mf16(AC[i]+4*u, w5reg(5*ks+u), AF(n, ks), "0" if (ks == 0 and i) else None)
                  for n, i in enumerate(order) for kp in range(7) for u in range(5) for ks in (2*kp, 2*kp+1)])
    for n in range(4):
        for kp in range(7): T.pre[70*n+10*kp].append(("wait", (n, 2*kp+1)))
    T.pre[0].append(ST.mark)
    T.pre[60].append("s_barrier")
    for n in range(3):
        for u in range(5): T.post[70*(n+1)+2+5*u].append((None, red_write(AC, order[n], u)))
    k = 0
    for g in range(UP, 56):
        n, ks = divmod(g, 14)
        if n >= 2: k = max(k, 70*(n-2) + 10*(ks//2+1) - 1)
        if g == 36: k = T.spread([("res", x) for x in io_frag("load", RES, "sc1")], k, STEP)
        assert k+3 < 70*n + 10*(ks//2)
        k = T.spread([((n, ks), x) for x in al(n, ks)], k, STEP)
    B = Asm(); unpack(B, AC[0], RES, 10)
    T.pre[180].append(("wait", "res")); T.vspread([x.strip() for x in B.L], 180, 206)
    if CFG.get("wb"):
        def wb():
            lab = A.label("nowb"); A(f"s_or_b32 s36, s{W}, s{GI}"); A(f"s_cbranch_scc1 {lab}"); A("buffer_wbl2 sc1"); A(f"{lab}:")
        T.pre[CFG["wb"]].append(wb)
    T.pre[237] += ["s_waitcnt lgkmcnt(0)", "s_barrier"]
    T.spread([(None, x) for sl in range(3) for x in red_read(AC, sl)], 237, 1)
    T.pre[254].append("s_waitcnt lgkmcnt(5)"); T.vspread([f"v_add_f32 {v(AC[1]+i)}, {v(AC[1]+i)}, {v(AC[2]+i)}" for i in range(20)], 254, 266)
    T.pre[266].append("s_waitcnt lgkmcnt(0)"); T.vspread([f"v_add_f32 {v(AC[1]+i)}, {v(AC[1]+i)}, {v(AC[3]+i)}" for i in range(20)], 266, 280)
    T.emit()
    ST.mark()
    A("s_nop 1")
    for i in range(0, 20, 2): A(f"v_pk_add_f32 {v(AC[0]+i,2)}, {v(AC[0]+i,2)}, {v(AC[1]+i,2)}")
    for i in range(10): A(f"v_cvt_pk_bf16_f32 {v(RES+i)}, {v(AC[0]+2*i)}, {v(AC[0]+2*i+1)}")
    A.ext(io_rm("store", RES, SA))

def build(**cfg):
    CFG.update(cfg)
    A = Asm(); ST = Stamps(A)
    kstart(A, K)
    if CFG.get("empty"): A("s_endpgm")
    ST.mark()
    if CFG.get("probe"):
        off, base = {"bx": (24, 0), "ws": (72, 40 << 20), "out": (56, 0), "wd": (48, 0)}[CFG["probe"]]
        A(f"s_load_dwordx2 s[4:5], s[0:1], {off}"); A("s_waitcnt lgkmcnt(0)"); A(f"s_mov_b32 s6, {base + (2<<20)}"); A("s_mov_b32 s7, 0x20000")
        A("s_and_b32 s8, s2, 255"); A("s_lshl_b32 s8, s8, 9"); A(f"s_add_u32 s8, s8, {base}"); A("v_lshrrev_b32 v2, 6, v0"); A("v_lshlrev_b32 v2, 7, v2")
        for i in range(16):
            A("buffer_load_dword v3, v2, s[4:7], s8 offen"); A("s_waitcnt vmcnt(0)"); A("s_add_u32 s8, s8, 131072")
    COLD.clear(); phase1(A, ST)
    cold = phase2(A, ST)
    phase3(A, ST); phase5(A, ST, phase4(A, ST))
    ST.flush()
    A("s_endpgm")
    cold()
    for c in COLD: c() if callable(c) else A.ext(c)
    A(f"{K}_end:")
    A("s_endpgm")
    kdesc(A, K, 512, acc=256)
    head = open(f"cdna_kernels/{NAME}.s.ref").read().split("; Override launch")[0]
    head += "; @launch grid=(256,1,1) block=(256,1,1) lds=163840\n"
    return head + '.amdgcn_target "amdgcn-amd-amdhsa--gfx950"\n' + A.text()

if __name__ == "__main__":
    out = sys.argv[1] if len(sys.argv) > 1 else f"cdna_kernels/{NAME}.s"
    cfg = {}
    for x in sys.argv[2:]:
        k, val = x.split("=")
        cfg[k] = int(val) if val.lstrip("-").isdigit() else float(val) if val.replace(".", "", 1).isdigit() else val
    txt = build(**cfg)
    names = STAMP_NAMES[:3] + [f"p1 kstep {g}" for g in P1ST()] + STAMP_NAMES[3:8] + [f"att body {b}" for b in ASTAMPS()] + STAMP_NAMES[8:16] + [f"p4 stage {b}" for b in P4ST()] + STAMP_NAMES[16:]
    if CFG["stamps"]: txt = txt.replace(".amdgcn_target", "; STAMPS " + "|".join(names) + "\n.amdgcn_target", 1)
    open(out, "w").write(txt)
```

```python
import sys, math, struct, re as _re
from dsl import *

NAME = "sequential_preLN__softmax_full_mha__glu_gated_bilinear__prompt"
K = NAME + "_kernel"
GS = 1310720
K_OFF, V_OFF, O_OFF = 327680, 655360, 983040
OX_OFF = O_OFF + 262144
def H_OFF(): return 8*GS if CFG.get("sep") else 0
def HH_OFF(): return H_OFF() + 327680
WGU_OFF = 20971520
WD_OFF = WGU_OFF + 4423680
WO_OFF = WD_OFF + 2211840
CS_OFF = WO_OFF + 819200
STAT_OFF = CS_OFF + 65536
RS_OFF = STAT_OFF + 131072
C1_OFF = RS_OFF + 16384
F2_OFF = C1_OFF + 8192
F3_OFF = F2_OFF + 128*128
F4_OFF = F3_OFF + 64*128
FR_OFF = F4_OFF + 64*128
F1_OFF = FR_OFF + 256*128
HF_OFF = F1_OFF + 384*128
ONES_OFF = HF_OFF + 64*128
STAMP_OFF = 29360128
WS_SIZE = 33554432
OOB = 0x40000000
SPIN = 200000
assert ONES_OFF + 128*2560 < STAMP_OFF and STAT_OFF % 128 == 0
def f2u(x): return struct.unpack("<I", struct.pack("<f", x))[0]
QSCALE = f2u(20**-0.5 * math.log2(math.e))
assert all((u*(65536//54+1)) >> 16 == u//54 for u in range(162)) and all((u*6554) >> 16 == u//10 for u in range(100))
assert all((f*3277) >> 16 == f//20 for f in range(640))
assert all((e*3277) >> 16 == e//20 for e in range(320))
CFG = dict(stamps=False, w5z=16, w5a=16, w5b=36, p3up=2, p3ws=3.5, hint=3, p4last=9.6, ht=0, ht1=0, b0=3, rsp=1, b1=12, rss=3, pfe=57, wb=0, wtn=4, touch="48:s,52:h,63:w3", p4t="", at1=0, f1b=1, fpos=1)
STAMP_NAMES = ["start", "p1 first dma issued", "p1 stage0 landed", "p1 loop end", "p1 stores issued", "p1 flag set", "F1 seen", "att loop start", "att loop end",
               "O published", "F2 seen", "p3 first act", "p3 mfma end", "H published", "F3 seen", "p4 first h", "p4 loop end", "HH published", "F4 seen", "p5 first act", "p5 mfma end", "end"]

W, SWS, SX, SA, SR = 3, 4, 8, 12, 16
GX, GI, MODE, MYF, GB = 24, 25, 26, 27, 23
LANE, LV = 1, 253
PCV = 247
CODE_TOUCH = f"global_load_dword v248, v{PCV}, s[20:21] sc1"
def S4(b): return f"s[{b}:{b+3}]"

def ASTAMPS(): return [int(x) for x in str(CFG.get("astamp", "")).split(",") if x]
def P1ST(): return [int(x) for x in str(CFG.get("p1st", "")).split(",") if x]
def P4ST(): return [int(x) for x in str(CFG.get("p4st", "")).split(",") if x]
class Stamps:
    def __init__(self, A): self.A, self.n = A, 0
    def mark(self, at=None):
        A = self.A; i = self.n if at is None else at
        if CFG.get("pad"):
            pi, pt = map(int, CFG["pad"].split(":"))
            if i == 0: A("s_memrealtime s[96:97]")
            if i == pi:
                lab = A.label("pad")
                if "padwg" in CFG: A(f"s_cmp_lg_u32 s2, {CFG['padwg']}"); A(f"s_cbranch_scc1 {lab}x")
                A("s_waitcnt lgkmcnt(0)"); A(f"s_add_u32 s95, s96, {pt*100}"); A(f"{lab}:"); A("s_memrealtime s[98:99]"); A("s_waitcnt lgkmcnt(0)")
                A("s_sub_u32 s98, s98, s95"); A("s_cmp_lt_i32 s98, 0"); A(f"s_cbranch_scc1 {lab}"); A(f"{lab}x:")
            if at is None: self.n += 1
            return
        if not CFG["stamps"]: return
        if i:
            A("s_waitcnt lgkmcnt(0)"); A(f"v_writelane_b32 v254, s96, {i-1}"); A(f"v_writelane_b32 v255, s98, {i-1}")
        A("s_memrealtime s[96:97]"); A("s_memtime s[98:99]")
        if at is None: self.n += 1
    def flush(self):
        if CFG.get("pad"): self.A("s_waitcnt vmcnt(0)"); self.mark(); return
        if not CFG["stamps"]: return
        A = self.A
        A("s_waitcnt vmcnt(0)"); self.mark(); self.mark(); n = self.n - 1
        A(f"v_writelane_b32 v254, s{MODE}, 30"); A(f"v_writelane_b32 v254, s{MYF}, 31")
        A(f"s_lshl_b32 s95, s2, 2"); A(f"s_add_u32 s95, s95, s{W}"); A("s_lshl_b32 s95, s95, 8"); A(f"s_add_u32 s95, s95, {STAMP_OFF}")
        A("s_mov_b64 exec, -1"); A(f"v_lshlrev_b32 v0, 2, {v(LANE)}"); A(f"s_mov_b32 exec_lo, {(1 << n) - 1 + (3 << 30)}"); A("s_mov_b32 exec_hi, 0")
        A(f"buffer_store_dword v254, v0, {S4(SWS)}, s95 offen"); A(f"buffer_store_dword v255, v0, {S4(SWS)}, s95 offen offset:128")

def swap01(A, dst, src, t):
    A(f"v_and_b32 {v(t)}, 1, {v(src)}"); A(f"v_lshlrev_b32 {v(t)}, 1, {v(t)}")
    A(f"v_bfe_u32 {v(dst)}, {v(src)}, 1, 1"); A(f"v_or_b32 {v(t)}, {v(t)}, {v(dst)}")
    A(f"v_and_b32 {v(dst)}, 4, {v(src)}"); A(f"v_or_b32 {v(dst)}, {v(dst)}, {v(t)}")

def make_sel(A, sel, t):
    A(f"v_lshrrev_b32 {v(t)}, 2, {v(LANE)}"); A(f"v_lshrrev_b32 {v(sel)}, 4, {v(LANE)}")
    A(f"v_xor_b32 {v(t)}, {v(t)}, {v(sel)}"); A(f"v_and_b32 {v(t)}, 1, {v(t)}")
    A(f"v_add_u32 {v(t)}, -1, {v(t)}")
    A(f"v_and_b32 {v(sel)}, 0x3f803f80, {v(t)}")
    for i in range(1, 4): A(f"v_mov_b32 {v(sel+i)}, {v(sel)}")

def poll(A, loads, regs, sleep=0, cnt=58, post=()):
    top, out = A.label("poll"), A.label("pollout")
    A(f"s_mov_b32 s{cnt}, {SPIN}")
    A(f"{top}:")
    A.ext(loads); A("s_waitcnt vmcnt(0)"); A.ext(post)
    for x in regs[1:]: A(f"v_min_u32 {v(regs[0])}, {v(regs[0])}, {v(x)}")
    A(f"v_cmp_eq_u32 vcc, 0, {v(regs[0])}")
    A(f"s_sub_u32 s{cnt}, s{cnt}, 1"); A(f"s_cbranch_scc1 {out}")
    if sleep:
        A(f"s_cbranch_vccz {out}"); A(f"s_sleep {sleep}"); A(f"s_branch {top}")
    else: A(f"s_cbranch_vccnz {top}")
    A(f"{out}:")

def apoll(d, va, so, atomic):
    if atomic: return [f"v_mov_b32 {v(d)}, 0", f"buffer_atomic_or {v(d)}, {v(va)}, {S4(SWS)}, s{so} offen sc0 sc1"]
    return [f"buffer_load_dword {v(d)}, {v(va)}, {S4(SWS)}, s{so} offen sc1"]
def publish(A, stores, mid, flag, local=True):
    if not local:
        A.ext(stores("sc1")); A.ext(mid); A.ext(flag("sc1")); return
    slow, done = A.label("st_slow"), A.label("st_done")
    A(f"s_cmp_eq_u32 s{MODE}, 0"); A(f"s_cbranch_scc1 {slow}")
    A.ext(stores("")); A.ext(mid); A.ext(flag("")); A(f"s_branch {done}")
    A(f"{slow}:")
    A.ext(stores("sc1")); A.ext(mid); A.ext(flag("sc1"))
    A(f"{done}:")

RSO, RA, RBA, RDS, RDH, RDAH, RCS, RLDS = 64, 65, 66, 67, 68, 69, 70, 71
RLV, RLT, RLC, RLO, RLF = 201, 202, 204, 212, 216
STG = 86016
def relayout_setup(A):
    t0, t1 = 2, 3
    two, none, done = A.label("rl2"), A.label("rl0"), A.label("rl_set")
    A(f"s_mul_i32 s{RLDS}, s{W}, 10240"); A(f"s_add_u32 s{RLDS}, s{RLDS}, {STG}")
    A(f"v_lshrrev_b32 {v(t0)}, 4, {v(LANE)}"); A(f"v_bfe_u32 {v(t1)}, {v(LANE)}, 2, 2"); A(f"v_lshl_add_u32 {v(t0)}, {v(t0)}, 3, {v(t1)}")
    A(f"v_and_b32 {v(t1)}, 3, {v(LANE)}"); A(f"v_lshlrev_b32 {v(t1)}, 4, {v(t1)}")
    A(f"v_lshl_add_u32 {v(t0)}, {v(t0)}, 6, {v(t1)}"); A(f"v_add_u32 {v(RLT)}, s{RLDS}, {v(t0)}")
    A(f"v_and_b32 {v(RLT+1)}, 15, {v(LANE)}"); A(f"v_lshlrev_b32 {v(RLT+1)}, 2, {v(RLT+1)}")
    for i in range(4): A(f"v_mov_b32 {v(RLO+i)}, 0x3f803f80")
    A(f"v_lshrrev_b32 {v(t0)}, 2, {v(LANE)}")
    A(f"s_mov_b32 s{RCS}, {OOB}"); A(f"s_mov_b32 s{SR+3}, 0x20000")
    A("s_cmp_ge_u32 s2, 108"); A(f"s_cbranch_scc1 {two}")
    A(f"s_bitcmp1_b32 s{W}, 0"); A(f"s_cselect_b64 s[{SR}:{SR+1}], s[82:83], s[80:81]"); A(f"s_mov_b32 s{SR+2}, 2211840")
    A(f"s_mul_i32 s37, s2, {(65536+26)//27}"); A("s_lshr_b32 s37, s37, 16")
    A("s_mul_i32 s38, s37, 27"); A("s_sub_u32 s38, s2, s38"); A("s_lshl_b32 s38, s38, 1"); A(f"s_lshr_b32 s39, s{W}, 1"); A("s_add_u32 s38, s38, s39")
    A(f"s_mul_i32 s{RSO}, s37, {160*3456}"); A("s_lshl_b32 s39, s38, 6"); A(f"s_add_u32 s{RSO}, s{RSO}, s39")
    A(f"s_mov_b32 s{RA}, {16*3456}"); A(f"s_mov_b32 s{RBA}, {16*3456}"); A(f"s_mov_b32 s{RDH}, 2048"); A(f"s_mov_b32 s{RDAH}, {221184-2048}")
    A(f"s_and_b32 s39, s{W}, 1"); A("s_lshl_b32 s38, s38, 2"); A("s_add_u32 s38, s38, s39")
    A(f"s_mul_i32 s{RDS}, s37, {5*221184}"); A("s_lshl_b32 s39, s38, 10"); A(f"s_add_u32 s{RDS}, s{RDS}, s39"); A(f"s_add_u32 s{RDS}, s{RDS}, {WGU_OFF}")
    A(f"s_mul_i32 s{RCS}, s37, {108*128}"); A("s_lshl_b32 s39, s38, 6"); A(f"s_add_u32 s{RCS}, s{RCS}, s39"); A(f"s_add_u32 s{RCS}, s{RCS}, {CS_OFF}")
    A(f"v_mul_u32_u24 {v(t0)}, 3456, {v(t0)}")
    A(f"s_branch {done}")
    A(f"{two}:")
    A("s_sub_u32 s37, s2, 108"); A(f"s_mov_b32 s{RDH}, 1024"); A(f"s_mov_b32 s{RDAH}, 1024")
    A(f"s_mul_i32 s{RDS}, s37, 40960"); A(f"s_mul_i32 s39, s{W}, 10240"); A(f"s_add_u32 s{RDS}, s{RDS}, s39"); A(f"s_add_u32 s{RDS}, s{RDS}, {WD_OFF}")
    A(f"s_mov_b64 s[{SR}:{SR+1}], s[84:85]"); A(f"s_mov_b32 s{SR+2}, 2211840"); A(f"s_lshl_b32 s{RSO}, s37, 5"); A(f"s_mov_b32 s{RA}, 16")
    A("s_cmp_lt_u32 s37, 54"); A(f"s_cbranch_scc1 {none}")
    A(f"s_mov_b64 s[{SR}:{SR+1}], s[88:89]"); A("s_cmp_lt_u32 s37, 74"); A(f"s_cselect_b32 s{RDS}, s{RDS}, {OOB}"); A(f"s_cselect_b32 s{SR+2}, 819200, 0")
    A("s_sub_u32 s37, s37, 54"); A(f"s_mul_i32 s{RSO}, s37, 40"); A("s_mul_i32 s39, s37, 160"); A(f"s_sub_u32 s39, s39, {16*160-16}")
    A("s_cmp_ge_u32 s37, 16"); A(f"s_cselect_b32 s{RSO}, s39, s{RSO}"); A(f"s_cselect_b32 s{RA}, 80, 20"); A("s_cselect_b32 s38, 16, 0")
    A(f"v_lshrrev_b32 v4, 4, {v(LANE)}"); A(f"v_mad_u32_u24 {v(t0)}, v4, s38, {v(t0)}")
    A(f"{none}:")
    A(f"s_mul_i32 s{RSO}, s{RSO}, 1280"); A(f"s_mul_i32 s39, s{W}, 320"); A(f"s_add_u32 s{RSO}, s{RSO}, s39"); A(f"s_mul_i32 s{RA}, s{RA}, 1280"); A(f"s_sub_u32 s{RBA}, 64, s{RA}")
    A(f"v_mul_u32_u24 {v(t0)}, 1280, {v(t0)}")
    A(f"{done}:")
    A(f"v_add_u32 {v(RLV)}, {v(t0)}, {v(t1)}")
def rl_dma(i):
    return [f"s_add_u32 m0, s{RLDS}, {i*1024}", f"s_add_u32 s{RSO}, s{RSO}, {'0' if i == 0 else 's%d' % (RA if i & 1 else RBA)}",
            f"buffer_load_dwordx4 {v(RLV)}, {S4(SR)}, s{RSO} offen lds"]
def rl_read(a_, hf): return [f"ds_read_b64_tr_b16 {v(RLF+8*(a_&1)+4*hf+2*q,2)}, {v(RLT)} offset:{2048*a_+256*q+8*hf}" for q in range(2)]
def rl_sum(a_, hf): return mf16(RLC+4*hf, RLO, RLF+8*(a_&1)+4*hf, "0" if a_ == 0 else None)
def rl_store(a_, hf): return [f"buffer_store_dwordx4 {v(RLF+8*(a_&1)+4*hf,4)}, {v(LV)}, {S4(SWS)}, s{RDS} offen sc1", f"s_add_u32 s{RDS}, s{RDS}, s{RDAH if hf else RDH}"]
def rl_cs(hf): return [f"buffer_store_dword {v(RLC+4*hf)}, {v(RLT+1)}, {S4(SWS)}, s{RCS} offen offset:{128*hf} sc1"]


TV = 249
SD = 52
def phase1(A, ST):
    rt, ct, wm, wn = 28, 30, 56, 57
    sox, sow, m0x, m0w, sst, srs = 29, 91, 32, 35, 80, 84
    srr, sqs, sc1_ = 85, 88, 89
    t0, t1, t2, t3, nn, qq = 2, 3, 4, 5, 6, 7
    dmx, dmw, xa, wa, sa, rv, cv = 12, 16, 22, 24, 26, 30, 31
    CS, ACC, RS, OB = 32, 56, 148, 180
    FR = 256
    SL = 36864
    A("s_cmp_ge_u32 s2, 256"); A(f"s_cbranch_scc1 {K}_end")
    A("s_load_dwordx4 s[36:39], s[0:1], 0"); A("s_load_dwordx4 s[52:55], s[0:1], 64"); A("s_load_dwordx8 s[80:87], s[0:1], 32"); A("s_load_dwordx2 s[88:89], s[0:1], 16")
    A(f"v_lshrrev_b32 {v(t0)}, 6, v0"); A(f"v_and_b32 {v(LANE)}, 63, v0")
    A(f"v_readfirstlane_b32 s{W}, {v(t0)}")
    A(f"s_and_b32 s{GX}, s2, 7"); A(f"s_lshr_b32 s{GI}, s2, 3")
    A("s_getpc_b64 s[20:21]"); A(f"{K}_pc:")
    A(f"s_lshl_b32 s58, s{GI}, 2"); A(f"s_add_u32 s58, s58, s{W}"); A("s_lshl_b32 s58, s58, 7")
    A(f"v_and_b32 {v(PCV)}, 7, {v(LANE)}"); A(f"v_lshlrev_b32 {v(PCV)}, 14, {v(PCV)}"); A(f"v_add_u32 {v(PCV)}, s58, {v(PCV)}")
    A(f"v_min_u32 {v(PCV)}, {K}_end-{K}_pc, {v(PCV)}")
    A(CODE_TOUCH)
    A(f"v_lshrrev_b32 {v(qq)}, 4, {v(LANE)}"); A(f"v_and_b32 {v(nn)}, 15, {v(LANE)}")
    A("s_cmp_ge_u32 s2, 192"); A(f"s_cbranch_scc1 {K}_help")
    def tile_ids():
        A(f"s_lshr_b32 s56, s{GX}, 2"); A(f"s_mul_i32 s{ct}, s56, 6"); A(f"s_lshr_b32 s57, s{GI}, 2"); A(f"s_add_u32 s{ct}, s{ct}, s57")
        A(f"s_and_b32 s57, s{GI}, 3"); A(f"s_and_b32 s56, s{GX}, 3"); A("s_lshl_b32 s56, s56, 2"); A(f"s_add_u32 s{rt}, s56, s57")
    tile_ids()
    A(f"v_and_b32 {v(t1)}, 7, {v(LANE)}"); A(f"v_xor_b32 {v(t1)}, {v(t1)}, {v(qq)}"); A(f"v_lshlrev_b32 {v(t1)}, 4, {v(t1)}")
    A(f"v_lshrrev_b32 {v(t2)}, 3, {v(LANE)}"); A(f"v_mul_u32_u24 {v(t2)}, 1280, {v(t2)}")
    A(f"v_add_u32 {v(dmx)}, {v(t1)}, {v(t2)}")
    A(f"v_xor_b32 {v(t1)}, 64, {v(t1)}"); A(f"v_add_u32 {v(t1)}, {v(t1)}, {v(t2)}"); A(f"v_add_u32 {v(dmx+1)}, 9216, {v(t1)}")
    A(f"v_add_u32 {v(dmx+2)}, {2*9216}, {v(dmx)}"); A(f"v_add_u32 {v(dmx+3)}, {2*9216}, {v(dmx+1)}")
    for i in range(5):
        A(f"v_add_u32 {v(t0)}, {64*i}, {v(LANE)}"); A(f"v_mul_u32_u24 {v(t1)}, 3277, {v(t0)}"); A(f"v_lshrrev_b32 {v(t1)}, 16, {v(t1)}")
        A(f"v_mul_u32_u24 {v(t2)}, 20, {v(t1)}"); A(f"v_sub_u32 {v(t0)}, {v(t0)}, {v(t2)}")
        if i == 2: A(f"v_lshrrev_b32 {v(t2)}, 2, {v(t1)}"); A(f"v_and_b32 {v(t2)}, 2, {v(t2)}"); A(f"v_xor_b32 {v(t0)}, {v(t0)}, {v(t2)}")
        elif i > 2: A(f"v_xor_b32 {v(t0)}, 2, {v(t0)}")
        A(f"v_mul_u32_u24 {v(t1)}, 3840, {v(t1)}"); A(f"v_lshl_add_u32 {v(dmw+i)}, {v(t0)}, 4, {v(t1)}")
        if i & 3: A(f"v_subrev_u32 {v(dmw+i)}, {1024*i}, {v(dmw+i)}")
    A(f"s_lshl_b32 s56, s{rt}, 2"); A(f"s_add_u32 s56, s56, s{W}"); A(f"s_mul_i32 s{sox}, s56, {32*1280}")
    A(f"s_mul_i32 s{sow}, s{W}, {16*3840}"); A(f"s_mul_i32 s57, s{ct}, 320"); A(f"s_add_u32 s{sow}, s{sow}, s57")
    A(f"s_lshl_b32 s{m0x}, s{W}, 12"); A(f"s_mul_i32 s{m0w}, s{W}, 5120")
    A("s_waitcnt lgkmcnt(0)")
    srd(A, SX, 36, 2621440); srd(A, SA, 38, 2457600)
    def dma(stage):
        o = (stage % 4)*SL
        dx = lambda b: f"buffer_load_dwordx4 {v(dmx+b)}, {S4(SX)}, s{sox} offen offset:{b*1024} lds"
        dw = lambda b: f"buffer_load_dwordx4 {v(dmw+b)}, {S4(SA)}, s{sow} offen offset:{(b&3)*1024} lds"
        return ([f"s_add_u32 m0, s{m0x}, {o}", f"s_add_u32 s{sow}, s{sow}, {64*3840 if stage else 0}"] + [dx(b) for b in range(4)] +
                [f"s_add_u32 m0, s{m0w}, {o+16384}", f"s_add_u32 s{sox}, s{sox}, 128"] + [dw(b) for b in range(4)] + [f"s_add_u32 m0, s{m0w}, {o+20480}", "s_nop 0", dw(4)])
    A.ext(dma(0))
    def common():
        srd(A, SWS, 54, WS_SIZE)
        A(f"s_mov_b32 s{SD+2}, 256"); A(f"s_mov_b32 s{SD+3}, 0x20000")
        A(f"v_lshlrev_b32 {v(TV)}, 7, {v(LANE)}"); A(f"v_lshlrev_b32 {v(LV)}, 4, {v(LANE)}"); A(f"v_lshlrev_b32 {v(L4V)}, 2, {v(LANE)}")
        A(f"v_add_u32 v54, {HF_OFF}, {v(TV)}")
        A(f"s_mul_i32 s{GB}, s{GX}, {GS}"); A(f"s_cmp_eq_u32 s{W}, 0"); A(f"s_cselect_b32 s22, 0, {OOB}")
        A(f"s_getreg_b32 s{MYF}, hwreg(HW_REG_XCC_ID, 0, 4)"); A(f"s_add_u32 s{MYF}, s{MYF}, 1")
    common()
    ST.mark()
    ES = CFG.get("es", 0)
    if ES: att_setup(A); tile_ids()
    else: sst, srs, srr, sqs, sc1_ = 46, 59, 43, 42, 44
    A(f"s_and_b32 s{wm}, s{W}, 1"); A(f"s_lshr_b32 s{wn}, s{W}, 1")
    nn, qq = 52, 53
    A(f"v_lshrrev_b32 {v(qq)}, 4, {v(LANE)}"); A(f"v_and_b32 {v(nn)}, 15, {v(LANE)}")
    A(f"v_lshrrev_b32 {v(t0)}, 1, {v(nn)}"); A(f"v_xor_b32 {v(t0)}, {v(t0)}, {v(qq)}"); A(f"v_lshlrev_b32 {v(t0)}, 4, {v(t0)}")
    A(f"v_lshl_add_u32 {v(t0)}, {v(nn)}, 7, {v(t0)}"); A(f"s_lshl_b32 s58, s{wm}, 13"); A(f"v_add_u32 {v(xa)}, s58, {v(t0)}"); A(f"v_xor_b32 {v(xa+1)}, 64, {v(xa)}")
    A(f"v_lshrrev_b32 {v(t0)}, 2, {v(nn)}"); A(f"v_lshl_add_u32 {v(t1)}, {v(qq)}, 3, {v(t0)}"); A(f"v_mul_u32_u24 {v(t1)}, 320, {v(t1)}")
    A(f"v_and_b32 {v(t0)}, 3, {v(nn)}"); A(f"v_lshl_add_u32 {v(t1)}, {v(t0)}, 3, {v(t1)}"); A(f"s_mul_i32 s58, s{wn}, 160"); A("s_add_u32 s58, s58, 16384"); A(f"v_add_u32 {v(t1)}, s58, {v(t1)}")
    A(f"v_and_b32 {v(t0)}, 1, {v(qq)}"); A(f"s_lshl_b32 s58, s{wn}, 6"); A("s_sub_u32 s58, 32, s58"); A(f"v_mul_i32_i24 {v(t0)}, s58, {v(t0)}")
    A(f"v_add_u32 {v(wa)}, {v(t1)}, {v(t0)}"); A(f"v_sub_u32 {v(wa+1)}, {v(t1)}, {v(t0)}")
    A(f"s_lshl_b32 s37, s{rt}, 1"); A(f"s_add_u32 s37, s37, s{wm}")
    A(f"s_lshl_b32 s36, s{ct}, 1"); A(f"s_add_u32 s36, s36, s{wn}")
    STL = 147456
    A(f"s_lshl_b32 s{srs}, s{rt}, 9"); A(f"s_lshl_b32 s58, s{W}, 13"); A(f"s_add_u32 s{srs}, s{srs}, s58"); A(f"s_add_u32 s{srs}, s{srs}, {RS_OFF}")
    A(f"s_mul_i32 s58, s{ct}, 640"); A(f"s_add_u32 s58, s58, {C1_OFF}"); A(f"s_cmp_eq_u32 s{W}, 2"); A(f"s_cselect_b32 s{srs}, s58, s{srs}"); A(f"s_cmp_eq_u32 s{W}, 3"); A(f"s_cselect_b32 s{srs}, {OOB}, s{srs}")
    A(f"s_lshl_b32 s{srr}, s{W}, 10"); A(f"s_add_u32 s{srr}, s{srr}, {STL}")
    A(f"s_lshl_b32 s58, s{wm}, 8"); A(f"s_add_u32 s58, s58, {STL}"); A(f"v_mov_b32 {v(rv)}, s58"); A(f"s_mul_i32 s58, s{wn}, 320"); A(f"s_add_u32 s58, s58, {STL+2048}"); A(f"v_mov_b32 {v(cv)}, s58")
    A(f"s_cmp_lt_u32 s{ct}, 4"); A(f"s_cselect_b32 s{sqs}, {hex(QSCALE)}, 1.0")
    A("s_and_b32 s56, s36, 7"); A("s_lshr_b32 s57, s36, 3"); A(f"s_mul_i32 s{sst}, s56, {GS}"); A(f"s_mul_i32 s58, s57, {K_OFF}"); A(f"s_add_u32 s{sst}, s{sst}, s58")
    A("s_mul_i32 s56, s56, 3"); A("s_add_u32 s56, s56, s57"); A("s_lshl_b32 s56, s56, 2"); A("s_lshr_b32 s57, s37, 3"); A("s_add_u32 s56, s56, s57"); A("s_lshl_b32 s56, s56, 5")
    A("s_and_b32 s57, s37, 7"); A("s_add_u32 s56, s56, s57"); A("s_lshl_b32 s56, s56, 2"); A(f"s_add_u32 s62, s56, {F1_OFF}")
    A(f"s_cmp_ge_u32 s{ct}, 8"); A(f"s_cbranch_scc1 {K}_v")

    Xr = lambda st, xi, ks: (FR+144 if st == 9 else FR+72*(st & 1)) + 8*xi+4*ks
    Wr = lambda st, wi, ks: FR+72*(st & 1) + 32 + 8*wi+4*ks
    rdx = lambda st: [f"ds_read_b128 {r(Xr(st,xi,ks),4)}, {v(xa+ks)} offset:{(st&1)*SL+2048*xi}" for xi in range(4) for ks in range(2)]
    rdw = lambda st, wi: [f"ds_read_b64_tr_b16 {r(Wr(st,wi,ks)+2*h,2)}, {v(wa+(wi&1))} offset:{(st&1)*SL+(32*ks+4*h)*320+32*wi}" for ks in range(2) for h in range(2)]
    def reads(st): return rdw(st, 0) + rdx(st) + rdw(st, 1) + rdw(st, 2) + rdw(st, 3) + rdw(st, 4)
    flag0 = f"buffer_load_dword v55, off, {S4(SD)}, s22 sc1"
    flag = f"buffer_load_dword {v(t0)}, v54, {S4(SWS)}, s22 offen sc1"
    def mainloop(isv):
        tag = "v" if isv else "q"
        if not isv:
            A("s_mul_i32 s56, s37, 5120"); A(f"s_add_u32 s{sst}, s{sst}, s56"); A(f"s_add_u32 s{sst+1}, s{sst}, 2560")
            A(f"s_add_u32 s{sst+2}, s{sst}, {163840+512}"); A(f"s_add_u32 s{sst+3}, s{sst+1}, {163840+512}")
            A(f"v_lshrrev_b32 {v(t0)}, 5, {v(LANE)}"); A(f"v_mul_u32_u24 {v(t0)}, {163840-2560}, {v(t0)}"); A(f"v_add_u32 {v(sa)}, {v(t0)}, {v(LV)}")
            A(f"v_lshl_add_u32 {v(rv)}, {v(nn)}, 2, {v(rv)}"); A(f"v_lshl_add_u32 {v(cv)}, {v(qq)}, 4, {v(cv)}")
        else:
            A("s_mul_i32 s56, s37, 10240"); A(f"s_add_u32 s{sst}, s{sst}, s56"); A(f"s_add_u32 s{sst+1}, s{sst}, 5120")
            A(f"v_mul_u32_u24 {v(t3)}, 1280, {v(qq)}"); A(f"v_lshl_add_u32 {v(sa)}, {v(nn)}, 4, {v(t3)}")
            A(f"v_lshl_add_u32 {v(rv)}, {v(qq)}, 4, {v(rv)}"); A(f"v_lshl_add_u32 {v(cv)}, {v(nn)}, 2, {v(cv)}")
        Q = VQ(); Q.add(0, dma(0)); A.ext(Q.add(1, dma(1)))
        A.ext(Q.wait(0)); A("s_barrier"); ST.mark(2)
        A.ext(reads(0))
        BP = 8; FS = CFG.get("p1fs", 5); EARLY = CFG.get("p1e", 1)
        rrd = lambda k_: [f"ds_read_b{128 if isv else 32} {v(RS+16*k_+4*xi, 4 if isv else 1)}, {v(rv)} offset:{1024*k_+64*xi}" for xi in range(4)]
        crd = [f"ds_read_b{32 if isv else 128} {v(CS+4*wi, 1 if isv else 4)}, {v(cv)} offset:{64*wi}" for wi in range(5)]
        sdma = [f"s_mov_b32 m0, s{srr}", f"buffer_load_dwordx4 {v(LV)}, {S4(SWS)}, s{srs} offen sc1 lds"]
        steps = [(st, wi, xi, ks) for st in range(8) for wi in range(5) for xi in range(4) for ks in range(2)]
        steps += [(st, wi, xi, ks) for wi in range(5) for xi in range(4) for st in (8, 9) for ks in range(2)]
        mm = lambda st, wi, xi, ks: mf16(ACC+16*wi+4*xi, *((Xr(st, xi, ks), Wr(st, wi, ks)) if isv else (Wr(st, wi, ks), Xr(st, xi, ks))), "0" if (st == 0 and ks == 0) else None)
        T = TL(A, Q, [mm(*x) for x in steps])
        tagged = lambda st: [(("x", st) if i < 12 else None, x) for i, x in enumerate(reads(st))]
        T.lq = [t for t, x in tagged(0)]
        nonop = lambda L: [x for x in L if x != "s_nop 0"]
        for st in range(8):
            k0 = 40*st
            if 4*st in P1ST(): T.pre[k0].append(lambda i=3+P1ST().index(4*st): ST.mark(i))
            T.pre[k0].append(("lwait", ("x", st))); T.pre[k0+BP].append("s_waitcnt lgkmcnt(0)")
            if st == 0:
                T.spread([(2, x) for x in dma(2)], 0, 0.8); T.spread([(3, x) for x in nonop(dma(3))], BP+2, 3.3)
            elif st+3 < 10:
                dm = [(st+3, x) for x in nonop(dma(st+3))]
                if st == FS+1: dm = dm[:6] + [("rs", x) for x in sdma] + dm[6:]
                T.spread(dm, k0+2, 4.3 if st != FS+1 else 3.9)
            if st == FS-2: T.spread([("f0", flag0)], k0+1, 0.9)
            if st == FS-1: T.pre[k0+BP].append(("wait", "f0"))
            if st == FS: T.spread([("f", flag)], k0+1, 0.9)
            if st == FS+2: T.pre[k0+BP].append(("wait", "rs"))
            T.pre[k0+BP].append(("wait", st+1))
            if st == FS+1:
                T.pre[k0+BP] += [("wait", "f"), f"v_min_u32 {v(t0)}, v55, {v(t0)}", f"v_or_b32 {v(t0)}, s{W}, {v(t0)}", f"v_cmp_eq_u32 vcc, 0, {v(t0)}", "s_nop 1", f"s_cbranch_vccnz {K}_rsspin{tag}", f"{K}_rsok{tag}:"]
            T.pre[k0+BP].append("s_barrier")
        for st in range(8):
            k0 = 40*st
            if st < 7: assert T.spread(tagged(st+1), k0+BP, 1, slack=CFG.get('p1sl', 0)) <= k0+44
            else:
                k = T.spread([("s", x) for x in rrd(0) + crd + rrd(1)], k0+BP, 0.7)
                T.spread([(None, x) for x in rdw(8, 0) + rdx(8)], k, 0.75)
                T.pre[k0+27] += [("wait", 9), "s_barrier"]
                T.spread([(None, x) for x in rdw(9, 0) + rdx(9)], k0+27, 0.9)
            if st & 1:
                d = (2*SL if (st & 2) == 0 else -2*SL) & 0xffffffff
                T.vspread([f"v_add_u32 {v(x)}, {d}, {v(x)}" for x in range(xa, xa+4)], k0+4, k0+8)
        for wi in range(5):
            k0 = 320 + 16*wi
            T.pre[k0].append("s_waitcnt lgkmcnt(0)")
            if wi < 4: T.spread([(None, x) for x in rdw(8, wi+1) + rdw(9, wi+1)], k0, 1)
        def corr(wi, xi): return [f"v_fmac_f32 {v(ACC+16*wi+4*xi+i)}, {v(RS+4*xi+(i if isv else 0))}, {v(CS+4*wi+(0 if isv else i))}" for i in range(4)]
        def group(wi, xp, pk, o):
            L = []
            for xi in (2*xp, 2*xp+1):
                ac = ACC+16*wi+4*xi
                if not EARLY: L += corr(wi, xi)
                if pk: L += [f"v_pk_mul_f32 {v(ac+i,2)}, {v(ac+i,2)}, {v(RS+16+4*xi+(i if isv else 0),2)}" + ("" if isv else " op_sel_hi:[1,0]") for i in (0, 2)]
                else: L += [f"v_mul_f32 {v(ac+i)}, {v(ac+i)}, {v(RS+16+4*xi+(i if isv else 0))}" for i in range(4)]
            L += [f"v_cvt_pk_bf16_f32 {v(o+2*j+i)}, {v(ACC+16*wi+8*xp+4*j+2*i)}, {v(ACC+16*wi+8*xp+4*j+2*i+1)}" for i in range(2) for j in range(2)]
            sw = "v_permlane32_swap_b32" if isv else "v_permlane16_swap_b32"
            L += [f"{sw} {v(o)}, {v(o+2)}", "v_nop", f"{sw} {v(o+1)}, {v(o+3)}"]
            if isv: st_ = f"buffer_store_dwordx4 {v(o,4)}, {v(sa)}, {S4(SWS)}, s{sst+xp} offen offset:{256*wi} sc1"
            else: st_ = f"buffer_store_dwordx4 {v(o,4)}, {v(sa if wi == 2 else LV)}, {S4(SWS)}, s{sst+xp+2*(wi > 2)} offen offset:{1024*(wi if wi < 3 else wi-3)} sc1"
            return L, st_
        qs = [] if isv else [f"v_mul_f32 {v(RS+16+4*xi)}, s{sqs}, {v(RS+16+4*xi)}" for xi in range(4)]
        if EARLY:
            T.pre[301].append(("lwait", "s"))
            for wi, (ka, kb) in {0: (301, 317), 1: (317, 329), 2: (329, 338), 3: (338, 364), 4: (364, 381)}.items():
                T.vspread([x for xi in range(4) for x in corr(wi, xi)] + (qs if wi == 1 else []), ka, kb)
        else: T.vspread(qs, 330, 334)
        for wi in range(4):
            for xp in range(2):
                L, st_ = group(wi, xp, False, OB + 4*((2*wi+xp) % 4))
                ka = 320 + 16*wi + 8*xp + 16 + (2 if wi == 0 and xp == 0 else 0)
                k = T.vspread(L, ka, 320 + 16*wi + 8*xp + 24, cap=2)
                if k < 400: T.post[k].append(("o", st_))
                else: late = st_
        T.emit()
        ST.mark(3 + len(P1ST()))
        A(late)
        for xp in range(2):
            L, st_ = group(4, xp, True, OB + 4*xp); A.ext(L); A(st_)
        COLD.append(lambda: (A(f"{K}_rsspin{tag}:"), poll(A, [flag0], [55], sleep=4), poll(A, [flag], [t0], sleep=2), A(f"s_branch {K}_rsok{tag}")))
    mainloop(False)
    A(f"s_branch {K}_p1out")
    helper(A, ST, common, flag0, flag)
    A(f"{K}_v:")
    mainloop(True)
    A(f"{K}_p1out:")
    ST.n = 4 + len(P1ST())
    ST.mark()
    def setflag(pos):
        if pos != (2 if ES else CFG.get("fpos", 0)): return
        A(f"v_mul_u32_u24 v2, {96*128}, {v(LANE)}"); A("s_mov_b64 exec, 15")
        A("s_waitcnt vmcnt(0)"); A(f"buffer_{'atomic_or' if CFG.get('at1', 1) else 'store_dword'} v10, v2, {S4(SWS)}, s62 offen sc1"); A("s_mov_b64 exec, -1"); ST.mark()
    if not ES: att_setup(A, setflag)
    setflag(2)
    A(f"{K}_p1done:")

def helper(A, ST, common, flag0, flag):
    hid, so, stp = 28, 32, 33
    nn, qq, sv = 6, 7, 12
    XB, SM, ONE = 64, 40, 32
    KS = CFG.get("hk", 1)
    A(f"{K}_help:")
    A(f"s_sub_u32 s{hid}, s2, 192")
    A(f"s_cmp_lt_u32 s{hid}, 32"); A("s_cselect_b32 s56, 1280, s56"); A("s_cselect_b32 s29, 1, 0")
    A("s_cmp_eq_u32 s29, 0"); A("s_cselect_b32 s56, 3840, s56")
    A(f"v_lshrrev_b32 v2, 3, {v(LANE)}"); A(f"v_and_b32 v3, 7, {v(LANE)}"); A("v_mul_u32_u24 v4, s56, v2"); A(f"v_lshl_add_u32 {v(sv)}, v3, 4, v4")
    A("s_lshl_b32 s57, s56, 3"); A(f"v_add_u32 {v(sv+1)}, s57, {v(sv)}")
    A(f"s_lshl_b32 s57, s56, 4"); A(f"s_mul_i32 s{so}, s57, s{W}")
    A(f"s_and_b32 s30, s{GX}, 3"); A("s_lshl_b32 s30, s30, 3"); A(f"s_lshr_b32 s57, s{hid}, 2"); A("s_and_b32 s57, s57, 7"); A("s_add_u32 s30, s30, s57")
    A(f"s_sub_u32 s31, s{hid}, 32"); A(f"s_mul_i32 s57, s30, {64*1280}"); A("s_lshl_b32 s58, s31, 7")
    A("s_cmp_eq_u32 s29, 0"); A("s_cselect_b32 s57, s58, s57"); A(f"s_cselect_b32 s{stp}, {64*3840}, s56"); A(f"s_add_u32 s{so}, s{so}, s57")
    A("s_cmp_eq_u32 s29, 1"); A(f"s_cselect_b32 s{stp}, 128, s{stp}")
    A(f"s_mul_i32 s57, s{stp}, {KS}"); A(f"s_add_u32 s{so}, s{so}, s57"); A(f"s_mul_i32 s34, s{stp}, -9")
    A("s_waitcnt lgkmcnt(0)")
    srd(A, SX, 36, 2621440)
    A("s_cmp_eq_u32 s29, 1"); A(f"s_cselect_b64 s[{SA}:{SA+1}], s[36:37], s[38:39]"); A(f"s_cselect_b32 s{SA+2}, s{SX+2}, 2457600"); A(f"s_mov_b32 s{SA+3}, 0x20000")
    A(f"s_cmp_lt_u32 s{hid}, 62"); A(f"s_cselect_b32 s{SA+2}, s{SA+2}, 0")
    Q = VQ()
    def xl(i):
        L = [f"buffer_load_dwordx4 {v(XB+4*i,4)}, {v(sv+(i&1))}, {S4(SA)}, s{so} offen"]
        if i & 1: L.append(f"s_add_u32 s{so}, s{so}, s{stp if i//2+KS != 9 else 34}")
        return L
    for i in range(10): A.ext(Q.add(("x", i), xl(i)))
    common()
    marks = list(range(1, 6 + len(P1ST())))
    def mk():
        if marks: ST.mark(marks.pop(0))
    mk()
    for i in range(4): A(f"v_mov_b32 {v(8+i)}, 0"); A(f"v_mov_b32 {v(ONE+i)}, 0x3f803f80")
    for i in range(8): A(f"v_mov_b32 {v(SM+i)}, 0")
    lab = A.label("notlast"); A(f"s_cmp_lg_u32 s{hid}, 63"); A(f"s_cbranch_scc1 {lab}")
    A(f"s_lshl_b32 s56, s{W}, 11"); A(f"s_add_u32 s56, s56, {HF_OFF}")
    for i in range(2): A(f"buffer_store_dwordx4 v[8:11], {v(LV)}, {S4(SWS)}, s56 offen offset:{1024*i} sc1")
    A("s_waitcnt vmcnt(0)"); A("s_barrier"); A("s_mov_b64 exec, 1"); A(f"buffer_store_dword {v(ONE)}, off, {S4(SD)}, s22 sc1"); A("s_mov_b64 exec, -1"); A("s_waitcnt vmcnt(0)")
    A(f"{lab}:")
    col, both = A.label("hcol"), A.label("hboth")
    def stats(proc, fin):
        Q2 = VQ(); Q2.q = list(Q.q)
        for i in range(10, 20): A.ext(Q2.add(("x", i), xl(i))); A.ext(Q2.wait(("x", i-10))); proc(i-10)
        for i in range(10, 20): A.ext(Q2.wait(("x", i))); proc(i)
        fin(Q2); return Q2
    A("s_cmp_eq_u32 s29, 0"); A(f"s_cbranch_scc1 {col}")
    def rproc(i):
        for j in range(4): A(f"v_dot2c_f32_bf16 {v(SM+2*(i&1))}, {v(ONE)}, {v(XB+4*i+j)}"); A(f"v_dot2c_f32_bf16 {v(SM+2*(i&1)+1)}, {v(XB+4*i+j)}, {v(XB+4*i+j)}")
    def rfin(Q2):
        A("s_nop 2")
        for mod in ("quad_perm:[1,0,3,2]", "quad_perm:[2,3,0,1]", "row_half_mirror"):
            for i in range(4): A(f"v_add_f32_dpp {v(SM+i)}, {v(SM+i)}, {v(SM+i)} {mod} row_mask:0xf bank_mask:0xf")
        A("v_cmp_eq_u32 vcc, 1, v3"); A(f"v_lshrrev_b32 v4, 3, {v(LANE)}"); A("v_lshl_add_u32 v4, v3, 3, v4")
        A(f"v_cndmask_b32 {v(SM)}, {v(SM)}, {v(SM+2)}, vcc"); A(f"v_cndmask_b32 {v(SM+1)}, {v(SM+1)}, {v(SM+3)}, vcc")
        A(f"v_mul_f32 {v(SM)}, {hex(f2u(-1/640))}, {v(SM)}"); A(f"v_mul_f32 {v(SM+1)}, {hex(f2u(1/640))}, {v(SM+1)}")
        A(f"v_fma_f32 {v(SM+1)}, -{v(SM)}, {v(SM)}, {v(SM+1)}"); A(f"v_max_f32 {v(SM+1)}, 0, {v(SM+1)}")
        A(f"v_add_f32 {v(SM+1)}, {hex(f2u(1e-5))}, {v(SM+1)}"); A(f"v_rsq_f32 {v(SM+1)}, {v(SM+1)}")
        A("v_lshlrev_b32 v4, 2, v4"); A(f"v_mov_b32 v5, {OOB}"); A("v_cmp_gt_u32 vcc, 2, v3"); A("s_lshl_b32 s57, s30, 2"); A(f"s_add_u32 s57, s57, s{W}"); A("v_cndmask_b32 v4, v5, v4, vcc")
        A("s_lshl_b32 s57, s57, 6"); A(f"s_add_u32 s57, s57, {RS_OFF}"); A("s_add_u32 s58, s57, 8192")
        A.ext(Q2.add("s", [f"buffer_store_dword {v(SM)}, v4, {S4(SWS)}, s57 offen sc1", f"buffer_store_dword {v(SM+1)}, v4, {S4(SWS)}, s58 offen sc1"]))
    stats(rproc, rfin)
    A(f"s_branch {both}")
    A(f"{col}:")
    def cproc(i):
        for j in range(4):
            A(f"v_lshlrev_b32 v16, 16, {v(XB+4*i+j)}"); A(f"v_and_b32 v17, 0xffff0000, {v(XB+4*i+j)}"); A(f"v_pk_add_f32 {v(SM+2*j,2)}, {v(SM+2*j,2)}, v[16:17]")
    def cfin(Q2):
        A("s_nop 1")
        for i in range(8): A(f"v_add_f32_dpp {v(SM+i)}, {v(SM+i)}, {v(SM+i)} row_ror:8 row_mask:0xf bank_mask:0xf")
        quad_sum(A, list(range(SM, SM+8)), list(range(16, 24)))
        EX = 147456
        A(f"s_lshl_b32 s57, s{W}, 8"); A(f"s_add_u32 s57, s57, {EX}"); A("v_lshl_add_u32 v4, v3, 5, s57")
        A(f"ds_write_b128 v4, {v(SM,4)}"); A(f"ds_write_b128 v4, {v(SM+4,4)} offset:16"); A(f"v_add_u32 v4, {EX}, {v(L4V)}")
        A("s_waitcnt lgkmcnt(0)"); A("s_barrier")
        for i in range(4): A(f"ds_read_b32 {v(16+i)}, v4 offset:{256*i}")
        A("s_lshl_b32 s57, s31, 8"); A(f"s_add_u32 s57, s57, {C1_OFF}"); A("s_add_u32 s57, s57, s22"); A(f"s_mov_b32 s58, {OOB}")
        A("s_waitcnt lgkmcnt(0)"); A("v_add_f32 v16, v16, v17"); A("v_add_f32 v18, v18, v19"); A("v_add_f32 v16, v16, v18")
        A.ext(Q2.add("s", [f"buffer_store_dword v16, {v(L4V)}, {S4(SWS)}, s57 offen sc1", f"buffer_store_dword v16, {v(L4V)}, {S4(SWS)}, s58 offen sc1"]))
    Q = stats(cproc, cfin)
    A(f"{both}:"); mk()
    A(f"s_lshr_b32 s57, s{W}, 1"); A(f"s_lshl_b32 s56, s{hid}, 1"); A("s_add_u32 s56, s56, s57"); A("s_mul_i32 s56, s56, 896"); A(f"s_add_u32 s56, s56, {F2_OFF}")
    A(f"s_bitcmp1_b32 s{W}, 0"); A(f"s_cselect_b32 s56, s56, {OOB}"); A(f"v_min_u32 v4, {55*16}, {v(LV)}")
    A(f"s_mul_i32 s57, s{hid}, 5120"); A(f"s_add_u32 s57, s57, {ONES_OFF}"); A(f"s_cmp_eq_u32 s{W}, 2"); A(f"s_cselect_b32 s57, s57, {OOB}"); A(f"v_and_b32 v5, 1, {v(LANE)}"); A("v_mul_u32_u24 v5, 2560, v5")
    A.ext(Q.add("s", [f"buffer_store_dwordx4 v[8:11], v4, {S4(SWS)}, s56 offen sc1", f"buffer_store_dwordx4 {v(ONE,4)}, v5, {S4(SWS)}, s57 offen sc1"]))
    A(f"s_lshl_b32 s35, s{hid}, 7"); A("s_add_u32 s35, s35, s22"); A(f"s_add_u32 s35, s35, {HF_OFF}")
    poll(A, [flag0], [55], sleep=4, post=[f"v_or_b32 v55, s{W}, v55"]); A("s_barrier")
    A(f"buffer_store_dword {v(ONE)}, off, {S4(SWS)}, s35 sc1")
    mk()
    for i in range(4): A(f"v_mov_b32 {v(16+i)}, -1")
    A(f"s_sub_u32 s56, s{GI}, 24"); A("s_lshl_b32 s56, s56, 2"); A(f"s_add_u32 s56, s56, s{W}"); A("s_mul_i32 s56, s56, 10240"); A(f"s_add_u32 s56, s56, s{GB}"); A(f"s_add_u32 s56, s56, {O_OFF}")
    for i in range(10):
        A(f"buffer_store_dwordx4 v[16:19], {v(LV)}, {S4(SWS)}, s56 offen offset:{1024*(i&3)} sc1")
        if i & 3 == 3: A("s_add_u32 s56, s56, 4096")
    while marks: mk()
    att_setup(A)
    poll(A, [flag], [2], sleep=8, post=[f"v_or_b32 v2, s{W}, v2"]); A("s_barrier")
    A("s_mov_b64 exec, 1"); poll(A, apoll(4, 145, 59, CFG.get("at1", 1)), [4], sleep=8); A("s_mov_b64 exec, -1")
    A(f"s_branch {K}_p1done")

def w3reg(f): return 256 + 192 + 4*f if f < 16 else 148 + 4*(f-16)
WV = 250
P3RES, P3CS = 184, 194
SK_WR, SK_RD, SK_RM = 242, 245, 246
def p3_wload(f):
    ks, u = divmod(f, 5)
    L = [f"buffer_load_dwordx4 {r(w3reg(f),4)}, {v(WV if u < 4 else WV+1)}, {S4(SWS)}, s44 offen offset:{1024*(u&3)} sc1"]
    if u == 4: L.append("s_add_u32 s44, s44, 40960" if ks != 3 else "s_mov_b32 s44, s78")
    return L
CMB = 86016

def TOUCHES(key="touch", dflt=""): return [(int(x.split(":")[0]), x.split(":")[1]) for x in str(CFG.get(key, dflt)).split(",") if x]
def gtouch(what):
    c, k_ = what[0], int(what[1:] or 0)
    if c == "u": return [f"s_mov_b64 s[{SR}:{SR+1}], s[86:87]", f"s_mov_b32 s{SR+2}, 2621440", f"buffer_load_dword v248, v147, {S4(SR)}, s90 offen offset:{1280*k_} sc1"]
    reg, vr, base = {"N": (76, TV, HH_OFF() + 3456*k_), "h": (90, 147, H_OFF()),
                     "s": (93, None, STAT_OFF), "g": (79, TV, WGU_OFF + 442368*k_), "d": (79, TV, WD_OFF + 442368*k_), "w": (85, 140, 40960*k_)}[c]
    return [f"s_add_u32 s91, s{reg}, {base}", f"buffer_load_dword v248, {v(vr) if vr else 'off'}, {S4(SWS)}, s91 {'offen' if vr else ''} sc1"]
def att_setup(A, hook=lambda pos: None):
    odd, sok, sov, sox, redo, sob, sfr, stch = 28, 72, 73, 74, 32, 33, 34, 35
    S0, S1, P, E, O0 = 16, 48, 80, 96, 104
    kv, kxv, vv, ov, oxv, cw, cr, tv = 136, 137, 138, 139, 140, 141, 144, 145
    OA, QM, QX, KR, VR, XR = 256, 256+96, 256+128, 256+136, 256+152, 256+184
    Oreg = lambda lp: O0 if lp == 0 else OA + 32*(lp-1)
    t0, t1, t2, t3, t4 = 2, 3, 4, 5, 6
    LD = CFG.get("ld", "sc1")
    head, qb = 30, 31
    A(f"s_lshl_b32 s{head}, s{GX}, 2"); A(f"s_and_b32 s36, s{GI}, 3"); A(f"s_add_u32 s{head}, s{head}, s36"); A(f"s_lshr_b32 s{qb}, s{GI}, 2")
    A(f"s_and_b32 s{odd}, s{head}, 1")
    A(f"s_bfe_u32 s36, s{head}, 0x10001"); A("s_mul_i32 s37, s36, 163840"); A(f"s_add_u32 s37, s37, s{GB}")
    A(f"s_add_u32 s{MODE}, s37, {K_OFF}")
    A(f"s_mul_i32 s{sob}, s{qb}, {GS}"); A(f"s_lshl_b32 s36, s{head}, 9"); A(f"s_add_u32 s{sob}, s{sob}, s36")
    A(f"s_lshl_b32 s36, s{W}, 14"); A(f"s_add_u32 s63, s{sob}, s36"); A(f"s_add_u32 s63, s63, {OX_OFF}")
    A(f"s_lshl_b32 s36, s{W}, 16"); A(f"s_add_u32 s{sob}, s{sob}, s36"); A(f"s_add_u32 s{sob}, s{sob}, {O_OFF}")
    A(f"s_lshl_b32 s38, s{qb}, 2")
    for i in range(4):
        A(f"s_add_u32 s36, s{W}, {i}"); A("s_and_b32 s36, s36, 3")
        if i: A("s_mul_i32 s39, s36, 18432"); A(f"s_add_u32 s39, s39, {CMB+(i-1)*6144}"); A(f"v_add_u32 {v(cw+i-1)}, s39, {v(LV)}")
        else: A("s_mul_i32 s39, s36, 18432"); A(f"s_add_u32 s39, s39, {CMB}"); A(f"v_add_u32 {v(cr)}, s39, {v(LV)}")
        A("s_add_u32 s36, s36, s38"); A("s_mul_i32 s36, s36, 5120"); A(f"s_add_u32 s{40+i}, s36, s37")
    A(f"s_mul_i32 s36, s{odd}, 1536"); A(f"v_add_u32 {v(kv)}, s36, {v(LV)}")
    A(f"v_and_b32 {v(t0)}, 31, {v(LANE)}"); A(f"v_lshrrev_b32 {v(t1)}, 5, {v(LANE)}")
    A(f"s_lshl_b32 s36, s{odd}, 3"); A("s_add_u32 s37, s36, 1024")
    A(f"v_lshl_add_u32 {v(t4)}, {v(t0)}, 4, s37")
    A(f"v_mul_u32_u24 {v(t2)}, 2560, {v(t1)}"); A(f"v_add_u32 {v(kxv)}, {v(t4)}, {v(t2)}")
    A(f"v_bfe_u32 {v(t2)}, {v(LANE)}, 4, 1"); A(f"v_lshlrev_b32 {v(t2)}, 14, {v(t2)}"); A(f"v_and_b32 {v(t3)}, 15, {v(LANE)}"); A(f"v_lshl_add_u32 {v(t2)}, {v(t3)}, 4, {v(t2)}")
    A(f"v_lshl_add_u32 {v(ov)}, {v(t1)}, 8, {v(t2)}")
    A(f"v_lshrrev_b32 {v(t2)}, 2, {v(t0)}"); swap01(A, t3, t2, 7)
    A(f"v_and_b32 {v(t2)}, 3, {v(t0)}"); A(f"v_lshl_add_u32 {v(t2)}, {v(t3)}, 2, {v(t2)}")
    A(f"v_mul_u32_u24 {v(t3)}, 1280, {v(t1)}"); A(f"v_lshl_add_u32 {v(t2)}, {v(t2)}, 4, {v(t3)}")
    A(f"s_and_b32 s36, s{head}, 3"); A("s_mul_i32 s36, s36, 320"); A(f"v_add_u32 {v(t2)}, s36, {v(t2)}")
    A(f"v_mov_b32 {v(t3)}, {OOB}"); A(f"v_cmp_gt_u32 vcc, 20, {v(t0)}"); A("s_nop 1"); A(f"v_cndmask_b32 {v(t2)}, {v(t3)}, {v(t2)}, vcc")
    A(f"s_sub_u32 s36, {ONES_OFF-V_OFF}, s{GB}"); A(f"v_mov_b32 {v(t3)}, s36")
    A(f"v_cmp_eq_u32 vcc, 20, {v(t0)}"); A("s_nop 1"); A(f"v_cndmask_b32 {v(vv)}, {v(t2)}, {v(t3)}, vcc")
    A(f"s_mul_i32 s{sok}, s{W}, {16*2560}"); A(f"s_mov_b32 s{sox}, s{sok}")
    A(f"s_mul_i32 s36, s{W}, {16*5120}"); A(f"s_add_u32 s{sov}, s{GB}, s36"); A(f"s_add_u32 s{sov}, s{sov}, {V_OFF}")
    A("v_mov_b32 v10, 1")
    hook(0)
    A(f"s_bfe_u32 s36, s{GI}, 0x10002"); A("s_lshl_b32 s37, s36, 10"); A(f"v_add_u32 {v(WV)}, s37, {v(LV)}")
    A("s_xor_b32 s36, s36, 1"); A("s_lshl_b32 s37, s36, 12"); A(f"v_add_u32 {v(WV+1)}, s37, {v(LV)}")
    A(f"s_lshr_b32 s36, s{GI}, 2"); A("s_mul_i32 s36, s36, 5120"); A(f"s_mul_i32 s44, s{W}, {4*40960}"); A("s_add_u32 s44, s44, s36"); A(f"s_add_u32 s44, s44, {WO_OFF}")
    A(f"s_mul_i32 s78, s{W}, 40960"); A("s_add_u32 s78, s78, s36"); A(f"s_add_u32 s78, s78, {WO_OFF+16*40960}")
    skinny_addr(A); p4_setup(A)
    A(f"s_lshl_b32 s75, s{P4_ST}, 7"); A(f"s_add_u32 s75, s75, {CS_OFF}"); A("v_lshlrev_b32 v146, 2, v0")
    hook(1)
    relayout_setup(A)
    A(f"s_lshl_b32 s36, s{GX}, 5"); A(f"s_add_u32 s36, s36, s{GI}"); A("s_lshl_b32 s36, s36, 2"); A(f"s_add_u32 s36, s36, s{W}")
    A(f"s_lshl_b32 s{sfr}, s2, 5"); A(f"s_add_u32 s{sfr}, s{sfr}, s{W}"); A(f"s_lshl_b32 s{sfr}, s{sfr}, 2"); A(f"s_add_u32 s{sfr}, s{sfr}, {FR_OFF}")
    A(f"s_lshl_b32 s77, s{GX}, 7"); A(f"s_add_u32 s77, s77, {FR_OFF}"); A(f"s_lshl_b32 s101, s{W}, 13"); A(f"s_add_u32 s101, s101, {FR_OFF}")
    A(f"v_mov_b32 v11, {v(TV)}"); A(f"v_and_b32 v8, 31, {v(LANE)}"); A("v_lshlrev_b32 v8, 10, v8")
    A("s_lshl_b32 s93, s36, 7"); A("s_and_b32 s36, s36, 127"); A("s_mul_i32 s79, s36, 3456")
    A("s_mul_i32 s76, s36, 6912"); A(f"s_add_u32 s76, s76, s{GB}"); A("s_mul_i32 s90, s36, 2560"); A(f"s_add_u32 s90, s90, s{GB}")
    A(f"v_min_u32 v147, {19*128}, {v(TV)}"); A(f"v_min_u32 {v(TV)}, {26*128}, {v(TV)}"); A(f"v_mov_b32 v7, s{MYF}")
    A(f"s_lshl_b32 s38, s{qb}, 2"); A(f"s_add_u32 s38, s38, s{W}"); A("s_lshl_b32 s38, s38, 2"); A(f"s_lshr_b32 s39, s{head}, 3"); A("s_add_u32 s38, s38, s39"); A("s_lshl_b32 s38, s38, 5")
    A(f"s_and_b32 s39, s{head}, 7"); A("s_add_u32 s38, s38, s39"); A("s_lshl_b32 s38, s38, 2"); A(f"s_add_u32 s38, s38, {F2_OFF}")
    A(f"s_add_u32 s39, s{sob}, 32768"); A("s_lshl_b32 s84, s49, 7"); A(f"s_add_u32 s84, s84, {F2_OFF}")
    A(f"v_min_u32 v2, 23, {v(LANE)}"); A("v_lshrrev_b32 v3, 3, v2"); A("v_and_b32 v4, 7, v2"); A("v_lshlrev_b32 v3, 9, v3"); A("v_lshl_add_u32 v3, v4, 2, v3"); A(f"s_lshl_b32 s36, s{W}, 7"); A(f"s_lshr_b32 s37, s{GI}, 3"); A(f"s_mul_i32 s37, s37, {96*128}"); A("s_add_u32 s36, s36, s37"); A("v_add_u32 v3, s36, v3")
    A(f"s_lshr_b32 s36, s{qb}, 1"); A("s_lshl_b32 s36, s36, 7"); A(f"s_and_b32 s37, s{qb}, 1"); A("s_lshl_b32 s37, s37, 4"); A("s_add_u32 s36, s36, s37"); A(f"s_mul_i32 s37, s{W}, {96*128}"); A("s_add_u32 s36, s36, s37")
    A("v_and_b32 v4, 3, v2"); A("v_cmp_gt_u32 vcc, 8, v2"); A("v_lshl_add_u32 v4, v4, 2, s36"); A(f"s_mul_i32 s59, s{GX}, 1536"); A(f"v_cndmask_b32 {v(tv)}, v3, v4, vcc"); A(f"s_add_u32 s59, s59, {F1_OFF}")
    w5_setup(A)
    A(f"v_min_u32 v2, {10*CFG.get('wtn', 6)-1}, {v(LANE)}"); A("v_mul_u32_u24 v3, 6554, v2"); A("v_lshrrev_b32 v3, 16, v3"); A(f"v_mul_u32_u24 v3, {40960-1280}, v3"); A("v_lshl_add_u32 v140, v2, 7, v3")
    A(f"s_and_b32 s85, s{GI}, 3"); A("s_mul_i32 s85, s85, 1280"); A("s_add_u32 s85, s85, s100")
    A(f"s_and_b32 s56, s{GI}, 3"); A(f"s_lshl_b32 s37, s{W}, 12"); A(f"s_add_u32 s37, s37, s{GB}")
    A("s_lshl_b32 s57, s56, 14"); A("s_add_u32 s57, s57, s37"); A(f"s_add_u32 s57, s57, {OX_OFF}")
    A("s_lshl_b32 s56, s56, 16"); A("s_add_u32 s56, s56, s37"); A(f"s_add_u32 s56, s56, {O_OFF}")
    for i in range(4):
        A(f"s_add_u32 s36, s{W}, {i}"); A("s_and_b32 s36, s36, 3"); A("s_lshl_b32 s37, s36, 14"); A(f"s_add_u32 s{80+i}, s56, s37")
        A("s_and_b32 s37, s36, 1"); A("s_lshl_b32 s37, s37, 8"); A("s_lshr_b32 s36, s36, 1"); A("s_lshl_b32 s36, s36, 3"); A("s_add_u32 s36, s36, s37"); A(f"s_add_u32 s{52+i}, s57, s36")
    A(f"v_lshrrev_b32 v2, 4, {v(LANE)}"); A(f"v_mul_u32_u24 v252, 768, v2"); A(f"v_add_u32 v252, v252, {v(LV)}")

HINT_OPS = ["s_mov_b64 exec, 1", f"buffer_atomic_or v10, off, {S4(SWS)}, s38 sc1", "s_mov_b64 exec, -1"]
def phase2(A, ST):
    odd, sok, sov, sox, redo, sob, sfr, stch = 28, 72, 73, 74, 32, 33, 34, 35
    S0, S1, P, E, O0 = 16, 48, 80, 96, 104
    kv, kxv, vv, ov, oxv, cw, cr, tv = 136, 137, 138, 139, 140, 141, 144, 145
    OA, QM, QX, KR, VR, XR = 256, 256+96, 256+128, 256+136, 256+152, 256+184
    Oreg = lambda lp: O0 if lp == 0 else OA + 32*(lp-1)
    t0, t1, t2, t3, t4 = 2, 3, 4, 5, 6
    LD = CFG.get("ld", "sc1")
    head, qb = 30, 31
    A(f"s_mov_b32 s{redo}, 0"); A(f"s_add_u32 s{SA}, s{SWS}, s{MODE}"); A(f"s_addc_u32 s{SA+1}, s{SWS+1}, 0"); A(f"s_mov_b32 s{SA+2}, 163840")
    if CFG.get("f1b", 0) == 0: A("s_barrier")
    A("s_mov_b64 exec, 0xffff0f")
    poll(A, apoll(4, tv, 59, CFG.get("at1", 1)), [4], sleep=CFG.get("f1s", 1))
    A("s_mov_b64 exec, -1")
    if CFG.get("f1b", 0) == 1: A("s_barrier")
    ST.mark()
    Kr = lambda t: KR + 4*(t % 4)
    Vr = lambda t, sx: VR + 8*(t % 4) + 4*sx
    Xr = lambda j: XR + 2*(j % 2)
    def ldk(t): return [f"buffer_load_dwordx4 {r(Kr(t),4)}, {v(kv)}, {S4(SA)}, s{sok} offen offset:{2560*(t&1)} {LD}"] + ([f"s_add_u32 s{sok}, s{sok}, 5120"] if t & 1 else [])
    def ldx(j): return [f"buffer_load_dwordx2 {r(Xr(j),2)}, {v(kxv)}, {S4(SA)}, s{sox} offen sc1", f"s_add_u32 s{sox}, s{sox}, 5120"]
    def ldv(t, sx): return [f"buffer_load_dwordx4 {r(Vr(t,sx),4)}, {v(vv)}, {S4(SWS)}, s{sov} offen offset:{2560*sx} {LD}"] + ([f"s_add_u32 s{sov}, s{sov}, 5120"] if sx else [])
    def ldq(lp): return ([f"buffer_load_dwordx2 {r(QX+2*lp,2)}, {v(kxv)}, {S4(SWS)}, s{40+lp} offen sc1"] +
                         [f"buffer_load_dwordx4 {r(QM+8*lp+4*j,4)}, {v(kv)}, {S4(SWS)}, s{40+lp} offen offset:{2560*j} sc1" for j in range(2)])
    Q = VQ()
    order = (1, 2, 3, 0)
    NT = CFG.get("tail", 3)
    seq = [(t, lp) for t in range(16-NT) for lp in order] + [(t, lp) for lp in order for t in range(16-NT, 16)]
    first = [(("x", 0), ldx(0)), (("k", 0), ldk(0)), (("q", 1), ldq(1)), (("q", 2), ldq(2)), (("v", 0, 0), ldv(0, 0)), (("v", 0, 1), ldv(0, 1)), (("q", 3), ldq(3)), (("q", 0), ldq(0))]
    U0 = CFG.get("au", 6)
    for tag, ops in first[:U0]: A.ext(Q.add(tag, ops))
    side = {b: [] for b in range(64)}
    fix = {(b, k): [] for b in range(64) for k in range(8)}
    def put(b, tag, ops): side[b] += [(tag, x) for x in ops]
    put(0, ("k", 1), ldk(1)); put(0, ("v", 1, 0), ldv(1, 0)); put(1, ("v", 1, 1), ldv(1, 1)); put(1, ("x", 1), ldx(1)); put(2, ("k", 2), ldk(2))
    put(2, ("v", 2, 0), ldv(2, 0)); put(3, ("v", 2, 1), ldv(2, 1)); put(3, ("k", 3), ldk(3)); put(4, ("v", 3, 0), ldv(3, 0)); put(4, ("v", 3, 1), ldv(3, 1))
    for t in range(12):
        d = 2*(t == 0)
        put(4*t+3+d, ("k", t+4), ldk(t+4)); put(4*t+4+d, ("v", t+4, 0), ldv(t+4, 0)); put(4*t+5+d, ("v", t+4, 1), ldv(t+4, 1))
    for j in range(6): put(8*j+6, ("x", j+2), ldx(j+2))
    for b in (10, 26, 42, 54): put(b, "pc", [CODE_TOUCH])
    mid = {b: [] for b in range(64)}
    B0, SP, B1, SS = CFG.get("b0", 3), CFG.get("rsp", 1), CFG.get("b1", 10), CFG.get("rss", 3)
    for i in range(10): put(B0+SP*i, ("rd", i), rl_dma(i))
    for a_ in range(5):
        b_ = B1 + SS*a_
        assert b_ > B0+SP*(2*a_+1)
        put(b_, None, [("wait", ("rd", 2*a_+1))] + rl_read(a_, 0) + rl_read(a_, 1))
        put(b_+1, "rs", ["s_waitcnt lgkmcnt(0)"] + rl_store(a_, 0)); put(b_+2, "rs", rl_store(a_, 1)); mid[b_+1] += [rl_sum(a_, 0), rl_sum(a_, 1)]
    put(b_+2, "rs", rl_cs(0) + rl_cs(1))
    B2 = b_ + 2 + CFG.get("b2", 3)
    put(B2, "fr", [("wait", "rs"), f"buffer_store_dword v7, off, {S4(SWS)}, s{sfr} sc1"])
    BR = B2 + CFG.get("b3", 5); BQ = BR + 4
    frl = [f"buffer_load_dwordx4 {v(RLF,4)}, v11, {S4(SWS)}, s101 offen sc1"]
    put(BR, "frl", frl)
    chk = [f"v_min3_u32 {v(RLF)}, {v(RLF)}, {v(RLF+1)}, {v(RLF+2)}", f"v_min_u32 {v(RLF)}, {v(RLF)}, {v(RLF+3)}", f"v_cmp_eq_u32 vcc, 0, {v(RLF)}"]
    put(BR+3, None, [("wait", "frl")] + chk + ["s_nop 0", f"s_cbranch_vccnz {K}_frspin", f"{K}_frok:", "s_barrier"])
    put(BQ, "grp", [f"buffer_load_dword v9, v8, {S4(SWS)}, s77 offen sc1"])
    put(BQ+4, None, [("wait", "grp"), "v_cmp_ne_u32 vcc, v7, v9", "s_nop 0", "s_cmp_eq_u64 vcc, 0", f"s_cselect_b32 s{MODE}, {0 if CFG.get('safe') else 1}, 0"])
    put(BQ+5, None, [f"s_cmp_eq_u32 s{MODE}, 0", f"s_cselect_b32 s{stch}, {OOB}, 0", f"s_add_u32 s76, s76, s{stch}", f"s_add_u32 s90, s90, s{stch}", f"s_add_u32 s93, s93, s{stch}"])
    pf = [x for st_ in range(3) for x in p4_dma(st_)]
    pf += [x for kq in range(4) for x in (f"buffer_load_dword {v(P3CS+kq)}, v146, {S4(SWS)}, s75 offen sc1", f"s_add_u32 s75, s75, {108*128}")]
    pf += io_rm("load", P3RES, SX)
    pf += [x for f in range(25) for x in p3_wload(f)]
    for b_, what in TOUCHES():
        assert b_ > (BQ+5 if what[0] in 'shN' else BR+3); put(b_, "t", gtouch(what))
    PE = CFG.get("pfe", 57); nreal = sum(not is_salu(x) for x in pf)
    bl = [b for b in range(BR+4, PE) if b not in (BQ+4, BQ+5)]
    for i, b in enumerate(bl):
        take = -(-nreal//(len(bl)-i))
        while pf and take > 0:
            x = pf.pop(0); put(b, "pf", [x])
            if not is_salu(x): take -= 1; nreal -= 1
    cwr = lambda lp: [f"ds_write_b128 {v(cw+lp-1)}, {r(Oreg(lp)+16*j+4*g,4)} offset:{3072*j+1024*g}" for j in range(2) for g in range(3)]
    E0 = 64 - 3*NT
    for n in range(3):
        b0 = E0 + NT*n
        for x, pos in zip(cwr(order[n]), [(b0, 3), (b0, 5), (b0, 7), (b0+1, 3), (b0+1, 5), (b0+1, 7)]): fix[pos].append(x)
    for f in range(CFG["w5z"]):
        b_ = E0 + NT*(f//8) + 2 + ((f % 8)*3)//8
        if f % 8 == 0: fix[(b_, 2)].append("s_waitcnt lgkmcnt(0)")
        put(b_, "w5", w5load(f))
    nxt63 = S0
    CB = [[204+4*i for i in range(6)], [nxt63+4*i for i in range(6)], [228, 232, 236, 200, nxt63+24, nxt63+28]]
    crd = lambda sl: [f"ds_read_b128 {v(CB[sl][3*j+g],4)}, {v(cr)} offset:{6144*sl+3072*j+1024*g}" for j in range(2) for g in range(3)]
    fix[(63, 2)] += ["s_waitcnt lgkmcnt(0)", "s_barrier"] + crd(0)
    if CFG.get("hint", 1) >= 60: fix[(CFG["hint"], 3)] += HINT_OPS
    fix[(63, 3)] += crd(1); fix[(63, 6)] += crd(2)
    A.ext(Q.wait(("q", 1)))
    A(mf2b(S0, Xr(0), QX+2, "0", 0))
    n0 = len(A.L)
    for tag, ops in first[U0:]: A.ext(Q.add(tag, ops))
    n0 = 18 - (len(A.L) - n0)
    if n0 > 16: A("s_nop 1"); n0 -= 2
    A(f"s_nop {n0-1}")
    A(mf32(S0, Kr(0), QM+8)); A(mf32(S0+16, Kr(0), QM+12))
    A.ext(Q.wait(("q", 2)))
    ST.mark()
    A("s_nop 9"); A(".p2align 3")
    def needs(b, k):
        if b > 63: return []
        t = seq[b][0]; t1_, lp1 = seq[min(b+1, 63)]
        if k == 0: return [("x", t1_ >> 1), ("q", lp1)] if b < 63 else []
        if k == 4: return [("k", t1_)] if b < 63 else []
        if k == 3: return [("v", t, 0)]
        if k == 6: return [("v", t, 1)]
        return []
    ismem = lambda x: not (isinstance(x, tuple) or is_salu(x) or x.startswith("v_") or x.endswith(":"))
    for b in range(64):
        t, lp = seq[b]
        cur, nxt = (S0, S1) if b % 2 == 0 else (S1, S0)
        c0 = "0" if t == 0 else None
        mf = {3: mf32(Oreg(lp), Vr(t, 0), P, c0), 6: mf32(Oreg(lp), Vr(t, 1), P+4), 7: mf32(Oreg(lp)+16, Vr(t, 0), P+8, c0)}
        if b: mf[2] = mf32(Oreg(seq[b-1][1])+16, Vr(seq[b-1][0], 1), P+12)
        if b < 63:
            t1_, lp1 = seq[b+1]
            mf[0] = mf2b(nxt, Xr(t1_ >> 1), QX+2*lp1, "0", t1_ & 1); mf[4] = mf32(nxt, Kr(t1_), QM+8*lp1); mf[5] = mf32(nxt+16, Kr(t1_), QM+8*lp1+4)
        q = side[b]; mq = list(mid[b])
        if b in ASTAMPS(): ST.mark()
        for k in range(8):
            if k in mf: A(mf[k])
            n0 = len(A.L)
            if k >= 2:
                tags = needs(b, k+1) if k < 7 else needs(b+1, 0)
                w_ = Q.wait(*tags) if tags else []
                A.ext(w_); A.ext(fix[(b, k)])
                free = not w_ and not fix[(b, k)]; nmem = 0
                left = sum(1 for tg, x in q if ismem(x))
                even = len([j for j in range(k, 8) if j % 2 == 0])
                want = (1 if k % 2 == 0 else 0) if left <= even else -(-left//(8-k))
                while q:
                    tg, x = q[0]
                    if isinstance(x, tuple):
                        if not free and k < 7: break
                        q.pop(0); w_ = Q.wait(x[1]); A.ext(w_); free = free and not w_
                    elif x.endswith(":") or x.startswith("v_"): q.pop(0); A(x); free = False; nmem = 99 if k < 7 else nmem
                    elif is_salu(x):
                        if not free and k < 7 and len(q) <= 2*(7-k): break
                        q.pop(0); A(x); free = False
                    else:
                        if nmem >= want and k < 7: break
                        q.pop(0); A.ext(Q.add(tg, [x])); nmem += 1; free = False
            four = sum(1 for x in A.L[n0:] if isize(x) == 4)
            pk = (k-1) % 8; eb = E + 4*(pk & 1)
            if b or k:
                for j in range(2): A(f"v_cvt_pk_bf16_f32 {v(P+2*pk+j)}, {v(eb+2*j)}, {v(eb+2*j+1)}")
            for j in range(4):
                wide = j == 0 and four % 2 == 1
                A(f"v_exp_f32{'_e64' if wide else ''} {v(E+4*(k&1)+j)}, {v(cur+4*k+j)}")
                if j == 1 and k >= 3 and mq and not any(x == "s_waitcnt lgkmcnt(0)" for _, x in q): A(mq.pop(0))
        assert not q and not mq, (b, q)
    for j in range(2): A(f"v_cvt_pk_bf16_f32 {v(P+14+j)}, {v(E+4+2*j)}, {v(E+5+2*j)}")
    A("s_waitcnt lgkmcnt(0)"); A("s_nop 0")
    A(mf32(O0+16, Vr(15, 1), P+12))
    if CFG.get("hint", 1) == 4: A.ext(HINT_OPS)
    ST.mark()
    for j in range(2):
        for g in range(3):
            for i in range(4): A(f"v_add_f32 {v(CB[0][3*j+g]+i)}, {v(CB[0][3*j+g]+i)}, {v(CB[1][3*j+g]+i)}") if (j == 0 and g < 2) else None
            if not (j == 0 and g < 2):
                for i in (0, 2): A(f"v_pk_add_f32 {v(CB[0][3*j+g]+i,2)}, {v(CB[0][3*j+g]+i,2)}, {v(CB[1][3*j+g]+i,2)}")
    for sl in (0, 2):
        for j in range(2):
            for g in range(3):
                for i in (0, 2): A(f"v_pk_add_f32 {v(O0+16*j+4*g+i,2)}, {v(O0+16*j+4*g+i,2)}, {v(CB[sl][3*j+g]+i,2)}")
    A(f"{K}_anorm:")
    A(f"v_mov_b32 v12, {v(O0+8)}"); A(f"v_mov_b32 v13, {v(O0+8)}"); A(f"v_mov_b32 v14, {v(O0+24)}"); A(f"v_mov_b32 v15, {v(O0+24)}")
    A(f"s_mov_b32 s36, {hex(f2u(2.0**60))}"); A(f"s_mov_b32 s37, {hex(f2u(2.0**-60))}")
    A("v_permlane32_swap_b32 v12, v13"); A("v_permlane32_swap_b32 v14, v15"); A("s_nop 1")
    A("v_rcp_f32 v12, v13"); A("v_rcp_f32 v14, v15")
    A("v_cmp_nlt_f32_e64 vcc, v13, s36"); A("v_cmp_nlt_f32_e64 s[40:41], v15, s36"); A("v_cmp_ngt_f32_e64 s[42:43], v13, s37"); A("v_cmp_ngt_f32_e64 s[56:57], v15, s37")
    A("s_or_b64 vcc, vcc, s[40:41]"); A("s_or_b64 vcc, vcc, s[42:43]"); A("s_or_b64 vcc, vcc, s[56:57]"); A(f"s_cbranch_scc1 {K}_aslow")
    A(f"{K}_afin:")
    if CFG.get("hint", 1) == 3: A.ext(HINT_OPS)
    for j in range(2):
        for i in range(0, 12, 2): A(f"v_pk_mul_f32 {v(O0+16*j+i,2)}, {v(O0+16*j+i,2)}, {v(12+2*j,2)} op_sel_hi:[1,0]")
        for i in range(6): A(f"v_cvt_pk_bf16_f32 {v(S0+4*j+i if i < 4 else S0+8+2*j+i-4)}, {v(O0+16*j+2*i)}, {v(O0+16*j+2*i+1)}")
    def stores(fl):
        return ([f"buffer_store_dwordx4 {v(S0+4*j,4)}, {v(ov)}, {S4(SWS)}, s{sob if j == 0 else 39} offen {fl}" for j in range(2)] +
                ["s_mov_b32 exec_hi, 0", f"buffer_store_dwordx4 {v(S0+8,4)}, {v(LV)}, {S4(SWS)}, s63 offen {fl}"])
    if CFG.get("hint", 1) == 2: A.ext(HINT_OPS)
    A.ext(stores("sc1")); A("s_mov_b64 exec, -1")
    def cold():
        A(f"{K}_frspin:"); poll(A, frl, list(range(RLF, RLF+4)), sleep=8); A(f"s_branch {K}_frok")
        NM = S1
        A(f"{K}_aslow:")
        A(f"s_cmp_lg_u32 s{redo}, 0"); A(f"s_cbranch_scc1 {K}_afin")
        A(f"s_mov_b32 s{redo}, 1"); A(f"s_mov_b32 s{sok}, 0"); A(f"s_mov_b32 s{sox}, 0")
        A("v_mov_b32 v12, 0xff800000"); A("v_mov_b32 v13, 0xff800000")
        def scores(e, c):
            A(mf2b(S0, Xr(0), QX, c, e)); A("s_nop 15"); A("s_nop 1")
            A(mf32(S0, Kr(e), QM)); A(mf32(S0+16, Kr(e), QM+4)); A("s_nop 11")
        A(f"{K}_mloop:")
        A.ext(ldx(0) + ldk(0) + ldk(1)); A("s_waitcnt vmcnt(0)")
        for e in range(2):
            scores(e, "0")
            for j in range(2):
                for i in range(0, 16, 2): A(f"v_max3_f32 {v(12+j)}, {v(12+j)}, {v(S0+16*j+i)}, {v(S0+16*j+i+1)}")
        A(f"s_cmp_lt_u32 s{sok}, 163840"); A(f"s_cbranch_scc1 {K}_mloop")
        A("v_mov_b32 v14, v12"); A("v_mov_b32 v15, v13"); A("s_nop 1")
        A("v_permlane32_swap_b32 v12, v14"); A("v_permlane32_swap_b32 v13, v15"); A("s_nop 1")
        A("v_max_f32 v12, v12, v14"); A("v_max_f32 v13, v13, v15")
        for i in range(32): A(f"v_sub_f32 {v(NM+i)}, 0, {v(12+i//16)}"); A(f"v_mov_b32 {v(O0+i)}, 0")
        A(f"s_mov_b32 s{sok}, 0"); A(f"s_mov_b32 s{sox}, 0"); A(f"s_add_u32 s{sov}, s{GB}, {V_OFF}")
        A(f"{K}_sloop:")
        A.ext(ldx(0) + ldk(0) + ldk(1) + ldv(0, 0) + ldv(0, 1) + ldv(1, 0) + ldv(1, 1)); A("s_waitcnt vmcnt(0)")
        for e in range(2):
            scores(e, NM)
            for i in range(32): A(f"v_exp_f32 {v(S0+i)}, {v(S0+i)}")
            A("s_nop 0")
            for i in range(16): A(f"v_cvt_pk_bf16_f32 {v(P+i)}, {v(S0+2*i)}, {v(S0+2*i+1)}")
            A("s_nop 1")
            for j in range(2):
                for sx in range(2): A(mf32(O0+16*j, Vr(e, sx), P+8*j+4*sx))
        A(f"s_cmp_lt_u32 s{sok}, 163840"); A(f"s_cbranch_scc1 {K}_sloop")
        A("s_nop 15")
        A(f"s_branch {K}_anorm")
    return cold

RED = 86016
CSL = 147456
P4_SOW, P4_SOW2, P4_M0, P4_ST = 45, 46, 47, 48
class VQ:
    def __init__(self): self.q = []; self.done = 0; self.seen = set()
    def add(self, tag, ops):
        assert tag not in self.seen or not any(x.startswith(("buffer", "global")) for x in ops), ("issued after its wait", tag)
        self.q += [tag for x in ops if x.startswith(("buffer", "global"))]
        assert len(self.q) - self.done <= 63, "too many outstanding"
        return ops
    def wait(self, *tags):
        self.seen.update(tags)
        idx = [i for i, x in enumerate(self.q) if x in tags]
        last = max(idx) + 1
        if last <= self.done: return []
        self.done = last
        return [f"s_waitcnt vmcnt({len(self.q) - last})"]

def p4_setup(A):
    A(f"s_lshr_b32 s36, s{GI}, 1"); A("s_mul_i32 s36, s36, 7"); A(f"s_min_u32 s{P4_ST}, s36, 101")
    A(f"s_mul_i32 s{P4_M0}, s{W}, 7168"); A(f"s_lshl_b32 s36, s{P4_ST}, 11"); A(f"s_add_u32 s36, s36, s{P4_M0}")
    A(f"s_lshr_b32 s37, s{W}, 1"); A(f"s_mul_i32 s37, s37, {221184-14336}"); A("s_add_u32 s36, s36, s37")
    A(f"s_add_u32 s{P4_SOW}, s36, {WGU_OFF}")
def p4_dma(stage):
    slot = stage % 5
    dw = lambda j: f"buffer_load_dwordx4 {v(LV)}, {S4(SWS)}, s{P4_SOW if j < 4 else P4_SOW2} offen offset:{(j&3)*1024} sc1 lds"
    return ([f"s_add_u32 m0, s{P4_M0}, {slot*28672}", f"s_add_u32 s{P4_SOW2}, s{P4_SOW}, 4096"] + [dw(j) for j in range(4)] +
            [f"s_add_u32 m0, s{P4_M0}, {slot*28672+4096}", f"s_add_u32 s{P4_SOW}, s{P4_SOW}, {2*221184}"] + [dw(j) for j in range(4, 7)])

def skinny_addr(A):
    for i in range(1, 4):
        A(f"s_add_u32 s36, s{W}, {i}"); A("s_and_b32 s36, s36, 3"); A("s_mul_i32 s36, s36, 15360"); A(f"s_add_u32 s36, s36, {RED+(i-1)*5120}"); A(f"v_add_u32 {v(SK_WR+i-1)}, s36, {v(LV)}")
    A(f"s_mul_i32 s36, s{W}, 15360"); A(f"s_add_u32 s36, s36, {RED}"); A(f"v_add_u32 {v(SK_RD)}, s36, {v(LV)}")
    A(f"v_and_b32 v2, 15, {v(LANE)}"); A(f"v_lshrrev_b32 v3, 4, {v(LANE)}")
    A("v_mul_u32_u24 v2, 1280, v2"); A(f"v_lshl_add_u32 {v(SK_RM)}, v3, 4, v2")
    A(f"s_lshl_b32 s49, s{GX}, 2"); A(f"s_and_b32 s36, s{GI}, 3"); A("s_add_u32 s49, s49, s36"); A("s_lshl_b32 s49, s49, 2"); A(f"s_add_u32 s49, s49, s{W}")
    A("s_mul_i32 s50, s49, 20480"); A(f"s_lshr_b32 s36, s{GI}, 3"); A("s_mul_i32 s37, s36, 320"); A("s_add_u32 s51, s50, s37")
    A("s_mul_i32 s37, s36, 5120"); A("s_add_u32 s50, s50, s37"); A(f"s_mul_i32 s37, s{GX}, {GS-327680}"); A("s_add_u32 s50, s50, s37"); A(f"s_add_u32 s50, s50, {H_OFF()}")
    A(f"s_bfe_u32 s36, s{GI}, 0x10002"); A("s_lshl_b32 s37, s36, 3")
    A("s_add_u32 s60, s50, s37"); A("s_add_u32 s60, s60, 2048"); A("s_add_u32 s61, s51, s37"); A("s_add_u32 s61, s61, 128")
    A("s_mul_i32 s37, s36, 3072"); A("s_add_u32 s50, s50, s37"); A("s_mul_i32 s37, s36, 192"); A("s_add_u32 s51, s51, s37")
def io_frag(op, regs, fl):
    return [f"buffer_{op}_dwordx4 {v(regs,4)}, {v(LV)}, {S4(SWS)}, s50 offen {fl}", f"buffer_{op}_dwordx4 {v(regs+4,4)}, {v(LV)}, {S4(SWS)}, s50 offen offset:1024 {fl}",
            f"buffer_{op}_dwordx2 {v(regs+8,2)}, {v(LV)}, {S4(SWS)}, s60 offen {fl}"]
def io_rm(op, regs, S):
    return [f"buffer_{op}_dwordx4 {v(regs,4)}, {v(SK_RM)}, {S4(S)}, s51 offen", f"buffer_{op}_dwordx4 {v(regs+4,4)}, {v(SK_RM)}, {S4(S)}, s51 offen offset:64",
            f"buffer_{op}_dwordx2 {v(regs+8,2)}, {v(SK_RM)}, {S4(S)}, s61 offen"]
def unpack(A, dst, src, n):
    for i in range(n): A(f"v_lshlrev_b32 {v(dst+2*i)}, 16, {v(src+i)}"); A(f"v_and_b32 {v(dst+2*i+1)}, 0xffff0000, {v(src+i)}")
def reduce_tail(A, ACC, rd):
    A("s_waitcnt lgkmcnt(0)"); A("s_barrier")
    for sl in range(3):
        for u in range(5): A(f"ds_read_b128 {v(ACC+20+20*sl+4*u,4)}, {v(rd)} offset:{5120*sl+1024*u}")
    for sl in range(3):
        A(f"s_waitcnt lgkmcnt({10-5*sl})")
        for i in range(0, 20, 2): A(f"v_pk_add_f32 {v(ACC+i,2)}, {v(ACC+i,2)}, {v(ACC+20+20*sl+i,2)}")
def quad_sum(A, regs, tmps):
    for swap in ("v_permlane32_swap_b32", "v_permlane16_swap_b32"):
        for x, t in zip(regs, tmps): A(f"v_mov_b32 {v(t)}, {v(x)}")
        A("s_nop 1")
        for x, t in zip(regs, tmps): A(f"{swap} {v(x)}, {v(t)}")
        A("s_nop 1")
        for x, t in zip(regs, tmps): A(f"v_add_f32 {v(x)}, {v(x)}, {v(t)}")

class TL:
    def __init__(self, A, Q, mf):
        self.A, self.Q, self.mf = A, Q, mf
        self.pre = [[] for _ in mf]; self.post = [[] for _ in mf]; self.valu = [[] for _ in mf]; self.lq = []
    @staticmethod
    def kind(x): return "v" if callable(x) or x.startswith(("buffer", "global")) else "s" if is_salu(x) else "d"
    def cost(self, k): return sum({"v": 8, "d": 4, "s": 0}[self.kind(x)] for t, x in self.post[k]) + 4*len(self.valu[k])
    def has(self, k, c): return any(self.kind(x) == c for t, x in self.post[k])
    def tied(self, k): return k+1 < len(self.mf) and bool(self.pre[k+1])
    def spread(self, items, k0, step, slack=3):
        k = float(k0); last = int(k0)-3; hold = []; n = len(self.mf)
        def salu(h, lo, hi):
            c = [j for j in range(max(lo, 0), hi+1) if not (self.has(j, "s") or self.has(j, "v") or self.tied(j))] or [j for j in range(max(lo, 0), hi+1) if not self.has(j, "v") and self.cost(j) <= 4]
            if c and not self.has(c[0], "s"): self.post[c[0]].insert(0, (None, h)); return c[0]
            j = c[0] if c else max(lo-1, 0)
            self.post[j].append((None, h)); return j
        for t, x in items:
            if is_salu(x): hold.append(x); continue
            kk = min(max(int(k), last), n-1)
            ok = (lambda j: self.cost(j) == 0 and not self.has(j, "s")) if self.kind(x) == "v" else (lambda j: self.cost(j) <= 4 and not self.has(j, "d"))
            if step >= 1:
                lo = max(kk, last+1+len(hold))
                c = [j for j in range(lo, min(lo+slack, n-1)+1) if ok(j)]
                kk = c[0] if c else min(lo, n-1)
                p = last
                for j, h in enumerate(hold): p = max(p, salu(h, p+1, kk-len(hold)+j))
            else:
                for h in hold: self.post[kk].append((None, h))
            hold = []; self.post[kk].append((t, x)); last = kk; k += step
        p = last
        for h in hold: p = max(p, salu(h, min(p+1, n-1), min(p+2, n-1)) if p+1 < n else (self.post[n-1].append((None, h)) or n-1))
        return max(k, p+1)
    def vspread(self, ops, k0, k1, cap=2):
        ops = list(ops); k1 = min(k1, len(self.mf))
        room = [max(0, (4*cap - self.cost(k))//4) for k in range(k0, k1)]
        while sum(room) < len(ops):
            j = min(range(len(room)), key=lambda j: self.cost(k0+j) + 4*room[j]); room[j] += 1
        extra = sum(room) - len(ops)
        while extra:
            j = max(range(len(room)), key=lambda j: (room[j] > 0, self.cost(k0+j) + 4*room[j], j)); room[j] -= 1; extra -= 1
        last = k0
        for j, c in enumerate(room):
            for _ in range(c): self.valu[k0+j].append(ops.pop(0)); last = k0+j
        return last+1
    def emit(self):
        A, Q = self.A, self.Q
        def one(t, x):
            if callable(x): x()
            elif isinstance(x, tuple) and x[0] == "lwait": A(f"s_waitcnt lgkmcnt({min(15, len(self.lq)-1-max(i for i, y in enumerate(self.lq) if y == x[1]))})")
            elif isinstance(x, tuple): A.ext(Q.wait(*x[1:]))
            else:
                if x.startswith("ds_"): self.lq.append(t)
                elif t is not None: Q.add(t, [x])
                A(x)
        for k, m in enumerate(self.mf):
            for x in self.pre[k]: one(None, x)
            A(m)
            if k+1 < len(self.mf):
                nx = self.pre[k+1]
                while nx and ((isinstance(nx[0], str) and nx[0].startswith("s_waitcnt lgkmcnt") and not self.has(k, "d")) or
                              (isinstance(nx[0], tuple) and not any(t in nx[0][1:] for t, x in self.post[k]))):
                    one(None, nx.pop(0))
            for t, x in self.post[k]: one(t, x)
            A.ext(self.valu[k])

W5X = 208
def w5reg(f): return 256+4*f if f < 64 else (64, 68, 72, 76, 224, 228)[f-64]
def w5load(f):
    ks, u = divmod(f, 5)
    L = [f"buffer_load_dwordx4 {r(w5reg(f),4)}, {v(WV if u < 4 else WV+1)}, {S4(SWS)}, s100 offen offset:{1024*(u&3)} sc1"]
    if u == 4: L.append("s_add_u32 s100, s100, 40960" if ks != 12 else "s_add_u32 s100, s100, s94")
    return L
S_F2P, S_STW, S_F3W, S_F3P, S_STR, S_F4W, S_F4P, S_F3A, S_OH, S_OHH, S_OH1, S_A5 = 64, 65, 66, 67, 68, 69, 70, 71, 28, 29, 30, 72
P4_LA, P4_LB, P4_HV, P4_SV, P4_CA, P4_CB, P4_F3V, L4V, ONEV = 4, 7, 11, 12, 13, 14, 15, 241, 10
def w5_setup(A):
    A(f"s_mul_i32 s36, s{W}, 14"); A(f"s_sub_i32 s37, s{W}, 2"); A("s_max_i32 s37, s37, 0"); A("s_sub_u32 s31, s36, s37")
    A(f"s_lshr_b32 s36, s{GI}, 2"); A("s_mul_i32 s36, s36, 5120"); A("s_mul_i32 s100, s31, 40960"); A("s_add_u32 s100, s100, s36"); A(f"s_add_u32 s100, s100, {WD_OFF}")
    A(f"s_cmp_ge_u32 s{W}, 2"); A(f"s_cselect_b32 s92, {OOB}, 0"); A("s_add_u32 s94, s92, 40960")
def late_setup(A):
    A("s_and_b32 s57, s49, 12"); A("s_mul_i32 s57, s57, 55296"); A("s_lshl_b32 s37, s31, 10"); A("s_add_u32 s57, s57, s37"); A(f"s_add_u32 s57, s57, s{GB}"); A(f"s_add_u32 s57, s57, {HH_OFF()}")
    for i in range(4):
        A(f"s_add_u32 s36, s{W}, {i}"); A("s_and_b32 s36, s36, 3"); A("s_mul_i32 s37, s36, 55296"); A(f"s_add_u32 s{S_A5+i}, s57, s37")
    A(f"s_lshr_b32 s37, s{GI}, 2"); A("s_lshl_b32 s36, s49, 3"); A("s_add_u32 s36, s36, s37"); A("s_lshl_b32 s36, s36, 7"); A(f"s_add_u32 s{S_STW}, s36, {STAT_OFF}")
    A("s_lshr_b32 s36, s49, 1"); A("s_lshl_b32 s36, s36, 5"); A("s_lshl_b32 s37, s37, 1"); A("s_add_u32 s36, s36, s37"); A("s_and_b32 s37, s49, 1"); A("s_add_u32 s36, s36, s37")
    A("s_lshl_b32 s36, s36, 2"); A(f"s_add_u32 s{S_F3W}, s36, {F3_OFF}")
    A("s_lshr_b32 s36, s49, 2"); A("s_lshl_b32 s36, s36, 8"); A(f"s_add_u32 s{S_F4P}, s36, {F4_OFF}")
    A(f"s_and_b32 s36, s{GI}, 1"); A(f"s_lshl_b32 s37, s{GX}, 1"); A("s_add_u32 s36, s36, s37"); A("s_lshl_b32 s36, s36, 2"); A(f"s_add_u32 s36, s36, s{W}")
    A("s_and_b32 s56, s36, 7"); A(f"s_mul_i32 s{S_OH}, s56, 40960"); A(f"s_add_u32 s{S_OH}, s{S_OH}, s{GB}"); A(f"s_add_u32 s{S_OH}, s{S_OH}, {H_OFF()}")
    A(f"s_lshl_b32 s37, s36, 7"); A(f"s_add_u32 s{S_F3P}, s37, {F3_OFF}")
    A(f"s_lshr_b32 s39, s{GI}, 1"); A("s_lshl_b32 s39, s39, 2"); A("s_add_u32 s37, s37, s39"); A(f"s_add_u32 s{S_F4W}, s37, {F4_OFF}")
    A("s_lshl_b32 s37, s36, 11"); A(f"s_add_u32 s{S_STR}, s37, {STAT_OFF}")
    A(f"s_lshl_b32 s37, s{GX}, 10"); A(f"s_add_u32 s{S_F3A}, s37, {F3_OFF}")
    A(f"s_and_b32 s57, s{P4_ST}, 1")
    A(f"s_mul_i32 s{S_OHH}, s56, 110592"); A(f"s_add_u32 s{S_OHH}, s{S_OHH}, s{GB}"); A(f"s_add_u32 s{S_OHH}, s{S_OHH}, {HH_OFF()}")
    A(f"s_lshr_b32 s37, s{P4_ST}, 1"); A("s_lshl_b32 s37, s37, 10"); A(f"s_add_u32 s{S_OHH}, s{S_OHH}, s37")
    A("s_cmp_eq_u32 s57, 0"); A("s_cselect_b32 s37, 3072, 8"); A(f"s_cselect_b32 s39, {6*2048}, 0"); A(f"s_cselect_b32 s56, {6*128}, 0"); A(f"s_add_u32 s{S_OH1}, s{S_OHH}, s37")
    A("s_lshl_b32 s37, s57, 10"); A(f"s_add_u32 s{S_OHH}, s{S_OHH}, s37"); A("s_lshl_b32 s36, s57, 11")
    A(f"s_cmp_ge_u32 s{GI}, 28"); A(f"s_cselect_b32 s{S_OH1}, {OOB}, s{S_OH1}"); A(f"s_cmp_ge_u32 s{GI}, 30"); A(f"s_cselect_b32 s33, {OOB}, s{S_OHH}")
    for i in range(3):
        A(f"v_add_u32 {v(P4_LA+i)}, s36, {v(LV)}"); A(f"v_add_u32 {v(P4_LB+i)}, s39, {v(LV)}"); A("s_add_u32 s36, s36, 57344"); A("s_add_u32 s39, s39, 57344")
    A(f"v_add_u32 {v(P4_HV)}, 20480, {v(LV)}"); A(f"v_lshrrev_b32 v2, 4, {v(LANE)}"); A(f"v_and_b32 v3, 15, {v(LANE)}")
    A(f"v_lshlrev_b32 {v(P4_SV)}, 8, v2"); A(f"v_lshl_add_u32 {v(P4_SV)}, v3, 3, {v(P4_SV)}")
    A("s_lshl_b32 s36, s57, 7"); A(f"s_add_u32 s36, s36, {CSL}"); A(f"v_lshl_add_u32 {v(P4_CA)}, v2, 4, s36")
    A(f"s_add_u32 s56, s56, {CSL}"); A(f"v_lshl_add_u32 {v(P4_CB)}, v2, 4, s56")
    A(f"v_lshrrev_b32 v2, 3, {v(LANE)}"); A(f"v_and_b32 v3, 7, {v(LANE)}"); A("v_lshlrev_b32 v2, 7, v2"); A(f"v_lshl_add_u32 {v(P4_F3V)}, v3, 3, v2")
    srd(A, SA, 86, 2621440)

COLD = []
def mode_store(A, ins):
    alt, back = A.label("wt"), A.label("wb")
    COLD.append([f"{alt}:"] + [x + " sc1" for x in ins] + [f"s_branch {back}"])
    return [f"s_cbranch_vccz {alt}"] + ins + [f"{back}:"]
def set_mode(A): A(f"s_mov_b32 vcc_lo, s{MODE}"); A("s_mov_b32 vcc_hi, 0")
def red_write(AC, i, u): return f"ds_write_b128 {v(SK_WR+i-1)}, {v(AC[i]+4*u,4)} offset:{1024*u}"
def red_read(AC, sl): return [f"ds_read_b128 {v(AC[sl+1]+4*u,4)}, {v(SK_RD)} offset:{5120*sl+1024*u}" for u in range(5)]

def phase3(A, ST):
    ACC, RES, CSP = 16, P3RES, P3CS
    AC = (16, 36, 56, 76); AF = (96, 116, 200, 220)
    order = (1, 2, 3, 0)
    al = lambda n: ([f"buffer_load_dwordx2 {v(AF[n]+16+2*j,2)}, v252, {S4(SWS)}, s{52+order[n]} offen offset:{512*j} sc1" for j in range(2)] +
                    [f"buffer_load_dwordx4 {v(AF[n]+4*ks,4)}, {v(LV)}, {S4(SWS)}, s{80+order[n]} offen offset:{1024*ks} sc1" for ks in range(4)])
    chk = lambda n: ([f"v_max3_u32 v2, {v(AF[n])}, {v(AF[n]+1)}, {v(AF[n]+2)}"] + [f"v_max3_u32 v2, v2, {v(AF[n]+i)}, {v(AF[n]+i+1)}" for i in range(3, 19, 2)] +
                     [f"v_max_u32 v2, v2, {v(AF[n]+19)}"])
    UP = CFG.get("p3up", 2)
    Q = VQ(); Q.q = ["old"] + ["o"]*(CFG["w5z"]+3)
    HINT = CFG.get("hint", 1)
    Q.add("o", HINT_OPS)
    if HINT == 1: A.ext(HINT_OPS)
    for f in range(CFG["w5z"], CFG["w5a"]): A.ext(Q.add("o", w5load(f)))
    B = Asm(); late_setup(B); B("v_mov_b32 v240, 2"); LS = [x.strip() for x in B.L]; cut = LS.index(f"s_and_b32 s36, s{GI}, 1") if CFG.get("lsp", 0) == 1 else len(LS)*(CFG.get("lsp", 0) == 2)
    A.ext(LS[:cut])
    A.ext(Q.wait("old"))
    A("s_barrier")
    unpack(A, ACC, RES, 10)
    A(f"v_add_f32 {v(CSP)}, {v(CSP)}, {v(CSP+1)}"); A(f"v_add_f32 {v(CSP+2)}, {v(CSP+2)}, {v(CSP+3)}"); A(f"v_add_f32 {v(CSP)}, {v(CSP)}, {v(CSP+2)}")
    A(f"v_add_u32 v146, {CSL}, v146"); A(f"ds_write_b32 v146, {v(CSP)}"); A("v_mov_b32 v3, 0"); A("ds_write_b32 v146, v3 offset:1024")
    A(f"s_lshl_b32 s36, s{W}, 2"); A(f"s_add_u32 s36, s36, {CSL+1024}"); A("v_mov_b32 v247, s36"); A(f"v_mov_b32 v145, {v(TV)}"); A(f"v_and_b32 v249, 12, {v(L4V)}"); A(f"v_add_u32 v249, {CSL+1024}, v249")
    ST.mark()
    if HINT:
        A("s_mov_b64 exec, 0xff"); poll(A, apoll(2, L4V, 84, CFG.get("at2", 1)), [2], sleep=CFG.get("f2s", 0)); A("s_mov_b64 exec, -1")
        if CFG.get("f2b"): A("s_barrier")
        ST.mark()
        Q = VQ()
        for n in range(UP): A.ext(Q.add(("a", n), al(n)))
    A.ext(LS[cut:])
    def retry(n):
        A(f"{K}_ospin{n}:")
        if n == 0 and CFG.get("opx", 0):
            poll(A, al(0)[:2], [2], sleep=CFG.get("ops", 0), post=[f"v_max3_u32 v2, {v(AF[0]+16)}, {v(AF[0]+17)}, {v(AF[0]+18)}", f"v_max_u32 v2, v2, {v(AF[0]+19)}", "v_not_b32 v2, v2"])
        poll(A, [x for m in range(n, max(UP, n+1)) for x in al(m)], [2], sleep=CFG.get("ops", 0), post=chk(n) + ["v_not_b32 v2, v2"])
        A(f"s_branch {K}_ook{n}")
    for n in range(4): COLD.append(lambda n=n: retry(n))
    br = lambda n: ["v_cmp_eq_u32 vcc, -1, v2", "s_nop 0", f"s_cbranch_vccnz {K}_ospin{n}", f"{K}_ook{n}:"]
    A.ext(Q.wait(("a", 0))); A.ext(chk(0) + br(0))
    if not HINT: ST.mark()
    T = TL(A, Q, [mf16(ACC+20*i+4*u, w3reg(5*ks+u), AF[n]+4*ks, "0" if (ks == 0 and i) else None) for n, i in enumerate(order) for u in range(5) for ks in range(5)])
    T.pre[0].append(ST.mark)
    for n in range(1, 4): T.pre[25*n-8].append(("wait", ("a", n))); T.pre[25*n] += br(n)[2:] + ([lambda: set_mode(A)] if n == 3 else [])
    k = T.spread([(("a", n), x) for n in range(UP, 4) for x in al(n)], 0, CFG.get("p3as", 2))
    for k_, what in TOUCHES("p3t"): T.spread([("t", x.replace(f"v{TV},", "v145,").replace("v248", "v144")) for x in gtouch(what)], k_, 1)
    T.spread([("w5", x) for f in range(CFG["w5a"], CFG["w5b"]) for x in w5load(f)], k+1, CFG.get("p3ws", 3.5))
    for n in range(3):
        for u in range(5): T.post[25*n+5*u+13].append((None, red_write(AC, order[n], u)))
    T.pre[66] += ["s_waitcnt lgkmcnt(1)", "s_barrier"]
    T.spread([(None, x) for x in red_read(AC, 0) + red_read(AC, 1)], 66, 2)
    T.pre[88] += ["s_waitcnt lgkmcnt(0)", "s_barrier"]
    T.spread([(None, x) for x in red_read(AC, 2)], 88, 1)
    for n in range(1, 4): T.vspread(chk(n) + br(n)[:1], 25*n-8, 25*n-1)
    T.vspread([f"v_add_f32 {v(ACC+20+i)}, {v(ACC+20+i)}, {v(ACC+40+i)}" for i in range(20)], 88, 100)
    T.emit()
    ST.mark()
    A("s_waitcnt lgkmcnt(0)")
    for i in range(0, 20, 2): A(f"v_pk_add_f32 {v(ACC+20+i,2)}, {v(ACC+20+i,2)}, {v(ACC+60+i,2)}")
    for i in range(0, 20, 2): A(f"v_pk_add_f32 {v(ACC+i,2)}, {v(ACC+i,2)}, {v(ACC+20+i,2)}")
    for i in range(10): A(f"v_cvt_pk_bf16_f32 {v(RES+i)}, {v(ACC+2*i)}, {v(ACC+2*i+1)}")
    A.ext(mode_store(A, io_frag("store", RES, "")))
    sm, sq = 112, 114
    A(f"v_pk_mul_f32 {v(sq,2)}, {v(ACC,2)}, {v(ACC,2)}"); A(f"v_pk_add_f32 {v(sm,2)}, {v(ACC,2)}, {v(ACC+2,2)}")
    for i in range(2, 20, 2):
        A(f"v_pk_fma_f32 {v(sq,2)}, {v(ACC+i,2)}, {v(ACC+i,2)}, {v(sq,2)}")
        if i > 2: A(f"v_pk_add_f32 {v(sm,2)}, {v(sm,2)}, {v(ACC+i,2)}")
    A(f"v_add_f32 {v(sm)}, {v(sm)}, {v(sm+1)}"); A(f"v_add_f32 {v(sm+1)}, {v(sq)}, {v(sq+1)}")
    quad_sum(A, [sm, sm+1], [sq, sq+1])
    A("s_mov_b64 exec, 0xffff"); A.ext(mode_store(A, [f"buffer_store_dwordx2 {v(sm,2)}, {v(P4_SV)}, {S4(SWS)}, s{S_STW} offen"])); A("s_mov_b64 exec, -1")

def phase4(A, ST):
    la, lb, hv, sv, ca, cb = P4_LA, P4_LB, P4_HV, P4_SV, P4_CA, P4_CB
    STT, HR, ACC, WB, CR = 232, 16, 96, 208, 224
    NW, HD = 3, 4
    WR = lambda n: (80 + 8*(n % 4)) if n % 4 < 2 else (WB + 8*(n % 4 - 2))
    U = [(s_, m) for s_ in range(8) for m in range(14)] + ([(s_, m) for m in range(14) for s_ in (8, 9)] if CFG.get("p4tail", 1) else [(s_, m) for s_ in (8, 9) for m in range(14)])
    def reads(n):
        s_, m = U[n]; slot = s_ % 5; j, mat = divmod(m, 2)
        base, off = (la, j*2048) if j < 6 else (lb, 0)
        return [f"ds_read_b128 {v(WR(n)+4*ks,4)}, {v(base+slot//2)} offset:{(slot%2)*28672+off+mat*1024+ks*14336}" for ks in range(2)]
    for n in range(NW): A.ext(reads(n))
    A("s_barrier")
    A("s_waitcnt vmcnt(1)")
    A.ext(mode_store(A, [f"buffer_store_dword {v(ONEV)}, off, {S4(SWS)}, s{S_F3W}"]))
    ST.mark()
    A("s_mov_b64 exec, 0xffff")
    poll(A, [f"buffer_load_dword v2, {v(L4V)}, {S4(SWS)}, s{S_F3P} offen sc1"], [2])
    A("s_mov_b64 exec, -1")
    ST.mark()
    Q = VQ()
    def hl(s_): return [f"buffer_load_dwordx4 {v(HR+16*(s_%HD)+8*n+4*ks,4)}, {v(hv if n else LV)}, {S4(SWS)}, s{S_OH} offen offset:{1024*ks} sc1" for n in range(2) for ks in range(2)] + [f"s_add_u32 s{S_OH}, s{S_OH}, 2048"]
    if CFG.get("p4x"): A(f"s_mov_b32 s95, {OOB}")
    UP = CFG.get("p4up", 2)
    for s_ in range(UP): A.ext(Q.add(("h", s_), hl(s_)))
    set_mode(A); f2_ = [f"buffer_store_dword v240, off, {S4(SWS)}, s{S_F3W}"]; A.ext(mode_store(A, f2_)); Q.add("f", f2_)
    f3l = [f"buffer_load_dwordx2 v[2:3], {v(P4_F3V)}, {S4(SWS)}, s{S_F3A} offen sc1"]
    stl = [f"buffer_load_dwordx2 {v(STT+4*n+2*c,2)}, {v(sv)}, {S4(SWS)}, s{S_STR} offen offset:{1024*n+128*c} sc1" for n in range(2) for c in range(2)]
    T = TL(A, Q, [mf16(ACC+8*m+4*nn, WR(n)+4*ks, HR+16*(s_ % HD)+8*nn+4*ks, "0" if (s_ == 0 and ks == 0) else None)
                  for n, (s_, m) in enumerate(U) for nn in ((1, 0) if (s_ == 9 and CFG.get("p4tail", 1)) else (0, 1)) for ks in range(2)])
    MS = 6; fm = []; SOFT = CFG.get("soft", 1); SG, CK = CFG.get("p4sg", 4), CFG.get("p4ck", 8)
    T.lq = [0, 0, 1, 1, 2, 2]
    for n in range(140):
        s_, m = U[n]
        T.pre[4*n].append(("lwait", n))
        if m == 0: T.pre[4*n].append(("wait", ("h", s_)))
        if 1 <= s_ < 8:
            ww = [("wait", ("w", s_+1 + (s_ == 7)))] if s_+1 >= 3 else []
            srd_ = f"ds_read_b32 v248, v249 offset:{16*s_}"
            if not SOFT:
                if m == 11: T.pre[4*n] += ww + ["s_barrier"]
            elif m == SG: T.pre[4*n+3] += ww; T.post[4*n+3].append((None, f"ds_write_b32 v247, {v(ONEV)} offset:{16*s_}"))
            elif m == CK: T.post[4*n+3].append((("g", s_), srd_))
            elif m == 10: T.pre[4*n+2].append(("lwait", ("g", s_))); T.valu[4*n+2].append("v_cmp_eq_u32 vcc, 0, v248")
            elif m == 11:
                T.pre[4*n] += [f"s_cbranch_vccnz {K}_sb{s_}", f"{K}_sk{s_}:"]
                COLD.append([f"{K}_sb{s_}:", srd_, "s_waitcnt lgkmcnt(0)", "v_cmp_eq_u32 vcc, 0, v248", "s_nop 1", f"s_cbranch_vccnz {K}_sb{s_}", f"s_branch {K}_sk{s_}"])
        e2 = n + 2 - 14*MS
        if 0 <= e2 < 28 and e2 % 2 == 0:
            e = e2//2; mu = (2*e + 6 + (e >= 7)) % 14; j, mat = divmod(mu, 2)
            T.post[4*n].append((n+2, f"ds_read_b128 {v(CR+4*(e&1),4)}, {v(ca if j < 6 else cb)} offset:{(128*j if j < 6 else 0)+64*mat}"))
            fm.append((4*(n+2), [f"v_fmac_f32 {v(ACC+8*mu+i)}, {v(CR+4*(e&1)+i%4)}, {v(STT+4*(i//4))}" for i in range(8)]))
        if n+NW < 140:
            for j, x in enumerate(reads(n+NW)): T.post[4*n+j+1].append((n+NW, x))
    T.pre[0].append(ST.mark)
    for s_ in P4ST(): T.pre[56*s_].insert(0, ST.mark)
    T.pre[56*8].append(lambda: set_mode(A))
    J = {"f3": (56, "f3", f3l), "st": (56*3, "st", stl)}
    for s_ in range(10): J[f"h{s_}"] = (56*max(0, s_-HD+1), ("h", s_), hl(s_)); J[f"w{s_}"] = (56*(s_-4)+44 if s_ >= 5 else 0, ("w", s_), p4_dma(s_))
    jobs = [J[x] for x in CFG.get("p4ord", "h2,w3,h3,w4,f3,h4,w5,h5,st,w6,h6,w7,w8,h7,w9,h8,h9").split(",") if not (x[0] == "h" and int(x[1]) < UP)]
    w5 = list(range(CFG["w5b"], 70)); LAST = CFG.get("p4last", 9.0)
    cnt = lambda L: sum(1 for x in L if not is_salu(x))
    step = (56*LAST - 4)/(sum(cnt(j[2]) for j in jobs) + len(w5)); step = min(step, CFG.get("p4sp", 9)); kk = 3
    for k0, tag, ops in jobs:
        while kk + step <= k0 + 3 and w5 and w5[0] < 64: kk = T.spread([("w5", x) for x in w5load(w5.pop(0))], kk, step)
        kk = T.spread([(tag, x) for x in ops], max(kk, k0+3), step)
    step = (56*LAST - kk)/max(len(w5), 1)
    for f in w5: kk = T.spread([("w5", x) for x in w5load(f)], max(kk, 56*8+3 if f >= 64 else 0), step)
    for k0, ops in fm: T.vspread(ops, k0, k0+8)
    B = Asm()
    for n in range(2):
        for i in range(2): B(f"v_add_f32 {v(STT+4*n+i)}, {v(STT+4*n+i)}, {v(STT+4*n+2+i)}")
    quad_sum(B, [STT, STT+1, STT+4, STT+5], [STT+2, STT+3, STT+6, STT+7])
    for n in range(2):
        nm, r2 = STT+4*n, STT+4*n+2
        B(f"v_mul_f32 {v(nm)}, {hex(f2u(-1/640))}, {v(nm)}"); B(f"v_mul_f32 {v(r2)}, {hex(f2u(1/640))}, {v(nm+1)}")
        B(f"v_fma_f32 {v(r2)}, -{v(nm)}, {v(nm)}, {v(r2)}"); B(f"v_max_f32 {v(r2)}, 0, {v(r2)}"); B(f"v_add_f32 {v(r2)}, {hex(f2u(1e-5))}, {v(r2)}"); B(f"v_rcp_f32 {v(r2)}, {v(r2)}")
    T.pre[56*4+20].append(("wait", "st"))
    k = 56*4+20
    for x in (x.strip() for x in B.L if "s_nop" not in x):
        while T.cost(k) > 4: k += 1
        T.valu[k].append(x); k += 2 if ("permlane" in x or "v_mov" in x) else 1
    assert k <= 56*6
    T.pre[56*3] += [("wait", "f3"), "v_min_u32 v2, v2, v3", "v_cmp_gt_u32 vcc, 2, v2", "s_nop 1", f"s_cbranch_vccnz {K}_f3spin", f"{K}_f3ok:"]
    if CFG.get("wb4"):
        def wb():
            lab = A.label("nowb"); A(f"s_or_b32 s36, s{W}, s{GI}"); A(f"s_cbranch_scc1 {lab}"); A("buffer_wbl2 sc1"); A(f"{lab}:")
        T.pre[CFG["wb4"]].append(wb)
    T.vspread([f"v_add_u32 {v(hv)}, 55296, {v(LV)}"], 56*8+1, 56*8+5)
    COLD.append(lambda: (A(f"{K}_f3spin:"), poll(A, f3l, [2], sleep=4, post=["v_min_u32 v2, v2, v3", "v_lshrrev_b32 v2, 1, v2"]), A(f"s_branch {K}_f3ok")))
    OB = 48
    def strip(j, n, pk):
        r2 = STT+4*n+2; o = OB + 8*((j >> 1) % 2) + 4*n + 2*(j & 1); g, u = ACC+16*j+4*n, ACC+16*j+8+4*n
        if pk: L = [f"v_pk_mul_f32 {v(g+i,2)}, {v(g+i,2)}, {v(r2,2)} op_sel_hi:[1,0]" for i in (0, 2)] + [f"v_pk_mul_f32 {v(g+i,2)}, {v(g+i,2)}, {v(u+i,2)}" for i in (0, 2)]
        else: L = [f"v_mul_f32 {v(g+i)}, {v(g+i)}, {v(r2)}" for i in range(4)] + [f"v_mul_f32 {v(g+i)}, {v(g+i)}, {v(u+i)}" for i in range(4)]
        return L + [f"v_cvt_pk_bf16_f32 {v(o+i)}, {v(g+2*i)}, {v(g+2*i+1)}" for i in range(2)]
    def hst(a_): return [f"buffer_store_dwordx{4 if a_ < 3 else 2} {v(OB+8*(a_%2)+4*n, 4 if a_ < 3 else 2)}, {v(hv if n else LV)}, {S4(SWS)}, s{33 if a_ == 0 else S_OHH if a_ < 3 else S_OH1} offen" + (f" offset:{1024*a_}" if a_ < 3 else "") for n in range(2)]
    NI = CFG.get("p4ni", 6 if CFG.get("p4tail", 1) else 4); k = 0
    for j in range(NI):
        k0 = max(k, (56*8 + 16*(j+1) + 3) if CFG.get("p4tail", 1) else (56*9 + 8*(j+1) + 5))
        a0, a1 = strip(j, 1, False), strip(j, 0, False)
        k = T.vspread(a0[:4] + a1[:4] + a0[4:] + a1[4:], k0, min(k0+12, 560), cap=CFG.get("p4cap", 2))
        if j & 1 and k < 560:
            st_ = hst(j >> 1); T.post[k].append((None, (lambda st_=st_: (A.ext(mode_store(A, st_)), Q.add("hh", st_)))))
    stored = [j >> 1 for j in range(NI) if j & 1]
    if NI and NI % 2 == 0 and k >= 560: stored.pop()
    T.emit()
    ST.mark()
    for a_ in range(4):
        for j in ([2*a_, 2*a_+1] if a_ < 3 else [6]):
            if j >= NI:
                a0, a1 = strip(j, 1, True), strip(j, 0, True)
                A.ext(a0[:2] + a1[:2] + (["s_nop 1"] if j == NI else []) + a0[2:] + a1[2:])
        if a_ not in stored: A.ext(mode_store(A, hst(a_))); Q.add("hh", hst(a_))
    return Q

def phase5(A, ST, Q):
    AC, RES = (16, 36, 80, 204), 232
    AFG = [100+4*i for i in range(26)] + [56, 60]
    AF = lambda n, ks: AFG[14*(n & 1)+ks]
    A(f"v_add_u32 v14, s92, {v(LV)}")
    A(f"v_lshrrev_b32 v15, 4, {v(LANE)}"); A(f"v_mul_u32_u24 v15, 64, v15"); A(f"v_add_u32 v15, v15, {v(L4V)}")
    A("s_waitcnt vmcnt(0)")
    A.ext(mode_store(A, [f"buffer_store_dword {v(ONEV)}, off, {S4(SWS)}, s{S_F4W}"]))
    ST.mark()
    A("s_mov_b32 exec_hi, 0")
    poll(A, [f"buffer_load_dword v2, v15, {S4(SWS)}, s{S_F4P} offen sc1"], [2])
    A("s_mov_b64 exec, -1")
    ST.mark()
    Q = VQ()
    order = (1, 2, 3, 0)
    def al(n, ks):
        i = order[n]
        L = [f"buffer_load_dwordx4 {v(AF(n,ks),4)}, {v(14 if ks == 13 else LV)}, {S4(SWS)}, s{S_A5+i} offen offset:{1024*(ks&3)} sc1"]
        if ks & 3 == 3: L.append(f"s_add_u32 s{S_A5+i}, s{S_A5+i}, 4096")
        return L
    UP = CFG.get("p5up", 8); STEP = CFG.get("p5st", 4)
    for ks in range(UP): A.ext(Q.add((0, ks), al(0, ks)))
    T = TL(A, Q, [mf16(AC[i]+4*u, w5reg(5*ks+u), AF(n, ks), "0" if (ks == 0 and i) else None)
                  for n, i in enumerate(order) for kp in range(7) for u in range(5) for ks in (2*kp, 2*kp+1)])
    for n in range(4):
        for kp in range(7): T.pre[70*n+10*kp].append(("wait", (n, 2*kp+1)))
    T.pre[0].append(ST.mark)
    T.pre[60].append("s_barrier")
    for n in range(3):
        for u in range(5): T.post[70*(n+1)+2+5*u].append((None, red_write(AC, order[n], u)))
    k = 0
    for g in range(UP, 56):
        n, ks = divmod(g, 14)
        if n >= 2: k = max(k, 70*(n-2) + 10*(ks//2+1) - 1)
        if g == 36: k = T.spread([("res", x) for x in io_frag("load", RES, "sc1")], k, STEP)
        assert k+3 < 70*n + 10*(ks//2)
        k = T.spread([((n, ks), x) for x in al(n, ks)], k, STEP)
    B = Asm(); unpack(B, AC[0], RES, 10)
    T.pre[180].append(("wait", "res")); T.vspread([x.strip() for x in B.L], 180, 206)
    if CFG.get("wb"):
        def wb():
            lab = A.label("nowb"); A(f"s_or_b32 s36, s{W}, s{GI}"); A(f"s_cbranch_scc1 {lab}"); A("buffer_wbl2 sc1"); A(f"{lab}:")
        T.pre[CFG["wb"]].append(wb)
    T.pre[237] += ["s_waitcnt lgkmcnt(0)", "s_barrier"]
    T.spread([(None, x) for sl in range(3) for x in red_read(AC, sl)], 237, 1)
    T.pre[254].append("s_waitcnt lgkmcnt(5)"); T.vspread([f"v_add_f32 {v(AC[1]+i)}, {v(AC[1]+i)}, {v(AC[2]+i)}" for i in range(20)], 254, 266)
    T.pre[266].append("s_waitcnt lgkmcnt(0)"); T.vspread([f"v_add_f32 {v(AC[1]+i)}, {v(AC[1]+i)}, {v(AC[3]+i)}" for i in range(20)], 266, 280)
    T.emit()
    ST.mark()
    A("s_nop 1")
    for i in range(0, 20, 2): A(f"v_pk_add_f32 {v(AC[0]+i,2)}, {v(AC[0]+i,2)}, {v(AC[1]+i,2)}")
    for i in range(10): A(f"v_cvt_pk_bf16_f32 {v(RES+i)}, {v(AC[0]+2*i)}, {v(AC[0]+2*i+1)}")
    A.ext(io_rm("store", RES, SA))

def build(**cfg):
    CFG.update(cfg)
    A = Asm(); ST = Stamps(A)
    kstart(A, K)
    if CFG.get("empty"): A("s_endpgm")
    ST.mark()
    if CFG.get("probe"):
        off, base = {"bx": (24, 0), "ws": (72, 40 << 20), "out": (56, 0), "wd": (48, 0)}[CFG["probe"]]
        A(f"s_load_dwordx2 s[4:5], s[0:1], {off}"); A("s_waitcnt lgkmcnt(0)"); A(f"s_mov_b32 s6, {base + (2<<20)}"); A("s_mov_b32 s7, 0x20000")
        A("s_and_b32 s8, s2, 255"); A("s_lshl_b32 s8, s8, 9"); A(f"s_add_u32 s8, s8, {base}"); A("v_lshrrev_b32 v2, 6, v0"); A("v_lshlrev_b32 v2, 7, v2")
        for i in range(16):
            A("buffer_load_dword v3, v2, s[4:7], s8 offen"); A("s_waitcnt vmcnt(0)"); A("s_add_u32 s8, s8, 131072")
    COLD.clear(); phase1(A, ST)
    cold = phase2(A, ST)
    phase3(A, ST); phase5(A, ST, phase4(A, ST))
    ST.flush()
    A("s_endpgm")
    cold()
    for c in COLD: c() if callable(c) else A.ext(c)
    A(f"{K}_end:")
    A("s_endpgm")
    kdesc(A, K, 512, acc=256)
    head = open(f"cdna_kernels/{NAME}.s.ref").read().split("; Override launch")[0]
    head += "; @launch grid=(256,1,1) block=(256,1,1) lds=163840\n"
    return head + '.amdgcn_target "amdgcn-amd-amdhsa--gfx950"\n' + A.text()

if __name__ == "__main__":
    out = sys.argv[1] if len(sys.argv) > 1 else f"cdna_kernels/{NAME}.s"
    cfg = {}
    for x in sys.argv[2:]:
        k, val = x.split("=")
        cfg[k] = int(val) if val.lstrip("-").isdigit() else float(val) if val.replace(".", "", 1).isdigit() else val
    txt = build(**cfg)
    names = STAMP_NAMES[:3] + [f"p1 kstep {g}" for g in P1ST()] + STAMP_NAMES[3:8] + [f"att body {b}" for b in ASTAMPS()] + STAMP_NAMES[8:16] + [f"p4 stage {b}" for b in P4ST()] + STAMP_NAMES[16:]
    if CFG["stamps"]: txt = txt.replace(".amdgcn_target", "; STAMPS " + "|".join(names) + "\n.amdgcn_target", 1)
    open(out, "w").write(txt)
```
